```python
import torch

def _softmax(x, axis=-1):
    return torch.softmax(x, dim=axis)
def _gelu(x):
    return torch.nn.functional.gelu(x, approximate="tanh")
def _silu(x):
    return torch.nn.functional.silu(x)
def _sigmoid(x):
    return torch.sigmoid(x)
def _layernorm(x, axis=-1, eps=1e-5):
    m = x.mean(dim=axis, keepdim=True)
    v = x.var(dim=axis, keepdim=True, unbiased=False)
    return (x - m) / torch.sqrt(v + eps)
def _scatter_add(tgt, idx, src, axis=0):
    return tgt.clone().index_add_(axis, idx, src)
def _segment_sum(src, seg, n):
    out = torch.zeros((n,) + src.shape[1:], dtype=src.dtype)
    return out.index_add_(0, seg, src)
def _pad(x, pw):
    flat = tuple(v for pair in reversed(pw) for v in pair)
    return torch.nn.functional.pad(x, flat)

kernel_name = 'interleave_layers__sliding_local_dilated__mixer_channel_mlp__prompt'

def setup_inputs():

    _w = (lambda a: (lambda t: t.to(torch.bfloat16) if t.is_floating_point() else t)(torch.as_tensor(a)))
    def _A_setup():
        B, S, D = 1, 2048, 576
        return {
            "x": _w((lambda *s: torch.randn(*s, dtype=torch.bfloat16) * 0.05)(B, S, D)),
            "wqkv": _w((lambda *s: torch.randn(*s, dtype=torch.bfloat16) * 0.05)(D, 3 * D)),
            "wo": _w((lambda *s: torch.randn(*s, dtype=torch.bfloat16) * 0.05)(D, D)),
        }
    _A_in = _A_setup()

    def _B_setup():
        B, S, D, F = 1, 2048, 576, 4608
        return {
            "x": _w((lambda *s: torch.randn(*s, dtype=torch.bfloat16) * 0.05)(B, S, D)),
            "w1": _w((lambda *s: torch.randn(*s, dtype=torch.bfloat16) * 3.2)(D, F) * (D ** -0.5)),
            "b1": _w((lambda *s: torch.randn(*s, dtype=torch.bfloat16) * 0.8)(F)),
            "w2": _w((lambda *s: torch.randn(*s, dtype=torch.bfloat16) * 0.2)(F, D) * (F ** -0.5)),
            "b2": _w((lambda *s: torch.randn(*s, dtype=torch.bfloat16) * 0.2)(D)),
        }
    _B_in = _B_setup()

    return {
        "A_x": _A_in["x"],
        "A_wqkv": _A_in["wqkv"],
        "A_wo": _A_in["wo"],
        "B_x": _B_in["x"],
        "B_w1": _B_in["w1"],
        "B_b1": _B_in["b1"],
        "B_w2": _B_in["w2"],
        "B_b2": _B_in["b2"],
    }

def reference(A_x, A_wqkv, A_wo, B_x, B_w1, B_b1, B_w2, B_b2):
    def _A_ref(x, wqkv, wo):
        B, S, D = x.shape
        H = 32; Dh = D // H
        W, dil = 8, 2
        qkv = (lambda x, *d: x.permute(*d))((x @ wqkv).reshape(B, S, 3, H, Dh), 2, 0, 3, 1, 4)
        q, k, v = qkv[0], qkv[1], qkv[2]
        scale = Dh ** -0.5
        pos = torch.arange(S)
        off = torch.arange(W) * dil
        idx = pos[:, None] - off[None, :]
        mask = idx >= 0
        idx_c = torch.where(mask, idx, 0).reshape(-1)
        kg = k[:, :, idx_c, :].reshape(B, H, S, W, Dh)
        vg = v[:, :, idx_c, :].reshape(B, H, S, W, Dh)
        logits = torch.einsum("bhsd,bhswd->bhsw", q, kg) * scale
        logits = torch.where(mask[None, None, :, :], logits, -1e9)
        attn = _softmax(logits, axis=-1)
        o = torch.einsum("bhsw,bhswd->bhsd", attn, vg)
        return (lambda x, *d: x.permute(*d))(o, 0, 2, 1, 3).reshape(B, S, D) @ wo

    def _B_ref(x, w1, b1, w2, b2):
        y = _layernorm(x, axis=-1)
        h = _gelu(torch.einsum("bsd,df->bsf", y, w1) + b1)
        return torch.einsum("bsf,fd->bsd", h, w2) + b2

    x = A_x
    x = x + _A_ref(_layernorm(x, axis=-1), A_wqkv, A_wo)
    x = x + _B_ref(_layernorm(x, axis=-1), B_w1, B_b1, B_w2, B_b2)
    x = x + _A_ref(_layernorm(x, axis=-1), A_wqkv, A_wo)
    x = x + _B_ref(_layernorm(x, axis=-1), B_w1, B_b1, B_w2, B_b2)
    return x
```

```python
import re

REG_RE = re.compile(r"\b([vas])\[(\d+):(\d+)\]|\b([vas])(\d+)\b|\b(vcc|exec|m0|scc)\b")
TRANS = ("v_exp_f32", "v_log_f32", "v_rcp_f32", "v_rsq_f32", "v_sqrt_f32", "v_sin_f32", "v_cos_f32")


def regs_of(tok):
    out = []
    for m in REG_RE.finditer(tok):
        if m.group(1):
            out += [(m.group(1), i) for i in range(int(m.group(2)), int(m.group(3)) + 1)]
        elif m.group(4):
            out.append((m.group(4), int(m.group(5))))
        else:
            out.append((m.group(6), 0))
    return out


class Ins:
    __slots__ = ("text", "op", "cls", "wr", "rd", "srcc", "passes", "ws", "wide_store_data", "ab")

    def __init__(self, text):
        self.text = text
        t = text.split(";")[0].strip()
        parts = t.split(None, 1)
        self.op = op = parts[0]
        ops = [o.strip() for o in parts[1].split(",")] if len(parts) > 1 else []
        self.wr = set(); self.rd = set(); self.srcc = set(); self.ab = set()
        self.passes = 0; self.ws = 1; self.wide_store_data = set()
        if op == "s_nop":
            self.cls = "nop"; self.ws = int(ops[0], 0) + 1
        elif op.startswith("v_mfma"):
            self.cls = "mfma"
            self.passes = 8 if "32x32" in op else 4
            self.wr = set(regs_of(ops[0]))
            self.ab = set(regs_of(ops[1])) | set(regs_of(ops[2]))
            self.srcc = set(regs_of(ops[3]))
            self.rd = self.ab | self.srcc
        elif op.startswith("v_"):
            self.cls = "valu"
            if op.startswith("v_permlane"):
                self.wr = set(regs_of(ops[0])) | set(regs_of(ops[1])); self.rd = set(self.wr)
            else:
                self.wr = set(regs_of(ops[0]))
                for o in ops[1:]:
                    self.rd |= set(regs_of(o))
                if op.startswith(("v_fmac", "v_dot2c", "v_mac")):
                    self.rd |= self.wr
                if op.startswith(("v_add_co", "v_sub_co", "v_addc_co")):
                    self.wr |= set(regs_of(ops[1]))
        elif op.startswith(("buffer_", "global_")):
            self.cls = "vmem"
            last = ops[-1] if ops else ""
            is_lds = bool(re.search(r"\blds\b", t)) or "load_lds" in op
            if "load" in op and not is_lds:
                self.wr = set(regs_of(ops[0]))
                for o in ops[1:]:
                    self.rd |= set(regs_of(o))
            else:
                for o in ops:
                    self.rd |= set(regs_of(o))
                if is_lds:
                    self.rd.add(("m0", 0))
                if "store" in op and ("x4" in op or "x3" in op):
                    di = 0 if op.startswith("buffer_") else 1
                    self.wide_store_data = set(regs_of(ops[di]))
                if "atomic" in op and "sc0" in t:
                    self.wr = set(regs_of(ops[0]))
        elif op.startswith("ds_"):
            self.cls = "ds"
            if op.startswith(("ds_read", "ds_bpermute", "ds_permute", "ds_swizzle")):
                self.wr = set(regs_of(ops[0]))
                for o in ops[1:]:
                    self.rd |= set(regs_of(o))
            else:
                for o in ops:
                    self.rd |= set(regs_of(o))
        else:
            self.cls = "salu"
            if op.startswith(("s_cmp", "s_cbranch", "s_branch", "s_waitcnt", "s_barrier", "s_endpgm", "s_setprio", "s_sleep")):
                for o in ops:
                    self.rd |= set(regs_of(o))
            elif ops:
                self.wr = set(regs_of(ops[0]))
                for o in ops[1:]:
                    self.rd |= set(regs_of(o))


def vg(s):
    return {r for r in s if r[0] in ("v", "a")}


def sg(s):
    return {r for r in s if r[0] in ("s", "vcc", "exec")}


def need(p, c):
    n = 0
    if p.cls == "valu":
        pv = vg(p.wr); ps = sg(p.wr)
        if c.cls == "mfma" and pv & c.rd:
            n = max(n, 2)
        if c.cls == "valu":
            if p.op in TRANS and pv & c.rd:
                n = max(n, 1)
            if c.op.startswith("v_permlane") and pv & c.rd:
                n = max(n, 2)
            if "dpp" in c.text and pv & c.rd:
                n = max(n, 2)
            if c.op.startswith(("v_readfirstlane", "v_readlane")) and pv & c.rd:
                n = max(n, 1)
            if ps & c.rd:
                n = max(n, 4 if c.op.startswith(("v_readlane", "v_writelane")) else 2)
            if ("sdwa" in p.text or "op_sel" in p.text) and pv & (c.rd | c.wr):
                n = max(n, 1)
            if p.op.startswith("v_dot2") and pv & (c.rd | c.wr):
                if not (c.op == p.op and (pv & c.wr) and p.op.startswith("v_dot2c") and not (pv & (c.rd - c.wr))):
                    n = max(n, 3)
        if p.op.startswith("v_dot2") and c.cls in ("vmem", "ds", "mfma") and pv & c.rd:
            n = max(n, 3)
        if p.op in TRANS and c.cls in ("vmem", "ds") and pv & c.rd:
            n = max(n, 1)
        if c.cls == "vmem" and ps & c.rd:
            n = max(n, 5)
        if c.cls == "salu" and ps & c.rd:
            n = max(n, 1)
    elif p.cls == "mfma":
        big = 12 if p.passes == 8 else 8
        if c.cls == "mfma":
            if p.wr & c.ab:
                n = max(n, big)
            if p.wr & c.srcc:
                if not (p.wr == c.srcc and p.passes == c.passes):
                    n = max(n, 10 if p.passes == 8 else 6)
            elif p.wr & c.wr:
                n = max(n, 10 if p.passes == 8 else 6)
        elif c.cls in ("valu", "vmem", "ds"):
            if p.wr & (c.rd | c.wr):
                n = max(n, big)
            if c.cls == "valu" and p.srcc & c.wr:
                n = max(n, 7 if p.passes == 8 else 3)
            if c.cls in ("vmem", "ds") and p.srcc & c.wr:
                n = max(n, 7 if p.passes == 8 else 3)
    elif p.cls == "salu":
        if ("m0", 0) in p.wr and c.cls == "vmem" and ("m0", 0) in c.rd:
            n = max(n, 1)
    elif p.cls == "vmem":
        if p.wide_store_data and (p.wide_store_data & c.wr):
            n = max(n, 2 if c.cls == "valu" else 1)
    return n


class Asm:
    def __init__(self):
        self.out = []
        self.hist = []
        self.nins = 0

    def raw(self, text):
        self.out.append(text)

    def comment(self, t):
        self.out.append("    ; " + t)

    def label(self, name, safe=True):
        if safe:
            self.flush()
        self.out.append(name + ":")

    def flush(self):
        worst = 0
        dist = 0
        for p in reversed(self.hist):
            w = 0
            if p.cls == "mfma":
                w = 12 if p.passes == 8 else 8
            elif p.cls == "valu":
                w = 5 if sg(p.wr) else 3
            elif p.cls == "salu" and ("m0", 0) in p.wr:
                w = 1
            elif p.cls == "vmem" and p.wide_store_data:
                w = 2
            worst = max(worst, w - dist)
            dist += p.ws
            if dist > 12:
                break
        if worst > 0:
            self._nop(worst)
        self.hist = []

    def _nop(self, n):
        while n > 0:
            k = min(n, 16)
            i = Ins(f"s_nop {k-1}")
            self.out.append("    " + i.text)
            self.hist.append(i)
            n -= k

    def __call__(self, text):
        for line in text.strip().split("\n"):
            line = line.strip()
            if not line or line.startswith(";"):
                continue
            self.emit(line)

    def emit(self, text):
        c = Ins(text)
        dist = 0
        worst = 0
        for p in reversed(self.hist):
            nd = need(p, c)
            if nd - dist > worst:
                worst = nd - dist
            dist += p.ws
            if dist > 12:
                break
        if worst > 0:
            self._nop(worst)
        if c.op.startswith(("s_cbranch", "s_branch")):
            self.flush()
        self.out.append("    " + text)
        self.hist.append(c)
        if len(self.hist) > 32:
            self.hist = self.hist[-24:]
        self.nins += 1

    def text(self):
        return "\n".join(self.out) + "\n"


KD = '''.p2align 6
.amdhsa_kernel {name}
  .amdhsa_next_free_vgpr {vgpr}
  .amdhsa_next_free_sgpr {sgpr}
  .amdhsa_accum_offset {accum}
  .amdhsa_group_segment_fixed_size 0
  .amdhsa_kernarg_size 88
  .amdhsa_user_sgpr_count 2
  .amdhsa_user_sgpr_kernarg_segment_ptr 1
  .amdhsa_system_sgpr_workgroup_id_x 1
.end_amdhsa_kernel
'''


def vr(base, n=1):
    return f"v{base}" if n == 1 else f"v[{base}:{base+n-1}]"


def ar(base, n=1):
    return f"a{base}" if n == 1 else f"a[{base}:{base+n-1}]"


def sr(base, n=1):
    return f"s{base}" if n == 1 else f"s[{base}:{base+n-1}]"
```

```python
import sys, struct, json, math
from asmb import Asm, KD, vr, ar, sr

NAME = "interleave_layers__sliding_local_dilated__mixer_channel_mlp__prompt"
S, D, F = 2048, 576, 4608
XT = S * D * 2
TILE = 18432
OOB = 0x10000000
WS_BYTES = 0x10000000


def f32(x):
    return "0x%08x" % struct.unpack("<I", struct.pack("<f", x))[0]


class WS:
    pass


def layout():
    off = 0
    L = {}

    def alloc(name, n):
        nonlocal off
        L[name] = off
        off += (n + 4095) // 4096 * 4096
    alloc("WQ", 16 * 18 * 7 * 1024)
    alloc("CQ", 16 * 7 * 64)
    alloc("WO", 36 * 18 * 1024)
    alloc("W12", 8 * 12 * 36 * 3072)
    alloc("BC1", F * 8 + 4096)
    alloc("X0", XT); alloc("ST0", S * 32)
    for l in (0, 1):
        alloc(f"O{l}", XT)
        alloc(f"X1_{l}", XT); alloc(f"ST1_{l}", S * 32)
        alloc(f"PART{l}", 8 * XT)
    alloc("X2", XT); alloc("ST2", S * 32)
    L["END"] = off
    return L


L = layout()


class Cnt:
    def __init__(self, a, name, maxv):
        self.a = a; self.name = name; self.maxv = maxv; self.q = []

    def issue(self, tag):
        self.q.append(tag)

    def wait(self, tag):
        if tag not in self.q:
            return
        i = len(self.q) - 1 - self.q[::-1].index(tag)
        n = len(self.q) - 1 - i
        n = min(n, self.maxv)
        self.a(f"s_waitcnt {self.name}({n})")
        self.q = self.q[len(self.q) - n:] if n else []

    def wait_all(self):
        self.a(f"s_waitcnt {self.name}(0)")
        self.q = []


def header(a, name, nwg):
    a.raw(f".globl {name}\n.p2align 8\n.type {name},@function\n{name}:")
    a(f"s_cmp_ge_u32 s2, {nwg}")
    a(f"s_cbranch_scc1 {name}_end")


def footer(a, name):
    a.label(f"{name}_end")
    a("s_endpgm")


def srd(a, d, base, nbytes):
    a(f"s_mov_b32 s{d}, s{base}")
    a(f"s_and_b32 s{d+1}, s{base+1}, 0xffff")
    a(f"s_mov_b32 s{d+2}, {nbytes}")
    a(f"s_mov_b32 s{d+3}, 0x00020000")


def xg_reduce(a, op, v, t):
    a(f"v_mov_b32 v{t}, v{v}")
    a(f"v_permlane16_swap_b32 v{v}, v{t}")
    a(f"{op} v{v}, v{v}, v{t}")
    a(f"v_mov_b32 v{t}, v{v}")
    a(f"v_permlane32_swap_b32 v{v}, v{t}")
    a(f"{op} v{v}, v{v}, v{t}")


def gen_p0():
    name = "p0_kernel"
    NWG = 213
    a = Asm()
    header(a, name, NWG)
    a("s_load_dwordx4 s[16:19], s[0:1], 0")
    a("s_load_dwordx2 s[20:21], s[0:1], 16")
    a("s_load_dwordx4 s[24:27], s[0:1], 32")
    a("s_load_dwordx2 s[28:29], s[0:1], 48")
    a("s_load_dwordx2 s[30:31], s[0:1], 80")
    a("v_and_b32 v1, 63, v0")
    a("v_lshrrev_b32 v2, 6, v0")
    a("v_readfirstlane_b32 s3, v2")
    a("v_lshlrev_b32 v3, 4, v1")
    a("v_and_b32 v4, 15, v1")
    a("v_lshrrev_b32 v5, 4, v1")
    a("v_lshrrev_b32 v6, 1, v1")
    a("v_and_b32 v7, 1, v1")
    a("s_mul_i32 s40, s3, 18432")
    a("s_waitcnt lgkmcnt(0)")
    srd(a, 8, 30, WS_BYTES)
    a(f"s_mov_b32 s36, {OOB}")
    a(f"s_mov_b32 s37, {OOB}")
    a("v_lshlrev_b32 v9, 2, v4")
    a("v_mov_b32 v10, 0")
    a("s_cmp_ge_u32 s2, 181")
    a(f"s_cbranch_scc1 {name}_x")
    a("s_cmp_ge_u32 s2, 172")
    a(f"s_cbranch_scc1 {name}_wo")
    a("s_cmp_ge_u32 s2, 144")
    a(f"s_cbranch_scc1 {name}_wq")
    a("s_and_b32 s41, s2, 7")
    a("s_lshr_b32 s42, s2, 3")
    a("s_cmp_ge_u32 s42, 9")
    a(f"s_cbranch_scc1 {name}_w2")
    srd(a, 12, 24, D * F * 2)
    a("s_lshl_b32 s43, s42, 2")
    a("s_add_u32 s43, s43, s3")
    a("v_mul_u32_u24 v8, 9216, v6")
    a("v_lshl_add_u32 v8, v7, 4, v8")
    a("s_mul_i32 s32, s41, 1152")
    a("s_lshl_b32 s44, s43, 5")
    a("s_add_u32 s32, s32, s44")
    a(f"s_mov_b32 s33, {32*9216}")
    a("s_mov_b32 s45, 0")
    a("s_lshr_b32 s46, s32, 1")
    a("s_lshl_b32 s36, s46, 3")
    a(f"s_add_u32 s36, s36, {L['BC1']}")
    a("s_add_u32 s37, s36, 16")
    a("v_lshrrev_b32 v9, 2, v4")
    a("v_lshlrev_b32 v9, 5, v9")
    a("v_and_b32 v11, 3, v4")
    a("v_lshl_add_u32 v9, v11, 2, v9")
    srd(a, 48, 26, F * 2)
    a("v_lshlrev_b32 v11, 1, v4")
    a("buffer_load_ushort v10, v11, s[48:51], s32 offen")
    a(f"s_branch {name}_w12")
    a.label(f"{name}_w2")
    srd(a, 12, 28, D * F * 2)
    a("s_sub_u32 s42, s42, 9")
    a("s_lshl_b32 s43, s42, 2")
    a("s_add_u32 s43, s43, s3")
    a("v_mul_u32_u24 v8, 1152, v6")
    a("v_lshl_add_u32 v8, v7, 4, v8")
    a(f"s_mul_i32 s32, s41, {576*1152}")
    a("s_lshl_b32 s44, s43, 5")
    a("s_add_u32 s32, s32, s44")
    a(f"s_mov_b32 s33, {32*1152}")
    a(f"s_mov_b32 s45, {18*3072}")
    a.label(f"{name}_w12")
    a("s_mul_i32 s46, s43, 43691")
    a("s_lshr_b32 s46, s46, 17")
    a("s_mul_i32 s47, s46, 3")
    a("s_sub_u32 s47, s43, s47")
    a("s_mul_i32 s34, s41, 12")
    a("s_add_u32 s34, s34, s46")
    a(f"s_mul_i32 s34, s34, {36*3072}")
    a("s_lshl_b32 s47, s47, 10")
    a("s_add_u32 s34, s34, s47")
    a("s_add_u32 s34, s34, s45")
    a(f"s_add_u32 s34, s34, {L['W12']}")
    a("s_mov_b32 s35, 3072")
    a(f"s_branch {name}_gen")

    a.label(f"{name}_wq")
    srd(a, 12, 18, D * 3 * D * 2)
    a("s_sub_u32 s41, s2, 144")
    a("s_lshl_b32 s41, s41, 2")
    a("s_add_u32 s41, s41, s3")
    a("s_mul_i32 s42, s41, 9363")
    a("s_lshr_b32 s42, s42, 16")
    a("s_mul_i32 s43, s42, 7")
    a("s_sub_u32 s43, s41, s43")
    a(f"s_mul_i32 s34, s42, {18*7168}")
    a("s_lshl_b32 s44, s43, 10")
    a("s_add_u32 s34, s34, s44")
    a(f"s_add_u32 s34, s34, {L['WQ']}")
    a("s_mov_b32 s35, 7168")
    a("s_lshl_b32 s36, s41, 6")
    a(f"s_add_u32 s36, s36, {L['CQ']}")
    a(f"s_mov_b32 s33, {32*3456}")
    a("s_cmp_eq_u32 s43, 6")
    a(f"s_cbranch_scc1 {name}_wqrem")
    a("s_lshr_b32 s44, s43, 1")
    a("s_mul_i32 s44, s44, 1152")
    a("s_and_b32 s45, s43, 1")
    a("s_lshl_b32 s46, s42, 1")
    a("s_add_u32 s45, s45, s46")
    a("s_mul_i32 s45, s45, 36")
    a("s_add_u32 s32, s44, s45")
    a("v_mul_u32_u24 v8, 3456, v6")
    a("v_lshl_add_u32 v8, v7, 4, v8")
    a(f"s_branch {name}_gen")
    a.label(f"{name}_wqrem")
    a("v_and_b32 v11, 7, v1")
    a("v_and_b32 v12, 1, v11")
    a("v_lshrrev_b32 v13, 1, v11")
    a("v_mul_u32_u24 v14, 1152, v12")
    a("v_mul_u32_u24 v15, 36, v13")
    a("v_add_u32 v14, v14, v15")
    a("v_mul_u32_u24 v15, 36, v12")
    a("v_add_u32 v15, 2304, v15")
    a("v_cmp_gt_u32 vcc, 4, v11")
    a("v_cndmask_b32 v14, v15, v14, vcc")
    a("v_mov_b32 v15, 0x40000000")
    a("v_cmp_gt_u32 vcc, 6, v11")
    a("v_cndmask_b32 v14, v15, v14, vcc")
    a("v_lshrrev_b32 v15, 3, v1")
    a("v_mul_u32_u24 v15, 3456, v15")
    a("v_add_u32 v8, v14, v15")
    a("s_mul_i32 s32, s42, 72")
    a("s_add_u32 s32, s32, 32")
    a("s_mov_b32 m0, s40")
    for i in range(72):
        a("buffer_load_dword v8, s[12:15], s32 offen lds")
        a(f"s_add_u32 s32, s32, {8*3456}")
        a("s_add_u32 m0, m0, 256")
    a(f"s_branch {name}_tail")

    a.label(f"{name}_wo")
    srd(a, 12, 20, D * D * 2)
    a("s_sub_u32 s41, s2, 172")
    a("s_lshl_b32 s41, s41, 2")
    a("s_add_u32 s41, s41, s3")
    a("s_mul_i32 s34, s41, 18432")
    a(f"s_add_u32 s34, s34, {L['WO']}")
    a("s_mov_b32 s35, 1024")
    a("s_lshl_b32 s32, s41, 5")
    a("v_lshrrev_b32 v11, 5, v1")
    a("v_mul_u32_u24 v11, 18, v11")
    a("v_and_b32 v12, 15, v6")
    a("v_add_u32 v11, v11, v12")
    a("v_mul_u32_u24 v8, 1152, v11")
    a("v_lshl_add_u32 v8, v7, 4, v8")
    a("v_lshrrev_b32 v11, 3, v1")
    a("v_mul_u32_u24 v11, 36, v11")
    a("v_and_b32 v12, 3, v6")
    a("v_lshrrev_b32 v13, 1, v12")
    a("v_lshlrev_b32 v13, 4, v13")
    a("v_add3_u32 v11, v11, v12, v13")
    a("v_add_u32 v11, 16, v11")
    a("v_mul_u32_u24 v11, 1152, v11")
    a("v_lshl_add_u32 v11, v7, 4, v11")
    a("s_mov_b32 m0, s40")
    a("s_mov_b32 s44, s32")
    for ks in range(16):
        a("buffer_load_dwordx4 v8, s[12:15], s44 offen lds")
        a(f"s_add_u32 s44, s44, {36*1152}")
        a("s_add_u32 m0, m0, 1024")
    a("buffer_load_dwordx4 v11, s[12:15], s32 offen lds")
    a(f"s_add_u32 s32, s32, {8*36*1152}")
    a("s_add_u32 m0, m0, 1024")
    a("buffer_load_dwordx4 v11, s[12:15], s32 offen lds")
    a(f"s_branch {name}_tail")

    a.label(f"{name}_gen")
    a("s_mov_b32 m0, s40")
    for ks in range(18):
        a("buffer_load_dwordx4 v8, s[12:15], s32 offen lds")
        a("s_add_u32 s32, s32, s33")
        a("s_add_u32 m0, m0, 1024")
    a.label(f"{name}_tail")
    a("v_lshlrev_b32 v11, 3, v1")
    a("v_add_u32 v11, s40, v11")
    a("v_mov_b32 v12, 0x3f803f80")
    a("v_mov_b32 v13, 0")
    a("s_waitcnt vmcnt(0)")
    for half in range(3):
        for ks in range(6 * half, 6 * half + 6):
            a(f"ds_read_b64_tr_b16 v[{16+4*ks}:{17+4*ks}], v11 offset:{ks*1024}")
            a(f"ds_read_b64_tr_b16 v[{18+4*ks}:{19+4*ks}], v11 offset:{ks*1024+512}")
        a("s_waitcnt lgkmcnt(0)")
        for ks in range(6 * half, 6 * half + 6):
            a(f"buffer_store_dwordx4 v[{16+4*ks}:{19+4*ks}], v3, s[8:11], s34 offen")
            a("s_add_u32 s34, s34, s35")
            for j in range(4):
                a(f"v_dot2c_f32_bf16 v13, v{16+4*ks+j}, v12")
    xg_reduce(a, "v_add_f32", 13, 14)
    a("buffer_store_dword v13, v9, s[8:11], s36 offen")
    a("v_lshlrev_b32 v10, 16, v10")
    a("buffer_store_dword v10, v9, s[8:11], s37 offen")
    a("s_endpgm")

    a.label(f"{name}_x")
    srd(a, 12, 16, XT)
    a("s_sub_u32 s41, s2, 181")
    a("s_lshl_b32 s41, s41, 2")
    a("s_add_u32 s41, s41, s3")
    a("s_mul_i32 s32, s41, 18432")
    a("v_mul_u32_u24 v8, 1152, v4")
    a("v_lshl_add_u32 v8, v5, 3, v8")
    for ks in range(18):
        a(f"buffer_load_dwordx2 v[{16+4*ks}:{17+4*ks}], v8, s[12:15], s32 offen offset:{ks*64}")
        a(f"buffer_load_dwordx2 v[{18+4*ks}:{19+4*ks}], v8, s[12:15], s32 offen offset:{ks*64+32}")
    a(f"s_add_u32 s34, s32, {L['X0']}")
    a("v_mov_b32 v12, 0x3f803f80")
    a("v_mov_b32 v14, 0")
    a("v_mov_b32 v15, 0")
    a("s_waitcnt vmcnt(0)")
    for ks in range(18):
        a(f"buffer_store_dwordx4 v[{16+4*ks}:{19+4*ks}], v3, s[8:11], s34 offen")
        a("s_add_u32 s34, s34, 1024")
        for j in range(4):
            a(f"v_dot2c_f32_bf16 v14, v{16+4*ks+j}, v12")
            a(f"v_dot2c_f32_bf16 v15, v{16+4*ks+j}, v{16+4*ks+j}")
    a("v_lshlrev_b32 v9, 5, v4")
    a("v_lshl_add_u32 v9, v5, 3, v9")
    a("s_lshl_b32 s36, s41, 9")
    a(f"s_add_u32 s36, s36, {L['ST0']}")
    a("buffer_store_dwordx2 v[14:15], v9, s[8:11], s36 offen")
    footer(a, name)
    return name, a.text(), dict(vgpr=88, sgpr=56, accum=88), dict(grid=NWG, block=256, lds=73728)


def stats_finish(a, s, q, r, mr, t, double_ln):
    a(f"v_mul_f32 v{s}, {f32(1.0/D)}, v{s}")
    a(f"v_mul_f32 v{q}, {f32(1.0/D)}, v{q}")
    a(f"v_fma_f32 v{q}, -v{s}, v{s}, v{q}")
    a(f"v_max_f32 v{q}, 0, v{q}")
    a(f"v_add_f32 v{t}, {f32(1e-5)}, v{q}")
    a(f"v_rsq_f32 v{r}, v{t}")
    if double_ln:
        a(f"v_mul_f32 v{t}, v{r}, v{r}")
        a(f"v_mul_f32 v{t}, v{t}, v{q}")
        a(f"v_add_f32 v{t}, {f32(1e-5)}, v{t}")
        a(f"v_rsq_f32 v{t}, v{t}")
        a(f"v_mul_f32 v{r}, v{r}, v{t}")
    a(f"v_mul_f32 v{mr}, v{s}, v{r}")


def gen_p1(layer):
    name = f"p1l{layer}_kernel"
    XIN = L["X0"] if layer == 0 else L["X2"]
    STI = L["ST0"] if layer == 0 else L["ST2"]
    OUT = L[f"O{layer}"]
    a = Asm()
    vm = Cnt(a, "vmcnt", 63); lg = Cnt(a, "lgkmcnt", 15)
    header(a, name, 256)
    a("s_load_dwordx2 s[4:5], s[0:1], 80")
    a("v_and_b32 v1, 63, v0")
    a("v_lshrrev_b32 v2, 6, v0")
    a("v_readfirstlane_b32 s3, v2")
    a("v_lshlrev_b32 v3, 4, v1")
    a("v_and_b32 v4, 15, v1")
    a("v_lshrrev_b32 v5, 4, v1")
    a("s_and_b32 s12, s2, 7")
    a("s_lshr_b32 s13, s2, 3")
    a("s_lshr_b32 s14, s12, 1")
    a("s_lshl_b32 s14, s14, 2")
    a("s_and_b32 s15, s13, 3")
    a("s_add_u32 s14, s14, s15")
    a("s_and_b32 s15, s12, 1")
    a("s_lshl_b32 s15, s15, 3")
    a("s_lshr_b32 s16, s13, 2")
    a("s_add_u32 s15, s15, s16")
    a("s_lshl_b32 s16, s14, 3")
    a("s_lshl_b32 s17, s3, 1")
    a("s_add_u32 s17, s17, s16")
    a("s_mul_i32 s18, s17, 18432")
    a(f"s_add_u32 s18, s18, {XIN}")
    a("s_add_u32 s19, s18, 18432")
    a(f"s_mul_i32 s20, s15, {18*7168}")
    a("s_lshl_b32 s21, s3, 11")
    a("s_add_u32 s20, s20, s21")
    a(f"s_add_u32 s20, s20, {L['WQ']}")
    a("s_mul_i32 s22, s16, 18432")
    a(f"s_add_u32 s22, s22, {XIN - 18432 - 1024}")
    a("s_cmp_eq_u32 s14, 0")
    a(f"s_cselect_b32 s22, {OOB}, s22")
    a("s_mov_b32 s23, 7168")
    a("s_cmp_eq_u32 s3, 3")
    a("s_cselect_b32 s22, s22, s20")
    a("s_cselect_b32 s23, 1024, s23")
    a("s_mov_b32 s24, s21")
    a("s_lshl_b32 s25, s17, 9")
    a(f"s_add_u32 s25, s25, {STI}")
    a("s_lshl_b32 s26, s16, 9")
    a(f"s_add_u32 s26, s26, {STI - 512}")
    a("s_cmp_eq_u32 s14, 0")
    a(f"s_cselect_b32 s26, {OOB}, s26")
    a("s_add_u32 s27, s3, 2")
    a("s_add_u32 s28, s3, 4")
    a("s_cmp_ge_u32 s3, 2")
    a("s_cselect_b32 s27, 6, s27")
    a("s_cselect_b32 s28, 6, s28")
    a("s_mul_i32 s29, s15, 448")
    a(f"s_add_u32 s29, s29, {L['CQ']}")
    a("s_lshl_b32 s30, s27, 6")
    a("s_add_u32 s30, s30, s29")
    a("s_lshl_b32 s31, s28, 6")
    a("s_add_u32 s31, s31, s29")
    a("v_lshlrev_b32 v6, 5, v4")
    a("v_lshlrev_b32 v7, 4, v5")
    a("v_lshlrev_b32 v8, 2, v4")
    a("s_waitcnt lgkmcnt(0)")
    a("s_and_b32 s5, s5, 0xffff")
    a(f"s_mov_b32 s6, {WS_BYTES}")
    a("s_mov_b32 s7, 0x00020000")
    ACC = 16; AB = 88
    RN = 168
    RS = 176
    CQN = 200
    CQH = 220
    CQS = 224
    MS = 228; MPA = 232; MPB = 236
    TMP = AB
    T0 = AB + 40
    for n, so, off in ((0, "s25", 0), (1, "s25", 512), (2, "s26", 0)):
        a(f"buffer_load_dwordx4 {vr(T0+8*n,4)}, v6, s[4:7], {so} offen offset:{off}"); vm.issue("st")
        a(f"buffer_load_dwordx4 {vr(T0+8*n+4,4)}, v6, s[4:7], {so} offen offset:{off+16}"); vm.issue("st")
    for i, fr in enumerate((0, 1, 2, 3, 6)):
        a(f"buffer_load_dwordx4 {vr(CQN+4*i,4)}, v7, s[4:7], s29 offen offset:{fr*64}"); vm.issue("cq")
    a(f"buffer_load_dwordx4 {vr(CQH,4)}, v7, s[4:7], s30 offen"); vm.issue("cq")
    for i, fr in enumerate((4, 5, 6)):
        a(f"buffer_load_dword v{CQS+i}, v8, s[4:7], s29 offen offset:{fr*64}"); vm.issue("cq")
    a(f"buffer_load_dword v{CQS+3}, v8, s[4:7], s31 offen"); vm.issue("cq")

    def loads(ks):
        return [
            [f"s_mov_b32 m0, s24", f"buffer_load_dwordx4 v3, s[4:7], s20 offen lds", "s_add_u32 s20, s20, 7168"],
            [f"buffer_load_dwordx4 v3, s[4:7], s22 offen offset:1024 lds", "s_add_u32 s22, s22, s23", "s_add_u32 s24, s24, 8192"],
            [f"buffer_load_dwordx4 {ar(4*ks,4)}, v3, s[4:7], s18 offen", "s_add_u32 s18, s18, 1024"],
            [f"buffer_load_dwordx4 {ar(72+4*ks,4)}, v3, s[4:7], s19 offen", "s_add_u32 s19, s19, 1024"],
        ]

    def do_load(grp, ks):
        for t in grp:
            a(t)
        vm.issue(("k", ks))

    PF = 8
    for ks in range(PF):
        for grp in loads(ks):
            do_load(grp, ks)
    a("v_mov_b32 v9, v3")
    a("s_lshl_b32 s32, s27, 10")
    a("v_add_u32 v10, s32, v3")
    a("s_lshl_b32 s32, s28, 10")
    a("v_add_u32 v11, s32, v3")
    a(f"v_mov_b32 v12, {f32(-1e30)}")
    a("v_lshlrev_b32 v13, 2, v5")
    a("v_sub_u32 v13, v4, v13")
    a("s_cmp_eq_u32 s17, 0")
    a("s_cselect_b32 s33, -100, -2")
    for i in range(4):
        a(f"v_subrev_u32 v14, {i}, v13")
        a("v_and_b32 v15, 1, v14")
        a("v_cmp_eq_u32 s[34:35], 0, v15")
        a("v_cmp_le_i32 vcc, 0, v14")
        a("s_and_b64 vcc, vcc, s[34:35]")
        a(f"v_cndmask_b32 v{MS+i}, v12, 0, vcc")
        a("v_cmp_ge_i32 vcc, -2, v14")
        a("s_and_b64 vcc, vcc, s[34:35]")
        a(f"v_cndmask_b32 v{MPB+i}, v12, 0, vcc")
        a("v_cmp_ge_i32 vcc, s33, v14")
        a("s_and_b64 vcc, vcc, s[34:35]")
        a(f"v_cndmask_b32 v{MPA+i}, v12, 0, vcc")
    EX = 147456
    vm.wait("st")
    a("s_mul_i32 s32, s3, 384")
    a(f"s_add_u32 s32, s32, {EX}")
    a("v_add_u32 v12, s32, v8")
    a("v_add_u32 v13, s32, v7")
    for n in range(3):
        b = T0 + 8 * n
        a(f"v_add_f32 v{b}, v{b}, v{b+2}")
        a(f"v_add_f32 v{b+1}, v{b+1}, v{b+3}")
        a(f"v_add_f32 v{b+4}, v{b+4}, v{b+6}")
        a(f"v_add_f32 v{b+5}, v{b+5}, v{b+7}")
        a(f"v_add_f32 v{b}, v{b}, v{b+4}")
        a(f"v_add_f32 v{b+1}, v{b+1}, v{b+5}")
        stats_finish(a, b, b + 1, RN + 2 * n, RN + 2 * n + 1, b + 2, False)
        a(f"ds_write_b32 v12, v{RN+2*n} offset:{n*128}")
        a(f"ds_write_b32 v12, v{RN+2*n+1} offset:{n*128+64}")
    a("s_waitcnt lgkmcnt(0)")
    for n in range(3):
        a(f"ds_read_b128 {vr(RS+8*n,4)}, v13 offset:{n*128}")
        a(f"ds_read_b128 {vr(RS+8*n+4,4)}, v13 offset:{n*128+64}")
    a("s_waitcnt lgkmcnt(0)")

    def reads(ks):
        b = AB + 40 * (ks & 1)
        o = (ks % 8) * 8192
        r = [f"ds_read_b128 {vr(b+4*fr,4)}, v9 offset:{o+fr*1024}" for fr in range(8)]
        r.append(f"ds_read_b128 {vr(b+32,4)}, v10 offset:{o}")
        r.append(f"ds_read_b128 {vr(b+36,4)}, v11 offset:{o}")
        return r

    def mfmas(ks):
        b = AB + 40 * (ks & 1)
        r = []
        for slot, fr in enumerate((0, 1, 2, 3, 6, 4, 5, 6)):
            for n in range(2):
                acc = vr(ACC + 32 * n + 4 * slot, 4)
                x = ar(72 * n + 4 * ks, 4)
                w = vr(b + 4 * fr, 4)
                c = "0" if ks == 0 else acc
                if slot < 5:
                    r.append(f"v_mfma_f32_16x16x32_bf16 {acc}, {w}, {x}, {c}")
                else:
                    r.append(f"v_mfma_f32_16x16x32_bf16 {acc}, {x}, {w}, {c}")
        acc = vr(ACC + 64, 4); c = "0" if ks == 0 else acc
        r.append(f"v_mfma_f32_16x16x32_bf16 {acc}, {vr(b+32,4)}, {vr(b+28,4)}, {c}")
        acc = vr(ACC + 68, 4); c = "0" if ks == 0 else acc
        r.append(f"v_mfma_f32_16x16x32_bf16 {acc}, {vr(b+28,4)}, {vr(b+36,4)}, {c}")
        return r

    CH = 2
    vm.wait(("k", CH - 1))
    a("s_barrier")
    for t in reads(0):
        a(t)
    a("s_waitcnt lgkmcnt(0)")
    for ks in range(18):
        m = mfmas(ks)
        nxt = ks + 1
        rd = []
        if nxt < 18:
            if nxt % CH == 0:
                vm.wait(("k", min(nxt + CH - 1, 17)))
                a("s_barrier")
            if nxt % 8 == 0:
                a("v_add_u32 v9, 0x10000, v9")
                a("v_add_u32 v10, 0x10000, v10")
                a("v_add_u32 v11, 0x10000, v11")
            rd = reads(nxt)
        ld = loads(ks + PF) if ks + PF < 18 else []
        for i, t in enumerate(m):
            a(t)
            if i < len(rd):
                a(rd[i])
            if i >= 10 and (i - 10) % 2 == 0 and (i - 10) // 2 < len(ld):
                do_load(ld[(i - 10) // 2], ks + PF)
        a("s_waitcnt lgkmcnt(0)")

    KF = 88; QF = 112; VF = 128; ONE = 148; T = 152
    vm.wait_all()

    def corr_n(acc, n, cq):
        for i in range(4):
            a(f"v_mul_f32 v{T+i}, v{RN+2*n+1}, v{cq+i}")
        for i in range(4):
            a(f"v_fma_f32 v{acc+i}, v{acc+i}, v{RN+2*n}, -v{T+i}")

    def corr_s(acc, n, cq):
        for i in range(4):
            a(f"v_mul_f32 v{T+4+i}, v{RS+8*n+4+i}, v{cq}")
        for i in range(4):
            a(f"v_fma_f32 v{acc+i}, v{acc+i}, v{RS+8*n+i}, -v{T+4+i}")

    def pack2(dst, acc):
        a(f"v_cvt_pk_bf16_f32 v{dst}, v{acc}, v{acc+1}")
        a(f"v_cvt_pk_bf16_f32 v{dst+1}, v{acc+2}, v{acc+3}")

    a("v_cmp_eq_u32 s[36:37], 0, v5")
    a("v_cmp_eq_u32 s[38:39], 1, v5")
    a("v_lshlrev_b32 v12, 3, v1")
    a("s_mul_i32 s32, s3, 3072")
    a(f"s_add_u32 s33, s32, {EX}")
    a("v_add_u32 v13, s33, v12")
    a("s_lshl_b32 s32, s3, 9")
    a(f"s_add_u32 s32, s32, {EX}")
    a("s_cmp_eq_u32 s3, 3")
    a(f"s_cselect_b32 s32, {EX+4*3072}, s32")
    a("v_add_u32 v14, s32, v12")

    def conv_tile(n):
        ac = ACC + 32 * n
        tl = n + 1
        for i in range(5):
            corr_n(ac + 4 * i, n, CQN + 4 * i)
        for h in range(2):
            pack2(QF + (2 * n + h) * 4, ac + 4 * h)
            pack2(KF + (2 * tl + h) * 4, ac + 8 + 4 * h)
        pack2(T + 8 + 2 * n, ac + 16)
        for h in range(2):
            a(f"v_mov_b32 v{KF+(2*tl+h)*4+2}, v{T+8+2*n+1}")
            a(f"v_cndmask_b32 v{QF+(2*n+h)*4+2}, 0, v{T+8+2*n}, s[{36+2*h}:{37+2*h}]")
        for h in range(3):
            corr_s(ac + 20 + 4 * h, n, CQS + h)
            pack2(VF + 6 * h + 2 * tl, ac + 20 + 4 * h)

    corr_n(ACC + 64, 2, CQH)
    corr_s(ACC + 68, 2, CQS + 3)
    pack2(T + 12, ACC + 64)
    pack2(T + 14, ACC + 68)
    a(f"ds_write_b64 v14, {vr(T+12,2)}")
    a(f"ds_write_b64 v14, {vr(T+14,2)} offset:1536")
    conv_tile(1)
    a(f"ds_write_b64 v13, {vr(KF+16,2)} offset:{3072}")
    a(f"ds_write_b64 v13, {vr(KF+20,2)} offset:{3072+512}")
    a(f"ds_write_b64 v13, {vr(T+10,2)} offset:{3072+1024}")
    for h in range(3):
        a(f"ds_write_b64 v13, {vr(VF+6*h+4,2)} offset:{3072+1536+512*h}")
    conv_tile(0)
    for i in range(6):
        a(f"v_mov_b32 v{KF+4*i+3}, 0")
    for i in range(4):
        a(f"v_mov_b32 v{QF+4*i+3}, 0")
        a(f"v_mov_b32 v{ONE+i}, 0x3f803f80")
    a("s_waitcnt lgkmcnt(0)")
    a("s_barrier")
    a(f"ds_read_b64 {vr(KF,2)}, v13")
    a(f"ds_read_b64 {vr(KF+4,2)}, v13 offset:512")
    a(f"ds_read_b32 v{KF+2}, v13 offset:{1024+4}")
    a(f"ds_read_b32 v{KF+6}, v13 offset:{1024+4}")
    for h in range(3):
        a(f"ds_read_b64 {vr(VF+6*h,2)}, v13 offset:{1536+512*h}")
    SB = 16
    PB = 48
    MX = 64
    OB = 168
    OO = 72
    jobs = [(1, 0), (1, 1), (0, 0), (0, 1)]
    cs = (18 ** -0.5) * math.log2(math.e)
    a(f"s_mov_b32 s40, {f32(cs)}")
    for j, (n, h) in enumerate(jobs):
        if j == 2:
            a("s_waitcnt lgkmcnt(0)")
        q = vr(QF + (2 * n + h) * 4, 4)
        mp = MPA if n == 0 else MPB
        a(f"v_mfma_f32_16x16x32_bf16 {vr(SB+8*j,4)}, {vr(KF+(2*n+h)*4,4)}, {q}, {vr(mp,4)}")
        a(f"v_mfma_f32_16x16x32_bf16 {vr(SB+8*j+4,4)}, {vr(KF+(2*(n+1)+h)*4,4)}, {q}, {vr(MS,4)}")
    for j in range(4):
        s = SB + 8 * j; m = MX + 2 * j
        a(f"v_max3_f32 v{m}, v{s}, v{s+1}, v{s+2}")
        a(f"v_max3_f32 v{m+1}, v{s+3}, v{s+4}, v{s+5}")
        a(f"v_max3_f32 v{m}, v{m}, v{s+6}, v{s+7}")
        a(f"v_max_f32 v{m}, v{m}, v{m+1}")
    for j in range(4):
        a(f"v_mov_b32 v{MX+2*j+1}, v{MX+2*j}")
    for j in range(4):
        a(f"v_permlane16_swap_b32 v{MX+2*j}, v{MX+2*j+1}")
    for j in range(4):
        a(f"v_max_f32 v{MX+2*j}, v{MX+2*j}, v{MX+2*j+1}")
    for j in range(4):
        a(f"v_mov_b32 v{MX+2*j+1}, v{MX+2*j}")
    for j in range(4):
        a(f"v_permlane32_swap_b32 v{MX+2*j}, v{MX+2*j+1}")
    for j in range(4):
        a(f"v_max_f32 v{MX+2*j}, v{MX+2*j}, v{MX+2*j+1}")
    for j in range(4):
        a(f"v_mul_f32 v{MX+2*j}, s40, v{MX+2*j}")
    for j, (n, h) in enumerate(jobs):
        s = SB + 8 * j
        for i in range(8):
            a(f"v_fma_f32 v{s+i}, v{s+i}, s40, -v{MX+2*j}")
        for i in range(8):
            a(f"v_exp_f32 v{s+i}, v{s+i}")
        for i in range(4):
            a(f"v_cvt_pk_bf16_f32 v{PB+4*j+i}, v{s+2*i}, v{s+2*i+1}")
        p = vr(PB + 4 * j, 4)
        a(f"v_mfma_f32_16x16x32_bf16 {vr(OB+12*j+8,4)}, {vr(ONE,4)}, {p}, 0")
        a(f"v_mfma_f32_16x16x32_bf16 {vr(OB+12*j,4)}, {vr(VF+6*h+2*n,4)}, {p}, 0")
        a(f"v_mfma_f32_16x16x32_bf16 {vr(OB+12*j+4,4)}, {vr(VF+12+2*n,4)}, {p}, 0")
    a("s_mul_i32 s32, s17, 18432")
    a("s_lshl_b32 s33, s15, 10")
    a("s_add_u32 s33, s33, s32")
    a(f"s_add_u32 s33, s33, {OUT}")
    a("s_add_u32 s34, s33, 18432")
    a("s_lshr_b32 s35, s15, 3")
    a("s_lshl_b32 s35, s35, 10")
    a("s_and_b32 s36, s15, 3")
    a("s_lshl_b32 s36, s36, 8")
    a("s_add_u32 s35, s35, s36")
    a("s_lshr_b32 s36, s15, 2")
    a("s_and_b32 s36, s36, 1")
    a("s_lshl_b32 s36, s36, 3")
    a("s_add_u32 s35, s35, s36")
    a("s_add_u32 s35, s35, s32")
    a(f"s_add_u32 s35, s35, {OUT + 16*1024}")
    a("s_add_u32 s36, s35, 18432")
    a("v_lshlrev_b32 v12, 4, v4")
    a("v_mov_b32 v13, 0x40000000")
    a("v_cmp_eq_u32 vcc, 2, v5")
    a("v_cndmask_b32 v12, v13, v12, vcc")
    for j, (n, h) in enumerate(jobs):
        o = OB + 12 * j
        a(f"v_rcp_f32 v{o+8}, v{o+8}")
        for i in range(4):
            a(f"v_mul_f32 v{o+i}, v{o+i}, v{o+8}")
        a(f"v_mul_f32 v{o+4+2*h}, v{o+4+2*h}, v{o+8}")
        a(f"v_mul_f32 v{o+5+2*h}, v{o+5+2*h}, v{o+8}")
        a(f"v_cvt_pk_bf16_f32 v{OO+4*n+2*h}, v{o}, v{o+1}")
        a(f"v_cvt_pk_bf16_f32 v{OO+4*n+2*h+1}, v{o+2}, v{o+3}")
        a(f"v_cvt_pk_bf16_f32 v{OO+8+2*n+h}, v{o+4+2*h}, v{o+5+2*h}")
        if h == 1:
            a(f"buffer_store_dwordx4 {vr(OO+4*n,4)}, v3, s[4:7], s{33+n} offen")
            a(f"buffer_store_dwordx2 {vr(OO+8+2*n,2)}, v12, s[4:7], s{35+n} offen")
    footer(a, name)
    return name, a.text(), dict(vgpr=240 + 144, sgpr=48, accum=240), dict(grid=256, block=256, lds=EX + 5 * 3072)


def pq_decode(a):
    a("v_and_b32 v1, 63, v0")
    a("v_lshrrev_b32 v2, 6, v0")
    a("v_readfirstlane_b32 s3, v2")
    a("v_lshlrev_b32 v3, 4, v1")
    a("v_and_b32 v4, 15, v1")
    a("v_lshrrev_b32 v5, 4, v1")
    a("s_and_b32 s12, s2, 7")
    a("s_lshl_b32 s12, s12, 3")
    a("s_lshr_b32 s13, s2, 3")
    a("s_and_b32 s15, s13, 7")
    a("s_add_u32 s12, s12, s15")
    a("s_lshr_b32 s13, s13, 3")
    a("s_mul_i32 s14, s13, 9")
    a("s_add_u32 s14, s14, s3")
    a("s_mul_i32 s15, s12, 36864")
    a("s_lshr_b32 s16, s14, 1")
    a("s_lshl_b32 s16, s16, 10")
    a("s_and_b32 s17, s14, 1")
    a("s_lshl_b32 s17, s17, 3")
    a("s_add_u32 s16, s16, s17")
    a("s_add_u32 s16, s16, s15")


def pq_epilogue(a, V, XOUT, STOUT, SCR, T):
    a(f"s_add_u32 s18, s16, {XOUT}")
    a("s_add_u32 s19, s18, 18432")
    for n in range(2):
        v = V + 4 * n
        a(f"v_cvt_pk_bf16_f32 v{T+2*n}, v{v}, v{v+1}")
        a(f"v_cvt_pk_bf16_f32 v{T+2*n+1}, v{v+2}, v{v+3}")
        a(f"buffer_store_dwordx2 {vr(T+2*n,2)}, v3, s[4:7], s{18+n} offen")
    for n in range(2):
        v = V + 4 * n; s = T + 4 + 2 * n
        a(f"v_add_f32 v{s}, v{v}, v{v+1}")
        a(f"v_mul_f32 v{s+1}, v{v}, v{v}")
        a(f"v_add_f32 v{s}, v{s}, v{v+2}")
        a(f"v_fmac_f32 v{s+1}, v{v+1}, v{v+1}")
        a(f"v_add_f32 v{s}, v{s}, v{v+3}")
        a(f"v_fmac_f32 v{s+1}, v{v+2}, v{v+2}")
        a(f"v_fmac_f32 v{s+1}, v{v+3}, v{v+3}")
    a("s_lshl_b32 s20, s3, 10")
    a(f"s_add_u32 s20, s20, {SCR}")
    a(f"v_add_u32 v{T+8}, s20, v3")
    a(f"ds_write_b128 v{T+8}, {vr(T+4,4)}")
    a("s_waitcnt lgkmcnt(0)")
    a("s_barrier")
    a("s_cmp_lg_u32 s3, 0")
    a("s_cbranch_scc1 " + a.endlabel)
    R = T + 12
    for w in range(9):
        a(f"ds_read_b128 {vr(R+4*w,4)}, v3 offset:{SCR+w*1024}")
    a("s_waitcnt lgkmcnt(0)")
    for w in range(1, 9):
        for i in range(4):
            a(f"v_add_f32 v{R+i}, v{R+i}, v{R+4*w+i}")
    for i in range(4):
        xg_reduce(a, "v_add_f32", R + i, T + i)
    a("s_lshl_b32 s20, s12, 10")
    a("s_lshl_b32 s21, s13, 3")
    a("s_add_u32 s20, s20, s21")
    a(f"s_add_u32 s20, s20, {STOUT}")
    a(f"v_lshlrev_b32 v{T+8}, 5, v4")
    a(f"buffer_store_dwordx2 {vr(R,2)}, v{T+8}, s[4:7], s20 offen")
    a(f"buffer_store_dwordx2 {vr(R+2,2)}, v{T+8}, s[4:7], s20 offen offset:512")


def unpack_add(a, dst, src):
    a(f"v_lshlrev_b32 v{src+2}, 16, v{src}")
    a(f"v_and_b32 v{src}, 0xffff0000, v{src}")
    a(f"v_lshlrev_b32 v{src+3}, 16, v{src+1}")
    a(f"v_and_b32 v{src+1}, 0xffff0000, v{src+1}")
    a(f"v_add_f32 v{dst}, v{dst}, v{src+2}")
    a(f"v_add_f32 v{dst+1}, v{dst+1}, v{src}")
    a(f"v_add_f32 v{dst+2}, v{dst+2}, v{src+3}")
    a(f"v_add_f32 v{dst+3}, v{dst+3}, v{src+1}")


def gen_p2(layer):
    name = f"p2l{layer}_kernel"
    XIN = L["X0"] if layer == 0 else L["X2"]
    OIN = L[f"O{layer}"]
    a = Asm(); a.endlabel = f"{name}_end"
    vm = Cnt(a, "vmcnt", 63); lg = Cnt(a, "lgkmcnt", 15)
    header(a, name, 256)
    a("s_load_dwordx2 s[4:5], s[0:1], 80")
    pq_decode(a)
    a("s_lshl_b32 s20, s3, 12")
    a("s_add_u32 s21, s15, s20")
    a(f"s_add_u32 s21, s21, {OIN}")
    a("s_mul_i32 s22, s14, 18432")
    a(f"s_add_u32 s22, s22, {L['WO']}")
    a(f"s_add_u32 s23, s16, {XIN}")
    a("s_add_u32 s24, s23, 18432")
    a("s_mov_b32 m0, s20")
    a("s_waitcnt lgkmcnt(0)")
    a("s_and_b32 s5, s5, 0xffff")
    a(f"s_mov_b32 s6, {WS_BYTES}")
    a("s_mov_b32 s7, 0x00020000")
    A = 16; B = 88; ACC = 8; RES = 120; T = 128
    for i in range(4):
        a(f"buffer_load_dwordx4 v3, s[4:7], s21 offen offset:{i*1024} lds"); vm.issue("o")
    for ks in range(18):
        if ks and ks % 4 == 0:
            a("s_add_u32 s22, s22, 4096")
        a(f"buffer_load_dwordx4 {vr(A+4*ks,4)}, v3, s[4:7], s22 offen offset:{(ks%4)*1024}"); vm.issue(("a", ks))
    a(f"buffer_load_dwordx2 {vr(RES,2)}, v3, s[4:7], s23 offen"); vm.issue("r")
    a(f"buffer_load_dwordx2 {vr(RES+4,2)}, v3, s[4:7], s24 offen"); vm.issue("r")
    vm.wait("o")
    a("s_barrier")
    NB = 4

    def rd(ks):
        for n in range(2):
            a(f"ds_read_b128 {vr(B+8*(ks%NB)+4*n,4)}, v3 offset:{n*18432+ks*1024}"); lg.issue(("b", ks))
    for ks in range(NB - 1):
        rd(ks)
    for ks in range(18):
        if ks + NB - 1 < 18:
            rd(ks + NB - 1)
        vm.wait(("a", ks))
        lg.wait(("b", ks))
        for n in range(2):
            acc = vr(ACC + 4 * n, 4)
            a(f"v_mfma_f32_16x16x32_bf16 {acc}, {vr(A+4*ks,4)}, {vr(B+8*(ks%NB)+4*n,4)}, {'0' if ks == 0 else acc}")
    vm.wait_all()
    unpack_add(a, ACC, RES)
    unpack_add(a, ACC + 4, RES + 4)
    pq_epilogue(a, ACC, L[f"X1_{layer}"], L[f"ST1_{layer}"], 36864, 16)
    footer(a, name)
    return name, a.text(), dict(vgpr=128, sgpr=32, accum=128), dict(grid=256, block=576, lds=36864 + 9216)


def gen_p4(layer):
    name = f"p4l{layer}_kernel"
    a = Asm(); a.endlabel = f"{name}_end"
    vm = Cnt(a, "vmcnt", 63)
    header(a, name, 256)
    a("s_load_dwordx2 s[4:5], s[0:1], 80")
    a("s_load_dwordx4 s[24:27], s[0:1], 56")
    pq_decode(a)
    a("s_mul_i32 s20, s12, 36")
    a("s_add_u32 s20, s20, s14")
    a("s_lshl_b32 s20, s20, 10")
    a(f"s_add_u32 s20, s20, {L[f'PART{layer}']}")
    a(f"s_add_u32 s22, s16, {L[f'X1_{layer}']}")
    a("s_add_u32 s23, s22, 18432")
    a("s_lshl_b32 s21, s14, 5")
    a("v_lshlrev_b32 v6, 3, v5")
    a("s_waitcnt lgkmcnt(0)")
    a("s_and_b32 s5, s5, 0xffff")
    a(f"s_mov_b32 s6, {WS_BYTES}")
    a("s_mov_b32 s7, 0x00020000")
    srd(a, 28, 24, D * 2)
    P = 32; ACC = 8; RES = 16; BB = 24
    a(f"buffer_load_dwordx2 {vr(RES,2)}, v3, s[4:7], s22 offen"); vm.issue("r")
    a(f"buffer_load_dwordx2 {vr(RES+4,2)}, v3, s[4:7], s23 offen"); vm.issue("r")
    a(f"buffer_load_dwordx2 {vr(BB,2)}, v6, s[28:31], s21 offen"); vm.issue("r")
    for s in range(8):
        a(f"buffer_load_dwordx4 {vr(P+4*s,4)}, v3, s[4:7], s20 offen"); vm.issue(("p", s))
        a(f"s_add_u32 s20, s20, {XT}")
    a("v_mov_b32 v6, 0x00003f80")
    a("v_mov_b32 v7, 0x3f800000")
    vm.wait("r")
    a(f"v_lshlrev_b32 v{ACC}, 16, v{BB}")
    a(f"v_and_b32 v{ACC+1}, 0xffff0000, v{BB}")
    a(f"v_lshlrev_b32 v{ACC+2}, 16, v{BB+1}")
    a(f"v_and_b32 v{ACC+3}, 0xffff0000, v{BB+1}")
    for i in range(4):
        a(f"v_mov_b32 v{ACC+4+i}, v{ACC+i}")
    unpack_add(a, ACC, RES)
    unpack_add(a, ACC + 4, RES + 4)
    for s in range(8):
        vm.wait(("p", s))
        for j in range(4):
            a(f"v_dot2c_f32_bf16 v{ACC+2*j}, v{P+4*s+j}, v6")
            a(f"v_dot2c_f32_bf16 v{ACC+2*j+1}, v{P+4*s+j}, v7")
    if layer == 0:
        pq_epilogue(a, ACC, L["X2"], L["ST2"], 0, 16)
        lds = 9216
    else:
        srd(a, 8, 26, XT)
        a("v_mul_u32_u24 v6, 1152, v4")
        a("v_lshl_add_u32 v6, v5, 3, v6")
        a("s_mul_i32 s20, s12, 36864")
        a("s_add_u32 s20, s20, s21")
        a("s_add_u32 s22, s20, 18432")
        for n in range(2):
            v = ACC + 4 * n
            a(f"v_cvt_pk_bf16_f32 v{16+2*n}, v{v}, v{v+1}")
            a(f"v_cvt_pk_bf16_f32 v{17+2*n}, v{v+2}, v{v+3}")
            a(f"buffer_store_dwordx2 {vr(16+2*n,2)}, v6, s[8:11], s{20+2*n} offen")
        lds = 0
    footer(a, name)
    return name, a.text(), dict(vgpr=64, sgpr=32, accum=64), dict(grid=256, block=576, lds=lds)


def gen_p3(layer):
    name = f"p3l{layer}_kernel"
    XIN = L[f"X1_{layer}"]; STI = L[f"ST1_{layer}"]; PART = L[f"PART{layer}"]
    a = Asm()
    vm = Cnt(a, "vmcnt", 63); lg = Cnt(a, "lgkmcnt", 15)
    header(a, name, 256)
    a("s_load_dwordx2 s[4:5], s[0:1], 80")
    a("v_and_b32 v1, 63, v0")
    a("v_lshrrev_b32 v2, 6, v0")
    a("v_readfirstlane_b32 s3, v2")
    a("v_lshlrev_b32 v3, 4, v1")
    a("v_and_b32 v4, 15, v1")
    a("v_lshrrev_b32 v5, 4, v1")
    a("s_and_b32 s12, s2, 7")
    a("s_lshr_b32 s13, s2, 3")
    a("s_mul_i32 s14, s3, 6144")
    a(f"s_mul_i32 s15, s13, {4*TILE}")
    a("s_add_u32 s15, s15, s14")
    a(f"s_add_u32 s15, s15, {XIN}")
    a("s_mul_i32 s16, s12, 12")
    a("s_add_u32 s16, s16, s3")
    a(f"s_mul_i32 s16, s16, {36*3072}")
    a(f"s_add_u32 s16, s16, {L['W12']}")
    a("s_lshl_b32 s17, s13, 11")
    a(f"s_add_u32 s17, s17, {STI}")
    a("s_mul_i32 s18, s12, 4608")
    a("s_mul_i32 s19, s3, 384")
    a("s_add_u32 s18, s18, s19")
    a(f"s_add_u32 s18, s18, {L['BC1']}")
    a("v_lshlrev_b32 v6, 5, v4")
    a("v_lshl_add_u32 v6, v5, 3, v6")
    a("s_mov_b32 m0, s14")
    a("s_waitcnt lgkmcnt(0)")
    a("s_and_b32 s5, s5, 0xffff")
    a(f"s_mov_b32 s6, {WS_BYTES}")
    a("s_mov_b32 s7, 0x00020000")
    ST = 8
    ACC = 16
    B = 64
    A = 96
    HB = 73728
    BCL = 147456
    for i in range(4):
        a(f"buffer_load_dwordx4 v3, s[4:7], s15 offen offset:{i*1024} lds"); vm.issue("y")
    a("s_add_u32 s15, s15, 4096")
    a("s_add_u32 m0, m0, 4096")
    for i in range(2):
        a(f"buffer_load_dwordx4 v3, s[4:7], s15 offen offset:{i*1024} lds"); vm.issue("y")
    a("s_lshl_b32 s19, s3, 9")
    a(f"s_add_u32 s19, s19, {BCL}")
    a("s_mov_b32 m0, s19")
    a("v_lshlrev_b32 v7, 2, v1")
    a("buffer_load_dword v7, s[4:7], s18 offen lds"); vm.issue("y")
    a("buffer_load_dword v7, s[4:7], s18 offen offset:256 lds"); vm.issue("y")
    for nt in range(4):
        a(f"buffer_load_dwordx2 {vr(B+2*nt,2)}, v6, s[4:7], s17 offen offset:{nt*512}"); vm.issue("st")

    def aload(s, i3):
        a(f"buffer_load_dwordx4 {vr(A+12*(s%6)+4*i3,4)}, v3, s[4:7], s16 offen offset:{i3*1024}"); vm.issue(("a", s, i3))
        if i3 == 2:
            a("s_add_u32 s16, s16, 3072")
    for s in range(6):
        for i3 in range(3):
            aload(s, i3)
    a(f"v_add_u32 v2, {HB}, v3")
    a(f"v_add_u32 v7, 0x10000, v3")
    vm.wait("st")
    for nt in range(4):
        xg_reduce(a, "v_add_f32", B + 2 * nt, B + 8 + nt)
        xg_reduce(a, "v_add_f32", B + 2 * nt + 1, B + 12 + nt)
        stats_finish(a, B + 2 * nt, B + 2 * nt + 1, ST + 2 * nt, ST + 2 * nt + 1, B + 8 + nt, True)
    a("s_barrier")

    def bread(s):
        ks = s % 18
        for nt in range(4):
            off = nt * TILE + ks * 1024
            if s < 18:
                base = "v3"
                if off > 65535:
                    base = "v7"; off -= 65536
            else:
                base = "v2"
                if off > 65535:
                    base = "v7"; off -= 65536
            a(f"ds_read_b128 {vr(B+16*(s&1)+4*nt,4)}, {base} offset:{off}"); lg.issue(("b", s))

    def step(s, prefetch_b):
        first = (s % 18 == 0)
        if prefetch_b:
            bread(s + 1)
        lg.wait(("b", s))
        for i3 in range(3):
            vm.wait(("a", s, i3))
            for nt in range(4):
                acc = vr(ACC + (i3 * 4 + nt) * 4, 4)
                a(f"v_mfma_f32_16x16x32_bf16 {acc}, {vr(A+12*(s%6)+4*i3,4)}, {vr(B+16*(s&1)+4*nt,4)}, {'0' if first else acc}")
            if s + 6 < 36:
                aload(s + 6, i3)

    bread(0)
    for s in range(18):
        step(s, s < 17)
    a("s_cmp_lt_u32 s3, 8")
    a(f"s_cbranch_scc1 {name}_g")
    a("s_barrier")
    a.label(f"{name}_g")
    k = math.sqrt(2.0 / math.pi)
    C1 = -2.0 * k * math.log2(math.e)
    C3 = C1 * 0.044715
    a(f"v_add_u32 v7, {HB + 0x10000}, v3")
    a("v_lshlrev_b32 v6, 5, v5")
    a("v_add_u32 v6, s19, v6")
    a(f"s_mov_b32 s20, {f32(C3)}")
    a(f"v_mov_b32 v1, {f32(C1)}")
    BC = B
    T = B + 24
    for i3 in range(3):
        a(f"ds_read_b128 {vr(BC+8*i3,4)}, v6 offset:{i3*128}")
        a(f"ds_read_b128 {vr(BC+8*i3+4,4)}, v6 offset:{i3*128+16}")
    a("s_mul_i32 s21, s3, 3")
    a("s_waitcnt lgkmcnt(0)")
    for i3 in range(3):
        a(f"s_add_u32 s22, s21, {i3}")
        a("s_lshr_b32 s23, s22, 1")
        a("s_lshl_b32 s23, s23, 10")
        a("s_and_b32 s22, s22, 1")
        a("s_lshl_b32 s22, s22, 3")
        a("s_add_u32 s22, s22, s23")
        a("v_add_u32 v4, s22, v2")
        for nt in range(4):
            ac = ACC + (i3 * 4 + nt) * 4
            c = BC + 8 * i3
            for i in range(4):
                a(f"v_fma_f32 v{T+i}, -v{ST+2*nt+1}, v{c+i}, v{c+4+i}")
            for i in range(4):
                a(f"v_fma_f32 v{ac+i}, v{ac+i}, v{ST+2*nt}, v{T+i}")
            for i in range(4):
                a(f"v_mul_f32 v{T+i}, v{ac+i}, v{ac+i}")
            for i in range(4):
                a(f"v_fma_f32 v{T+i}, v{T+i}, s20, v1")
            for i in range(4):
                a(f"v_mul_f32 v{T+i}, v{T+i}, v{ac+i}")
            for i in range(4):
                a(f"v_exp_f32 v{T+i}, v{T+i}")
            for i in range(4):
                a(f"v_add_f32 v{T+i}, 1.0, v{T+i}")
            for i in range(4):
                a(f"v_rcp_f32 v{T+i}, v{T+i}")
            for i in range(4):
                a(f"v_mul_f32 v{ac+i}, v{ac+i}, v{T+i}")
            a(f"v_cvt_pk_bf16_f32 v{ac}, v{ac}, v{ac+1}")
            a(f"v_cvt_pk_bf16_f32 v{ac+1}, v{ac+2}, v{ac+3}")
            a(f"ds_write_b64 v4, {vr(ac,2)} offset:{nt*TILE}")
    a("s_waitcnt lgkmcnt(0)")
    a("s_barrier")
    lg.q = []
    bread(18)
    for s in range(18, 30):
        step(s, s < 29)
    a("s_cmp_ge_u32 s3, 8")
    a(f"s_cbranch_scc1 {name}_h")
    a("s_barrier")
    a.label(f"{name}_h")
    bread(30)
    for s in range(30, 36):
        step(s, s < 35)
    a(f"s_mul_i32 s22, s12, {XT}")
    a("s_mul_i32 s23, s13, 72")
    a("s_add_u32 s23, s23, s21")
    a("s_lshl_b32 s23, s23, 10")
    a("s_add_u32 s22, s22, s23")
    a(f"s_add_u32 s22, s22, {PART}")
    a(f"s_add_u32 s23, s22, {36*1024}")
    for i3 in range(3):
        for pp in range(2):
            ac = ACC + (i3 * 4 + 2 * pp) * 4
            o = B + (i3 * 2 + pp) * 4
            for i in range(4):
                a(f"v_cvt_pk_bf16_f32 v{o+i}, v{ac+2*i}, v{ac+2*i+1}")
            a(f"buffer_store_dwordx4 {vr(o,4)}, v3, s[4:7], s{22+pp} offen offset:{i3*1024} sc1")
    footer(a, name)
    return name, a.text(), dict(vgpr=168, sgpr=32, accum=168), dict(grid=256, block=768, lds=BCL + 12 * 512)


def main():
    ks = [gen_p0()]
    for l in (0, 1):
        ks += [gen_p1(l), gen_p2(l), gen_p3(l), gen_p4(l)]
    ref = open(f"cdna_kernels/{NAME}.s.ref").read().split("\n")
    hdr = [ln for ln in ref if ln.startswith(";") and "@launch" not in ln and "Override launch" not in ln and "grid=ceil" not in ln]
    out = hdr[:]
    for name, _, _, g in ks:
        out.append(f"; @launch kernel={name} grid=({g['grid']},1,1) block=({g['block']},1,1) lds={g['lds']}")
    out.append('.amdgcn_target "amdgcn-amd-amdhsa--gfx950"')
    out.append(".text")
    for _, txt, _, _ in ks:
        out.append(txt)
    out.append('.section .rodata,"a"')
    for name, _, kd, _ in ks:
        out.append(KD.format(name=name, **kd))
    path = sys.argv[1] if len(sys.argv) > 1 else f"cdna_kernels/{NAME}.s"
    open(path, "w").write("\n".join(out))
    json.dump(L, open("layout.json", "w"))
    print("written", path, "ws end", L["END"])


if __name__ == "__main__":
    main()
```

```python
import re

REG_RE = re.compile(r"\b([vas])\[(\d+):(\d+)\]|\b([vas])(\d+)\b|\b(vcc|exec|m0|scc)\b")
TRANS = ("v_exp_f32", "v_log_f32", "v_rcp_f32", "v_rsq_f32", "v_sqrt_f32", "v_sin_f32", "v_cos_f32")


def regs_of(tok):
    out = []
    for m in REG_RE.finditer(tok):
        if m.group(1):
            out += [(m.group(1), i) for i in range(int(m.group(2)), int(m.group(3)) + 1)]
        elif m.group(4):
            out.append((m.group(4), int(m.group(5))))
        else:
            out.append((m.group(6), 0))
    return out


class Ins:
    __slots__ = ("text", "op", "cls", "wr", "rd", "srcc", "passes", "ws", "wide_store_data", "ab")

    def __init__(self, text):
        self.text = text
        t = text.split(";")[0].strip()
        parts = t.split(None, 1)
        self.op = op = parts[0]
        ops = [o.strip() for o in parts[1].split(",")] if len(parts) > 1 else []
        self.wr = set(); self.rd = set(); self.srcc = set(); self.ab = set()
        self.passes = 0; self.ws = 1; self.wide_store_data = set()
        if op == "s_nop":
            self.cls = "nop"; self.ws = int(ops[0], 0) + 1
        elif op.startswith("v_mfma"):
            self.cls = "mfma"
            self.passes = 8 if "32x32" in op else 4
            self.wr = set(regs_of(ops[0]))
            self.ab = set(regs_of(ops[1])) | set(regs_of(ops[2]))
            self.srcc = set(regs_of(ops[3]))
            self.rd = self.ab | self.srcc
        elif op.startswith("v_"):
            self.cls = "valu"
            if op.startswith("v_permlane"):
                self.wr = set(regs_of(ops[0])) | set(regs_of(ops[1])); self.rd = set(self.wr)
            else:
                self.wr = set(regs_of(ops[0]))
                for o in ops[1:]:
                    self.rd |= set(regs_of(o))
                if op.startswith(("v_fmac", "v_dot2c", "v_mac")):
                    self.rd |= self.wr
                if op.startswith(("v_add_co", "v_sub_co", "v_addc_co")):
                    self.wr |= set(regs_of(ops[1]))
        elif op.startswith(("buffer_", "global_")):
            self.cls = "vmem"
            last = ops[-1] if ops else ""
            is_lds = bool(re.search(r"\blds\b", t)) or "load_lds" in op
            if "load" in op and not is_lds:
                self.wr = set(regs_of(ops[0]))
                for o in ops[1:]:
                    self.rd |= set(regs_of(o))
            else:
                for o in ops:
                    self.rd |= set(regs_of(o))
                if is_lds:
                    self.rd.add(("m0", 0))
                if "store" in op and ("x4" in op or "x3" in op):
                    di = 0 if op.startswith("buffer_") else 1
                    self.wide_store_data = set(regs_of(ops[di]))
                if "atomic" in op and "sc0" in t:
                    self.wr = set(regs_of(ops[0]))
        elif op.startswith("ds_"):
            self.cls = "ds"
            if op.startswith(("ds_read", "ds_bpermute", "ds_permute", "ds_swizzle")):
                self.wr = set(regs_of(ops[0]))
                for o in ops[1:]:
                    self.rd |= set(regs_of(o))
            else:
                for o in ops:
                    self.rd |= set(regs_of(o))
        else:
            self.cls = "salu"
            if op.startswith(("s_cmp", "s_cbranch", "s_branch", "s_waitcnt", "s_barrier", "s_endpgm", "s_setprio", "s_sleep")):
                for o in ops:
                    self.rd |= set(regs_of(o))
            elif ops:
                self.wr = set(regs_of(ops[0]))
                for o in ops[1:]:
                    self.rd |= set(regs_of(o))


def vg(s):
    return {r for r in s if r[0] in ("v", "a")}


def sg(s):
    return {r for r in s if r[0] in ("s", "vcc", "exec")}


def need(p, c):
    n = 0
    if p.cls == "valu":
        pv = vg(p.wr); ps = sg(p.wr)
        if c.cls == "mfma" and pv & c.rd:
            n = max(n, 2)
        if c.cls == "valu":
            if p.op in TRANS and pv & c.rd:
                n = max(n, 1)
            if c.op.startswith("v_permlane") and pv & c.rd:
                n = max(n, 2)
            if "dpp" in c.text and pv & c.rd:
                n = max(n, 2)
            if c.op.startswith(("v_readfirstlane", "v_readlane")) and pv & c.rd:
                n = max(n, 1)
            if ps & c.rd:
                n = max(n, 4 if c.op.startswith(("v_readlane", "v_writelane")) else 2)
            if ("sdwa" in p.text or ("op_sel" in p.text and not p.op.startswith("v_pk_"))) and pv & (c.rd | c.wr):
                n = max(n, 1)
            if p.op.startswith("v_dot2") and pv & (c.rd | c.wr):
                if not (c.op == p.op and (pv & c.wr) and p.op.startswith("v_dot2c") and not (pv & (c.rd - c.wr))):
                    n = max(n, 3)
        if p.op.startswith("v_dot2") and c.cls in ("vmem", "ds", "mfma") and pv & c.rd:
            n = max(n, 3)
        if p.op in TRANS and c.cls in ("vmem", "ds") and pv & c.rd:
            n = max(n, 1)
        if c.cls == "vmem" and ps & c.rd:
            n = max(n, 5)
        if c.cls == "salu" and ps & c.rd:
            n = max(n, 1)
    elif p.cls == "mfma":
        big = 12 if p.passes == 8 else 8
        if c.cls == "mfma":
            if p.wr & c.ab:
                n = max(n, big)
            if p.wr & c.srcc:
                if not (p.wr == c.srcc and p.passes == c.passes):
                    n = max(n, 10 if p.passes == 8 else 6)
            elif p.wr & c.wr:
                n = max(n, 10 if p.passes == 8 else 6)
        elif c.cls in ("valu", "vmem", "ds"):
            if p.wr & (c.rd | c.wr):
                n = max(n, big)
            if c.cls == "valu" and p.srcc & c.wr:
                n = max(n, 7 if p.passes == 8 else 3)
            if c.cls in ("vmem", "ds") and p.srcc & c.wr:
                n = max(n, 7 if p.passes == 8 else 3)
    elif p.cls == "salu":
        if ("m0", 0) in p.wr and c.cls == "vmem" and ("m0", 0) in c.rd:
            n = max(n, 1)
    elif p.cls == "vmem":
        if p.wide_store_data and (p.wide_store_data & c.wr):
            n = max(n, 2 if c.cls == "valu" else 1)
    return n


class Asm:
    def __init__(self):
        self.out = []
        self.hist = []
        self.nins = 0

    def raw(self, text):
        self.out.append(text)

    def comment(self, t):
        self.out.append("    ; " + t)

    def label(self, name, safe=True):
        if safe:
            self.flush()
        self.out.append(name + ":")

    def flush(self):
        worst = 0
        dist = 0
        for p in reversed(self.hist):
            w = 0
            if p.cls == "mfma":
                w = 12 if p.passes == 8 else 8
            elif p.cls == "valu":
                w = 5 if sg(p.wr) else 3
            elif p.cls == "salu" and ("m0", 0) in p.wr:
                w = 1
            elif p.cls == "vmem" and p.wide_store_data:
                w = 2
            worst = max(worst, w - dist)
            dist += p.ws
            if dist > 12:
                break
        if worst > 0:
            self._nop(worst)
        self.hist = []

    def _nop(self, n):
        while n > 0:
            k = min(n, 16)
            i = Ins(f"s_nop {k-1}")
            self.out.append("    " + i.text)
            self.hist.append(i)
            n -= k

    def __call__(self, text):
        for line in text.strip().split("\n"):
            line = line.strip()
            if not line or line.startswith(";"):
                continue
            self.emit(line)

    def nf(self, text):
        self.emit(text, noflush=True)

    def emit(self, text, noflush=False):
        c = Ins(text)
        dist = 0
        worst = 0
        for p in reversed(self.hist):
            nd = need(p, c)
            if nd - dist > worst:
                worst = nd - dist
            dist += p.ws
            if dist > 12:
                break
        if worst > 0:
            self._nop(worst)
        if c.op.startswith(("s_cbranch", "s_branch")) and not noflush:
            self.flush()
        self.out.append("    " + text)
        self.hist.append(c)
        if len(self.hist) > 32:
            self.hist = self.hist[-24:]
        self.nins += 1

    def text(self):
        return "\n".join(self.out) + "\n"


KD = '''.p2align 6
.amdhsa_kernel {name}
  .amdhsa_next_free_vgpr {vgpr}
  .amdhsa_next_free_sgpr {sgpr}
  .amdhsa_accum_offset {accum}
  .amdhsa_group_segment_fixed_size 0
  .amdhsa_kernarg_size 88
  .amdhsa_user_sgpr_count 2
  .amdhsa_user_sgpr_kernarg_segment_ptr 1
  .amdhsa_system_sgpr_workgroup_id_x 1
.end_amdhsa_kernel
'''


def vr(base, n=1):
    return f"v{base}" if n == 1 else f"v[{base}:{base+n-1}]"


def ar(base, n=1):
    return f"a{base}" if n == 1 else f"a[{base}:{base+n-1}]"


def sr(base, n=1):
    return f"s{base}" if n == 1 else f"s[{base}:{base+n-1}]"
```

```python
import sys, struct, json, math
from asmb import Asm, KD, vr, ar, sr

NAME = "interleave_layers__sliding_local_dilated__mixer_channel_mlp__prompt"
S, D, F = 2048, 576, 4608
XT = S * D * 2
TILE = 18432
OOB = 0x10000000
WS_BYTES = 0x10000000


import os
OPT = dict(kv.split("=") if "=" in kv else (kv, "1") for kv in os.environ.get("GOPT", "").split(",") if kv)


math_sqrt = math.sqrt; PI = math.pi; LOG2E = math.log2(math.e)


def f32(x):
    return "0x%08x" % struct.unpack("<I", struct.pack("<f", x))[0]


class WS:
    pass


def layout():
    off = 0
    L = {}

    def alloc(name, n):
        nonlocal off
        L[name] = off
        off += (n + 4095) // 4096 * 4096
    alloc("WQ", 16 * 18 * 7 * 1024)
    alloc("CQ", 16 * 7 * 64)
    alloc("WO", 36 * 18 * 1024)
    alloc("W12", 8 * 12 * 36 * 3072)
    alloc("BC1", F * 8 + 4096)
    alloc("X0", XT); alloc("ST0", S * 32)
    for l in (0, 1):
        alloc(f"O{l}", XT)
        alloc(f"X1_{l}", XT); alloc(f"ST1_{l}", S * 32)
        alloc(f"PART{l}", 8 * XT)
    alloc("X2", XT); alloc("ST2", S * 32)
    alloc("TS", 512 * 16 * 128)
    L["END"] = off
    return L


L = layout()


class Cnt:
    def __init__(self, a, name, maxv):
        self.a = a; self.name = name; self.maxv = maxv; self.q = []

    def issue(self, tag):
        self.q.append(tag)

    def wait(self, tag):
        if tag not in self.q:
            return
        i = len(self.q) - 1 - self.q[::-1].index(tag)
        n = len(self.q) - 1 - i
        n = min(n, self.maxv)
        self.a(f"s_waitcnt {self.name}({n})")
        self.q = self.q[len(self.q) - n:] if n else []

    def wait_all(self):
        self.a(f"s_waitcnt {self.name}(0)")
        self.q = []


def header(a, name, nwg):
    a.raw(f".globl {name}\n.p2align 8\n.type {name},@function\n{name}:")
    a(f"s_cmp_ge_u32 s2, {nwg}")
    a(f"s_cbranch_scc1 {name}_end")


def footer(a, name):
    a.label(f"{name}_end")
    a("s_endpgm")


def srd(a, d, base, nbytes):
    a(f"s_mov_b32 s{d}, s{base}")
    a(f"s_and_b32 s{d+1}, s{base+1}, 0xffff")
    a(f"s_mov_b32 s{d+2}, {nbytes}")
    a(f"s_mov_b32 s{d+3}, 0x00020000")


class Stamps:
    def __init__(self, a, name):
        self.a = a; self.n = 0; self.on = OPT.get("ts") == name[:-7]

    def __call__(self, real=False):
        if not self.on:
            return
        self.a(f"{'s_memrealtime' if real else 's_memtime'} s[{60+2*self.n}:{61+2*self.n}]")
        self.a("s_waitcnt lgkmcnt(0)")
        self.n += 1

    def store(self):
        if not self.on:
            return
        a = self.a
        a("s_lshl_b32 s58, s2, 4")
        a("s_add_u32 s58, s58, s3")
        a("s_lshl_b32 s58, s58, 7")
        a(f"s_add_u32 s58, s58, {L['TS']}")
        a("v_mov_b32 v2, 0")
        for i in range(self.n):
            a(f"v_mov_b32 v0, s{60+2*i}")
            a(f"buffer_store_dword v0, v2, s[4:7], s58 offen offset:{4*i}")


def xg_reduce(a, op, v, t):
    a(f"v_mov_b32 v{t}, v{v}")
    a(f"v_permlane16_swap_b32 v{v}, v{t}")
    a(f"{op} v{v}, v{v}, v{t}")
    a(f"v_mov_b32 v{t}, v{v}")
    a(f"v_permlane32_swap_b32 v{v}, v{t}")
    a(f"{op} v{v}, v{v}, v{t}")


def gen_p0():
    name = "p0_kernel"
    NWG = 248
    a = Asm()
    header(a, name, NWG)
    ts = Stamps(a, name)
    ts(True); ts()
    a("s_load_dwordx4 s[16:19], s[0:1], 0")
    a("s_load_dwordx2 s[20:21], s[0:1], 16")
    a("s_load_dwordx4 s[24:27], s[0:1], 32")
    a("s_load_dwordx2 s[28:29], s[0:1], 48")
    a("s_load_dwordx2 s[30:31], s[0:1], 80")
    a("v_and_b32 v1, 63, v0")
    a("v_lshrrev_b32 v2, 6, v0")
    a("v_readfirstlane_b32 s3, v2")
    a("v_lshlrev_b32 v3, 4, v1")
    a("v_and_b32 v4, 15, v1")
    a("v_lshrrev_b32 v5, 4, v1")
    a("v_lshrrev_b32 v6, 3, v1")
    a("v_and_b32 v7, 7, v1")
    a("s_mul_i32 s40, s3, 18432")
    a("v_lshrrev_b32 v11, 2, v1")
    a("v_lshlrev_b32 v11, 7, v11")
    a("v_and_b32 v12, 3, v1")
    a("v_lshl_add_u32 v11, v12, 3, v11")
    a("s_lshl_b32 s38, s3, 5")
    a("v_add_u32 v11, s38, v11")
    a("s_waitcnt lgkmcnt(0)")
    srd(a, 4, 30, WS_BYTES)
    a(f"s_mov_b32 s36, {OOB}")
    a(f"s_mov_b32 s37, {OOB}")
    a("v_lshlrev_b32 v9, 2, v4")
    a("v_mov_b32 v10, 0")
    a("s_cmp_ge_u32 s2, 216")
    a(f"s_cbranch_scc1 {name}_x")
    a("s_cmp_ge_u32 s2, 198")
    a(f"s_cbranch_scc1 {name}_wo")
    a("s_cmp_ge_u32 s2, 144")
    a(f"s_cbranch_scc1 {name}_wq")
    a("s_and_b32 s41, s2, 7")
    a("s_lshr_b32 s42, s2, 3")
    a("s_cmp_ge_u32 s42, 9")
    a(f"s_cbranch_scc1 {name}_w2")
    srd(a, 12, 24, D * F * 2)
    a("s_lshl_b32 s43, s42, 2")
    a("s_add_u32 s43, s43, s3")
    a("v_mul_u32_u24 v8, 9216, v6")
    a("v_lshl_add_u32 v8, v7, 4, v8")
    a("s_mul_i32 s32, s41, 1152")
    a("s_lshl_b32 s44, s42, 7")
    a("s_add_u32 s32, s32, s44")
    a("s_add_u32 s46, s32, s38")
    a(f"s_mul_i32 s44, s3, {8*9216}")
    a("s_add_u32 s32, s32, s44")
    a(f"s_mov_b32 s33, {32*9216}")
    a("s_mov_b32 s45, 0")
    a("s_lshl_b32 s36, s46, 2")
    a(f"s_add_u32 s36, s36, {L['BC1']}")
    a("s_add_u32 s37, s36, 16")
    a("v_lshrrev_b32 v9, 2, v4")
    a("v_lshlrev_b32 v9, 5, v9")
    a("v_and_b32 v12, 3, v4")
    a("v_lshl_add_u32 v9, v12, 2, v9")
    srd(a, 48, 26, F * 2)
    a("v_lshlrev_b32 v12, 1, v4")
    a("buffer_load_ushort v10, v12, s[48:51], s46 offen")
    a(f"s_branch {name}_w12")
    a.label(f"{name}_w2")
    srd(a, 12, 28, D * F * 2)
    a("s_sub_u32 s42, s42, 9")
    a("s_lshl_b32 s43, s42, 2")
    a("s_add_u32 s43, s43, s3")
    a("v_mul_u32_u24 v8, 1152, v6")
    a("v_lshl_add_u32 v8, v7, 4, v8")
    a(f"s_mul_i32 s32, s41, {576*1152}")
    a("s_lshl_b32 s44, s42, 7")
    a("s_add_u32 s32, s32, s44")
    a(f"s_mul_i32 s44, s3, {8*1152}")
    a("s_add_u32 s32, s32, s44")
    a(f"s_mov_b32 s33, {32*1152}")
    a(f"s_mov_b32 s45, {18*3072}")
    a.label(f"{name}_w12")
    a("s_mul_i32 s46, s43, 43691")
    a("s_lshr_b32 s46, s46, 17")
    a("s_mul_i32 s47, s46, 3")
    a("s_sub_u32 s47, s43, s47")
    a("s_mul_i32 s34, s41, 12")
    a("s_add_u32 s34, s34, s46")
    a(f"s_mul_i32 s34, s34, {36*3072}")
    a("s_lshl_b32 s47, s47, 10")
    a("s_add_u32 s34, s34, s47")
    a("s_add_u32 s34, s34, s45")
    a(f"s_add_u32 s34, s34, {L['W12']}")
    a("s_mov_b32 s35, 3072")

    a("s_lshl_b32 s44, s3, 10")
    a("s_mov_b32 m0, s44")
    for ks in range(18):
        a("buffer_load_dwordx4 v8, s[12:15], s32 offen lds")
        a("s_add_u32 s32, s32, s33")
        a("s_add_u32 m0, m0, 4096")
    a("v_add_u32 v15, 0x10000, v11")
    a("v_mov_b32 v12, 0x3f803f80")
    a("v_mov_b32 v13, 0")
    G = 3
    for grp in range(18 // G):
        a(f"s_waitcnt vmcnt({18 - G*(grp+1) + G*grp})")
        a("s_barrier")
        for ks in range(G * grp, G * grp + G):
            for r in range(2):
                off = (32 * ks + 16 * r) * 128
                base, off = ("v11", off) if off < 65536 else ("v15", off - 65536)
                a(f"ds_read_b64_tr_b16 v[{16+4*ks+2*r}:{17+4*ks+2*r}], {base} offset:{off}")
        a("s_waitcnt lgkmcnt(0)")
        for ks in range(G * grp, G * grp + G):
            a(f"buffer_store_dwordx4 v[{16+4*ks}:{19+4*ks}], v3, s[4:7], s34 offen sc1")
            a("s_add_u32 s34, s34, s35")
            for j in range(4):
                a(f"v_dot2c_f32_bf16 v13, v{16+4*ks+j}, v12")
    xg_reduce(a, "v_add_f32", 13, 14)
    a("buffer_store_dword v13, v9, s[4:7], s36 offen")
    a("v_lshlrev_b32 v10, 16, v10")
    a("buffer_store_dword v10, v9, s[4:7], s37 offen")
    if ts.on:
        a(f"s_branch {name}_ts")
    else:
        a("s_endpgm")

    def fin():
        if ts.on:
            a(f"s_branch {name}_ts")
        else:
            a("s_endpgm")

    a.label(f"{name}_wo")
    srd(a, 12, 20, D * D * 2)
    a("s_sub_u32 s41, s2, 198")
    a("s_lshl_b32 s44, s3, 3")
    a("v_add_u32 v12, s44, v6")
    a("v_lshrrev_b32 v13, 4, v12")
    a("v_mul_u32_u24 v13, 18, v13")
    a("v_and_b32 v14, 15, v12")
    a("v_add_u32 v13, v13, v14")
    a("v_lshrrev_b32 v14, 2, v12")
    a("v_mul_u32_u24 v14, 36, v14")
    a("v_and_b32 v15, 3, v12")
    a("v_lshrrev_b32 v2, 1, v15")
    a("v_lshlrev_b32 v2, 4, v2")
    a("v_add3_u32 v14, v14, v15, v2")
    a("v_add_u32 v14, 16, v14")
    a("s_mul_i32 s32, s41, 36")
    a("s_sub_u32 s33, s41, 16")
    a("s_mul_i32 s33, s33, 288")
    a("s_cmp_lt_u32 s41, 16")
    a("s_cselect_b32 s32, s32, s33")
    a("s_cselect_b64 vcc, -1, 0")
    a("v_cndmask_b32 v13, v14, v13, vcc")
    a("s_mul_i32 s32, s32, 1152")
    a("v_mul_u32_u24 v8, 1152, v13")
    a("v_lshl_add_u32 v8, v7, 4, v8")
    a("s_lshl_b32 s44, s3, 10")
    a("s_mov_b32 m0, s44")
    for cg in range(9):
        a("buffer_load_dwordx4 v8, s[12:15], s32 offen lds")
        a("s_add_u32 s32, s32, 128")
        a("s_add_u32 m0, m0, 4096")
    a("s_mul_i32 s34, s3, 18432")
    a("s_lshl_b32 s44, s41, 10")
    a("s_add_u32 s34, s34, s44")
    a(f"s_add_u32 s34, s34, {L['WO']}")
    a("s_waitcnt vmcnt(0)")
    a("s_barrier")
    for cg in range(9):
        for r in range(2):
            a(f"ds_read_b64_tr_b16 v[{16+4*cg+2*r}:{17+4*cg+2*r}], v11 offset:{cg*4096+r*2048}")
        if cg == 6:
            a("s_waitcnt lgkmcnt(0)")
    a("s_waitcnt lgkmcnt(0)")
    for cg in range(9):
        a(f"buffer_store_dwordx4 v[{16+4*cg}:{19+4*cg}], v3, s[4:7], s34 offen sc1")
        a(f"s_add_u32 s34, s34, {4*18432}")
    fin()

    a.label(f"{name}_wq")
    srd(a, 12, 18, D * 3 * D * 2)
    a("s_sub_u32 s41, s2, 144")
    a("s_mul_i32 s42, s41, 43691")
    a("s_lshr_b32 s42, s42, 17")
    a("s_mul_i32 s43, s42, 3")
    a("s_sub_u32 s43, s41, s43")
    a(f"s_mul_i32 s32, s42, {32*3456}")
    a("s_mul_i32 s44, s43, 1152")
    a("s_add_u32 s32, s32, s44")
    a(f"s_mul_i32 s44, s3, {8*3456}")
    a("s_add_u32 s32, s32, s44")
    a("s_add_u32 s33, s32, 32")
    a("v_lshrrev_b32 v8, 1, v1")
    a("v_mul_u32_u24 v8, 36, v8")
    a("v_and_b32 v12, 1, v1")
    a("v_lshl_add_u32 v8, v12, 4, v8")
    a("v_and_b32 v12, 31, v1")
    a("v_mul_u32_u24 v12, 36, v12")
    a("v_lshrrev_b32 v13, 5, v1")
    a("v_mul_u32_u24 v13, 3456, v13")
    a("v_add_u32 v12, v12, v13")
    a("s_lshl_b32 s44, s3, 13")
    a("s_mov_b32 m0, s44")
    for i in range(8):
        a("buffer_load_dwordx4 v8, s[12:15], s32 offen lds")
        a("s_add_u32 s32, s32, 3456")
        a("s_add_u32 m0, m0, 1024")
    a("s_lshl_b32 s44, s3, 10")
    a("s_add_u32 m0, s44, 32768")
    for i in range(4):
        a("buffer_load_dword v12, s[12:15], s33 offen lds")
        a(f"s_add_u32 s33, s33, {2*3456}")
        a("s_add_u32 m0, m0, 256")
    a("v_lshrrev_b32 v13, 2, v1")
    a("v_lshlrev_b32 v13, 10, v13")
    a("v_and_b32 v14, 3, v1")
    a("v_lshl_add_u32 v13, v14, 3, v13")
    a("s_lshl_b32 s44, s3, 8")
    a("v_add_u32 v13, s44, v13")
    a(f"s_mul_i32 s34, s3, {4*129024}")
    a("s_mul_i32 s44, s42, 7168")
    a("s_add_u32 s34, s34, s44")
    a(f"s_add_u32 s35, s34, {L['WQ'] + 6*1024}")
    a("s_lshl_b32 s44, s43, 11")
    a("s_add_u32 s34, s34, s44")
    a(f"s_add_u32 s34, s34, {L['WQ']}")
    a("v_lshrrev_b32 v14, 2, v4")
    a(f"s_mov_b32 s44, 129024")
    a("v_mul_lo_u32 v14, v14, s44")
    a("v_lshrrev_b32 v15, 1, v4")
    a("v_and_b32 v15, 1, v15")
    a("s_cmp_eq_u32 s43, 2")
    a("s_cselect_b32 s44, 1, 2")
    a("s_lshl_b32 s45, s43, 1")
    a("s_cmp_eq_u32 s43, 2")
    a("s_cselect_b32 s45, 8, s45")
    a("v_lshlrev_b32 v15, s44, v15")
    a("v_and_b32 v2, 1, v4")
    a("v_add3_u32 v15, v15, v2, s45")
    a("v_lshl_add_u32 v15, v5, 4, v15")
    a("v_lshl_add_u32 v14, v15, 4, v14")
    a("s_waitcnt vmcnt(0)")
    a("s_barrier")
    for i in range(8):
        for r in range(2):
            a(f"ds_read_b64_tr_b16 v[{16+4*i+2*r}:{17+4*i+2*r}], v13 offset:{r*16384+i*32}")
        if i == 6:
            a("s_waitcnt lgkmcnt(0)")
    for r in range(2):
        a(f"ds_read_b64_tr_b16 v[{48+2*r}:{49+2*r}], v11 offset:{32768+r*2048}")
    for i in range(4):
        a(f"v_mov_b32 v{52+i}, 0")
    a("s_waitcnt lgkmcnt(0)")
    for i in range(8):
        a(f"buffer_store_dwordx4 v[{16+4*i}:{19+4*i}], v3, s[4:7], s34 offen offset:{(i&1)*1024} sc1")
        if i & 1:
            a("s_add_u32 s34, s34, 129024")
    a("buffer_store_dwordx4 v[48:51], v14, s[4:7], s35 offen")
    a("s_cmp_eq_u32 s43, 2")
    a(f"s_cselect_b32 s35, s35, {OOB}")
    a("buffer_store_dwordx4 v[52:55], v14, s[4:7], s35 offen offset:64")
    fin()

    a.label(f"{name}_x")
    srd(a, 12, 16, XT)
    a("s_sub_u32 s41, s2, 216")
    a("s_lshl_b32 s41, s41, 2")
    a("s_add_u32 s41, s41, s3")
    a("s_mul_i32 s33, s41, 18432")
    a(f"s_add_u32 s34, s33, {L['X0']}")
    a("s_mov_b32 m0, s40")
    for i in range(18):
        a(f"buffer_load_dwordx4 v3, s[12:15], s33 offen offset:{(i%3)*1024} lds")
        if i % 3 == 2:
            a("s_add_u32 s33, s33, 3072")
            a("s_add_u32 m0, m0, 3072")
    a("v_mul_u32_u24 v8, 1152, v4")
    a("v_lshl_add_u32 v8, v5, 3, v8")
    a("v_add_u32 v8, s40, v8")
    a("v_mov_b32 v12, 0x3f803f80")
    a("v_mov_b32 v14, 0")
    a("v_mov_b32 v15, 0")
    a("s_waitcnt vmcnt(0)")
    for grp in range(3):
        for ks in range(6 * grp, 6 * grp + 6):
            a(f"ds_read_b64 v[{16+4*ks}:{17+4*ks}], v8 offset:{ks*64}")
            a(f"ds_read_b64 v[{18+4*ks}:{19+4*ks}], v8 offset:{ks*64+32}")
        a("s_waitcnt lgkmcnt(0)")
        for ks in range(6 * grp, 6 * grp + 6):
            a(f"buffer_store_dwordx4 v[{16+4*ks}:{19+4*ks}], v3, s[4:7], s34 offen sc1")
            a("s_add_u32 s34, s34, 1024")
    for ks in range(18):
        for j in range(4):
            a(f"v_dot2c_f32_bf16 v14, v{16+4*ks+j}, v12")
            a(f"v_dot2c_f32_bf16 v15, v{16+4*ks+j}, v{16+4*ks+j}")
    a("v_lshlrev_b32 v9, 5, v4")
    a("v_lshl_add_u32 v9, v5, 3, v9")
    a("s_lshl_b32 s36, s41, 9")
    a(f"s_add_u32 s36, s36, {L['ST0']}")
    a("buffer_store_dwordx2 v[14:15], v9, s[4:7], s36 offen")
    if ts.on:
        a.label(f"{name}_ts")
        ts()
        a("s_waitcnt vmcnt(0)")
        ts(); ts(True)
        ts.store()
    footer(a, name)
    return name, a.text(), dict(vgpr=88, sgpr=96, accum=88), dict(grid=248, block=256, lds=81920 + 4096)


def stats_finish(a, s, q, r, mr, t, double_ln):
    a(f"v_mul_f32 v{s}, {f32(1.0/D)}, v{s}")
    a(f"v_mul_f32 v{q}, {f32(1.0/D)}, v{q}")
    a(f"v_fma_f32 v{q}, -v{s}, v{s}, v{q}")
    a(f"v_max_f32 v{q}, 0, v{q}")
    a(f"v_add_f32 v{t}, {f32(1e-5)}, v{q}")
    a(f"v_rsq_f32 v{r}, v{t}")
    if double_ln:
        a(f"v_mul_f32 v{t}, v{r}, v{r}")
        a(f"v_mul_f32 v{t}, v{t}, v{q}")
        a(f"v_add_f32 v{t}, {f32(1e-5)}, v{t}")
        a(f"v_rsq_f32 v{t}, v{t}")
        a(f"v_mul_f32 v{r}, v{r}, v{t}")
    a(f"v_mul_f32 v{mr}, v{s}, v{r}")


def gen_p1(layer):
    name = f"p1l{layer}_kernel"
    XIN = L["X0"] if layer == 0 else L["X2"]
    STI = L["ST0"] if layer == 0 else L["ST2"]
    OUT = L[f"O{layer}"]
    a = Asm()
    vm = Cnt(a, "vmcnt", 63); lg = Cnt(a, "lgkmcnt", 15)
    header(a, name, 256)
    ts = Stamps(a, name)
    ts(True); ts()
    ROT = int(OPT.get("p1rot", 0))
    a("s_load_dwordx2 s[4:5], s[0:1], 80")
    a("v_and_b32 v1, 63, v0")
    a("v_lshrrev_b32 v2, 6, v0")
    a("v_readfirstlane_b32 s3, v2")
    a("v_lshlrev_b32 v3, 4, v1")
    a("v_and_b32 v4, 15, v1")
    a("v_lshrrev_b32 v5, 4, v1")
    a("s_and_b32 s12, s2, 7")
    a("s_lshr_b32 s13, s2, 3")
    a("s_lshr_b32 s14, s12, 1")
    a("s_lshl_b32 s14, s14, 2")
    a("s_and_b32 s15, s13, 3")
    a("s_mul_i32 s46, s15, 5")
    a("s_add_u32 s14, s14, s15")
    a("s_and_b32 s15, s12, 1")
    a("s_lshl_b32 s15, s15, 3")
    a("s_lshr_b32 s16, s13, 2")
    a("s_add_u32 s15, s15, s16")
    a("s_lshl_b32 s16, s16, 1")
    a("s_add_u32 s46, s46, s16")
    a("s_cmp_ge_u32 s46, 18")
    a("s_cselect_b32 s16, 18, 0")
    a("s_sub_u32 s46, s46, s16")
    if not ROT:
        a("s_mov_b32 s46, 0")
    a("s_lshl_b32 s47, s46, 10")
    a("s_lshl_b32 s16, s14, 3")
    a("s_lshl_b32 s17, s3, 1")
    a("s_add_u32 s17, s17, s16")
    a("s_mul_i32 s18, s17, 18432")
    a("s_add_u32 s18, s18, s47")
    a(f"s_add_u32 s18, s18, {XIN}")
    a(f"s_mul_i32 s20, s15, {18*7168}")
    a("s_lshl_b32 s21, s3, 11")
    a("s_add_u32 s20, s20, s21")
    a("s_mul_i32 s19, s46, 7168")
    a("s_add_u32 s20, s20, s19")
    a(f"s_add_u32 s20, s20, {L['WQ']}")
    a("s_mul_i32 s22, s16, 18432")
    a(f"s_add_u32 s22, s22, {XIN - 18432 - 1024}")
    a("s_cmp_eq_u32 s14, 0")
    a(f"s_cselect_b32 s22, {OOB}, s22")
    a("s_add_u32 s22, s22, s47")
    a("s_mov_b32 s48, 7168")
    a(f"s_mov_b32 s49, {-17*7168}")
    a("s_mov_b32 s50, 1024")
    a(f"s_mov_b32 s51, {-17*1024}")
    a("s_mov_b32 s44, 0xfffefffe")
    a("s_cmp_eq_u32 s3, 3")
    a("s_cselect_b32 s22, s22, s20")
    a("s_cselect_b32 s52, s50, s48")
    a("s_cselect_b32 s53, s51, s49")
    a("s_cselect_b32 s44, s44, -1")
    a("s_mov_b32 s45, s44")
    a("s_mov_b32 s24, s21")
    a("s_lshl_b32 s25, s17, 9")
    a(f"s_add_u32 s25, s25, {STI}")
    a("s_lshl_b32 s26, s16, 9")
    a(f"s_add_u32 s26, s26, {STI - 512}")
    a("s_cmp_eq_u32 s14, 0")
    a(f"s_cselect_b32 s26, {OOB}, s26")
    a("s_lshl_b32 s27, s3, 2")
    a("s_lshr_b32 s28, 0x1654, s27")
    a("s_and_b32 s28, s28, 15")
    a("s_lshr_b32 s27, 0x0632, s27")
    a("s_and_b32 s27, s27, 15")
    a("v_lshlrev_b32 v6, 5, v4")
    a("v_lshl_add_u32 v6, v5, 3, v6")
    a("v_lshlrev_b32 v7, 4, v5")
    a("v_lshlrev_b32 v8, 2, v4")
    a("v_add_u32 v15, 18432, v3")
    a("s_waitcnt lgkmcnt(0)")
    a("s_and_b32 s5, s5, 0xffff")
    a(f"s_mov_b32 s6, {WS_BYTES}")
    a("s_mov_b32 s7, 0x00020000")
    ACC = 16; AB = 88
    RN = 168
    RS = 176
    CQN = 200
    CQH = 220
    CQS = 224
    MS = 228; MPA = 232; MPB = 236
    T0 = 200
    EX = 147456
    CQL = EX + 5 * 3072
    for n, so, off in ((0, "s25", 0), (1, "s25", 512), (2, "s26", 0)):
        a(f"buffer_load_dwordx2 {vr(T0+2*n,2)}, v6, s[4:7], {so} offen offset:{off}"); vm.issue("st")

    def loads(ks):
        if not ROT:
            o = (ks % 4) * 1024
            return [
                ["s_mov_b32 m0, s24", "s_add_u32 s24, s24, 8192", "buffer_load_dwordx4 v3, s[4:7], s20 offen lds", "s_add_u32 s20, s20, 7168"],
                ["s_mov_b64 exec, s[44:45]", "buffer_load_dwordx4 v3, s[4:7], s22 offen offset:1024 lds", "s_mov_b64 exec, -1",
                 "s_add_u32 s22, s22, s52"],
                [f"buffer_load_dwordx4 {ar(4*ks,4)}, v3, s[4:7], s18 offen offset:{o}"],
                [f"buffer_load_dwordx4 {ar(72+4*ks,4)}, v15, s[4:7], s18 offen offset:{o}"] + (["s_add_u32 s18, s18, 4096"] if ks % 4 == 3 else []),
            ]
        return [
            ["s_mov_b32 m0, s24", "s_add_u32 s46, s46, 1", "buffer_load_dwordx4 v3, s[4:7], s20 offen lds",
             "s_cmp_eq_u32 s46, 18", "s_cselect_b32 s54, s49, s48", "s_cselect_b32 s55, s53, s52", "s_cselect_b32 s56, s51, s50",
             "s_add_u32 s20, s20, s54"],
            ["s_mov_b64 exec, s[44:45]", "buffer_load_dwordx4 v3, s[4:7], s22 offen offset:1024 lds", "s_mov_b64 exec, -1",
             "s_add_u32 s22, s22, s55", "s_add_u32 s24, s24, 8192"],
            [f"buffer_load_dwordx4 {ar(4*ks,4)}, v3, s[4:7], s18 offen"],
            [f"buffer_load_dwordx4 {ar(72+4*ks,4)}, v15, s[4:7], s18 offen", "s_add_u32 s18, s18, s56"],
        ]

    def do_load(grp, ks):
        for t in grp:
            a(t)
        vm.issue(("k", ks))

    PF = int(OPT.get("p1pf", 5))
    PF0 = int(OPT.get("p1pf0", 2))
    PF1 = int(OPT.get("p1pf1", 4))
    for ks in range(PF0):
        for grp in loads(ks):
            do_load(grp, ks)
    ts()
    a("v_min_u32 v12, 71, v0")
    a("v_lshrrev_b32 v13, 2, v12")
    a("v_lshlrev_b32 v13, 13, v13")
    a("v_and_b32 v12, 3, v12")
    a("v_lshl_add_u32 v13, v12, 8, v13")
    for i in range(4):
        a(f"v_mov_b32 v{ACC+i}, 0x3f803f80")
    a(f"ds_write_b128 v13, {vr(ACC,4)} offset:7168")
    a("v_mov_b32 v9, v3")
    a("s_lshl_b32 s32, s27, 10")
    a("v_add_u32 v10, s32, v3")
    a("s_lshl_b32 s32, s28, 10")
    a("v_add_u32 v11, s32, v3")
    a(f"v_mov_b32 v12, {f32(-1e30)}")
    a("v_lshlrev_b32 v13, 2, v5")
    a("v_sub_u32 v13, v4, v13")
    a("s_cmp_eq_u32 s17, 0")
    a("s_cselect_b32 s33, -100, -2")
    for i in range(4):
        a(f"v_subrev_u32 v14, {i}, v13")
        a("v_and_b32 v2, 1, v14")
        a("v_cmp_eq_u32 s[34:35], 0, v2")
        a("v_cmp_le_i32 vcc, 0, v14")
        a("s_and_b64 vcc, vcc, s[34:35]")
        a(f"v_cndmask_b32 v{MS+i}, v12, 0, vcc")
        a("v_cmp_ge_i32 vcc, -2, v14")
        a("s_and_b64 vcc, vcc, s[34:35]")
        a(f"v_cndmask_b32 v{MPB+i}, v12, 0, vcc")
        a("v_cmp_ge_i32 vcc, s33, v14")
        a("s_and_b64 vcc, vcc, s[34:35]")
        a(f"v_cndmask_b32 v{MPA+i}, v12, 0, vcc")
    a("s_mul_i32 s32, s3, 384")
    a(f"s_add_u32 s32, s32, {EX}")
    a("v_add_u32 v12, s32, v8")
    a("v_add_u32 v13, s32, v7")
    for ks in range(PF0, PF1):
        for grp in loads(ks):
            do_load(grp, ks)
    vm.wait("st")
    for r in range(6):
        a(f"v_mov_b32 v{T0+8+r}, v{T0+r}")
    for r in range(6):
        a(f"v_permlane16_swap_b32 v{T0+r}, v{T0+8+r}")
    for r in range(6):
        a(f"v_add_f32 v{T0+r}, v{T0+r}, v{T0+8+r}")
    for r in range(6):
        a(f"v_mov_b32 v{T0+8+r}, v{T0+r}")
    for r in range(6):
        a(f"v_permlane32_swap_b32 v{T0+r}, v{T0+8+r}")
    for r in range(6):
        a(f"v_add_f32 v{T0+r}, v{T0+r}, v{T0+8+r}")
    for n in range(3):
        b = T0 + 2 * n
        stats_finish(a, b, b + 1, RN + 2 * n, RN + 2 * n + 1, T0 + 8 + n, False)
        a(f"ds_write_b32 v12, v{RN+2*n} offset:{n*128}")
        a(f"ds_write_b32 v12, v{RN+2*n+1} offset:{n*128+64}")
    for n in range(3):
        a(f"ds_read_b128 {vr(RS+8*n,4)}, v13 offset:{n*128}")
        a(f"ds_read_b128 {vr(RS+8*n+4,4)}, v13 offset:{n*128+64}")
    for ks in range(PF1, PF):
        for grp in loads(ks):
            do_load(grp, ks)

    def reads(ks):
        b = AB + 40 * (ks & 1)
        o = (ks % 8) * 8192
        r = [f"ds_read_b128 {vr(b+28,4)}, v9 offset:{o+7*1024}",
             f"ds_read_b128 {vr(b+32,4)}, v10 offset:{o}",
             f"ds_read_b128 {vr(b+36,4)}, v11 offset:{o}"]
        r += [f"ds_read_b128 {vr(b+4*fr,4)}, v9 offset:{o+fr*1024}" for fr in (0, 1, 2, 3, 6, 4, 5)]
        return r

    def mfmas(ks):
        b = AB + 40 * (ks & 1)
        r = []
        acc = vr(ACC + 64, 4); c = "0" if ks == 0 else acc
        r.append(f"v_mfma_f32_16x16x32_bf16 {acc}, {vr(b+32,4)}, {vr(b+28,4)}, {c}")
        acc = vr(ACC + 68, 4); c = "0" if ks == 0 else acc
        r.append(f"v_mfma_f32_16x16x32_bf16 {acc}, {vr(b+28,4)}, {vr(b+36,4)}, {c}")
        for slot, fr in enumerate((0, 1, 2, 3, 6, 4, 5, 6)):
            for n in range(2):
                acc = vr(ACC + 32 * n + 4 * slot, 4)
                x = ar(72 * n + 4 * ks, 4)
                w = vr(b + 4 * fr, 4)
                c = "0" if ks == 0 else acc
                if slot < 5:
                    r.append(f"v_mfma_f32_16x16x32_bf16 {acc}, {w}, {x}, {c}")
                else:
                    r.append(f"v_mfma_f32_16x16x32_bf16 {acc}, {x}, {w}, {c}")
        return r

    CH = int(OPT.get("p1ch", 2))
    ts()
    vm.wait(("k", CH - 1))
    a("s_waitcnt lgkmcnt(0)")
    a("s_barrier")
    for t in reads(0):
        a(t)
    a("s_waitcnt lgkmcnt(0)")
    for ks in range(18):
        if ks in (0, 6, 12):
            ts()
        m = mfmas(ks)
        nxt = ks + 1
        rd = []
        if nxt < 18:
            if nxt % CH == 0:
                vm.wait(("k", min(nxt + CH - 1, 17)))
                a("s_barrier")
            if nxt % 8 == 0:
                a("v_add_u32 v9, 0x10000, v9")
                a("v_add_u32 v10, 0x10000, v10")
                a("v_add_u32 v11, 0x10000, v11")
            rd = reads(nxt)
        else:
            a("s_lshl_b32 s32, s27, 6")
            a(f"s_add_u32 s32, s32, {CQL}")
            a("v_add_u32 v12, s32, v7")
            a("s_lshl_b32 s33, s28, 6")
            a(f"s_add_u32 s33, s33, {CQL}")
            a("v_add_u32 v13, s33, v8")
            a("s_mov_b32 s34, 0x00010001")
            a("s_mov_b32 s35, 0x00010001")
        ld = loads(ks + PF) if ks + PF < 18 else []
        for i, t in enumerate(m):
            a(t)
            if i < len(rd):
                a(rd[i])
            if i >= 10 and (i - 10) % 2 == 0 and (i - 10) // 2 < len(ld):
                do_load(ld[(i - 10) // 2], ks + PF)
            if ks == 17 and i == 10:
                a("s_mov_b64 exec, s[34:35]")
                a(f"ds_write_b128 v12, {vr(ACC+64,4)}")
                a("s_mov_b64 exec, 0xffff")
                a(f"ds_write_b32 v13, v{ACC+68}")
                a("s_mov_b64 exec, -1")
        a("s_waitcnt lgkmcnt(0)")
    a("s_barrier")
    a(f"v_add_u32 v9, {CQL}, v7")
    a(f"v_add_u32 v10, {CQL}, v8")
    for i, fr in enumerate((0, 1, 2, 3, 6)):
        a(f"ds_read_b128 {vr(CQN+4*i,4)}, v9 offset:{fr*64}")
    a(f"ds_read_b128 {vr(CQH,4)}, v12")
    for i, fr in enumerate((4, 5, 6)):
        a(f"ds_read_b32 v{CQS+i}, v10 offset:{fr*64}")
    a(f"ds_read_b32 v{CQS+3}, v13")

    KF = 88; QF = 112; VF = 128; ONE = 148; T = 152
    ts()
    for i in range(4):
        a(f"v_mul_f32 v{ACC+64+i}, v{ACC+64+i}, v{RN+4}")
        a(f"v_mul_f32 v{ACC+68+i}, v{ACC+68+i}, v{RS+16+i}")
    for n in (1, 0):
        for j in range(5):
            for i in range(4):
                a(f"v_mul_f32 v{ACC+32*n+4*j+i}, v{ACC+32*n+4*j+i}, v{RN+2*n}")
        for j in range(5, 8):
            for i in range(4):
                a(f"v_mul_f32 v{ACC+32*n+4*j+i}, v{ACC+32*n+4*j+i}, v{RS+8*n+i}")

    def corr_n(acc, n, cq):
        for i in range(4):
            a(f"v_fma_f32 v{acc+i}, -v{RN+2*n+1}, v{cq+i}, v{acc+i}")

    def corr_s(acc, n, cq):
        for i in range(4):
            a(f"v_fma_f32 v{acc+i}, -v{RS+8*n+4+i}, v{cq}, v{acc+i}")

    def pack2(dst, acc):
        a(f"v_cvt_pk_bf16_f32 v{dst}, v{acc}, v{acc+1}")
        a(f"v_cvt_pk_bf16_f32 v{dst+1}, v{acc+2}, v{acc+3}")

    a("v_cmp_eq_u32 s[36:37], 0, v5")
    a("v_cmp_eq_u32 s[38:39], 1, v5")
    a("v_lshlrev_b32 v12, 3, v1")
    a("s_mul_i32 s32, s3, 3072")
    a(f"s_add_u32 s33, s32, {EX}")
    a("v_add_u32 v13, s33, v12")
    a("s_lshl_b32 s32, s3, 9")
    a(f"s_add_u32 s32, s32, {EX}")
    a("s_cmp_eq_u32 s3, 3")
    a(f"s_cselect_b32 s32, {EX+4*3072}, s32")
    a("v_add_u32 v14, s32, v12")
    a("s_waitcnt lgkmcnt(0)")

    def conv_tile(n):
        ac = ACC + 32 * n
        tl = n + 1
        for i in range(5):
            corr_n(ac + 4 * i, n, CQN + 4 * i)
        for h in range(2):
            pack2(QF + (2 * n + h) * 4, ac + 4 * h)
            pack2(KF + (2 * tl + h) * 4, ac + 8 + 4 * h)
        pack2(T + 8 + 2 * n, ac + 16)
        for h in range(2):
            a(f"v_mov_b32 v{KF+(2*tl+h)*4+2}, v{T+8+2*n+1}")
            a(f"v_cndmask_b32 v{QF+(2*n+h)*4+2}, 0, v{T+8+2*n}, s[{36+2*h}:{37+2*h}]")
        for h in range(3):
            corr_s(ac + 20 + 4 * h, n, CQS + h)
            pack2(VF + 6 * h + 2 * tl, ac + 20 + 4 * h)

    corr_n(ACC + 64, 2, CQH)
    corr_s(ACC + 68, 2, CQS + 3)
    pack2(T + 12, ACC + 64)
    pack2(T + 14, ACC + 68)
    a(f"ds_write_b64 v14, {vr(T+12,2)}")
    a(f"ds_write_b64 v14, {vr(T+14,2)} offset:1536")
    conv_tile(1)
    a(f"ds_write_b64 v13, {vr(KF+16,2)} offset:{3072}")
    a(f"ds_write_b64 v13, {vr(KF+20,2)} offset:{3072+512}")
    a(f"ds_write_b64 v13, {vr(T+10,2)} offset:{3072+1024}")
    for h in range(3):
        a(f"ds_write_b64 v13, {vr(VF+6*h+4,2)} offset:{3072+1536+512*h}")
    conv_tile(0)
    for i in range(6):
        a(f"v_mov_b32 v{KF+4*i+3}, 0")
    for i in range(4):
        a(f"v_mov_b32 v{QF+4*i+3}, 0")
        a(f"v_mov_b32 v{ONE+i}, 0x3f803f80")
    a("s_waitcnt lgkmcnt(0)")
    ts()
    a("s_barrier")
    ts()
    a(f"ds_read_b64 {vr(KF,2)}, v13")
    a(f"ds_read_b64 {vr(KF+4,2)}, v13 offset:512")
    a(f"ds_read_b32 v{KF+2}, v13 offset:{1024+4}")
    a(f"ds_read_b32 v{KF+6}, v13 offset:{1024+4}")
    for h in range(3):
        a(f"ds_read_b64 {vr(VF+6*h,2)}, v13 offset:{1536+512*h}")
    SB = 16
    PB = 48
    MX = 64
    OB = 168
    OO = 72
    jobs = [(1, 0), (1, 1), (0, 0), (0, 1)]
    cs = (18 ** -0.5) * math.log2(math.e)
    a(f"s_mov_b32 s40, {f32(cs)}")
    for j, (n, h) in enumerate(jobs):
        if j == 2:
            a("s_waitcnt lgkmcnt(0)")
        q = vr(QF + (2 * n + h) * 4, 4)
        mp = MPA if n == 0 else MPB
        a(f"v_mfma_f32_16x16x32_bf16 {vr(SB+8*j,4)}, {vr(KF+(2*n+h)*4,4)}, {q}, {vr(mp,4)}")
        a(f"v_mfma_f32_16x16x32_bf16 {vr(SB+8*j+4,4)}, {vr(KF+(2*(n+1)+h)*4,4)}, {q}, {vr(MS,4)}")
    for j in range(4):
        s = SB + 8 * j; m = MX + 2 * j
        a(f"v_max3_f32 v{m}, v{s}, v{s+1}, v{s+2}")
        a(f"v_max3_f32 v{m+1}, v{s+3}, v{s+4}, v{s+5}")
        a(f"v_max3_f32 v{m}, v{m}, v{s+6}, v{s+7}")
        a(f"v_max_f32 v{m}, v{m}, v{m+1}")
    for j in range(4):
        a(f"v_mov_b32 v{MX+2*j+1}, v{MX+2*j}")
    for j in range(4):
        a(f"v_permlane16_swap_b32 v{MX+2*j}, v{MX+2*j+1}")
    for j in range(4):
        a(f"v_max_f32 v{MX+2*j}, v{MX+2*j}, v{MX+2*j+1}")
    for j in range(4):
        a(f"v_mov_b32 v{MX+2*j+1}, v{MX+2*j}")
    for j in range(4):
        a(f"v_permlane32_swap_b32 v{MX+2*j}, v{MX+2*j+1}")
    for j in range(4):
        a(f"v_max_f32 v{MX+2*j}, v{MX+2*j}, v{MX+2*j+1}")
    for j in range(4):
        a(f"v_mul_f32 v{MX+2*j}, s40, v{MX+2*j}")
    for j, (n, h) in enumerate(jobs):
        s = SB + 8 * j
        for i in range(8):
            a(f"v_fma_f32 v{s+i}, v{s+i}, s40, -v{MX+2*j}")
        for i in range(8):
            a(f"v_exp_f32 v{s+i}, v{s+i}")
        for i in range(4):
            a(f"v_cvt_pk_bf16_f32 v{PB+4*j+i}, v{s+2*i}, v{s+2*i+1}")
        p = vr(PB + 4 * j, 4)
        a(f"v_mfma_f32_16x16x32_bf16 {vr(OB+12*j+8,4)}, {vr(ONE,4)}, {p}, 0")
        a(f"v_mfma_f32_16x16x32_bf16 {vr(OB+12*j,4)}, {vr(VF+6*h+2*n,4)}, {p}, 0")
        a(f"v_mfma_f32_16x16x32_bf16 {vr(OB+12*j+4,4)}, {vr(VF+12+2*n,4)}, {p}, 0")
    a("s_mul_i32 s32, s17, 18432")
    a("s_lshl_b32 s33, s15, 10")
    a("s_add_u32 s33, s33, s32")
    a(f"s_add_u32 s33, s33, {OUT}")
    a("s_add_u32 s34, s33, 18432")
    a("s_lshr_b32 s35, s15, 3")
    a("s_lshl_b32 s35, s35, 10")
    a("s_and_b32 s36, s15, 3")
    a("s_lshl_b32 s36, s36, 8")
    a("s_add_u32 s35, s35, s36")
    a("s_lshr_b32 s36, s15, 2")
    a("s_and_b32 s36, s36, 1")
    a("s_lshl_b32 s36, s36, 3")
    a("s_add_u32 s35, s35, s36")
    a("s_add_u32 s35, s35, s32")
    a(f"s_add_u32 s35, s35, {OUT + 16*1024}")
    a("s_add_u32 s36, s35, 18432")
    a("v_lshlrev_b32 v12, 4, v4")
    a("v_mov_b32 v13, 0x40000000")
    a("v_cmp_eq_u32 vcc, 2, v5")
    a("v_cndmask_b32 v12, v13, v12, vcc")
    for j, (n, h) in enumerate(jobs):
        o = OB + 12 * j
        a(f"v_rcp_f32 v{o+8}, v{o+8}")
        for i in range(4):
            a(f"v_mul_f32 v{o+i}, v{o+i}, v{o+8}")
        a(f"v_mul_f32 v{o+4+2*h}, v{o+4+2*h}, v{o+8}")
        a(f"v_mul_f32 v{o+5+2*h}, v{o+5+2*h}, v{o+8}")
        a(f"v_cvt_pk_bf16_f32 v{OO+4*n+2*h}, v{o}, v{o+1}")
        a(f"v_cvt_pk_bf16_f32 v{OO+4*n+2*h+1}, v{o+2}, v{o+3}")
        a(f"v_cvt_pk_bf16_f32 v{OO+8+2*n+h}, v{o+4+2*h}, v{o+5+2*h}")
        if h == 1:
            a(f"buffer_store_dwordx4 {vr(OO+4*n,4)}, v3, s[4:7], s{33+n} offen sc1")
            a(f"buffer_store_dwordx2 {vr(OO+8+2*n,2)}, v12, s[4:7], s{35+n} offen")
    ts()
    if ts.on:
        a("s_waitcnt vmcnt(0)")
    ts(); ts(True)
    ts.store()
    footer(a, name)
    return name, a.text(), dict(vgpr=240 + 144, sgpr=96, accum=240), dict(grid=256, block=256, lds=163840)


def pq_decode(a):
    a("v_and_b32 v1, 63, v0")
    a("v_lshrrev_b32 v2, 6, v0")
    a("v_readfirstlane_b32 s3, v2")
    a("v_lshlrev_b32 v3, 4, v1")
    a("v_and_b32 v4, 15, v1")
    a("v_lshrrev_b32 v5, 4, v1")
    a("s_and_b32 s12, s2, 7")
    a("s_lshl_b32 s12, s12, 3")
    a("s_lshr_b32 s13, s2, 3")
    a("s_and_b32 s15, s13, 7")
    a("s_add_u32 s12, s12, s15")
    a("s_lshr_b32 s13, s13, 3")
    a("s_mul_i32 s14, s13, 9")
    a("s_add_u32 s14, s14, s3")
    a("s_mul_i32 s15, s12, 36864")
    a("s_lshr_b32 s16, s14, 1")
    a("s_lshl_b32 s16, s16, 10")
    a("s_and_b32 s17, s14, 1")
    a("s_lshl_b32 s17, s17, 3")
    a("s_add_u32 s16, s16, s17")
    a("s_add_u32 s16, s16, s15")


def pq_epilogue(a, V, XOUT, STOUT, SCR, T):
    a(f"s_add_u32 s18, s16, {XOUT}")
    a("s_add_u32 s19, s18, 18432")
    for n in range(2):
        v = V + 4 * n
        a(f"v_cvt_pk_bf16_f32 v{T+2*n}, v{v}, v{v+1}")
        a(f"v_cvt_pk_bf16_f32 v{T+2*n+1}, v{v+2}, v{v+3}")
        a(f"buffer_store_dwordx2 {vr(T+2*n,2)}, v3, s[4:7], s{18+n} offen")
    for n in range(2):
        v = V + 4 * n; s = T + 4 + 2 * n
        a(f"v_add_f32 v{s}, v{v}, v{v+1}")
        a(f"v_mul_f32 v{s+1}, v{v}, v{v}")
        a(f"v_add_f32 v{s}, v{s}, v{v+2}")
        a(f"v_fmac_f32 v{s+1}, v{v+1}, v{v+1}")
        a(f"v_add_f32 v{s}, v{s}, v{v+3}")
        a(f"v_fmac_f32 v{s+1}, v{v+2}, v{v+2}")
        a(f"v_fmac_f32 v{s+1}, v{v+3}, v{v+3}")
    a("s_lshl_b32 s20, s3, 10")
    a(f"s_add_u32 s20, s20, {SCR}")
    a(f"v_add_u32 v{T+8}, s20, v3")
    a(f"ds_write_b128 v{T+8}, {vr(T+4,4)}")
    a("s_waitcnt lgkmcnt(0)")
    a("s_barrier")
    a("s_cmp_lg_u32 s3, 0")
    a("s_cbranch_scc1 " + a.endlabel)
    R = T + 12
    for w in range(9):
        a(f"ds_read_b128 {vr(R+4*w,4)}, v3 offset:{SCR+w*1024}")
    a("s_waitcnt lgkmcnt(0)")
    for w in range(1, 9):
        for i in range(4):
            a(f"v_add_f32 v{R+i}, v{R+i}, v{R+4*w+i}")
    for i in range(4):
        xg_reduce(a, "v_add_f32", R + i, T + i)
    a("s_lshl_b32 s20, s12, 10")
    a("s_lshl_b32 s21, s13, 3")
    a("s_add_u32 s20, s20, s21")
    a(f"s_add_u32 s20, s20, {STOUT}")
    a(f"v_lshlrev_b32 v{T+8}, 5, v4")
    a(f"buffer_store_dwordx2 {vr(R,2)}, v{T+8}, s[4:7], s20 offen")
    a(f"buffer_store_dwordx2 {vr(R+2,2)}, v{T+8}, s[4:7], s20 offen offset:512")


def unpack_add(a, dst, src):
    a(f"v_lshlrev_b32 v{src+2}, 16, v{src}")
    a(f"v_and_b32 v{src}, 0xffff0000, v{src}")
    a(f"v_lshlrev_b32 v{src+3}, 16, v{src+1}")
    a(f"v_and_b32 v{src+1}, 0xffff0000, v{src+1}")
    a(f"v_add_f32 v{dst}, v{dst}, v{src+2}")
    a(f"v_add_f32 v{dst+1}, v{dst+1}, v{src}")
    a(f"v_add_f32 v{dst+2}, v{dst+2}, v{src+3}")
    a(f"v_add_f32 v{dst+3}, v{dst+3}, v{src+1}")


def gen_p2(layer):
    name = f"p2l{layer}_kernel"
    XIN = L["X0"] if layer == 0 else L["X2"]
    OIN = L[f"O{layer}"]
    a = Asm(); a.endlabel = f"{name}_end"
    vm = Cnt(a, "vmcnt", 63); lg = Cnt(a, "lgkmcnt", 15)
    header(a, name, 256)
    ts = Stamps(a, name)
    ts(True); ts()
    a("s_load_dwordx2 s[4:5], s[0:1], 80")
    pq_decode(a)
    a("s_lshl_b32 s20, s3, 12")
    a("s_add_u32 s21, s15, s20")
    a(f"s_add_u32 s21, s21, {OIN}")
    a("s_mul_i32 s22, s14, 18432")
    a(f"s_add_u32 s22, s22, {L['WO']}")
    a(f"s_add_u32 s23, s16, {XIN}")
    a("s_add_u32 s24, s23, 18432")
    a("s_mov_b32 m0, s20")
    a("s_waitcnt lgkmcnt(0)")
    a("s_and_b32 s5, s5, 0xffff")
    a(f"s_mov_b32 s6, {WS_BYTES}")
    a("s_mov_b32 s7, 0x00020000")
    A = 16; B = 88; ACC = 8; RES = 120; T = 128
    for i in range(4):
        a(f"buffer_load_dwordx4 v3, s[4:7], s21 offen offset:{i*1024} lds"); vm.issue("o")
    for ks in range(18):
        if ks and ks % 4 == 0:
            a("s_add_u32 s22, s22, 4096")
        a(f"buffer_load_dwordx4 {vr(A+4*ks,4)}, v3, s[4:7], s22 offen offset:{(ks%4)*1024}"); vm.issue(("a", ks))
    a(f"buffer_load_dwordx2 {vr(RES,2)}, v3, s[4:7], s23 offen"); vm.issue("r")
    a(f"buffer_load_dwordx2 {vr(RES+4,2)}, v3, s[4:7], s24 offen"); vm.issue("r")
    ts()
    vm.wait("o")
    ts()
    a("s_barrier")
    ts()
    NB = 4

    def rd(ks):
        for n in range(2):
            a(f"ds_read_b128 {vr(B+8*(ks%NB)+4*n,4)}, v3 offset:{n*18432+ks*1024}"); lg.issue(("b", ks))
    for ks in range(NB - 1):
        rd(ks)
    for ks in range(18):
        if ks + NB - 1 < 18:
            rd(ks + NB - 1)
        vm.wait(("a", ks))
        lg.wait(("b", ks))
        for n in range(2):
            acc = vr(ACC + 4 * n, 4)
            a(f"v_mfma_f32_16x16x32_bf16 {acc}, {vr(A+4*ks,4)}, {vr(B+8*(ks%NB)+4*n,4)}, {'0' if ks == 0 else acc}")
    vm.wait_all()
    ts()
    unpack_add(a, ACC, RES)
    unpack_add(a, ACC + 4, RES + 4)
    if ts.on:
        a.endlabel = f"{name}_ts"
    pq_epilogue(a, ACC, L[f"X1_{layer}"], L[f"ST1_{layer}"], 36864, 16)
    if ts.on:
        a.label(f"{name}_ts")
        ts()
        a("s_waitcnt vmcnt(0)")
    ts(); ts(True)
    ts.store()
    footer(a, name)
    return name, a.text(), dict(vgpr=128, sgpr=96, accum=128), dict(grid=256, block=576, lds=36864 + 9216)


def gen_p4(layer):
    name = f"p4l{layer}_kernel"
    a = Asm(); a.endlabel = f"{name}_end"
    vm = Cnt(a, "vmcnt", 63)
    header(a, name, 256)
    a("s_load_dwordx2 s[4:5], s[0:1], 80")
    a("s_load_dwordx4 s[24:27], s[0:1], 56")
    pq_decode(a)
    a("s_mul_i32 s20, s12, 36")
    a("s_add_u32 s20, s20, s14")
    a("s_lshl_b32 s20, s20, 10")
    a(f"s_add_u32 s20, s20, {L[f'PART{layer}']}")
    a(f"s_add_u32 s22, s16, {L[f'X1_{layer}']}")
    a("s_add_u32 s23, s22, 18432")
    a("s_lshl_b32 s21, s14, 5")
    a("v_lshlrev_b32 v6, 3, v5")
    a("s_waitcnt lgkmcnt(0)")
    a("s_and_b32 s5, s5, 0xffff")
    a(f"s_mov_b32 s6, {WS_BYTES}")
    a("s_mov_b32 s7, 0x00020000")
    srd(a, 28, 24, D * 2)
    P = 32; ACC = 8; RES = 16; BB = 24
    a(f"buffer_load_dwordx2 {vr(RES,2)}, v3, s[4:7], s22 offen"); vm.issue("r")
    a(f"buffer_load_dwordx2 {vr(RES+4,2)}, v3, s[4:7], s23 offen"); vm.issue("r")
    a(f"buffer_load_dwordx2 {vr(BB,2)}, v6, s[28:31], s21 offen"); vm.issue("r")
    for s in range(8):
        a(f"buffer_load_dwordx4 {vr(P+4*s,4)}, v3, s[4:7], s20 offen"); vm.issue(("p", s))
        a(f"s_add_u32 s20, s20, {XT}")
    a("v_mov_b32 v6, 0x00003f80")
    a("v_mov_b32 v7, 0x3f800000")
    vm.wait("r")
    a(f"v_lshlrev_b32 v{ACC}, 16, v{BB}")
    a(f"v_and_b32 v{ACC+1}, 0xffff0000, v{BB}")
    a(f"v_lshlrev_b32 v{ACC+2}, 16, v{BB+1}")
    a(f"v_and_b32 v{ACC+3}, 0xffff0000, v{BB+1}")
    for i in range(4):
        a(f"v_mov_b32 v{ACC+4+i}, v{ACC+i}")
    unpack_add(a, ACC, RES)
    unpack_add(a, ACC + 4, RES + 4)
    for s in range(8):
        vm.wait(("p", s))
        for j in range(4):
            a(f"v_dot2c_f32_bf16 v{ACC+2*j}, v{P+4*s+j}, v6")
            a(f"v_dot2c_f32_bf16 v{ACC+2*j+1}, v{P+4*s+j}, v7")
    if layer == 0:
        pq_epilogue(a, ACC, L["X2"], L["ST2"], 0, 16)
        lds = 9216
    else:
        srd(a, 8, 26, XT)
        a("v_mul_u32_u24 v6, 1152, v4")
        a("v_lshl_add_u32 v6, v5, 3, v6")
        a("s_mul_i32 s20, s12, 36864")
        a("s_add_u32 s20, s20, s21")
        a("s_add_u32 s22, s20, 18432")
        for n in range(2):
            v = ACC + 4 * n
            a(f"v_cvt_pk_bf16_f32 v{16+2*n}, v{v}, v{v+1}")
            a(f"v_cvt_pk_bf16_f32 v{17+2*n}, v{v+2}, v{v+3}")
            a(f"buffer_store_dwordx2 {vr(16+2*n,2)}, v6, s[8:11], s{20+2*n} offen")
        lds = 0
    footer(a, name)
    return name, a.text(), dict(vgpr=64, sgpr=32, accum=64), dict(grid=256, block=576, lds=lds)


def gen_p3(layer):
    name = f"p3l{layer}_kernel"
    XIN = L[f"X1_{layer}"]; STI = L[f"ST1_{layer}"]; PART = L[f"PART{layer}"]
    a = Asm()
    vm = Cnt(a, "vmcnt", 63); lg = Cnt(a, "lgkmcnt", 15)
    header(a, name, 256)
    ts = Stamps(a, name)
    ts(True); ts()
    a("s_load_dwordx2 s[4:5], s[0:1], 80")
    a("v_and_b32 v1, 63, v0")
    a("v_lshrrev_b32 v2, 6, v0")
    a("v_readfirstlane_b32 s3, v2")
    a("v_lshlrev_b32 v3, 4, v1")
    a("v_and_b32 v4, 15, v1")
    a("v_lshrrev_b32 v5, 4, v1")
    a("s_and_b32 s12, s2, 7")
    a("s_lshr_b32 s13, s2, 3")
    ST = 8
    ACC = 16
    B = 64
    A = 96
    HB = 73728
    FLG = 147456
    BCL = FLG + 256
    YG = 3
    DEFER = int(OPT.get("p3defer", 1))
    PR = OPT.get("p3prio", "3213")
    a("v_lshlrev_b32 v7, 2, v1")
    a("v_mov_b32 v16, 0")
    a(f"v_add_u32 v6, {FLG}, v7")
    a("ds_write_b32 v6, v16")
    a(f"v_mov_b32 v6, {FLG}")
    a(f"s_mul_i32 s14, s3, {TILE}")
    a(f"s_mul_i32 s15, s13, {4*TILE}")
    a("s_add_u32 s15, s15, s14")
    a(f"s_add_u32 s15, s15, {XIN}")
    a("s_mul_i32 s16, s12, 12")
    a("s_add_u32 s16, s16, s3")
    a(f"s_mul_i32 s16, s16, {36*3072}")
    a(f"s_add_u32 s16, s16, {L['W12']}")
    a("s_lshl_b32 s17, s13, 11")
    a(f"s_add_u32 s17, s17, {STI}")
    a("s_mul_i32 s18, s12, 4608")
    a("s_mul_i32 s19, s3, 384")
    a("s_add_u32 s18, s18, s19")
    a(f"s_add_u32 s18, s18, {L['BC1']}")
    a("s_lshl_b32 s19, s3, 9")
    a(f"s_add_u32 s19, s19, {BCL}")
    a("s_mov_b32 m0, s19")
    a("v_lshlrev_b32 v1, 5, v4")
    a("v_lshl_add_u32 v1, v5, 3, v1")
    a("v_lshlrev_b32 v2, 5, v5")
    a("v_add_u32 v2, s19, v2")
    a("v_mov_b32 v5, 1")
    a("s_waitcnt lgkmcnt(0)")
    a("s_and_b32 s5, s5, 0xffff")
    a(f"s_mov_b32 s6, {WS_BYTES}")
    a("s_mov_b32 s7, 0x00020000")
    R = B + 24
    for nt in range(4):
        a(f"buffer_load_dwordx2 {vr(R+2*nt,2)}, v1, s[4:7], s17 offen offset:{nt*512}"); vm.issue("st")
    a("buffer_load_dword v7, s[4:7], s18 offen lds"); vm.issue("st")
    a("buffer_load_dword v7, s[4:7], s18 offen offset:256 lds"); vm.issue("st")
    a("s_barrier")

    def aload(s, i3):
        a(f"buffer_load_dwordx4 {vr(A+12*(s%6)+4*i3,4)}, v3, s[4:7], s16 offen offset:{i3*1024}"); vm.issue(("a", s, i3))
        if i3 == 2:
            a("s_add_u32 s16, s16, 3072")

    def yload(g):
        a("s_mov_b32 m0, s14")
        for i in range(3):
            a(f"buffer_load_dwordx4 v3, s[4:7], s15 offen offset:{i*1024} lds"); vm.issue(("y", g))
        a("s_add_u32 s15, s15, 3072")
        a("s_add_u32 s14, s14, 3072")

    def ysignal(g):
        vm.wait(("y", g))
        a(f"ds_add_u32 v6, v5 offset:{16+4*g}"); lg.issue("sig")

    slow = []

    def flag_off(s):
        if s < 18:
            return 16 + 4 * (s // YG) if s % YG == 0 else None
        return 4 * ((s - 18) // 6) if s % 6 == 0 else None

    def flag_read(s):
        a(f"ds_read_b32 v4, v6 offset:{flag_off(s)}"); lg.issue(("f", s))

    def flag_check(s, cls):
        lg.wait(("f", s))
        a("v_readfirstlane_b32 s22, v4")
        a("s_cmp_ge_u32 s22, 256")
        a.nf(f"s_cbranch_scc0 {name}_w{cls}{s}")
        a.label(f"{name}_r{cls}{s}", safe=False)
        slow.append((cls, s))

    def math():
        vm.wait("st")
        for i3 in range(3):
            a(f"ds_read_b128 {vr(B+8*i3,4)}, v2 offset:{i3*128}")
            a(f"ds_read_b128 {vr(B+8*i3+4,4)}, v2 offset:{i3*128+16}")
        for nt in range(4):
            xg_reduce(a, "v_add_f32", R + 2 * nt, ACC + nt)
            xg_reduce(a, "v_add_f32", R + 2 * nt + 1, ACC + 4 + nt)
        for nt in range(4):
            stats_finish(a, R + 2 * nt, R + 2 * nt + 1, ST + nt, ACC + 8 + nt, ACC + nt, True)
            a(f"v_rcp_f32 v{ST+4+nt}, v{ST+nt}")
        a("s_waitcnt lgkmcnt(0)")
        for i3 in range(3):
            for nt in range(4):
                ac = ACC + (i3 * 4 + nt) * 4
                c = B + 8 * i3
                for i in range(4):
                    a(f"v_mul_f32 v{ac+i}, v{c+4+i}, v{ST+4+nt}")
                for i in range(4):
                    a(f"v_fma_f32 v{ac+i}, -v{R+2*nt}, v{c+i}, v{ac+i}")
        a(f"v_add_u32 v2, {HB}, v3")
        a(f"v_add_u32 v7, 0x10000, v3")

    def bread(s):
        ks = s % 18
        for nt in range(4):
            off = nt * TILE + ks * 1024
            base = "v3" if s < 18 else "v2"
            if off > 65535:
                base = "v7"; off -= 65536
            a(f"ds_read_b128 {vr(B+16*(s&1)+4*nt,4)}, {base} offset:{off}"); lg.issue(("b", s))

    def step(s, last, cls):
        first = (s == 18)
        if cls == "a" and s < 18:
            g = s // 3
            if s % 3 == 0 and g + 3 < 6:
                yload(g + 3)
            if s % 3 == 0 and 2 <= g + 1 < 6:
                ysignal(g + 1)
        if not last:
            if flag_off(s + 1) is not None:
                flag_check(s + 1, cls)
            bread(s + 1)
            if s + 2 < 36 and s + 2 != 18 and flag_off(s + 2) is not None:
                flag_read(s + 2)
        lg.wait(("b", s))
        for i3 in range(3):
            vm.wait(("a", s, i3))
            for nt in range(4):
                acc = vr(ACC + (i3 * 4 + nt) * 4, 4)
                a(f"v_mfma_f32_16x16x32_bf16 {acc}, {vr(A+12*(s%6)+4*i3,4)}, {vr(B+16*(s&1)+4*nt,4)}, {'0' if first else acc}")
            if s + 6 < 36 and not (DEFER and 18 <= s + 6 < 24):
                aload(s + 6, i3)

    def phase1(cls):
        a(f"s_setprio {PR[0]}")
        ts()
        lg.q = []
        flag_read(0); flag_check(0, cls)
        ts()
        bread(0)
        for s in range(18):
            step(s, s == 17, cls)

    q0 = list(vm.q)
    n0 = ts.n
    a("s_cmp_ge_u32 s3, 4")
    a(f"s_cbranch_scc1 {name}_bc")
    yload(0); yload(1)
    for s in range(3):
        for i3 in range(3):
            aload(s, i3)
    yload(2)
    for s in range(3, 6):
        for i3 in range(3):
            aload(s, i3)
    ts()
    math()
    ysignal(0); ysignal(1)
    phase1("a")
    a(f"s_branch {name}_gelu")
    a.label(f"{name}_bc")
    vm.q = list(q0)
    ts.n = n0
    math()
    ts()
    for s in range(6):
        for i3 in range(3):
            aload(s, i3)
    phase1("b")
    a.label(f"{name}_gelu")
    ts()
    a(f"s_setprio {PR[1]}")
    k = math_sqrt(2.0 / PI)
    C1 = -2.0 * k * LOG2E
    C3 = C1 * 0.044715
    a(f"v_add_u32 v7, {HB + 0x10000}, v3")
    K1 = B; K3 = B + 4; T = B + 8
    for nt in range(4):
        a(f"v_mul_f32 v{K1+nt}, {f32(C1)}, v{ST+nt}")
        a(f"v_mul_f32 v{K3+nt}, v{ST+nt}, v{ST+nt}")
        a(f"v_mul_f32 v{K3+nt}, v{K3+nt}, v{ST+nt}")
        a(f"v_mul_f32 v{K3+nt}, {f32(C3)}, v{K3+nt}")
    a("s_mul_i32 s21, s3, 3")
    rest = [(s, i3) for s in range(18, 24) for i3 in range(3)] if DEFER else []
    for i3 in range(3):
        a(f"s_add_u32 s22, s21, {i3}")
        a("s_lshr_b32 s23, s22, 1")
        a("s_lshl_b32 s23, s23, 10")
        a("s_and_b32 s22, s22, 1")
        a("s_lshl_b32 s22, s22, 3")
        a("s_add_u32 s22, s22, s23")
        a("v_add_u32 v4, s22, v2")
        for nt in range(4):
            ac = ACC + (i3 * 4 + nt) * 4
            t = T + 4 * (nt & 1)
            for i in range(4):
                a(f"v_mul_f32 v{t+i}, v{ac+i}, v{ac+i}")
            for i in range(4):
                a(f"v_fma_f32 v{t+i}, v{t+i}, v{K3+nt}, v{K1+nt}")
            for i in range(4):
                a(f"v_mul_f32 v{t+i}, v{t+i}, v{ac+i}")
            for i in range(4):
                a(f"v_exp_f32 v{t+i}, v{t+i}")
            if rest and DEFER == 1:
                aload(*rest.pop(0))
            for i in range(4):
                a(f"v_fma_f32 v{t+i}, v{t+i}, v{ST+4+nt}, v{ST+4+nt}")
            for i in range(4):
                a(f"v_rcp_f32 v{t+i}, v{t+i}")
            for i in range(4):
                a(f"v_mul_f32 v{ac+i}, v{ac+i}, v{t+i}")
            a(f"v_cvt_pk_bf16_f32 v{ac}, v{ac}, v{ac+1}")
            a(f"v_cvt_pk_bf16_f32 v{ac+1}, v{ac+2}, v{ac+3}")
            a(f"ds_write_b64 v4, {vr(ac,2)} offset:{nt*TILE}")
            if rest and DEFER == 1 and nt % 2 == 1:
                aload(*rest.pop(0))
    a("s_lshr_b32 s22, s3, 2")
    a("s_lshl_b32 s22, s22, 2")
    a("v_add_u32 v4, s22, v6")
    a("s_waitcnt lgkmcnt(0)")
    a("ds_add_u32 v4, v5")
    while rest:
        aload(*rest.pop(0))
    ts()
    a("s_setprio 0")
    a("s_cmp_lt_u32 s3, 4")
    a(f"s_cbranch_scc1 {name}_p")
    a(f"s_setprio {PR[2]}")
    a("s_cmp_lt_u32 s3, 8")
    a(f"s_cbranch_scc1 {name}_p")
    a(f"s_setprio {PR[3]}")
    a.label(f"{name}_p")
    lg.q = []
    flag_read(18); flag_check(18, "c")
    ts()
    bread(18)
    for s in range(18, 36):
        step(s, s == 35, "c")
        if s in (23, 29):
            ts()
    ts()
    a(f"s_mul_i32 s22, s12, {XT}")
    a("s_mul_i32 s23, s13, 72")
    a("s_add_u32 s23, s23, s21")
    a("s_lshl_b32 s23, s23, 10")
    a("s_add_u32 s22, s22, s23")
    a(f"s_add_u32 s22, s22, {PART}")
    a(f"s_add_u32 s23, s22, {36*1024}")
    for i3 in range(3):
        for pp in range(2):
            ac = ACC + (i3 * 4 + 2 * pp) * 4
            o = B + (i3 * 2 + pp) * 4
            for i in range(4):
                a(f"v_cvt_pk_bf16_f32 v{o+i}, v{ac+2*i}, v{ac+2*i+1}")
            a(f"buffer_store_dwordx4 {vr(o,4)}, v3, s[4:7], s{22+pp} offen offset:{i3*1024} sc1")
    ts()
    if ts.on:
        a("s_waitcnt vmcnt(0)")
    ts(); ts(True)
    ts.store()
    a("s_endpgm")
    for cls, s in slow:
        a.label(f"{name}_w{cls}{s}")
        a("s_sleep 1")
        a(f"ds_read_b32 v4, v6 offset:{flag_off(s)}")
        a("s_waitcnt lgkmcnt(0)")
        a("v_readfirstlane_b32 s22, v4")
        a("s_cmp_ge_u32 s22, 256")
        a(f"s_cbranch_scc0 {name}_w{cls}{s}")
        a(f"s_branch {name}_r{cls}{s}")
    footer(a, name)
    return name, a.text(), dict(vgpr=168, sgpr=96, accum=168), dict(grid=256, block=768, lds=BCL + 12 * 512)


def main():
    ks = [gen_p0()]
    for l in (0, 1):
        ks += [gen_p1(l), gen_p2(l), gen_p3(l), gen_p4(l)]
    seq = ks
    if "seq" in OPT:
        byname = {k[0][:-7]: k for k in ks}
        seq = [byname[n] for n in OPT["seq"].split("+")]
    ref = open(f"cdna_kernels/{NAME}.s.ref").read().split("\n")
    hdr = [ln for ln in ref if ln.startswith(";") and "@launch" not in ln and "Override launch" not in ln and "grid=ceil" not in ln]
    out = hdr[:]
    for name, _, _, g in seq:
        out.append(f"; @launch kernel={name} grid=({g['grid']},1,1) block=({g['block']},1,1) lds={g['lds']}")
    out.append('.amdgcn_target "amdgcn-amd-amdhsa--gfx950"')
    out.append(".text")
    for _, txt, _, _ in ks:
        out.append(txt)
    out.append('.section .rodata,"a"')
    for name, _, kd, _ in ks:
        out.append(KD.format(name=name, **kd))
    path = sys.argv[1] if len(sys.argv) > 1 else f"cdna_kernels/{NAME}.s"
    open(path, "w").write("\n".join(out))
    json.dump(L, open("layout.json", "w"))
    print("written", path, "ws end", L["END"])


if __name__ == "__main__":
    main()
```

```python
import sys, struct, json, math
from asmb import Asm, KD, vr, ar, sr

NAME = "interleave_layers__sliding_local_dilated__mixer_channel_mlp__prompt"
S, D, F = 2048, 576, 4608
XT = S * D * 2
TILE = 18432
OOB = 0x10000000
WS_BYTES = 0x0c000000


import os
OPT = dict(kv.split("=") if "=" in kv else (kv, "1") for kv in os.environ.get("GOPT", "").split(",") if kv)


math_sqrt = math.sqrt; PI = math.pi; LOG2E = math.log2(math.e)


def f32(x):
    return "0x%08x" % struct.unpack("<I", struct.pack("<f", x))[0]


G0 = int(OPT.get("g0", 3))
NCHUNK = 28
SLB = NCHUNK * 24576


class WS:
    pass


def layout():
    off = 0
    L = {}

    def alloc(name, n):
        nonlocal off
        L[name] = off
        off += (n + 4095) // 4096 * 4096
    for l in (0, 1):
        alloc(f"FL{l}", 32768)
        alloc("X0" if l == 0 else "X2", XT); alloc("ST0" if l == 0 else "ST2", S * 32)
        alloc(f"O{l}", XT)
        alloc(f"X1_{l}", XT); alloc(f"ST1_{l}", S * 32)
        alloc(f"PART{l}", 8 * XT)
        alloc(f"HX{l}", 1024 * 18432)
    L["LSTR"] = L["FL1"]
    alloc("WQ", 16 * 18 * 7 * 1024)
    alloc("WO", 36 * 18 * 1024)
    alloc("W12", 16 * NCHUNK * 24576)
    alloc("TS", 512 * 16 * 128)
    L["END"] = off
    return L


L = layout()


class Cnt:
    def __init__(self, a, name, maxv):
        self.a = a; self.name = name; self.maxv = maxv; self.q = []

    def issue(self, tag):
        self.q.append(tag)

    def wait(self, tag):
        if tag not in self.q:
            return
        i = len(self.q) - 1 - self.q[::-1].index(tag)
        n = len(self.q) - 1 - i
        n = min(n, self.maxv)
        self.a(f"s_waitcnt {self.name}({n})")
        self.q = self.q[len(self.q) - n:] if n else []

    def wait_all(self):
        self.a(f"s_waitcnt {self.name}(0)")
        self.q = []


def header(a, name, nwg):
    if "l0_" in name:
        n1 = name.replace("l0_", "l1_")
        a.raw(f".globl {n1}\n.p2align 8\n.type {n1},@function\n{n1}:")
        a(f"s_mov_b32 s59, {L['LSTR']}")
        a(f"s_branch {name}_body")
    a.raw(f".globl {name}\n.p2align 8\n.type {name},@function\n{name}:")
    a("s_mov_b32 s59, 0")
    a.raw(f"{name}_body:")
    a(f"s_cmp_ge_u32 s2, {nwg}")
    a(f"s_cbranch_scc1 {name}_end")


def footer(a, name):
    a.label(f"{name}_end")
    a("s_endpgm")


def srd(a, d, base, nbytes):
    a(f"s_mov_b32 s{d}, s{base}")
    a(f"s_and_b32 s{d+1}, s{base+1}, 0xffff")
    a(f"s_mov_b32 s{d+2}, {nbytes}")
    a(f"s_mov_b32 s{d+3}, 0x00020000")


class Stamps:
    def __init__(self, a, name):
        self.a = a; self.n = 0; self.on = OPT.get("ts") == name[:-7]

    def __call__(self, real=False):
        if not self.on:
            return
        self.a(f"{'s_memrealtime' if real or 'tsreal' in OPT else 's_memtime'} s[{60+2*self.n}:{61+2*self.n}]")
        self.a("s_waitcnt lgkmcnt(0)")
        self.n += 1

    def store(self):
        if not self.on:
            return
        a = self.a
        a("s_lshl_b32 s58, s2, 4")
        a("s_add_u32 s58, s58, s3")
        a("s_lshl_b32 s58, s58, 7")
        a(f"s_add_u32 s58, s58, {L['TS']}")
        a("s_sub_u32 s58, s58, s59")
        a("v_mov_b32 v2, 0")
        for i in range(self.n):
            a(f"v_mov_b32 v0, s{60+2*i}")
            a(f"buffer_store_dword v0, v2, s[4:7], s58 offen offset:{4*i}")


def xg_reduce(a, op, v, t):
    a(f"v_mov_b32 v{t}, v{v}")
    a(f"v_permlane16_swap_b32 v{v}, v{t}")
    a(f"{op} v{v}, v{v}, v{t}")
    a(f"v_mov_b32 v{t}, v{v}")
    a(f"v_permlane32_swap_b32 v{v}, v{t}")
    a(f"{op} v{v}, v{v}, v{t}")


def gen_p0():
    name = "p0_kernel"
    NWG = 248
    a = Asm()
    header(a, name, NWG)
    ts = Stamps(a, name)
    ts(True); ts()
    a("s_load_dwordx4 s[16:19], s[0:1], 0")
    a("s_load_dwordx2 s[20:21], s[0:1], 16")
    a("s_load_dwordx4 s[24:27], s[0:1], 32")
    a("s_load_dwordx2 s[28:29], s[0:1], 48")
    a("s_load_dwordx2 s[30:31], s[0:1], 80")
    a("v_and_b32 v1, 63, v0")
    a("v_lshrrev_b32 v2, 6, v0")
    a("v_readfirstlane_b32 s3, v2")
    a("v_lshlrev_b32 v3, 4, v1")
    a("v_and_b32 v4, 15, v1")
    a("v_lshrrev_b32 v5, 4, v1")
    a("v_lshrrev_b32 v6, 3, v1")
    a("v_and_b32 v7, 7, v1")
    a("s_mul_i32 s40, s3, 18432")
    a("v_lshrrev_b32 v11, 2, v1")
    a("v_lshlrev_b32 v11, 7, v11")
    a("v_and_b32 v12, 3, v1")
    a("v_lshl_add_u32 v11, v12, 3, v11")
    a("s_lshl_b32 s38, s3, 5")
    a("v_add_u32 v11, s38, v11")
    a("s_waitcnt lgkmcnt(0)")
    if "nocp" not in OPT:
        a("s_getpc_b64 s[52:53]")
        a.raw(f"{name}_pc:")
        a("s_lshr_b32 s54, s2, 3")
        a("s_lshl_b32 s54, s54, 2")
        a("s_add_u32 s54, s54, s3")
        a("s_mul_i32 s54, s54, 384")
        a(f"s_add_u32 s54, s54, p1l1_kernel-{name}_pc")
        a(f"s_min_u32 s54, s54, code_end-{name}_pc-320")
        a("s_add_u32 s52, s52, s54")
        a("s_addc_u32 s53, s53, 0")
        for i in range(6):
            a(f"s_load_dword s55, s[52:53], {64*i}")
    srd(a, 4, 30, WS_BYTES)
    a(f"s_mov_b32 s36, {OOB}")
    a(f"s_mov_b32 s37, {OOB}")
    a("v_lshlrev_b32 v9, 2, v4")
    a("v_mov_b32 v10, 0")
    a("s_cmp_ge_u32 s2, 216")
    a(f"s_cbranch_scc1 {name}_x")
    a("s_cmp_ge_u32 s2, 198")
    a(f"s_cbranch_scc1 {name}_wo")
    a("s_cmp_ge_u32 s2, 144")
    a(f"s_cbranch_scc1 {name}_wq")
    def fin():
        if ts.on:
            a(f"s_branch {name}_ts")
        else:
            a("s_endpgm")

    def dma18():
        a("s_lshl_b32 s44, s3, 10")
        a("s_mov_b32 m0, s44")
        for ks in range(18):
            a("buffer_load_dwordx4 v8, s[12:15], s32 offen lds")
            a("s_add_u32 s32, s32, s33")
            a("s_add_u32 m0, m0, 4096")

    def tile_decode():
        a("s_lshl_b32 s43, s42, 1")
        a("s_lshr_b32 s44, s3, 1")
        a("s_add_u32 s43, s43, s44")
        a("s_cmp_ge_u32 s43, 9")
        a("s_cselect_b32 s46, 1, 0")
        a("s_mul_i32 s47, s46, 9")
        a("s_sub_u32 s47, s43, s47")
        a("s_lshl_b32 s34, s41, 1")
        a("s_add_u32 s34, s34, s46")
        a(f"s_mul_i32 s34, s34, {SLB}")
        a(f"s_add_u32 s34, s34, {L['W12']}")
        a("s_and_b32 s44, s3, 1")
        a("s_lshl_b32 s44, s44, 10")
        a("s_add_u32 s34, s34, s44")

    a("s_and_b32 s41, s2, 7")
    a("s_lshr_b32 s42, s2, 3")
    a("s_cmp_ge_u32 s42, 9")
    a(f"s_cbranch_scc1 {name}_w2")
    srd(a, 12, 24, D * F * 2)
    a("v_mul_u32_u24 v8, 9216, v6")
    a("v_lshl_add_u32 v8, v7, 4, v8")
    a("s_mul_i32 s32, s41, 1152")
    a("s_lshl_b32 s44, s42, 7")
    a("s_add_u32 s32, s32, s44")
    a("s_add_u32 s45, s32, s38")
    a(f"s_mul_i32 s44, s3, {8*9216}")
    a("s_add_u32 s32, s32, s44")
    a(f"s_mov_b32 s33, {32*9216}")
    srd(a, 48, 26, F * 2)
    a("v_lshlrev_b32 v12, 1, v4")
    a("buffer_load_ushort v10, v12, s[48:51], s45 offen")
    dma18()
    tile_decode()
    a("s_mul_i32 s44, s47, 19")
    a(f"s_cmp_lt_u32 s47, {G0}")
    a("s_cselect_b32 s44, s47, s44")
    a(f"s_cselect_b32 s45, {G0}, 1")
    a("s_lshl_b32 s44, s44, 11")
    a("s_add_u32 s34, s34, s44")
    a("s_lshl_b32 s35, s45, 11")
    a("v_add_u32 v15, 0x10000, v11")
    a("v_mov_b32 v12, 0x3f803f80")
    a("v_mov_b32 v13, 0")
    G = 3
    for grp in range(18 // G):
        a(f"s_waitcnt vmcnt({18 - G})")
        a("s_barrier")
        for ks in range(G * grp, G * grp + G):
            for r in range(2):
                off = (32 * ks + 16 * r) * 128
                base, off = ("v11", off) if off < 65536 else ("v15", off - 65536)
                a(f"ds_read_b64_tr_b16 v[{16+4*ks+2*r}:{17+4*ks+2*r}], {base} offset:{off}")
        a("s_waitcnt lgkmcnt(0)")
        for ks in range(G * grp, G * grp + G):
            a(f"buffer_store_dwordx4 v[{16+4*ks}:{19+4*ks}], v3, s[4:7], s34 offen sc1")
            a("s_add_u32 s34, s34, s35")
            for j in range(4):
                a(f"v_dot2c_f32_bf16 v13, v{16+4*ks+j}, v12")
    xg_reduce(a, "v_add_f32", 13, 8)
    a("v_lshl_or_b32 v16, v10, 16, v10")
    a("v_cvt_pk_bf16_f32 v18, v13, v13")
    a("v_and_b32 v8, 0xffff0000, v18")
    a("v_sub_f32 v8, v13, v8")
    a("v_cvt_pk_bf16_f32 v17, v13, v8")
    a("v_and_b32 v18, 0xffff, v18")
    a("v_mov_b32 v19, 0")
    a("v_cmp_eq_u32 vcc, 0, v5")
    for r in (16, 17, 18):
        a(f"v_cndmask_b32 v{r}, 0, v{r}, vcc")
    a("buffer_store_dwordx4 v[16:19], v3, s[4:7], s34 offen sc1")
    fin()

    a.label(f"{name}_w2")
    srd(a, 12, 28, D * F * 2)
    a("s_sub_u32 s42, s42, 9")
    a("v_mul_u32_u24 v8, 1152, v6")
    a("v_lshl_add_u32 v8, v7, 4, v8")
    a(f"s_mul_i32 s32, s41, {576*1152}")
    a("s_lshl_b32 s44, s42, 7")
    a("s_add_u32 s32, s32, s44")
    a(f"s_mul_i32 s44, s3, {8*1152}")
    a("s_add_u32 s32, s32, s44")
    a(f"s_mov_b32 s33, {32*1152}")
    dma18()
    tile_decode()
    a("s_mul_i32 s44, s46, 36864")
    a("s_sub_u32 s45, 36864, s44")
    a("v_add_u32 v15, s45, v11")
    a("v_add_u32 v11, s44, v11")
    a("s_mul_i32 s44, s47, 6144")
    a("s_add_u32 s37, s34, s44")
    a(f"s_add_u32 s37, s37, {612*1024}")
    a("s_lshl_b32 s44, s47, 11")
    a("s_add_u32 s34, s34, s44")
    a(f"s_add_u32 s34, s34, {342*1024}")
    a("s_waitcnt vmcnt(0)")
    a("s_barrier")
    for grp in range(3):
        for b in range(6 * grp, 6 * grp + 6):
            for r in range(2):
                a(f"ds_read_b64_tr_b16 v[{16+4*b+2*r}:{17+4*b+2*r}], {'v11' if b < 9 else 'v15'} offset:{(b%9)*4096+r*2048}")
        a("s_waitcnt lgkmcnt(0)")
        for b in range(6 * grp, 6 * grp + 6):
            if b < 15:
                a(f"buffer_store_dwordx4 v[{16+4*b}:{19+4*b}], v3, s[4:7], s34 offen sc1")
                a(f"s_add_u32 s34, s34, {18*1024}")
            else:
                a(f"buffer_store_dwordx4 v[{16+4*b}:{19+4*b}], v3, s[4:7], s37 offen sc1")
                a("s_add_u32 s37, s37, 2048")
    fin()

    a.label(f"{name}_wo")
    srd(a, 12, 20, D * D * 2)
    a("s_sub_u32 s41, s2, 198")
    a("s_lshl_b32 s44, s3, 3")
    a("v_add_u32 v12, s44, v6")
    a("v_lshrrev_b32 v13, 4, v12")
    a("v_mul_u32_u24 v13, 18, v13")
    a("v_and_b32 v14, 15, v12")
    a("v_add_u32 v13, v13, v14")
    a("v_lshrrev_b32 v14, 2, v12")
    a("v_mul_u32_u24 v14, 36, v14")
    a("v_and_b32 v15, 3, v12")
    a("v_lshrrev_b32 v2, 1, v15")
    a("v_lshlrev_b32 v2, 4, v2")
    a("v_add3_u32 v14, v14, v15, v2")
    a("v_add_u32 v14, 16, v14")
    a("s_mul_i32 s32, s41, 36")
    a("s_sub_u32 s33, s41, 16")
    a("s_mul_i32 s33, s33, 288")
    a("s_cmp_lt_u32 s41, 16")
    a("s_cselect_b32 s32, s32, s33")
    a("s_cselect_b64 vcc, -1, 0")
    a("v_cndmask_b32 v13, v14, v13, vcc")
    a("s_mul_i32 s32, s32, 1152")
    a("v_mul_u32_u24 v8, 1152, v13")
    a("v_lshl_add_u32 v8, v7, 4, v8")
    a("s_lshl_b32 s44, s3, 10")
    a("s_mov_b32 m0, s44")
    for cg in range(9):
        a("buffer_load_dwordx4 v8, s[12:15], s32 offen lds")
        a("s_add_u32 s32, s32, 128")
        a("s_add_u32 m0, m0, 4096")
    a("s_mul_i32 s34, s3, 18432")
    a("s_lshl_b32 s44, s41, 10")
    a("s_add_u32 s34, s34, s44")
    a(f"s_add_u32 s34, s34, {L['WO']}")
    a("s_waitcnt vmcnt(0)")
    a("s_barrier")
    for cg in range(9):
        for r in range(2):
            a(f"ds_read_b64_tr_b16 v[{16+4*cg+2*r}:{17+4*cg+2*r}], v11 offset:{cg*4096+r*2048}")
        if cg == 6:
            a("s_waitcnt lgkmcnt(0)")
    a("s_waitcnt lgkmcnt(0)")
    for cg in range(9):
        a(f"buffer_store_dwordx4 v[{16+4*cg}:{19+4*cg}], v3, s[4:7], s34 offen sc1")
        a(f"s_add_u32 s34, s34, {4*18432}")
    fin()

    a.label(f"{name}_wq")
    srd(a, 12, 18, D * 3 * D * 2)
    a("s_sub_u32 s41, s2, 144")
    a("s_mul_i32 s42, s41, 43691")
    a("s_lshr_b32 s42, s42, 17")
    a("s_mul_i32 s43, s42, 3")
    a("s_sub_u32 s43, s41, s43")
    a(f"s_mul_i32 s32, s42, {32*3456}")
    a("s_mul_i32 s44, s43, 1152")
    a("s_add_u32 s32, s32, s44")
    a(f"s_mul_i32 s44, s3, {8*3456}")
    a("s_add_u32 s32, s32, s44")
    a("s_add_u32 s33, s32, 32")
    a("v_lshrrev_b32 v8, 1, v1")
    a("v_mul_u32_u24 v8, 36, v8")
    a("v_and_b32 v12, 1, v1")
    a("v_lshl_add_u32 v8, v12, 4, v8")
    a("v_and_b32 v12, 31, v1")
    a("v_mul_u32_u24 v12, 36, v12")
    a("v_lshrrev_b32 v13, 5, v1")
    a("v_mul_u32_u24 v13, 3456, v13")
    a("v_add_u32 v12, v12, v13")
    a("s_lshl_b32 s44, s3, 13")
    a("s_mov_b32 m0, s44")
    for i in range(8):
        a("buffer_load_dwordx4 v8, s[12:15], s32 offen lds")
        a("s_add_u32 s32, s32, 3456")
        a("s_add_u32 m0, m0, 1024")
    a("s_lshl_b32 s44, s3, 10")
    a("s_add_u32 m0, s44, 32768")
    for i in range(4):
        a("buffer_load_dword v12, s[12:15], s33 offen lds")
        a(f"s_add_u32 s33, s33, {2*3456}")
        a("s_add_u32 m0, m0, 256")
    a("v_lshrrev_b32 v13, 2, v1")
    a("v_lshlrev_b32 v13, 10, v13")
    a("v_and_b32 v14, 3, v1")
    a("v_lshl_add_u32 v13, v14, 3, v13")
    a("s_lshl_b32 s44, s3, 8")
    a("v_add_u32 v13, s44, v13")
    a(f"s_mul_i32 s34, s3, {4*129024}")
    a("s_mul_i32 s44, s42, 7168")
    a("s_add_u32 s34, s34, s44")
    a(f"s_add_u32 s35, s34, {L['WQ'] + 6*1024}")
    a("s_lshl_b32 s44, s43, 11")
    a("s_add_u32 s34, s34, s44")
    a(f"s_add_u32 s34, s34, {L['WQ']}")
    a("v_lshrrev_b32 v14, 2, v4")
    a(f"s_mov_b32 s44, 129024")
    a("v_mul_lo_u32 v14, v14, s44")
    a("v_lshrrev_b32 v15, 1, v4")
    a("v_and_b32 v15, 1, v15")
    a("s_cmp_eq_u32 s43, 2")
    a("s_cselect_b32 s44, 1, 2")
    a("s_lshl_b32 s45, s43, 1")
    a("s_cmp_eq_u32 s43, 2")
    a("s_cselect_b32 s45, 8, s45")
    a("v_lshlrev_b32 v15, s44, v15")
    a("v_and_b32 v2, 1, v4")
    a("v_add3_u32 v15, v15, v2, s45")
    a("v_lshl_add_u32 v15, v5, 4, v15")
    a("v_lshl_add_u32 v14, v15, 4, v14")
    a("s_waitcnt vmcnt(0)")
    a("s_barrier")
    for i in range(8):
        for r in range(2):
            a(f"ds_read_b64_tr_b16 v[{16+4*i+2*r}:{17+4*i+2*r}], v13 offset:{r*16384+i*32}")
        if i == 6:
            a("s_waitcnt lgkmcnt(0)")
    for r in range(2):
        a(f"ds_read_b64_tr_b16 v[{48+2*r}:{49+2*r}], v11 offset:{32768+r*2048}")
    for i in range(4):
        a(f"v_mov_b32 v{52+i}, 0")
    a("s_waitcnt lgkmcnt(0)")
    for i in range(8):
        a(f"buffer_store_dwordx4 v[{16+4*i}:{19+4*i}], v3, s[4:7], s34 offen offset:{(i&1)*1024} sc1")
        if i & 1:
            a("s_add_u32 s34, s34, 129024")
    a("buffer_store_dwordx4 v[48:51], v14, s[4:7], s35 offen")
    a("s_cmp_eq_u32 s43, 2")
    a(f"s_cselect_b32 s35, s35, {OOB}")
    a("buffer_store_dwordx4 v[52:55], v14, s[4:7], s35 offen offset:64")
    fin()

    a.label(f"{name}_x")
    srd(a, 12, 16, XT)
    a("s_sub_u32 s41, s2, 216")
    a("s_lshl_b32 s41, s41, 2")
    a("s_add_u32 s41, s41, s3")
    a("s_mul_i32 s33, s41, 18432")
    a(f"s_add_u32 s34, s33, {L['X0']}")
    a("s_mov_b32 m0, s40")
    for i in range(18):
        a(f"buffer_load_dwordx4 v3, s[12:15], s33 offen offset:{(i%3)*1024} lds")
        if i % 3 == 2:
            a("s_add_u32 s33, s33, 3072")
            a("s_add_u32 m0, m0, 3072")
    a("v_mul_u32_u24 v8, 1152, v4")
    a("v_lshl_add_u32 v8, v5, 3, v8")
    a("v_add_u32 v8, s40, v8")
    a("v_mov_b32 v12, 0x3f803f80")
    a("v_mov_b32 v14, 0")
    a("v_mov_b32 v15, 0")
    a("s_waitcnt vmcnt(0)")
    for grp in range(3):
        for ks in range(6 * grp, 6 * grp + 6):
            a(f"ds_read_b64 v[{16+4*ks}:{17+4*ks}], v8 offset:{ks*64}")
            a(f"ds_read_b64 v[{18+4*ks}:{19+4*ks}], v8 offset:{ks*64+32}")
        a("s_waitcnt lgkmcnt(0)")
        for ks in range(6 * grp, 6 * grp + 6):
            a(f"buffer_store_dwordx4 v[{16+4*ks}:{19+4*ks}], v3, s[4:7], s34 offen sc1")
            a("s_add_u32 s34, s34, 1024")
    for ks in range(18):
        for j in range(4):
            a(f"v_dot2c_f32_bf16 v14, v{16+4*ks+j}, v12")
            a(f"v_dot2c_f32_bf16 v15, v{16+4*ks+j}, v{16+4*ks+j}")
    a("v_lshlrev_b32 v9, 5, v4")
    a("v_lshl_add_u32 v9, v5, 3, v9")
    a("s_lshl_b32 s36, s41, 9")
    a(f"s_add_u32 s36, s36, {L['ST0']}")
    a("buffer_store_dwordx2 v[14:15], v9, s[4:7], s36 offen")
    if ts.on:
        a.label(f"{name}_ts")
        ts()
        a("s_waitcnt vmcnt(0)")
        ts(); ts(True)
        ts.store()
    footer(a, name)
    return name, a.text(), dict(vgpr=88, sgpr=96, accum=88), dict(grid=248, block=256, lds=81920 + 4096)


def stats_finish(a, s, q, r, mr, t, double_ln):
    a(f"v_mul_f32 v{s}, {f32(1.0/D)}, v{s}")
    a(f"v_mul_f32 v{q}, {f32(1.0/D)}, v{q}")
    a(f"v_fma_f32 v{q}, -v{s}, v{s}, v{q}")
    a(f"v_max_f32 v{q}, 0, v{q}")
    a(f"v_add_f32 v{t}, {f32(1e-5)}, v{q}")
    a(f"v_rsq_f32 v{r}, v{t}")
    if double_ln:
        a(f"v_mul_f32 v{t}, v{r}, v{r}")
        a(f"v_mul_f32 v{t}, v{t}, v{q}")
        a(f"v_add_f32 v{t}, {f32(1e-5)}, v{t}")
        a(f"v_rsq_f32 v{t}, v{t}")
        a(f"v_mul_f32 v{r}, v{r}, v{t}")
    a(f"v_mul_f32 v{mr}, v{s}, v{r}")


def gen_p1(layer):
    name = f"p1l{layer}_kernel"
    XIN = L["X0"] if layer == 0 else L["X2"]
    STI = L["ST0"] if layer == 0 else L["ST2"]
    OUT = L[f"O{layer}"]
    a = Asm()
    vm = Cnt(a, "vmcnt", 63); lg = Cnt(a, "lgkmcnt", 15)
    header(a, name, 256)
    ts = Stamps(a, name)
    ts(True); ts()
    ROT = int(OPT.get("p1rot", 0))
    a("s_load_dwordx2 s[4:5], s[0:1], 80")
    a("v_and_b32 v1, 63, v0")
    a("v_lshrrev_b32 v2, 6, v0")
    a("v_readfirstlane_b32 s3, v2")
    a("v_lshlrev_b32 v3, 4, v1")
    a("v_and_b32 v4, 15, v1")
    a("v_lshrrev_b32 v5, 4, v1")
    a("s_and_b32 s12, s2, 7")
    a("s_lshr_b32 s13, s2, 3")
    a("s_lshr_b32 s14, s12, 1")
    a("s_lshl_b32 s14, s14, 2")
    a("s_and_b32 s15, s13, 3")
    a("s_mul_i32 s46, s15, 5")
    a("s_add_u32 s14, s14, s15")
    a("s_and_b32 s15, s12, 1")
    a("s_lshl_b32 s15, s15, 3")
    a("s_lshr_b32 s16, s13, 2")
    a("s_add_u32 s15, s15, s16")
    a("s_lshl_b32 s16, s16, 1")
    a("s_add_u32 s46, s46, s16")
    a("s_cmp_ge_u32 s46, 18")
    a("s_cselect_b32 s16, 18, 0")
    a("s_sub_u32 s46, s46, s16")
    if not ROT:
        a("s_mov_b32 s46, 0")
    a("s_lshl_b32 s47, s46, 10")
    a("s_lshl_b32 s16, s14, 3")
    a("s_lshl_b32 s17, s3, 1")
    a("s_add_u32 s17, s17, s16")
    a("s_mul_i32 s18, s17, 18432")
    a("s_add_u32 s18, s18, s47")
    a(f"s_add_u32 s18, s18, {XIN}")
    a(f"s_mul_i32 s20, s15, {18*7168}")
    a("s_lshl_b32 s21, s3, 11")
    a("s_add_u32 s20, s20, s21")
    a("s_mul_i32 s19, s46, 7168")
    a("s_add_u32 s20, s20, s19")
    a(f"s_add_u32 s20, s20, {L['WQ']}")
    a("s_sub_u32 s20, s20, s59")
    a("s_mul_i32 s22, s16, 18432")
    a(f"s_add_u32 s22, s22, {XIN - 18432 - 1024}")
    a("s_cmp_eq_u32 s14, 0")
    a(f"s_cselect_b32 s22, {OOB}, s22")
    a("s_add_u32 s22, s22, s47")
    a("s_mov_b32 s48, 7168")
    a(f"s_mov_b32 s49, {-17*7168}")
    a("s_mov_b32 s50, 1024")
    a(f"s_mov_b32 s51, {-17*1024}")
    a("s_mov_b32 s44, 0xfffefffe")
    a("s_cmp_eq_u32 s3, 3")
    a("s_cselect_b32 s22, s22, s20")
    a("s_cselect_b32 s52, s50, s48")
    a("s_cselect_b32 s53, s51, s49")
    a("s_cselect_b32 s44, s44, -1")
    a("s_mov_b32 s45, s44")
    a("s_mov_b32 s24, s21")
    a("s_lshl_b32 s25, s17, 9")
    a(f"s_add_u32 s25, s25, {STI}")
    a("s_lshl_b32 s26, s16, 9")
    a(f"s_add_u32 s26, s26, {STI - 512}")
    a("s_cmp_eq_u32 s14, 0")
    a(f"s_cselect_b32 s26, {OOB}, s26")
    a("s_lshl_b32 s27, s3, 2")
    a("s_lshr_b32 s28, 0x1654, s27")
    a("s_and_b32 s28, s28, 15")
    a("s_lshr_b32 s27, 0x0632, s27")
    a("s_and_b32 s27, s27, 15")
    a("v_lshlrev_b32 v6, 5, v4")
    a("v_lshl_add_u32 v6, v5, 3, v6")
    a("v_lshlrev_b32 v7, 4, v5")
    a("v_lshlrev_b32 v8, 2, v4")
    a("v_add_u32 v15, 18432, v3")
    a("s_waitcnt lgkmcnt(0)")
    a("s_add_u32 s4, s4, s59")
    a("s_addc_u32 s5, s5, 0")
    a("s_and_b32 s5, s5, 0xffff")
    a(f"s_mov_b32 s6, {WS_BYTES}")
    a("s_mov_b32 s7, 0x00020000")
    ACC = 16; AB = 88
    RN = 168
    RS = 176
    CQN = 200
    CQH = 220
    CQS = 224
    MS = 228; MPA = 232; MPB = 236
    T0 = 200
    EX = 147456
    CQL = EX + 5 * 3072
    for n, so, off in ((0, "s25", 0), (1, "s25", 512), (2, "s26", 0)):
        a(f"buffer_load_dwordx2 {vr(T0+2*n,2)}, v6, s[4:7], {so} offen offset:{off}"); vm.issue("st")

    def loads(ks):
        if not ROT:
            o = (ks % 4) * 1024
            return [
                ["s_mov_b32 m0, s24", "s_add_u32 s24, s24, 8192", "buffer_load_dwordx4 v3, s[4:7], s20 offen lds", "s_add_u32 s20, s20, 7168"],
                ["s_mov_b64 exec, s[44:45]", "buffer_load_dwordx4 v3, s[4:7], s22 offen offset:1024 lds", "s_mov_b64 exec, -1",
                 "s_add_u32 s22, s22, s52"],
                [f"buffer_load_dwordx4 {ar(4*ks,4)}, v3, s[4:7], s18 offen offset:{o}"],
                [f"buffer_load_dwordx4 {ar(72+4*ks,4)}, v15, s[4:7], s18 offen offset:{o}"] + (["s_add_u32 s18, s18, 4096"] if ks % 4 == 3 else []),
            ]
        return [
            ["s_mov_b32 m0, s24", "s_add_u32 s46, s46, 1", "buffer_load_dwordx4 v3, s[4:7], s20 offen lds",
             "s_cmp_eq_u32 s46, 18", "s_cselect_b32 s54, s49, s48", "s_cselect_b32 s55, s53, s52", "s_cselect_b32 s56, s51, s50",
             "s_add_u32 s20, s20, s54"],
            ["s_mov_b64 exec, s[44:45]", "buffer_load_dwordx4 v3, s[4:7], s22 offen offset:1024 lds", "s_mov_b64 exec, -1",
             "s_add_u32 s22, s22, s55", "s_add_u32 s24, s24, 8192"],
            [f"buffer_load_dwordx4 {ar(4*ks,4)}, v3, s[4:7], s18 offen"],
            [f"buffer_load_dwordx4 {ar(72+4*ks,4)}, v15, s[4:7], s18 offen", "s_add_u32 s18, s18, s56"],
        ]

    def do_load(grp, ks):
        for t in grp:
            a(t)
        vm.issue(("k", ks))

    PF = int(OPT.get("p1pf", 5))
    PF0 = int(OPT.get("p1pf0", 2))
    PF1 = int(OPT.get("p1pf1", 4))
    for ks in range(PF0):
        for grp in loads(ks):
            do_load(grp, ks)
    ts()
    a("v_min_u32 v12, 71, v0")
    a("v_lshrrev_b32 v13, 2, v12")
    a("v_lshlrev_b32 v13, 13, v13")
    a("v_and_b32 v12, 3, v12")
    a("v_lshl_add_u32 v13, v12, 8, v13")
    for i in range(4):
        a(f"v_mov_b32 v{ACC+i}, 0x3f803f80")
    a(f"ds_write_b128 v13, {vr(ACC,4)} offset:7168")
    a("v_mov_b32 v9, v3")
    a("s_lshl_b32 s32, s27, 10")
    a("v_add_u32 v10, s32, v3")
    a("s_lshl_b32 s32, s28, 10")
    a("v_add_u32 v11, s32, v3")
    a(f"v_mov_b32 v12, {f32(-1e30)}")
    a("v_lshlrev_b32 v13, 2, v5")
    a("v_sub_u32 v13, v4, v13")
    a("s_cmp_eq_u32 s17, 0")
    a("s_cselect_b32 s33, -100, -2")
    for i in range(4):
        a(f"v_subrev_u32 v14, {i}, v13")
        a("v_and_b32 v2, 1, v14")
        a("v_cmp_eq_u32 s[34:35], 0, v2")
        a("v_cmp_le_i32 vcc, 0, v14")
        a("s_and_b64 vcc, vcc, s[34:35]")
        a(f"v_cndmask_b32 v{MS+i}, v12, 0, vcc")
        a("v_cmp_ge_i32 vcc, -2, v14")
        a("s_and_b64 vcc, vcc, s[34:35]")
        a(f"v_cndmask_b32 v{MPB+i}, v12, 0, vcc")
        a("v_cmp_ge_i32 vcc, s33, v14")
        a("s_and_b64 vcc, vcc, s[34:35]")
        a(f"v_cndmask_b32 v{MPA+i}, v12, 0, vcc")
    a("s_mul_i32 s32, s3, 384")
    a(f"s_add_u32 s32, s32, {EX}")
    a("v_add_u32 v12, s32, v8")
    a("v_add_u32 v13, s32, v7")
    for ks in range(PF0, PF1):
        for grp in loads(ks):
            do_load(grp, ks)
    vm.wait("st")
    for r in range(6):
        a(f"v_mov_b32 v{T0+8+r}, v{T0+r}")
    for r in range(6):
        a(f"v_permlane16_swap_b32 v{T0+r}, v{T0+8+r}")
    for r in range(6):
        a(f"v_add_f32 v{T0+r}, v{T0+r}, v{T0+8+r}")
    for r in range(6):
        a(f"v_mov_b32 v{T0+8+r}, v{T0+r}")
    for r in range(6):
        a(f"v_permlane32_swap_b32 v{T0+r}, v{T0+8+r}")
    for r in range(6):
        a(f"v_add_f32 v{T0+r}, v{T0+r}, v{T0+8+r}")
    for n in range(3):
        b = T0 + 2 * n
        stats_finish(a, b, b + 1, RN + 2 * n, RN + 2 * n + 1, T0 + 8 + n, False)
        a(f"ds_write_b32 v12, v{RN+2*n} offset:{n*128}")
        a(f"ds_write_b32 v12, v{RN+2*n+1} offset:{n*128+64}")
    for n in range(3):
        a(f"ds_read_b128 {vr(RS+8*n,4)}, v13 offset:{n*128}")
        a(f"ds_read_b128 {vr(RS+8*n+4,4)}, v13 offset:{n*128+64}")
    for ks in range(PF1, PF):
        for grp in loads(ks):
            do_load(grp, ks)

    def reads(ks):
        b = AB + 40 * (ks & 1)
        o = (ks % 8) * 8192
        r = [f"ds_read_b128 {vr(b+28,4)}, v9 offset:{o+7*1024}",
             f"ds_read_b128 {vr(b+32,4)}, v10 offset:{o}",
             f"ds_read_b128 {vr(b+36,4)}, v11 offset:{o}"]
        r += [f"ds_read_b128 {vr(b+4*fr,4)}, v9 offset:{o+fr*1024}" for fr in (0, 1, 2, 3, 6, 4, 5)]
        return r

    def mfmas(ks):
        b = AB + 40 * (ks & 1)
        r = []
        acc = vr(ACC + 64, 4); c = "0" if ks == 0 else acc
        r.append(f"v_mfma_f32_16x16x32_bf16 {acc}, {vr(b+32,4)}, {vr(b+28,4)}, {c}")
        acc = vr(ACC + 68, 4); c = "0" if ks == 0 else acc
        r.append(f"v_mfma_f32_16x16x32_bf16 {acc}, {vr(b+28,4)}, {vr(b+36,4)}, {c}")
        for slot, fr in enumerate((0, 1, 2, 3, 6, 4, 5, 6)):
            for n in range(2):
                acc = vr(ACC + 32 * n + 4 * slot, 4)
                x = ar(72 * n + 4 * ks, 4)
                w = vr(b + 4 * fr, 4)
                c = "0" if ks == 0 else acc
                if slot < 5:
                    r.append(f"v_mfma_f32_16x16x32_bf16 {acc}, {w}, {x}, {c}")
                else:
                    r.append(f"v_mfma_f32_16x16x32_bf16 {acc}, {x}, {w}, {c}")
        return r

    CH = int(OPT.get("p1ch", 2))
    ts()
    vm.wait(("k", CH - 1))
    a("s_waitcnt lgkmcnt(0)")
    a("s_barrier")
    for t in reads(0):
        a(t)
    a("s_waitcnt lgkmcnt(0)")
    for ks in range(18):
        if ks in (0, 6, 12):
            ts()
        m = mfmas(ks)
        nxt = ks + 1
        rd = []
        if nxt < 18:
            if nxt % CH == 0:
                vm.wait(("k", min(nxt + CH - 1, 17)))
                a("s_barrier")
            if nxt % 8 == 0:
                a("v_add_u32 v9, 0x10000, v9")
                a("v_add_u32 v10, 0x10000, v10")
                a("v_add_u32 v11, 0x10000, v11")
            rd = reads(nxt)
        else:
            a("s_lshl_b32 s32, s27, 6")
            a(f"s_add_u32 s32, s32, {CQL}")
            a("v_add_u32 v12, s32, v7")
            a("s_lshl_b32 s33, s28, 6")
            a(f"s_add_u32 s33, s33, {CQL}")
            a("v_add_u32 v13, s33, v8")
            a("s_mov_b32 s34, 0x00010001")
            a("s_mov_b32 s35, 0x00010001")
        ld = loads(ks + PF) if ks + PF < 18 else []
        for i, t in enumerate(m):
            a(t)
            if i < len(rd):
                a(rd[i])
            if i >= 10 and (i - 10) % 2 == 0 and (i - 10) // 2 < len(ld):
                do_load(ld[(i - 10) // 2], ks + PF)
            if ks == 17 and i == 10:
                a("s_mov_b64 exec, s[34:35]")
                a(f"ds_write_b128 v12, {vr(ACC+64,4)}")
                a("s_mov_b64 exec, 0xffff")
                a(f"ds_write_b32 v13, v{ACC+68}")
                a("s_mov_b64 exec, -1")
        a("s_waitcnt lgkmcnt(0)")
    a("s_barrier")
    a(f"v_add_u32 v9, {CQL}, v7")
    a(f"v_add_u32 v10, {CQL}, v8")
    for i, fr in enumerate((0, 1, 2, 3, 6)):
        a(f"ds_read_b128 {vr(CQN+4*i,4)}, v9 offset:{fr*64}")
    a(f"ds_read_b128 {vr(CQH,4)}, v12")
    for i, fr in enumerate((4, 5, 6)):
        a(f"ds_read_b32 v{CQS+i}, v10 offset:{fr*64}")
    a(f"ds_read_b32 v{CQS+3}, v13")

    KF = 88; QF = 112; VF = 128; ONE = 148; T = 152
    ts()
    for i in range(4):
        a(f"v_mul_f32 v{ACC+64+i}, v{ACC+64+i}, v{RN+4}")
        a(f"v_mul_f32 v{ACC+68+i}, v{ACC+68+i}, v{RS+16+i}")
    for n in (1, 0):
        for j in range(5):
            for i in range(4):
                a(f"v_mul_f32 v{ACC+32*n+4*j+i}, v{ACC+32*n+4*j+i}, v{RN+2*n}")
        for j in range(5, 8):
            for i in range(4):
                a(f"v_mul_f32 v{ACC+32*n+4*j+i}, v{ACC+32*n+4*j+i}, v{RS+8*n+i}")

    def corr_n(acc, n, cq):
        for i in range(4):
            a(f"v_fma_f32 v{acc+i}, -v{RN+2*n+1}, v{cq+i}, v{acc+i}")

    def corr_s(acc, n, cq):
        for i in range(4):
            a(f"v_fma_f32 v{acc+i}, -v{RS+8*n+4+i}, v{cq}, v{acc+i}")

    def pack2(dst, acc):
        a(f"v_cvt_pk_bf16_f32 v{dst}, v{acc}, v{acc+1}")
        a(f"v_cvt_pk_bf16_f32 v{dst+1}, v{acc+2}, v{acc+3}")

    a("v_cmp_eq_u32 s[36:37], 0, v5")
    a("v_cmp_eq_u32 s[38:39], 1, v5")
    a("v_lshlrev_b32 v12, 3, v1")
    a("s_mul_i32 s32, s3, 3072")
    a(f"s_add_u32 s33, s32, {EX}")
    a("v_add_u32 v13, s33, v12")
    a("s_lshl_b32 s32, s3, 9")
    a(f"s_add_u32 s32, s32, {EX}")
    a("s_cmp_eq_u32 s3, 3")
    a(f"s_cselect_b32 s32, {EX+4*3072}, s32")
    a("v_add_u32 v14, s32, v12")
    a("s_waitcnt lgkmcnt(0)")

    def conv_tile(n):
        ac = ACC + 32 * n
        tl = n + 1
        for i in range(5):
            corr_n(ac + 4 * i, n, CQN + 4 * i)
        for h in range(2):
            pack2(QF + (2 * n + h) * 4, ac + 4 * h)
            pack2(KF + (2 * tl + h) * 4, ac + 8 + 4 * h)
        pack2(T + 8 + 2 * n, ac + 16)
        for h in range(2):
            a(f"v_mov_b32 v{KF+(2*tl+h)*4+2}, v{T+8+2*n+1}")
            a(f"v_cndmask_b32 v{QF+(2*n+h)*4+2}, 0, v{T+8+2*n}, s[{36+2*h}:{37+2*h}]")
        for h in range(3):
            corr_s(ac + 20 + 4 * h, n, CQS + h)
            pack2(VF + 6 * h + 2 * tl, ac + 20 + 4 * h)

    corr_n(ACC + 64, 2, CQH)
    corr_s(ACC + 68, 2, CQS + 3)
    pack2(T + 12, ACC + 64)
    pack2(T + 14, ACC + 68)
    a(f"ds_write_b64 v14, {vr(T+12,2)}")
    a(f"ds_write_b64 v14, {vr(T+14,2)} offset:1536")
    conv_tile(1)
    a(f"ds_write_b64 v13, {vr(KF+16,2)} offset:{3072}")
    a(f"ds_write_b64 v13, {vr(KF+20,2)} offset:{3072+512}")
    a(f"ds_write_b64 v13, {vr(T+10,2)} offset:{3072+1024}")
    for h in range(3):
        a(f"ds_write_b64 v13, {vr(VF+6*h+4,2)} offset:{3072+1536+512*h}")
    conv_tile(0)
    for i in range(6):
        a(f"v_mov_b32 v{KF+4*i+3}, 0")
    for i in range(4):
        a(f"v_mov_b32 v{QF+4*i+3}, 0")
        a(f"v_mov_b32 v{ONE+i}, 0x3f803f80")
    a("s_waitcnt lgkmcnt(0)")
    ts()
    a("s_barrier")
    ts()
    a(f"ds_read_b64 {vr(KF,2)}, v13")
    a(f"ds_read_b64 {vr(KF+4,2)}, v13 offset:512")
    a(f"ds_read_b32 v{KF+2}, v13 offset:{1024+4}")
    a(f"ds_read_b32 v{KF+6}, v13 offset:{1024+4}")
    for h in range(3):
        a(f"ds_read_b64 {vr(VF+6*h,2)}, v13 offset:{1536+512*h}")
    SB = 16
    PB = 48
    MX = 64
    OB = 168
    OO = 72
    jobs = [(1, 0), (1, 1), (0, 0), (0, 1)]
    cs = (18 ** -0.5) * math.log2(math.e)
    a(f"s_mov_b32 s40, {f32(cs)}")
    for j, (n, h) in enumerate(jobs):
        if j == 2:
            a("s_waitcnt lgkmcnt(0)")
        q = vr(QF + (2 * n + h) * 4, 4)
        mp = MPA if n == 0 else MPB
        a(f"v_mfma_f32_16x16x32_bf16 {vr(SB+8*j,4)}, {vr(KF+(2*n+h)*4,4)}, {q}, {vr(mp,4)}")
        a(f"v_mfma_f32_16x16x32_bf16 {vr(SB+8*j+4,4)}, {vr(KF+(2*(n+1)+h)*4,4)}, {q}, {vr(MS,4)}")
    for j in range(4):
        s = SB + 8 * j; m = MX + 2 * j
        a(f"v_max3_f32 v{m}, v{s}, v{s+1}, v{s+2}")
        a(f"v_max3_f32 v{m+1}, v{s+3}, v{s+4}, v{s+5}")
        a(f"v_max3_f32 v{m}, v{m}, v{s+6}, v{s+7}")
        a(f"v_max_f32 v{m}, v{m}, v{m+1}")
    for j in range(4):
        a(f"v_mov_b32 v{MX+2*j+1}, v{MX+2*j}")
    for j in range(4):
        a(f"v_permlane16_swap_b32 v{MX+2*j}, v{MX+2*j+1}")
    for j in range(4):
        a(f"v_max_f32 v{MX+2*j}, v{MX+2*j}, v{MX+2*j+1}")
    for j in range(4):
        a(f"v_mov_b32 v{MX+2*j+1}, v{MX+2*j}")
    for j in range(4):
        a(f"v_permlane32_swap_b32 v{MX+2*j}, v{MX+2*j+1}")
    for j in range(4):
        a(f"v_max_f32 v{MX+2*j}, v{MX+2*j}, v{MX+2*j+1}")
    for j in range(4):
        a(f"v_mul_f32 v{MX+2*j}, s40, v{MX+2*j}")
    for j, (n, h) in enumerate(jobs):
        s = SB + 8 * j
        for i in range(8):
            a(f"v_fma_f32 v{s+i}, v{s+i}, s40, -v{MX+2*j}")
        for i in range(8):
            a(f"v_exp_f32 v{s+i}, v{s+i}")
        for i in range(4):
            a(f"v_cvt_pk_bf16_f32 v{PB+4*j+i}, v{s+2*i}, v{s+2*i+1}")
        p = vr(PB + 4 * j, 4)
        a(f"v_mfma_f32_16x16x32_bf16 {vr(OB+12*j+8,4)}, {vr(ONE,4)}, {p}, 0")
        a(f"v_mfma_f32_16x16x32_bf16 {vr(OB+12*j,4)}, {vr(VF+6*h+2*n,4)}, {p}, 0")
        a(f"v_mfma_f32_16x16x32_bf16 {vr(OB+12*j+4,4)}, {vr(VF+12+2*n,4)}, {p}, 0")
    a("s_mul_i32 s32, s17, 18432")
    a("s_lshl_b32 s33, s15, 10")
    a("s_add_u32 s33, s33, s32")
    a(f"s_add_u32 s33, s33, {OUT}")
    a("s_add_u32 s34, s33, 18432")
    a("s_lshr_b32 s35, s15, 3")
    a("s_lshl_b32 s35, s35, 10")
    a("s_and_b32 s36, s15, 3")
    a("s_lshl_b32 s36, s36, 8")
    a("s_add_u32 s35, s35, s36")
    a("s_lshr_b32 s36, s15, 2")
    a("s_and_b32 s36, s36, 1")
    a("s_lshl_b32 s36, s36, 3")
    a("s_add_u32 s35, s35, s36")
    a("s_add_u32 s35, s35, s32")
    a(f"s_add_u32 s35, s35, {OUT + 16*1024}")
    a("s_add_u32 s36, s35, 18432")
    a("v_lshlrev_b32 v12, 4, v4")
    a("v_mov_b32 v13, 0x40000000")
    a("v_cmp_eq_u32 vcc, 2, v5")
    a("v_cndmask_b32 v12, v13, v12, vcc")
    for j, (n, h) in enumerate(jobs):
        o = OB + 12 * j
        a(f"v_rcp_f32 v{o+8}, v{o+8}")
        for i in range(4):
            a(f"v_mul_f32 v{o+i}, v{o+i}, v{o+8}")
        a(f"v_mul_f32 v{o+4+2*h}, v{o+4+2*h}, v{o+8}")
        a(f"v_mul_f32 v{o+5+2*h}, v{o+5+2*h}, v{o+8}")
        a(f"v_cvt_pk_bf16_f32 v{OO+4*n+2*h}, v{o}, v{o+1}")
        a(f"v_cvt_pk_bf16_f32 v{OO+4*n+2*h+1}, v{o+2}, v{o+3}")
        a(f"v_cvt_pk_bf16_f32 v{OO+8+2*n+h}, v{o+4+2*h}, v{o+5+2*h}")
        if h == 1:
            a(f"buffer_store_dwordx4 {vr(OO+4*n,4)}, v3, s[4:7], s{33+n} offen sc1")
            a(f"buffer_store_dwordx2 {vr(OO+8+2*n,2)}, v12, s[4:7], s{35+n} offen")
    ts()
    if ts.on:
        a("s_waitcnt vmcnt(0)")
    ts(); ts(True)
    ts.store()
    footer(a, name)
    return name, a.text(), dict(vgpr=240 + 144, sgpr=96, accum=240), dict(grid=256, block=256, lds=163840)


def pq_decode(a):
    a("v_and_b32 v1, 63, v0")
    a("v_lshrrev_b32 v2, 6, v0")
    a("v_readfirstlane_b32 s3, v2")
    a("v_lshlrev_b32 v3, 4, v1")
    a("v_and_b32 v4, 15, v1")
    a("v_lshrrev_b32 v5, 4, v1")
    a("s_and_b32 s12, s2, 7")
    a("s_lshl_b32 s12, s12, 3")
    a("s_lshr_b32 s13, s2, 3")
    a("s_and_b32 s15, s13, 7")
    a("s_add_u32 s12, s12, s15")
    a("s_lshr_b32 s13, s13, 3")
    a("s_mul_i32 s14, s13, 9")
    a("s_add_u32 s14, s14, s3")
    a("s_mul_i32 s15, s12, 36864")
    a("s_lshr_b32 s16, s14, 1")
    a("s_lshl_b32 s16, s16, 10")
    a("s_and_b32 s17, s14, 1")
    a("s_lshl_b32 s17, s17, 3")
    a("s_add_u32 s16, s16, s17")
    a("s_add_u32 s16, s16, s15")


def pq_epilogue(a, V, XOUT, STOUT, SCR, T):
    a(f"s_add_u32 s18, s16, {XOUT}")
    a("s_add_u32 s19, s18, 18432")
    for n in range(2):
        v = V + 4 * n
        a(f"v_cvt_pk_bf16_f32 v{T+2*n}, v{v}, v{v+1}")
        a(f"v_cvt_pk_bf16_f32 v{T+2*n+1}, v{v+2}, v{v+3}")
        a(f"buffer_store_dwordx2 {vr(T+2*n,2)}, v3, s[4:7], s{18+n} offen")
    for n in range(2):
        v = V + 4 * n; s = T + 4 + 2 * n
        a(f"v_add_f32 v{s}, v{v}, v{v+1}")
        a(f"v_mul_f32 v{s+1}, v{v}, v{v}")
        a(f"v_add_f32 v{s}, v{s}, v{v+2}")
        a(f"v_fmac_f32 v{s+1}, v{v+1}, v{v+1}")
        a(f"v_add_f32 v{s}, v{s}, v{v+3}")
        a(f"v_fmac_f32 v{s+1}, v{v+2}, v{v+2}")
        a(f"v_fmac_f32 v{s+1}, v{v+3}, v{v+3}")
    a("s_lshl_b32 s20, s3, 10")
    a(f"s_add_u32 s20, s20, {SCR}")
    a(f"v_add_u32 v{T+8}, s20, v3")
    a(f"ds_write_b128 v{T+8}, {vr(T+4,4)}")
    a("s_waitcnt lgkmcnt(0)")
    a("s_barrier")
    a("s_cmp_lg_u32 s3, 0")
    a("s_cbranch_scc1 " + a.endlabel)
    R = T + 12
    for w in range(9):
        a(f"ds_read_b128 {vr(R+4*w,4)}, v3 offset:{SCR+w*1024}")
    a("s_waitcnt lgkmcnt(0)")
    for w in range(1, 9):
        for i in range(4):
            a(f"v_add_f32 v{R+i}, v{R+i}, v{R+4*w+i}")
    for i in range(4):
        xg_reduce(a, "v_add_f32", R + i, T + i)
    a("s_lshl_b32 s20, s12, 10")
    a("s_lshl_b32 s21, s13, 3")
    a("s_add_u32 s20, s20, s21")
    a(f"s_add_u32 s20, s20, {STOUT}")
    a(f"v_lshlrev_b32 v{T+8}, 5, v4")
    a(f"buffer_store_dwordx2 {vr(R,2)}, v{T+8}, s[4:7], s20 offen")
    a(f"buffer_store_dwordx2 {vr(R+2,2)}, v{T+8}, s[4:7], s20 offen offset:512")


def unpack_add(a, dst, src):
    a(f"v_lshlrev_b32 v{src+2}, 16, v{src}")
    a(f"v_and_b32 v{src}, 0xffff0000, v{src}")
    a(f"v_lshlrev_b32 v{src+3}, 16, v{src+1}")
    a(f"v_and_b32 v{src+1}, 0xffff0000, v{src+1}")
    a(f"v_add_f32 v{dst}, v{dst}, v{src+2}")
    a(f"v_add_f32 v{dst+1}, v{dst+1}, v{src}")
    a(f"v_add_f32 v{dst+2}, v{dst+2}, v{src+3}")
    a(f"v_add_f32 v{dst+3}, v{dst+3}, v{src+1}")


def gen_p2(layer):
    name = f"p2l{layer}_kernel"
    XIN = L["X0"] if layer == 0 else L["X2"]
    OIN = L[f"O{layer}"]
    a = Asm(); a.endlabel = f"{name}_end"
    vm = Cnt(a, "vmcnt", 63); lg = Cnt(a, "lgkmcnt", 15)
    header(a, name, 256)
    ts = Stamps(a, name)
    ts(True); ts()
    a("s_load_dwordx2 s[4:5], s[0:1], 80")
    pq_decode(a)
    a("s_lshl_b32 s20, s3, 12")
    a("s_add_u32 s21, s15, s20")
    a(f"s_add_u32 s21, s21, {OIN}")
    a("s_mul_i32 s22, s14, 18432")
    a(f"s_add_u32 s22, s22, {L['WO']}")
    a("s_sub_u32 s22, s22, s59")
    a(f"s_add_u32 s23, s16, {XIN}")
    a("s_add_u32 s24, s23, 18432")
    a("s_mov_b32 m0, s20")
    a("s_waitcnt lgkmcnt(0)")
    a("s_add_u32 s4, s4, s59")
    a("s_addc_u32 s5, s5, 0")
    a("s_and_b32 s5, s5, 0xffff")
    a(f"s_mov_b32 s6, {WS_BYTES}")
    a("s_mov_b32 s7, 0x00020000")
    A = 16; B = 88; ACC = 8; RES = 120; T = 128
    a("s_lshl_b32 s25, s2, 6")
    a(f"s_add_u32 s25, s25, {L[f'FL{layer}']}")
    a("v_lshlrev_b32 v6, 2, v4")
    a("v_mov_b32 v7, 0")
    a("buffer_store_dword v7, v6, s[4:7], s25 offen"); vm.issue("z")
    for i in range(4):
        a(f"buffer_load_dwordx4 v3, s[4:7], s21 offen offset:{i*1024} lds"); vm.issue("o")
    for ks in range(18):
        if ks and ks % 4 == 0:
            a("s_add_u32 s22, s22, 4096")
        a(f"buffer_load_dwordx4 {vr(A+4*ks,4)}, v3, s[4:7], s22 offen offset:{(ks%4)*1024}"); vm.issue(("a", ks))
    a(f"buffer_load_dwordx2 {vr(RES,2)}, v3, s[4:7], s23 offen"); vm.issue("r")
    a(f"buffer_load_dwordx2 {vr(RES+4,2)}, v3, s[4:7], s24 offen"); vm.issue("r")
    ts()
    vm.wait("o")
    ts()
    a("s_barrier")
    ts()
    NB = 4

    def rd(ks):
        for n in range(2):
            a(f"ds_read_b128 {vr(B+8*(ks%NB)+4*n,4)}, v3 offset:{n*18432+ks*1024}"); lg.issue(("b", ks))
    for ks in range(NB - 1):
        rd(ks)
    for ks in range(18):
        if ks + NB - 1 < 18:
            rd(ks + NB - 1)
        vm.wait(("a", ks))
        lg.wait(("b", ks))
        for n in range(2):
            acc = vr(ACC + 4 * n, 4)
            a(f"v_mfma_f32_16x16x32_bf16 {acc}, {vr(A+4*ks,4)}, {vr(B+8*(ks%NB)+4*n,4)}, {'0' if ks == 0 else acc}")
    vm.wait_all()
    ts()
    unpack_add(a, ACC, RES)
    unpack_add(a, ACC + 4, RES + 4)
    if ts.on:
        a.endlabel = f"{name}_ts"
    pq_epilogue(a, ACC, L[f"X1_{layer}"], L[f"ST1_{layer}"], 36864, 16)
    if ts.on:
        a.label(f"{name}_ts")
        ts()
        a("s_waitcnt vmcnt(0)")
    ts(); ts(True)
    ts.store()
    footer(a, name)
    return name, a.text(), dict(vgpr=128, sgpr=96, accum=128), dict(grid=256, block=576, lds=36864 + 9216)


def gen_p4(layer):
    name = f"p4l{layer}_kernel"
    a = Asm(); a.endlabel = f"{name}_end"
    vm = Cnt(a, "vmcnt", 63)
    header(a, name, 256)
    a("s_load_dwordx2 s[4:5], s[0:1], 80")
    a("s_load_dwordx4 s[24:27], s[0:1], 56")
    a("v_and_b32 v1, 63, v0")
    a("v_lshrrev_b32 v2, 6, v0")
    a("v_readfirstlane_b32 s3, v2")
    a("v_lshlrev_b32 v3, 4, v1")
    a("v_and_b32 v4, 15, v1")
    a("v_lshrrev_b32 v5, 4, v1")
    a("s_mul_i32 s12, s2, 9")
    a("s_add_u32 s12, s12, s3")
    a("s_lshl_b32 s12, s12, 10")
    a("s_and_b32 s13, s2, 1")
    a("s_mul_i32 s14, s13, 9")
    a("s_add_u32 s14, s14, s3")
    a("s_lshl_b32 s21, s14, 6")
    a(f"s_add_u32 s20, s12, {L[f'PART{layer}']}")
    a(f"s_add_u32 s22, s12, {L[f'X1_{layer}']}")
    a("v_lshlrev_b32 v6, 3, v5")
    a("s_waitcnt lgkmcnt(0)")
    a("s_add_u32 s4, s4, s59")
    a("s_addc_u32 s5, s5, 0")
    a("s_and_b32 s5, s5, 0xffff")
    a(f"s_mov_b32 s6, {WS_BYTES}")
    a("s_mov_b32 s7, 0x00020000")
    srd(a, 28, 24, D * 2)
    P = 24; ACC = 8; BB = 16
    a(f"buffer_load_dwordx2 {vr(BB,2)}, v6, s[28:31], s21 offen"); vm.issue("r")
    a(f"buffer_load_dwordx2 {vr(BB+2,2)}, v6, s[28:31], s21 offen offset:32"); vm.issue("r")
    a(f"buffer_load_dwordx4 {vr(P,4)}, v3, s[4:7], s22 offen"); vm.issue(("p", 0))
    for s in range(8):
        a(f"buffer_load_dwordx4 {vr(P+4+4*s,4)}, v3, s[4:7], s20 offen"); vm.issue(("p", s + 1))
        a(f"s_add_u32 s20, s20, {XT}")
    a("v_mov_b32 v6, 0x00003f80")
    a("v_mov_b32 v7, 0x3f800000")
    vm.wait("r")
    for j in range(4):
        a(f"v_lshlrev_b32 v{ACC+2*j}, 16, v{BB+j}")
        a(f"v_and_b32 v{ACC+2*j+1}, 0xffff0000, v{BB+j}")
    for s in range(9):
        vm.wait(("p", s))
        for j in range(4):
            a(f"v_dot2c_f32_bf16 v{ACC+2*j}, v{P+4*s+j}, v6")
            a(f"v_dot2c_f32_bf16 v{ACC+2*j+1}, v{P+4*s+j}, v7")
    for j in range(4):
        a(f"v_cvt_pk_bf16_f32 v{16+j}, v{ACC+2*j}, v{ACC+2*j+1}")
    a("s_cmp_lg_u32 s59, 0")
    a(f"s_cbranch_scc1 {name}_fin")
    if True:
        a(f"s_add_u32 s18, s12, {L['X2']}")
        a("buffer_store_dwordx4 v[16:19], v3, s[4:7], s18 offen sc1")
        a(f"v_add_f32 v20, v{ACC}, v{ACC+1}")
        a(f"v_mul_f32 v21, v{ACC}, v{ACC}")
        a(f"v_fmac_f32 v21, v{ACC+1}, v{ACC+1}")
        for j in range(2, 8):
            a(f"v_add_f32 v20, v20, v{ACC+j}")
            a(f"v_fmac_f32 v21, v{ACC+j}, v{ACC+j}")
        a("v_lshlrev_b32 v22, 3, v0")
        a("ds_write_b64 v22, v[20:21]")
        a("s_waitcnt lgkmcnt(0)")
        a("s_barrier")
        a("s_cmp_lg_u32 s3, 0")
        a("s_cbranch_scc1 " + a.endlabel)
        for w in range(9):
            a(f"ds_read_b64 {vr(24+2*w,2)}, v22 offset:{w*512}")
        a("s_waitcnt lgkmcnt(0)")
        for st in ((0, 1), (2, 3), (4, 5), (6, 7), (0, 2), (4, 6), (0, 4), (0, 8)):
            for i in range(2):
                a(f"v_add_f32 v{24+2*st[0]+i}, v{24+2*st[0]+i}, v{24+2*st[1]+i}")
        a("v_mov_b32 v26, v24")
        a("v_mov_b32 v27, v25")
        a("v_permlane16_swap_b32 v24, v26")
        a("v_permlane16_swap_b32 v25, v27")
        a("v_add_f32 v24, v24, v26")
        a("v_add_f32 v25, v25, v27")
        a("v_lshlrev_b32 v22, 5, v4")
        a("v_lshrrev_b32 v5, 1, v5")
        a("v_lshl_add_u32 v22, v5, 3, v22")
        a("s_lshr_b32 s20, s2, 1")
        a("s_lshl_b32 s20, s20, 9")
        a("s_lshl_b32 s21, s13, 4")
        a("s_add_u32 s20, s20, s21")
        a(f"s_add_u32 s20, s20, {L['ST2']}")
        a("buffer_store_dwordx2 v[24:25], v22, s[4:7], s20 offen")
        a("s_endpgm")
        lds = 4608
        a.label(f"{name}_fin")
        srd(a, 8, 26, XT)
        a("v_mul_u32_u24 v6, 1152, v4")
        a("v_lshl_add_u32 v6, v5, 3, v6")
        a("s_lshr_b32 s20, s2, 1")
        a("s_mul_i32 s20, s20, 18432")
        a("s_add_u32 s20, s20, s21")
        a("buffer_store_dwordx2 v[16:17], v6, s[8:11], s20 offen")
        a("buffer_store_dwordx2 v[18:19], v6, s[8:11], s20 offen offset:32")
    footer(a, name)
    return name, a.text(), dict(vgpr=64, sgpr=64, accum=64), dict(grid=256, block=576, lds=lds)


def gen_p3(layer):
    name = f"p3l{layer}_kernel"
    XIN = L[f"X1_{layer}"]; STI = L[f"ST1_{layer}"]; PART = L[f"PART{layer}"]
    HX = L[f"HX{layer}"]; FL = L[f"FL{layer}"]
    a = Asm()
    vm = Cnt(a, "vmcnt", 63); lg = Cnt(a, "lgkmcnt", 15)
    header(a, name, 256)
    ts = Stamps(a, name)
    ts(True); ts()
    BUD = float(OPT.get("p3bud", 6))
    RA = 7
    N0 = int(OPT.get("p3n0", 14))
    PACE0 = int(OPT.get("p3pace0", 1)); PACE1 = int(OPT.get("p3pace1", 3))
    DFLAG = int(OPT.get("p3dflag", 45)); DPOLL = int(OPT.get("p3dpoll", 35)); DCHK = int(OPT.get("p3dchk", 40))
    K1, K3, RI, PV = 8, 10, 12, 14
    T = 16; AB = 32; AC1 = 68; HO = 164; OST = 236; BX = 244
    HP = 144
    a("s_load_dwordx2 s[4:5], s[0:1], 80")
    a("v_and_b32 v1, 63, v0")
    a("v_lshrrev_b32 v2, 6, v0")
    a("v_readfirstlane_b32 s3, v2")
    a("v_lshlrev_b32 v3, 4, v1")
    a("v_add_u32 v4, 0x10000, v3")
    a("v_add_u32 v5, 0x20000, v3")
    a("v_add_u32 v6, 18432, v3")
    a("v_and_b32 v7, 15, v1")
    a("v_lshlrev_b32 v7, 5, v7")
    a("v_lshrrev_b32 v2, 4, v1")
    a("v_lshl_add_u32 v7, v2, 3, v7")
    a("s_and_b32 s12, s2, 7")
    a("s_lshr_b32 s13, s2, 3")
    a("s_lshr_b32 s14, s12, 2")
    a("s_lshl_b32 s14, s14, 3")
    a("s_lshr_b32 s15, s13, 2")
    a("s_add_u32 s14, s14, s15")
    a("s_and_b32 s15, s12, 3")
    a("s_lshl_b32 s15, s15, 2")
    a("s_and_b32 s16, s13, 3")
    a("s_add_u32 s15, s15, s16")
    a("s_lshl_b32 s16, s14, 3")
    a("s_lshl_b32 s17, s3, 1")
    a("s_add_u32 s16, s16, s17")
    a("s_mul_i32 s17, s16, 18432")
    a(f"s_add_u32 s18, s17, {XIN}")
    a("s_mul_i32 s19, s3, 6144")
    a(f"s_mul_i32 s20, s15, {SLB}")
    a("s_add_u32 s20, s20, s19")
    a(f"s_add_u32 s20, s20, {L['W12']}")
    a("s_sub_u32 s20, s20, s59")
    a("s_lshl_b32 s21, s16, 9")
    a(f"s_add_u32 s21, s21, {STI}")
    a("s_lshl_b32 s22, s14, 4")
    a("s_add_u32 s22, s22, s15")
    a("s_lshl_b32 s22, s22, 2")
    a("s_add_u32 s22, s22, s3")
    a("s_xor_b32 s23, s22, 4")
    a("s_mul_i32 s24, s22, 18432")
    a(f"s_add_u32 s24, s24, {HX}")
    a("s_mul_i32 s25, s23, 18432")
    a(f"s_add_u32 s25, s25, {HX}")
    a("s_lshl_b32 s26, s22, 4")
    a(f"s_add_u32 s26, s26, {FL}")
    a("s_lshl_b32 s27, s23, 4")
    a(f"s_add_u32 s27, s27, {FL}")
    a("s_lshr_b32 s28, s15, 1")
    a(f"s_mul_i32 s28, s28, {XT}")
    a("s_add_u32 s28, s28, s17")
    a("s_and_b32 s29, s15, 1")
    a("s_mul_i32 s29, s29, 9216")
    a("s_add_u32 s28, s28, s29")
    a(f"s_add_u32 s28, s28, {PART}")
    a("s_mov_b32 s31, 0")
    a("s_waitcnt lgkmcnt(0)")
    a("s_add_u32 s4, s4, s59")
    a("s_addc_u32 s5, s5, 0")
    a("s_and_b32 s5, s5, 0xffff")
    a(f"s_mov_b32 s6, {WS_BYTES}")
    a("s_mov_b32 s7, 0x00020000")
    for n in range(2):
        a(f"buffer_load_dwordx2 {vr(T+2*n,2)}, v7, s[4:7], s21 offen offset:{n*512}"); vm.issue("st")

    U = []
    for k in range(19):
        for t in range(G0):
            for mh in range(2):
                U.append(("p1", t, k, mh))
    for t in range(G0, 9):
        for k in range(19):
            for mh in range(2):
                U.append(("p1", t, k, mh))
    for hk in range(15):
        for dt in range(9):
            for mh in range(2):
                U.append(("p2", dt, hk, mh))
    for dt in range(9):
        for hk in range(15, 18):
            for mh in range(2):
                U.append(("p2", dt, hk, mh))
    NU = len(U)
    assert NU == 666

    def mfma(i, n):
        kind, t, k, mh = U[i]
        if kind == "p1":
            acc = vr(AC1 + 16 * (t % 6) + (2 * mh + n) * 4, 4)
            b = ar((18 * n + k) * 4, 4) if k < 18 else vr(BX + 4 * n, 4)
        else:
            acc = ar(16 * t + (2 * mh + n) * 4, 4)
            b = vr(HO + (2 * k + n) * 4, 4) if k < 9 else ar(HP + (2 * (k - 9) + n) * 4, 4)
        a(f"v_mfma_f32_16x16x32_bf16 {acc}, {vr(AB+4*(i%9),4)}, {b}, {'0' if k == 0 else acc}")

    LQ = []

    def mk_w(c, i):
        def fn():
            if i == 0:
                a(f"s_add_u32 m0, s19, {(c % 6) * 24576}")
            if i == 4:
                a("s_add_u32 m0, m0, 4096")
                a("s_add_u32 s20, s20, 4096")
            a(f"buffer_load_dwordx4 v3, s[4:7], s20 offen offset:{(i%4)*1024} lds"); vm.issue(("w", c))
            if i == 5:
                a(f"s_add_u32 s20, s20, {24576-4096}")
        return fn

    def mk_y(k, n):
        def fn():
            a(f"buffer_load_dwordx4 {ar((18*n+k)*4,4)}, {'v6' if n else 'v3'}, s[4:7], s18 offen offset:{(k%4)*1024}"); vm.issue(("y", k))
            if k % 4 == 3 and n == 1:
                a("s_add_u32 s18, s18, 4096")
        return fn
    for c in range(NCHUNK):
        for i in range(6):
            LQ.append((24 * c - RA - 0.5 + i * 0.01, c - 4 if c >= 6 else -1, 2 if i in (0, 5) else (3 if i == 4 else 1), mk_w(c, i), "w"))
    for k in range(18):
        for n in range(2):
            LQ.append((k * G0 * 2 - 0.1 + n * 0.01, -1, 1, mk_y(k, n), "y"))
    LQ.sort(key=lambda x: x[0])
    ny_left = [36]

    def lq_issue():
        it = LQ.pop(0)
        it[3]()
        if it[4] == "y":
            ny_left[0] -= 1
        return it[2]

    for _ in range(N0):
        lq_issue()
    ts()
    kk = math_sqrt(2.0 / PI)
    C1 = -2.0 * kk * LOG2E
    C3 = C1 * 0.044715
    a("v_mov_b32 v7, 0")
    vm.wait("st")
    for sw in ("v_permlane16_swap_b32", "v_permlane32_swap_b32"):
        for r in range(4):
            a(f"v_mov_b32 v{T+4+r}, v{T+r}")
        for r in range(4):
            a(f"{sw} v{T+r}, v{T+4+r}")
        for r in range(4):
            a(f"v_add_f32 v{T+r}, v{T+r}, v{T+4+r}")
    for n in range(2):
        m = T + 2 * n; r = T + 8 + n; t = T + 4 + n; bx = BX + 4 * n
        stats_finish(a, m, m + 1, r, T + 10 + n, t, True)
        a(f"v_rcp_f32 v{RI+n}, v{r}")
        a(f"v_mul_f32 v{K1+n}, {f32(C1)}, v{r}")
        a(f"v_mul_f32 v{K3+n}, v{r}, v{r}")
        a(f"v_mul_f32 v{K3+n}, v{K3+n}, v{r}")
        a(f"v_mul_f32 v{K3+n}, {f32(C3)}, v{K3+n}")
        a(f"v_cvt_pk_bf16_f32 v{t}, v{RI+n}, v{RI+n}")
        a(f"v_and_b32 v{t}, 0xffff0000, v{t}")
        a(f"v_sub_f32 v{t}, v{RI+n}, v{t}")
        a(f"v_cvt_pk_bf16_f32 v{bx}, v{RI+n}, v{t}")
        a(f"v_sub_f32 v{m}, 0, v{m}")
        a(f"v_cvt_pk_bf16_f32 v{bx+1}, v{m}, v{m}")
        a(f"v_and_b32 v{t}, 0xffff0000, v{bx+1}")
        a(f"v_sub_f32 v{t}, v{m}, v{t}")
        a(f"v_cvt_pk_bf16_f32 v{bx+2}, v{t}, v7")
        a(f"v_mov_b32 v{bx+3}, 0")

    EV = {}
    cur = [0]
    slow = []

    def ev(g, cost, fn):
        EV.setdefault(g, []).append((cost, fn))

    def mk(text):
        return lambda: a(text)

    def mk_hstore(q):
        def fn():
            if "p3nox" in OPT:
                hl_done.add(q)
                return
            if q % 4 == 0 and q:
                a("s_add_u32 s24, s24, 4096")
            a(f"buffer_store_dwordx4 {vr(HO+4*q,4)}, v3, s[4:7], s24 offen offset:{(q%4)*1024} sc1"); vm.issue(("hs", q))
            if q % 6 == 5:
                b = q // 6
                g = cur[0] + DFLAG
                ev(g, 3, lambda: flag_store(b))
                ev(g + DPOLL, 1, lambda: poll_issue(b))
                ev(g + DPOLL + DCHK, 4, lambda: poll_check(b))
        return fn

    def flag_store(b):
        a(f"v_mov_b32 v{PV}, {b+1}")
        vm.wait(("hs", 6 * b + 5))
        a("s_mov_b64 exec, 1")
        a(f"buffer_store_dword v{PV}, v7, s[4:7], s26 offen sc1"); vm.issue("fs")
        a("s_mov_b64 exec, -1")

    def poll_issue(b):
        a("s_mov_b64 exec, 1")
        a(f"buffer_load_dword v2, v7, s[4:7], s27 offen sc1"); vm.issue(("pl", b))
        a("s_mov_b64 exec, -1")

    def poll_check(b):
        vm.wait(("pl", b))
        a("v_readfirstlane_b32 s30, v2")
        a(f"s_cmp_gt_u32 s30, {b}")
        a.nf(f"s_cbranch_scc0 {name}_w{b}")
        a.label(f"{name}_r{b}", safe=False)
        slow.append(b)
        for i in range(6):
            ev(cur[0] + 1 + 2 * i, 1, mk_hload(6 * b + i))

    def mk_hload(q):
        def fn():
            if q % 4 == 0 and q:
                a("s_add_u32 s25, s25, 4096")
            a(f"buffer_load_dwordx4 {ar(HP+4*q,4)}, v3, s[4:7], s25 offen offset:{(q%4)*1024} sc1"); vm.issue(("hl", q))
            hl_done.add(q)
        return fn
    hl_done = set()

    SK = float(OPT.get("p3skew", 2.5))
    gel = []

    def add_gelu(t, ready):
        ac = AC1 + 16 * (t % 6)
        for v in range(16):
            n = v // 8; mh = (v // 4) % 2; i = v % 4
            x = ac + (2 * mh + n) * 4 + i; tm = T + v
            ops = [(1, f"v_mul_f32 v{tm}, v{x}, v{x}"), (1, f"v_fma_f32 v{tm}, v{tm}, v{K3+n}, v{K1+n}"), (1, f"v_mul_f32 v{tm}, v{tm}, v{x}"),
                   (2, f"v_exp_f32 v{tm}, v{tm}"), (1, f"v_fma_f32 v{tm}, v{tm}, v{RI+n}, v{RI+n}"), (2, f"v_rcp_f32 v{tm}, v{tm}"),
                   (1, f"v_mul_f32 v{x}, v{x}, v{tm}")]
            if "p3nogelu" in OPT:
                ops = []
            for st, (c, tx) in enumerate(ops):
                gel.append((16 * t + v + st * SK, ready, c, mk(tx), None))
            if v % 2 == 1:
                gel.append((16 * t + v + 6 * SK + 1.2, ready, 1, mk(f"v_cvt_pk_bf16_f32 v{HO+8*t+v//2}, v{x-1}, v{x}"), None))
            if v % 8 == 7:
                q = 2 * t + n
                gel.append((16 * t + v + 6 * SK + 2.4, ready, 1, mk_hstore(q), ("h", q)))
    last_idx = {}
    for i, u in enumerate(U):
        last_idx[u[:2]] = i
    for t in range(9):
        add_gelu(t, last_idx[("p1", t)] + 2)
    gel.sort(key=lambda x: x[0])
    VQ = [(g[1], g[2], g[3], g[4]) for g in gel]
    for dt in range(9):
        rdy = last_idx[("p2", dt)] + 2
        for n in range(2):
            o = OST + 4 * n
            for mh in range(2):
                for i in range(4):
                    VQ.append((rdy, 1, mk(f"v_accvgpr_read_b32 v{T+8*n+4*mh+i}, a{16*dt+(2*mh+n)*4+i}"), None))
            for e in range(4):
                VQ.append((rdy, 1, mk(f"v_cvt_pk_bf16_f32 v{o+e}, v{T+8*n+2*e}, v{T+8*n+2*e+1}"), None))

            def st(n=n, o=o, dt=dt):
                if dt % 4 == 0 and dt and n == 0:
                    a("s_add_u32 s28, s28, 4096")
                a(f"buffer_store_dwordx4 {vr(o,4)}, {'v6' if n else 'v3'}, s[4:7], s28 offen offset:{(dt%4)*1024} sc1"); vm.issue("po")
            VQ.append((rdy, 1, st, None))
    done_tags = set()

    def vq_pop():
        it = VQ.pop(0)
        assert it[0] - 2 < cur[0] + (1 if cur[0] == NU - 1 else 0), (it[0], cur[0])
        it[2]()
        if it[3]:
            done_tags.add(it[3])
        return it[1]

    def dsread(f):
        off = ((f // 24) % 6) * 24576 + (f % 24) * 1024
        base = "v3" if off < 65536 else ("v4" if off < 131072 else "v5")
        a(f"ds_read_b128 {vr(AB+4*(f%9),4)}, {base} offset:{off % 65536}"); lg.issue(("a", f))

    bar_done = [-1]

    def chunk_barrier(c):
        while LQ and LQ[0][0] <= 24 * c - RA:
            lq_issue()
        vm.wait(("w", c))
        a("s_barrier")
        bar_done[0] = c

    ts()
    chunk_barrier(0)
    ts()
    for f in range(RA):
        dsread(f)
    last_lq = -10
    forced = 0
    for i in range(NU):
        cur[0] = i
        kind, t, k, mh = U[i]
        if kind == "p1" and t == 0 and mh == 0 and k < 18:
            while LQ and LQ[0][0] <= i:
                lq_issue()
            vm.wait(("y", k))
        if kind == "p2":
            if k < 9:
                while ("h", 2 * k + 1) not in done_tags:
                    vq_pop(); forced += 1
            else:
                q = 2 * (k - 9) + 1
                while q not in hl_done:
                    g = min(EV)
                    for c, fn in EV.pop(g):
                        fn()
                    forced += 1000
                vm.wait(("hl", q))
        if kind == "p1" and k == 0 and t >= 6:
            while ("h", 2 * (t - 6) + 1) not in done_tags:
                vq_pop(); forced += 1
        if i % 3 == 0:
            lg.wait(("a", min(i + 2, NU - 1)))
        if ts.on and i in (38 * G0, 190, 266, 342, 396, 450, 504, 558, 612):
            ts(); lg.q = []
        mfma(i, 0)
        bud = BUD / 2
        for c, fn in EV.pop(i, []):
            fn(); bud -= c
        pace = PACE0 if ny_left[0] else PACE1
        if LQ and LQ[0][1] <= bar_done[0] and i - last_lq >= pace:
            bud -= lq_issue(); last_lq = i
        while VQ and VQ[0][0] <= i and bud >= VQ[0][1] - 0.5:
            bud -= vq_pop()
        mfma(i, 1)
        bud += BUD / 2 - 1 / 3
        if i + RA < NU:
            if (i + RA) % 24 == 0:
                chunk_barrier((i + RA) // 24); bud -= 2
            dsread(i + RA); bud -= 1
        while VQ and VQ[0][0] <= i and bud >= VQ[0][1] - 0.5:
            bud -= vq_pop()
    assert not EV, EV.keys()
    ts()
    while VQ:
        vq_pop()
    print(name, "forced:", forced, file=sys.stderr)
    ts()
    if ts.on:
        a("s_waitcnt vmcnt(0)")
    ts(); ts(True)
    ts.store()
    a("s_endpgm")
    for b in slow:
        a.label(f"{name}_w{b}")
        a("s_add_u32 s31, s31, 1")
        a("s_cmp_gt_u32 s31, 0x4000")
        a(f"s_cbranch_scc1 {name}_r{b}")
        a("s_sleep 2")
        a(f"buffer_load_dword v2, v7, s[4:7], s27 offen sc1")
        a("s_waitcnt vmcnt(0)")
        a("v_readfirstlane_b32 s30, v2")
        a(f"s_cmp_gt_u32 s30, {b}")
        a(f"s_cbranch_scc0 {name}_w{b}")
        a(f"s_branch {name}_r{b}")
    footer(a, name)
    return name, a.text(), dict(vgpr=512, sgpr=102, accum=256), dict(grid=256, block=256, lds=147456)


def main():
    ks = [gen_p0(), gen_p1(0), gen_p2(0), gen_p3(0), gen_p4(0)]
    allk = [ks[0]] + ks[1:] + [(k[0].replace("l0_", "l1_"), "", k[2], k[3]) for k in ks[1:]]
    seq = allk
    if "seq" in OPT:
        byname = {k[0][:-7]: k for k in allk}
        seq = [byname[n] for n in OPT["seq"].split("+")]
    ref = open(f"cdna_kernels/{NAME}.s.ref").read().split("\n")
    hdr = [ln for ln in ref if ln.startswith(";") and "@launch" not in ln and "Override launch" not in ln and "grid=ceil" not in ln]
    out = hdr[:]
    for name, _, _, g in seq:
        out.append(f"; @launch kernel={name} grid=({g['grid']},1,1) block=({g['block']},1,1) lds={g['lds']}")
    out.append('.amdgcn_target "amdgcn-amd-amdhsa--gfx950"')
    out.append(".text")
    for _, txt, _, _ in ks:
        out.append(txt)
    out.append("code_end:")
    out.append("    s_endpgm")
    out.append('.section .rodata,"a"')
    for name, _, kd, _ in allk:
        out.append(KD.format(name=name, **kd))
    path = sys.argv[1] if len(sys.argv) > 1 else f"cdna_kernels/{NAME}.s"
    open(path, "w").write("\n".join(out))
    json.dump(L, open("layout.json", "w"))
    print("written", path, "ws end", L["END"])


if __name__ == "__main__":
    main()
```

```python
import sys, struct, json, math
from asmb import Asm, KD, vr, ar, sr

NAME = "interleave_layers__sliding_local_dilated__mixer_channel_mlp__prompt"
S, D, F = 2048, 576, 4608
XT = S * D * 2
TILE = 18432
OOB = 0x10000000
WS_BYTES = 0x0c000000


import os
OPT = dict(kv.split("=") if "=" in kv else (kv, "1") for kv in os.environ.get("GOPT", "").split(",") if kv)


math_sqrt = math.sqrt; PI = math.pi; LOG2E = math.log2(math.e)


def f32(x):
    return "0x%08x" % struct.unpack("<I", struct.pack("<f", x))[0]


G0 = int(OPT.get("g0", 2))
KT = int(OPT.get("kt", 6))
KO = 18 - KT
NCHUNK = 28
SLB = NCHUNK * 24576


class WS:
    pass


def layout():
    off = 0
    L = {}

    def alloc(name, n):
        nonlocal off
        L[name] = off
        off += (n + 4095) // 4096 * 4096
    for l in (0, 1):
        alloc(f"FL{l}", 32768)
        alloc("X0" if l == 0 else "X2", XT); alloc("ST0" if l == 0 else "ST2", S * 32)
        alloc(f"O{l}", XT)
        alloc(f"X1_{l}", XT); alloc(f"ST1_{l}", S * 32)
        alloc(f"PART{l}", 8 * XT)
        alloc(f"HX{l}", 1024 * 18432)
    L["LSTR"] = L["FL1"]
    alloc("WQ", 16 * 18 * 7 * 1024)
    alloc("WO", 36 * 18 * 1024)
    alloc("W12", 16 * NCHUNK * 24576)
    alloc("TS", 512 * 16 * 128)
    L["END"] = off
    return L


L = layout()


class Cnt:
    def __init__(self, a, name, maxv):
        self.a = a; self.name = name; self.maxv = maxv; self.q = []

    def issue(self, tag):
        self.q.append(tag)

    def wait(self, tag):
        if tag not in self.q:
            return
        i = len(self.q) - 1 - self.q[::-1].index(tag)
        n = len(self.q) - 1 - i
        n = min(n, self.maxv)
        self.a(f"s_waitcnt {self.name}({n})")
        self.q = self.q[len(self.q) - n:] if n else []

    def wait_all(self):
        self.a(f"s_waitcnt {self.name}(0)")
        self.q = []


def header(a, name, nwg):
    if "l0_" in name:
        n1 = name.replace("l0_", "l1_")
        a.raw(f".globl {n1}\n.p2align 8\n.type {n1},@function\n{n1}:")
        a(f"s_mov_b32 s59, {L['LSTR']}")
        a(f"s_branch {name}_body")
    a.raw(f".globl {name}\n.p2align 8\n.type {name},@function\n{name}:")
    a("s_mov_b32 s59, 0")
    a.raw(f"{name}_body:")
    a(f"s_cmp_ge_u32 s2, {nwg}")
    a(f"s_cbranch_scc1 {name}_end")


def footer(a, name):
    a.label(f"{name}_end")
    a("s_endpgm")


def srd(a, d, base, nbytes):
    a(f"s_mov_b32 s{d}, s{base}")
    a(f"s_and_b32 s{d+1}, s{base+1}, 0xffff")
    a(f"s_mov_b32 s{d+2}, {nbytes}")
    a(f"s_mov_b32 s{d+3}, 0x00020000")


class Stamps:
    def __init__(self, a, name):
        self.a = a; self.n = 0; self.on = OPT.get("ts") == name[:-7]

    def __call__(self, real=False):
        if not self.on:
            return
        self.a(f"{'s_memrealtime' if real or 'tsreal' in OPT else 's_memtime'} s[{60+2*self.n}:{61+2*self.n}]")
        self.a("s_waitcnt lgkmcnt(0)")
        self.n += 1

    def store(self):
        if not self.on:
            return
        a = self.a
        a("s_lshl_b32 s58, s2, 4")
        a("s_add_u32 s58, s58, s3")
        a("s_lshl_b32 s58, s58, 7")
        a(f"s_add_u32 s58, s58, {L['TS']}")
        a("s_sub_u32 s58, s58, s59")
        a("v_mov_b32 v2, 0")
        for i in range(self.n):
            a(f"v_mov_b32 v0, s{60+2*i}")
            a(f"buffer_store_dword v0, v2, s[4:7], s58 offen offset:{4*i}")


def xg_reduce(a, op, v, t):
    a(f"v_mov_b32 v{t}, v{v}")
    a(f"v_permlane16_swap_b32 v{v}, v{t}")
    a(f"{op} v{v}, v{v}, v{t}")
    a(f"v_mov_b32 v{t}, v{v}")
    a(f"v_permlane32_swap_b32 v{v}, v{t}")
    a(f"{op} v{v}, v{v}, v{t}")


def gen_p0():
    name = "p0_kernel"
    NT = OPT.get("p0nt", "nt")
    NWG = 248
    a = Asm()
    header(a, name, NWG)
    ts = Stamps(a, name)
    ts(True); ts()
    a("s_load_dwordx4 s[16:19], s[0:1], 0")
    a("s_load_dwordx2 s[20:21], s[0:1], 16")
    a("s_load_dwordx4 s[24:27], s[0:1], 32")
    a("s_load_dwordx2 s[28:29], s[0:1], 48")
    a("s_load_dwordx2 s[30:31], s[0:1], 80")
    a("v_and_b32 v1, 63, v0")
    a("v_lshrrev_b32 v2, 6, v0")
    a("v_readfirstlane_b32 s3, v2")
    a("v_lshlrev_b32 v3, 4, v1")
    a("v_and_b32 v4, 15, v1")
    a("v_lshrrev_b32 v5, 4, v1")
    a("v_lshrrev_b32 v6, 3, v1")
    a("v_and_b32 v7, 7, v1")
    a("s_mul_i32 s40, s3, 18432")
    a("v_lshrrev_b32 v11, 2, v1")
    a("v_lshlrev_b32 v11, 7, v11")
    a("v_and_b32 v12, 3, v1")
    a("v_lshl_add_u32 v11, v12, 3, v11")
    a("s_lshl_b32 s38, s3, 5")
    a("v_add_u32 v11, s38, v11")
    a("s_waitcnt lgkmcnt(0)")
    if "nocp" not in OPT:
        a("s_getpc_b64 s[52:53]")
        a.raw(f"{name}_pc:")
        a("s_lshr_b32 s54, s2, 3")
        a("s_lshl_b32 s54, s54, 2")
        a("s_add_u32 s54, s54, s3")
        a("s_mul_i32 s54, s54, 384")
        a(f"s_add_u32 s54, s54, p1l1_kernel-{name}_pc")
        a(f"s_min_u32 s54, s54, code_end-{name}_pc-320")
        a("s_add_u32 s52, s52, s54")
        a("s_addc_u32 s53, s53, 0")
        for i in range(6):
            a(f"s_load_dword s55, s[52:53], {64*i}")
    PT = int(OPT.get("pt", 0))
    if PT:
        npg = (L["TS"] + PT * 1024 - 1) // (PT * 1024)
        per = (npg + 123) // 124
        a("s_lshr_b32 s54, s2, 3")
        a("s_lshl_b32 s54, s54, 2")
        a("s_add_u32 s54, s54, s3")
        a(f"s_mul_i32 s54, s54, {per * PT * 1024}")
        a(f"s_min_u32 s54, s54, {L['TS']}")
        a("s_add_u32 s52, s30, s54")
        a("s_addc_u32 s53, s31, 0")
        for i in range(per):
            a(f"s_load_dword s55, s[52:53], {i * PT * 1024 + 64 * 37}")
    srd(a, 4, 30, WS_BYTES)
    a(f"s_mov_b32 s36, {OOB}")
    a(f"s_mov_b32 s37, {OOB}")
    a("v_lshlrev_b32 v9, 2, v4")
    a("v_mov_b32 v10, 0")
    a("s_cmp_ge_u32 s2, 216")
    a(f"s_cbranch_scc1 {name}_x")
    a("s_cmp_ge_u32 s2, 198")
    a(f"s_cbranch_scc1 {name}_wo")
    a("s_cmp_ge_u32 s2, 144")
    a(f"s_cbranch_scc1 {name}_wq")
    def fin():
        if ts.on:
            a(f"s_branch {name}_ts")
        else:
            a("s_endpgm")

    def mid(k):
        ts.n = k
        ts()

    def dma18():
        a("s_lshl_b32 s44, s3, 10")
        a("s_mov_b32 m0, s44")
        for ks in range(18):
            a("buffer_load_dwordx4 v8, s[12:15], s32 offen " + NT + " lds")
            a("s_add_u32 s32, s32, s33")
            a("s_add_u32 m0, m0, 4096")

    def tile_decode():
        a("s_lshl_b32 s43, s42, 1")
        a("s_lshr_b32 s44, s3, 1")
        a("s_add_u32 s43, s43, s44")
        a("s_cmp_ge_u32 s43, 9")
        a("s_cselect_b32 s46, 1, 0")
        a("s_mul_i32 s47, s46, 9")
        a("s_sub_u32 s47, s43, s47")
        a("s_lshl_b32 s34, s41, 1")
        a("s_add_u32 s34, s34, s46")
        a(f"s_mul_i32 s34, s34, {SLB}")
        a(f"s_add_u32 s34, s34, {L['W12']}")
        a("s_and_b32 s44, s3, 1")
        a("s_lshl_b32 s44, s44, 10")
        a("s_add_u32 s34, s34, s44")

    a("s_and_b32 s41, s2, 7")
    a("s_lshr_b32 s42, s2, 3")
    a("s_cmp_ge_u32 s42, 9")
    a(f"s_cbranch_scc1 {name}_w2")
    srd(a, 12, 24, D * F * 2)
    a("s_mul_i32 s41, s2, 2731")
    a("s_lshr_b32 s41, s41, 16")
    a("s_mul_i32 s42, s41, 24")
    a("s_sub_u32 s42, s2, s42")
    a("v_mul_u32_u24 v8, 9216, v6")
    a("v_lshl_add_u32 v8, v7, 4, v8")
    a("s_mul_i32 s32, s42, 384")
    a("s_add_u32 s45, s32, s38")
    a(f"s_mul_i32 s44, s41, {192*9216}")
    a("s_add_u32 s32, s32, s44")
    a(f"s_mul_i32 s44, s3, {8*9216}")
    a("s_add_u32 s32, s32, s44")
    srd(a, 48, 26, F * 2)
    a("v_lshlrev_b32 v12, 1, v4")
    for l3 in range(3):
        a(f"buffer_load_ushort v{88+l3}, v12, s[48:51], s45 offen offset:{l3*128}")
    a("s_lshl_b32 s44, s3, 10")
    for ks in range(6):
        for l3 in range(3):
            a(f"s_add_u32 m0, s44, {l3*24576 + ks*4096}")
            a(f"s_add_u32 s33, s32, {ks*32*9216 + l3*128}")
            a("buffer_load_dwordx4 v8, s[12:15], s33 offen " + NT + " lds")
    DST = ((34, 35), (36, 37), (39, 40))
    for l3 in range(3):
        d, st = DST[l3]
        a("s_mul_i32 s43, s42, 6")
        a("s_lshr_b32 s44, s3, 1")
        a("s_add_u32 s43, s43, s44")
        a(f"s_add_u32 s43, s43, {2*l3}")
        a("s_mul_i32 s46, s43, 7282")
        a("s_lshr_b32 s46, s46, 16")
        a("s_mul_i32 s47, s46, 9")
        a("s_sub_u32 s47, s43, s47")
        a(f"s_mul_i32 s{d}, s46, {SLB}")
        a("s_mul_i32 s44, s47, 19")
        a(f"s_cmp_lt_u32 s47, {G0}")
        a("s_cselect_b32 s44, s47, s44")
        a(f"s_cselect_b32 s45, {G0}, 1")
        a("s_lshl_b32 s44, s44, 11")
        a(f"s_add_u32 s{d}, s{d}, s44")
        a(f"s_lshl_b32 s{st}, s45, 11")
        a("s_and_b32 s44, s3, 1")
        a("s_lshl_b32 s44, s44, 10")
        a(f"s_add_u32 s{d}, s{d}, s44")
        a(f"s_add_u32 s{d}, s{d}, {L['W12']}")
        a(f"s_mul_i32 s44, s{st}, 18")
        a(f"s_add_u32 s{52+l3}, s{d}, s44")
        a("s_mul_i32 s44, s41, 6")
        a(f"s_mul_i32 s44, s44, s{st}")
        a(f"s_add_u32 s{d}, s{d}, s44")
    a("v_add_u32 v15, 24576, v11")
    a("v_mov_b32 v12, 0x3f803f80")
    for l3 in range(3):
        a(f"v_mov_b32 v{92+l3}, 0")
    mid(2)
    for ks in range(6):
        a("s_waitcnt vmcnt(15)")
        a("s_barrier")
        if ks == 5:
            mid(3)
        for l3 in range(3):
            f = 3 * ks + l3
            for r in range(2):
                off = l3 * 24576 + ks * 4096 + r * 2048
                base, off = ("v11", off) if l3 < 2 else ("v15", off - 24576)
                a(f"ds_read_b64_tr_b16 v[{16+4*f+2*r}:{17+4*f+2*r}], {base} offset:{off}")
        a("s_waitcnt lgkmcnt(0)")
        for l3 in range(3):
            f = 3 * ks + l3
            d, st = DST[l3]
            a(f"buffer_store_dwordx4 v[{16+4*f}:{19+4*f}], v3, s[4:7], s{d} offen sc1")
            a(f"s_add_u32 s{d}, s{d}, s{st}")
            for j in range(4):
                a(f"v_dot2c_f32_bf16 v{92+l3}, v{16+4*f+j}, v12")
    a("v_cmp_eq_u32 s[46:47], s41, v5")
    a("s_cmp_eq_u32 s41, 0")
    a("s_cselect_b32 s44, 3, s41")
    a("s_cselect_b32 s45, -1, 0")
    a("v_cmp_eq_u32 vcc, s44, v5")
    a("s_or_b64 vcc, vcc, s[46:47]")
    a("v_mov_b32 v8, 0x40000000")
    a("v_cndmask_b32 v9, v8, v3, vcc")
    for l3 in range(3):
        c = 92 + l3; o = 16 + 4 * l3
        xg_reduce(a, "v_add_f32", c, 8)
        a(f"v_lshl_or_b32 v{o}, v{88+l3}, 16, v{88+l3}")
        a(f"v_and_b32 v{o}, s45, v{o}")
        a(f"v_cvt_pk_bf16_f32 v{o+2}, v{c}, v{c}")
        a(f"v_and_b32 v8, 0xffff0000, v{o+2}")
        a(f"v_sub_f32 v8, v{c}, v8")
        a(f"v_cvt_pk_bf16_f32 v{o+1}, v{c}, v8")
        a(f"v_and_b32 v{o+2}, 0xffff, v{o+2}")
        a(f"v_mov_b32 v{o+3}, 0")
        for r in range(3):
            a(f"v_cndmask_b32 v{o+r}, 0, v{o+r}, s[46:47]")
        a(f"buffer_store_dwordx4 {vr(o,4)}, v9, s[4:7], s{52+l3} offen sc1")
    fin()

    a.label(f"{name}_w2")
    srd(a, 12, 28, D * F * 2)
    a("s_sub_u32 s42, s42, 9")
    a("v_mul_u32_u24 v8, 1152, v6")
    a("v_lshl_add_u32 v8, v7, 4, v8")
    a(f"s_mul_i32 s32, s41, {576*1152}")
    a("s_lshl_b32 s44, s42, 7")
    a("s_add_u32 s32, s32, s44")
    a(f"s_mul_i32 s44, s3, {8*1152}")
    a("s_add_u32 s32, s32, s44")
    a(f"s_mov_b32 s33, {32*1152}")
    dma18()
    tile_decode()
    a("s_mul_i32 s44, s46, 36864")
    a("s_sub_u32 s45, 36864, s44")
    a("v_add_u32 v15, s45, v11")
    a("v_add_u32 v11, s44, v11")
    a(f"s_mul_i32 s44, s47, {KT*2048}")
    a("s_add_u32 s37, s34, s44")
    a(f"s_add_u32 s37, s37, {(342+18*KO)*1024}")
    a("s_lshl_b32 s44, s47, 11")
    a("s_add_u32 s34, s34, s44")
    a(f"s_add_u32 s34, s34, {342*1024}")
    mid(2)
    a("s_waitcnt vmcnt(0)")
    a("s_barrier")
    mid(3)
    for grp in range(3):
        for b in range(6 * grp, 6 * grp + 6):
            for r in range(2):
                a(f"ds_read_b64_tr_b16 v[{16+4*b+2*r}:{17+4*b+2*r}], {'v11' if b < 9 else 'v15'} offset:{(b%9)*4096+r*2048}")
        a("s_waitcnt lgkmcnt(0)")
        for b in range(6 * grp, 6 * grp + 6):
            if b < KO:
                a(f"buffer_store_dwordx4 v[{16+4*b}:{19+4*b}], v3, s[4:7], s34 offen sc1")
                a(f"s_add_u32 s34, s34, {18*1024}")
            else:
                a(f"buffer_store_dwordx4 v[{16+4*b}:{19+4*b}], v3, s[4:7], s37 offen sc1")
                a("s_add_u32 s37, s37, 2048")
    fin()

    a.label(f"{name}_wo")
    srd(a, 12, 20, D * D * 2)
    a("s_sub_u32 s41, s2, 198")
    a("s_lshl_b32 s44, s3, 3")
    a("v_add_u32 v12, s44, v6")
    a("v_lshrrev_b32 v13, 4, v12")
    a("v_mul_u32_u24 v13, 18, v13")
    a("v_and_b32 v14, 15, v12")
    a("v_add_u32 v13, v13, v14")
    a("v_lshrrev_b32 v14, 2, v12")
    a("v_mul_u32_u24 v14, 36, v14")
    a("v_and_b32 v15, 3, v12")
    a("v_lshrrev_b32 v2, 1, v15")
    a("v_lshlrev_b32 v2, 4, v2")
    a("v_add3_u32 v14, v14, v15, v2")
    a("v_add_u32 v14, 16, v14")
    a("s_mul_i32 s32, s41, 36")
    a("s_sub_u32 s33, s41, 16")
    a("s_mul_i32 s33, s33, 288")
    a("s_cmp_lt_u32 s41, 16")
    a("s_cselect_b32 s32, s32, s33")
    a("s_cselect_b64 vcc, -1, 0")
    a("v_cndmask_b32 v13, v14, v13, vcc")
    a("s_mul_i32 s32, s32, 1152")
    a("v_mul_u32_u24 v8, 1152, v13")
    a("v_lshl_add_u32 v8, v7, 4, v8")
    a("s_lshl_b32 s44, s3, 10")
    a("s_mov_b32 m0, s44")
    for cg in range(9):
        a("buffer_load_dwordx4 v8, s[12:15], s32 offen " + NT + " lds")
        a("s_add_u32 s32, s32, 128")
        a("s_add_u32 m0, m0, 4096")
    a("s_mul_i32 s34, s3, 18432")
    a("s_lshl_b32 s44, s41, 10")
    a("s_add_u32 s34, s34, s44")
    a(f"s_add_u32 s34, s34, {L['WO']}")
    mid(2)
    a("s_waitcnt vmcnt(0)")
    a("s_barrier")
    mid(3)
    for cg in range(9):
        for r in range(2):
            a(f"ds_read_b64_tr_b16 v[{16+4*cg+2*r}:{17+4*cg+2*r}], v11 offset:{cg*4096+r*2048}")
        if cg == 6:
            a("s_waitcnt lgkmcnt(0)")
    a("s_waitcnt lgkmcnt(0)")
    for cg in range(9):
        a(f"buffer_store_dwordx4 v[{16+4*cg}:{19+4*cg}], v3, s[4:7], s34 offen sc1")
        a(f"s_add_u32 s34, s34, {4*18432}")
    fin()

    a.label(f"{name}_wq")
    srd(a, 12, 18, D * 3 * D * 2)
    a("s_sub_u32 s41, s2, 144")
    a("s_mul_i32 s42, s41, 43691")
    a("s_lshr_b32 s42, s42, 17")
    a("s_mul_i32 s43, s42, 3")
    a("s_sub_u32 s43, s41, s43")
    a(f"s_mul_i32 s32, s42, {32*3456}")
    a("s_mul_i32 s44, s43, 1152")
    a("s_add_u32 s32, s32, s44")
    a(f"s_mul_i32 s44, s3, {8*3456}")
    a("s_add_u32 s32, s32, s44")
    a("s_add_u32 s33, s32, 32")
    a("v_lshrrev_b32 v8, 1, v1")
    a("v_mul_u32_u24 v8, 36, v8")
    a("v_and_b32 v12, 1, v1")
    a("v_lshl_add_u32 v8, v12, 4, v8")
    a("v_and_b32 v12, 31, v1")
    a("v_mul_u32_u24 v12, 36, v12")
    a("v_lshrrev_b32 v13, 5, v1")
    a("v_mul_u32_u24 v13, 3456, v13")
    a("v_add_u32 v12, v12, v13")
    a("s_lshl_b32 s44, s3, 13")
    a("s_mov_b32 m0, s44")
    for i in range(8):
        a("buffer_load_dwordx4 v8, s[12:15], s32 offen " + NT + " lds")
        a("s_add_u32 s32, s32, 3456")
        a("s_add_u32 m0, m0, 1024")
    a("s_lshl_b32 s44, s3, 10")
    a("s_add_u32 m0, s44, 32768")
    for i in range(4):
        a("buffer_load_dword v12, s[12:15], s33 offen " + NT + " lds")
        a(f"s_add_u32 s33, s33, {2*3456}")
        a("s_add_u32 m0, m0, 256")
    a("v_lshrrev_b32 v13, 2, v1")
    a("v_lshlrev_b32 v13, 10, v13")
    a("v_and_b32 v14, 3, v1")
    a("v_lshl_add_u32 v13, v14, 3, v13")
    a("s_lshl_b32 s44, s3, 8")
    a("v_add_u32 v13, s44, v13")
    a(f"s_mul_i32 s34, s3, {4*129024}")
    a("s_mul_i32 s44, s42, 7168")
    a("s_add_u32 s34, s34, s44")
    a(f"s_add_u32 s35, s34, {L['WQ'] + 6*1024}")
    a("s_lshl_b32 s44, s43, 11")
    a("s_add_u32 s34, s34, s44")
    a(f"s_add_u32 s34, s34, {L['WQ']}")
    a("v_lshrrev_b32 v14, 2, v4")
    a(f"s_mov_b32 s44, 129024")
    a("v_mul_lo_u32 v14, v14, s44")
    a("v_lshrrev_b32 v15, 1, v4")
    a("v_and_b32 v15, 1, v15")
    a("s_cmp_eq_u32 s43, 2")
    a("s_cselect_b32 s44, 1, 2")
    a("s_lshl_b32 s45, s43, 1")
    a("s_cmp_eq_u32 s43, 2")
    a("s_cselect_b32 s45, 8, s45")
    a("v_lshlrev_b32 v15, s44, v15")
    a("v_and_b32 v2, 1, v4")
    a("v_add3_u32 v15, v15, v2, s45")
    a("v_lshl_add_u32 v15, v5, 4, v15")
    a("v_lshl_add_u32 v14, v15, 4, v14")
    mid(2)
    a("s_waitcnt vmcnt(0)")
    a("s_barrier")
    mid(3)
    for i in range(8):
        for r in range(2):
            a(f"ds_read_b64_tr_b16 v[{16+4*i+2*r}:{17+4*i+2*r}], v13 offset:{r*16384+i*32}")
        if i == 6:
            a("s_waitcnt lgkmcnt(0)")
    for r in range(2):
        a(f"ds_read_b64_tr_b16 v[{48+2*r}:{49+2*r}], v11 offset:{32768+r*2048}")
    for i in range(4):
        a(f"v_mov_b32 v{52+i}, 0")
    a("s_waitcnt lgkmcnt(0)")
    for i in range(8):
        a(f"buffer_store_dwordx4 v[{16+4*i}:{19+4*i}], v3, s[4:7], s34 offen offset:{(i&1)*1024} sc1")
        if i & 1:
            a("s_add_u32 s34, s34, 129024")
    a("buffer_store_dwordx4 v[48:51], v14, s[4:7], s35 offen")
    a("s_cmp_eq_u32 s43, 2")
    a(f"s_cselect_b32 s35, s35, {OOB}")
    a("buffer_store_dwordx4 v[52:55], v14, s[4:7], s35 offen offset:64")
    fin()

    a.label(f"{name}_x")
    srd(a, 12, 16, XT)
    a("s_sub_u32 s41, s2, 216")
    a("s_lshl_b32 s41, s41, 2")
    a("s_add_u32 s41, s41, s3")
    a("s_mul_i32 s33, s41, 18432")
    a(f"s_add_u32 s34, s33, {L['X0']}")
    a("s_mov_b32 m0, s40")
    for i in range(18):
        a(f"buffer_load_dwordx4 v3, s[12:15], s33 offen offset:{(i%3)*1024} " + NT + " lds")
        if i % 3 == 2:
            a("s_add_u32 s33, s33, 3072")
            a("s_add_u32 m0, m0, 3072")
    a("v_mul_u32_u24 v8, 1152, v4")
    a("v_lshl_add_u32 v8, v5, 3, v8")
    a("v_add_u32 v8, s40, v8")
    a("v_mov_b32 v12, 0x3f803f80")
    a("v_mov_b32 v14, 0")
    a("v_mov_b32 v15, 0")
    mid(2)
    a("s_waitcnt vmcnt(0)")
    mid(3)
    for grp in range(3):
        for ks in range(6 * grp, 6 * grp + 6):
            a(f"ds_read_b64 v[{16+4*ks}:{17+4*ks}], v8 offset:{ks*64}")
            a(f"ds_read_b64 v[{18+4*ks}:{19+4*ks}], v8 offset:{ks*64+32}")
        a("s_waitcnt lgkmcnt(0)")
        for ks in range(6 * grp, 6 * grp + 6):
            a(f"buffer_store_dwordx4 v[{16+4*ks}:{19+4*ks}], v3, s[4:7], s34 offen sc1")
            a("s_add_u32 s34, s34, 1024")
    for ks in range(18):
        for j in range(4):
            a(f"v_dot2c_f32_bf16 v14, v{16+4*ks+j}, v12")
            a(f"v_dot2c_f32_bf16 v15, v{16+4*ks+j}, v{16+4*ks+j}")
    a("v_lshlrev_b32 v9, 5, v4")
    a("v_lshl_add_u32 v9, v5, 3, v9")
    a("s_lshl_b32 s36, s41, 9")
    a(f"s_add_u32 s36, s36, {L['ST0']}")
    a("buffer_store_dwordx2 v[14:15], v9, s[4:7], s36 offen")
    if ts.on:
        a.label(f"{name}_ts")
        ts()
        a("s_waitcnt vmcnt(0)")
        ts(); ts(True)
        ts.store()
    footer(a, name)
    return name, a.text(), dict(vgpr=96, sgpr=96, accum=96), dict(grid=248, block=256, lds=81920 + 4096)


def stats_finish(a, s, q, r, mr, t, double_ln):
    a(f"v_mul_f32 v{s}, {f32(1.0/D)}, v{s}")
    a(f"v_mul_f32 v{q}, {f32(1.0/D)}, v{q}")
    a(f"v_fma_f32 v{q}, -v{s}, v{s}, v{q}")
    a(f"v_max_f32 v{q}, 0, v{q}")
    a(f"v_add_f32 v{t}, {f32(1e-5)}, v{q}")
    a(f"v_rsq_f32 v{r}, v{t}")
    if double_ln:
        a(f"v_mul_f32 v{t}, v{r}, v{r}")
        a(f"v_mul_f32 v{t}, v{t}, v{q}")
        a(f"v_add_f32 v{t}, {f32(1e-5)}, v{t}")
        a(f"v_rsq_f32 v{t}, v{t}")
        a(f"v_mul_f32 v{r}, v{r}, v{t}")
    a(f"v_mul_f32 v{mr}, v{s}, v{r}")


def gen_p1(layer):
    name = f"p1l{layer}_kernel"
    XIN = L["X0"] if layer == 0 else L["X2"]
    STI = L["ST0"] if layer == 0 else L["ST2"]
    OUT = L[f"O{layer}"]
    a = Asm()
    vm = Cnt(a, "vmcnt", 63); lg = Cnt(a, "lgkmcnt", 15)
    header(a, name, 256)
    ts = Stamps(a, name)
    ts(True); ts()
    ROT = int(OPT.get("p1rot", 0))
    a("s_load_dwordx2 s[4:5], s[0:1], 80")
    a("v_and_b32 v1, 63, v0")
    a("v_lshrrev_b32 v2, 6, v0")
    a("v_readfirstlane_b32 s3, v2")
    a("v_lshlrev_b32 v3, 4, v1")
    a("v_and_b32 v4, 15, v1")
    a("v_lshrrev_b32 v5, 4, v1")
    a("s_and_b32 s12, s2, 7")
    a("s_lshr_b32 s13, s2, 3")
    a("s_lshr_b32 s14, s12, 1")
    a("s_lshl_b32 s14, s14, 2")
    a("s_and_b32 s15, s13, 3")
    a("s_mul_i32 s46, s15, 5")
    a("s_add_u32 s14, s14, s15")
    a("s_and_b32 s15, s12, 1")
    a("s_lshl_b32 s15, s15, 3")
    a("s_lshr_b32 s16, s13, 2")
    a("s_add_u32 s15, s15, s16")
    a("s_lshl_b32 s16, s16, 1")
    a("s_add_u32 s46, s46, s16")
    a("s_cmp_ge_u32 s46, 18")
    a("s_cselect_b32 s16, 18, 0")
    a("s_sub_u32 s46, s46, s16")
    if not ROT:
        a("s_mov_b32 s46, 0")
    a("s_lshl_b32 s47, s46, 10")
    a("s_lshl_b32 s16, s14, 3")
    a("s_lshl_b32 s17, s3, 1")
    a("s_add_u32 s17, s17, s16")
    a("s_mul_i32 s18, s17, 18432")
    a("s_add_u32 s18, s18, s47")
    a(f"s_add_u32 s18, s18, {XIN}")
    a(f"s_mul_i32 s20, s15, {18*7168}")
    a("s_lshl_b32 s21, s3, 11")
    a("s_add_u32 s20, s20, s21")
    a("s_mul_i32 s19, s46, 7168")
    a("s_add_u32 s20, s20, s19")
    a(f"s_add_u32 s20, s20, {L['WQ']}")
    a("s_sub_u32 s20, s20, s59")
    a("s_mul_i32 s22, s16, 18432")
    a(f"s_add_u32 s22, s22, {XIN - 18432 - 1024}")
    a("s_cmp_eq_u32 s14, 0")
    a(f"s_cselect_b32 s22, {OOB}, s22")
    a("s_add_u32 s22, s22, s47")
    a("s_mov_b32 s48, 7168")
    a(f"s_mov_b32 s49, {-17*7168}")
    a("s_mov_b32 s50, 1024")
    a(f"s_mov_b32 s51, {-17*1024}")
    a("s_mov_b32 s44, 0xfffefffe")
    a("s_cmp_eq_u32 s3, 3")
    a("s_cselect_b32 s22, s22, s20")
    a("s_cselect_b32 s52, s50, s48")
    a("s_cselect_b32 s53, s51, s49")
    a("s_cselect_b32 s44, s44, -1")
    a("s_mov_b32 s45, s44")
    a("s_mov_b32 s24, s21")
    a("s_lshl_b32 s25, s17, 9")
    a(f"s_add_u32 s25, s25, {STI}")
    a("s_lshl_b32 s26, s16, 9")
    a(f"s_add_u32 s26, s26, {STI - 512}")
    a("s_cmp_eq_u32 s14, 0")
    a(f"s_cselect_b32 s26, {OOB}, s26")
    a("s_lshl_b32 s27, s3, 2")
    a("s_lshr_b32 s28, 0x1654, s27")
    a("s_and_b32 s28, s28, 15")
    a("s_lshr_b32 s27, 0x0632, s27")
    a("s_and_b32 s27, s27, 15")
    a("v_lshlrev_b32 v6, 5, v4")
    a("v_lshl_add_u32 v6, v5, 3, v6")
    a("v_lshlrev_b32 v7, 4, v5")
    a("v_lshlrev_b32 v8, 2, v4")
    a("v_add_u32 v15, 18432, v3")
    a("s_waitcnt lgkmcnt(0)")
    a("s_add_u32 s4, s4, s59")
    a("s_addc_u32 s5, s5, 0")
    a("s_and_b32 s5, s5, 0xffff")
    a(f"s_mov_b32 s6, {WS_BYTES}")
    a("s_mov_b32 s7, 0x00020000")
    ACC = 16; AB = 88
    RN = 168
    RS = 176
    CQN = 200
    CQH = 220
    CQS = 224
    MS = 228; MPA = 232; MPB = 236
    T0 = 200
    EX = 147456
    CQL = EX + 5 * 3072
    for n, so, off in ((0, "s25", 0), (1, "s25", 512), (2, "s26", 0)):
        a(f"buffer_load_dwordx2 {vr(T0+2*n,2)}, v6, s[4:7], {so} offen offset:{off}"); vm.issue("st")

    def loads(ks):
        if not ROT:
            o = (ks % 4) * 1024
            return [
                ["s_mov_b32 m0, s24", "s_add_u32 s24, s24, 8192", "buffer_load_dwordx4 v3, s[4:7], s20 offen lds", "s_add_u32 s20, s20, 7168"],
                ["s_mov_b64 exec, s[44:45]", "buffer_load_dwordx4 v3, s[4:7], s22 offen offset:1024 lds", "s_mov_b64 exec, -1",
                 "s_add_u32 s22, s22, s52"],
                [f"buffer_load_dwordx4 {ar(4*ks,4)}, v3, s[4:7], s18 offen offset:{o}"],
                [f"buffer_load_dwordx4 {ar(72+4*ks,4)}, v15, s[4:7], s18 offen offset:{o}"] + (["s_add_u32 s18, s18, 4096"] if ks % 4 == 3 else []),
            ]
        return [
            ["s_mov_b32 m0, s24", "s_add_u32 s46, s46, 1", "buffer_load_dwordx4 v3, s[4:7], s20 offen lds",
             "s_cmp_eq_u32 s46, 18", "s_cselect_b32 s54, s49, s48", "s_cselect_b32 s55, s53, s52", "s_cselect_b32 s56, s51, s50",
             "s_add_u32 s20, s20, s54"],
            ["s_mov_b64 exec, s[44:45]", "buffer_load_dwordx4 v3, s[4:7], s22 offen offset:1024 lds", "s_mov_b64 exec, -1",
             "s_add_u32 s22, s22, s55", "s_add_u32 s24, s24, 8192"],
            [f"buffer_load_dwordx4 {ar(4*ks,4)}, v3, s[4:7], s18 offen"],
            [f"buffer_load_dwordx4 {ar(72+4*ks,4)}, v15, s[4:7], s18 offen", "s_add_u32 s18, s18, s56"],
        ]

    def do_load(grp, ks):
        for t in grp:
            a(t)
        vm.issue(("k", ks))

    PF = int(OPT.get("p1pf", 5))
    PF0 = int(OPT.get("p1pf0", 2))
    PF1 = int(OPT.get("p1pf1", 4))
    for ks in range(PF0):
        for grp in loads(ks):
            do_load(grp, ks)
    ts()
    a("v_min_u32 v12, 71, v0")
    a("v_lshrrev_b32 v13, 2, v12")
    a("v_lshlrev_b32 v13, 13, v13")
    a("v_and_b32 v12, 3, v12")
    a("v_lshl_add_u32 v13, v12, 8, v13")
    for i in range(4):
        a(f"v_mov_b32 v{ACC+i}, 0x3f803f80")
    a(f"ds_write_b128 v13, {vr(ACC,4)} offset:7168")
    a("v_mov_b32 v9, v3")
    a("s_lshl_b32 s32, s27, 10")
    a("v_add_u32 v10, s32, v3")
    a("s_lshl_b32 s32, s28, 10")
    a("v_add_u32 v11, s32, v3")
    a(f"v_mov_b32 v12, {f32(-1e30)}")
    a("v_lshlrev_b32 v13, 2, v5")
    a("v_sub_u32 v13, v4, v13")
    a("s_cmp_eq_u32 s17, 0")
    a("s_cselect_b32 s33, -100, -2")
    for i in range(4):
        a(f"v_subrev_u32 v14, {i}, v13")
        a("v_and_b32 v2, 1, v14")
        a("v_cmp_eq_u32 s[34:35], 0, v2")
        a("v_cmp_le_i32 vcc, 0, v14")
        a("s_and_b64 vcc, vcc, s[34:35]")
        a(f"v_cndmask_b32 v{MS+i}, v12, 0, vcc")
        a("v_cmp_ge_i32 vcc, -2, v14")
        a("s_and_b64 vcc, vcc, s[34:35]")
        a(f"v_cndmask_b32 v{MPB+i}, v12, 0, vcc")
        a("v_cmp_ge_i32 vcc, s33, v14")
        a("s_and_b64 vcc, vcc, s[34:35]")
        a(f"v_cndmask_b32 v{MPA+i}, v12, 0, vcc")
    a("s_mul_i32 s32, s3, 384")
    a(f"s_add_u32 s32, s32, {EX}")
    a("v_add_u32 v12, s32, v8")
    a("v_add_u32 v13, s32, v7")
    for ks in range(PF0, PF1):
        for grp in loads(ks):
            do_load(grp, ks)
    vm.wait("st")
    for r in range(6):
        a(f"v_mov_b32 v{T0+8+r}, v{T0+r}")
    for r in range(6):
        a(f"v_permlane16_swap_b32 v{T0+r}, v{T0+8+r}")
    for r in range(6):
        a(f"v_add_f32 v{T0+r}, v{T0+r}, v{T0+8+r}")
    for r in range(6):
        a(f"v_mov_b32 v{T0+8+r}, v{T0+r}")
    for r in range(6):
        a(f"v_permlane32_swap_b32 v{T0+r}, v{T0+8+r}")
    for r in range(6):
        a(f"v_add_f32 v{T0+r}, v{T0+r}, v{T0+8+r}")
    for n in range(3):
        b = T0 + 2 * n
        stats_finish(a, b, b + 1, RN + 2 * n, RN + 2 * n + 1, T0 + 8 + n, False)
        a(f"ds_write_b32 v12, v{RN+2*n} offset:{n*128}")
        a(f"ds_write_b32 v12, v{RN+2*n+1} offset:{n*128+64}")
    for n in range(3):
        a(f"ds_read_b128 {vr(RS+8*n,4)}, v13 offset:{n*128}")
        a(f"ds_read_b128 {vr(RS+8*n+4,4)}, v13 offset:{n*128+64}")
    for ks in range(PF1, PF):
        for grp in loads(ks):
            do_load(grp, ks)

    def reads(ks):
        b = AB + 40 * (ks & 1)
        o = (ks % 8) * 8192
        r = [f"ds_read_b128 {vr(b+28,4)}, v9 offset:{o+7*1024}",
             f"ds_read_b128 {vr(b+32,4)}, v10 offset:{o}",
             f"ds_read_b128 {vr(b+36,4)}, v11 offset:{o}"]
        r += [f"ds_read_b128 {vr(b+4*fr,4)}, v9 offset:{o+fr*1024}" for fr in (0, 1, 2, 3, 6, 4, 5)]
        return r

    def mfmas(ks):
        b = AB + 40 * (ks & 1)
        r = []
        acc = vr(ACC + 64, 4); c = "0" if ks == 0 else acc
        r.append(f"v_mfma_f32_16x16x32_bf16 {acc}, {vr(b+32,4)}, {vr(b+28,4)}, {c}")
        acc = vr(ACC + 68, 4); c = "0" if ks == 0 else acc
        r.append(f"v_mfma_f32_16x16x32_bf16 {acc}, {vr(b+28,4)}, {vr(b+36,4)}, {c}")
        for slot, fr in enumerate((0, 1, 2, 3, 6, 4, 5, 6)):
            for n in range(2):
                acc = vr(ACC + 32 * n + 4 * slot, 4)
                x = ar(72 * n + 4 * ks, 4)
                w = vr(b + 4 * fr, 4)
                c = "0" if ks == 0 else acc
                if slot < 5:
                    r.append(f"v_mfma_f32_16x16x32_bf16 {acc}, {w}, {x}, {c}")
                else:
                    r.append(f"v_mfma_f32_16x16x32_bf16 {acc}, {x}, {w}, {c}")
        return r

    CH = int(OPT.get("p1ch", 2))
    ts()
    vm.wait(("k", CH - 1))
    a("s_waitcnt lgkmcnt(0)")
    a("s_barrier")
    for t in reads(0):
        a(t)
    a("s_waitcnt lgkmcnt(0)")
    for ks in range(18):
        if ks in (0, 6, 12):
            ts()
        m = mfmas(ks)
        nxt = ks + 1
        rd = []
        if nxt < 18:
            if nxt % CH == 0:
                vm.wait(("k", min(nxt + CH - 1, 17)))
                a("s_barrier")
            if nxt % 8 == 0:
                a("v_add_u32 v9, 0x10000, v9")
                a("v_add_u32 v10, 0x10000, v10")
                a("v_add_u32 v11, 0x10000, v11")
            rd = reads(nxt)
        else:
            a("s_lshl_b32 s32, s27, 6")
            a(f"s_add_u32 s32, s32, {CQL}")
            a("v_add_u32 v12, s32, v7")
            a("s_lshl_b32 s33, s28, 6")
            a(f"s_add_u32 s33, s33, {CQL}")
            a("v_add_u32 v13, s33, v8")
            a("s_mov_b32 s34, 0x00010001")
            a("s_mov_b32 s35, 0x00010001")
        ld = loads(ks + PF) if ks + PF < 18 else []
        for i, t in enumerate(m):
            a(t)
            if i < len(rd):
                a(rd[i])
            if i >= 10 and (i - 10) % 2 == 0 and (i - 10) // 2 < len(ld):
                do_load(ld[(i - 10) // 2], ks + PF)
            if ks == 17 and i == 10:
                a("s_mov_b64 exec, s[34:35]")
                a(f"ds_write_b128 v12, {vr(ACC+64,4)}")
                a("s_mov_b64 exec, 0xffff")
                a(f"ds_write_b32 v13, v{ACC+68}")
                a("s_mov_b64 exec, -1")
        a("s_waitcnt lgkmcnt(0)")
    a("s_barrier")
    if "nopf" not in OPT:
        a("s_lshl_b32 s48, s13, 2")
        a("s_add_u32 s48, s48, s3")
        a("s_mul_i32 s49, s48, 5184")
        a(f"s_add_u32 s49, s49, {L['WO']}")
        a("s_sub_u32 s49, s49, s59")
        for i in range(6):
            if i == 4:
                a("s_add_u32 s49, s49, 4096")
            a(f"buffer_load_dwordx4 {ar(4*i,4)}, v3, s[4:7], s49 offen offset:{(i%4)*1024}")
        NPW = int(OPT.get("p1pw", 0))
        a("s_and_b32 s50, s12, 3")
        a("s_lshl_b32 s50, s50, 2")
        a("s_add_u32 s50, s50, s3")
        a(f"s_mul_i32 s50, s50, {SLB}")
        a(f"s_mul_i32 s51, s13, {NPW*1024}")
        a("s_add_u32 s50, s50, s51")
        a(f"s_add_u32 s50, s50, {L['W12']}")
        a("s_sub_u32 s50, s50, s59")
        for i in range(NPW):
            if i and i % 4 == 0:
                a("s_add_u32 s50, s50, 4096")
            a(f"buffer_load_dwordx4 {ar(24+4*i,4)}, v3, s[4:7], s50 offen offset:{(i%4)*1024}")
    a(f"v_add_u32 v9, {CQL}, v7")
    a(f"v_add_u32 v10, {CQL}, v8")
    for i, fr in enumerate((0, 1, 2, 3, 6)):
        a(f"ds_read_b128 {vr(CQN+4*i,4)}, v9 offset:{fr*64}")
    a(f"ds_read_b128 {vr(CQH,4)}, v12")
    for i, fr in enumerate((4, 5, 6)):
        a(f"ds_read_b32 v{CQS+i}, v10 offset:{fr*64}")
    a(f"ds_read_b32 v{CQS+3}, v13")

    KF = 88; QF = 112; VF = 128; ONE = 148; T = 152
    ts()
    for i in range(4):
        a(f"v_mul_f32 v{ACC+64+i}, v{ACC+64+i}, v{RN+4}")
        a(f"v_mul_f32 v{ACC+68+i}, v{ACC+68+i}, v{RS+16+i}")
    for n in (1, 0):
        for j in range(5):
            for i in range(4):
                a(f"v_mul_f32 v{ACC+32*n+4*j+i}, v{ACC+32*n+4*j+i}, v{RN+2*n}")
        for j in range(5, 8):
            for i in range(4):
                a(f"v_mul_f32 v{ACC+32*n+4*j+i}, v{ACC+32*n+4*j+i}, v{RS+8*n+i}")

    def corr_n(acc, n, cq):
        for i in range(4):
            a(f"v_fma_f32 v{acc+i}, -v{RN+2*n+1}, v{cq+i}, v{acc+i}")

    def corr_s(acc, n, cq):
        for i in range(4):
            a(f"v_fma_f32 v{acc+i}, -v{RS+8*n+4+i}, v{cq}, v{acc+i}")

    def pack2(dst, acc):
        a(f"v_cvt_pk_bf16_f32 v{dst}, v{acc}, v{acc+1}")
        a(f"v_cvt_pk_bf16_f32 v{dst+1}, v{acc+2}, v{acc+3}")

    a("v_cmp_eq_u32 s[36:37], 0, v5")
    a("v_cmp_eq_u32 s[38:39], 1, v5")
    a("v_lshlrev_b32 v12, 3, v1")
    a("s_mul_i32 s32, s3, 3072")
    a(f"s_add_u32 s33, s32, {EX}")
    a("v_add_u32 v13, s33, v12")
    a("s_lshl_b32 s32, s3, 9")
    a(f"s_add_u32 s32, s32, {EX}")
    a("s_cmp_eq_u32 s3, 3")
    a(f"s_cselect_b32 s32, {EX+4*3072}, s32")
    a("v_add_u32 v14, s32, v12")
    a("s_waitcnt lgkmcnt(0)")

    def conv_tile(n):
        ac = ACC + 32 * n
        tl = n + 1
        for i in range(5):
            corr_n(ac + 4 * i, n, CQN + 4 * i)
        for h in range(2):
            pack2(QF + (2 * n + h) * 4, ac + 4 * h)
            pack2(KF + (2 * tl + h) * 4, ac + 8 + 4 * h)
        pack2(T + 8 + 2 * n, ac + 16)
        for h in range(2):
            a(f"v_mov_b32 v{KF+(2*tl+h)*4+2}, v{T+8+2*n+1}")
            a(f"v_cndmask_b32 v{QF+(2*n+h)*4+2}, 0, v{T+8+2*n}, s[{36+2*h}:{37+2*h}]")
        for h in range(3):
            corr_s(ac + 20 + 4 * h, n, CQS + h)
            pack2(VF + 6 * h + 2 * tl, ac + 20 + 4 * h)

    corr_n(ACC + 64, 2, CQH)
    corr_s(ACC + 68, 2, CQS + 3)
    pack2(T + 12, ACC + 64)
    pack2(T + 14, ACC + 68)
    a(f"ds_write_b64 v14, {vr(T+12,2)}")
    a(f"ds_write_b64 v14, {vr(T+14,2)} offset:1536")
    conv_tile(1)
    a(f"ds_write_b64 v13, {vr(KF+16,2)} offset:{3072}")
    a(f"ds_write_b64 v13, {vr(KF+20,2)} offset:{3072+512}")
    a(f"ds_write_b64 v13, {vr(T+10,2)} offset:{3072+1024}")
    for h in range(3):
        a(f"ds_write_b64 v13, {vr(VF+6*h+4,2)} offset:{3072+1536+512*h}")
    conv_tile(0)
    for i in range(6):
        a(f"v_mov_b32 v{KF+4*i+3}, 0")
    for i in range(4):
        a(f"v_mov_b32 v{QF+4*i+3}, 0")
        a(f"v_mov_b32 v{ONE+i}, 0x3f803f80")
    a("s_waitcnt lgkmcnt(0)")
    ts()
    a("s_barrier")
    ts()
    a(f"ds_read_b64 {vr(KF,2)}, v13")
    a(f"ds_read_b64 {vr(KF+4,2)}, v13 offset:512")
    a(f"ds_read_b32 v{KF+2}, v13 offset:{1024+4}")
    a(f"ds_read_b32 v{KF+6}, v13 offset:{1024+4}")
    for h in range(3):
        a(f"ds_read_b64 {vr(VF+6*h,2)}, v13 offset:{1536+512*h}")
    SB = 16
    PB = 48
    MX = 64
    OB = 168
    OO = 72
    jobs = [(1, 0), (1, 1), (0, 0), (0, 1)]
    cs = (18 ** -0.5) * math.log2(math.e)
    a(f"s_mov_b32 s40, {f32(cs)}")
    for j, (n, h) in enumerate(jobs):
        if j == 2:
            a("s_waitcnt lgkmcnt(0)")
        q = vr(QF + (2 * n + h) * 4, 4)
        mp = MPA if n == 0 else MPB
        a(f"v_mfma_f32_16x16x32_bf16 {vr(SB+8*j,4)}, {vr(KF+(2*n+h)*4,4)}, {q}, {vr(mp,4)}")
        a(f"v_mfma_f32_16x16x32_bf16 {vr(SB+8*j+4,4)}, {vr(KF+(2*(n+1)+h)*4,4)}, {q}, {vr(MS,4)}")
    for j in range(4):
        s = SB + 8 * j; m = MX + 2 * j
        a(f"v_max3_f32 v{m}, v{s}, v{s+1}, v{s+2}")
        a(f"v_max3_f32 v{m+1}, v{s+3}, v{s+4}, v{s+5}")
        a(f"v_max3_f32 v{m}, v{m}, v{s+6}, v{s+7}")
        a(f"v_max_f32 v{m}, v{m}, v{m+1}")
    for j in range(4):
        a(f"v_mov_b32 v{MX+2*j+1}, v{MX+2*j}")
    for j in range(4):
        a(f"v_permlane16_swap_b32 v{MX+2*j}, v{MX+2*j+1}")
    for j in range(4):
        a(f"v_max_f32 v{MX+2*j}, v{MX+2*j}, v{MX+2*j+1}")
    for j in range(4):
        a(f"v_mov_b32 v{MX+2*j+1}, v{MX+2*j}")
    for j in range(4):
        a(f"v_permlane32_swap_b32 v{MX+2*j}, v{MX+2*j+1}")
    for j in range(4):
        a(f"v_max_f32 v{MX+2*j}, v{MX+2*j}, v{MX+2*j+1}")
    for j in range(4):
        a(f"v_mul_f32 v{MX+2*j}, s40, v{MX+2*j}")
    for j, (n, h) in enumerate(jobs):
        s = SB + 8 * j
        for i in range(8):
            a(f"v_fma_f32 v{s+i}, v{s+i}, s40, -v{MX+2*j}")
        for i in range(8):
            a(f"v_exp_f32 v{s+i}, v{s+i}")
        for i in range(4):
            a(f"v_cvt_pk_bf16_f32 v{PB+4*j+i}, v{s+2*i}, v{s+2*i+1}")
        p = vr(PB + 4 * j, 4)
        a(f"v_mfma_f32_16x16x32_bf16 {vr(OB+12*j+8,4)}, {vr(ONE,4)}, {p}, 0")
        a(f"v_mfma_f32_16x16x32_bf16 {vr(OB+12*j,4)}, {vr(VF+6*h+2*n,4)}, {p}, 0")
        a(f"v_mfma_f32_16x16x32_bf16 {vr(OB+12*j+4,4)}, {vr(VF+12+2*n,4)}, {p}, 0")
    a("s_mul_i32 s32, s17, 18432")
    a("s_lshl_b32 s33, s15, 10")
    a("s_add_u32 s33, s33, s32")
    a(f"s_add_u32 s33, s33, {OUT}")
    a("s_add_u32 s34, s33, 18432")
    a("s_lshr_b32 s35, s15, 3")
    a("s_lshl_b32 s35, s35, 10")
    a("s_and_b32 s36, s15, 3")
    a("s_lshl_b32 s36, s36, 8")
    a("s_add_u32 s35, s35, s36")
    a("s_lshr_b32 s36, s15, 2")
    a("s_and_b32 s36, s36, 1")
    a("s_lshl_b32 s36, s36, 3")
    a("s_add_u32 s35, s35, s36")
    a("s_add_u32 s35, s35, s32")
    a(f"s_add_u32 s35, s35, {OUT + 16*1024}")
    a("s_add_u32 s36, s35, 18432")
    a("v_lshlrev_b32 v12, 4, v4")
    a("v_mov_b32 v13, 0x40000000")
    a("v_cmp_eq_u32 vcc, 2, v5")
    a("v_cndmask_b32 v12, v13, v12, vcc")
    for j, (n, h) in enumerate(jobs):
        o = OB + 12 * j
        a(f"v_rcp_f32 v{o+8}, v{o+8}")
        for i in range(4):
            a(f"v_mul_f32 v{o+i}, v{o+i}, v{o+8}")
        a(f"v_mul_f32 v{o+4+2*h}, v{o+4+2*h}, v{o+8}")
        a(f"v_mul_f32 v{o+5+2*h}, v{o+5+2*h}, v{o+8}")
        a(f"v_cvt_pk_bf16_f32 v{OO+4*n+2*h}, v{o}, v{o+1}")
        a(f"v_cvt_pk_bf16_f32 v{OO+4*n+2*h+1}, v{o+2}, v{o+3}")
        a(f"v_cvt_pk_bf16_f32 v{OO+8+2*n+h}, v{o+4+2*h}, v{o+5+2*h}")
        if h == 1:
            a(f"buffer_store_dwordx4 {vr(OO+4*n,4)}, v3, s[4:7], s{33+n} offen sc1")
            a(f"buffer_store_dwordx2 {vr(OO+8+2*n,2)}, v12, s[4:7], s{35+n} offen")
    ts()
    if ts.on:
        a("s_waitcnt vmcnt(0)")
    ts(); ts(True)
    ts.store()
    footer(a, name)
    return name, a.text(), dict(vgpr=240 + 144, sgpr=96, accum=240), dict(grid=256, block=256, lds=163840)


def pq_decode(a):
    a("v_and_b32 v1, 63, v0")
    a("v_lshrrev_b32 v2, 6, v0")
    a("v_readfirstlane_b32 s3, v2")
    a("v_lshlrev_b32 v3, 4, v1")
    a("v_and_b32 v4, 15, v1")
    a("v_lshrrev_b32 v5, 4, v1")
    a("s_and_b32 s12, s2, 7")
    a("s_lshl_b32 s12, s12, 3")
    a("s_lshr_b32 s13, s2, 3")
    a("s_and_b32 s15, s13, 7")
    a("s_add_u32 s12, s12, s15")
    a("s_lshr_b32 s13, s13, 3")
    a("s_mul_i32 s14, s13, 9")
    a("s_add_u32 s14, s14, s3")
    a("s_mul_i32 s15, s12, 36864")
    a("s_lshr_b32 s16, s14, 1")
    a("s_lshl_b32 s16, s16, 10")
    a("s_and_b32 s17, s14, 1")
    a("s_lshl_b32 s17, s17, 3")
    a("s_add_u32 s16, s16, s17")
    a("s_add_u32 s16, s16, s15")


def pq_epilogue(a, V, XOUT, STOUT, SCR, T):
    a(f"s_add_u32 s18, s16, {XOUT}")
    a("s_add_u32 s19, s18, 18432")
    for n in range(2):
        v = V + 4 * n
        a(f"v_cvt_pk_bf16_f32 v{T+2*n}, v{v}, v{v+1}")
        a(f"v_cvt_pk_bf16_f32 v{T+2*n+1}, v{v+2}, v{v+3}")
        a(f"buffer_store_dwordx2 {vr(T+2*n,2)}, v3, s[4:7], s{18+n} offen")
    for n in range(2):
        v = V + 4 * n; s = T + 4 + 2 * n
        a(f"v_add_f32 v{s}, v{v}, v{v+1}")
        a(f"v_mul_f32 v{s+1}, v{v}, v{v}")
        a(f"v_add_f32 v{s}, v{s}, v{v+2}")
        a(f"v_fmac_f32 v{s+1}, v{v+1}, v{v+1}")
        a(f"v_add_f32 v{s}, v{s}, v{v+3}")
        a(f"v_fmac_f32 v{s+1}, v{v+2}, v{v+2}")
        a(f"v_fmac_f32 v{s+1}, v{v+3}, v{v+3}")
    a("s_lshl_b32 s20, s3, 10")
    a(f"s_add_u32 s20, s20, {SCR}")
    a(f"v_add_u32 v{T+8}, s20, v3")
    a(f"ds_write_b128 v{T+8}, {vr(T+4,4)}")
    a("s_lshl_b32 s20, s3, 2")
    a(f"v_add_u32 v{T+9}, s20, v3")
    a("s_lshl_b32 s20, s12, 10")
    a("s_lshl_b32 s21, s13, 3")
    a("s_add_u32 s20, s20, s21")
    a("s_lshr_b32 s21, s3, 1")
    a("s_lshl_b32 s21, s21, 9")
    a("s_add_u32 s20, s20, s21")
    a("s_and_b32 s21, s3, 1")
    a("s_lshl_b32 s21, s21, 2")
    a("s_add_u32 s20, s20, s21")
    a(f"s_add_u32 s20, s20, {STOUT}")
    a(f"v_lshlrev_b32 v{T+8}, 5, v4")
    a("s_waitcnt lgkmcnt(0)")
    a("s_barrier")
    a("s_cmp_ge_u32 s3, 4")
    a("s_cbranch_scc1 " + a.endlabel)
    R = T + 12
    for w in range(9):
        a(f"ds_read_b32 v{R+w}, v{T+9} offset:{SCR+w*1024}")
    a("s_waitcnt lgkmcnt(0)")
    for st in ((0, 1), (2, 3), (4, 5), (6, 7), (0, 2), (4, 6), (0, 8), (0, 4)):
        a(f"v_add_f32 v{R+st[0]}, v{R+st[0]}, v{R+st[1]}")
    xg_reduce(a, "v_add_f32", R, T)
    a(f"buffer_store_dword v{R}, v{T+8}, s[4:7], s20 offen")


def unpack_add(a, dst, src):
    a(f"v_lshlrev_b32 v{src+2}, 16, v{src}")
    a(f"v_and_b32 v{src}, 0xffff0000, v{src}")
    a(f"v_lshlrev_b32 v{src+3}, 16, v{src+1}")
    a(f"v_and_b32 v{src+1}, 0xffff0000, v{src+1}")
    a(f"v_add_f32 v{dst}, v{dst}, v{src+2}")
    a(f"v_add_f32 v{dst+1}, v{dst+1}, v{src}")
    a(f"v_add_f32 v{dst+2}, v{dst+2}, v{src+3}")
    a(f"v_add_f32 v{dst+3}, v{dst+3}, v{src+1}")


def gen_p2(layer):
    name = f"p2l{layer}_kernel"
    XIN = L["X0"] if layer == 0 else L["X2"]
    OIN = L[f"O{layer}"]
    a = Asm(); a.endlabel = f"{name}_end"
    vm = Cnt(a, "vmcnt", 63); lg = Cnt(a, "lgkmcnt", 15)
    header(a, name, 256)
    ts = Stamps(a, name)
    ts(True); ts()
    a("s_load_dwordx2 s[4:5], s[0:1], 80")
    pq_decode(a)
    a("s_lshl_b32 s20, s3, 12")
    a("s_add_u32 s21, s15, s20")
    a(f"s_add_u32 s21, s21, {OIN}")
    a("s_mul_i32 s22, s14, 18432")
    a(f"s_add_u32 s22, s22, {L['WO']}")
    a("s_sub_u32 s22, s22, s59")
    a(f"s_add_u32 s23, s16, {XIN}")
    a("s_add_u32 s24, s23, 18432")
    a("s_mov_b32 m0, s20")
    a("s_waitcnt lgkmcnt(0)")
    a("s_add_u32 s4, s4, s59")
    a("s_addc_u32 s5, s5, 0")
    a("s_and_b32 s5, s5, 0xffff")
    a(f"s_mov_b32 s6, {WS_BYTES}")
    a("s_mov_b32 s7, 0x00020000")
    A = 16; B = 88; ACC = 8; RES = 120; T = 128
    for i in range(4):
        a(f"buffer_load_dwordx4 v3, s[4:7], s21 offen offset:{i*1024} lds"); vm.issue("o")

    def aload(ks):
        if ks and ks % 4 == 0:
            a("s_add_u32 s22, s22, 4096")
        a(f"buffer_load_dwordx4 {vr(A+4*ks,4)}, v3, s[4:7], s22 offen offset:{(ks%4)*1024}"); vm.issue(("a", ks))
    NA0 = int(OPT.get("p2na0", 2)); DA = int(OPT.get("p2da", 10))
    for ks in range(NA0):
        aload(ks)
    ts()
    vm.wait("o")
    ts()
    a("s_barrier")
    ts()
    NB = 4
    a(f"buffer_load_dwordx2 {vr(RES,2)}, v3, s[4:7], s23 offen"); vm.issue("r")
    a(f"buffer_load_dwordx2 {vr(RES+4,2)}, v3, s[4:7], s24 offen"); vm.issue("r")
    for ks in range(NA0, DA):
        aload(ks)

    def rd(ks):
        for n in range(2):
            a(f"ds_read_b128 {vr(B+8*(ks%NB)+4*n,4)}, v3 offset:{n*18432+ks*1024}"); lg.issue(("b", ks))
    for ks in range(NB - 1):
        rd(ks)
    for ks in range(18):
        if ks + DA < 18:
            aload(ks + DA)
        if ks + NB - 1 < 18:
            rd(ks + NB - 1)
        vm.wait(("a", ks))
        lg.wait(("b", ks))
        for n in range(2):
            acc = vr(ACC + 4 * n, 4)
            a(f"v_mfma_f32_16x16x32_bf16 {acc}, {vr(A+4*ks,4)}, {vr(B+8*(ks%NB)+4*n,4)}, {'0' if ks == 0 else acc}")
    a("s_lshl_b32 s25, s2, 6")
    a(f"s_add_u32 s25, s25, {L[f'FL{layer}']}")
    a("s_cmp_eq_u32 s3, 0")
    a(f"s_cselect_b32 s25, s25, {OOB}")
    a("v_lshlrev_b32 v6, 2, v4")
    a("v_mov_b32 v7, 0")
    a("buffer_store_dword v7, v6, s[4:7], s25 offen")
    vm.q = []
    ts()
    unpack_add(a, ACC, RES)
    unpack_add(a, ACC + 4, RES + 4)
    if ts.on:
        a.endlabel = f"{name}_ts"
    pq_epilogue(a, ACC, L[f"X1_{layer}"], L[f"ST1_{layer}"], 36864, 16)
    if ts.on:
        a.label(f"{name}_ts")
        ts()
        a("s_waitcnt vmcnt(0)")
    ts(); ts(True)
    ts.store()
    footer(a, name)
    return name, a.text(), dict(vgpr=128, sgpr=96, accum=128), dict(grid=256, block=576, lds=36864 + 9216)


def gen_p4(layer):
    name = f"p4l{layer}_kernel"
    a = Asm(); a.endlabel = f"{name}_end"
    vm = Cnt(a, "vmcnt", 63)
    header(a, name, 256)
    a("s_load_dwordx2 s[4:5], s[0:1], 80")
    a("s_load_dwordx4 s[24:27], s[0:1], 56")
    a("v_and_b32 v1, 63, v0")
    a("v_lshrrev_b32 v2, 6, v0")
    a("v_readfirstlane_b32 s3, v2")
    a("v_lshlrev_b32 v3, 4, v1")
    a("v_and_b32 v4, 15, v1")
    a("v_lshrrev_b32 v5, 4, v1")
    a("s_mul_i32 s12, s2, 9")
    a("s_add_u32 s12, s12, s3")
    a("s_lshl_b32 s12, s12, 10")
    a("s_and_b32 s13, s2, 1")
    a("s_mul_i32 s14, s13, 9")
    a("s_add_u32 s14, s14, s3")
    a("s_lshl_b32 s21, s14, 6")
    a(f"s_add_u32 s20, s12, {L['PART1'] if 'reuse' in OPT else L[f'PART{layer}']}")
    if "reuse" in OPT:
        a("s_sub_u32 s20, s20, s59")
    a(f"s_add_u32 s22, s12, {L[f'X1_{layer}']}")
    a("v_lshlrev_b32 v6, 3, v5")
    a("s_waitcnt lgkmcnt(0)")
    a("s_add_u32 s4, s4, s59")
    a("s_addc_u32 s5, s5, 0")
    a("s_and_b32 s5, s5, 0xffff")
    a(f"s_mov_b32 s6, {WS_BYTES}")
    a("s_mov_b32 s7, 0x00020000")
    srd(a, 28, 24, D * 2)
    P = 24; ACC = 8; BB = 16
    a(f"buffer_load_dwordx2 {vr(BB,2)}, v6, s[28:31], s21 offen"); vm.issue("r")
    a(f"buffer_load_dwordx2 {vr(BB+2,2)}, v6, s[28:31], s21 offen offset:32"); vm.issue("r")
    a(f"buffer_load_dwordx4 {vr(P,4)}, v3, s[4:7], s22 offen"); vm.issue(("p", 0))
    for s in range(8):
        a(f"buffer_load_dwordx4 {vr(P+4+4*s,4)}, v3, s[4:7], s20 offen"); vm.issue(("p", s + 1))
        a(f"s_add_u32 s20, s20, {XT}")
    a("v_mov_b32 v6, 0x00003f80")
    a("v_mov_b32 v7, 0x3f800000")
    vm.wait("r")
    for j in range(4):
        a(f"v_lshlrev_b32 v{ACC+2*j}, 16, v{BB+j}")
        a(f"v_and_b32 v{ACC+2*j+1}, 0xffff0000, v{BB+j}")
    for s in range(9):
        vm.wait(("p", s))
        for j in range(4):
            a(f"v_dot2c_f32_bf16 v{ACC+2*j}, v{P+4*s+j}, v6")
            a(f"v_dot2c_f32_bf16 v{ACC+2*j+1}, v{P+4*s+j}, v7")
    for j in range(4):
        a(f"v_cvt_pk_bf16_f32 v{16+j}, v{ACC+2*j}, v{ACC+2*j+1}")
    a("s_cmp_lg_u32 s59, 0")
    a(f"s_cbranch_scc1 {name}_fin")
    if True:
        a(f"s_add_u32 s18, s12, {L['X2']}")
        a("buffer_store_dwordx4 v[16:19], v3, s[4:7], s18 offen sc1")
        a(f"v_add_f32 v20, v{ACC}, v{ACC+1}")
        a(f"v_mul_f32 v21, v{ACC}, v{ACC}")
        a(f"v_fmac_f32 v21, v{ACC+1}, v{ACC+1}")
        for j in range(2, 8):
            a(f"v_add_f32 v20, v20, v{ACC+j}")
            a(f"v_fmac_f32 v21, v{ACC+j}, v{ACC+j}")
        a("v_lshlrev_b32 v22, 3, v0")
        a("ds_write_b64 v22, v[20:21]")
        a("s_waitcnt lgkmcnt(0)")
        a("s_barrier")
        a("s_cmp_lg_u32 s3, 0")
        a("s_cbranch_scc1 " + a.endlabel)
        for w in range(9):
            a(f"ds_read_b64 {vr(24+2*w,2)}, v22 offset:{w*512}")
        a("s_waitcnt lgkmcnt(0)")
        for st in ((0, 1), (2, 3), (4, 5), (6, 7), (0, 2), (4, 6), (0, 4), (0, 8)):
            for i in range(2):
                a(f"v_add_f32 v{24+2*st[0]+i}, v{24+2*st[0]+i}, v{24+2*st[1]+i}")
        a("v_mov_b32 v26, v24")
        a("v_mov_b32 v27, v25")
        a("v_permlane16_swap_b32 v24, v26")
        a("v_permlane16_swap_b32 v25, v27")
        a("v_add_f32 v24, v24, v26")
        a("v_add_f32 v25, v25, v27")
        a("v_lshlrev_b32 v22, 5, v4")
        a("v_lshrrev_b32 v5, 1, v5")
        a("v_lshl_add_u32 v22, v5, 3, v22")
        a("s_lshr_b32 s20, s2, 1")
        a("s_lshl_b32 s20, s20, 9")
        a("s_lshl_b32 s21, s13, 4")
        a("s_add_u32 s20, s20, s21")
        a(f"s_add_u32 s20, s20, {L['ST2']}")
        a("buffer_store_dwordx2 v[24:25], v22, s[4:7], s20 offen")
        a("s_endpgm")
        lds = 4608
        a.label(f"{name}_fin")
        srd(a, 8, 26, XT)
        a("v_mul_u32_u24 v6, 1152, v4")
        a("v_lshl_add_u32 v6, v5, 3, v6")
        a("s_lshr_b32 s20, s2, 1")
        a("s_mul_i32 s20, s20, 18432")
        a("s_add_u32 s20, s20, s21")
        a("buffer_store_dwordx2 v[16:17], v6, s[8:11], s20 offen")
        a("buffer_store_dwordx2 v[18:19], v6, s[8:11], s20 offen offset:32")
    footer(a, name)
    return name, a.text(), dict(vgpr=64, sgpr=64, accum=64), dict(grid=256, block=576, lds=lds)


def gen_p3(layer):
    name = f"p3l{layer}_kernel"
    XIN = L[f"X1_{layer}"]; STI = L[f"ST1_{layer}"]; PART = L[f"PART{layer}"]
    HX = L[f"HX{layer}"]; FL = L[f"FL{layer}"]
    if "reuse" in OPT:
        HX = L["HX1"]; PART = L["PART1"]
    a = Asm()
    vm = Cnt(a, "vmcnt", 63); lg = Cnt(a, "lgkmcnt", 15)
    header(a, name, 256)
    ts = Stamps(a, name)
    ts(True); ts()
    BUD = float(OPT.get("p3bud", 7))
    RA = 7
    N0 = int(OPT.get("p3n0", 14))
    PACE0 = int(OPT.get("p3pace0", 1)); PACE1 = int(OPT.get("p3pace1", 3))
    DFLAG = int(OPT.get("p3dflag", 45)); DPOLL = int(OPT.get("p3dpoll", 35)); DCHK = int(OPT.get("p3dchk", 40))
    K1, K3, RI, PV = 8, 10, 12, 14
    T = 16; AB = 32; AC1 = 68; HO = 164; OST = 236; BX = 244
    HP = 144
    a("s_load_dwordx2 s[4:5], s[0:1], 80")
    a("v_and_b32 v1, 63, v0")
    a("v_lshrrev_b32 v2, 6, v0")
    a("v_readfirstlane_b32 s3, v2")
    a("v_lshlrev_b32 v3, 4, v1")
    a("v_add_u32 v4, 0x10000, v3")
    a("v_add_u32 v5, 0x20000, v3")
    a("v_add_u32 v6, 18432, v3")
    a("v_and_b32 v7, 15, v1")
    a("v_lshlrev_b32 v7, 5, v7")
    a("v_lshrrev_b32 v2, 4, v1")
    a("v_lshl_add_u32 v7, v2, 3, v7")
    a("s_and_b32 s12, s2, 7")
    a("s_lshr_b32 s13, s2, 3")
    a("s_lshr_b32 s14, s12, 2")
    a("s_lshl_b32 s14, s14, 3")
    a("s_lshr_b32 s15, s13, 2")
    a("s_add_u32 s14, s14, s15")
    a("s_and_b32 s15, s12, 3")
    a("s_lshl_b32 s15, s15, 2")
    a("s_and_b32 s16, s13, 3")
    a("s_add_u32 s15, s15, s16")
    a("s_lshl_b32 s16, s14, 3")
    a("s_lshl_b32 s17, s3, 1")
    a("s_add_u32 s16, s16, s17")
    a("s_mul_i32 s17, s16, 18432")
    a(f"s_add_u32 s18, s17, {XIN}")
    a("s_mul_i32 s19, s3, 6144")
    a(f"s_mul_i32 s20, s15, {SLB}")
    a("s_add_u32 s20, s20, s19")
    a(f"s_add_u32 s20, s20, {L['W12']}")
    a("s_sub_u32 s20, s20, s59")
    a("s_lshl_b32 s21, s16, 9")
    a(f"s_add_u32 s21, s21, {STI}")
    a("s_lshl_b32 s22, s14, 4")
    a("s_add_u32 s22, s22, s15")
    a("s_lshl_b32 s22, s22, 2")
    a("s_add_u32 s22, s22, s3")
    a("s_xor_b32 s23, s22, 4")
    a("s_mul_i32 s24, s22, 18432")
    a(f"s_add_u32 s24, s24, {HX}")
    a("s_mul_i32 s25, s23, 18432")
    a(f"s_add_u32 s25, s25, {HX}")
    a("s_lshl_b32 s26, s22, 4")
    a(f"s_add_u32 s26, s26, {FL}")
    a("s_lshl_b32 s27, s23, 4")
    a(f"s_add_u32 s27, s27, {FL}")
    a("s_lshr_b32 s28, s15, 1")
    a(f"s_mul_i32 s28, s28, {XT}")
    a("s_add_u32 s28, s28, s17")
    a("s_and_b32 s29, s15, 1")
    a("s_mul_i32 s29, s29, 9216")
    a("s_add_u32 s28, s28, s29")
    a(f"s_add_u32 s28, s28, {PART}")
    a("s_mov_b32 s31, 0")
    if "reuse" in OPT:
        for r in (24, 25, 28):
            a(f"s_sub_u32 s{r}, s{r}, s59")
    a("s_waitcnt lgkmcnt(0)")
    a("s_add_u32 s4, s4, s59")
    a("s_addc_u32 s5, s5, 0")
    a("s_and_b32 s5, s5, 0xffff")
    a(f"s_mov_b32 s6, {WS_BYTES}")
    a("s_mov_b32 s7, 0x00020000")
    for n in range(2):
        a(f"buffer_load_dwordx2 {vr(T+2*n,2)}, v7, s[4:7], s21 offen offset:{n*512}"); vm.issue("st")

    U = []
    for k in range(19):
        for t in range(G0):
            for mh in range(2):
                U.append(("p1", t, k, mh))
    for t in range(G0, 9):
        for k in range(19):
            for mh in range(2):
                U.append(("p1", t, k, mh))
    for hk in range(KO):
        for dt in range(9):
            for mh in range(2):
                U.append(("p2", dt, hk, mh))
    for dt in range(9):
        for hk in range(KO, 18):
            for mh in range(2):
                U.append(("p2", dt, hk, mh))
    NU = len(U)
    assert NU == 666

    def mfma(i, n):
        kind, t, k, mh = U[i]
        if kind == "p1":
            acc = vr(AC1 + 16 * (t % 6) + (2 * mh + n) * 4, 4)
            b = ar((18 * n + k) * 4, 4) if k < 18 else vr(BX + 4 * n, 4)
        else:
            acc = ar(16 * t + (2 * mh + n) * 4, 4)
            b = vr(HO + (2 * k + n) * 4, 4) if k < 9 else ar(HP + (2 * (k - 9) + n) * 4, 4)
        a(f"v_mfma_f32_16x16x32_bf16 {acc}, {vr(AB+4*(i%9),4)}, {b}, {'0' if k == 0 else acc}")

    LQ = []

    def mk_w(c, i):
        def fn():
            if i == 0:
                a(f"s_add_u32 m0, s19, {(c % 6) * 24576}")
            if i == 4:
                a("s_add_u32 m0, m0, 4096")
                a("s_add_u32 s20, s20, 4096")
            if not ("p3nodma" in OPT and c >= 6):
                a(f"buffer_load_dwordx4 v3, s[4:7], s20 offen offset:{(i%4)*1024} lds"); vm.issue(("w", c))
            if i == 5:
                a(f"s_add_u32 s20, s20, {24576-4096}")
        return fn

    def mk_y(k, n):
        def fn():
            a(f"buffer_load_dwordx4 {ar((18*n+k)*4,4)}, {'v6' if n else 'v3'}, s[4:7], s18 offen offset:{(k%4)*1024}"); vm.issue(("y", k))
            if k % 4 == 3 and n == 1:
                a("s_add_u32 s18, s18, 4096")
        return fn
    for c in range(NCHUNK):
        for i in range(6):
            LQ.append((24 * c - RA - 0.5 + i * 0.01, c - 4 if c >= 6 else -1, 2 if i in (0, 5) else (3 if i == 4 else 1), mk_w(c, i), "w"))
    for k in range(18):
        for n in range(2):
            LQ.append((k * G0 * 2 - 0.1 + n * 0.01, -1, 1, mk_y(k, n), "y"))
    LQ.sort(key=lambda x: x[0])
    ny_left = [36]

    def lq_issue():
        it = LQ.pop(0)
        it[3]()
        if it[4] == "y":
            ny_left[0] -= 1
        return it[2]

    for _ in range(N0):
        lq_issue()
    ts()
    kk = math_sqrt(2.0 / PI)
    C1 = -2.0 * kk * LOG2E
    C3 = C1 * 0.044715
    a("v_mov_b32 v7, 0")
    vm.wait("st")
    for sw in ("v_permlane16_swap_b32", "v_permlane32_swap_b32"):
        for r in range(4):
            a(f"v_mov_b32 v{T+4+r}, v{T+r}")
        for r in range(4):
            a(f"{sw} v{T+r}, v{T+4+r}")
        for r in range(4):
            a(f"v_add_f32 v{T+r}, v{T+r}, v{T+4+r}")
    for n in range(2):
        m = T + 2 * n; r = T + 8 + n; t = T + 4 + n; bx = BX + 4 * n
        stats_finish(a, m, m + 1, r, T + 10 + n, t, True)
        a(f"v_rcp_f32 v{RI+n}, v{r}")
        a(f"v_mul_f32 v{K1+n}, {f32(C1)}, v{r}")
        a(f"v_mul_f32 v{K3+n}, v{r}, v{r}")
        a(f"v_mul_f32 v{K3+n}, v{K3+n}, v{r}")
        a(f"v_mul_f32 v{K3+n}, {f32(C3)}, v{K3+n}")
        a(f"v_cvt_pk_bf16_f32 v{t}, v{RI+n}, v{RI+n}")
        a(f"v_and_b32 v{t}, 0xffff0000, v{t}")
        a(f"v_sub_f32 v{t}, v{RI+n}, v{t}")
        a(f"v_cvt_pk_bf16_f32 v{bx}, v{RI+n}, v{t}")
        a(f"v_sub_f32 v{m}, 0, v{m}")
        a(f"v_cvt_pk_bf16_f32 v{bx+1}, v{m}, v{m}")
        a(f"v_and_b32 v{t}, 0xffff0000, v{bx+1}")
        a(f"v_sub_f32 v{t}, v{m}, v{t}")
        a(f"v_cvt_pk_bf16_f32 v{bx+2}, v{t}, v7")
        a(f"v_mov_b32 v{bx+3}, 0")

    EV = {}
    cur = [0]
    slow = []

    def ev(g, cost, fn):
        EV.setdefault(g, []).append((cost, fn))

    def mk(text):
        return lambda: a(text)

    def mk_hstore(q):
        def fn():
            if "p3nox" in OPT:
                hl_done.add(q)
                return
            if q % 4 == 0 and q:
                a("s_add_u32 s24, s24, 4096")
            a(f"buffer_store_dwordx4 {vr(HO+4*q,4)}, v3, s[4:7], s24 offen offset:{(q%4)*1024} sc1"); vm.issue(("hs", q))
            if q % 6 == 5:
                b = q // 6
                g = cur[0] + DFLAG
                ev(g, 3, lambda: flag_store(b))
                ev(g + DPOLL, 1, lambda: poll_issue(b))
                ev(g + DPOLL + DCHK, 4, lambda: poll_check(b))
        return fn

    def flag_store(b):
        a(f"v_mov_b32 v{PV}, {b+1}")
        vm.wait(("hs", 6 * b + 5))
        a("s_mov_b64 exec, 1")
        a(f"buffer_store_dword v{PV}, v7, s[4:7], s26 offen sc1"); vm.issue("fs")
        a("s_mov_b64 exec, -1")

    def poll_issue(b):
        a("s_mov_b64 exec, 1")
        a(f"buffer_load_dword v2, v7, s[4:7], s27 offen sc1"); vm.issue(("pl", b))
        a("s_mov_b64 exec, -1")

    def poll_check(b):
        vm.wait(("pl", b))
        a("v_readfirstlane_b32 s30, v2")
        a(f"s_cmp_gt_u32 s30, {b}")
        a.nf(f"s_cbranch_scc0 {name}_w{b}")
        a.label(f"{name}_r{b}", safe=False)
        slow.append(b)
        for i in range(6):
            ev(cur[0] + 1 + 2 * i, 1, mk_hload(6 * b + i))

    def mk_hload(q):
        def fn():
            if q % 4 == 0 and q:
                a("s_add_u32 s25, s25, 4096")
            a(f"buffer_load_dwordx4 {ar(HP+4*q,4)}, v3, s[4:7], s25 offen offset:{(q%4)*1024} sc1"); vm.issue(("hl", q))
            hl_done.add(q)
        return fn
    hl_done = set()

    SK = float(OPT.get("p3skew", 2.5))
    gel = []

    def add_gelu(t, ready):
        ac = AC1 + 16 * (t % 6)
        for v in range(16):
            n = v // 8; mh = (v // 4) % 2; i = v % 4
            x = ac + (2 * mh + n) * 4 + i; tm = T + v
            ops = [(1, f"v_mul_f32 v{tm}, v{x}, v{x}"), (1, f"v_fma_f32 v{tm}, v{tm}, v{K3+n}, v{K1+n}"), (1, f"v_mul_f32 v{tm}, v{tm}, v{x}"),
                   (2, f"v_exp_f32 v{tm}, v{tm}"), (1, f"v_fma_f32 v{tm}, v{tm}, v{RI+n}, v{RI+n}"), (2, f"v_rcp_f32 v{tm}, v{tm}"),
                   (1, f"v_mul_f32 v{x}, v{x}, v{tm}")]
            if "p3pk" in OPT:
                sel = "op_sel:[0,1,1] op_sel_hi:[1,1,1]" if n else "op_sel_hi:[1,0,0]"
                c = float(OPT["p3pk"])
                if v % 2 == 0:
                    X = vr(x, 2); TM = vr(tm, 2)
                    ops = [(c, f"v_pk_mul_f32 {TM}, {X}, {X}"), (c, f"v_pk_fma_f32 {TM}, {TM}, {vr(K3,2)}, {vr(K1,2)} {sel}"), (c, f"v_pk_mul_f32 {TM}, {TM}, {X}"),
                           (2, f"v_exp_f32 v{tm}, v{tm}"), None, (2, f"v_rcp_f32 v{tm}, v{tm}"), None]
                else:
                    X = vr(x - 1, 2); TM = vr(tm - 1, 2)
                    ops = [None, None, None, (2, f"v_exp_f32 v{tm}, v{tm}"), (c, f"v_pk_fma_f32 {TM}, {TM}, {vr(RI,2)}, {vr(RI,2)} {sel}"),
                           (2, f"v_rcp_f32 v{tm}, v{tm}"), (c, f"v_pk_mul_f32 {X}, {X}, {TM}")]
                for st, o in enumerate(ops):
                    if o is None:
                        continue
                    key = 16 * t + (v | 1) + st * SK + (0.3 if v % 2 else 0)
                    gel.append((key, ready, o[0], mk(o[1]), None))
                ops = []
            if "p3nogelu" in OPT:
                ops = []
            for st, (c, tx) in enumerate(ops):
                gel.append((16 * t + v + st * SK, ready, c, mk(tx), None))
            if v % 2 == 1:
                gel.append((16 * t + v + 6 * SK + 1.2, ready, 1, mk(f"v_cvt_pk_bf16_f32 v{HO+8*t+v//2}, v{x-1}, v{x}"), None))
            if v % 8 == 7:
                q = 2 * t + n
                gel.append((16 * t + v + 6 * SK + 2.4, ready, 1, mk_hstore(q), ("h", q)))
    last_idx = {}
    for i, u in enumerate(U):
        last_idx[u[:2]] = i
    for t in range(9):
        add_gelu(t, last_idx[("p1", t)] + 2)
    gel.sort(key=lambda x: x[0])
    VQ = [(g[1], g[2], g[3], g[4]) for g in gel]
    for dt in range(9):
        rdy = last_idx[("p2", dt)] + 2
        for n in range(2):
            o = OST + 4 * n
            for mh in range(2):
                for i in range(4):
                    VQ.append((rdy, 1, mk(f"v_accvgpr_read_b32 v{T+8*n+4*mh+i}, a{16*dt+(2*mh+n)*4+i}"), None))
            for e in range(4):
                VQ.append((rdy, 1, mk(f"v_cvt_pk_bf16_f32 v{o+e}, v{T+8*n+2*e}, v{T+8*n+2*e+1}"), None))

            def st(n=n, o=o, dt=dt):
                if dt % 4 == 0 and dt and n == 0:
                    a("s_add_u32 s28, s28, 4096")
                a(f"buffer_store_dwordx4 {vr(o,4)}, {'v6' if n else 'v3'}, s[4:7], s28 offen offset:{(dt%4)*1024} sc1"); vm.issue("po")
            VQ.append((rdy, 1, st, None))
    done_tags = set()

    def vq_pop():
        it = VQ.pop(0)
        assert it[0] - 2 < cur[0] + (1 if cur[0] == NU - 1 else 0), (it[0], cur[0])
        it[2]()
        if it[3]:
            done_tags.add(it[3])
        return it[1]

    def dsread(f):
        if "p3nolds" in OPT and f >= 9:
            return
        off = ((f // 24) % 6) * 24576 + (f % 24) * 1024
        base = "v3" if off < 65536 else ("v4" if off < 131072 else "v5")
        a(f"ds_read_b128 {vr(AB+4*(f%9),4)}, {base} offset:{off % 65536}"); lg.issue(("a", f))

    bar_done = [-1]

    def chunk_barrier(c):
        while LQ and LQ[0][0] <= 24 * c - RA:
            lq_issue()
        vm.wait(("w", c))
        a("s_barrier")
        bar_done[0] = c

    ts()
    chunk_barrier(0)
    ts()
    for f in range(RA):
        dsread(f)
    last_lq = -10
    forced = 0
    for i in range(NU):
        cur[0] = i
        kind, t, k, mh = U[i]
        if kind == "p1" and t == 0 and mh == 0 and k < 18:
            while LQ and LQ[0][0] <= i:
                lq_issue()
            vm.wait(("y", k))
        if kind == "p2":
            if k < 9:
                while ("h", 2 * k + 1) not in done_tags:
                    vq_pop(); forced += 1
            else:
                q = 2 * (k - 9) + 1
                while q not in hl_done:
                    g = min(EV)
                    for c, fn in EV.pop(g):
                        fn()
                    forced += 1000
                vm.wait(("hl", q))
        if kind == "p1" and k == 0 and t >= 6:
            while ("h", 2 * (t - 6) + 1) not in done_tags:
                vq_pop(); forced += 1
        if i % 3 == 0:
            lg.wait(("a", min(i + 2, NU - 1)))
        if ts.on and i in (38 * G0, 190, 266, 342, 396, 450, 504, 558, 612):
            ts(); lg.q = []
        mfma(i, 0)
        bud = BUD / 2
        for c, fn in EV.pop(i, []):
            fn(); bud -= c
        pace = PACE0 if ny_left[0] else PACE1
        if LQ and LQ[0][1] <= bar_done[0] and i - last_lq >= pace:
            bud -= lq_issue(); last_lq = i
        while VQ and VQ[0][0] <= i and bud >= VQ[0][1] - 0.5:
            bud -= vq_pop()
        mfma(i, 1)
        if "p3idle" in OPT:
            a(f"s_nop {OPT['p3idle']}")
        bud += BUD / 2 - 1 / 3
        if i + RA < NU:
            if (i + RA) % 24 == 0:
                chunk_barrier((i + RA) // 24); bud -= 2
            dsread(i + RA); bud -= 1
        while VQ and VQ[0][0] <= i and bud >= VQ[0][1] - 0.5:
            bud -= vq_pop()
    assert not EV, EV.keys()
    ts()
    while VQ:
        vq_pop()
    print(name, "forced:", forced, file=sys.stderr)
    ts()
    if ts.on:
        a("s_waitcnt vmcnt(0)")
    ts(); ts(True)
    ts.store()
    a("s_endpgm")
    for b in slow:
        a.label(f"{name}_w{b}")
        a("s_add_u32 s31, s31, 1")
        a("s_cmp_gt_u32 s31, 0x4000")
        a(f"s_cbranch_scc1 {name}_r{b}")
        a("s_sleep 2")
        a(f"buffer_load_dword v2, v7, s[4:7], s27 offen sc1")
        a("s_waitcnt vmcnt(0)")
        a("v_readfirstlane_b32 s30, v2")
        a(f"s_cmp_gt_u32 s30, {b}")
        a(f"s_cbranch_scc0 {name}_w{b}")
        a(f"s_branch {name}_r{b}")
    footer(a, name)
    return name, a.text(), dict(vgpr=512, sgpr=102, accum=256), dict(grid=256, block=256, lds=147456)


def main():
    ks = [gen_p0(), gen_p1(0), gen_p2(0), gen_p3(0), gen_p4(0)]
    allk = [ks[0]] + ks[1:] + [(k[0].replace("l0_", "l1_"), "", k[2], k[3]) for k in ks[1:]]
    seq = allk
    if "seq" in OPT:
        byname = {k[0][:-7]: k for k in allk}
        seq = [byname[n] for n in OPT["seq"].split("+")]
    ref = open(f"cdna_kernels/{NAME}.s.ref").read().split("\n")
    hdr = [ln for ln in ref if ln.startswith(";") and "@launch" not in ln and "Override launch" not in ln and "grid=ceil" not in ln]
    out = hdr[:]
    for name, _, _, g in seq:
        out.append(f"; @launch kernel={name} grid=({g['grid']},1,1) block=({g['block']},1,1) lds={g['lds']}")
    out.append('.amdgcn_target "amdgcn-amd-amdhsa--gfx950"')
    out.append(".text")
    for _, txt, _, _ in ks:
        out.append(txt)
    out.append("code_end:")
    out.append("    s_endpgm")
    out.append('.section .rodata,"a"')
    for name, _, kd, _ in allk:
        out.append(KD.format(name=name, **kd))
    path = sys.argv[1] if len(sys.argv) > 1 else f"cdna_kernels/{NAME}.s"
    open(path, "w").write("\n".join(out))
    json.dump(L, open("layout.json", "w"))
    print("written", path, "ws end", L["END"])


if __name__ == "__main__":
    main()
```

```python
import re

REG_RE = re.compile(r"\b([vas])\[(\d+):(\d+)\]|\b([vas])(\d+)\b|\b(vcc|exec|m0|scc)(?:_lo|_hi)?\b")
TRANS = ("v_exp_f32", "v_log_f32", "v_rcp_f32", "v_rsq_f32", "v_sqrt_f32", "v_sin_f32", "v_cos_f32")


def regs_of(tok):
    out = []
    for m in REG_RE.finditer(tok):
        if m.group(1):
            out += [(m.group(1), i) for i in range(int(m.group(2)), int(m.group(3)) + 1)]
        elif m.group(4):
            out.append((m.group(4), int(m.group(5))))
        else:
            out.append((m.group(6), 0))
    return out


class Ins:
    __slots__ = ("text", "op", "cls", "wr", "rd", "srcc", "passes", "ws", "wide_store_data", "ab")

    def __init__(self, text):
        self.text = text
        t = text.split(";")[0].strip()
        parts = t.split(None, 1)
        self.op = op = parts[0]
        ops = [o.strip() for o in parts[1].split(",")] if len(parts) > 1 else []
        self.wr = set(); self.rd = set(); self.srcc = set(); self.ab = set()
        self.passes = 0; self.ws = 1; self.wide_store_data = set()
        if op == "s_nop":
            self.cls = "nop"; self.ws = int(ops[0], 0) + 1
        elif op.startswith("v_mfma"):
            self.cls = "mfma"
            self.passes = 8 if "32x32" in op else 4
            self.wr = set(regs_of(ops[0]))
            self.ab = set(regs_of(ops[1])) | set(regs_of(ops[2]))
            self.srcc = set(regs_of(ops[3]))
            self.rd = self.ab | self.srcc
        elif op.startswith("v_"):
            self.cls = "valu"
            if op.startswith("v_permlane"):
                self.wr = set(regs_of(ops[0])) | set(regs_of(ops[1])); self.rd = set(self.wr)
            else:
                self.wr = set(regs_of(ops[0]))
                for o in ops[1:]:
                    self.rd |= set(regs_of(o))
                if op.startswith(("v_fmac", "v_dot2c", "v_mac")):
                    self.rd |= self.wr
                if op.startswith(("v_add_co", "v_sub_co", "v_addc_co")):
                    self.wr |= set(regs_of(ops[1]))
        elif op.startswith(("buffer_", "global_")):
            self.cls = "vmem"
            last = ops[-1] if ops else ""
            is_lds = bool(re.search(r"\blds\b", t)) or "load_lds" in op
            if "load" in op and not is_lds:
                self.wr = set(regs_of(ops[0]))
                for o in ops[1:]:
                    self.rd |= set(regs_of(o))
            else:
                for o in ops:
                    self.rd |= set(regs_of(o))
                if is_lds:
                    self.rd.add(("m0", 0))
                if "store" in op and ("x4" in op or "x3" in op):
                    di = 0 if op.startswith("buffer_") else 1
                    self.wide_store_data = set(regs_of(ops[di]))
                if "atomic" in op and "sc0" in t:
                    self.wr = set(regs_of(ops[0]))
        elif op.startswith("ds_"):
            self.cls = "ds"
            if op.startswith(("ds_read", "ds_bpermute", "ds_permute", "ds_swizzle")):
                self.wr = set(regs_of(ops[0]))
                for o in ops[1:]:
                    self.rd |= set(regs_of(o))
            else:
                for o in ops:
                    self.rd |= set(regs_of(o))
        else:
            self.cls = "salu"
            if op.startswith(("s_cmp", "s_cbranch", "s_branch", "s_waitcnt", "s_barrier", "s_endpgm", "s_setprio", "s_sleep")):
                for o in ops:
                    self.rd |= set(regs_of(o))
            elif ops:
                self.wr = set(regs_of(ops[0]))
                for o in ops[1:]:
                    self.rd |= set(regs_of(o))


def vg(s):
    return {r for r in s if r[0] in ("v", "a")}


def sg(s):
    return {r for r in s if r[0] in ("s", "vcc", "exec")}


def need(p, c):
    n = 0
    if p.cls == "valu":
        pv = vg(p.wr); ps = sg(p.wr)
        if c.cls == "mfma" and pv & c.rd:
            n = max(n, 2)
        if c.cls == "valu":
            if p.op in TRANS and pv & c.rd:
                n = max(n, 1)
            if c.op.startswith("v_permlane") and pv & c.rd:
                n = max(n, 2)
            if "dpp" in c.text and pv & c.rd:
                n = max(n, 2)
            if c.op.startswith(("v_readfirstlane", "v_readlane")) and pv & c.rd:
                n = max(n, 1)
            if ps & c.rd:
                n = max(n, 4 if c.op.startswith(("v_readlane", "v_writelane")) else 2)
            if ("sdwa" in p.text or ("op_sel" in p.text and not p.op.startswith("v_pk_"))) and pv & (c.rd | c.wr):
                n = max(n, 1)
            if p.op.startswith("v_dot2") and pv & (c.rd | c.wr):
                if not (c.op == p.op and (pv & c.wr) and p.op.startswith("v_dot2c") and not (pv & (c.rd - c.wr))):
                    n = max(n, 3)
        if p.op.startswith("v_dot2") and c.cls in ("vmem", "ds", "mfma") and pv & c.rd:
            n = max(n, 3)
        if p.op in TRANS and c.cls in ("vmem", "ds") and pv & c.rd:
            n = max(n, 1)
        if c.cls == "vmem" and ps & c.rd:
            n = max(n, 5)
        if c.cls == "salu" and ps & c.rd:
            n = max(n, 1)
    elif p.cls == "mfma":
        big = 12 if p.passes == 8 else 8
        if c.cls == "mfma":
            if p.wr & c.ab:
                n = max(n, big)
            if p.wr & c.srcc:
                if not (p.wr == c.srcc and p.passes == c.passes):
                    n = max(n, 10 if p.passes == 8 else 6)
            elif p.wr & c.wr:
                n = max(n, 10 if p.passes == 8 else 6)
        elif c.cls in ("valu", "vmem", "ds"):
            if p.wr & (c.rd | c.wr):
                n = max(n, big)
            if c.cls == "valu" and p.srcc & c.wr:
                n = max(n, 7 if p.passes == 8 else 3)
            if c.cls in ("vmem", "ds") and p.srcc & c.wr:
                n = max(n, 7 if p.passes == 8 else 3)
    elif p.cls == "salu":
        if ("m0", 0) in p.wr and c.cls == "vmem" and ("m0", 0) in c.rd:
            n = max(n, 1)
    elif p.cls == "vmem":
        if p.wide_store_data and (p.wide_store_data & c.wr):
            n = max(n, 2 if c.cls == "valu" else 1)
    return n


class Asm:
    def __init__(self):
        self.out = []
        self.hist = []
        self.nins = 0
        self.bg = []
        self.bg_every = 10
        self.bg_cnt = 0
        self.bg_busy = False

    def raw(self, text):
        self.out.append(text)

    def comment(self, t):
        self.out.append("    ; " + t)

    def label(self, name, safe=True):
        if safe:
            self.flush()
        self.out.append(name + ":")

    def flush(self):
        worst = 0
        dist = 0
        for p in reversed(self.hist):
            w = 0
            if p.cls == "mfma":
                w = 12 if p.passes == 8 else 8
            elif p.cls == "valu":
                w = 5 if sg(p.wr) else 3
            elif p.cls == "salu" and ("m0", 0) in p.wr:
                w = 1
            elif p.cls == "vmem" and p.wide_store_data:
                w = 2
            worst = max(worst, w - dist)
            dist += p.ws
            if dist > 12:
                break
        if worst > 0:
            self._nop(worst)
        self.hist = []

    def _nop(self, n):
        while n > 0:
            k = min(n, 16)
            i = Ins(f"s_nop {k-1}")
            self.out.append("    " + i.text)
            self.hist.append(i)
            n -= k

    def __call__(self, text):
        for line in text.strip().split("\n"):
            line = line.strip()
            if not line or line.startswith(";"):
                continue
            self.emit(line)

    def nf(self, text):
        self.emit(text, noflush=True)

    def emit(self, text, noflush=False):
        c = Ins(text)
        dist = 0
        worst = 0
        for p in reversed(self.hist):
            nd = need(p, c)
            if nd - dist > worst:
                worst = nd - dist
            dist += p.ws
            if dist > 12:
                break
        if worst > 0:
            self._nop(worst)
        if c.op.startswith(("s_cbranch", "s_branch")) and not noflush:
            self.flush()
        self.out.append("    " + text)
        self.hist.append(c)
        if len(self.hist) > 32:
            self.hist = self.hist[-24:]
        self.nins += 1
        if self.bg and not self.bg_busy and c.cls == "valu":
            self.bg_cnt += 1
            if self.bg_cnt >= self.bg_every:
                self.bg_cnt = 0
                self.bg_busy = True
                self.bg.pop(0)()
                self.bg_busy = False

    def text(self):
        return "\n".join(self.out) + "\n"


KD = '''.p2align 6
.amdhsa_kernel {name}
  .amdhsa_next_free_vgpr {vgpr}
  .amdhsa_next_free_sgpr {sgpr}
  .amdhsa_accum_offset {accum}
  .amdhsa_group_segment_fixed_size 0
  .amdhsa_kernarg_size 88
  .amdhsa_user_sgpr_count 2
  .amdhsa_user_sgpr_kernarg_segment_ptr 1
  .amdhsa_system_sgpr_workgroup_id_x 1
.end_amdhsa_kernel
'''


def vr(base, n=1):
    return f"v{base}" if n == 1 else f"v[{base}:{base+n-1}]"


def ar(base, n=1):
    return f"a{base}" if n == 1 else f"a[{base}:{base+n-1}]"


def sr(base, n=1):
    return f"s{base}" if n == 1 else f"s[{base}:{base+n-1}]"
```

```python
import sys, struct, json, math
from asmb import Asm, KD, vr, ar, sr

NAME = "interleave_layers__sliding_local_dilated__mixer_channel_mlp__prompt"
S, D, F = 2048, 576, 4608
XT = S * D * 2
TILE = 18432
OOB = 0x10000000
WS_BYTES = 0x0c000000


import os
OPT = dict(kv.split("=") if "=" in kv else (kv, "1") for kv in os.environ.get("GOPT", "").split(",") if kv)


math_sqrt = math.sqrt; PI = math.pi; LOG2E = math.log2(math.e)


def f32(x):
    return "0x%08x" % struct.unpack("<I", struct.pack("<f", x))[0]


G0 = int(OPT.get("g0", 2))
KT = int(OPT.get("kt", 6))
KO = 18 - KT
NCHUNK = 28
SLB = NCHUNK * 24576


class WS:
    pass


def layout():
    off = 0
    L = {}

    def alloc(name, n):
        nonlocal off
        L[name] = off
        off += (n + 4095) // 4096 * 4096
    for l in (0, 1):
        alloc(f"FL{l}", 32768)
        alloc("X0" if l == 0 else "X2", XT); alloc("ST0" if l == 0 else "ST2", S * 32)
        alloc(f"O{l}", XT)
        alloc(f"X1_{l}", XT); alloc(f"ST1_{l}", S * 32)
        alloc(f"PART{l}", 8 * XT)
        alloc(f"HX{l}", 1024 * 18432)
    L["LSTR"] = L["FL1"]
    alloc("WQ", 16 * 18 * 7 * 1024)
    alloc("WO", 36 * 18 * 1024)
    alloc("W12", 16 * NCHUNK * 24576)
    alloc("TS", 512 * 16 * 128)
    L["END"] = off
    return L


L = layout()


class Cnt:
    def __init__(self, a, name, maxv):
        self.a = a; self.name = name; self.maxv = maxv; self.q = []

    def issue(self, tag):
        self.q.append(tag)

    def wait(self, tag):
        if tag not in self.q:
            return
        i = len(self.q) - 1 - self.q[::-1].index(tag)
        n = len(self.q) - 1 - i
        n = min(n, self.maxv)
        self.a(f"s_waitcnt {self.name}({n})")
        self.q = self.q[len(self.q) - n:] if n else []

    def wait_all(self):
        self.a(f"s_waitcnt {self.name}(0)")
        self.q = []


def header(a, name, nwg):
    if "l0_" in name:
        n1 = name.replace("l0_", "l1_")
        a.raw(f".globl {n1}\n.p2align 8\n.type {n1},@function\n{n1}:")
        a(f"s_mov_b32 s59, {L['LSTR']}")
        a(f"s_branch {name}_body")
    a.raw(f".globl {name}\n.p2align 8\n.type {name},@function\n{name}:")
    a("s_mov_b32 s59, 0")
    a.raw(f"{name}_body:")
    a(f"s_cmp_ge_u32 s2, {nwg}")
    a(f"s_cbranch_scc1 {name}_end")


def footer(a, name):
    a.label(f"{name}_end")
    a("s_endpgm")


def srd(a, d, base, nbytes):
    a(f"s_mov_b32 s{d}, s{base}")
    a(f"s_and_b32 s{d+1}, s{base+1}, 0xffff")
    a(f"s_mov_b32 s{d+2}, {nbytes}")
    a(f"s_mov_b32 s{d+3}, 0x00020000")


class Stamps:
    def __init__(self, a, name):
        self.a = a; self.n = 0; self.on = OPT.get("ts") == name[:-7]

    def __call__(self, real=False):
        if not self.on:
            return
        self.a(f"{'s_memrealtime' if real or 'tsreal' in OPT else 's_memtime'} s[{60+2*self.n}:{61+2*self.n}]")
        self.a("s_waitcnt lgkmcnt(0)")
        self.n += 1

    def store(self):
        if not self.on:
            return
        a = self.a
        a("s_lshl_b32 s58, s2, 4")
        a("s_add_u32 s58, s58, s3")
        a("s_lshl_b32 s58, s58, 7")
        a(f"s_add_u32 s58, s58, {L['TS']}")
        a("s_sub_u32 s58, s58, s59")
        a("v_mov_b32 v2, 0")
        for i in range(self.n):
            a(f"v_mov_b32 v0, s{60+2*i}")
            a(f"buffer_store_dword v0, v2, s[4:7], s58 offen offset:{4*i}")


def xg_reduce(a, op, v, t):
    a(f"v_mov_b32 v{t}, v{v}")
    a(f"v_permlane16_swap_b32 v{v}, v{t}")
    a(f"{op} v{v}, v{v}, v{t}")
    a(f"v_mov_b32 v{t}, v{v}")
    a(f"v_permlane32_swap_b32 v{v}, v{t}")
    a(f"{op} v{v}, v{v}, v{t}")


def gen_p0(CODE0="p1l1_kernel", CPN=6, zero=False):
    name = "p0_kernel"
    NT = OPT.get("p0nt", "nt")
    NWG = 248
    a = Asm()
    header(a, name, NWG)
    ts = Stamps(a, name)
    ts(True); ts()
    a("s_load_dwordx4 s[16:19], s[0:1], 0")
    a("s_load_dwordx2 s[20:21], s[0:1], 16")
    a("s_load_dwordx4 s[24:27], s[0:1], 32")
    a("s_load_dwordx2 s[28:29], s[0:1], 48")
    a("s_load_dwordx2 s[30:31], s[0:1], 80")
    a("v_and_b32 v1, 63, v0")
    a("v_lshrrev_b32 v2, 6, v0")
    a("v_readfirstlane_b32 s3, v2")
    a("v_lshlrev_b32 v3, 4, v1")
    a("v_and_b32 v4, 15, v1")
    a("v_lshrrev_b32 v5, 4, v1")
    a("v_lshrrev_b32 v6, 3, v1")
    a("v_and_b32 v7, 7, v1")
    a("s_mul_i32 s40, s3, 18432")
    a("v_lshrrev_b32 v11, 2, v1")
    a("v_lshlrev_b32 v11, 7, v11")
    a("v_and_b32 v12, 3, v1")
    a("v_lshl_add_u32 v11, v12, 3, v11")
    a("s_lshl_b32 s38, s3, 5")
    a("v_add_u32 v11, s38, v11")
    a("s_waitcnt lgkmcnt(0)")
    if "nocp" not in OPT:
        a("s_getpc_b64 s[52:53]")
        a.raw(f"{name}_pc:")
        a("s_lshr_b32 s54, s2, 3")
        a("s_lshl_b32 s54, s54, 2")
        a("s_add_u32 s54, s54, s3")
        a(f"s_mul_i32 s54, s54, {64*CPN}")
        a(f"s_add_u32 s54, s54, {CODE0}-{name}_pc")
        a(f"s_min_u32 s54, s54, code_end-{name}_pc-{64*(CPN-1)}")
        a("s_add_u32 s52, s52, s54")
        a("s_addc_u32 s53, s53, 0")
        for i in range(CPN):
            a(f"s_load_dword s55, s[52:53], {64*i}")
    PT = int(OPT.get("pt", 0))
    if PT:
        npg = (L["TS"] + PT * 1024 - 1) // (PT * 1024)
        per = (npg + 123) // 124
        a("s_lshr_b32 s54, s2, 3")
        a("s_lshl_b32 s54, s54, 2")
        a("s_add_u32 s54, s54, s3")
        a(f"s_mul_i32 s54, s54, {per * PT * 1024}")
        a(f"s_min_u32 s54, s54, {L['TS']}")
        a("s_add_u32 s52, s30, s54")
        a("s_addc_u32 s53, s31, 0")
        for i in range(per):
            a(f"s_load_dword s55, s[52:53], {i * PT * 1024 + 64 * 37}")
    srd(a, 4, 30, WS_BYTES)
    a(f"s_mov_b32 s36, {OOB}")
    a(f"s_mov_b32 s37, {OOB}")
    a("v_lshlrev_b32 v9, 2, v4")
    a("v_mov_b32 v10, 0")
    if zero:
        a("s_cmp_ge_u32 s2, 72")
        a(f"s_cselect_b32 s44, {L['FL1'] - 72*256}, 0")
        a("s_lshl_b32 s45, s2, 8")
        a("s_add_u32 s44, s44, s45")
        a("s_cmp_ge_u32 s2, 144")
        a(f"s_cselect_b32 s44, {OOB}, s44")
        a("s_cmp_lg_u32 s3, 0")
        a(f"s_cselect_b32 s44, {OOB}, s44")
        a("v_lshlrev_b32 v12, 2, v1")
        a("buffer_store_dword v10, v12, s[4:7], s44 offen")
    a("s_cmp_ge_u32 s2, 216")
    a(f"s_cbranch_scc1 {name}_x")
    a("s_cmp_ge_u32 s2, 198")
    a(f"s_cbranch_scc1 {name}_wo")
    a("s_cmp_ge_u32 s2, 144")
    a(f"s_cbranch_scc1 {name}_wq")
    def fin():
        if ts.on:
            a(f"s_branch {name}_ts")
        else:
            a("s_endpgm")

    def mid(k):
        ts.n = k
        ts()

    def dma18():
        a("s_lshl_b32 s44, s3, 10")
        a("s_mov_b32 m0, s44")
        for ks in range(18):
            a("buffer_load_dwordx4 v8, s[12:15], s32 offen " + NT + " lds")
            a("s_add_u32 s32, s32, s33")
            a("s_add_u32 m0, m0, 4096")

    def tile_decode():
        a("s_lshl_b32 s43, s42, 1")
        a("s_lshr_b32 s44, s3, 1")
        a("s_add_u32 s43, s43, s44")
        a("s_cmp_ge_u32 s43, 9")
        a("s_cselect_b32 s46, 1, 0")
        a("s_mul_i32 s47, s46, 9")
        a("s_sub_u32 s47, s43, s47")
        a("s_lshl_b32 s34, s41, 1")
        a("s_add_u32 s34, s34, s46")
        a(f"s_mul_i32 s34, s34, {SLB}")
        a(f"s_add_u32 s34, s34, {L['W12']}")
        a("s_and_b32 s44, s3, 1")
        a("s_lshl_b32 s44, s44, 10")
        a("s_add_u32 s34, s34, s44")

    a("s_and_b32 s41, s2, 7")
    a("s_lshr_b32 s42, s2, 3")
    a("s_cmp_ge_u32 s42, 9")
    a(f"s_cbranch_scc1 {name}_w2")
    srd(a, 12, 24, D * F * 2)
    a("s_mul_i32 s41, s2, 2731")
    a("s_lshr_b32 s41, s41, 16")
    a("s_mul_i32 s42, s41, 24")
    a("s_sub_u32 s42, s2, s42")
    a("v_mul_u32_u24 v8, 9216, v6")
    a("v_lshl_add_u32 v8, v7, 4, v8")
    a("s_mul_i32 s32, s42, 384")
    a("s_add_u32 s45, s32, s38")
    a(f"s_mul_i32 s44, s41, {192*9216}")
    a("s_add_u32 s32, s32, s44")
    a(f"s_mul_i32 s44, s3, {8*9216}")
    a("s_add_u32 s32, s32, s44")
    srd(a, 48, 26, F * 2)
    a("v_lshlrev_b32 v12, 1, v4")
    for l3 in range(3):
        a(f"buffer_load_ushort v{88+l3}, v12, s[48:51], s45 offen offset:{l3*128}")
    a("s_lshl_b32 s44, s3, 10")
    for ks in range(6):
        for l3 in range(3):
            a(f"s_add_u32 m0, s44, {l3*24576 + ks*4096}")
            a(f"s_add_u32 s33, s32, {ks*32*9216 + l3*128}")
            a("buffer_load_dwordx4 v8, s[12:15], s33 offen " + NT + " lds")
    DST = ((34, 35), (36, 37), (39, 40))
    for l3 in range(3):
        d, st = DST[l3]
        a("s_mul_i32 s43, s42, 6")
        a("s_lshr_b32 s44, s3, 1")
        a("s_add_u32 s43, s43, s44")
        a(f"s_add_u32 s43, s43, {2*l3}")
        a("s_mul_i32 s46, s43, 7282")
        a("s_lshr_b32 s46, s46, 16")
        a("s_mul_i32 s47, s46, 9")
        a("s_sub_u32 s47, s43, s47")
        a(f"s_mul_i32 s{d}, s46, {SLB}")
        a("s_mul_i32 s44, s47, 19")
        a(f"s_cmp_lt_u32 s47, {G0}")
        a("s_cselect_b32 s44, s47, s44")
        a(f"s_cselect_b32 s45, {G0}, 1")
        a("s_lshl_b32 s44, s44, 11")
        a(f"s_add_u32 s{d}, s{d}, s44")
        a(f"s_lshl_b32 s{st}, s45, 11")
        a("s_and_b32 s44, s3, 1")
        a("s_lshl_b32 s44, s44, 10")
        a(f"s_add_u32 s{d}, s{d}, s44")
        a(f"s_add_u32 s{d}, s{d}, {L['W12']}")
        a(f"s_mul_i32 s44, s{st}, 18")
        a(f"s_add_u32 s{52+l3}, s{d}, s44")
        a("s_mul_i32 s44, s41, 6")
        a(f"s_mul_i32 s44, s44, s{st}")
        a(f"s_add_u32 s{d}, s{d}, s44")
    a("v_add_u32 v15, 24576, v11")
    a("v_mov_b32 v12, 0x3f803f80")
    for l3 in range(3):
        a(f"v_mov_b32 v{92+l3}, 0")
    mid(2)
    for ks in range(6):
        a("s_waitcnt vmcnt(15)")
        a("s_barrier")
        if ks == 5:
            mid(3)
        for l3 in range(3):
            f = 3 * ks + l3
            for r in range(2):
                off = l3 * 24576 + ks * 4096 + r * 2048
                base, off = ("v11", off) if l3 < 2 else ("v15", off - 24576)
                a(f"ds_read_b64_tr_b16 v[{16+4*f+2*r}:{17+4*f+2*r}], {base} offset:{off}")
        a("s_waitcnt lgkmcnt(0)")
        for l3 in range(3):
            f = 3 * ks + l3
            d, st = DST[l3]
            a(f"buffer_store_dwordx4 v[{16+4*f}:{19+4*f}], v3, s[4:7], s{d} offen sc1")
            a(f"s_add_u32 s{d}, s{d}, s{st}")
            for j in range(4):
                a(f"v_dot2c_f32_bf16 v{92+l3}, v{16+4*f+j}, v12")
    a("v_cmp_eq_u32 s[46:47], s41, v5")
    a("s_cmp_eq_u32 s41, 0")
    a("s_cselect_b32 s44, 3, s41")
    a("s_cselect_b32 s45, -1, 0")
    a("v_cmp_eq_u32 vcc, s44, v5")
    a("s_or_b64 vcc, vcc, s[46:47]")
    a("v_mov_b32 v8, 0x40000000")
    a("v_cndmask_b32 v9, v8, v3, vcc")
    for l3 in range(3):
        c = 92 + l3; o = 16 + 4 * l3
        xg_reduce(a, "v_add_f32", c, 8)
        a(f"v_lshl_or_b32 v{o}, v{88+l3}, 16, v{88+l3}")
        a(f"v_and_b32 v{o}, s45, v{o}")
        a(f"v_cvt_pk_bf16_f32 v{o+2}, v{c}, v{c}")
        a(f"v_and_b32 v8, 0xffff0000, v{o+2}")
        a(f"v_sub_f32 v8, v{c}, v8")
        a(f"v_cvt_pk_bf16_f32 v{o+1}, v{c}, v8")
        a(f"v_and_b32 v{o+2}, 0xffff, v{o+2}")
        a(f"v_mov_b32 v{o+3}, 0")
        for r in range(3):
            a(f"v_cndmask_b32 v{o+r}, 0, v{o+r}, s[46:47]")
        a(f"buffer_store_dwordx4 {vr(o,4)}, v9, s[4:7], s{52+l3} offen sc1")
    fin()

    a.label(f"{name}_w2")
    srd(a, 12, 28, D * F * 2)
    a("s_sub_u32 s42, s42, 9")
    a("v_mul_u32_u24 v8, 1152, v6")
    a("v_lshl_add_u32 v8, v7, 4, v8")
    a(f"s_mul_i32 s32, s41, {576*1152}")
    a("s_lshl_b32 s44, s42, 7")
    a("s_add_u32 s32, s32, s44")
    a(f"s_mul_i32 s44, s3, {8*1152}")
    a("s_add_u32 s32, s32, s44")
    a(f"s_mov_b32 s33, {32*1152}")
    dma18()
    tile_decode()
    a("s_mul_i32 s44, s46, 36864")
    a("s_sub_u32 s45, 36864, s44")
    a("v_add_u32 v15, s45, v11")
    a("v_add_u32 v11, s44, v11")
    a(f"s_mul_i32 s44, s47, {KT*2048}")
    a("s_add_u32 s37, s34, s44")
    a(f"s_add_u32 s37, s37, {(342+18*KO)*1024}")
    a("s_lshl_b32 s44, s47, 11")
    a("s_add_u32 s34, s34, s44")
    a(f"s_add_u32 s34, s34, {342*1024}")
    mid(2)
    a("s_waitcnt vmcnt(0)")
    a("s_barrier")
    mid(3)
    for grp in range(3):
        for b in range(6 * grp, 6 * grp + 6):
            for r in range(2):
                a(f"ds_read_b64_tr_b16 v[{16+4*b+2*r}:{17+4*b+2*r}], {'v11' if b < 9 else 'v15'} offset:{(b%9)*4096+r*2048}")
        a("s_waitcnt lgkmcnt(0)")
        for b in range(6 * grp, 6 * grp + 6):
            if b < KO:
                a(f"buffer_store_dwordx4 v[{16+4*b}:{19+4*b}], v3, s[4:7], s34 offen sc1")
                a(f"s_add_u32 s34, s34, {18*1024}")
            else:
                a(f"buffer_store_dwordx4 v[{16+4*b}:{19+4*b}], v3, s[4:7], s37 offen sc1")
                a("s_add_u32 s37, s37, 2048")
    fin()

    a.label(f"{name}_wo")
    srd(a, 12, 20, D * D * 2)
    a("s_sub_u32 s41, s2, 198")
    a("s_lshl_b32 s44, s3, 3")
    a("v_add_u32 v12, s44, v6")
    a("v_lshrrev_b32 v13, 4, v12")
    a("v_mul_u32_u24 v13, 18, v13")
    a("v_and_b32 v14, 15, v12")
    a("v_add_u32 v13, v13, v14")
    a("v_lshrrev_b32 v14, 2, v12")
    a("v_mul_u32_u24 v14, 36, v14")
    a("v_and_b32 v15, 3, v12")
    a("v_lshrrev_b32 v2, 1, v15")
    a("v_lshlrev_b32 v2, 4, v2")
    a("v_add3_u32 v14, v14, v15, v2")
    a("v_add_u32 v14, 16, v14")
    a("s_mul_i32 s32, s41, 36")
    a("s_sub_u32 s33, s41, 16")
    a("s_mul_i32 s33, s33, 288")
    a("s_cmp_lt_u32 s41, 16")
    a("s_cselect_b32 s32, s32, s33")
    a("s_cselect_b64 vcc, -1, 0")
    a("v_cndmask_b32 v13, v14, v13, vcc")
    a("s_mul_i32 s32, s32, 1152")
    a("v_mul_u32_u24 v8, 1152, v13")
    a("v_lshl_add_u32 v8, v7, 4, v8")
    a("s_lshl_b32 s44, s3, 10")
    a("s_mov_b32 m0, s44")
    for cg in range(9):
        a("buffer_load_dwordx4 v8, s[12:15], s32 offen " + NT + " lds")
        a("s_add_u32 s32, s32, 128")
        a("s_add_u32 m0, m0, 4096")
    a("s_mul_i32 s34, s3, 18432")
    a("s_lshl_b32 s44, s41, 10")
    a("s_add_u32 s34, s34, s44")
    a(f"s_add_u32 s34, s34, {L['WO']}")
    mid(2)
    a("s_waitcnt vmcnt(0)")
    a("s_barrier")
    mid(3)
    for cg in range(9):
        for r in range(2):
            a(f"ds_read_b64_tr_b16 v[{16+4*cg+2*r}:{17+4*cg+2*r}], v11 offset:{cg*4096+r*2048}")
        if cg == 6:
            a("s_waitcnt lgkmcnt(0)")
    a("s_waitcnt lgkmcnt(0)")
    for cg in range(9):
        a(f"buffer_store_dwordx4 v[{16+4*cg}:{19+4*cg}], v3, s[4:7], s34 offen sc1")
        a(f"s_add_u32 s34, s34, {4*18432}")
    fin()

    a.label(f"{name}_wq")
    srd(a, 12, 18, D * 3 * D * 2)
    a("s_sub_u32 s41, s2, 144")
    a("s_mul_i32 s42, s41, 43691")
    a("s_lshr_b32 s42, s42, 17")
    a("s_mul_i32 s43, s42, 3")
    a("s_sub_u32 s43, s41, s43")
    a(f"s_mul_i32 s32, s42, {32*3456}")
    a("s_mul_i32 s44, s43, 1152")
    a("s_add_u32 s32, s32, s44")
    a(f"s_mul_i32 s44, s3, {8*3456}")
    a("s_add_u32 s32, s32, s44")
    a("s_add_u32 s33, s32, 32")
    a("v_lshrrev_b32 v8, 1, v1")
    a("v_mul_u32_u24 v8, 36, v8")
    a("v_and_b32 v12, 1, v1")
    a("v_lshl_add_u32 v8, v12, 4, v8")
    a("v_and_b32 v12, 31, v1")
    a("v_mul_u32_u24 v12, 36, v12")
    a("v_lshrrev_b32 v13, 5, v1")
    a("v_mul_u32_u24 v13, 3456, v13")
    a("v_add_u32 v12, v12, v13")
    a("s_lshl_b32 s44, s3, 13")
    a("s_mov_b32 m0, s44")
    for i in range(8):
        a("buffer_load_dwordx4 v8, s[12:15], s32 offen " + NT + " lds")
        a("s_add_u32 s32, s32, 3456")
        a("s_add_u32 m0, m0, 1024")
    a("s_lshl_b32 s44, s3, 10")
    a("s_add_u32 m0, s44, 32768")
    for i in range(4):
        a("buffer_load_dword v12, s[12:15], s33 offen " + NT + " lds")
        a(f"s_add_u32 s33, s33, {2*3456}")
        a("s_add_u32 m0, m0, 256")
    a("v_lshrrev_b32 v13, 2, v1")
    a("v_lshlrev_b32 v13, 10, v13")
    a("v_and_b32 v14, 3, v1")
    a("v_lshl_add_u32 v13, v14, 3, v13")
    a("s_lshl_b32 s44, s3, 8")
    a("v_add_u32 v13, s44, v13")
    a(f"s_mul_i32 s34, s3, {4*129024}")
    a("s_mul_i32 s44, s42, 7168")
    a("s_add_u32 s34, s34, s44")
    a(f"s_add_u32 s35, s34, {L['WQ'] + 6*1024}")
    a("s_lshl_b32 s44, s43, 11")
    a("s_add_u32 s34, s34, s44")
    a(f"s_add_u32 s34, s34, {L['WQ']}")
    a("v_lshrrev_b32 v14, 2, v4")
    a(f"s_mov_b32 s44, 129024")
    a("v_mul_lo_u32 v14, v14, s44")
    a("v_lshrrev_b32 v15, 1, v4")
    a("v_and_b32 v15, 1, v15")
    a("s_cmp_eq_u32 s43, 2")
    a("s_cselect_b32 s44, 1, 2")
    a("s_lshl_b32 s45, s43, 1")
    a("s_cmp_eq_u32 s43, 2")
    a("s_cselect_b32 s45, 8, s45")
    a("v_lshlrev_b32 v15, s44, v15")
    a("v_and_b32 v2, 1, v4")
    a("v_add3_u32 v15, v15, v2, s45")
    a("v_lshl_add_u32 v15, v5, 4, v15")
    a("v_lshl_add_u32 v14, v15, 4, v14")
    mid(2)
    a("s_waitcnt vmcnt(0)")
    a("s_barrier")
    mid(3)
    for i in range(8):
        for r in range(2):
            a(f"ds_read_b64_tr_b16 v[{16+4*i+2*r}:{17+4*i+2*r}], v13 offset:{r*16384+i*32}")
        if i == 6:
            a("s_waitcnt lgkmcnt(0)")
    for r in range(2):
        a(f"ds_read_b64_tr_b16 v[{48+2*r}:{49+2*r}], v11 offset:{32768+r*2048}")
    for i in range(4):
        a(f"v_mov_b32 v{52+i}, 0")
    a("s_waitcnt lgkmcnt(0)")
    for i in range(8):
        a(f"buffer_store_dwordx4 v[{16+4*i}:{19+4*i}], v3, s[4:7], s34 offen offset:{(i&1)*1024} sc1")
        if i & 1:
            a("s_add_u32 s34, s34, 129024")
    a("buffer_store_dwordx4 v[48:51], v14, s[4:7], s35 offen")
    a("s_cmp_eq_u32 s43, 2")
    a(f"s_cselect_b32 s35, s35, {OOB}")
    a("buffer_store_dwordx4 v[52:55], v14, s[4:7], s35 offen offset:64")
    fin()

    a.label(f"{name}_x")
    srd(a, 12, 16, XT)
    a("s_sub_u32 s41, s2, 216")
    a("s_lshl_b32 s41, s41, 2")
    a("s_add_u32 s41, s41, s3")
    a("s_mul_i32 s33, s41, 18432")
    a(f"s_add_u32 s34, s33, {L['X0']}")
    a("s_mov_b32 m0, s40")
    for i in range(18):
        a(f"buffer_load_dwordx4 v3, s[12:15], s33 offen offset:{(i%3)*1024} " + NT + " lds")
        if i % 3 == 2:
            a("s_add_u32 s33, s33, 3072")
            a("s_add_u32 m0, m0, 3072")
    a("v_mul_u32_u24 v8, 1152, v4")
    a("v_lshl_add_u32 v8, v5, 3, v8")
    a("v_add_u32 v8, s40, v8")
    a("v_mov_b32 v12, 0x3f803f80")
    a("v_mov_b32 v14, 0")
    a("v_mov_b32 v15, 0")
    mid(2)
    a("s_waitcnt vmcnt(0)")
    mid(3)
    for grp in range(3):
        for ks in range(6 * grp, 6 * grp + 6):
            a(f"ds_read_b64 v[{16+4*ks}:{17+4*ks}], v8 offset:{ks*64}")
            a(f"ds_read_b64 v[{18+4*ks}:{19+4*ks}], v8 offset:{ks*64+32}")
        a("s_waitcnt lgkmcnt(0)")
        for ks in range(6 * grp, 6 * grp + 6):
            a(f"buffer_store_dwordx4 v[{16+4*ks}:{19+4*ks}], v3, s[4:7], s34 offen sc1")
            a("s_add_u32 s34, s34, 1024")
    for ks in range(18):
        for j in range(4):
            a(f"v_dot2c_f32_bf16 v14, v{16+4*ks+j}, v12")
            a(f"v_dot2c_f32_bf16 v15, v{16+4*ks+j}, v{16+4*ks+j}")
    a("v_lshlrev_b32 v9, 5, v4")
    a("v_lshl_add_u32 v9, v5, 3, v9")
    a("s_lshl_b32 s36, s41, 9")
    a(f"s_add_u32 s36, s36, {L['ST0']}")
    a("buffer_store_dwordx2 v[14:15], v9, s[4:7], s36 offen")
    if ts.on:
        a.label(f"{name}_ts")
        ts()
        a("s_waitcnt vmcnt(0)")
        ts(); ts(True)
        ts.store()
    footer(a, name)
    return name, a.text(), dict(vgpr=96, sgpr=96, accum=96), dict(grid=248, block=256, lds=81920 + 4096)


def stats_finish(a, s, q, r, mr, t, double_ln):
    a(f"v_mul_f32 v{s}, {f32(1.0/D)}, v{s}")
    a(f"v_mul_f32 v{q}, {f32(1.0/D)}, v{q}")
    a(f"v_fma_f32 v{q}, -v{s}, v{s}, v{q}")
    a(f"v_max_f32 v{q}, 0, v{q}")
    a(f"v_add_f32 v{t}, {f32(1e-5)}, v{q}")
    a(f"v_rsq_f32 v{r}, v{t}")
    if double_ln:
        a(f"v_mul_f32 v{t}, v{r}, v{r}")
        a(f"v_mul_f32 v{t}, v{t}, v{q}")
        a(f"v_add_f32 v{t}, {f32(1e-5)}, v{t}")
        a(f"v_rsq_f32 v{t}, v{t}")
        a(f"v_mul_f32 v{r}, v{r}, v{t}")
    a(f"v_mul_f32 v{mr}, v{s}, v{r}")


def gen_p1(layer):
    name = f"p1l{layer}_kernel"
    XIN = L["X0"] if layer == 0 else L["X2"]
    STI = L["ST0"] if layer == 0 else L["ST2"]
    OUT = L[f"O{layer}"]
    a = Asm()
    vm = Cnt(a, "vmcnt", 63); lg = Cnt(a, "lgkmcnt", 15)
    header(a, name, 256)
    ts = Stamps(a, name)
    ts(True); ts()
    ROT = int(OPT.get("p1rot", 0))
    a("s_load_dwordx2 s[4:5], s[0:1], 80")
    a("v_and_b32 v1, 63, v0")
    a("v_lshrrev_b32 v2, 6, v0")
    a("v_readfirstlane_b32 s3, v2")
    a("v_lshlrev_b32 v3, 4, v1")
    a("v_and_b32 v4, 15, v1")
    a("v_lshrrev_b32 v5, 4, v1")
    a("s_and_b32 s12, s2, 7")
    a("s_lshr_b32 s13, s2, 3")
    a("s_lshr_b32 s14, s12, 1")
    a("s_lshl_b32 s14, s14, 2")
    a("s_and_b32 s15, s13, 3")
    a("s_mul_i32 s46, s15, 5")
    a("s_add_u32 s14, s14, s15")
    a("s_and_b32 s15, s12, 1")
    a("s_lshl_b32 s15, s15, 3")
    a("s_lshr_b32 s16, s13, 2")
    a("s_add_u32 s15, s15, s16")
    a("s_lshl_b32 s16, s16, 1")
    a("s_add_u32 s46, s46, s16")
    a("s_cmp_ge_u32 s46, 18")
    a("s_cselect_b32 s16, 18, 0")
    a("s_sub_u32 s46, s46, s16")
    if not ROT:
        a("s_mov_b32 s46, 0")
    a("s_lshl_b32 s47, s46, 10")
    a("s_lshl_b32 s16, s14, 3")
    a("s_lshl_b32 s17, s3, 1")
    a("s_add_u32 s17, s17, s16")
    a("s_mul_i32 s18, s17, 18432")
    a("s_add_u32 s18, s18, s47")
    a(f"s_add_u32 s18, s18, {XIN}")
    a(f"s_mul_i32 s20, s15, {18*7168}")
    a("s_lshl_b32 s21, s3, 11")
    a("s_add_u32 s20, s20, s21")
    a("s_mul_i32 s19, s46, 7168")
    a("s_add_u32 s20, s20, s19")
    a(f"s_add_u32 s20, s20, {L['WQ']}")
    a("s_sub_u32 s20, s20, s59")
    a("s_mul_i32 s22, s16, 18432")
    a(f"s_add_u32 s22, s22, {XIN - 18432 - 1024}")
    a("s_cmp_eq_u32 s14, 0")
    a(f"s_cselect_b32 s22, {OOB}, s22")
    a("s_add_u32 s22, s22, s47")
    a("s_mov_b32 s48, 7168")
    a(f"s_mov_b32 s49, {-17*7168}")
    a("s_mov_b32 s50, 1024")
    a(f"s_mov_b32 s51, {-17*1024}")
    a("s_mov_b32 s44, 0xfffefffe")
    a("s_cmp_eq_u32 s3, 3")
    a("s_cselect_b32 s22, s22, s20")
    a("s_cselect_b32 s52, s50, s48")
    a("s_cselect_b32 s53, s51, s49")
    a("s_cselect_b32 s44, s44, -1")
    a("s_mov_b32 s45, s44")
    a("s_mov_b32 s24, s21")
    a("s_lshl_b32 s25, s17, 9")
    a(f"s_add_u32 s25, s25, {STI}")
    a("s_lshl_b32 s26, s16, 9")
    a(f"s_add_u32 s26, s26, {STI - 512}")
    a("s_cmp_eq_u32 s14, 0")
    a(f"s_cselect_b32 s26, {OOB}, s26")
    a("s_lshl_b32 s27, s3, 2")
    a("s_lshr_b32 s28, 0x1654, s27")
    a("s_and_b32 s28, s28, 15")
    a("s_lshr_b32 s27, 0x0632, s27")
    a("s_and_b32 s27, s27, 15")
    a("v_lshlrev_b32 v6, 5, v4")
    a("v_lshl_add_u32 v6, v5, 3, v6")
    a("v_lshlrev_b32 v7, 4, v5")
    a("v_lshlrev_b32 v8, 2, v4")
    a("v_add_u32 v15, 18432, v3")
    a("s_waitcnt lgkmcnt(0)")
    a("s_add_u32 s4, s4, s59")
    a("s_addc_u32 s5, s5, 0")
    a("s_and_b32 s5, s5, 0xffff")
    a(f"s_mov_b32 s6, {WS_BYTES}")
    a("s_mov_b32 s7, 0x00020000")
    ACC = 16; AB = 88
    RN = 168
    RS = 176
    CQN = 200
    CQH = 220
    CQS = 224
    MS = 228; MPA = 232; MPB = 236
    T0 = 200
    EX = 147456
    CQL = EX + 5 * 3072
    for n, so, off in ((0, "s25", 0), (1, "s25", 512), (2, "s26", 0)):
        a(f"buffer_load_dwordx2 {vr(T0+2*n,2)}, v6, s[4:7], {so} offen offset:{off}"); vm.issue("st")

    def loads(ks):
        if not ROT:
            o = (ks % 4) * 1024
            return [
                ["s_mov_b32 m0, s24", "s_add_u32 s24, s24, 8192", "buffer_load_dwordx4 v3, s[4:7], s20 offen lds", "s_add_u32 s20, s20, 7168"],
                ["s_mov_b64 exec, s[44:45]", "buffer_load_dwordx4 v3, s[4:7], s22 offen offset:1024 lds", "s_mov_b64 exec, -1",
                 "s_add_u32 s22, s22, s52"],
                [f"buffer_load_dwordx4 {ar(4*ks,4)}, v3, s[4:7], s18 offen offset:{o}"],
                [f"buffer_load_dwordx4 {ar(72+4*ks,4)}, v15, s[4:7], s18 offen offset:{o}"] + (["s_add_u32 s18, s18, 4096"] if ks % 4 == 3 else []),
            ]
        return [
            ["s_mov_b32 m0, s24", "s_add_u32 s46, s46, 1", "buffer_load_dwordx4 v3, s[4:7], s20 offen lds",
             "s_cmp_eq_u32 s46, 18", "s_cselect_b32 s54, s49, s48", "s_cselect_b32 s55, s53, s52", "s_cselect_b32 s56, s51, s50",
             "s_add_u32 s20, s20, s54"],
            ["s_mov_b64 exec, s[44:45]", "buffer_load_dwordx4 v3, s[4:7], s22 offen offset:1024 lds", "s_mov_b64 exec, -1",
             "s_add_u32 s22, s22, s55", "s_add_u32 s24, s24, 8192"],
            [f"buffer_load_dwordx4 {ar(4*ks,4)}, v3, s[4:7], s18 offen"],
            [f"buffer_load_dwordx4 {ar(72+4*ks,4)}, v15, s[4:7], s18 offen", "s_add_u32 s18, s18, s56"],
        ]

    def do_load(grp, ks):
        for t in grp:
            a(t)
        vm.issue(("k", ks))

    PF = int(OPT.get("p1pf", 5))
    PF0 = int(OPT.get("p1pf0", 2))
    PF1 = int(OPT.get("p1pf1", 4))
    for ks in range(PF0):
        for grp in loads(ks):
            do_load(grp, ks)
    ts()
    a("v_min_u32 v12, 71, v0")
    a("v_lshrrev_b32 v13, 2, v12")
    a("v_lshlrev_b32 v13, 13, v13")
    a("v_and_b32 v12, 3, v12")
    a("v_lshl_add_u32 v13, v12, 8, v13")
    for i in range(4):
        a(f"v_mov_b32 v{ACC+i}, 0x3f803f80")
    a(f"ds_write_b128 v13, {vr(ACC,4)} offset:7168")
    a("v_mov_b32 v9, v3")
    a("s_lshl_b32 s32, s27, 10")
    a("v_add_u32 v10, s32, v3")
    a("s_lshl_b32 s32, s28, 10")
    a("v_add_u32 v11, s32, v3")
    a(f"v_mov_b32 v12, {f32(-1e30)}")
    a("v_lshlrev_b32 v13, 2, v5")
    a("v_sub_u32 v13, v4, v13")
    a("s_cmp_eq_u32 s17, 0")
    a("s_cselect_b32 s33, -100, -2")
    for i in range(4):
        a(f"v_subrev_u32 v14, {i}, v13")
        a("v_and_b32 v2, 1, v14")
        a("v_cmp_eq_u32 s[34:35], 0, v2")
        a("v_cmp_le_i32 vcc, 0, v14")
        a("s_and_b64 vcc, vcc, s[34:35]")
        a(f"v_cndmask_b32 v{MS+i}, v12, 0, vcc")
        a("v_cmp_ge_i32 vcc, -2, v14")
        a("s_and_b64 vcc, vcc, s[34:35]")
        a(f"v_cndmask_b32 v{MPB+i}, v12, 0, vcc")
        a("v_cmp_ge_i32 vcc, s33, v14")
        a("s_and_b64 vcc, vcc, s[34:35]")
        a(f"v_cndmask_b32 v{MPA+i}, v12, 0, vcc")
    a("s_mul_i32 s32, s3, 384")
    a(f"s_add_u32 s32, s32, {EX}")
    a("v_add_u32 v12, s32, v8")
    a("v_add_u32 v13, s32, v7")
    for ks in range(PF0, PF1):
        for grp in loads(ks):
            do_load(grp, ks)
    vm.wait("st")
    for r in range(6):
        a(f"v_mov_b32 v{T0+8+r}, v{T0+r}")
    for r in range(6):
        a(f"v_permlane16_swap_b32 v{T0+r}, v{T0+8+r}")
    for r in range(6):
        a(f"v_add_f32 v{T0+r}, v{T0+r}, v{T0+8+r}")
    for r in range(6):
        a(f"v_mov_b32 v{T0+8+r}, v{T0+r}")
    for r in range(6):
        a(f"v_permlane32_swap_b32 v{T0+r}, v{T0+8+r}")
    for r in range(6):
        a(f"v_add_f32 v{T0+r}, v{T0+r}, v{T0+8+r}")
    for n in range(3):
        b = T0 + 2 * n
        stats_finish(a, b, b + 1, RN + 2 * n, RN + 2 * n + 1, T0 + 8 + n, False)
        a(f"ds_write_b32 v12, v{RN+2*n} offset:{n*128}")
        a(f"ds_write_b32 v12, v{RN+2*n+1} offset:{n*128+64}")
    for n in range(3):
        a(f"ds_read_b128 {vr(RS+8*n,4)}, v13 offset:{n*128}")
        a(f"ds_read_b128 {vr(RS+8*n+4,4)}, v13 offset:{n*128+64}")
    for ks in range(PF1, PF):
        for grp in loads(ks):
            do_load(grp, ks)

    def reads(ks):
        b = AB + 40 * (ks & 1)
        o = (ks % 8) * 8192
        r = [f"ds_read_b128 {vr(b+28,4)}, v9 offset:{o+7*1024}",
             f"ds_read_b128 {vr(b+32,4)}, v10 offset:{o}",
             f"ds_read_b128 {vr(b+36,4)}, v11 offset:{o}"]
        r += [f"ds_read_b128 {vr(b+4*fr,4)}, v9 offset:{o+fr*1024}" for fr in (0, 1, 2, 3, 6, 4, 5)]
        return r

    def mfmas(ks):
        b = AB + 40 * (ks & 1)
        r = []
        acc = vr(ACC + 64, 4); c = "0" if ks == 0 else acc
        r.append(f"v_mfma_f32_16x16x32_bf16 {acc}, {vr(b+32,4)}, {vr(b+28,4)}, {c}")
        acc = vr(ACC + 68, 4); c = "0" if ks == 0 else acc
        r.append(f"v_mfma_f32_16x16x32_bf16 {acc}, {vr(b+28,4)}, {vr(b+36,4)}, {c}")
        for slot, fr in enumerate((0, 1, 2, 3, 6, 4, 5, 6)):
            for n in range(2):
                acc = vr(ACC + 32 * n + 4 * slot, 4)
                x = ar(72 * n + 4 * ks, 4)
                w = vr(b + 4 * fr, 4)
                c = "0" if ks == 0 else acc
                if slot < 5:
                    r.append(f"v_mfma_f32_16x16x32_bf16 {acc}, {w}, {x}, {c}")
                else:
                    r.append(f"v_mfma_f32_16x16x32_bf16 {acc}, {x}, {w}, {c}")
        return r

    CH = int(OPT.get("p1ch", 2))
    nload = [PF]
    ts()
    vm.wait(("k", CH - 1))
    a("s_waitcnt lgkmcnt(0)")
    a("s_barrier")
    for t in reads(0):
        a(t)
    a("s_waitcnt lgkmcnt(0)")
    for ks in range(18):
        if ks in (0, 6, 12):
            ts()
        m = mfmas(ks)
        nxt = ks + 1
        rd = []
        if nxt < 18:
            if nxt % CH == 0:
                vm.wait(("k", min(nxt + CH - 1, 17)))
                a("s_barrier")
            if nxt % 8 == 0:
                a("v_add_u32 v9, 0x10000, v9")
                a("v_add_u32 v10, 0x10000, v10")
                a("v_add_u32 v11, 0x10000, v11")
            rd = reads(nxt)
        else:
            a("s_lshl_b32 s32, s27, 6")
            a(f"s_add_u32 s32, s32, {CQL}")
            a("v_add_u32 v12, s32, v7")
            a("s_lshl_b32 s33, s28, 6")
            a(f"s_add_u32 s33, s33, {CQL}")
            a("v_add_u32 v13, s33, v8")
            a("s_mov_b32 s34, 0x00010001")
            a("s_mov_b32 s35, 0x00010001")
        RAMP = int(OPT.get("p1ramp", 0))
        ld = []
        for _ in range(2 if ks < RAMP else 1):
            if nload[0] < 18:
                ld += [(g, nload[0]) for g in loads(nload[0])]
                nload[0] += 1
        for i, t in enumerate(m):
            a(t)
            if i < len(rd):
                a(rd[i])
            st0 = 10 if len(ld) <= 4 else 2
            if i >= st0 and (i - st0) % 2 == 0 and (i - st0) // 2 < len(ld):
                do_load(*ld[(i - st0) // 2])
            if ks == 17 and i == 10:
                a("s_mov_b64 exec, s[34:35]")
                a(f"ds_write_b128 v12, {vr(ACC+64,4)}")
                a("s_mov_b64 exec, 0xffff")
                a(f"ds_write_b32 v13, v{ACC+68}")
                a("s_mov_b64 exec, -1")
        a("s_waitcnt lgkmcnt(0)")
    a("s_barrier")
    if "nopf" not in OPT:
        a("s_lshl_b32 s48, s13, 2")
        a("s_add_u32 s48, s48, s3")
        a("s_mul_i32 s49, s48, 5184")
        a(f"s_add_u32 s49, s49, {L['WO']}")
        a("s_sub_u32 s49, s49, s59")
        for i in range(6):
            if i == 4:
                a("s_add_u32 s49, s49, 4096")
            a(f"buffer_load_dwordx4 {ar(4*i,4)}, v3, s[4:7], s49 offen offset:{(i%4)*1024}")
        NPW = int(OPT.get("p1pw", 0))
        a("s_and_b32 s50, s12, 3")
        a("s_lshl_b32 s50, s50, 2")
        a("s_add_u32 s50, s50, s3")
        a(f"s_mul_i32 s50, s50, {SLB}")
        a(f"s_mul_i32 s51, s13, {NPW*1024}")
        a("s_add_u32 s50, s50, s51")
        a(f"s_add_u32 s50, s50, {L['W12']}")
        a("s_sub_u32 s50, s50, s59")
        for i in range(NPW):
            if i and i % 4 == 0:
                a("s_add_u32 s50, s50, 4096")
            a(f"buffer_load_dwordx4 {ar(24+4*i,4)}, v3, s[4:7], s50 offen offset:{(i%4)*1024}")
    a(f"v_add_u32 v9, {CQL}, v7")
    a(f"v_add_u32 v10, {CQL}, v8")
    for i, fr in enumerate((0, 1, 2, 3, 6)):
        a(f"ds_read_b128 {vr(CQN+4*i,4)}, v9 offset:{fr*64}")
    a(f"ds_read_b128 {vr(CQH,4)}, v12")
    for i, fr in enumerate((4, 5, 6)):
        a(f"ds_read_b32 v{CQS+i}, v10 offset:{fr*64}")
    a(f"ds_read_b32 v{CQS+3}, v13")

    KF = 88; QF = 112; VF = 128; ONE = 148; T = 152
    ts()
    for i in range(4):
        a(f"v_mul_f32 v{ACC+64+i}, v{ACC+64+i}, v{RN+4}")
        a(f"v_mul_f32 v{ACC+68+i}, v{ACC+68+i}, v{RS+16+i}")
    for n in (1, 0):
        for j in range(5):
            for i in range(4):
                a(f"v_mul_f32 v{ACC+32*n+4*j+i}, v{ACC+32*n+4*j+i}, v{RN+2*n}")
        for j in range(5, 8):
            for i in range(4):
                a(f"v_mul_f32 v{ACC+32*n+4*j+i}, v{ACC+32*n+4*j+i}, v{RS+8*n+i}")

    def corr_n(acc, n, cq):
        for i in range(4):
            a(f"v_fma_f32 v{acc+i}, -v{RN+2*n+1}, v{cq+i}, v{acc+i}")

    def corr_s(acc, n, cq):
        for i in range(4):
            a(f"v_fma_f32 v{acc+i}, -v{RS+8*n+4+i}, v{cq}, v{acc+i}")

    def pack2(dst, acc):
        a(f"v_cvt_pk_bf16_f32 v{dst}, v{acc}, v{acc+1}")
        a(f"v_cvt_pk_bf16_f32 v{dst+1}, v{acc+2}, v{acc+3}")

    a("v_cmp_eq_u32 s[36:37], 0, v5")
    a("v_cmp_eq_u32 s[38:39], 1, v5")
    a("v_lshlrev_b32 v12, 3, v1")
    a("s_mul_i32 s32, s3, 3072")
    a(f"s_add_u32 s33, s32, {EX}")
    a("v_add_u32 v13, s33, v12")
    a("s_lshl_b32 s32, s3, 9")
    a(f"s_add_u32 s32, s32, {EX}")
    a("s_cmp_eq_u32 s3, 3")
    a(f"s_cselect_b32 s32, {EX+4*3072}, s32")
    a("v_add_u32 v14, s32, v12")
    a("s_waitcnt lgkmcnt(0)")

    def conv_tile(n):
        ac = ACC + 32 * n
        tl = n + 1
        for i in range(5):
            corr_n(ac + 4 * i, n, CQN + 4 * i)
        for h in range(2):
            pack2(QF + (2 * n + h) * 4, ac + 4 * h)
            pack2(KF + (2 * tl + h) * 4, ac + 8 + 4 * h)
        pack2(T + 8 + 2 * n, ac + 16)
        for h in range(2):
            a(f"v_mov_b32 v{KF+(2*tl+h)*4+2}, v{T+8+2*n+1}")
            a(f"v_cndmask_b32 v{QF+(2*n+h)*4+2}, 0, v{T+8+2*n}, s[{36+2*h}:{37+2*h}]")
        for h in range(3):
            corr_s(ac + 20 + 4 * h, n, CQS + h)
            pack2(VF + 6 * h + 2 * tl, ac + 20 + 4 * h)

    corr_n(ACC + 64, 2, CQH)
    corr_s(ACC + 68, 2, CQS + 3)
    pack2(T + 12, ACC + 64)
    pack2(T + 14, ACC + 68)
    a(f"ds_write_b64 v14, {vr(T+12,2)}")
    a(f"ds_write_b64 v14, {vr(T+14,2)} offset:1536")
    conv_tile(1)
    a(f"ds_write_b64 v13, {vr(KF+16,2)} offset:{3072}")
    a(f"ds_write_b64 v13, {vr(KF+20,2)} offset:{3072+512}")
    a(f"ds_write_b64 v13, {vr(T+10,2)} offset:{3072+1024}")
    for h in range(3):
        a(f"ds_write_b64 v13, {vr(VF+6*h+4,2)} offset:{3072+1536+512*h}")
    conv_tile(0)
    for i in range(6):
        a(f"v_mov_b32 v{KF+4*i+3}, 0")
    for i in range(4):
        a(f"v_mov_b32 v{QF+4*i+3}, 0")
        a(f"v_mov_b32 v{ONE+i}, 0x3f803f80")
    a("s_waitcnt lgkmcnt(0)")
    ts()
    a("s_barrier")
    ts()
    a(f"ds_read_b64 {vr(KF,2)}, v13")
    a(f"ds_read_b64 {vr(KF+4,2)}, v13 offset:512")
    a(f"ds_read_b32 v{KF+2}, v13 offset:{1024+4}")
    a(f"ds_read_b32 v{KF+6}, v13 offset:{1024+4}")
    for h in range(3):
        a(f"ds_read_b64 {vr(VF+6*h,2)}, v13 offset:{1536+512*h}")
    SB = 16
    PB = 48
    MX = 64
    OB = 168
    OO = 72
    jobs = [(1, 0), (1, 1), (0, 0), (0, 1)]
    cs = (18 ** -0.5) * math.log2(math.e)
    a(f"s_mov_b32 s40, {f32(cs)}")
    for j, (n, h) in enumerate(jobs):
        if j == 2:
            a("s_waitcnt lgkmcnt(0)")
        q = vr(QF + (2 * n + h) * 4, 4)
        mp = MPA if n == 0 else MPB
        a(f"v_mfma_f32_16x16x32_bf16 {vr(SB+8*j,4)}, {vr(KF+(2*n+h)*4,4)}, {q}, {vr(mp,4)}")
        a(f"v_mfma_f32_16x16x32_bf16 {vr(SB+8*j+4,4)}, {vr(KF+(2*(n+1)+h)*4,4)}, {q}, {vr(MS,4)}")
    for j in range(4):
        s = SB + 8 * j; m = MX + 2 * j
        a(f"v_max3_f32 v{m}, v{s}, v{s+1}, v{s+2}")
        a(f"v_max3_f32 v{m+1}, v{s+3}, v{s+4}, v{s+5}")
        a(f"v_max3_f32 v{m}, v{m}, v{s+6}, v{s+7}")
        a(f"v_max_f32 v{m}, v{m}, v{m+1}")
    for j in range(4):
        a(f"v_mov_b32 v{MX+2*j+1}, v{MX+2*j}")
    for j in range(4):
        a(f"v_permlane16_swap_b32 v{MX+2*j}, v{MX+2*j+1}")
    for j in range(4):
        a(f"v_max_f32 v{MX+2*j}, v{MX+2*j}, v{MX+2*j+1}")
    for j in range(4):
        a(f"v_mov_b32 v{MX+2*j+1}, v{MX+2*j}")
    for j in range(4):
        a(f"v_permlane32_swap_b32 v{MX+2*j}, v{MX+2*j+1}")
    for j in range(4):
        a(f"v_max_f32 v{MX+2*j}, v{MX+2*j}, v{MX+2*j+1}")
    for j in range(4):
        a(f"v_mul_f32 v{MX+2*j}, s40, v{MX+2*j}")
    for j, (n, h) in enumerate(jobs):
        s = SB + 8 * j
        for i in range(8):
            a(f"v_fma_f32 v{s+i}, v{s+i}, s40, -v{MX+2*j}")
        for i in range(8):
            a(f"v_exp_f32 v{s+i}, v{s+i}")
        for i in range(4):
            a(f"v_cvt_pk_bf16_f32 v{PB+4*j+i}, v{s+2*i}, v{s+2*i+1}")
        p = vr(PB + 4 * j, 4)
        a(f"v_mfma_f32_16x16x32_bf16 {vr(OB+12*j+8,4)}, {vr(ONE,4)}, {p}, 0")
        a(f"v_mfma_f32_16x16x32_bf16 {vr(OB+12*j,4)}, {vr(VF+6*h+2*n,4)}, {p}, 0")
        a(f"v_mfma_f32_16x16x32_bf16 {vr(OB+12*j+4,4)}, {vr(VF+12+2*n,4)}, {p}, 0")
    a("s_mul_i32 s32, s17, 18432")
    a("s_lshl_b32 s33, s15, 10")
    a("s_add_u32 s33, s33, s32")
    a(f"s_add_u32 s33, s33, {OUT}")
    a("s_add_u32 s34, s33, 18432")
    a("s_lshr_b32 s35, s15, 3")
    a("s_lshl_b32 s35, s35, 10")
    a("s_and_b32 s36, s15, 3")
    a("s_lshl_b32 s36, s36, 8")
    a("s_add_u32 s35, s35, s36")
    a("s_lshr_b32 s36, s15, 2")
    a("s_and_b32 s36, s36, 1")
    a("s_lshl_b32 s36, s36, 3")
    a("s_add_u32 s35, s35, s36")
    a("s_add_u32 s35, s35, s32")
    a(f"s_add_u32 s35, s35, {OUT + 16*1024}")
    a("s_add_u32 s36, s35, 18432")
    a("v_lshlrev_b32 v12, 4, v4")
    a("v_mov_b32 v13, 0x40000000")
    a("v_cmp_eq_u32 vcc, 2, v5")
    a("v_cndmask_b32 v12, v13, v12, vcc")
    for j, (n, h) in enumerate(jobs):
        o = OB + 12 * j
        a(f"v_rcp_f32 v{o+8}, v{o+8}")
        for i in range(4):
            a(f"v_mul_f32 v{o+i}, v{o+i}, v{o+8}")
        a(f"v_mul_f32 v{o+4+2*h}, v{o+4+2*h}, v{o+8}")
        a(f"v_mul_f32 v{o+5+2*h}, v{o+5+2*h}, v{o+8}")
        a(f"v_cvt_pk_bf16_f32 v{OO+4*n+2*h}, v{o}, v{o+1}")
        a(f"v_cvt_pk_bf16_f32 v{OO+4*n+2*h+1}, v{o+2}, v{o+3}")
        a(f"v_cvt_pk_bf16_f32 v{OO+8+2*n+h}, v{o+4+2*h}, v{o+5+2*h}")
        if h == 1:
            a(f"buffer_store_dwordx4 {vr(OO+4*n,4)}, v3, s[4:7], s{33+n} offen {OPT.get('p1st', 'sc1')}")
            a(f"buffer_store_dwordx2 {vr(OO+8+2*n,2)}, v12, s[4:7], s{35+n} offen")
    ts()
    if ts.on:
        a("s_waitcnt vmcnt(0)")
    ts(); ts(True)
    ts.store()
    footer(a, name)
    return name, a.text(), dict(vgpr=240 + 144, sgpr=96, accum=240), dict(grid=256, block=256, lds=163840)


def pq_decode(a):
    a("v_and_b32 v1, 63, v0")
    a("v_lshrrev_b32 v2, 6, v0")
    a("v_readfirstlane_b32 s3, v2")
    a("v_lshlrev_b32 v3, 4, v1")
    a("v_and_b32 v4, 15, v1")
    a("v_lshrrev_b32 v5, 4, v1")
    a("s_and_b32 s12, s2, 7")
    a("s_lshl_b32 s12, s12, 3")
    a("s_lshr_b32 s13, s2, 3")
    a("s_and_b32 s15, s13, 7")
    a("s_add_u32 s12, s12, s15")
    a("s_lshr_b32 s13, s13, 3")
    a("s_mul_i32 s14, s13, 9")
    a("s_add_u32 s14, s14, s3")
    a("s_mul_i32 s15, s12, 36864")
    a("s_lshr_b32 s16, s14, 1")
    a("s_lshl_b32 s16, s16, 10")
    a("s_and_b32 s17, s14, 1")
    a("s_lshl_b32 s17, s17, 3")
    a("s_add_u32 s16, s16, s17")
    a("s_add_u32 s16, s16, s15")


def pq_epilogue(a, V, XOUT, STOUT, SCR, T):
    a(f"s_add_u32 s18, s16, {XOUT}")
    a("s_add_u32 s19, s18, 18432")
    for n in range(2):
        v = V + 4 * n
        a(f"v_cvt_pk_bf16_f32 v{T+2*n}, v{v}, v{v+1}")
        a(f"v_cvt_pk_bf16_f32 v{T+2*n+1}, v{v+2}, v{v+3}")
        a(f"buffer_store_dwordx2 {vr(T+2*n,2)}, v3, s[4:7], s{18+n} offen")
    for n in range(2):
        v = V + 4 * n; s = T + 4 + 2 * n
        a(f"v_add_f32 v{s}, v{v}, v{v+1}")
        a(f"v_mul_f32 v{s+1}, v{v}, v{v}")
        a(f"v_add_f32 v{s}, v{s}, v{v+2}")
        a(f"v_fmac_f32 v{s+1}, v{v+1}, v{v+1}")
        a(f"v_add_f32 v{s}, v{s}, v{v+3}")
        a(f"v_fmac_f32 v{s+1}, v{v+2}, v{v+2}")
        a(f"v_fmac_f32 v{s+1}, v{v+3}, v{v+3}")
    a("s_lshl_b32 s20, s3, 10")
    a(f"s_add_u32 s20, s20, {SCR}")
    a(f"v_add_u32 v{T+8}, s20, v3")
    a(f"ds_write_b128 v{T+8}, {vr(T+4,4)}")
    a("s_lshl_b32 s20, s3, 2")
    a(f"v_add_u32 v{T+9}, s20, v3")
    a("s_lshl_b32 s20, s12, 10")
    a("s_lshl_b32 s21, s13, 3")
    a("s_add_u32 s20, s20, s21")
    a("s_lshr_b32 s21, s3, 1")
    a("s_lshl_b32 s21, s21, 9")
    a("s_add_u32 s20, s20, s21")
    a("s_and_b32 s21, s3, 1")
    a("s_lshl_b32 s21, s21, 2")
    a("s_add_u32 s20, s20, s21")
    a(f"s_add_u32 s20, s20, {STOUT}")
    a(f"v_lshlrev_b32 v{T+8}, 5, v4")
    a("s_waitcnt lgkmcnt(0)")
    a("s_barrier")
    a("s_cmp_ge_u32 s3, 4")
    a("s_cbranch_scc1 " + a.endlabel)
    R = T + 12
    for w in range(9):
        a(f"ds_read_b32 v{R+w}, v{T+9} offset:{SCR+w*1024}")
    a("s_waitcnt lgkmcnt(0)")
    for st in ((0, 1), (2, 3), (4, 5), (6, 7), (0, 2), (4, 6), (0, 8), (0, 4)):
        a(f"v_add_f32 v{R+st[0]}, v{R+st[0]}, v{R+st[1]}")
    xg_reduce(a, "v_add_f32", R, T)
    a(f"buffer_store_dword v{R}, v{T+8}, s[4:7], s20 offen")


def unpack_add(a, dst, src):
    a(f"v_lshlrev_b32 v{src+2}, 16, v{src}")
    a(f"v_and_b32 v{src}, 0xffff0000, v{src}")
    a(f"v_lshlrev_b32 v{src+3}, 16, v{src+1}")
    a(f"v_and_b32 v{src+1}, 0xffff0000, v{src+1}")
    a(f"v_add_f32 v{dst}, v{dst}, v{src+2}")
    a(f"v_add_f32 v{dst+1}, v{dst+1}, v{src}")
    a(f"v_add_f32 v{dst+2}, v{dst+2}, v{src+3}")
    a(f"v_add_f32 v{dst+3}, v{dst+3}, v{src+1}")


def gen_p2(layer):
    name = f"p2l{layer}_kernel"
    XIN = L["X0"] if layer == 0 else L["X2"]
    OIN = L[f"O{layer}"]
    a = Asm(); a.endlabel = f"{name}_end"
    vm = Cnt(a, "vmcnt", 63); lg = Cnt(a, "lgkmcnt", 15)
    header(a, name, 256)
    ts = Stamps(a, name)
    ts(True); ts()
    a("s_load_dwordx2 s[4:5], s[0:1], 80")
    pq_decode(a)
    a("s_lshl_b32 s20, s3, 12")
    a("s_add_u32 s21, s15, s20")
    a(f"s_add_u32 s21, s21, {OIN}")
    a("s_mul_i32 s22, s14, 18432")
    a(f"s_add_u32 s22, s22, {L['WO']}")
    a("s_sub_u32 s22, s22, s59")
    a(f"s_add_u32 s23, s16, {XIN}")
    a("s_add_u32 s24, s23, 18432")
    a("s_mov_b32 m0, s20")
    a("s_waitcnt lgkmcnt(0)")
    a("s_add_u32 s4, s4, s59")
    a("s_addc_u32 s5, s5, 0")
    a("s_and_b32 s5, s5, 0xffff")
    a(f"s_mov_b32 s6, {WS_BYTES}")
    a("s_mov_b32 s7, 0x00020000")
    A = 16; B = 88; ACC = 8; RES = 120; T = 128
    for i in range(4):
        a(f"buffer_load_dwordx4 v3, s[4:7], s21 offen offset:{i*1024} lds"); vm.issue("o")

    def aload(ks):
        if ks and ks % 4 == 0:
            a("s_add_u32 s22, s22, 4096")
        a(f"buffer_load_dwordx4 {vr(A+4*ks,4)}, v3, s[4:7], s22 offen offset:{(ks%4)*1024}"); vm.issue(("a", ks))
    NA0 = int(OPT.get("p2na0", 2)); DA = int(OPT.get("p2da", 10))
    for ks in range(NA0):
        aload(ks)
    ts()
    vm.wait("o")
    ts()
    a("s_barrier")
    ts()
    NB = 4
    a(f"buffer_load_dwordx2 {vr(RES,2)}, v3, s[4:7], s23 offen"); vm.issue("r")
    a(f"buffer_load_dwordx2 {vr(RES+4,2)}, v3, s[4:7], s24 offen"); vm.issue("r")
    for ks in range(NA0, DA):
        aload(ks)

    def rd(ks):
        for n in range(2):
            a(f"ds_read_b128 {vr(B+8*(ks%NB)+4*n,4)}, v3 offset:{n*18432+ks*1024}"); lg.issue(("b", ks))
    for ks in range(NB - 1):
        rd(ks)
    for ks in range(18):
        if ks + DA < 18:
            aload(ks + DA)
        if ks + NB - 1 < 18:
            rd(ks + NB - 1)
        vm.wait(("a", ks))
        lg.wait(("b", ks))
        for n in range(2):
            acc = vr(ACC + 4 * n, 4)
            a(f"v_mfma_f32_16x16x32_bf16 {acc}, {vr(A+4*ks,4)}, {vr(B+8*(ks%NB)+4*n,4)}, {'0' if ks == 0 else acc}")
    a("s_lshl_b32 s25, s2, 6")
    a(f"s_add_u32 s25, s25, {L[f'FL{layer}']}")
    a("s_cmp_eq_u32 s3, 0")
    a(f"s_cselect_b32 s25, s25, {OOB}")
    a("v_lshlrev_b32 v6, 2, v4")
    a("v_mov_b32 v7, 0")
    a("buffer_store_dword v7, v6, s[4:7], s25 offen")
    vm.q = []
    ts()
    unpack_add(a, ACC, RES)
    unpack_add(a, ACC + 4, RES + 4)
    if ts.on:
        a.endlabel = f"{name}_ts"
    pq_epilogue(a, ACC, L[f"X1_{layer}"], L[f"ST1_{layer}"], 36864, 16)
    if ts.on:
        a.label(f"{name}_ts")
        ts()
        a("s_waitcnt vmcnt(0)")
    ts(); ts(True)
    ts.store()
    footer(a, name)
    return name, a.text(), dict(vgpr=128, sgpr=96, accum=128), dict(grid=256, block=576, lds=36864 + 9216)


def gen_p4(layer):
    name = f"p4l{layer}_kernel"
    a = Asm(); a.endlabel = f"{name}_end"
    vm = Cnt(a, "vmcnt", 63)
    header(a, name, 256)
    a("s_load_dwordx2 s[4:5], s[0:1], 80")
    a("s_load_dwordx4 s[24:27], s[0:1], 56")
    a("v_and_b32 v1, 63, v0")
    a("v_lshrrev_b32 v2, 6, v0")
    a("v_readfirstlane_b32 s3, v2")
    a("v_lshlrev_b32 v3, 4, v1")
    a("v_and_b32 v4, 15, v1")
    a("v_lshrrev_b32 v5, 4, v1")
    a("s_mul_i32 s12, s2, 9")
    a("s_add_u32 s12, s12, s3")
    a("s_lshl_b32 s12, s12, 10")
    a("s_and_b32 s13, s2, 1")
    a("s_mul_i32 s14, s13, 9")
    a("s_add_u32 s14, s14, s3")
    a("s_lshl_b32 s21, s14, 6")
    a(f"s_add_u32 s20, s12, {L['PART1'] if 'reuse' in OPT else L[f'PART{layer}']}")
    if "reuse" in OPT:
        a("s_sub_u32 s20, s20, s59")
    a(f"s_add_u32 s22, s12, {L[f'X1_{layer}']}")
    a("v_lshlrev_b32 v6, 3, v5")
    a("s_waitcnt lgkmcnt(0)")
    a("s_add_u32 s4, s4, s59")
    a("s_addc_u32 s5, s5, 0")
    a("s_and_b32 s5, s5, 0xffff")
    a(f"s_mov_b32 s6, {WS_BYTES}")
    a("s_mov_b32 s7, 0x00020000")
    srd(a, 28, 24, D * 2)
    P = 24; ACC = 8; BB = 16
    a(f"buffer_load_dwordx2 {vr(BB,2)}, v6, s[28:31], s21 offen"); vm.issue("r")
    a(f"buffer_load_dwordx2 {vr(BB+2,2)}, v6, s[28:31], s21 offen offset:32"); vm.issue("r")
    a(f"buffer_load_dwordx4 {vr(P,4)}, v3, s[4:7], s22 offen"); vm.issue(("p", 0))
    for s in range(8):
        a(f"buffer_load_dwordx4 {vr(P+4+4*s,4)}, v3, s[4:7], s20 offen"); vm.issue(("p", s + 1))
        a(f"s_add_u32 s20, s20, {XT}")
    a("v_mov_b32 v6, 0x00003f80")
    a("v_mov_b32 v7, 0x3f800000")
    vm.wait("r")
    for j in range(4):
        a(f"v_lshlrev_b32 v{ACC+2*j}, 16, v{BB+j}")
        a(f"v_and_b32 v{ACC+2*j+1}, 0xffff0000, v{BB+j}")
    for s in range(9):
        vm.wait(("p", s))
        for j in range(4):
            a(f"v_dot2c_f32_bf16 v{ACC+2*j}, v{P+4*s+j}, v6")
            a(f"v_dot2c_f32_bf16 v{ACC+2*j+1}, v{P+4*s+j}, v7")
    for j in range(4):
        a(f"v_cvt_pk_bf16_f32 v{16+j}, v{ACC+2*j}, v{ACC+2*j+1}")
    a("s_cmp_lg_u32 s59, 0")
    a(f"s_cbranch_scc1 {name}_fin")
    if True:
        a(f"s_add_u32 s18, s12, {L['X2']}")
        a("buffer_store_dwordx4 v[16:19], v3, s[4:7], s18 offen sc1")
        a(f"v_add_f32 v20, v{ACC}, v{ACC+1}")
        a(f"v_mul_f32 v21, v{ACC}, v{ACC}")
        a(f"v_fmac_f32 v21, v{ACC+1}, v{ACC+1}")
        for j in range(2, 8):
            a(f"v_add_f32 v20, v20, v{ACC+j}")
            a(f"v_fmac_f32 v21, v{ACC+j}, v{ACC+j}")
        a("v_lshlrev_b32 v22, 3, v0")
        a("ds_write_b64 v22, v[20:21]")
        a("s_waitcnt lgkmcnt(0)")
        a("s_barrier")
        a("s_cmp_lg_u32 s3, 0")
        a("s_cbranch_scc1 " + a.endlabel)
        for w in range(9):
            a(f"ds_read_b64 {vr(24+2*w,2)}, v22 offset:{w*512}")
        a("s_waitcnt lgkmcnt(0)")
        for st in ((0, 1), (2, 3), (4, 5), (6, 7), (0, 2), (4, 6), (0, 4), (0, 8)):
            for i in range(2):
                a(f"v_add_f32 v{24+2*st[0]+i}, v{24+2*st[0]+i}, v{24+2*st[1]+i}")
        a("v_mov_b32 v26, v24")
        a("v_mov_b32 v27, v25")
        a("v_permlane16_swap_b32 v24, v26")
        a("v_permlane16_swap_b32 v25, v27")
        a("v_add_f32 v24, v24, v26")
        a("v_add_f32 v25, v25, v27")
        a("v_lshlrev_b32 v22, 5, v4")
        a("v_lshrrev_b32 v5, 1, v5")
        a("v_lshl_add_u32 v22, v5, 3, v22")
        a("s_lshr_b32 s20, s2, 1")
        a("s_lshl_b32 s20, s20, 9")
        a("s_lshl_b32 s21, s13, 4")
        a("s_add_u32 s20, s20, s21")
        a(f"s_add_u32 s20, s20, {L['ST2']}")
        a("buffer_store_dwordx2 v[24:25], v22, s[4:7], s20 offen")
        a("s_endpgm")
        lds = 4608
        a.label(f"{name}_fin")
        srd(a, 8, 26, XT)
        a("v_mul_u32_u24 v6, 1152, v4")
        a("v_lshl_add_u32 v6, v5, 3, v6")
        a("s_lshr_b32 s20, s2, 1")
        a("s_mul_i32 s20, s20, 18432")
        a("s_add_u32 s20, s20, s21")
        a("buffer_store_dwordx2 v[16:17], v6, s[8:11], s20 offen")
        a("buffer_store_dwordx2 v[18:19], v6, s[8:11], s20 offen offset:32")
    footer(a, name)
    return name, a.text(), dict(vgpr=64, sgpr=64, accum=64), dict(grid=256, block=576, lds=lds)


def gen_p3(layer):
    name = f"p3l{layer}_kernel"
    XIN = L[f"X1_{layer}"]; STI = L[f"ST1_{layer}"]; PART = L[f"PART{layer}"]
    HX = L[f"HX{layer}"]; FL = L[f"FL{layer}"]
    if "reuse" in OPT:
        HX = L["HX1"]; PART = L["PART1"]
    a = Asm()
    vm = Cnt(a, "vmcnt", 63); lg = Cnt(a, "lgkmcnt", 15)
    header(a, name, 256)
    ts = Stamps(a, name)
    ts(True); ts()
    BUD = float(OPT.get("p3bud", 7))
    RA = 7
    N0 = int(OPT.get("p3n0", 14))
    PACE0 = int(OPT.get("p3pace0", 1)); PACE1 = int(OPT.get("p3pace1", 3))
    DFLAG = int(OPT.get("p3dflag", 45)); DPOLL = int(OPT.get("p3dpoll", 35)); DCHK = int(OPT.get("p3dchk", 40))
    K1, K3, RI, PV = 8, 10, 12, 14
    T = 16; AB = 32; AC1 = 68; HO = 164; OST = 236; BX = 244
    HP = 144
    a("s_load_dwordx2 s[4:5], s[0:1], 80")
    a("v_and_b32 v1, 63, v0")
    a("v_lshrrev_b32 v2, 6, v0")
    a("v_readfirstlane_b32 s3, v2")
    a("v_lshlrev_b32 v3, 4, v1")
    a("v_add_u32 v4, 0x10000, v3")
    a("v_add_u32 v5, 0x20000, v3")
    a("v_add_u32 v6, 18432, v3")
    a("v_and_b32 v7, 15, v1")
    a("v_lshlrev_b32 v7, 5, v7")
    a("v_lshrrev_b32 v2, 4, v1")
    a("v_lshl_add_u32 v7, v2, 3, v7")
    a("s_and_b32 s12, s2, 7")
    a("s_lshr_b32 s13, s2, 3")
    a("s_lshr_b32 s14, s12, 2")
    a("s_lshl_b32 s14, s14, 3")
    a("s_lshr_b32 s15, s13, 2")
    a("s_add_u32 s14, s14, s15")
    a("s_and_b32 s15, s12, 3")
    a("s_lshl_b32 s15, s15, 2")
    a("s_and_b32 s16, s13, 3")
    a("s_add_u32 s15, s15, s16")
    a("s_lshl_b32 s16, s14, 3")
    a("s_lshl_b32 s17, s3, 1")
    a("s_add_u32 s16, s16, s17")
    a("s_mul_i32 s17, s16, 18432")
    a(f"s_add_u32 s18, s17, {XIN}")
    a("s_mul_i32 s19, s3, 6144")
    a(f"s_mul_i32 s20, s15, {SLB}")
    a("s_add_u32 s20, s20, s19")
    a(f"s_add_u32 s20, s20, {L['W12']}")
    a("s_sub_u32 s20, s20, s59")
    a("s_lshl_b32 s21, s16, 9")
    a(f"s_add_u32 s21, s21, {STI}")
    a("s_lshl_b32 s22, s14, 4")
    a("s_add_u32 s22, s22, s15")
    a("s_lshl_b32 s22, s22, 2")
    a("s_add_u32 s22, s22, s3")
    a("s_xor_b32 s23, s22, 4")
    a("s_mul_i32 s24, s22, 18432")
    a(f"s_add_u32 s24, s24, {HX}")
    a("s_mul_i32 s25, s23, 18432")
    a(f"s_add_u32 s25, s25, {HX}")
    a("s_lshl_b32 s26, s22, 4")
    a(f"s_add_u32 s26, s26, {FL}")
    a("s_lshl_b32 s27, s23, 4")
    a(f"s_add_u32 s27, s27, {FL}")
    a("s_lshr_b32 s28, s15, 1")
    a(f"s_mul_i32 s28, s28, {XT}")
    a("s_add_u32 s28, s28, s17")
    a("s_and_b32 s29, s15, 1")
    a("s_mul_i32 s29, s29, 9216")
    a("s_add_u32 s28, s28, s29")
    a(f"s_add_u32 s28, s28, {PART}")
    a("s_mov_b32 s31, 0")
    if "reuse" in OPT:
        for r in (24, 25, 28):
            a(f"s_sub_u32 s{r}, s{r}, s59")
    a("s_waitcnt lgkmcnt(0)")
    a("s_add_u32 s4, s4, s59")
    a("s_addc_u32 s5, s5, 0")
    a("s_and_b32 s5, s5, 0xffff")
    a(f"s_mov_b32 s6, {WS_BYTES}")
    a("s_mov_b32 s7, 0x00020000")
    for n in range(2):
        a(f"buffer_load_dwordx2 {vr(T+2*n,2)}, v7, s[4:7], s21 offen offset:{n*512}"); vm.issue("st")

    U = []
    for k in range(19):
        for t in range(G0):
            for mh in range(2):
                U.append(("p1", t, k, mh))
    for t in range(G0, 9):
        for k in range(19):
            for mh in range(2):
                U.append(("p1", t, k, mh))
    for hk in range(KO):
        for dt in range(9):
            for mh in range(2):
                U.append(("p2", dt, hk, mh))
    for dt in range(9):
        for hk in range(KO, 18):
            for mh in range(2):
                U.append(("p2", dt, hk, mh))
    NU = len(U)
    assert NU == 666

    def mfma(i, n):
        kind, t, k, mh = U[i]
        if kind == "p1":
            acc = vr(AC1 + 16 * (t % 6) + (2 * mh + n) * 4, 4)
            b = ar((18 * n + k) * 4, 4) if k < 18 else vr(BX + 4 * n, 4)
        else:
            acc = ar(16 * t + (2 * mh + n) * 4, 4)
            b = vr(HO + (2 * k + n) * 4, 4) if k < 9 else ar(HP + (2 * (k - 9) + n) * 4, 4)
        a(f"v_mfma_f32_16x16x32_bf16 {acc}, {vr(AB+4*(i%9),4)}, {b}, {'0' if k == 0 else acc}")

    LQ = []

    def mk_w(c, i):
        def fn():
            if i == 0:
                a(f"s_add_u32 m0, s19, {(c % 6) * 24576}")
            if i == 4:
                a("s_add_u32 m0, m0, 4096")
                a("s_add_u32 s20, s20, 4096")
            if not ("p3nodma" in OPT and c >= 6):
                a(f"buffer_load_dwordx4 v3, s[4:7], s20 offen offset:{(i%4)*1024} lds"); vm.issue(("w", c))
            if i == 5:
                a(f"s_add_u32 s20, s20, {24576-4096}")
        return fn

    def mk_y(k, n):
        def fn():
            a(f"buffer_load_dwordx4 {ar((18*n+k)*4,4)}, {'v6' if n else 'v3'}, s[4:7], s18 offen offset:{(k%4)*1024}"); vm.issue(("y", k))
            if k % 4 == 3 and n == 1:
                a("s_add_u32 s18, s18, 4096")
        return fn
    for c in range(NCHUNK):
        for i in range(6):
            LQ.append((24 * c - RA - 0.5 + i * 0.01, c - 4 if c >= 6 else -1, 2 if i in (0, 5) else (3 if i == 4 else 1), mk_w(c, i), "w"))
    for k in range(18):
        for n in range(2):
            LQ.append((k * G0 * 2 - 0.1 + n * 0.01, -1, 1, mk_y(k, n), "y"))
    LQ.sort(key=lambda x: x[0])
    ny_left = [36]

    def lq_issue():
        it = LQ.pop(0)
        it[3]()
        if it[4] == "y":
            ny_left[0] -= 1
        return it[2]

    for _ in range(N0):
        lq_issue()
    ts()
    kk = math_sqrt(2.0 / PI)
    C1 = -2.0 * kk * LOG2E
    C3 = C1 * 0.044715
    a("v_mov_b32 v7, 0")
    vm.wait("st")
    for sw in ("v_permlane16_swap_b32", "v_permlane32_swap_b32"):
        for r in range(4):
            a(f"v_mov_b32 v{T+4+r}, v{T+r}")
        for r in range(4):
            a(f"{sw} v{T+r}, v{T+4+r}")
        for r in range(4):
            a(f"v_add_f32 v{T+r}, v{T+r}, v{T+4+r}")
    for n in range(2):
        m = T + 2 * n; r = T + 8 + n; t = T + 4 + n; bx = BX + 4 * n
        stats_finish(a, m, m + 1, r, T + 10 + n, t, True)
        a(f"v_rcp_f32 v{RI+n}, v{r}")
        a(f"v_mul_f32 v{K1+n}, {f32(C1)}, v{r}")
        a(f"v_mul_f32 v{K3+n}, v{r}, v{r}")
        a(f"v_mul_f32 v{K3+n}, v{K3+n}, v{r}")
        a(f"v_mul_f32 v{K3+n}, {f32(C3)}, v{K3+n}")
        a(f"v_cvt_pk_bf16_f32 v{t}, v{RI+n}, v{RI+n}")
        a(f"v_and_b32 v{t}, 0xffff0000, v{t}")
        a(f"v_sub_f32 v{t}, v{RI+n}, v{t}")
        a(f"v_cvt_pk_bf16_f32 v{bx}, v{RI+n}, v{t}")
        a(f"v_sub_f32 v{m}, 0, v{m}")
        a(f"v_cvt_pk_bf16_f32 v{bx+1}, v{m}, v{m}")
        a(f"v_and_b32 v{t}, 0xffff0000, v{bx+1}")
        a(f"v_sub_f32 v{t}, v{m}, v{t}")
        a(f"v_cvt_pk_bf16_f32 v{bx+2}, v{t}, v7")
        a(f"v_mov_b32 v{bx+3}, 0")

    EV = {}
    cur = [0]
    slow = []

    def ev(g, cost, fn):
        EV.setdefault(g, []).append((cost, fn))

    def mk(text):
        return lambda: a(text)

    def mk_hstore(q):
        def fn():
            if "p3nox" in OPT:
                hl_done.add(q)
                return
            if q % 4 == 0 and q:
                a("s_add_u32 s24, s24, 4096")
            a(f"buffer_store_dwordx4 {vr(HO+4*q,4)}, v3, s[4:7], s24 offen offset:{(q%4)*1024} sc1"); vm.issue(("hs", q))
            if q % 6 == 5:
                b = q // 6
                g = cur[0] + DFLAG
                ev(g, 3, lambda: flag_store(b))
                ev(g + DPOLL, 1, lambda: poll_issue(b))
                ev(g + DPOLL + DCHK, 4, lambda: poll_check(b))
        return fn

    def flag_store(b):
        a(f"v_mov_b32 v{PV}, {b+1}")
        vm.wait(("hs", 6 * b + 5))
        a("s_mov_b64 exec, 1")
        a(f"buffer_store_dword v{PV}, v7, s[4:7], s26 offen sc1"); vm.issue("fs")
        a("s_mov_b64 exec, -1")

    def poll_issue(b):
        a("s_mov_b64 exec, 1")
        a(f"buffer_load_dword v2, v7, s[4:7], s27 offen sc1"); vm.issue(("pl", b))
        a("s_mov_b64 exec, -1")

    def poll_check(b):
        vm.wait(("pl", b))
        a("v_readfirstlane_b32 s30, v2")
        a(f"s_cmp_gt_u32 s30, {b}")
        a.nf(f"s_cbranch_scc0 {name}_w{b}")
        a.label(f"{name}_r{b}", safe=False)
        slow.append(b)
        for i in range(6):
            ev(cur[0] + 1 + 2 * i, 1, mk_hload(6 * b + i))

    def mk_hload(q):
        def fn():
            if q % 4 == 0 and q:
                a("s_add_u32 s25, s25, 4096")
            a(f"buffer_load_dwordx4 {ar(HP+4*q,4)}, v3, s[4:7], s25 offen offset:{(q%4)*1024} sc1"); vm.issue(("hl", q))
            hl_done.add(q)
        return fn
    hl_done = set()

    SK = float(OPT.get("p3skew", 2.5))
    gel = []

    def add_gelu(t, ready):
        ac = AC1 + 16 * (t % 6)
        for v in range(16):
            n = v // 8; mh = (v // 4) % 2; i = v % 4
            x = ac + (2 * mh + n) * 4 + i; tm = T + v
            ops = [(1, f"v_mul_f32 v{tm}, v{x}, v{x}"), (1, f"v_fma_f32 v{tm}, v{tm}, v{K3+n}, v{K1+n}"), (1, f"v_mul_f32 v{tm}, v{tm}, v{x}"),
                   (2, f"v_exp_f32 v{tm}, v{tm}"), (1, f"v_fma_f32 v{tm}, v{tm}, v{RI+n}, v{RI+n}"), (2, f"v_rcp_f32 v{tm}, v{tm}"),
                   (1, f"v_mul_f32 v{x}, v{x}, v{tm}")]
            if "p3pk" in OPT:
                sel = "op_sel:[0,1,1] op_sel_hi:[1,1,1]" if n else "op_sel_hi:[1,0,0]"
                c = float(OPT["p3pk"])
                if v % 2 == 0:
                    X = vr(x, 2); TM = vr(tm, 2)
                    ops = [(c, f"v_pk_mul_f32 {TM}, {X}, {X}"), (c, f"v_pk_fma_f32 {TM}, {TM}, {vr(K3,2)}, {vr(K1,2)} {sel}"), (c, f"v_pk_mul_f32 {TM}, {TM}, {X}"),
                           (2, f"v_exp_f32 v{tm}, v{tm}"), None, (2, f"v_rcp_f32 v{tm}, v{tm}"), None]
                else:
                    X = vr(x - 1, 2); TM = vr(tm - 1, 2)
                    ops = [None, None, None, (2, f"v_exp_f32 v{tm}, v{tm}"), (c, f"v_pk_fma_f32 {TM}, {TM}, {vr(RI,2)}, {vr(RI,2)} {sel}"),
                           (2, f"v_rcp_f32 v{tm}, v{tm}"), (c, f"v_pk_mul_f32 {X}, {X}, {TM}")]
                for st, o in enumerate(ops):
                    if o is None:
                        continue
                    key = 16 * t + (v | 1) + st * SK + (0.3 if v % 2 else 0)
                    gel.append((key, ready, o[0], mk(o[1]), None))
                ops = []
            if "p3nogelu" in OPT:
                ops = []
            for st, (c, tx) in enumerate(ops):
                gel.append((16 * t + v + st * SK, ready, c, mk(tx), None))
            if v % 2 == 1:
                gel.append((16 * t + v + 6 * SK + 1.2, ready, 1, mk(f"v_cvt_pk_bf16_f32 v{HO+8*t+v//2}, v{x-1}, v{x}"), None))
            if v % 8 == 7:
                q = 2 * t + n
                gel.append((16 * t + v + 6 * SK + 2.4, ready, 1, mk_hstore(q), ("h", q)))
    last_idx = {}
    for i, u in enumerate(U):
        last_idx[u[:2]] = i
    for t in range(9):
        add_gelu(t, last_idx[("p1", t)] + 2)
    gel.sort(key=lambda x: x[0])
    VQ = [(g[1], g[2], g[3], g[4]) for g in gel]
    for dt in range(9):
        rdy = last_idx[("p2", dt)] + 2
        for n in range(2):
            o = OST + 4 * n
            for mh in range(2):
                for i in range(4):
                    VQ.append((rdy, 1, mk(f"v_accvgpr_read_b32 v{T+8*n+4*mh+i}, a{16*dt+(2*mh+n)*4+i}"), None))
            for e in range(4):
                VQ.append((rdy, 1, mk(f"v_cvt_pk_bf16_f32 v{o+e}, v{T+8*n+2*e}, v{T+8*n+2*e+1}"), None))

            def st(n=n, o=o, dt=dt):
                if dt % 4 == 0 and dt and n == 0:
                    a("s_add_u32 s28, s28, 4096")
                a(f"buffer_store_dwordx4 {vr(o,4)}, {'v6' if n else 'v3'}, s[4:7], s28 offen offset:{(dt%4)*1024} sc1"); vm.issue("po")
            VQ.append((rdy, 1, st, None))
    done_tags = set()

    def vq_pop():
        it = VQ.pop(0)
        assert it[0] - 2 < cur[0] + (1 if cur[0] == NU - 1 else 0), (it[0], cur[0])
        it[2]()
        if it[3]:
            done_tags.add(it[3])
        return it[1]

    def dsread(f):
        if "p3nolds" in OPT and f >= 9:
            return
        off = ((f // 24) % 6) * 24576 + (f % 24) * 1024
        base = "v3" if off < 65536 else ("v4" if off < 131072 else "v5")
        a(f"ds_read_b128 {vr(AB+4*(f%9),4)}, {base} offset:{off % 65536}"); lg.issue(("a", f))

    bar_done = [-1]

    def chunk_barrier(c):
        while LQ and LQ[0][0] <= 24 * c - RA:
            lq_issue()
        vm.wait(("w", c))
        a("s_barrier")
        bar_done[0] = c

    ts()
    chunk_barrier(0)
    ts()
    for f in range(RA):
        dsread(f)
    last_lq = -10
    forced = 0
    for i in range(NU):
        cur[0] = i
        kind, t, k, mh = U[i]
        if kind == "p1" and t == 0 and mh == 0 and k < 18:
            while LQ and LQ[0][0] <= i:
                lq_issue()
            vm.wait(("y", k))
        if kind == "p2":
            if k < 9:
                while ("h", 2 * k + 1) not in done_tags:
                    vq_pop(); forced += 1
            else:
                q = 2 * (k - 9) + 1
                while q not in hl_done:
                    g = min(EV)
                    for c, fn in EV.pop(g):
                        fn()
                    forced += 1000
                vm.wait(("hl", q))
        if kind == "p1" and k == 0 and t >= 6:
            while ("h", 2 * (t - 6) + 1) not in done_tags:
                vq_pop(); forced += 1
        if i % 3 == 0:
            lg.wait(("a", min(i + 2, NU - 1)))
        if ts.on and i in (38 * G0, 190, 266, 342, 396, 450, 504, 558, 612):
            ts(); lg.q = []
        mfma(i, 0)
        bud = BUD / 2
        for c, fn in EV.pop(i, []):
            fn(); bud -= c
        pace = PACE0 if ny_left[0] else PACE1
        if LQ and LQ[0][1] <= bar_done[0] and i - last_lq >= pace:
            bud -= lq_issue(); last_lq = i
        while VQ and VQ[0][0] <= i and bud >= VQ[0][1] - 0.5:
            bud -= vq_pop()
        mfma(i, 1)
        if "p3idle" in OPT:
            a(f"s_nop {OPT['p3idle']}")
        bud += BUD / 2 - 1 / 3
        if i + RA < NU:
            if (i + RA) % 24 == 0:
                chunk_barrier((i + RA) // 24); bud -= 2
            dsread(i + RA); bud -= 1
        while VQ and VQ[0][0] <= i and bud >= VQ[0][1] - 0.5:
            bud -= vq_pop()
    assert not EV, EV.keys()
    ts()
    while VQ:
        vq_pop()
    print(name, "forced:", forced, file=sys.stderr)
    ts()
    if ts.on:
        a("s_waitcnt vmcnt(0)")
    ts(); ts(True)
    ts.store()
    a("s_endpgm")
    for b in slow:
        a.label(f"{name}_w{b}")
        a("s_add_u32 s31, s31, 1")
        a("s_cmp_gt_u32 s31, 0x4000")
        a(f"s_cbranch_scc1 {name}_r{b}")
        a("s_sleep 2")
        a(f"buffer_load_dword v2, v7, s[4:7], s27 offen sc1")
        a("s_waitcnt vmcnt(0)")
        a("v_readfirstlane_b32 s30, v2")
        a(f"s_cmp_gt_u32 s30, {b}")
        a(f"s_cbranch_scc0 {name}_w{b}")
        a(f"s_branch {name}_r{b}")
    footer(a, name)
    return name, a.text(), dict(vgpr=512, sgpr=102, accum=256), dict(grid=256, block=256, lds=147456)


def main():
    ks = [gen_p0(), gen_p1(0), gen_p2(0), gen_p3(0), gen_p4(0)]
    allk = [ks[0]] + ks[1:] + [(k[0].replace("l0_", "l1_"), "", k[2], k[3]) for k in ks[1:]]
    seq = allk
    if "seq" in OPT:
        byname = {k[0][:-7]: k for k in allk}
        seq = [byname[n] for n in OPT["seq"].split("+")]
    ref = open(f"cdna_kernels/{NAME}.s.ref").read().split("\n")
    hdr = [ln for ln in ref if ln.startswith(";") and "@launch" not in ln and "Override launch" not in ln and "grid=ceil" not in ln]
    out = hdr[:]
    for name, _, _, g in seq:
        out.append(f"; @launch kernel={name} grid=({g['grid']},1,1) block=({g['block']},1,1) lds={g['lds']}")
    out.append('.amdgcn_target "amdgcn-amd-amdhsa--gfx950"')
    out.append(".text")
    for _, txt, _, _ in ks:
        out.append(txt)
    out.append("code_end:")
    out.append("    s_endpgm")
    out.append('.section .rodata,"a"')
    for name, _, kd, _ in allk:
        out.append(KD.format(name=name, **kd))
    path = sys.argv[1] if len(sys.argv) > 1 else f"cdna_kernels/{NAME}.s"
    open(path, "w").write("\n".join(out))
    json.dump(L, open("layout.json", "w"))
    print("written", path, "ws end", L["END"])


if __name__ == "__main__":
    main()
```

```python
import sys, json, math
from asmb import Asm, KD, vr, ar, sr
from gen import (OPT, NAME, S, D, F, XT, TILE, OOB, WS_BYTES, L, G0, KT, KO, NCHUNK, SLB, f32, Cnt, Stamps, srd,
                 xg_reduce, stats_finish, gen_p0)

LOG2E = math.log2(math.e)
EX = 147456
CQL = EX + 5 * 3072
CNT = 16384


def gen_main():
    name = "main_kernel"
    a = Asm()
    vm = Cnt(a, "vmcnt", 63); lg = Cnt(a, "lgkmcnt", 15)
    ts = Stamps(a, name)
    XIN = L["X0"]; STI = L["ST0"]; OUT = L["O0"]; X1 = L["X1_0"]; ST1 = L["ST1_0"]
    PART = L["PART0"]; HX = L["HX0"]; FL = L["FL0"]; LSTR = L["LSTR"]
    slowcode = []

    a.raw(f".globl {name}\n.p2align 8\n.type {name},@function\n{name}:")
    a("s_cmp_ge_u32 s2, 256")
    a(f"s_cbranch_scc1 {name}_end")
    ts(True); ts()
    a("s_load_dwordx2 s[4:5], s[0:1], 80")
    a("s_mov_b32 s59, 0")
    a("s_mov_b32 s57, 0")
    a("v_and_b32 v1, 63, v0")
    a("v_lshrrev_b32 v2, 6, v0")
    a("v_readfirstlane_b32 s3, v2")
    a("v_lshlrev_b32 v3, 4, v1")
    a("v_mov_b32 v252, 0")
    a("s_and_b32 s12, s2, 7")
    a("s_lshr_b32 s13, s2, 3")
    a("s_lshr_b32 s8, s12, 2")
    a("s_lshl_b32 s8, s8, 3")
    a("s_lshr_b32 s14, s13, 2")
    a("s_add_u32 s8, s8, s14")
    a("s_and_b32 s9, s12, 3")
    a("s_lshl_b32 s9, s9, 2")
    a("s_and_b32 s14, s13, 3")
    a("s_add_u32 s9, s9, s14")
    a("s_lshl_b32 s10, s8, 7")
    a(f"s_add_u32 s10, s10, {FL + CNT}")
    a("s_sub_u32 s11, s10, 128")
    a("s_cmp_eq_u32 s8, 0")
    a("s_cselect_b32 s11, s10, s11")

    nsync = [0]

    def sync(target, prefetch=None, prev=False):
        k = nsync[0]; nsync[0] += 1
        a("s_waitcnt vmcnt(0)")
        a("s_barrier")
        vm.q = []
        a("s_cmp_lg_u32 s3, 0")
        a(f"s_cbranch_scc1 {name}_sa{k}")
        a("v_mov_b32 v2, 1")
        a("s_mov_b64 exec, 1")
        a("buffer_atomic_add v2, v252, s[4:7], s10 offen")
        a("s_mov_b64 exec, -1")
        a.label(f"{name}_sa{k}")
        if prefetch:
            prefetch()
        a("s_cmp_lg_u32 s3, 0")
        a(f"s_cbranch_scc1 {name}_sb{k}")
        a("s_mov_b64 exec, 1")
        a.label(f"{name}_sp{k}")
        a("buffer_load_dword v2, v252, s[4:7], s10 offen sc1")
        if prev:
            a("buffer_load_dword v253, v252, s[4:7], s11 offen sc1")
        a("s_add_u32 s57, s57, 1")
        a("s_waitcnt vmcnt(0)")
        if prev:
            a("v_min_u32 v2, v2, v253")
        a("v_readfirstlane_b32 s58, v2")
        a("s_cmp_gt_u32 s57, 0x40000")
        a(f"s_cbranch_scc1 {name}_sq{k}")
        a(f"s_cmp_lt_u32 s58, {target}")
        a(f"s_cbranch_scc1 {name}_sp{k}")
        a.label(f"{name}_sq{k}")
        a("s_mov_b64 exec, -1")
        a.label(f"{name}_sb{k}")
        a("s_waitcnt vmcnt(0) lgkmcnt(0)")
        a("s_barrier")
        vm.q = []; lg.q = []

    ACC = 16; AB = 88
    RN = 168; RS = 176; CQN = 200; CQH = 220; CQS = 224
    MS = 228; MPA = 232; MPB = 236
    T0 = 200

    def p1_setup():
        a("v_and_b32 v4, 15, v1")
        a("v_lshrrev_b32 v5, 4, v1")
        a("s_lshl_b32 s16, s8, 3")
        a("s_lshl_b32 s17, s3, 1")
        a("s_add_u32 s17, s17, s16")
        a("s_mul_i32 s18, s17, 18432")
        a(f"s_add_u32 s18, s18, {XIN}")
        a("s_mul_i32 s22, s16, 18432")
        a(f"s_add_u32 s22, s22, {XIN - 18432}")
        a("s_cmp_eq_u32 s8, 0")
        a(f"s_cselect_b32 s22, {OOB}, s22")
        a("s_lshl_b32 s25, s17, 9")
        a(f"s_add_u32 s25, s25, {STI}")
        a("s_lshl_b32 s26, s16, 9")
        a(f"s_add_u32 s26, s26, {STI - 512}")
        a("s_cmp_eq_u32 s8, 0")
        a(f"s_cselect_b32 s26, {OOB}, s26")
        a("s_lshl_b32 s27, s3, 2")
        a("s_lshr_b32 s28, 0x1654, s27")
        a("s_and_b32 s28, s28, 15")
        a("s_lshr_b32 s27, 0x0632, s27")
        a("s_and_b32 s27, s27, 15")
        a("v_lshlrev_b32 v6, 5, v4")
        a("v_lshl_add_u32 v6, v5, 3, v6")
        a("v_lshlrev_b32 v7, 4, v5")
        a("v_lshlrev_b32 v8, 2, v4")
        a("v_add_u32 v15, 18432, v3")

    def p1_consts():
        a("v_min_u32 v12, 71, v0")
        a("v_lshrrev_b32 v13, 2, v12")
        a("v_lshlrev_b32 v13, 13, v13")
        a("v_and_b32 v12, 3, v12")
        a("v_lshl_add_u32 v13, v12, 8, v13")
        for i in range(4):
            a(f"v_mov_b32 v{ACC+i}, 0x3f803f80")
        a(f"ds_write_b128 v13, {vr(ACC,4)} offset:7168")
        a("v_mov_b32 v9, v3")
        a("s_lshl_b32 s32, s27, 10")
        a("v_add_u32 v10, s32, v3")
        a("s_lshl_b32 s32, s28, 10")
        a("v_add_u32 v11, s32, v3")
        a(f"v_mov_b32 v12, {f32(-1e30)}")
        a("v_lshlrev_b32 v13, 2, v5")
        a("v_sub_u32 v13, v4, v13")
        a("s_cmp_eq_u32 s17, 0")
        a("s_cselect_b32 s33, -100, -2")
        for i in range(4):
            a(f"v_subrev_u32 v14, {i}, v13")
            a("v_and_b32 v2, 1, v14")
            a("v_cmp_eq_u32 s[34:35], 0, v2")
            a("v_cmp_le_i32 vcc, 0, v14")
            a("s_and_b64 vcc, vcc, s[34:35]")
            a(f"v_cndmask_b32 v{MS+i}, v12, 0, vcc")
            a("v_cmp_ge_i32 vcc, -2, v14")
            a("s_and_b64 vcc, vcc, s[34:35]")
            a(f"v_cndmask_b32 v{MPB+i}, v12, 0, vcc")
            a("v_cmp_ge_i32 vcc, s33, v14")
            a("s_and_b64 vcc, vcc, s[34:35]")
            a(f"v_cndmask_b32 v{MPA+i}, v12, 0, vcc")
        a("s_mul_i32 s32, s3, 384")
        a(f"s_add_u32 s32, s32, {EX}")
        a("v_add_u32 v12, s32, v8")
        a("v_add_u32 v13, s32, v7")
        for i in range(1, 5):
            a(f"v_add_u32 v{239+i}, {4096*i}, v3")
        a("s_and_b32 s40, s9, 3")
        a("s_and_b32 s41, s40, 1")
        a("s_mul_i32 s42, s40, 9")
        a("s_add_u32 s43, s42, s41")
        a("s_lshl_b32 s46, s3, 1")
        a("s_add_u32 s43, s43, s46")
        a("s_add_u32 s46, s42, 8")
        a("s_cmp_eq_u32 s41, 1")
        a("s_cselect_b32 s46, s42, s46")
        a("s_mul_i32 s47, s43, 18432")
        a(f"s_add_u32 s47, s47, {L['WO']}")
        a("s_sub_u32 s47, s47, s59")
        a("s_add_u32 s48, s47, 18432")
        a("s_mul_i32 s49, s46, 18432")
        a(f"s_add_u32 s49, s49, {L['WO']}")
        a("s_sub_u32 s49, s49, s59")

    def wo_load(j, ks):
        def fn():
            vo = "v3" if ks < 4 else f"v{239 + ks // 4}"
            a(f"buffer_load_dwordx4 {ar((j*18+ks)*4,4)}, {vo}, s[4:7], s{47+j} offen offset:{(ks%4)*1024}"); vm.issue("wo")
        return fn

    def p1_stats_load():
        for n, so, off in ((0, "s25", 0), (1, "s25", 512), (2, "s26", 0)):
            a(f"buffer_load_dwordx2 {vr(T0+2*n,2)}, v6, s[4:7], {so} offen offset:{off} sc1"); vm.issue("st")

    def p1_stats_math():
        vm.wait("st")
        for sw in ("v_permlane16_swap_b32", "v_permlane32_swap_b32"):
            for r in range(6):
                a(f"v_mov_b32 v{T0+8+r}, v{T0+r}")
            for r in range(6):
                a(f"{sw} v{T0+r}, v{T0+8+r}")
            for r in range(6):
                a(f"v_add_f32 v{T0+r}, v{T0+r}, v{T0+8+r}")
        for n in range(3):
            b = T0 + 2 * n
            stats_finish(a, b, b + 1, RN + 2 * n, RN + 2 * n + 1, T0 + 8 + n, False)
            a(f"ds_write_b32 v12, v{RN+2*n} offset:{n*128}")
            a(f"ds_write_b32 v12, v{RN+2*n+1} offset:{n*128+64}")
        for n in range(3):
            a(f"ds_read_b128 {vr(RS+8*n,4)}, v13 offset:{n*128}")
            a(f"ds_read_b128 {vr(RS+8*n+4,4)}, v13 offset:{n*128+64}")

    def reads(ks):
        b = AB + 40 * (ks & 1)
        o = (ks % 8) * 8192
        r = [f"ds_read_b128 {vr(b+28,4)}, v9 offset:{o+7*1024}",
             f"ds_read_b128 {vr(b+32,4)}, v10 offset:{o}",
             f"ds_read_b128 {vr(b+36,4)}, v11 offset:{o}"]
        r += [f"ds_read_b128 {vr(b+4*fr,4)}, v9 offset:{o+fr*1024}" for fr in (0, 1, 2, 3, 6, 4, 5)]
        return r

    def mfmas(ks):
        b = AB + 40 * (ks & 1)
        r = []
        acc = vr(ACC + 64, 4); c = "0" if ks == 0 else acc
        r.append(f"v_mfma_f32_16x16x32_bf16 {acc}, {vr(b+32,4)}, {vr(b+28,4)}, {c}")
        acc = vr(ACC + 68, 4); c = "0" if ks == 0 else acc
        r.append(f"v_mfma_f32_16x16x32_bf16 {acc}, {vr(b+28,4)}, {vr(b+36,4)}, {c}")
        for slot, fr in enumerate((0, 1, 2, 3, 6, 4, 5, 6)):
            for n in range(2):
                acc = vr(ACC + 32 * n + 4 * slot, 4)
                x = ar(72 * n + 4 * ks, 4)
                w = vr(b + 4 * fr, 4)
                c = "0" if ks == 0 else acc
                if slot < 5:
                    r.append(f"v_mfma_f32_16x16x32_bf16 {acc}, {w}, {x}, {c}")
                else:
                    r.append(f"v_mfma_f32_16x16x32_bf16 {acc}, {x}, {w}, {c}")
        return r

    def xloads(ks):
        o = (ks % 4) * 1024
        return [[f"buffer_load_dwordx4 {ar(4*ks,4)}, v3, s[4:7], s18 offen offset:{o} sc1"],
                [f"buffer_load_dwordx4 {ar(72+4*ks,4)}, v15, s[4:7], s18 offen offset:{o} sc1"] + (["s_add_u32 s18, s18, 4096"] if ks % 4 == 3 else [])]

    def do_load(grp, ks):
        for t in grp:
            a(t)
        vm.issue(("k", ks))

    def p1_loop(loads, PF, CH):
        for t in reads(0):
            a(t)
        a("s_waitcnt lgkmcnt(0)")
        wo_early = [wo_load(2, ks) for ks in range(18)]
        for ks in range(18):
            m = mfmas(ks)
            nxt = ks + 1
            rd = []
            if not CH:
                vm.wait(("k", ks))
            if nxt < 18:
                if CH and nxt % CH == 0:
                    vm.wait(("k", min(nxt + CH - 1, 17)))
                    a("s_barrier")
                if nxt % 8 == 0:
                    a("v_add_u32 v9, 0x10000, v9")
                    a("v_add_u32 v10, 0x10000, v10")
                    a("v_add_u32 v11, 0x10000, v11")
                rd = reads(nxt)
            else:
                a("s_lshl_b32 s32, s27, 6")
                a(f"s_add_u32 s32, s32, {CQL}")
                a("v_add_u32 v12, s32, v7")
                a("s_lshl_b32 s33, s28, 6")
                a(f"s_add_u32 s33, s33, {CQL}")
                a("v_add_u32 v13, s33, v8")
                a("s_mov_b32 s34, 0x00010001")
                a("s_mov_b32 s35, 0x00010001")
            ld = loads(ks + PF) if ks + PF < 18 else []
            for i, t in enumerate(m):
                a(t)
                if i < len(rd):
                    a(rd[i])
                if i >= 10 and (i - 10) % 2 == 0:
                    if (i - 10) // 2 < len(ld):
                        do_load(ld[(i - 10) // 2], ks + PF)
                    elif ks + PF >= 18 and wo_early:
                        wo_early.pop(0)()
                if ks == 17 and i == 10:
                    a("s_mov_b64 exec, s[34:35]")
                    a(f"ds_write_b128 v12, {vr(ACC+64,4)}")
                    a("s_mov_b64 exec, 0xffff")
                    a(f"ds_write_b32 v13, v{ACC+68}")
                    a("s_mov_b64 exec, -1")
            a("s_waitcnt lgkmcnt(0)")
        while wo_early:
            wo_early.pop(0)()

    p1_setup()
    a(f"s_mul_i32 s20, s9, {18*7168}")
    a("s_lshl_b32 s21, s3, 11")
    a("s_add_u32 s20, s20, s21")
    a(f"s_add_u32 s20, s20, {L['WQ']}")
    a("s_sub_u32 s22, s22, 1024")
    a("s_mov_b32 s52, 7168")
    a("s_mov_b32 s44, 0xfffefffe")
    a("s_cmp_eq_u32 s3, 3")
    a("s_cselect_b32 s22, s22, s20")
    a("s_cselect_b32 s52, 1024, s52")
    a("s_cselect_b32 s44, s44, -1")
    a("s_mov_b32 s45, s44")
    a("s_mov_b32 s24, s21")
    a("s_waitcnt lgkmcnt(0)")
    a("s_and_b32 s5, s5, 0xffff")
    a(f"s_mov_b32 s6, {WS_BYTES}")
    a("s_mov_b32 s7, 0x00020000")
    p1_stats_load()

    def loads_a(ks):
        return [["s_mov_b32 m0, s24", "s_add_u32 s24, s24, 8192", "buffer_load_dwordx4 v3, s[4:7], s20 offen lds", "s_add_u32 s20, s20, 7168"],
                ["s_mov_b64 exec, s[44:45]", "buffer_load_dwordx4 v3, s[4:7], s22 offen offset:1024 lds", "s_mov_b64 exec, -1",
                 "s_add_u32 s22, s22, s52"]] + xloads(ks)
    for ks in range(2):
        for grp in loads_a(ks):
            do_load(grp, ks)
    p1_consts()
    for ks in range(2, 4):
        for grp in loads_a(ks):
            do_load(grp, ks)
    p1_stats_math()
    for grp in loads_a(4):
        do_load(grp, 4)
    vm.wait(("k", 1))
    a("s_waitcnt lgkmcnt(0)")
    a("s_barrier")
    ts()
    p1_loop(loads_a, 5, 2)

    a.label(f"{name}_epi")
    vm.q = ["wo"] * 18
    ts.n = 3
    ts()
    a("s_barrier")
    a(f"v_add_u32 v9, {CQL}, v7")
    a(f"v_add_u32 v10, {CQL}, v8")
    for i, fr in enumerate((0, 1, 2, 3, 6)):
        a(f"ds_read_b128 {vr(CQN+4*i,4)}, v9 offset:{fr*64}")
    a(f"ds_read_b128 {vr(CQH,4)}, v12")
    for i, fr in enumerate((4, 5, 6)):
        a(f"ds_read_b32 v{CQS+i}, v10 offset:{fr*64}")
    a(f"ds_read_b32 v{CQS+3}, v13")
    NBG = int(OPT.get("nbg", 24))
    wo_rest = [wo_load(j, ks) for ks in range(18) for j in range(2)]
    a.bg = wo_rest[:NBG]; wo_rest = wo_rest[NBG:]
    a.bg_every = int(OPT.get("bgevery", 13))
    KF = 88; QF = 112; VF = 128; ONE = 148; T = 152
    for i in range(4):
        a(f"v_mul_f32 v{ACC+64+i}, v{ACC+64+i}, v{RN+4}")
        a(f"v_mul_f32 v{ACC+68+i}, v{ACC+68+i}, v{RS+16+i}")
    for n in (1, 0):
        for j in range(5):
            for i in range(4):
                a(f"v_mul_f32 v{ACC+32*n+4*j+i}, v{ACC+32*n+4*j+i}, v{RN+2*n}")
        for j in range(5, 8):
            for i in range(4):
                a(f"v_mul_f32 v{ACC+32*n+4*j+i}, v{ACC+32*n+4*j+i}, v{RS+8*n+i}")

    def corr_n(acc, n, cq):
        for i in range(4):
            a(f"v_fma_f32 v{acc+i}, -v{RN+2*n+1}, v{cq+i}, v{acc+i}")

    def corr_s(acc, n, cq):
        for i in range(4):
            a(f"v_fma_f32 v{acc+i}, -v{RS+8*n+4+i}, v{cq}, v{acc+i}")

    def pack2(dst, acc):
        a(f"v_cvt_pk_bf16_f32 v{dst}, v{acc}, v{acc+1}")
        a(f"v_cvt_pk_bf16_f32 v{dst+1}, v{acc+2}, v{acc+3}")

    a("v_cmp_eq_u32 s[36:37], 0, v5")
    a("v_cmp_eq_u32 s[38:39], 1, v5")
    a("v_lshlrev_b32 v12, 3, v1")
    a("s_mul_i32 s32, s3, 3072")
    a(f"s_add_u32 s33, s32, {EX}")
    a("v_add_u32 v13, s33, v12")
    a("s_lshl_b32 s32, s3, 9")
    a(f"s_add_u32 s32, s32, {EX}")
    a("s_cmp_eq_u32 s3, 3")
    a(f"s_cselect_b32 s32, {EX+4*3072}, s32")
    a("v_add_u32 v14, s32, v12")
    a("s_waitcnt lgkmcnt(0)")

    def conv_tile(n):
        ac = ACC + 32 * n
        tl = n + 1
        for i in range(5):
            corr_n(ac + 4 * i, n, CQN + 4 * i)
        for h in range(2):
            pack2(QF + (2 * n + h) * 4, ac + 4 * h)
            pack2(KF + (2 * tl + h) * 4, ac + 8 + 4 * h)
        pack2(T + 8 + 2 * n, ac + 16)
        for h in range(2):
            a(f"v_mov_b32 v{KF+(2*tl+h)*4+2}, v{T+8+2*n+1}")
            a(f"v_cndmask_b32 v{QF+(2*n+h)*4+2}, 0, v{T+8+2*n}, s[{36+2*h}:{37+2*h}]")
        for h in range(3):
            corr_s(ac + 20 + 4 * h, n, CQS + h)
            pack2(VF + 6 * h + 2 * tl, ac + 20 + 4 * h)

    corr_n(ACC + 64, 2, CQH)
    corr_s(ACC + 68, 2, CQS + 3)
    pack2(T + 12, ACC + 64)
    pack2(T + 14, ACC + 68)
    a(f"ds_write_b64 v14, {vr(T+12,2)}")
    a(f"ds_write_b64 v14, {vr(T+14,2)} offset:1536")
    conv_tile(1)
    a(f"ds_write_b64 v13, {vr(KF+16,2)} offset:{3072}")
    a(f"ds_write_b64 v13, {vr(KF+20,2)} offset:{3072+512}")
    a(f"ds_write_b64 v13, {vr(T+10,2)} offset:{3072+1024}")
    for h in range(3):
        a(f"ds_write_b64 v13, {vr(VF+6*h+4,2)} offset:{3072+1536+512*h}")
    conv_tile(0)
    for i in range(6):
        a(f"v_mov_b32 v{KF+4*i+3}, 0")
    for i in range(4):
        a(f"v_mov_b32 v{QF+4*i+3}, 0")
        a(f"v_mov_b32 v{ONE+i}, 0x3f803f80")
    a("s_waitcnt lgkmcnt(0)")
    a("s_barrier")
    a(f"ds_read_b64 {vr(KF,2)}, v13")
    a(f"ds_read_b64 {vr(KF+4,2)}, v13 offset:512")
    a(f"ds_read_b32 v{KF+2}, v13 offset:{1024+4}")
    a(f"ds_read_b32 v{KF+6}, v13 offset:{1024+4}")
    for h in range(3):
        a(f"ds_read_b64 {vr(VF+6*h,2)}, v13 offset:{1536+512*h}")
    SB = 16; PB = 48; MX = 64; OB = 168; OO = 72
    jobs = [(1, 0), (1, 1), (0, 0), (0, 1)]
    cs = (18 ** -0.5) * LOG2E
    a(f"s_mov_b32 s50, {f32(cs)}")
    for j, (n, h) in enumerate(jobs):
        if j == 2:
            a("s_waitcnt lgkmcnt(0)")
        q = vr(QF + (2 * n + h) * 4, 4)
        mp = MPA if n == 0 else MPB
        a(f"v_mfma_f32_16x16x32_bf16 {vr(SB+8*j,4)}, {vr(KF+(2*n+h)*4,4)}, {q}, {vr(mp,4)}")
        a(f"v_mfma_f32_16x16x32_bf16 {vr(SB+8*j+4,4)}, {vr(KF+(2*(n+1)+h)*4,4)}, {q}, {vr(MS,4)}")
    a("s_mul_i32 s32, s17, 18432")
    a("s_lshl_b32 s33, s9, 10")
    a("s_add_u32 s33, s33, s32")
    a(f"s_add_u32 s33, s33, {OUT}")
    a("s_add_u32 s34, s33, 18432")
    a("s_lshr_b32 s35, s9, 3")
    a("s_lshl_b32 s35, s35, 10")
    a("s_and_b32 s36, s9, 3")
    a("s_lshl_b32 s36, s36, 8")
    a("s_add_u32 s35, s35, s36")
    a("s_lshr_b32 s36, s9, 2")
    a("s_and_b32 s36, s36, 1")
    a("s_lshl_b32 s36, s36, 3")
    a("s_add_u32 s35, s35, s36")
    a("s_add_u32 s35, s35, s32")
    a(f"s_add_u32 s35, s35, {OUT + 16*1024}")
    a("s_add_u32 s36, s35, 18432")
    for j in range(4):
        s = SB + 8 * j; m = MX + 2 * j
        a(f"v_max3_f32 v{m}, v{s}, v{s+1}, v{s+2}")
        a(f"v_max3_f32 v{m+1}, v{s+3}, v{s+4}, v{s+5}")
        a(f"v_max3_f32 v{m}, v{m}, v{s+6}, v{s+7}")
        a(f"v_max_f32 v{m}, v{m}, v{m+1}")
    for sw in ("v_permlane16_swap_b32", "v_permlane32_swap_b32"):
        for j in range(4):
            a(f"v_mov_b32 v{MX+2*j+1}, v{MX+2*j}")
        for j in range(4):
            a(f"{sw} v{MX+2*j}, v{MX+2*j+1}")
        for j in range(4):
            a(f"v_max_f32 v{MX+2*j}, v{MX+2*j}, v{MX+2*j+1}")
    for j in range(4):
        a(f"v_mul_f32 v{MX+2*j}, s50, v{MX+2*j}")
    for j, (n, h) in enumerate(jobs):
        s = SB + 8 * j
        for i in range(8):
            a(f"v_fma_f32 v{s+i}, v{s+i}, s50, -v{MX+2*j}")
        for i in range(8):
            a(f"v_exp_f32 v{s+i}, v{s+i}")
        for i in range(4):
            a(f"v_cvt_pk_bf16_f32 v{PB+4*j+i}, v{s+2*i}, v{s+2*i+1}")
        p = vr(PB + 4 * j, 4)
        a(f"v_mfma_f32_16x16x32_bf16 {vr(OB+12*j+8,4)}, {vr(ONE,4)}, {p}, 0")
        a(f"v_mfma_f32_16x16x32_bf16 {vr(OB+12*j,4)}, {vr(VF+6*h+2*n,4)}, {p}, 0")
        a(f"v_mfma_f32_16x16x32_bf16 {vr(OB+12*j+4,4)}, {vr(VF+12+2*n,4)}, {p}, 0")
    wo_rest = a.bg + wo_rest
    a.bg = []
    a("v_lshlrev_b32 v12, 4, v4")
    a("v_mov_b32 v13, 0x40000000")
    a("v_cmp_eq_u32 vcc, 2, v5")
    a("v_cndmask_b32 v12, v13, v12, vcc")
    for j, (n, h) in enumerate(jobs):
        o = OB + 12 * j
        a(f"v_rcp_f32 v{o+8}, v{o+8}")
        for i in range(4):
            a(f"v_mul_f32 v{o+i}, v{o+i}, v{o+8}")
        a(f"v_mul_f32 v{o+4+2*h}, v{o+4+2*h}, v{o+8}")
        a(f"v_mul_f32 v{o+5+2*h}, v{o+5+2*h}, v{o+8}")
        a(f"v_cvt_pk_bf16_f32 v{OO+4*n+2*h}, v{o}, v{o+1}")
        a(f"v_cvt_pk_bf16_f32 v{OO+4*n+2*h+1}, v{o+2}, v{o+3}")
        a(f"v_cvt_pk_bf16_f32 v{OO+8+2*n+h}, v{o+4+2*h}, v{o+5+2*h}")
        if h == 1:
            a(f"buffer_store_dwordx4 {vr(OO+4*n,4)}, v3, s[4:7], s{33+n} offen sc1")
            a(f"buffer_store_dwordx2 {vr(OO+8+2*n,2)}, v12, s[4:7], s{35+n} offen sc1")
    ts()

    OL = 98304
    PA = 16; PBB = 40; RES = 88
    NPRE = int(OPT.get("npre", 4))

    def p2_prefetch():
        for fn in wo_rest:
            fn()
        a("s_lshr_b32 s12, s9, 2")
        a("s_lshl_b32 s13, s8, 3")
        a("s_lshl_b32 s14, s12, 1")
        a("s_add_u32 s13, s13, s14")
        a("s_mul_i32 s15, s13, 18432")
        a("s_lshr_b32 s16, s43, 1")
        a("s_lshl_b32 s16, s16, 10")
        a("s_add_u32 s16, s16, s15")
        a("s_lshr_b32 s17, s46, 1")
        a("s_lshl_b32 s17, s17, 10")
        a("s_lshl_b32 s18, s41, 3")
        a("s_add_u32 s17, s17, s18")
        a("s_add_u32 s17, s17, s15")
        a("s_and_b32 s18, s3, 1")
        a("s_mul_i32 s18, s18, 18432")
        a("s_add_u32 s17, s17, s18")
        a(f"s_add_u32 s19, s16, {XIN}")
        a(f"s_add_u32 s20, s17, {XIN}")
        a(f"buffer_load_dwordx4 {vr(RES,4)}, v3, s[4:7], s19 offen sc1")
        a(f"buffer_load_dwordx4 {vr(RES+4,4)}, v15, s[4:7], s19 offen sc1")
        a(f"buffer_load_dwordx2 {vr(RES+8,2)}, v3, s[4:7], s20 offen sc1")
        a("s_mul_i32 s21, s3, 9216")
        a("s_add_u32 s22, s15, s21")
        a(f"s_add_u32 s22, s22, {OUT}")
        a(f"s_add_u32 s21, s21, {OL}")
        a(f"v_add_u32 v9, {OL}, v3")
        a("v_add_u32 v10, s18, v9")
    sync(16, p2_prefetch)
    ts()
    a("s_mov_b32 m0, s21")
    for i in range(9):
        a(f"buffer_load_dwordx4 v3, s[4:7], s22 offen offset:{(i%3)*1024} sc1 lds")
        if i % 3 == 2 and i < 8:
            a("s_add_u32 s22, s22, 3072")
            a("s_add_u32 m0, m0, 3072")
    for n in range(2):
        for mh in range(2):
            ac = PA + (2 * mh + n) * 4; r = RES + 4 * n + 2 * mh
            a(f"v_lshlrev_b32 v{ac}, 16, v{r}")
            a(f"v_and_b32 v{ac+1}, 0xffff0000, v{r}")
            a(f"v_lshlrev_b32 v{ac+2}, 16, v{r+1}")
            a(f"v_and_b32 v{ac+3}, 0xffff0000, v{r+1}")
    a(f"v_lshlrev_b32 v{PA+16}, 16, v{RES+8}")
    a(f"v_and_b32 v{PA+17}, 0xffff0000, v{RES+8}")
    a(f"v_lshlrev_b32 v{PA+18}, 16, v{RES+9}")
    a(f"v_and_b32 v{PA+19}, 0xffff0000, v{RES+9}")
    a(f"s_add_u32 s19, s16, {X1}")
    a(f"s_add_u32 s20, s17, {X1}")
    a("s_cmp_ge_u32 s3, 2")
    a(f"s_cselect_b32 s20, {OOB}, s20")
    a("s_cmp_eq_u32 s3, 0")
    a("s_cselect_b32 s23, 1.0, 0")
    a("s_cmp_eq_u32 s3, 1")
    a("s_cselect_b32 s24, 1.0, 0")
    a("s_lshl_b32 s25, s3, 10")
    a(f"s_add_u32 s25, s25, {EX}")
    a("v_add_u32 v11, s25, v3")
    a("s_lshl_b32 s25, s3, 2")
    a(f"s_add_u32 s25, s25, {EX}")
    a("v_add_u32 v12, s25, v3")
    a("s_lshl_b32 s25, s13, 9")
    a("s_lshl_b32 s26, s40, 3")
    a("s_add_u32 s25, s25, s26")
    a("s_lshr_b32 s26, s3, 1")
    a("s_lshl_b32 s26, s26, 9")
    a("s_add_u32 s25, s25, s26")
    a("s_and_b32 s26, s3, 1")
    a("s_lshl_b32 s26, s26, 2")
    a("s_add_u32 s25, s25, s26")
    a(f"s_add_u32 s25, s25, {ST1}")
    a("v_lshlrev_b32 v13, 5, v4")
    a("s_waitcnt vmcnt(0)")
    a("s_barrier")
    NB = 4

    def rd2(ks):
        b = PBB + 12 * (ks % NB)
        a(f"ds_read_b128 {vr(b,4)}, v9 offset:{ks*1024}"); lg.issue(("b", ks))
        a(f"ds_read_b128 {vr(b+4,4)}, v9 offset:{18432+ks*1024}"); lg.issue(("b", ks))
        a(f"ds_read_b128 {vr(b+8,4)}, v10 offset:{ks*1024}"); lg.issue(("b", ks))
    for ks in range(NB - 1):
        rd2(ks)
    for ks in range(18):
        if ks + NB - 1 < 18:
            rd2(ks + NB - 1)
        lg.wait(("b", ks))
        b = PBB + 12 * (ks % NB)
        for mh in range(2):
            for n in range(2):
                acc = vr(PA + (2 * mh + n) * 4, 4)
                a(f"v_mfma_f32_16x16x32_bf16 {acc}, {ar((mh*18+ks)*4,4)}, {vr(b+4*n,4)}, {acc}")
        acc = vr(PA + 16, 4)
        a(f"v_mfma_f32_16x16x32_bf16 {acc}, {ar((36+ks)*4,4)}, {vr(b+8,4)}, {acc}")
    O2 = 100
    for n in range(2):
        for mh in range(2):
            ac = PA + (2 * mh + n) * 4
            a(f"v_cvt_pk_bf16_f32 v{O2+4*n+2*mh}, v{ac}, v{ac+1}")
            a(f"v_cvt_pk_bf16_f32 v{O2+4*n+2*mh+1}, v{ac+2}, v{ac+3}")
        a(f"buffer_store_dwordx4 {vr(O2+4*n,4)}, {'v15' if n else 'v3'}, s[4:7], s19 offen sc1")
    a(f"v_cvt_pk_bf16_f32 v{O2+8}, v{PA+16}, v{PA+17}")
    a(f"v_cvt_pk_bf16_f32 v{O2+9}, v{PA+18}, v{PA+19}")
    a(f"buffer_store_dwordx2 {vr(O2+8,2)}, v3, s[4:7], s20 offen sc1")
    SS = 112

    def sumsq(dst, regs):
        a(f"v_add_f32 v{dst}, v{regs[0]}, v{regs[1]}")
        a(f"v_mul_f32 v{dst+1}, v{regs[0]}, v{regs[0]}")
        a(f"v_fmac_f32 v{dst+1}, v{regs[1]}, v{regs[1]}")
        for r in regs[2:]:
            a(f"v_add_f32 v{dst}, v{dst}, v{r}")
            a(f"v_fmac_f32 v{dst+1}, v{r}, v{r}")
    for n in range(2):
        sumsq(SS + 2 * n, [PA + (2 * mh + n) * 4 + i for mh in range(2) for i in range(4)])
    sumsq(SS + 4, [PA + 16 + i for i in range(4)])
    for n in range(2):
        a(f"v_fmac_f32 v{SS+2*n}, s{23+n}, v{SS+4}")
        a(f"v_fmac_f32 v{SS+2*n+1}, s{23+n}, v{SS+5}")
    a(f"ds_write_b128 v11, {vr(SS,4)}")
    a("s_waitcnt lgkmcnt(0)")
    a("s_barrier")
    for w in range(4):
        a(f"ds_read_b32 v{SS+8+w}, v12 offset:{w*1024}")
    a("s_waitcnt lgkmcnt(0)")
    a(f"v_add_f32 v{SS+8}, v{SS+8}, v{SS+9}")
    a(f"v_add_f32 v{SS+10}, v{SS+10}, v{SS+11}")
    a(f"v_add_f32 v{SS+8}, v{SS+8}, v{SS+10}")
    xg_reduce(a, "v_add_f32", SS + 8, SS + 9)
    a(f"buffer_store_dword v{SS+8}, v13, s[4:7], s25 offen sc1")
    ts()

    BUD = float(OPT.get("p3bud", 7))
    RA = 7
    N0 = int(OPT.get("p3n0", 12))
    PACE0 = int(OPT.get("p3pace0", 1)); PACE1 = int(OPT.get("p3pace1", 3))
    DFLAG = int(OPT.get("p3dflag", 45)); DPOLL = int(OPT.get("p3dpoll", 35)); DCHK = int(OPT.get("p3dchk", 40))
    K1, K3, RI, PV = 8, 10, 12, 14
    T = 16; AB3 = 32; AC1 = 68; HO = 164; OST = 236; BX = 244
    HP = 144

    def mk_w(c, i):
        def fn():
            if i == 0:
                a(f"s_add_u32 m0, s19, {(c % 6) * 24576}")
            if i == 4:
                a("s_add_u32 m0, m0, 4096")
                a("s_add_u32 s20, s20, 4096")
            a(f"buffer_load_dwordx4 v3, s[4:7], s20 offen offset:{(i%4)*1024} lds"); vm.issue(("w", c))
            if i == 5:
                a(f"s_add_u32 s20, s20, {24576-4096}")
        return fn

    def p3_prefetch():
        a("s_mul_i32 s19, s3, 6144")
        a(f"s_mul_i32 s20, s9, {SLB}")
        a("s_add_u32 s20, s20, s19")
        a(f"s_add_u32 s20, s20, {L['W12']}")
        a("s_sub_u32 s20, s20, s59")
        for c in range(NPRE):
            for i in range(6):
                mk_w(c, i)()
        a("v_add_u32 v4, 0x10000, v3")
        a("v_add_u32 v5, 0x20000, v3")
        a("v_mov_b32 v7, v6")
        a("v_add_u32 v6, 18432, v3")
        a("s_lshl_b32 s16, s8, 3")
        a("s_lshl_b32 s17, s3, 1")
        a("s_add_u32 s16, s16, s17")
        a("s_mul_i32 s17, s16, 18432")
        a(f"s_add_u32 s18, s17, {X1}")
        a("s_lshl_b32 s21, s16, 9")
        a(f"s_add_u32 s21, s21, {ST1}")
        a("s_lshl_b32 s22, s8, 4")
        a("s_add_u32 s22, s22, s9")
        a("s_lshl_b32 s22, s22, 2")
        a("s_add_u32 s22, s22, s3")
        a("s_xor_b32 s23, s22, 4")
        a("s_mul_i32 s24, s22, 18432")
        a(f"s_add_u32 s24, s24, {HX}")
        a("s_mul_i32 s25, s23, 18432")
        a(f"s_add_u32 s25, s25, {HX}")
        a("s_lshl_b32 s26, s22, 4")
        a(f"s_add_u32 s26, s26, {FL}")
        a("s_lshl_b32 s27, s23, 4")
        a(f"s_add_u32 s27, s27, {FL}")
        a("s_lshr_b32 s28, s9, 1")
        a(f"s_mul_i32 s28, s28, {XT}")
        a("s_add_u32 s28, s28, s17")
        a("s_and_b32 s29, s9, 1")
        a("s_mul_i32 s29, s29, 9216")
        a("s_add_u32 s28, s28, s29")
        a(f"s_add_u32 s28, s28, {PART}")
    sync(32, p3_prefetch)
    ts()
    for n in range(2):
        a(f"buffer_load_dwordx2 {vr(T+2*n,2)}, v7, s[4:7], s21 offen offset:{n*512} sc1"); vm.issue("st")

    U = []
    for k in range(19):
        for t in range(G0):
            for mh in range(2):
                U.append(("p1", t, k, mh))
    for t in range(G0, 9):
        for k in range(19):
            for mh in range(2):
                U.append(("p1", t, k, mh))
    for hk in range(KO):
        for dt in range(9):
            for mh in range(2):
                U.append(("p2", dt, hk, mh))
    for dt in range(9):
        for hk in range(KO, 18):
            for mh in range(2):
                U.append(("p2", dt, hk, mh))
    NU = len(U)

    def mfma3(i, n):
        kind, t, k, mh = U[i]
        if kind == "p1":
            acc = vr(AC1 + 16 * (t % 6) + (2 * mh + n) * 4, 4)
            b = ar((18 * n + k) * 4, 4) if k < 18 else vr(BX + 4 * n, 4)
        else:
            acc = ar(16 * t + (2 * mh + n) * 4, 4)
            b = vr(HO + (2 * k + n) * 4, 4) if k < 9 else ar(HP + (2 * (k - 9) + n) * 4, 4)
        a(f"v_mfma_f32_16x16x32_bf16 {acc}, {vr(AB3+4*(i%9),4)}, {b}, {'0' if k == 0 else acc}")

    def mk_y(k, n):
        def fn():
            a(f"buffer_load_dwordx4 {ar((18*n+k)*4,4)}, {'v6' if n else 'v3'}, s[4:7], s18 offen offset:{(k%4)*1024} sc1"); vm.issue(("y", k))
            if k % 4 == 3 and n == 1:
                a("s_add_u32 s18, s18, 4096")
        return fn
    LQ = []
    for c in range(NPRE, NCHUNK):
        for i in range(6):
            LQ.append((24 * c - RA - 0.5 + i * 0.01, c - 4 if c >= 6 else -1, 2 if i in (0, 5) else (3 if i == 4 else 1), mk_w(c, i), "w"))
    for k in range(18):
        for n in range(2):
            LQ.append((k * G0 * 2 - 0.1 + n * 0.01, -1, 1, mk_y(k, n), "y"))
    LQ.sort(key=lambda x: x[0])
    ny_left = [36]

    def lq_issue():
        it = LQ.pop(0)
        it[3]()
        if it[4] == "y":
            ny_left[0] -= 1
        return it[2]

    for _ in range(N0):
        lq_issue()

    def dsread(f):
        off = ((f // 24) % 6) * 24576 + (f % 24) * 1024
        base = "v3" if off < 65536 else ("v4" if off < 131072 else "v5")
        a(f"ds_read_b128 {vr(AB3+4*(f%9),4)}, {base} offset:{off % 65536}"); lg.issue(("a", f))
    for f in range(RA):
        dsread(f)

    kk = math.sqrt(2.0 / math.pi)
    C1 = -2.0 * kk * LOG2E
    C3 = C1 * 0.044715
    EV = {}
    cur = [0]

    def ev(g, cost, fn):
        EV.setdefault(g, []).append((cost, fn))

    def mk(text):
        return lambda: a(text)

    class Rec:
        def __init__(self): self.l = []
        def __call__(self, t): self.l.append(t)
    rec = Rec()
    rec("v_mov_b32 v7, 0")
    for sw in ("v_permlane16_swap_b32", "v_permlane32_swap_b32"):
        for r in range(4):
            rec(f"v_mov_b32 v{T+4+r}, v{T+r}")
        for r in range(4):
            rec(f"{sw} v{T+r}, v{T+4+r}")
        for r in range(4):
            rec(f"v_add_f32 v{T+r}, v{T+r}, v{T+4+r}")
    for n in range(2):
        m = T + 2 * n; r = T + 8 + n; t = T + 4 + n; bx = BX + 4 * n
        stats_finish(rec, m, m + 1, r, T + 10 + n, t, True)
        rec(f"v_rcp_f32 v{RI+n}, v{r}")
        rec(f"v_mul_f32 v{K1+n}, {f32(C1)}, v{r}")
        rec(f"v_mul_f32 v{K3+n}, v{r}, v{r}")
        rec(f"v_mul_f32 v{K3+n}, v{K3+n}, v{r}")
        rec(f"v_mul_f32 v{K3+n}, {f32(C3)}, v{K3+n}")
        rec(f"v_cvt_pk_bf16_f32 v{t}, v{RI+n}, v{RI+n}")
        rec(f"v_and_b32 v{t}, 0xffff0000, v{t}")
        rec(f"v_sub_f32 v{t}, v{RI+n}, v{t}")
        rec(f"v_cvt_pk_bf16_f32 v{bx}, v{RI+n}, v{t}")
        rec(f"v_sub_f32 v{m}, 0, v{m}")
        rec(f"v_cvt_pk_bf16_f32 v{bx+1}, v{m}, v{m}")
        rec(f"v_and_b32 v{t}, 0xffff0000, v{bx+1}")
        rec(f"v_sub_f32 v{t}, v{m}, v{t}")
        rec(f"v_cvt_pk_bf16_f32 v{bx+2}, v{t}, v7")
        rec(f"v_mov_b32 v{bx+3}, 0")
    VQ = [(0, 1, mk(t), None) for t in rec.l]
    VQ[-1] = (0, 1, VQ[-1][2], ("bx",))

    hl_done = set()

    def mk_hstore(q):
        def fn():
            if q % 4 == 0 and q:
                a("s_add_u32 s24, s24, 4096")
            a(f"buffer_store_dwordx4 {vr(HO+4*q,4)}, v3, s[4:7], s24 offen offset:{(q%4)*1024} sc1"); vm.issue(("hs", q))
            if q % 6 == 5:
                b = q // 6
                g = cur[0] + DFLAG
                ev(g, 3, lambda: flag_store(b))
                ev(g + DPOLL, 1, lambda: poll_issue(b))
                ev(g + DPOLL + DCHK, 4, lambda: poll_check(b))
        return fn

    def flag_store(b):
        a(f"v_mov_b32 v{PV}, {b+1}")
        vm.wait(("hs", 6 * b + 5))
        a("s_mov_b64 exec, 1")
        a(f"buffer_store_dword v{PV}, v7, s[4:7], s26 offen sc1"); vm.issue("fs")
        a("s_mov_b64 exec, -1")

    def poll_issue(b):
        a("s_mov_b64 exec, 1")
        a(f"buffer_load_dword v2, v7, s[4:7], s27 offen sc1"); vm.issue(("pl", b))
        a("s_mov_b64 exec, -1")

    def poll_check(b):
        vm.wait(("pl", b))
        a("v_readfirstlane_b32 s30, v2")
        a(f"s_cmp_gt_u32 s30, {b}")
        a.nf(f"s_cbranch_scc0 {name}_w{b}")
        a.label(f"{name}_r{b}", safe=False)
        slowcode.append(b)
        for i in range(6):
            ev(cur[0] + 1 + 2 * i, 1, mk_hload(6 * b + i))

    def mk_hload(q):
        def fn():
            if q % 4 == 0 and q:
                a("s_add_u32 s25, s25, 4096")
            a(f"buffer_load_dwordx4 {ar(HP+4*q,4)}, v3, s[4:7], s25 offen offset:{(q%4)*1024} sc1"); vm.issue(("hl", q))
            hl_done.add(q)
        return fn

    SK = 2.5
    gel = []

    def add_gelu(t, ready):
        ac = AC1 + 16 * (t % 6)
        for v in range(16):
            n = v // 8; mh = (v // 4) % 2; i = v % 4
            x = ac + (2 * mh + n) * 4 + i; tm = T + v
            ops = [(1, f"v_mul_f32 v{tm}, v{x}, v{x}"), (1, f"v_fma_f32 v{tm}, v{tm}, v{K3+n}, v{K1+n}"), (1, f"v_mul_f32 v{tm}, v{tm}, v{x}"),
                   (2, f"v_exp_f32 v{tm}, v{tm}"), (1, f"v_fma_f32 v{tm}, v{tm}, v{RI+n}, v{RI+n}"), (2, f"v_rcp_f32 v{tm}, v{tm}"),
                   (1, f"v_mul_f32 v{x}, v{x}, v{tm}")]
            for st, (c, tx) in enumerate(ops):
                gel.append((16 * t + v + st * SK, ready, c, mk(tx), None))
            if v % 2 == 1:
                gel.append((16 * t + v + 6 * SK + 1.2, ready, 1, mk(f"v_cvt_pk_bf16_f32 v{HO+8*t+v//2}, v{x-1}, v{x}"), None))
            if v % 8 == 7:
                q = 2 * t + n
                gel.append((16 * t + v + 6 * SK + 2.4, ready, 1, mk_hstore(q), ("h", q)))
    last_idx = {}
    for i, u in enumerate(U):
        last_idx[u[:2]] = i
    for t in range(9):
        add_gelu(t, last_idx[("p1", t)] + 2)
    gel.sort(key=lambda x: x[0])
    VQ += [(g[1], g[2], g[3], g[4]) for g in gel]
    for dt in range(9):
        rdy = last_idx[("p2", dt)] + 2
        for n in range(2):
            o = OST + 4 * n
            for mh in range(2):
                for i in range(4):
                    VQ.append((rdy, 1, mk(f"v_accvgpr_read_b32 v{T+8*n+4*mh+i}, a{16*dt+(2*mh+n)*4+i}"), None))
            for e in range(4):
                VQ.append((rdy, 1, mk(f"v_cvt_pk_bf16_f32 v{o+e}, v{T+8*n+2*e}, v{T+8*n+2*e+1}"), None))

            def st(n=n, o=o, dt=dt):
                if dt % 4 == 0 and dt and n == 0:
                    a("s_add_u32 s28, s28, 4096")
                a(f"buffer_store_dwordx4 {vr(o,4)}, {'v6' if n else 'v3'}, s[4:7], s28 offen offset:{(dt%4)*1024} sc1"); vm.issue("po")
            VQ.append((rdy, 1, st, None))
    done_tags = set()

    def vq_pop():
        it = VQ.pop(0)
        assert it[0] - 2 < cur[0] + (1 if cur[0] == NU - 1 else 0), (it[0], cur[0])
        it[2]()
        if it[3]:
            done_tags.add(it[3])
        return it[1]

    bar_done = [0]

    def chunk_barrier(c):
        while LQ and LQ[0][0] <= 24 * c - RA:
            lq_issue()
        bar_done[0] = c
        if c < NPRE and c < 2:
            return
        vm.wait(("w", c))
        a("s_barrier")

    last_lq = -10
    forced = 0
    for i in range(NU):
        cur[0] = i
        kind, t, k, mh = U[i]
        if kind == "p1" and t == 0 and mh == 0 and k < 18:
            while LQ and LQ[0][0] <= i:
                lq_issue()
            vm.wait(("y", k))
        if kind == "p1" and k == 18:
            while ("bx",) not in done_tags:
                vq_pop(); forced += 1
        if kind == "p2":
            if k < 9:
                while ("h", 2 * k + 1) not in done_tags:
                    vq_pop(); forced += 1
            else:
                q = 2 * (k - 9) + 1
                while q not in hl_done:
                    g = min(EV)
                    for c, fn in EV.pop(g):
                        fn()
                    forced += 1000
                vm.wait(("hl", q))
        if kind == "p1" and k == 0 and t >= 6:
            while ("h", 2 * (t - 6) + 1) not in done_tags:
                vq_pop(); forced += 1
        if i % 3 == 0:
            lg.wait(("a", min(i + 2, NU - 1)))
        if ts.on and i in (38 * G0, 342):
            ts(); lg.q = []
        mfma3(i, 0)
        bud = BUD / 2
        for c, fn in EV.pop(i, []):
            fn(); bud -= c
        pace = PACE0 if ny_left[0] else PACE1
        if LQ and LQ[0][1] <= bar_done[0] and i - last_lq >= pace:
            bud -= lq_issue(); last_lq = i
        while VQ and VQ[0][0] <= i and bud >= VQ[0][1] - 0.5:
            bud -= vq_pop()
        mfma3(i, 1)
        bud += BUD / 2 - 1 / 3
        if i + RA < NU:
            if (i + RA) % 24 == 0:
                chunk_barrier((i + RA) // 24); bud -= 2
            dsread(i + RA); bud -= 1
        while VQ and VQ[0][0] <= i and bud >= VQ[0][1] - 0.5:
            bud -= vq_pop()
    assert not EV, EV.keys()
    while VQ:
        vq_pop()
    print("p3 forced:", forced, file=sys.stderr)
    ts()

    P4P = 64; P4A = 16; P4X = 160; P4B = 172

    def p4_prefetch():
        a("s_load_dwordx4 s[36:39], s[0:1], 56")
        a("v_and_b32 v4, 15, v1")
        a("v_lshrrev_b32 v5, 4, v1")
        a("s_lshl_b32 s12, s8, 4")
        a("s_add_u32 s12, s12, s9")
        a("s_mul_i32 s12, s12, 9")
        a("s_add_u32 s12, s12, s3")
        a("s_lshl_b32 s12, s12, 10")
        a("s_add_u32 s13, s12, 4096")
        a("s_add_u32 s14, s12, 8192")
        a("s_cmp_lg_u32 s3, 0")
        a(f"s_cselect_b32 s14, {OOB}, s14")
        a("s_and_b32 s15, s9, 1")
        a("s_mul_i32 s16, s15, 9")
        a("s_add_u32 s16, s16, s3")
        a("s_lshl_b32 s16, s16, 6")
        a("s_add_u32 s17, s16, 512")
        a("s_cmp_lg_u32 s3, 0")
        a(f"s_cselect_b32 s17, {OOB}, s17")
        a("v_lshlrev_b32 v6, 3, v5")
        for i in range(3):
            a(f"s_add_u32 s18, s{12+i}, {X1}")
            a(f"buffer_load_dwordx4 {vr(P4X+4*i,4)}, v3, s[4:7], s18 offen sc1")
        a("s_waitcnt lgkmcnt(0)")
        srd(a, 40, 36, D * 2)
        for i in range(3):
            so, off = ("s16", 256 * i) if i < 2 else ("s17", 0)
            a(f"buffer_load_dwordx2 {vr(P4B+4*i,2)}, v6, s[40:43], {so} offen offset:{off}")
            a(f"buffer_load_dwordx2 {vr(P4B+4*i+2,2)}, v6, s[40:43], {so} offen offset:{off+32}")
        a("s_cmp_lg_u32 s59, 0")
        a(f"s_cbranch_scc1 {name}_nowq")
        a(f"s_mul_i32 s20, s9, {18*7168}")
        a("s_mul_i32 s21, s3, 7168")
        a("s_add_u32 s20, s20, s21")
        a(f"s_add_u32 s20, s20, {L['WQ']}")
        a("s_lshl_b32 s21, s3, 13")
        for j in range(5):
            if j == 4:
                a("s_cmp_ge_u32 s3, 2")
                a(f"s_cbranch_scc1 {name}_nowq")
            a("s_mov_b32 m0, s21")
            for i in range(4):
                a(f"buffer_load_dwordx4 v3, s[4:7], s20 offen offset:{i*1024} lds")
            a("s_add_u32 m0, m0, 4096")
            a("s_add_u32 s22, s20, 4096")
            for i in range(3):
                a(f"buffer_load_dwordx4 v3, s[4:7], s22 offen offset:{i*1024} lds")
            a(f"s_add_u32 s20, s20, {4*7168}")
            a("s_add_u32 s21, s21, 32768")
        a.label(f"{name}_nowq")
        for i in range(3):
            a(f"s_add_u32 s{20+i}, s{12+i}, {PART}")
    sync(48, p4_prefetch)
    ts()
    for s in range(8):
        for i in range(3):
            a(f"buffer_load_dwordx4 {vr(P4P+12*s+4*i,4)}, v3, s[4:7], s{20+i} offen sc1"); vm.issue(("p", s))
            if s < 7:
                a(f"s_add_u32 s{20+i}, s{20+i}, {XT}")
    a("v_mov_b32 v6, 0x00003f80")
    a("v_mov_b32 v7, 0x3f800000")
    for i in range(3):
        for j in range(4):
            a(f"v_lshlrev_b32 v{P4A+8*i+2*j}, 16, v{P4B+4*i+j}")
            a(f"v_and_b32 v{P4A+8*i+2*j+1}, 0xffff0000, v{P4B+4*i+j}")

    def acc4(src):
        for i in range(3):
            for j in range(4):
                a(f"v_dot2c_f32_bf16 v{P4A+8*i+2*j}, v{src+4*i+j}, v6")
                a(f"v_dot2c_f32_bf16 v{P4A+8*i+2*j+1}, v{src+4*i+j}, v7")
    acc4(P4X)
    for s in range(8):
        vm.wait(("p", s))
        acc4(P4P + 12 * s)
    O4 = 40
    for i in range(3):
        for j in range(4):
            a(f"v_cvt_pk_bf16_f32 v{O4+4*i+j}, v{P4A+8*i+2*j}, v{P4A+8*i+2*j+1}")
    a("s_cmp_lg_u32 s59, 0")
    a(f"s_cbranch_scc1 {name}_fin")
    for i in range(3):
        a(f"s_add_u32 s18, s{12+i}, {XIN + LSTR}")
        a(f"buffer_store_dwordx4 {vr(O4+4*i,4)}, v3, s[4:7], s18 offen sc1")
    sumsq(56, [P4A + j for j in range(12)])
    sumsq(58, [P4A + 12 + j for j in range(12)])
    a("v_add_f32 v56, v56, v58")
    a("v_add_f32 v57, v57, v59")
    a("v_lshlrev_b32 v58, 3, v0")
    a(f"v_add_u32 v58, {EX}, v58")
    a("ds_write_b64 v58, v[56:57]")
    a("v_lshlrev_b32 v58, 3, v1")
    a(f"v_add_u32 v58, {EX}, v58")
    a("v_lshlrev_b32 v59, 5, v4")
    a("v_lshrrev_b32 v60, 1, v5")
    a("v_lshl_add_u32 v59, v60, 3, v59")
    a("s_lshl_b32 s20, s8, 3")
    a("s_lshr_b32 s21, s9, 1")
    a("s_add_u32 s20, s20, s21")
    a("s_lshl_b32 s20, s20, 9")
    a("s_lshl_b32 s21, s15, 4")
    a("s_add_u32 s20, s20, s21")
    a(f"s_add_u32 s20, s20, {STI + LSTR}")
    a("s_cmp_lg_u32 s3, 0")
    a(f"s_cselect_b32 s20, {OOB}, s20")
    a("s_waitcnt lgkmcnt(0)")
    a("s_barrier")
    for w in range(4):
        a(f"ds_read_b64 {vr(64+2*w,2)}, v58 offset:{w*512}")
    a("s_waitcnt lgkmcnt(0)")
    for i in range(2):
        a(f"v_add_f32 v{64+i}, v{64+i}, v{66+i}")
        a(f"v_add_f32 v{68+i}, v{68+i}, v{70+i}")
    for i in range(2):
        a(f"v_add_f32 v{64+i}, v{64+i}, v{68+i}")
    a("v_mov_b32 v66, v64")
    a("v_mov_b32 v67, v65")
    a("v_permlane16_swap_b32 v64, v66")
    a("v_permlane16_swap_b32 v65, v67")
    a("v_add_f32 v64, v64, v66")
    a("v_add_f32 v65, v65, v67")
    a("buffer_store_dwordx2 v[64:65], v59, s[4:7], s20 offen sc1")
    ts()

    def p1b_prefetch():
        a(f"s_mov_b32 s59, {LSTR}")
        p1_setup()
        p1_consts()
        a("s_lshl_b32 s24, s3, 13")
        a("s_add_u32 s24, s24, 7168")
        a("s_lshl_b32 s21, s3, 10")
        a("s_add_u32 s22, s22, s21")
        a("s_mov_b32 s44, 0xfffefffe")
        a("s_mov_b32 s45, 0xfffefffe")
    sync(64, p1b_prefetch, prev=True)
    ts()
    a(f"s_add_u32 s4, s4, {LSTR}")
    a("s_addc_u32 s5, s5, 0")
    p1_stats_load()
    for grp in xloads(0):
        do_load(grp, 0)
    a("s_mov_b64 exec, s[44:45]")
    for j in range(5):
        if j == 4:
            a("s_cmp_ge_u32 s3, 2")
            a(f"s_cselect_b32 s22, {OOB}, s22")
        a("s_mov_b32 m0, s24")
        a("buffer_load_dwordx4 v3, s[4:7], s22 offen sc1 lds"); vm.issue("halo")
        a("s_add_u32 s22, s22, 4096")
        a("s_add_u32 s24, s24, 32768")
    a("s_mov_b64 exec, -1")
    PFB = int(OPT.get("p1pfb", 6))
    for ks in range(1, 3):
        for grp in xloads(ks):
            do_load(grp, ks)
    p1_stats_math()
    for ks in range(3, PFB):
        for grp in xloads(ks):
            do_load(grp, ks)
    vm.wait("halo")
    a("s_waitcnt lgkmcnt(0)")
    a("s_barrier")
    if ts.on:
        ts.n = 2
        ts()
    p1_loop(xloads, PFB, 0)
    a(f"s_branch {name}_epi")

    a.label(f"{name}_fin")
    srd(a, 40, 38, XT)
    a("v_mul_u32_u24 v6, 1152, v4")
    a("v_lshl_add_u32 v6, v5, 3, v6")
    a("s_lshl_b32 s20, s8, 3")
    a("s_lshr_b32 s21, s9, 1")
    a("s_add_u32 s20, s20, s21")
    a("s_mul_i32 s20, s20, 18432")
    a("s_add_u32 s21, s20, s17")
    a("s_add_u32 s20, s20, s16")
    for i in range(3):
        so, off = ("s20", 256 * i) if i < 2 else ("s21", 0)
        a(f"buffer_store_dwordx2 {vr(O4+4*i,2)}, v6, s[40:43], {so} offen offset:{off}")
        a(f"buffer_store_dwordx2 {vr(O4+4*i+2,2)}, v6, s[40:43], {so} offen offset:{off+32}")
    if ts.on:
        ts.n = 14
        a("s_waitcnt vmcnt(0)")
        ts(); ts(True)
        ts.store()
    a("s_endpgm")
    for b in slowcode:
        a.label(f"{name}_w{b}")
        a("s_add_u32 s57, s57, 1")
        a("s_cmp_gt_u32 s57, 0x40000")
        a(f"s_cbranch_scc1 {name}_r{b}")
        a("s_sleep 2")
        a(f"buffer_load_dword v2, v7, s[4:7], s27 offen sc1")
        a("s_waitcnt vmcnt(0)")
        a("v_readfirstlane_b32 s30, v2")
        a(f"s_cmp_gt_u32 s30, {b}")
        a(f"s_cbranch_scc0 {name}_w{b}")
        a(f"s_branch {name}_r{b}")
    a.label(f"{name}_end")
    a("s_endpgm")
    return name, a.text(), dict(vgpr=512, sgpr=102, accum=256), dict(grid=256, block=256, lds=163840)


def main():
    ks = [gen_p0(CODE0="main_kernel", CPN=7, zero=True), gen_main()]
    ref = open(f"cdna_kernels/{NAME}.s.ref").read().split("\n")
    hdr = [ln for ln in ref if ln.startswith(";") and "@launch" not in ln and "Override launch" not in ln and "grid=ceil" not in ln]
    out = hdr[:]
    for name, _, _, g in ks:
        out.append(f"; @launch kernel={name} grid=({g['grid']},1,1) block=({g['block']},1,1) lds={g['lds']}")
    out.append('.amdgcn_target "amdgcn-amd-amdhsa--gfx950"')
    out.append(".text")
    for _, txt, _, _ in ks:
        out.append(txt)
    out.append("code_end:")
    out.append("    s_endpgm")
    out.append('.section .rodata,"a"')
    for name, _, kd, _ in ks:
        out.append(KD.format(name=name, **kd))
    path = sys.argv[1] if len(sys.argv) > 1 else f"cdna_kernels/{NAME}.s"
    open(path, "w").write("\n".join(out))
    json.dump(L, open("layout.json", "w"))
    print("written", path)


if __name__ == "__main__":
    main()
```

```python
import sys, struct, json, math
from asmb import Asm, KD, vr, ar, sr

NAME = "interleave_layers__sliding_local_dilated__mixer_channel_mlp__prompt"
S, D, F = 2048, 576, 4608
XT = S * D * 2
TILE = 18432
OOB = 0x10000000
WS_BYTES = 0x0c000000


import os
OPT = dict(kv.split("=") if "=" in kv else (kv, "1") for kv in os.environ.get("GOPT", "").split(",") if kv)


math_sqrt = math.sqrt; PI = math.pi; LOG2E = math.log2(math.e)


def f32(x):
    return "0x%08x" % struct.unpack("<I", struct.pack("<f", x))[0]


G0 = int(OPT.get("g0", 2))
KT = int(OPT.get("kt", 6))
KO = 18 - KT
NCHUNK = 28
SLB = NCHUNK * 24576


class WS:
    pass


def layout():
    off = 0
    L = {}

    def alloc(name, n):
        nonlocal off
        L[name] = off
        off += (n + 4095) // 4096 * 4096
    for l in (0, 1):
        alloc(f"FL{l}", 32768)
        alloc("X0" if l == 0 else "X2", XT); alloc("ST0" if l == 0 else "ST2", S * 32)
        alloc(f"O{l}", XT)
        alloc(f"X1_{l}", XT); alloc(f"ST1_{l}", S * 32)
        alloc(f"PART{l}", 8 * XT)
        alloc(f"HX{l}", 1024 * 18432)
    L["LSTR"] = L["FL1"]
    alloc("WQ", 16 * 18 * 7 * 1024)
    alloc("WO", 36 * 18 * 1024)
    alloc("W12", 16 * NCHUNK * 24576)
    alloc("TS", 512 * 16 * 128)
    L["END"] = off
    return L


L = layout()


class Cnt:
    def __init__(self, a, name, maxv):
        self.a = a; self.name = name; self.maxv = maxv; self.q = []

    def issue(self, tag):
        self.q.append(tag)

    def wait(self, tag):
        if tag not in self.q:
            return
        i = len(self.q) - 1 - self.q[::-1].index(tag)
        n = len(self.q) - 1 - i
        n = min(n, self.maxv)
        self.a(f"s_waitcnt {self.name}({n})")
        self.q = self.q[len(self.q) - n:] if n else []

    def wait_all(self):
        self.a(f"s_waitcnt {self.name}(0)")
        self.q = []


def header(a, name, nwg):
    if "l0_" in name:
        n1 = name.replace("l0_", "l1_")
        a.raw(f".globl {n1}\n.p2align 8\n.type {n1},@function\n{n1}:")
        a(f"s_mov_b32 s59, {L['LSTR']}")
        a(f"s_branch {name}_body")
    a.raw(f".globl {name}\n.p2align 8\n.type {name},@function\n{name}:")
    a("s_mov_b32 s59, 0")
    a.raw(f"{name}_body:")
    a(f"s_cmp_ge_u32 s2, {nwg}")
    a(f"s_cbranch_scc1 {name}_end")


def footer(a, name):
    a.label(f"{name}_end")
    a("s_endpgm")


def srd(a, d, base, nbytes):
    a(f"s_mov_b32 s{d}, s{base}")
    a(f"s_and_b32 s{d+1}, s{base+1}, 0xffff")
    a(f"s_mov_b32 s{d+2}, {nbytes}")
    a(f"s_mov_b32 s{d+3}, 0x00020000")


class Stamps:
    def __init__(self, a, name):
        self.a = a; self.n = 0; self.on = OPT.get("ts") == name[:-7]

    def __call__(self, real=False):
        if not self.on:
            return
        self.a(f"{'s_memrealtime' if real or 'tsreal' in OPT else 's_memtime'} s[{60+2*self.n}:{61+2*self.n}]")
        self.a("s_waitcnt lgkmcnt(0)")
        self.n += 1

    def store(self):
        if not self.on:
            return
        a = self.a
        a("s_lshl_b32 s58, s2, 4")
        a("s_add_u32 s58, s58, s3")
        a("s_lshl_b32 s58, s58, 7")
        a(f"s_add_u32 s58, s58, {L['TS']}")
        a("s_sub_u32 s58, s58, s59")
        a("v_mov_b32 v2, 0")
        for i in range(self.n):
            a(f"v_mov_b32 v0, s{60+2*i}")
            a(f"buffer_store_dword v0, v2, s[4:7], s58 offen offset:{4*i}")


def xg_reduce(a, op, v, t):
    a(f"v_mov_b32 v{t}, v{v}")
    a(f"v_permlane16_swap_b32 v{v}, v{t}")
    a(f"{op} v{v}, v{v}, v{t}")
    a(f"v_mov_b32 v{t}, v{v}")
    a(f"v_permlane32_swap_b32 v{v}, v{t}")
    a(f"{op} v{v}, v{v}, v{t}")


def w12_roles(a, name, U, fin, mid, NT):
    def dma18():
        a("s_lshl_b32 s44, s3, 10")
        a("s_mov_b32 m0, s44")
        for ks in range(18):
            a("buffer_load_dwordx4 v8, s[12:15], s32 offen " + NT + " lds")
            a("s_add_u32 s32, s32, s33")
            a("s_add_u32 m0, m0, 4096")

    def tile_decode():
        a("s_lshl_b32 s43, s42, 1")
        a("s_lshr_b32 s44, s3, 1")
        a("s_add_u32 s43, s43, s44")
        a("s_cmp_ge_u32 s43, 9")
        a("s_cselect_b32 s46, 1, 0")
        a("s_mul_i32 s47, s46, 9")
        a("s_sub_u32 s47, s43, s47")
        a("s_lshl_b32 s34, s41, 1")
        a("s_add_u32 s34, s34, s46")
        a(f"s_mul_i32 s34, s34, {SLB}")
        a(f"s_add_u32 s34, s34, {L['W12']}")
        a("s_and_b32 s44, s3, 1")
        a("s_lshl_b32 s44, s44, 10")
        a("s_add_u32 s34, s34, s44")

    a(f"s_and_b32 s41, {U}, 7")
    a(f"s_lshr_b32 s42, {U}, 3")
    a("s_cmp_ge_u32 s42, 9")
    a(f"s_cbranch_scc1 {name}_rw2")
    srd(a, 12, 24, D * F * 2)
    a(f"s_mul_i32 s41, {U}, 2731")
    a("s_lshr_b32 s41, s41, 16")
    a("s_mul_i32 s42, s41, 24")
    a(f"s_sub_u32 s42, {U}, s42")
    a("s_mul_i32 s56, s42, 43691")
    a("s_lshr_b32 s56, s56, 17")
    a("v_mul_u32_u24 v8, 9216, v6")
    a("v_lshl_add_u32 v8, v7, 4, v8")
    a("s_mul_i32 s32, s42, 384")
    a("s_add_u32 s45, s32, s38")
    a(f"s_mul_i32 s44, s41, {192*9216}")
    a("s_add_u32 s32, s32, s44")
    a(f"s_mul_i32 s44, s3, {8*9216}")
    a("s_add_u32 s32, s32, s44")
    srd(a, 48, 26, F * 2)
    a("v_lshlrev_b32 v12, 1, v4")
    for l3 in range(3):
        a(f"buffer_load_ushort v{88+l3}, v12, s[48:51], s45 offen offset:{l3*128}")
    a("s_lshl_b32 s44, s3, 10")
    for ks in range(6):
        for l3 in range(3):
            a(f"s_add_u32 m0, s44, {l3*24576 + ks*4096}")
            a(f"s_add_u32 s33, s32, {ks*32*9216 + l3*128}")
            a("buffer_load_dwordx4 v8, s[12:15], s33 offen " + NT + " lds")
    DST = ((34, 35), (36, 37), (39, 40))
    for l3 in range(3):
        d, st = DST[l3]
        a("s_mul_i32 s43, s42, 6")
        a("s_lshr_b32 s44, s3, 1")
        a("s_add_u32 s43, s43, s44")
        a(f"s_add_u32 s43, s43, {2*l3}")
        a("s_mul_i32 s46, s43, 7282")
        a("s_lshr_b32 s46, s46, 16")
        a("s_mul_i32 s47, s46, 9")
        a("s_sub_u32 s47, s43, s47")
        a(f"s_mul_i32 s{d}, s46, {SLB}")
        a("s_mul_i32 s44, s47, 19")
        a(f"s_cmp_lt_u32 s47, {G0}")
        a("s_cselect_b32 s44, s47, s44")
        a(f"s_cselect_b32 s45, {G0}, 1")
        a("s_lshl_b32 s44, s44, 11")
        a(f"s_add_u32 s{d}, s{d}, s44")
        a(f"s_lshl_b32 s{st}, s45, 11")
        a("s_and_b32 s44, s3, 1")
        a("s_lshl_b32 s44, s44, 10")
        a(f"s_add_u32 s{d}, s{d}, s44")
        a(f"s_add_u32 s{d}, s{d}, {L['W12']}")
        a(f"s_mul_i32 s44, s{st}, 18")
        a(f"s_add_u32 s{52+l3}, s{d}, s44")
        a("s_mul_i32 s44, s41, 6")
        a(f"s_mul_i32 s44, s44, s{st}")
        a(f"s_add_u32 s{d}, s{d}, s44")
    a("v_add_u32 v15, 24576, v11")
    a("v_mov_b32 v12, 0x3f803f80")
    for l3 in range(3):
        a(f"v_mov_b32 v{92+l3}, 0")
    mid(2)
    for ks in range(6):
        a("s_waitcnt vmcnt(15)")
        a("s_barrier")
        if ks == 5:
            mid(3)
        for l3 in range(3):
            f = 3 * ks + l3
            for r in range(2):
                off = l3 * 24576 + ks * 4096 + r * 2048
                base, off = ("v11", off) if l3 < 2 else ("v15", off - 24576)
                a(f"ds_read_b64_tr_b16 v[{16+4*f+2*r}:{17+4*f+2*r}], {base} offset:{off}")
        a("s_waitcnt lgkmcnt(0)")
        for l3 in range(3):
            f = 3 * ks + l3
            d, st = DST[l3]
            a(f"buffer_store_dwordx4 v[{16+4*f}:{19+4*f}], v3, s[4:7], s{d} offen sc1")
            a(f"s_add_u32 s{d}, s{d}, s{st}")
            for j in range(4):
                a(f"v_dot2c_f32_bf16 v{92+l3}, v{16+4*f+j}, v12")
    a("v_cmp_eq_u32 s[46:47], s41, v5")
    a("s_cmp_eq_u32 s41, 0")
    a("s_cselect_b32 s44, 3, s41")
    a("s_cselect_b32 s45, -1, 0")
    a("v_cmp_eq_u32 vcc, s44, v5")
    a("s_or_b64 vcc, vcc, s[46:47]")
    a("v_mov_b32 v8, 0x40000000")
    a("v_cndmask_b32 v9, v8, v3, vcc")
    for l3 in range(3):
        c = 92 + l3; o = 16 + 4 * l3
        xg_reduce(a, "v_add_f32", c, 8)
        a(f"v_lshl_or_b32 v{o}, v{88+l3}, 16, v{88+l3}")
        a(f"v_and_b32 v{o}, s45, v{o}")
        a(f"v_cvt_pk_bf16_f32 v{o+2}, v{c}, v{c}")
        a(f"v_and_b32 v8, 0xffff0000, v{o+2}")
        a(f"v_sub_f32 v8, v{c}, v8")
        a(f"v_cvt_pk_bf16_f32 v{o+1}, v{c}, v8")
        a(f"v_and_b32 v{o+2}, 0xffff, v{o+2}")
        a(f"v_mov_b32 v{o+3}, 0")
        for r in range(3):
            a(f"v_cndmask_b32 v{o+r}, 0, v{o+r}, s[46:47]")
        a(f"buffer_store_dwordx4 {vr(o,4)}, v9, s[4:7], s{52+l3} offen sc1")
    fin()

    a.label(f"{name}_rw2")
    srd(a, 12, 28, D * F * 2)
    a("s_mov_b32 s56, s41")
    a("s_sub_u32 s42, s42, 9")
    a("v_mul_u32_u24 v8, 1152, v6")
    a("v_lshl_add_u32 v8, v7, 4, v8")
    a(f"s_mul_i32 s32, s41, {576*1152}")
    a("s_lshl_b32 s44, s42, 7")
    a("s_add_u32 s32, s32, s44")
    a(f"s_mul_i32 s44, s3, {8*1152}")
    a("s_add_u32 s32, s32, s44")
    a(f"s_mov_b32 s33, {32*1152}")
    dma18()
    tile_decode()
    a("s_mul_i32 s44, s46, 36864")
    a("s_sub_u32 s45, 36864, s44")
    a("v_add_u32 v15, s45, v11")
    a("v_add_u32 v11, s44, v11")
    a(f"s_mul_i32 s44, s47, {KT*2048}")
    a("s_add_u32 s37, s34, s44")
    a(f"s_add_u32 s37, s37, {(342+18*KO)*1024}")
    a("s_lshl_b32 s44, s47, 11")
    a("s_add_u32 s34, s34, s44")
    a(f"s_add_u32 s34, s34, {342*1024}")
    mid(2)
    a("s_waitcnt vmcnt(0)")
    a("s_barrier")
    mid(3)
    for grp in range(3):
        for b in range(6 * grp, 6 * grp + 6):
            for r in range(2):
                a(f"ds_read_b64_tr_b16 v[{16+4*b+2*r}:{17+4*b+2*r}], {'v11' if b < 9 else 'v15'} offset:{(b%9)*4096+r*2048}")
        a("s_waitcnt lgkmcnt(0)")
        for b in range(6 * grp, 6 * grp + 6):
            if b < KO:
                a(f"buffer_store_dwordx4 v[{16+4*b}:{19+4*b}], v3, s[4:7], s34 offen sc1")
                a(f"s_add_u32 s34, s34, {18*1024}")
            else:
                a(f"buffer_store_dwordx4 v[{16+4*b}:{19+4*b}], v3, s[4:7], s37 offen sc1")
                a("s_add_u32 s37, s37, 2048")
    fin()


def gen_p0(CODE0="p1l1_kernel", CPN=6, zero=False, w12=True):
    name = "p0_kernel"
    NT = OPT.get("p0nt", "nt")
    NWG = 248
    a = Asm()
    header(a, name, NWG)
    ts = Stamps(a, name)
    ts(True); ts()
    a("s_load_dwordx4 s[16:19], s[0:1], 0")
    a("s_load_dwordx2 s[20:21], s[0:1], 16")
    a("s_load_dwordx4 s[24:27], s[0:1], 32")
    a("s_load_dwordx2 s[28:29], s[0:1], 48")
    a("s_load_dwordx2 s[30:31], s[0:1], 80")
    a("v_and_b32 v1, 63, v0")
    a("v_lshrrev_b32 v2, 6, v0")
    a("v_readfirstlane_b32 s3, v2")
    a("v_lshlrev_b32 v3, 4, v1")
    a("v_and_b32 v4, 15, v1")
    a("v_lshrrev_b32 v5, 4, v1")
    a("v_lshrrev_b32 v6, 3, v1")
    a("v_and_b32 v7, 7, v1")
    a("s_mul_i32 s40, s3, 18432")
    a("v_lshrrev_b32 v11, 2, v1")
    a("v_lshlrev_b32 v11, 7, v11")
    a("v_and_b32 v12, 3, v1")
    a("v_lshl_add_u32 v11, v12, 3, v11")
    a("s_lshl_b32 s38, s3, 5")
    a("v_add_u32 v11, s38, v11")
    a("s_waitcnt lgkmcnt(0)")
    if "nocp" not in OPT:
        a("s_getpc_b64 s[52:53]")
        a.raw(f"{name}_pc:")
        a("s_lshr_b32 s54, s2, 3")
        a("s_lshl_b32 s54, s54, 2")
        a("s_add_u32 s54, s54, s3")
        a(f"s_mul_i32 s54, s54, {64*CPN}")
        a(f"s_add_u32 s54, s54, {CODE0}-{name}_pc")
        a(f"s_min_u32 s54, s54, code_end-{name}_pc-{64*(CPN-1)}")
        a("s_add_u32 s52, s52, s54")
        a("s_addc_u32 s53, s53, 0")
        for i in range(CPN):
            a(f"s_load_dword s55, s[52:53], {64*i}")
    PT = int(OPT.get("pt", 0))
    if PT:
        npg = (L["TS"] + PT * 1024 - 1) // (PT * 1024)
        per = (npg + 123) // 124
        a("s_lshr_b32 s54, s2, 3")
        a("s_lshl_b32 s54, s54, 2")
        a("s_add_u32 s54, s54, s3")
        a(f"s_mul_i32 s54, s54, {per * PT * 1024}")
        a(f"s_min_u32 s54, s54, {L['TS']}")
        a("s_add_u32 s52, s30, s54")
        a("s_addc_u32 s53, s31, 0")
        for i in range(per):
            a(f"s_load_dword s55, s[52:53], {i * PT * 1024 + 64 * 37}")
    srd(a, 4, 30, WS_BYTES)
    a(f"s_mov_b32 s36, {OOB}")
    a(f"s_mov_b32 s37, {OOB}")
    a("v_lshlrev_b32 v9, 2, v4")
    a("v_mov_b32 v10, 0")
    if zero:
        a("s_cmp_ge_u32 s2, 76")
        a(f"s_cselect_b32 s44, {L['FL1'] - 76*256}, 0")
        a("s_lshl_b32 s45, s2, 8")
        a("s_add_u32 s44, s44, s45")
        a("s_cmp_ge_u32 s2, 152")
        a(f"s_cselect_b32 s44, {OOB}, s44")
        a("s_cmp_lg_u32 s3, 1")
        a(f"s_cselect_b32 s44, {OOB}, s44")
        a("v_lshlrev_b32 v12, 2, v1")
        a("buffer_store_dword v10, v12, s[4:7], s44 offen")
    BQ, BO, BX_ = (144, 198, 216) if w12 else (0, 54, 72)
    if not w12:
        a("s_cmp_ge_u32 s2, 200")
        a(f"s_cbranch_scc1 {name}_end")
    a(f"s_cmp_ge_u32 s2, {BX_}")
    a(f"s_cbranch_scc1 {name}_x")
    a(f"s_cmp_ge_u32 s2, {BO}")
    a(f"s_cbranch_scc1 {name}_wo")
    a(f"s_cmp_ge_u32 s2, {BQ}")
    a(f"s_cbranch_scc1 {name}_wq")
    def fin():
        if ts.on:
            a(f"s_branch {name}_ts")
        else:
            a("s_endpgm")

    def mid(k):
        ts.n = k
        ts()

    if w12:
        w12_roles(a, name, "s2", fin, mid, NT)
    else:
        a("s_endpgm")

    a.label(f"{name}_wo")
    srd(a, 12, 20, D * D * 2)
    a(f"s_sub_u32 s41, s2, {BO}")
    a("s_lshl_b32 s44, s3, 3")
    a("v_add_u32 v12, s44, v6")
    a("v_lshrrev_b32 v13, 4, v12")
    a("v_mul_u32_u24 v13, 18, v13")
    a("v_and_b32 v14, 15, v12")
    a("v_add_u32 v13, v13, v14")
    a("v_lshrrev_b32 v14, 2, v12")
    a("v_mul_u32_u24 v14, 36, v14")
    a("v_and_b32 v15, 3, v12")
    a("v_lshrrev_b32 v2, 1, v15")
    a("v_lshlrev_b32 v2, 4, v2")
    a("v_add3_u32 v14, v14, v15, v2")
    a("v_add_u32 v14, 16, v14")
    a("s_mul_i32 s32, s41, 36")
    a("s_sub_u32 s33, s41, 16")
    a("s_mul_i32 s33, s33, 288")
    a("s_cmp_lt_u32 s41, 16")
    a("s_cselect_b32 s32, s32, s33")
    a("s_cselect_b64 vcc, -1, 0")
    a("v_cndmask_b32 v13, v14, v13, vcc")
    a("s_mul_i32 s32, s32, 1152")
    a("v_mul_u32_u24 v8, 1152, v13")
    a("v_lshl_add_u32 v8, v7, 4, v8")
    a("s_lshl_b32 s44, s3, 10")
    a("s_mov_b32 m0, s44")
    for cg in range(9):
        a("buffer_load_dwordx4 v8, s[12:15], s32 offen " + NT + " lds")
        a("s_add_u32 s32, s32, 128")
        a("s_add_u32 m0, m0, 4096")
    a("s_mul_i32 s34, s3, 18432")
    a("s_lshl_b32 s44, s41, 10")
    a("s_add_u32 s34, s34, s44")
    a(f"s_add_u32 s34, s34, {L['WO']}")
    mid(2)
    a("s_waitcnt vmcnt(0)")
    a("s_barrier")
    mid(3)
    for cg in range(9):
        for r in range(2):
            a(f"ds_read_b64_tr_b16 v[{16+4*cg+2*r}:{17+4*cg+2*r}], v11 offset:{cg*4096+r*2048}")
        if cg == 6:
            a("s_waitcnt lgkmcnt(0)")
    a("s_waitcnt lgkmcnt(0)")
    for cg in range(9):
        a(f"buffer_store_dwordx4 v[{16+4*cg}:{19+4*cg}], v3, s[4:7], s34 offen sc1")
        a(f"s_add_u32 s34, s34, {4*18432}")
    fin()

    a.label(f"{name}_wq")
    srd(a, 12, 18, D * 3 * D * 2)
    a(f"s_sub_u32 s41, s2, {BQ}")
    a("s_mul_i32 s42, s41, 43691")
    a("s_lshr_b32 s42, s42, 17")
    a("s_mul_i32 s43, s42, 3")
    a("s_sub_u32 s43, s41, s43")
    a(f"s_mul_i32 s32, s42, {32*3456}")
    a("s_mul_i32 s44, s43, 1152")
    a("s_add_u32 s32, s32, s44")
    a(f"s_mul_i32 s44, s3, {8*3456}")
    a("s_add_u32 s32, s32, s44")
    a("s_add_u32 s33, s32, 32")
    a("v_lshrrev_b32 v8, 1, v1")
    a("v_mul_u32_u24 v8, 36, v8")
    a("v_and_b32 v12, 1, v1")
    a("v_lshl_add_u32 v8, v12, 4, v8")
    a("v_and_b32 v12, 31, v1")
    a("v_mul_u32_u24 v12, 36, v12")
    a("v_lshrrev_b32 v13, 5, v1")
    a("v_mul_u32_u24 v13, 3456, v13")
    a("v_add_u32 v12, v12, v13")
    a("s_lshl_b32 s44, s3, 13")
    a("s_mov_b32 m0, s44")
    for i in range(8):
        a("buffer_load_dwordx4 v8, s[12:15], s32 offen " + NT + " lds")
        a("s_add_u32 s32, s32, 3456")
        a("s_add_u32 m0, m0, 1024")
    a("s_lshl_b32 s44, s3, 10")
    a("s_add_u32 m0, s44, 32768")
    for i in range(4):
        a("buffer_load_dword v12, s[12:15], s33 offen " + NT + " lds")
        a(f"s_add_u32 s33, s33, {2*3456}")
        a("s_add_u32 m0, m0, 256")
    a("v_lshrrev_b32 v13, 2, v1")
    a("v_lshlrev_b32 v13, 10, v13")
    a("v_and_b32 v14, 3, v1")
    a("v_lshl_add_u32 v13, v14, 3, v13")
    a("s_lshl_b32 s44, s3, 8")
    a("v_add_u32 v13, s44, v13")
    a(f"s_mul_i32 s34, s3, {4*129024}")
    a("s_mul_i32 s44, s42, 7168")
    a("s_add_u32 s34, s34, s44")
    a(f"s_add_u32 s35, s34, {L['WQ'] + 6*1024}")
    a("s_lshl_b32 s44, s43, 11")
    a("s_add_u32 s34, s34, s44")
    a(f"s_add_u32 s34, s34, {L['WQ']}")
    a("v_lshrrev_b32 v14, 2, v4")
    a(f"s_mov_b32 s44, 129024")
    a("v_mul_lo_u32 v14, v14, s44")
    a("v_lshrrev_b32 v15, 1, v4")
    a("v_and_b32 v15, 1, v15")
    a("s_cmp_eq_u32 s43, 2")
    a("s_cselect_b32 s44, 1, 2")
    a("s_lshl_b32 s45, s43, 1")
    a("s_cmp_eq_u32 s43, 2")
    a("s_cselect_b32 s45, 8, s45")
    a("v_lshlrev_b32 v15, s44, v15")
    a("v_and_b32 v2, 1, v4")
    a("v_add3_u32 v15, v15, v2, s45")
    a("v_lshl_add_u32 v15, v5, 4, v15")
    a("v_lshl_add_u32 v14, v15, 4, v14")
    mid(2)
    a("s_waitcnt vmcnt(0)")
    a("s_barrier")
    mid(3)
    for i in range(8):
        for r in range(2):
            a(f"ds_read_b64_tr_b16 v[{16+4*i+2*r}:{17+4*i+2*r}], v13 offset:{r*16384+i*32}")
        if i == 6:
            a("s_waitcnt lgkmcnt(0)")
    for r in range(2):
        a(f"ds_read_b64_tr_b16 v[{48+2*r}:{49+2*r}], v11 offset:{32768+r*2048}")
    for i in range(4):
        a(f"v_mov_b32 v{52+i}, 0")
    a("s_waitcnt lgkmcnt(0)")
    for i in range(8):
        a(f"buffer_store_dwordx4 v[{16+4*i}:{19+4*i}], v3, s[4:7], s34 offen offset:{(i&1)*1024} sc1")
        if i & 1:
            a("s_add_u32 s34, s34, 129024")
    a("buffer_store_dwordx4 v[48:51], v14, s[4:7], s35 offen")
    a("s_cmp_eq_u32 s43, 2")
    a(f"s_cselect_b32 s35, s35, {OOB}")
    a("buffer_store_dwordx4 v[52:55], v14, s[4:7], s35 offen offset:64")
    fin()

    a.label(f"{name}_x")
    srd(a, 12, 16, XT)
    a(f"s_sub_u32 s41, s2, {BX_}")
    if w12:
        a("s_lshl_b32 s41, s41, 2")
        a("s_add_u32 s41, s41, s3")
    else:
        a("s_cmp_lg_u32 s3, 0")
        a(f"s_cbranch_scc1 {name}_end")
    a("s_mul_i32 s33, s41, 18432")
    a(f"s_add_u32 s34, s33, {L['X0']}")
    a("s_mov_b32 m0, s40")
    for i in range(18):
        a(f"buffer_load_dwordx4 v3, s[12:15], s33 offen offset:{(i%3)*1024} " + NT + " lds")
        if i % 3 == 2:
            a("s_add_u32 s33, s33, 3072")
            a("s_add_u32 m0, m0, 3072")
    a("v_mul_u32_u24 v8, 1152, v4")
    a("v_lshl_add_u32 v8, v5, 3, v8")
    a("v_add_u32 v8, s40, v8")
    a("v_mov_b32 v12, 0x3f803f80")
    a("v_mov_b32 v14, 0")
    a("v_mov_b32 v15, 0")
    mid(2)
    a("s_waitcnt vmcnt(0)")
    mid(3)
    for grp in range(3):
        for ks in range(6 * grp, 6 * grp + 6):
            a(f"ds_read_b64 v[{16+4*ks}:{17+4*ks}], v8 offset:{ks*64}")
            a(f"ds_read_b64 v[{18+4*ks}:{19+4*ks}], v8 offset:{ks*64+32}")
        a("s_waitcnt lgkmcnt(0)")
        for ks in range(6 * grp, 6 * grp + 6):
            a(f"buffer_store_dwordx4 v[{16+4*ks}:{19+4*ks}], v3, s[4:7], s34 offen sc1")
            a("s_add_u32 s34, s34, 1024")
    for ks in range(18):
        for j in range(4):
            a(f"v_dot2c_f32_bf16 v14, v{16+4*ks+j}, v12")
            a(f"v_dot2c_f32_bf16 v15, v{16+4*ks+j}, v{16+4*ks+j}")
    a("v_lshlrev_b32 v9, 3, v1")
    a("s_lshl_b32 s36, s41, 9")
    a(f"s_add_u32 s36, s36, {L['ST0']}")
    a("buffer_store_dwordx2 v[14:15], v9, s[4:7], s36 offen")
    if ts.on:
        a.label(f"{name}_ts")
        ts()
        a("s_waitcnt vmcnt(0)")
        ts(); ts(True)
        ts.store()
    footer(a, name)
    return name, a.text(), dict(vgpr=96, sgpr=96, accum=96), dict(grid=248, block=256, lds=81920 + 4096)


def stats_finish(a, s, q, r, mr, t, double_ln):
    a(f"v_mul_f32 v{s}, {f32(1.0/D)}, v{s}")
    a(f"v_mul_f32 v{q}, {f32(1.0/D)}, v{q}")
    a(f"v_fma_f32 v{q}, -v{s}, v{s}, v{q}")
    a(f"v_max_f32 v{q}, 0, v{q}")
    a(f"v_add_f32 v{t}, {f32(1e-5)}, v{q}")
    a(f"v_rsq_f32 v{r}, v{t}")
    if double_ln:
        a(f"v_mul_f32 v{t}, v{r}, v{r}")
        a(f"v_mul_f32 v{t}, v{t}, v{q}")
        a(f"v_add_f32 v{t}, {f32(1e-5)}, v{t}")
        a(f"v_rsq_f32 v{t}, v{t}")
        a(f"v_mul_f32 v{r}, v{r}, v{t}")
    a(f"v_mul_f32 v{mr}, v{s}, v{r}")


def gen_p1(layer):
    name = f"p1l{layer}_kernel"
    XIN = L["X0"] if layer == 0 else L["X2"]
    STI = L["ST0"] if layer == 0 else L["ST2"]
    OUT = L[f"O{layer}"]
    a = Asm()
    vm = Cnt(a, "vmcnt", 63); lg = Cnt(a, "lgkmcnt", 15)
    header(a, name, 256)
    ts = Stamps(a, name)
    ts(True); ts()
    ROT = int(OPT.get("p1rot", 0))
    a("s_load_dwordx2 s[4:5], s[0:1], 80")
    a("v_and_b32 v1, 63, v0")
    a("v_lshrrev_b32 v2, 6, v0")
    a("v_readfirstlane_b32 s3, v2")
    a("v_lshlrev_b32 v3, 4, v1")
    a("v_and_b32 v4, 15, v1")
    a("v_lshrrev_b32 v5, 4, v1")
    a("s_and_b32 s12, s2, 7")
    a("s_lshr_b32 s13, s2, 3")
    a("s_lshr_b32 s14, s12, 1")
    a("s_lshl_b32 s14, s14, 2")
    a("s_and_b32 s15, s13, 3")
    a("s_mul_i32 s46, s15, 5")
    a("s_add_u32 s14, s14, s15")
    a("s_and_b32 s15, s12, 1")
    a("s_lshl_b32 s15, s15, 3")
    a("s_lshr_b32 s16, s13, 2")
    a("s_add_u32 s15, s15, s16")
    a("s_lshl_b32 s16, s16, 1")
    a("s_add_u32 s46, s46, s16")
    a("s_cmp_ge_u32 s46, 18")
    a("s_cselect_b32 s16, 18, 0")
    a("s_sub_u32 s46, s46, s16")
    if not ROT:
        a("s_mov_b32 s46, 0")
    a("s_lshl_b32 s47, s46, 10")
    a("s_lshl_b32 s16, s14, 3")
    a("s_lshl_b32 s17, s3, 1")
    a("s_add_u32 s17, s17, s16")
    a("s_mul_i32 s18, s17, 18432")
    a("s_add_u32 s18, s18, s47")
    a(f"s_add_u32 s18, s18, {XIN}")
    a(f"s_mul_i32 s20, s15, {18*7168}")
    a("s_lshl_b32 s21, s3, 11")
    a("s_add_u32 s20, s20, s21")
    a("s_mul_i32 s19, s46, 7168")
    a("s_add_u32 s20, s20, s19")
    a(f"s_add_u32 s20, s20, {L['WQ']}")
    a("s_sub_u32 s20, s20, s59")
    a("s_mul_i32 s22, s16, 18432")
    a(f"s_add_u32 s22, s22, {XIN - 18432 - 1024}")
    a("s_cmp_eq_u32 s14, 0")
    a(f"s_cselect_b32 s22, {OOB}, s22")
    a("s_add_u32 s22, s22, s47")
    a("s_mov_b32 s48, 7168")
    a(f"s_mov_b32 s49, {-17*7168}")
    a("s_mov_b32 s50, 1024")
    a(f"s_mov_b32 s51, {-17*1024}")
    a("s_mov_b32 s44, 0xfffefffe")
    a("s_cmp_eq_u32 s3, 3")
    a("s_cselect_b32 s22, s22, s20")
    a("s_cselect_b32 s52, s50, s48")
    a("s_cselect_b32 s53, s51, s49")
    a("s_cselect_b32 s44, s44, -1")
    a("s_mov_b32 s45, s44")
    a("s_mov_b32 s24, s21")
    a("s_lshl_b32 s25, s17, 9")
    a(f"s_add_u32 s25, s25, {STI}")
    a("s_lshl_b32 s26, s16, 9")
    a(f"s_add_u32 s26, s26, {STI - 512}")
    a("s_cmp_eq_u32 s14, 0")
    a(f"s_cselect_b32 s26, {OOB}, s26")
    a("s_lshl_b32 s27, s3, 2")
    a("s_lshr_b32 s28, 0x1654, s27")
    a("s_and_b32 s28, s28, 15")
    a("s_lshr_b32 s27, 0x0632, s27")
    a("s_and_b32 s27, s27, 15")
    a("v_lshlrev_b32 v6, 5, v4")
    a("v_lshl_add_u32 v6, v5, 3, v6")
    a("v_lshlrev_b32 v7, 4, v5")
    a("v_lshlrev_b32 v8, 2, v4")
    a("v_add_u32 v15, 18432, v3")
    a("s_waitcnt lgkmcnt(0)")
    a("s_add_u32 s4, s4, s59")
    a("s_addc_u32 s5, s5, 0")
    a("s_and_b32 s5, s5, 0xffff")
    a(f"s_mov_b32 s6, {WS_BYTES}")
    a("s_mov_b32 s7, 0x00020000")
    ACC = 16; AB = 88
    RN = 168
    RS = 176
    CQN = 200
    CQH = 220
    CQS = 224
    MS = 228; MPA = 232; MPB = 236
    T0 = 200
    EX = 147456
    CQL = EX + 5 * 3072
    for n, so, off in ((0, "s25", 0), (1, "s25", 512), (2, "s26", 0)):
        a(f"buffer_load_dwordx2 {vr(T0+2*n,2)}, v6, s[4:7], {so} offen offset:{off}"); vm.issue("st")

    def loads(ks):
        if not ROT:
            o = (ks % 4) * 1024
            return [
                ["s_mov_b32 m0, s24", "s_add_u32 s24, s24, 8192", "buffer_load_dwordx4 v3, s[4:7], s20 offen lds", "s_add_u32 s20, s20, 7168"],
                ["s_mov_b64 exec, s[44:45]", "buffer_load_dwordx4 v3, s[4:7], s22 offen offset:1024 lds", "s_mov_b64 exec, -1",
                 "s_add_u32 s22, s22, s52"],
                [f"buffer_load_dwordx4 {ar(4*ks,4)}, v3, s[4:7], s18 offen offset:{o}"],
                [f"buffer_load_dwordx4 {ar(72+4*ks,4)}, v15, s[4:7], s18 offen offset:{o}"] + (["s_add_u32 s18, s18, 4096"] if ks % 4 == 3 else []),
            ]
        return [
            ["s_mov_b32 m0, s24", "s_add_u32 s46, s46, 1", "buffer_load_dwordx4 v3, s[4:7], s20 offen lds",
             "s_cmp_eq_u32 s46, 18", "s_cselect_b32 s54, s49, s48", "s_cselect_b32 s55, s53, s52", "s_cselect_b32 s56, s51, s50",
             "s_add_u32 s20, s20, s54"],
            ["s_mov_b64 exec, s[44:45]", "buffer_load_dwordx4 v3, s[4:7], s22 offen offset:1024 lds", "s_mov_b64 exec, -1",
             "s_add_u32 s22, s22, s55", "s_add_u32 s24, s24, 8192"],
            [f"buffer_load_dwordx4 {ar(4*ks,4)}, v3, s[4:7], s18 offen"],
            [f"buffer_load_dwordx4 {ar(72+4*ks,4)}, v15, s[4:7], s18 offen", "s_add_u32 s18, s18, s56"],
        ]

    def do_load(grp, ks):
        for t in grp:
            a(t)
        vm.issue(("k", ks))

    PF = int(OPT.get("p1pf", 5))
    PF0 = int(OPT.get("p1pf0", 2))
    PF1 = int(OPT.get("p1pf1", 4))
    for ks in range(PF0):
        for grp in loads(ks):
            do_load(grp, ks)
    ts()
    a("v_min_u32 v12, 71, v0")
    a("v_lshrrev_b32 v13, 2, v12")
    a("v_lshlrev_b32 v13, 13, v13")
    a("v_and_b32 v12, 3, v12")
    a("v_lshl_add_u32 v13, v12, 8, v13")
    for i in range(4):
        a(f"v_mov_b32 v{ACC+i}, 0x3f803f80")
    a(f"ds_write_b128 v13, {vr(ACC,4)} offset:7168")
    a("v_mov_b32 v9, v3")
    a("s_lshl_b32 s32, s27, 10")
    a("v_add_u32 v10, s32, v3")
    a("s_lshl_b32 s32, s28, 10")
    a("v_add_u32 v11, s32, v3")
    a(f"v_mov_b32 v12, {f32(-1e30)}")
    a("v_lshlrev_b32 v13, 2, v5")
    a("v_sub_u32 v13, v4, v13")
    a("s_cmp_eq_u32 s17, 0")
    a("s_cselect_b32 s33, -100, -2")
    for i in range(4):
        a(f"v_subrev_u32 v14, {i}, v13")
        a("v_and_b32 v2, 1, v14")
        a("v_cmp_eq_u32 s[34:35], 0, v2")
        a("v_cmp_le_i32 vcc, 0, v14")
        a("s_and_b64 vcc, vcc, s[34:35]")
        a(f"v_cndmask_b32 v{MS+i}, v12, 0, vcc")
        a("v_cmp_ge_i32 vcc, -2, v14")
        a("s_and_b64 vcc, vcc, s[34:35]")
        a(f"v_cndmask_b32 v{MPB+i}, v12, 0, vcc")
        a("v_cmp_ge_i32 vcc, s33, v14")
        a("s_and_b64 vcc, vcc, s[34:35]")
        a(f"v_cndmask_b32 v{MPA+i}, v12, 0, vcc")
    a("s_mul_i32 s32, s3, 384")
    a(f"s_add_u32 s32, s32, {EX}")
    a("v_add_u32 v12, s32, v8")
    a("v_add_u32 v13, s32, v7")
    for ks in range(PF0, PF1):
        for grp in loads(ks):
            do_load(grp, ks)
    vm.wait("st")
    for r in range(6):
        a(f"v_mov_b32 v{T0+8+r}, v{T0+r}")
    for r in range(6):
        a(f"v_permlane16_swap_b32 v{T0+r}, v{T0+8+r}")
    for r in range(6):
        a(f"v_add_f32 v{T0+r}, v{T0+r}, v{T0+8+r}")
    for r in range(6):
        a(f"v_mov_b32 v{T0+8+r}, v{T0+r}")
    for r in range(6):
        a(f"v_permlane32_swap_b32 v{T0+r}, v{T0+8+r}")
    for r in range(6):
        a(f"v_add_f32 v{T0+r}, v{T0+r}, v{T0+8+r}")
    for n in range(3):
        b = T0 + 2 * n
        stats_finish(a, b, b + 1, RN + 2 * n, RN + 2 * n + 1, T0 + 8 + n, False)
        a(f"ds_write_b32 v12, v{RN+2*n} offset:{n*128}")
        a(f"ds_write_b32 v12, v{RN+2*n+1} offset:{n*128+64}")
    for n in range(3):
        a(f"ds_read_b128 {vr(RS+8*n,4)}, v13 offset:{n*128}")
        a(f"ds_read_b128 {vr(RS+8*n+4,4)}, v13 offset:{n*128+64}")
    for ks in range(PF1, PF):
        for grp in loads(ks):
            do_load(grp, ks)

    def reads(ks):
        b = AB + 40 * (ks & 1)
        o = (ks % 8) * 8192
        r = [f"ds_read_b128 {vr(b+28,4)}, v9 offset:{o+7*1024}",
             f"ds_read_b128 {vr(b+32,4)}, v10 offset:{o}",
             f"ds_read_b128 {vr(b+36,4)}, v11 offset:{o}"]
        r += [f"ds_read_b128 {vr(b+4*fr,4)}, v9 offset:{o+fr*1024}" for fr in (0, 1, 2, 3, 6, 4, 5)]
        return r

    def mfmas(ks):
        b = AB + 40 * (ks & 1)
        r = []
        acc = vr(ACC + 64, 4); c = "0" if ks == 0 else acc
        r.append(f"v_mfma_f32_16x16x32_bf16 {acc}, {vr(b+32,4)}, {vr(b+28,4)}, {c}")
        acc = vr(ACC + 68, 4); c = "0" if ks == 0 else acc
        r.append(f"v_mfma_f32_16x16x32_bf16 {acc}, {vr(b+28,4)}, {vr(b+36,4)}, {c}")
        for slot, fr in enumerate((0, 1, 2, 3, 6, 4, 5, 6)):
            for n in range(2):
                acc = vr(ACC + 32 * n + 4 * slot, 4)
                x = ar(72 * n + 4 * ks, 4)
                w = vr(b + 4 * fr, 4)
                c = "0" if ks == 0 else acc
                if slot < 5:
                    r.append(f"v_mfma_f32_16x16x32_bf16 {acc}, {w}, {x}, {c}")
                else:
                    r.append(f"v_mfma_f32_16x16x32_bf16 {acc}, {x}, {w}, {c}")
        return r

    CH = int(OPT.get("p1ch", 2))
    nload = [PF]
    ts()
    vm.wait(("k", CH - 1))
    a("s_waitcnt lgkmcnt(0)")
    a("s_barrier")
    for t in reads(0):
        a(t)
    a("s_waitcnt lgkmcnt(0)")
    for ks in range(18):
        if ks in (0, 6, 12):
            ts()
        m = mfmas(ks)
        nxt = ks + 1
        rd = []
        if nxt < 18:
            if nxt % CH == 0:
                vm.wait(("k", min(nxt + CH - 1, 17)))
                a("s_barrier")
            if nxt % 8 == 0:
                a("v_add_u32 v9, 0x10000, v9")
                a("v_add_u32 v10, 0x10000, v10")
                a("v_add_u32 v11, 0x10000, v11")
            rd = reads(nxt)
        else:
            a("s_lshl_b32 s32, s27, 6")
            a(f"s_add_u32 s32, s32, {CQL}")
            a("v_add_u32 v12, s32, v7")
            a("s_lshl_b32 s33, s28, 6")
            a(f"s_add_u32 s33, s33, {CQL}")
            a("v_add_u32 v13, s33, v8")
            a("s_mov_b32 s34, 0x00010001")
            a("s_mov_b32 s35, 0x00010001")
        RAMP = int(OPT.get("p1ramp", 0))
        ld = []
        for _ in range(2 if ks < RAMP else 1):
            if nload[0] < 18:
                ld += [(g, nload[0]) for g in loads(nload[0])]
                nload[0] += 1
        for i, t in enumerate(m):
            a(t)
            if i < len(rd):
                a(rd[i])
            st0 = 10 if len(ld) <= 4 else 2
            if i >= st0 and (i - st0) % 2 == 0 and (i - st0) // 2 < len(ld):
                do_load(*ld[(i - st0) // 2])
            if ks == 17 and i == 10:
                a("s_mov_b64 exec, s[34:35]")
                a(f"ds_write_b128 v12, {vr(ACC+64,4)}")
                a("s_mov_b64 exec, 0xffff")
                a(f"ds_write_b32 v13, v{ACC+68}")
                a("s_mov_b64 exec, -1")
        a("s_waitcnt lgkmcnt(0)")
    a("s_barrier")
    if "nopf" not in OPT:
        a("s_lshl_b32 s48, s13, 2")
        a("s_add_u32 s48, s48, s3")
        a("s_mul_i32 s49, s48, 5184")
        a(f"s_add_u32 s49, s49, {L['WO']}")
        a("s_sub_u32 s49, s49, s59")
        for i in range(6):
            if i == 4:
                a("s_add_u32 s49, s49, 4096")
            a(f"buffer_load_dwordx4 {ar(4*i,4)}, v3, s[4:7], s49 offen offset:{(i%4)*1024}")
        NPW = int(OPT.get("p1pw", 0))
        a("s_and_b32 s50, s12, 3")
        a("s_lshl_b32 s50, s50, 2")
        a("s_add_u32 s50, s50, s3")
        a(f"s_mul_i32 s50, s50, {SLB}")
        a(f"s_mul_i32 s51, s13, {NPW*1024}")
        a("s_add_u32 s50, s50, s51")
        a(f"s_add_u32 s50, s50, {L['W12']}")
        a("s_sub_u32 s50, s50, s59")
        for i in range(NPW):
            if i and i % 4 == 0:
                a("s_add_u32 s50, s50, 4096")
            a(f"buffer_load_dwordx4 {ar(24+4*i,4)}, v3, s[4:7], s50 offen offset:{(i%4)*1024}")
    a(f"v_add_u32 v9, {CQL}, v7")
    a(f"v_add_u32 v10, {CQL}, v8")
    for i, fr in enumerate((0, 1, 2, 3, 6)):
        a(f"ds_read_b128 {vr(CQN+4*i,4)}, v9 offset:{fr*64}")
    a(f"ds_read_b128 {vr(CQH,4)}, v12")
    for i, fr in enumerate((4, 5, 6)):
        a(f"ds_read_b32 v{CQS+i}, v10 offset:{fr*64}")
    a(f"ds_read_b32 v{CQS+3}, v13")

    KF = 88; QF = 112; VF = 128; ONE = 148; T = 152
    ts()
    for i in range(4):
        a(f"v_mul_f32 v{ACC+64+i}, v{ACC+64+i}, v{RN+4}")
        a(f"v_mul_f32 v{ACC+68+i}, v{ACC+68+i}, v{RS+16+i}")
    for n in (1, 0):
        for j in range(5):
            for i in range(4):
                a(f"v_mul_f32 v{ACC+32*n+4*j+i}, v{ACC+32*n+4*j+i}, v{RN+2*n}")
        for j in range(5, 8):
            for i in range(4):
                a(f"v_mul_f32 v{ACC+32*n+4*j+i}, v{ACC+32*n+4*j+i}, v{RS+8*n+i}")

    def corr_n(acc, n, cq):
        for i in range(4):
            a(f"v_fma_f32 v{acc+i}, -v{RN+2*n+1}, v{cq+i}, v{acc+i}")

    def corr_s(acc, n, cq):
        for i in range(4):
            a(f"v_fma_f32 v{acc+i}, -v{RS+8*n+4+i}, v{cq}, v{acc+i}")

    def pack2(dst, acc):
        a(f"v_cvt_pk_bf16_f32 v{dst}, v{acc}, v{acc+1}")
        a(f"v_cvt_pk_bf16_f32 v{dst+1}, v{acc+2}, v{acc+3}")

    a("v_cmp_eq_u32 s[36:37], 0, v5")
    a("v_cmp_eq_u32 s[38:39], 1, v5")
    a("v_lshlrev_b32 v12, 3, v1")
    a("s_mul_i32 s32, s3, 3072")
    a(f"s_add_u32 s33, s32, {EX}")
    a("v_add_u32 v13, s33, v12")
    a("s_lshl_b32 s32, s3, 9")
    a(f"s_add_u32 s32, s32, {EX}")
    a("s_cmp_eq_u32 s3, 3")
    a(f"s_cselect_b32 s32, {EX+4*3072}, s32")
    a("v_add_u32 v14, s32, v12")
    a("s_waitcnt lgkmcnt(0)")

    def conv_tile(n):
        ac = ACC + 32 * n
        tl = n + 1
        for i in range(5):
            corr_n(ac + 4 * i, n, CQN + 4 * i)
        for h in range(2):
            pack2(QF + (2 * n + h) * 4, ac + 4 * h)
            pack2(KF + (2 * tl + h) * 4, ac + 8 + 4 * h)
        pack2(T + 8 + 2 * n, ac + 16)
        for h in range(2):
            a(f"v_mov_b32 v{KF+(2*tl+h)*4+2}, v{T+8+2*n+1}")
            a(f"v_cndmask_b32 v{QF+(2*n+h)*4+2}, 0, v{T+8+2*n}, s[{36+2*h}:{37+2*h}]")
        for h in range(3):
            corr_s(ac + 20 + 4 * h, n, CQS + h)
            pack2(VF + 6 * h + 2 * tl, ac + 20 + 4 * h)

    corr_n(ACC + 64, 2, CQH)
    corr_s(ACC + 68, 2, CQS + 3)
    pack2(T + 12, ACC + 64)
    pack2(T + 14, ACC + 68)
    a(f"ds_write_b64 v14, {vr(T+12,2)}")
    a(f"ds_write_b64 v14, {vr(T+14,2)} offset:1536")
    conv_tile(1)
    a(f"ds_write_b64 v13, {vr(KF+16,2)} offset:{3072}")
    a(f"ds_write_b64 v13, {vr(KF+20,2)} offset:{3072+512}")
    a(f"ds_write_b64 v13, {vr(T+10,2)} offset:{3072+1024}")
    for h in range(3):
        a(f"ds_write_b64 v13, {vr(VF+6*h+4,2)} offset:{3072+1536+512*h}")
    conv_tile(0)
    for i in range(6):
        a(f"v_mov_b32 v{KF+4*i+3}, 0")
    for i in range(4):
        a(f"v_mov_b32 v{QF+4*i+3}, 0")
        a(f"v_mov_b32 v{ONE+i}, 0x3f803f80")
    a("s_waitcnt lgkmcnt(0)")
    ts()
    a("s_barrier")
    ts()
    a(f"ds_read_b64 {vr(KF,2)}, v13")
    a(f"ds_read_b64 {vr(KF+4,2)}, v13 offset:512")
    a(f"ds_read_b32 v{KF+2}, v13 offset:{1024+4}")
    a(f"ds_read_b32 v{KF+6}, v13 offset:{1024+4}")
    for h in range(3):
        a(f"ds_read_b64 {vr(VF+6*h,2)}, v13 offset:{1536+512*h}")
    SB = 16
    PB = 48
    MX = 64
    OB = 168
    OO = 72
    jobs = [(1, 0), (1, 1), (0, 0), (0, 1)]
    cs = (18 ** -0.5) * math.log2(math.e)
    a(f"s_mov_b32 s40, {f32(cs)}")
    for j, (n, h) in enumerate(jobs):
        if j == 2:
            a("s_waitcnt lgkmcnt(0)")
        q = vr(QF + (2 * n + h) * 4, 4)
        mp = MPA if n == 0 else MPB
        a(f"v_mfma_f32_16x16x32_bf16 {vr(SB+8*j,4)}, {vr(KF+(2*n+h)*4,4)}, {q}, {vr(mp,4)}")
        a(f"v_mfma_f32_16x16x32_bf16 {vr(SB+8*j+4,4)}, {vr(KF+(2*(n+1)+h)*4,4)}, {q}, {vr(MS,4)}")
    for j in range(4):
        s = SB + 8 * j; m = MX + 2 * j
        a(f"v_max3_f32 v{m}, v{s}, v{s+1}, v{s+2}")
        a(f"v_max3_f32 v{m+1}, v{s+3}, v{s+4}, v{s+5}")
        a(f"v_max3_f32 v{m}, v{m}, v{s+6}, v{s+7}")
        a(f"v_max_f32 v{m}, v{m}, v{m+1}")
    for j in range(4):
        a(f"v_mov_b32 v{MX+2*j+1}, v{MX+2*j}")
    for j in range(4):
        a(f"v_permlane16_swap_b32 v{MX+2*j}, v{MX+2*j+1}")
    for j in range(4):
        a(f"v_max_f32 v{MX+2*j}, v{MX+2*j}, v{MX+2*j+1}")
    for j in range(4):
        a(f"v_mov_b32 v{MX+2*j+1}, v{MX+2*j}")
    for j in range(4):
        a(f"v_permlane32_swap_b32 v{MX+2*j}, v{MX+2*j+1}")
    for j in range(4):
        a(f"v_max_f32 v{MX+2*j}, v{MX+2*j}, v{MX+2*j+1}")
    for j in range(4):
        a(f"v_mul_f32 v{MX+2*j}, s40, v{MX+2*j}")
    for j, (n, h) in enumerate(jobs):
        s = SB + 8 * j
        for i in range(8):
            a(f"v_fma_f32 v{s+i}, v{s+i}, s40, -v{MX+2*j}")
        for i in range(8):
            a(f"v_exp_f32 v{s+i}, v{s+i}")
        for i in range(4):
            a(f"v_cvt_pk_bf16_f32 v{PB+4*j+i}, v{s+2*i}, v{s+2*i+1}")
        p = vr(PB + 4 * j, 4)
        a(f"v_mfma_f32_16x16x32_bf16 {vr(OB+12*j+8,4)}, {vr(ONE,4)}, {p}, 0")
        a(f"v_mfma_f32_16x16x32_bf16 {vr(OB+12*j,4)}, {vr(VF+6*h+2*n,4)}, {p}, 0")
        a(f"v_mfma_f32_16x16x32_bf16 {vr(OB+12*j+4,4)}, {vr(VF+12+2*n,4)}, {p}, 0")
    a("s_mul_i32 s32, s17, 18432")
    a("s_lshl_b32 s33, s15, 10")
    a("s_add_u32 s33, s33, s32")
    a(f"s_add_u32 s33, s33, {OUT}")
    a("s_add_u32 s34, s33, 18432")
    a("s_lshr_b32 s35, s15, 3")
    a("s_lshl_b32 s35, s35, 10")
    a("s_and_b32 s36, s15, 3")
    a("s_lshl_b32 s36, s36, 8")
    a("s_add_u32 s35, s35, s36")
    a("s_lshr_b32 s36, s15, 2")
    a("s_and_b32 s36, s36, 1")
    a("s_lshl_b32 s36, s36, 3")
    a("s_add_u32 s35, s35, s36")
    a("s_add_u32 s35, s35, s32")
    a(f"s_add_u32 s35, s35, {OUT + 16*1024}")
    a("s_add_u32 s36, s35, 18432")
    a("v_lshlrev_b32 v12, 4, v4")
    a("v_mov_b32 v13, 0x40000000")
    a("v_cmp_eq_u32 vcc, 2, v5")
    a("v_cndmask_b32 v12, v13, v12, vcc")
    for j, (n, h) in enumerate(jobs):
        o = OB + 12 * j
        a(f"v_rcp_f32 v{o+8}, v{o+8}")
        for i in range(4):
            a(f"v_mul_f32 v{o+i}, v{o+i}, v{o+8}")
        a(f"v_mul_f32 v{o+4+2*h}, v{o+4+2*h}, v{o+8}")
        a(f"v_mul_f32 v{o+5+2*h}, v{o+5+2*h}, v{o+8}")
        a(f"v_cvt_pk_bf16_f32 v{OO+4*n+2*h}, v{o}, v{o+1}")
        a(f"v_cvt_pk_bf16_f32 v{OO+4*n+2*h+1}, v{o+2}, v{o+3}")
        a(f"v_cvt_pk_bf16_f32 v{OO+8+2*n+h}, v{o+4+2*h}, v{o+5+2*h}")
        if h == 1:
            a(f"buffer_store_dwordx4 {vr(OO+4*n,4)}, v3, s[4:7], s{33+n} offen {OPT.get('p1st', 'sc1')}")
            a(f"buffer_store_dwordx2 {vr(OO+8+2*n,2)}, v12, s[4:7], s{35+n} offen")
    ts()
    if ts.on:
        a("s_waitcnt vmcnt(0)")
    ts(); ts(True)
    ts.store()
    footer(a, name)
    return name, a.text(), dict(vgpr=240 + 144, sgpr=96, accum=240), dict(grid=256, block=256, lds=163840)


def pq_decode(a):
    a("v_and_b32 v1, 63, v0")
    a("v_lshrrev_b32 v2, 6, v0")
    a("v_readfirstlane_b32 s3, v2")
    a("v_lshlrev_b32 v3, 4, v1")
    a("v_and_b32 v4, 15, v1")
    a("v_lshrrev_b32 v5, 4, v1")
    a("s_and_b32 s12, s2, 7")
    a("s_lshl_b32 s12, s12, 3")
    a("s_lshr_b32 s13, s2, 3")
    a("s_and_b32 s15, s13, 7")
    a("s_add_u32 s12, s12, s15")
    a("s_lshr_b32 s13, s13, 3")
    a("s_mul_i32 s14, s13, 9")
    a("s_add_u32 s14, s14, s3")
    a("s_mul_i32 s15, s12, 36864")
    a("s_lshr_b32 s16, s14, 1")
    a("s_lshl_b32 s16, s16, 10")
    a("s_and_b32 s17, s14, 1")
    a("s_lshl_b32 s17, s17, 3")
    a("s_add_u32 s16, s16, s17")
    a("s_add_u32 s16, s16, s15")


def pq_epilogue(a, V, XOUT, STOUT, SCR, T):
    a(f"s_add_u32 s18, s16, {XOUT}")
    a("s_add_u32 s19, s18, 18432")
    for n in range(2):
        v = V + 4 * n
        a(f"v_cvt_pk_bf16_f32 v{T+2*n}, v{v}, v{v+1}")
        a(f"v_cvt_pk_bf16_f32 v{T+2*n+1}, v{v+2}, v{v+3}")
        a(f"buffer_store_dwordx2 {vr(T+2*n,2)}, v3, s[4:7], s{18+n} offen")
    for n in range(2):
        v = V + 4 * n; s = T + 4 + 2 * n
        a(f"v_add_f32 v{s}, v{v}, v{v+1}")
        a(f"v_mul_f32 v{s+1}, v{v}, v{v}")
        a(f"v_add_f32 v{s}, v{s}, v{v+2}")
        a(f"v_fmac_f32 v{s+1}, v{v+1}, v{v+1}")
        a(f"v_add_f32 v{s}, v{s}, v{v+3}")
        a(f"v_fmac_f32 v{s+1}, v{v+2}, v{v+2}")
        a(f"v_fmac_f32 v{s+1}, v{v+3}, v{v+3}")
    a("s_lshl_b32 s20, s3, 10")
    a(f"s_add_u32 s20, s20, {SCR}")
    a(f"v_add_u32 v{T+8}, s20, v3")
    a(f"ds_write_b128 v{T+8}, {vr(T+4,4)}")
    a("s_lshl_b32 s20, s3, 2")
    a(f"v_add_u32 v{T+9}, s20, v3")
    a("s_lshl_b32 s20, s12, 10")
    a("s_lshl_b32 s21, s13, 3")
    a("s_add_u32 s20, s20, s21")
    a("s_lshr_b32 s21, s3, 1")
    a("s_lshl_b32 s21, s21, 9")
    a("s_add_u32 s20, s20, s21")
    a("s_and_b32 s21, s3, 1")
    a("s_lshl_b32 s21, s21, 2")
    a("s_add_u32 s20, s20, s21")
    a(f"s_add_u32 s20, s20, {STOUT}")
    a(f"v_lshlrev_b32 v{T+8}, 5, v4")
    a("s_waitcnt lgkmcnt(0)")
    a("s_barrier")
    a("s_cmp_ge_u32 s3, 4")
    a("s_cbranch_scc1 " + a.endlabel)
    R = T + 12
    for w in range(9):
        a(f"ds_read_b32 v{R+w}, v{T+9} offset:{SCR+w*1024}")
    a("s_waitcnt lgkmcnt(0)")
    for st in ((0, 1), (2, 3), (4, 5), (6, 7), (0, 2), (4, 6), (0, 8), (0, 4)):
        a(f"v_add_f32 v{R+st[0]}, v{R+st[0]}, v{R+st[1]}")
    xg_reduce(a, "v_add_f32", R, T)
    a(f"buffer_store_dword v{R}, v{T+8}, s[4:7], s20 offen")


def unpack_add(a, dst, src):
    a(f"v_lshlrev_b32 v{src+2}, 16, v{src}")
    a(f"v_and_b32 v{src}, 0xffff0000, v{src}")
    a(f"v_lshlrev_b32 v{src+3}, 16, v{src+1}")
    a(f"v_and_b32 v{src+1}, 0xffff0000, v{src+1}")
    a(f"v_add_f32 v{dst}, v{dst}, v{src+2}")
    a(f"v_add_f32 v{dst+1}, v{dst+1}, v{src}")
    a(f"v_add_f32 v{dst+2}, v{dst+2}, v{src+3}")
    a(f"v_add_f32 v{dst+3}, v{dst+3}, v{src+1}")


def gen_p2(layer):
    name = f"p2l{layer}_kernel"
    XIN = L["X0"] if layer == 0 else L["X2"]
    OIN = L[f"O{layer}"]
    a = Asm(); a.endlabel = f"{name}_end"
    vm = Cnt(a, "vmcnt", 63); lg = Cnt(a, "lgkmcnt", 15)
    header(a, name, 256)
    ts = Stamps(a, name)
    ts(True); ts()
    a("s_load_dwordx2 s[4:5], s[0:1], 80")
    pq_decode(a)
    a("s_lshl_b32 s20, s3, 12")
    a("s_add_u32 s21, s15, s20")
    a(f"s_add_u32 s21, s21, {OIN}")
    a("s_mul_i32 s22, s14, 18432")
    a(f"s_add_u32 s22, s22, {L['WO']}")
    a("s_sub_u32 s22, s22, s59")
    a(f"s_add_u32 s23, s16, {XIN}")
    a("s_add_u32 s24, s23, 18432")
    a("s_mov_b32 m0, s20")
    a("s_waitcnt lgkmcnt(0)")
    a("s_add_u32 s4, s4, s59")
    a("s_addc_u32 s5, s5, 0")
    a("s_and_b32 s5, s5, 0xffff")
    a(f"s_mov_b32 s6, {WS_BYTES}")
    a("s_mov_b32 s7, 0x00020000")
    A = 16; B = 88; ACC = 8; RES = 120; T = 128
    for i in range(4):
        a(f"buffer_load_dwordx4 v3, s[4:7], s21 offen offset:{i*1024} lds"); vm.issue("o")

    def aload(ks):
        if ks and ks % 4 == 0:
            a("s_add_u32 s22, s22, 4096")
        a(f"buffer_load_dwordx4 {vr(A+4*ks,4)}, v3, s[4:7], s22 offen offset:{(ks%4)*1024}"); vm.issue(("a", ks))
    NA0 = int(OPT.get("p2na0", 2)); DA = int(OPT.get("p2da", 10))
    for ks in range(NA0):
        aload(ks)
    ts()
    vm.wait("o")
    ts()
    a("s_barrier")
    ts()
    NB = 4
    a(f"buffer_load_dwordx2 {vr(RES,2)}, v3, s[4:7], s23 offen"); vm.issue("r")
    a(f"buffer_load_dwordx2 {vr(RES+4,2)}, v3, s[4:7], s24 offen"); vm.issue("r")
    for ks in range(NA0, DA):
        aload(ks)

    def rd(ks):
        for n in range(2):
            a(f"ds_read_b128 {vr(B+8*(ks%NB)+4*n,4)}, v3 offset:{n*18432+ks*1024}"); lg.issue(("b", ks))
    for ks in range(NB - 1):
        rd(ks)
    for ks in range(18):
        if ks + DA < 18:
            aload(ks + DA)
        if ks + NB - 1 < 18:
            rd(ks + NB - 1)
        vm.wait(("a", ks))
        lg.wait(("b", ks))
        for n in range(2):
            acc = vr(ACC + 4 * n, 4)
            a(f"v_mfma_f32_16x16x32_bf16 {acc}, {vr(A+4*ks,4)}, {vr(B+8*(ks%NB)+4*n,4)}, {'0' if ks == 0 else acc}")
    a("s_lshl_b32 s25, s2, 6")
    a(f"s_add_u32 s25, s25, {L[f'FL{layer}']}")
    a("s_cmp_eq_u32 s3, 0")
    a(f"s_cselect_b32 s25, s25, {OOB}")
    a("v_lshlrev_b32 v6, 2, v4")
    a("v_mov_b32 v7, 0")
    a("buffer_store_dword v7, v6, s[4:7], s25 offen")
    vm.q = []
    ts()
    unpack_add(a, ACC, RES)
    unpack_add(a, ACC + 4, RES + 4)
    if ts.on:
        a.endlabel = f"{name}_ts"
    pq_epilogue(a, ACC, L[f"X1_{layer}"], L[f"ST1_{layer}"], 36864, 16)
    if ts.on:
        a.label(f"{name}_ts")
        ts()
        a("s_waitcnt vmcnt(0)")
    ts(); ts(True)
    ts.store()
    footer(a, name)
    return name, a.text(), dict(vgpr=128, sgpr=96, accum=128), dict(grid=256, block=576, lds=36864 + 9216)


def gen_p4(layer):
    name = f"p4l{layer}_kernel"
    a = Asm(); a.endlabel = f"{name}_end"
    vm = Cnt(a, "vmcnt", 63)
    header(a, name, 256)
    a("s_load_dwordx2 s[4:5], s[0:1], 80")
    a("s_load_dwordx4 s[24:27], s[0:1], 56")
    a("v_and_b32 v1, 63, v0")
    a("v_lshrrev_b32 v2, 6, v0")
    a("v_readfirstlane_b32 s3, v2")
    a("v_lshlrev_b32 v3, 4, v1")
    a("v_and_b32 v4, 15, v1")
    a("v_lshrrev_b32 v5, 4, v1")
    a("s_mul_i32 s12, s2, 9")
    a("s_add_u32 s12, s12, s3")
    a("s_lshl_b32 s12, s12, 10")
    a("s_and_b32 s13, s2, 1")
    a("s_mul_i32 s14, s13, 9")
    a("s_add_u32 s14, s14, s3")
    a("s_lshl_b32 s21, s14, 6")
    a(f"s_add_u32 s20, s12, {L['PART1'] if 'reuse' in OPT else L[f'PART{layer}']}")
    if "reuse" in OPT:
        a("s_sub_u32 s20, s20, s59")
    a(f"s_add_u32 s22, s12, {L[f'X1_{layer}']}")
    a("v_lshlrev_b32 v6, 3, v5")
    a("s_waitcnt lgkmcnt(0)")
    a("s_add_u32 s4, s4, s59")
    a("s_addc_u32 s5, s5, 0")
    a("s_and_b32 s5, s5, 0xffff")
    a(f"s_mov_b32 s6, {WS_BYTES}")
    a("s_mov_b32 s7, 0x00020000")
    srd(a, 28, 24, D * 2)
    P = 24; ACC = 8; BB = 16
    a(f"buffer_load_dwordx2 {vr(BB,2)}, v6, s[28:31], s21 offen"); vm.issue("r")
    a(f"buffer_load_dwordx2 {vr(BB+2,2)}, v6, s[28:31], s21 offen offset:32"); vm.issue("r")
    a(f"buffer_load_dwordx4 {vr(P,4)}, v3, s[4:7], s22 offen"); vm.issue(("p", 0))
    for s in range(8):
        a(f"buffer_load_dwordx4 {vr(P+4+4*s,4)}, v3, s[4:7], s20 offen"); vm.issue(("p", s + 1))
        a(f"s_add_u32 s20, s20, {XT}")
    a("v_mov_b32 v6, 0x00003f80")
    a("v_mov_b32 v7, 0x3f800000")
    vm.wait("r")
    for j in range(4):
        a(f"v_lshlrev_b32 v{ACC+2*j}, 16, v{BB+j}")
        a(f"v_and_b32 v{ACC+2*j+1}, 0xffff0000, v{BB+j}")
    for s in range(9):
        vm.wait(("p", s))
        for j in range(4):
            a(f"v_dot2c_f32_bf16 v{ACC+2*j}, v{P+4*s+j}, v6")
            a(f"v_dot2c_f32_bf16 v{ACC+2*j+1}, v{P+4*s+j}, v7")
    for j in range(4):
        a(f"v_cvt_pk_bf16_f32 v{16+j}, v{ACC+2*j}, v{ACC+2*j+1}")
    a("s_cmp_lg_u32 s59, 0")
    a(f"s_cbranch_scc1 {name}_fin")
    if True:
        a(f"s_add_u32 s18, s12, {L['X2']}")
        a("buffer_store_dwordx4 v[16:19], v3, s[4:7], s18 offen sc1")
        a(f"v_add_f32 v20, v{ACC}, v{ACC+1}")
        a(f"v_mul_f32 v21, v{ACC}, v{ACC}")
        a(f"v_fmac_f32 v21, v{ACC+1}, v{ACC+1}")
        for j in range(2, 8):
            a(f"v_add_f32 v20, v20, v{ACC+j}")
            a(f"v_fmac_f32 v21, v{ACC+j}, v{ACC+j}")
        a("v_lshlrev_b32 v22, 3, v0")
        a("ds_write_b64 v22, v[20:21]")
        a("s_waitcnt lgkmcnt(0)")
        a("s_barrier")
        a("s_cmp_lg_u32 s3, 0")
        a("s_cbranch_scc1 " + a.endlabel)
        for w in range(9):
            a(f"ds_read_b64 {vr(24+2*w,2)}, v22 offset:{w*512}")
        a("s_waitcnt lgkmcnt(0)")
        for st in ((0, 1), (2, 3), (4, 5), (6, 7), (0, 2), (4, 6), (0, 4), (0, 8)):
            for i in range(2):
                a(f"v_add_f32 v{24+2*st[0]+i}, v{24+2*st[0]+i}, v{24+2*st[1]+i}")
        a("v_mov_b32 v26, v24")
        a("v_mov_b32 v27, v25")
        a("v_permlane16_swap_b32 v24, v26")
        a("v_permlane16_swap_b32 v25, v27")
        a("v_add_f32 v24, v24, v26")
        a("v_add_f32 v25, v25, v27")
        a("v_lshlrev_b32 v22, 5, v4")
        a("v_lshrrev_b32 v5, 1, v5")
        a("v_lshl_add_u32 v22, v5, 3, v22")
        a("s_lshr_b32 s20, s2, 1")
        a("s_lshl_b32 s20, s20, 9")
        a("s_lshl_b32 s21, s13, 4")
        a("s_add_u32 s20, s20, s21")
        a(f"s_add_u32 s20, s20, {L['ST2']}")
        a("buffer_store_dwordx2 v[24:25], v22, s[4:7], s20 offen")
        a("s_endpgm")
        lds = 4608
        a.label(f"{name}_fin")
        srd(a, 8, 26, XT)
        a("v_mul_u32_u24 v6, 1152, v4")
        a("v_lshl_add_u32 v6, v5, 3, v6")
        a("s_lshr_b32 s20, s2, 1")
        a("s_mul_i32 s20, s20, 18432")
        a("s_add_u32 s20, s20, s21")
        a("buffer_store_dwordx2 v[16:17], v6, s[8:11], s20 offen")
        a("buffer_store_dwordx2 v[18:19], v6, s[8:11], s20 offen offset:32")
    footer(a, name)
    return name, a.text(), dict(vgpr=64, sgpr=64, accum=64), dict(grid=256, block=576, lds=lds)


def gen_p3(layer):
    name = f"p3l{layer}_kernel"
    XIN = L[f"X1_{layer}"]; STI = L[f"ST1_{layer}"]; PART = L[f"PART{layer}"]
    HX = L[f"HX{layer}"]; FL = L[f"FL{layer}"]
    if "reuse" in OPT:
        HX = L["HX1"]; PART = L["PART1"]
    a = Asm()
    vm = Cnt(a, "vmcnt", 63); lg = Cnt(a, "lgkmcnt", 15)
    header(a, name, 256)
    ts = Stamps(a, name)
    ts(True); ts()
    BUD = float(OPT.get("p3bud", 7))
    RA = 7
    N0 = int(OPT.get("p3n0", 14))
    PACE0 = int(OPT.get("p3pace0", 1)); PACE1 = int(OPT.get("p3pace1", 3))
    DFLAG = int(OPT.get("p3dflag", 45)); DPOLL = int(OPT.get("p3dpoll", 35)); DCHK = int(OPT.get("p3dchk", 40))
    K1, K3, RI, PV = 8, 10, 12, 14
    T = 16; AB = 32; AC1 = 68; HO = 164; OST = 236; BX = 244
    HP = 144
    a("s_load_dwordx2 s[4:5], s[0:1], 80")
    a("v_and_b32 v1, 63, v0")
    a("v_lshrrev_b32 v2, 6, v0")
    a("v_readfirstlane_b32 s3, v2")
    a("v_lshlrev_b32 v3, 4, v1")
    a("v_add_u32 v4, 0x10000, v3")
    a("v_add_u32 v5, 0x20000, v3")
    a("v_add_u32 v6, 18432, v3")
    a("v_and_b32 v7, 15, v1")
    a("v_lshlrev_b32 v7, 5, v7")
    a("v_lshrrev_b32 v2, 4, v1")
    a("v_lshl_add_u32 v7, v2, 3, v7")
    a("s_and_b32 s12, s2, 7")
    a("s_lshr_b32 s13, s2, 3")
    a("s_lshr_b32 s14, s12, 2")
    a("s_lshl_b32 s14, s14, 3")
    a("s_lshr_b32 s15, s13, 2")
    a("s_add_u32 s14, s14, s15")
    a("s_and_b32 s15, s12, 3")
    a("s_lshl_b32 s15, s15, 2")
    a("s_and_b32 s16, s13, 3")
    a("s_add_u32 s15, s15, s16")
    a("s_lshl_b32 s16, s14, 3")
    a("s_lshl_b32 s17, s3, 1")
    a("s_add_u32 s16, s16, s17")
    a("s_mul_i32 s17, s16, 18432")
    a(f"s_add_u32 s18, s17, {XIN}")
    a("s_mul_i32 s19, s3, 6144")
    a(f"s_mul_i32 s20, s15, {SLB}")
    a("s_add_u32 s20, s20, s19")
    a(f"s_add_u32 s20, s20, {L['W12']}")
    a("s_sub_u32 s20, s20, s59")
    a("s_lshl_b32 s21, s16, 9")
    a(f"s_add_u32 s21, s21, {STI}")
    a("s_lshl_b32 s22, s14, 4")
    a("s_add_u32 s22, s22, s15")
    a("s_lshl_b32 s22, s22, 2")
    a("s_add_u32 s22, s22, s3")
    a("s_xor_b32 s23, s22, 4")
    a("s_mul_i32 s24, s22, 18432")
    a(f"s_add_u32 s24, s24, {HX}")
    a("s_mul_i32 s25, s23, 18432")
    a(f"s_add_u32 s25, s25, {HX}")
    a("s_lshl_b32 s26, s22, 4")
    a(f"s_add_u32 s26, s26, {FL}")
    a("s_lshl_b32 s27, s23, 4")
    a(f"s_add_u32 s27, s27, {FL}")
    a("s_lshr_b32 s28, s15, 1")
    a(f"s_mul_i32 s28, s28, {XT}")
    a("s_add_u32 s28, s28, s17")
    a("s_and_b32 s29, s15, 1")
    a("s_mul_i32 s29, s29, 9216")
    a("s_add_u32 s28, s28, s29")
    a(f"s_add_u32 s28, s28, {PART}")
    a("s_mov_b32 s31, 0")
    if "reuse" in OPT:
        for r in (24, 25, 28):
            a(f"s_sub_u32 s{r}, s{r}, s59")
    a("s_waitcnt lgkmcnt(0)")
    a("s_add_u32 s4, s4, s59")
    a("s_addc_u32 s5, s5, 0")
    a("s_and_b32 s5, s5, 0xffff")
    a(f"s_mov_b32 s6, {WS_BYTES}")
    a("s_mov_b32 s7, 0x00020000")
    for n in range(2):
        a(f"buffer_load_dwordx2 {vr(T+2*n,2)}, v7, s[4:7], s21 offen offset:{n*512}"); vm.issue("st")

    U = []
    for k in range(19):
        for t in range(G0):
            for mh in range(2):
                U.append(("p1", t, k, mh))
    for t in range(G0, 9):
        for k in range(19):
            for mh in range(2):
                U.append(("p1", t, k, mh))
    for hk in range(KO):
        for dt in range(9):
            for mh in range(2):
                U.append(("p2", dt, hk, mh))
    for dt in range(9):
        for hk in range(KO, 18):
            for mh in range(2):
                U.append(("p2", dt, hk, mh))
    NU = len(U)
    assert NU == 666

    def mfma(i, n):
        kind, t, k, mh = U[i]
        if kind == "p1":
            acc = vr(AC1 + 16 * (t % 6) + (2 * mh + n) * 4, 4)
            b = ar((18 * n + k) * 4, 4) if k < 18 else vr(BX + 4 * n, 4)
        else:
            acc = ar(16 * t + (2 * mh + n) * 4, 4)
            b = vr(HO + (2 * k + n) * 4, 4) if k < 9 else ar(HP + (2 * (k - 9) + n) * 4, 4)
        a(f"v_mfma_f32_16x16x32_bf16 {acc}, {vr(AB+4*(i%9),4)}, {b}, {'0' if k == 0 else acc}")

    LQ = []

    def mk_w(c, i):
        def fn():
            if i == 0:
                a(f"s_add_u32 m0, s19, {(c % 6) * 24576}")
            if i == 4:
                a("s_add_u32 m0, m0, 4096")
                a("s_add_u32 s20, s20, 4096")
            if not ("p3nodma" in OPT and c >= 6):
                a(f"buffer_load_dwordx4 v3, s[4:7], s20 offen offset:{(i%4)*1024} lds"); vm.issue(("w", c))
            if i == 5:
                a(f"s_add_u32 s20, s20, {24576-4096}")
        return fn

    def mk_y(k, n):
        def fn():
            a(f"buffer_load_dwordx4 {ar((18*n+k)*4,4)}, {'v6' if n else 'v3'}, s[4:7], s18 offen offset:{(k%4)*1024}"); vm.issue(("y", k))
            if k % 4 == 3 and n == 1:
                a("s_add_u32 s18, s18, 4096")
        return fn
    for c in range(NCHUNK):
        for i in range(6):
            LQ.append((24 * c - RA - 0.5 + i * 0.01, c - 4 if c >= 6 else -1, 2 if i in (0, 5) else (3 if i == 4 else 1), mk_w(c, i), "w"))
    for k in range(18):
        for n in range(2):
            LQ.append((k * G0 * 2 - 0.1 + n * 0.01, -1, 1, mk_y(k, n), "y"))
    LQ.sort(key=lambda x: x[0])
    ny_left = [36]

    def lq_issue():
        it = LQ.pop(0)
        it[3]()
        if it[4] == "y":
            ny_left[0] -= 1
        return it[2]

    for _ in range(N0):
        lq_issue()
    ts()
    kk = math_sqrt(2.0 / PI)
    C1 = -2.0 * kk * LOG2E
    C3 = C1 * 0.044715
    a("v_mov_b32 v7, 0")
    vm.wait("st")
    for sw in ("v_permlane16_swap_b32", "v_permlane32_swap_b32"):
        for r in range(4):
            a(f"v_mov_b32 v{T+4+r}, v{T+r}")
        for r in range(4):
            a(f"{sw} v{T+r}, v{T+4+r}")
        for r in range(4):
            a(f"v_add_f32 v{T+r}, v{T+r}, v{T+4+r}")
    for n in range(2):
        m = T + 2 * n; r = T + 8 + n; t = T + 4 + n; bx = BX + 4 * n
        stats_finish(a, m, m + 1, r, T + 10 + n, t, True)
        a(f"v_rcp_f32 v{RI+n}, v{r}")
        a(f"v_mul_f32 v{K1+n}, {f32(C1)}, v{r}")
        a(f"v_mul_f32 v{K3+n}, v{r}, v{r}")
        a(f"v_mul_f32 v{K3+n}, v{K3+n}, v{r}")
        a(f"v_mul_f32 v{K3+n}, {f32(C3)}, v{K3+n}")
        a(f"v_cvt_pk_bf16_f32 v{t}, v{RI+n}, v{RI+n}")
        a(f"v_and_b32 v{t}, 0xffff0000, v{t}")
        a(f"v_sub_f32 v{t}, v{RI+n}, v{t}")
        a(f"v_cvt_pk_bf16_f32 v{bx}, v{RI+n}, v{t}")
        a(f"v_sub_f32 v{m}, 0, v{m}")
        a(f"v_cvt_pk_bf16_f32 v{bx+1}, v{m}, v{m}")
        a(f"v_and_b32 v{t}, 0xffff0000, v{bx+1}")
        a(f"v_sub_f32 v{t}, v{m}, v{t}")
        a(f"v_cvt_pk_bf16_f32 v{bx+2}, v{t}, v7")
        a(f"v_mov_b32 v{bx+3}, 0")

    EV = {}
    cur = [0]
    slow = []

    def ev(g, cost, fn):
        EV.setdefault(g, []).append((cost, fn))

    def mk(text):
        return lambda: a(text)

    def mk_hstore(q):
        def fn():
            if "p3nox" in OPT:
                hl_done.add(q)
                return
            if q % 4 == 0 and q:
                a("s_add_u32 s24, s24, 4096")
            a(f"buffer_store_dwordx4 {vr(HO+4*q,4)}, v3, s[4:7], s24 offen offset:{(q%4)*1024} sc1"); vm.issue(("hs", q))
            if q % 6 == 5:
                b = q // 6
                g = cur[0] + DFLAG
                ev(g, 3, lambda: flag_store(b))
                ev(g + DPOLL, 1, lambda: poll_issue(b))
                ev(g + DPOLL + DCHK, 4, lambda: poll_check(b))
        return fn

    def flag_store(b):
        a(f"v_mov_b32 v{PV}, {b+1}")
        vm.wait(("hs", 6 * b + 5))
        a("s_mov_b64 exec, 1")
        a(f"buffer_store_dword v{PV}, v7, s[4:7], s26 offen sc1"); vm.issue("fs")
        a("s_mov_b64 exec, -1")

    def poll_issue(b):
        a("s_mov_b64 exec, 1")
        a(f"buffer_load_dword v2, v7, s[4:7], s27 offen sc1"); vm.issue(("pl", b))
        a("s_mov_b64 exec, -1")

    def poll_check(b):
        vm.wait(("pl", b))
        a("v_readfirstlane_b32 s30, v2")
        a(f"s_cmp_gt_u32 s30, {b}")
        a.nf(f"s_cbranch_scc0 {name}_w{b}")
        a.label(f"{name}_r{b}", safe=False)
        slow.append(b)
        for i in range(6):
            ev(cur[0] + 1 + 2 * i, 1, mk_hload(6 * b + i))

    def mk_hload(q):
        def fn():
            if q % 4 == 0 and q:
                a("s_add_u32 s25, s25, 4096")
            a(f"buffer_load_dwordx4 {ar(HP+4*q,4)}, v3, s[4:7], s25 offen offset:{(q%4)*1024} sc1"); vm.issue(("hl", q))
            hl_done.add(q)
        return fn
    hl_done = set()

    SK = float(OPT.get("p3skew", 2.5))
    gel = []

    def add_gelu(t, ready):
        ac = AC1 + 16 * (t % 6)
        for v in range(16):
            n = v // 8; mh = (v // 4) % 2; i = v % 4
            x = ac + (2 * mh + n) * 4 + i; tm = T + v
            ops = [(1, f"v_mul_f32 v{tm}, v{x}, v{x}"), (1, f"v_fma_f32 v{tm}, v{tm}, v{K3+n}, v{K1+n}"), (1, f"v_mul_f32 v{tm}, v{tm}, v{x}"),
                   (2, f"v_exp_f32 v{tm}, v{tm}"), (1, f"v_fma_f32 v{tm}, v{tm}, v{RI+n}, v{RI+n}"), (2, f"v_rcp_f32 v{tm}, v{tm}"),
                   (1, f"v_mul_f32 v{x}, v{x}, v{tm}")]
            if "p3pk" in OPT:
                sel = "op_sel:[0,1,1] op_sel_hi:[1,1,1]" if n else "op_sel_hi:[1,0,0]"
                c = float(OPT["p3pk"])
                if v % 2 == 0:
                    X = vr(x, 2); TM = vr(tm, 2)
                    ops = [(c, f"v_pk_mul_f32 {TM}, {X}, {X}"), (c, f"v_pk_fma_f32 {TM}, {TM}, {vr(K3,2)}, {vr(K1,2)} {sel}"), (c, f"v_pk_mul_f32 {TM}, {TM}, {X}"),
                           (2, f"v_exp_f32 v{tm}, v{tm}"), None, (2, f"v_rcp_f32 v{tm}, v{tm}"), None]
                else:
                    X = vr(x - 1, 2); TM = vr(tm - 1, 2)
                    ops = [None, None, None, (2, f"v_exp_f32 v{tm}, v{tm}"), (c, f"v_pk_fma_f32 {TM}, {TM}, {vr(RI,2)}, {vr(RI,2)} {sel}"),
                           (2, f"v_rcp_f32 v{tm}, v{tm}"), (c, f"v_pk_mul_f32 {X}, {X}, {TM}")]
                for st, o in enumerate(ops):
                    if o is None:
                        continue
                    key = 16 * t + (v | 1) + st * SK + (0.3 if v % 2 else 0)
                    gel.append((key, ready, o[0], mk(o[1]), None))
                ops = []
            if "p3nogelu" in OPT:
                ops = []
            for st, (c, tx) in enumerate(ops):
                gel.append((16 * t + v + st * SK, ready, c, mk(tx), None))
            if v % 2 == 1:
                gel.append((16 * t + v + 6 * SK + 1.2, ready, 1, mk(f"v_cvt_pk_bf16_f32 v{HO+8*t+v//2}, v{x-1}, v{x}"), None))
            if v % 8 == 7:
                q = 2 * t + n
                gel.append((16 * t + v + 6 * SK + 2.4, ready, 1, mk_hstore(q), ("h", q)))
    last_idx = {}
    for i, u in enumerate(U):
        last_idx[u[:2]] = i
    for t in range(9):
        add_gelu(t, last_idx[("p1", t)] + 2)
    gel.sort(key=lambda x: x[0])
    VQ = [(g[1], g[2], g[3], g[4]) for g in gel]
    for dt in range(9):
        rdy = last_idx[("p2", dt)] + 2
        for n in range(2):
            o = OST + 4 * n
            for mh in range(2):
                for i in range(4):
                    VQ.append((rdy, 1, mk(f"v_accvgpr_read_b32 v{T+8*n+4*mh+i}, a{16*dt+(2*mh+n)*4+i}"), None))
            for e in range(4):
                VQ.append((rdy, 1, mk(f"v_cvt_pk_bf16_f32 v{o+e}, v{T+8*n+2*e}, v{T+8*n+2*e+1}"), None))

            def st(n=n, o=o, dt=dt):
                if dt % 4 == 0 and dt and n == 0:
                    a("s_add_u32 s28, s28, 4096")
                a(f"buffer_store_dwordx4 {vr(o,4)}, {'v6' if n else 'v3'}, s[4:7], s28 offen offset:{(dt%4)*1024} sc1"); vm.issue("po")
            VQ.append((rdy, 1, st, None))
    done_tags = set()

    def vq_pop():
        it = VQ.pop(0)
        assert it[0] - 2 < cur[0] + (1 if cur[0] == NU - 1 else 0), (it[0], cur[0])
        it[2]()
        if it[3]:
            done_tags.add(it[3])
        return it[1]

    def dsread(f):
        if "p3nolds" in OPT and f >= 9:
            return
        off = ((f // 24) % 6) * 24576 + (f % 24) * 1024
        base = "v3" if off < 65536 else ("v4" if off < 131072 else "v5")
        a(f"ds_read_b128 {vr(AB+4*(f%9),4)}, {base} offset:{off % 65536}"); lg.issue(("a", f))

    bar_done = [-1]

    def chunk_barrier(c):
        while LQ and LQ[0][0] <= 24 * c - RA:
            lq_issue()
        vm.wait(("w", c))
        a("s_barrier")
        bar_done[0] = c

    ts()
    chunk_barrier(0)
    ts()
    for f in range(RA):
        dsread(f)
    last_lq = -10
    forced = 0
    for i in range(NU):
        cur[0] = i
        kind, t, k, mh = U[i]
        if kind == "p1" and t == 0 and mh == 0 and k < 18:
            while LQ and LQ[0][0] <= i:
                lq_issue()
            vm.wait(("y", k))
        if kind == "p2":
            if k < 9:
                while ("h", 2 * k + 1) not in done_tags:
                    vq_pop(); forced += 1
            else:
                q = 2 * (k - 9) + 1
                while q not in hl_done:
                    g = min(EV)
                    for c, fn in EV.pop(g):
                        fn()
                    forced += 1000
                vm.wait(("hl", q))
        if kind == "p1" and k == 0 and t >= 6:
            while ("h", 2 * (t - 6) + 1) not in done_tags:
                vq_pop(); forced += 1
        if i % 3 == 0:
            lg.wait(("a", min(i + 2, NU - 1)))
        if ts.on and i in (38 * G0, 190, 266, 342, 396, 450, 504, 558, 612):
            ts(); lg.q = []
        mfma(i, 0)
        bud = BUD / 2
        for c, fn in EV.pop(i, []):
            fn(); bud -= c
        pace = PACE0 if ny_left[0] else PACE1
        if LQ and LQ[0][1] <= bar_done[0] and i - last_lq >= pace:
            bud -= lq_issue(); last_lq = i
        while VQ and VQ[0][0] <= i and bud >= VQ[0][1] - 0.5:
            bud -= vq_pop()
        mfma(i, 1)
        if "p3idle" in OPT:
            a(f"s_nop {OPT['p3idle']}")
        bud += BUD / 2 - 1 / 3
        if i + RA < NU:
            if (i + RA) % 24 == 0:
                chunk_barrier((i + RA) // 24); bud -= 2
            dsread(i + RA); bud -= 1
        while VQ and VQ[0][0] <= i and bud >= VQ[0][1] - 0.5:
            bud -= vq_pop()
    assert not EV, EV.keys()
    ts()
    while VQ:
        vq_pop()
    print(name, "forced:", forced, file=sys.stderr)
    ts()
    if ts.on:
        a("s_waitcnt vmcnt(0)")
    ts(); ts(True)
    ts.store()
    a("s_endpgm")
    for b in slow:
        a.label(f"{name}_w{b}")
        a("s_add_u32 s31, s31, 1")
        a("s_cmp_gt_u32 s31, 0x4000")
        a(f"s_cbranch_scc1 {name}_r{b}")
        a("s_sleep 2")
        a(f"buffer_load_dword v2, v7, s[4:7], s27 offen sc1")
        a("s_waitcnt vmcnt(0)")
        a("v_readfirstlane_b32 s30, v2")
        a(f"s_cmp_gt_u32 s30, {b}")
        a(f"s_cbranch_scc0 {name}_w{b}")
        a(f"s_branch {name}_r{b}")
    footer(a, name)
    return name, a.text(), dict(vgpr=512, sgpr=102, accum=256), dict(grid=256, block=256, lds=147456)


def main():
    ks = [gen_p0(), gen_p1(0), gen_p2(0), gen_p3(0), gen_p4(0)]
    allk = [ks[0]] + ks[1:] + [(k[0].replace("l0_", "l1_"), "", k[2], k[3]) for k in ks[1:]]
    seq = allk
    if "seq" in OPT:
        byname = {k[0][:-7]: k for k in allk}
        seq = [byname[n] for n in OPT["seq"].split("+")]
    ref = open(f"cdna_kernels/{NAME}.s.ref").read().split("\n")
    hdr = [ln for ln in ref if ln.startswith(";") and "@launch" not in ln and "Override launch" not in ln and "grid=ceil" not in ln]
    out = hdr[:]
    for name, _, _, g in seq:
        out.append(f"; @launch kernel={name} grid=({g['grid']},1,1) block=({g['block']},1,1) lds={g['lds']}")
    out.append('.amdgcn_target "amdgcn-amd-amdhsa--gfx950"')
    out.append(".text")
    for _, txt, _, _ in ks:
        out.append(txt)
    out.append("code_end:")
    out.append("    s_endpgm")
    out.append('.section .rodata,"a"')
    for name, _, kd, _ in allk:
        out.append(KD.format(name=name, **kd))
    path = sys.argv[1] if len(sys.argv) > 1 else f"cdna_kernels/{NAME}.s"
    open(path, "w").write("\n".join(out))
    json.dump(L, open("layout.json", "w"))
    print("written", path, "ws end", L["END"])


if __name__ == "__main__":
    main()
```

```python
import sys, json, math
from asmb import Asm, KD, vr, ar, sr
from gen import (OPT, NAME, S, D, F, XT, TILE, OOB, WS_BYTES, L, G0, KT, KO, NCHUNK, SLB, f32, Cnt, Stamps, srd,
                 xg_reduce, stats_finish, gen_p0, w12_roles)

LOG2E = math.log2(math.e)
EX = 147456
CQL = EX + 5 * 3072
CNT = 16384


def gen_main():
    name = "main_kernel"
    a = Asm()
    vm = Cnt(a, "vmcnt", 63); lg = Cnt(a, "lgkmcnt", 15)
    ts = Stamps(a, name)
    XIN = L["X0"]; STI = L["ST0"]; OUT = L["O0"]; X1 = L["X1_0"]; ST1 = L["ST1_0"]
    PART = L["PART0"]; HX = L["HX0"]; FL = L["FL0"]; LSTR = L["LSTR"]
    slowcode = []

    a.raw(f".globl {name}\n.p2align 8\n.type {name},@function\n{name}:")
    a("s_cmp_ge_u32 s2, 256")
    a(f"s_cbranch_scc1 {name}_end")
    ts(True); ts()
    a("s_load_dwordx2 s[4:5], s[0:1], 80")
    a("s_mov_b32 s59, 0")
    a("s_mov_b32 s57, 0")
    a("v_and_b32 v1, 63, v0")
    a("v_lshrrev_b32 v2, 6, v0")
    a("v_readfirstlane_b32 s3, v2")
    a("v_lshlrev_b32 v3, 4, v1")
    a("s_and_b32 s12, s2, 7")
    a("s_lshr_b32 s13, s2, 3")
    a("s_lshr_b32 s8, s12, 2")
    a("s_lshl_b32 s8, s8, 3")
    a("s_lshr_b32 s14, s13, 2")
    a("s_add_u32 s8, s8, s14")
    a("s_and_b32 s9, s12, 3")
    a("s_lshl_b32 s9, s9, 2")
    a("s_and_b32 s14, s13, 3")
    a("s_add_u32 s9, s9, s14")
    a("s_lshl_b32 s10, s8, 7")
    a(f"s_add_u32 s10, s10, {FL + CNT}")
    a("s_sub_u32 s11, s10, 128")
    a("s_cmp_eq_u32 s8, 0")
    a("s_cselect_b32 s11, s10, s11")
    a("s_sub_u32 s12, s10, s11")
    a("v_mov_b32 v254, s12")
    a("v_cmp_eq_u32 vcc, 0, v1")
    a("v_cndmask_b32 v254, 0, v254, vcc")

    if "stag" in OPT:
        a(f"s_and_b32 s12, s8, {OPT.get('stagm', 4)}")
        a("s_cmp_eq_u32 s12, 0")
        a(f"s_cbranch_scc1 {name}_nostag")
        for _ in range(int(OPT["stag"])):
            a("s_sleep 36")
        a.label(f"{name}_nostag")
    LATE = "nolate" not in OPT
    a("s_lshr_b32 s12, s9, 1")
    a("s_lshl_b32 s12, s12, 7")
    a(f"s_add_u32 s12, s12, {FL + CNT + 64 + 2048}")
    a("s_sub_u32 s12, s12, s11")
    a("v_writelane_b32 v254, s12, 2")
    a("s_waitcnt lgkmcnt(0)")
    a("s_and_b32 s5, s5, 0xffff")
    a(f"s_mov_b32 s6, {WS_BYTES}")
    a("s_mov_b32 s7, 0x00020000")
    if LATE:
        a("s_and_b32 s12, s8, 7")
        a("s_cmp_ge_u32 s12, 4")
        a("s_cselect_b32 s13, 1, 0")
        a("s_cmp_eq_u32 s8, 3")
        a("s_cselect_b32 s13, 1, s13")
        a("s_cmp_eq_u32 s13, 0")
        a(f"s_cbranch_scc1 {name}_early")
        a("s_load_dwordx4 s[24:27], s[0:1], 32")
        a("s_load_dwordx2 s[28:29], s[0:1], 48")
        a("s_sub_u32 s12, s8, 3")
        a("s_sub_u32 s13, s8, 7")
        a("s_cmp_ge_u32 s8, 8")
        a("s_cselect_b32 s12, s13, s12")
        a("s_lshl_b32 s31, s12, 4")
        a("s_add_u32 s31, s31, s9")
        a("v_and_b32 v4, 15, v1")
        a("v_lshrrev_b32 v5, 4, v1")
        a("v_lshrrev_b32 v6, 3, v1")
        a("v_and_b32 v7, 7, v1")
        a("v_lshrrev_b32 v11, 2, v1")
        a("v_lshlrev_b32 v11, 7, v11")
        a("v_and_b32 v12, 3, v1")
        a("v_lshl_add_u32 v11, v12, 3, v11")
        a("s_lshl_b32 s38, s3, 5")
        a("v_add_u32 v11, s38, v11")
        a("s_waitcnt lgkmcnt(0)")
        w12_roles(a, name, "s31", lambda: a(f"s_branch {name}_tiled"), lambda k: None, "nt")
        a.label(f"{name}_tiled")
        a("s_lshl_b32 s56, s56, 7")
        a(f"s_add_u32 s56, s56, {FL + CNT + 64 + 2048}")
        a("s_cmp_lg_u32 s3, 0")
        a(f"s_cselect_b32 s56, {OOB}, s56")
        a("v_mov_b32 v2, 1")
        a("v_mov_b32 v4, 0")
        a("s_waitcnt vmcnt(0)")
        a("s_barrier")
        a("s_mov_b64 exec, 1")
        a("buffer_atomic_add v2, v4, s[4:7], s56 offen")
        a("s_mov_b64 exec, -1")
        a.label(f"{name}_early")
    nsync = [0]

    def sync(target, prefetch=None, prev=False, wts=False):
        k = nsync[0]; nsync[0] += 1
        a("s_waitcnt vmcnt(0)")
        a("s_barrier")
        vm.q = []
        a("s_cmp_lg_u32 s3, 0")
        a(f"s_cbranch_scc1 {name}_sa{k}")
        a("v_mov_b32 v2, 1")
        a("s_mov_b64 exec, 1")
        a("buffer_atomic_add v2, v254, s[4:7], s11 offen")
        a("s_mov_b64 exec, -1")
        a.label(f"{name}_sa{k}")
        if prefetch:
            prefetch()
        a("s_cmp_lg_u32 s3, 0")
        a(f"s_cbranch_scc1 {name}_sb{k}")
        a(f"v_mov_b32 v2, {target}")
        if wts:
            a("s_cmp_eq_u32 s59, 0")
            a("s_cselect_b32 s58, 18, 0")
            a("v_writelane_b32 v2, s58, 2")
        a(f"s_mov_b64 exec, {3 if prev else (5 if wts else 1)}")
        PP = int(OPT.get("pp", 0))
        if PP:
            a("buffer_load_dword v252, v254, s[4:7], s11 offen sc1")
            a(f"s_sleep {PP}")
            a("buffer_load_dword v253, v254, s[4:7], s11 offen sc1")
        a.label(f"{name}_sp{k}")
        regs = ((255, 252), (252, 253), (253, 255)) if PP else ((252, 252),)
        for new, old in regs:
            if PP:
                a(f"s_sleep {PP}")
            a(f"buffer_load_dword v{new}, v254, s[4:7], s11 offen sc1")
            a(f"s_waitcnt vmcnt({2 if PP else 0})")
            a(f"v_cmp_gt_u32 vcc, v2, v{old}")
            a("s_nop 4")
            a(f"s_cbranch_vccz {name}_sq{k}")
        a("s_add_u32 s57, s57, 1")
        a("s_cmp_lt_u32 s57, 0x40000")
        a(f"s_cbranch_scc1 {name}_sp{k}")
        a.label(f"{name}_sq{k}")
        a("s_mov_b64 exec, -1")
        a(f"s_branch {name}_sc{k}")
        a.label(f"{name}_sb{k}")
        a("s_waitcnt vmcnt(0)")
        a.label(f"{name}_sc{k}")
        a("s_waitcnt lgkmcnt(0)")
        a("s_barrier")
        vm.q = []; lg.q = []

    ACC = 16; AB = 88
    RN = 168; RS = 176; CQN = 200; CQH = 220; CQS = 224
    MS = 228; MPA = 232; MPB = 236
    T0 = 200

    def p1_setup():
        a("v_and_b32 v4, 15, v1")
        a("v_lshrrev_b32 v5, 4, v1")
        a("s_lshl_b32 s16, s8, 3")
        a("s_lshl_b32 s17, s3, 1")
        a("s_add_u32 s17, s17, s16")
        a("s_mul_i32 s18, s17, 18432")
        a(f"s_add_u32 s18, s18, {XIN}")
        a("s_mul_i32 s22, s16, 18432")
        a(f"s_add_u32 s22, s22, {XIN - 18432}")
        a("s_cmp_eq_u32 s8, 0")
        a(f"s_cselect_b32 s22, {OOB}, s22")
        a("s_lshl_b32 s25, s17, 9")
        a(f"s_add_u32 s25, s25, {STI}")
        a("s_lshl_b32 s26, s16, 9")
        a(f"s_add_u32 s26, s26, {STI - 512}")
        a("s_cmp_eq_u32 s8, 0")
        a(f"s_cselect_b32 s26, {OOB}, s26")
        a("s_lshl_b32 s27, s3, 2")
        a("s_lshr_b32 s28, 0x1654, s27")
        a("s_and_b32 s28, s28, 15")
        a("s_lshr_b32 s27, 0x0632, s27")
        a("s_and_b32 s27, s27, 15")
        a("v_lshlrev_b32 v6, 5, v4")
        a("v_lshl_add_u32 v6, v5, 3, v6")
        a("v_lshlrev_b32 v7, 4, v5")
        a("v_lshlrev_b32 v8, 2, v4")
        a("v_add_u32 v15, 18432, v3")

    def p1_consts():
        a("v_min_u32 v12, 71, v0")
        a("v_lshrrev_b32 v13, 2, v12")
        a("v_lshlrev_b32 v13, 13, v13")
        a("v_and_b32 v12, 3, v12")
        a("v_lshl_add_u32 v13, v12, 8, v13")
        for i in range(4):
            a(f"v_mov_b32 v{ACC+i}, 0x3f803f80")
        a(f"ds_write_b128 v13, {vr(ACC,4)} offset:7168")
        a("v_mov_b32 v9, v3")
        a("s_lshl_b32 s32, s27, 10")
        a("v_add_u32 v10, s32, v3")
        a("s_lshl_b32 s32, s28, 10")
        a("v_add_u32 v11, s32, v3")
        a(f"v_mov_b32 v12, {f32(-1e30)}")
        a("v_lshlrev_b32 v13, 2, v5")
        a("v_sub_u32 v13, v4, v13")
        a("s_cmp_eq_u32 s17, 0")
        a("s_cselect_b32 s33, -100, -2")
        for i in range(4):
            a(f"v_subrev_u32 v14, {i}, v13")
            a("v_and_b32 v2, 1, v14")
            a("v_cmp_eq_u32 s[34:35], 0, v2")
            a("v_cmp_le_i32 vcc, 0, v14")
            a("s_and_b64 vcc, vcc, s[34:35]")
            a(f"v_cndmask_b32 v{MS+i}, v12, 0, vcc")
            a("v_cmp_ge_i32 vcc, -2, v14")
            a("s_and_b64 vcc, vcc, s[34:35]")
            a(f"v_cndmask_b32 v{MPB+i}, v12, 0, vcc")
            a("v_cmp_ge_i32 vcc, s33, v14")
            a("s_and_b64 vcc, vcc, s[34:35]")
            a(f"v_cndmask_b32 v{MPA+i}, v12, 0, vcc")
        a("s_mul_i32 s32, s3, 384")
        a(f"s_add_u32 s32, s32, {EX}")
        a("v_add_u32 v12, s32, v8")
        a("v_add_u32 v13, s32, v7")
        for i in range(1, 5):
            a(f"v_add_u32 v{239+i}, {4096*i}, v3")
        a("s_and_b32 s40, s9, 3")
        a("s_and_b32 s41, s40, 1")
        a("s_mul_i32 s42, s40, 9")
        a("s_add_u32 s43, s42, s41")
        a("s_lshl_b32 s46, s3, 1")
        a("s_add_u32 s43, s43, s46")
        a("s_add_u32 s46, s42, 8")
        a("s_cmp_eq_u32 s41, 1")
        a("s_cselect_b32 s46, s42, s46")
        a("s_mul_i32 s47, s43, 18432")
        a(f"s_add_u32 s47, s47, {L['WO']}")
        a("s_sub_u32 s47, s47, s59")
        a("s_add_u32 s48, s47, 18432")
        a("s_mul_i32 s49, s46, 18432")
        a(f"s_add_u32 s49, s49, {L['WO']}")
        a("s_sub_u32 s49, s49, s59")

    def wo_load(j, ks):
        def fn():
            vo = "v3" if ks < 4 else f"v{239 + ks // 4}"
            a(f"buffer_load_dwordx4 {ar((j*18+ks)*4,4)}, {vo}, s[4:7], s{47+j} offen offset:{(ks%4)*1024}"); vm.issue("wo")
        return fn

    def p1_stats_load():
        for n, so, off in ((0, "s25", 0), (1, "s25", 512), (2, "s26", 0)):
            a(f"buffer_load_dwordx2 {vr(T0+2*n,2)}, v6, s[4:7], {so} offen offset:{off} sc1"); vm.issue("st")

    def p1_stats_math():
        vm.wait("st")
        for sw in ("v_permlane16_swap_b32", "v_permlane32_swap_b32"):
            for r in range(6):
                a(f"v_mov_b32 v{T0+8+r}, v{T0+r}")
            for r in range(6):
                a(f"{sw} v{T0+r}, v{T0+8+r}")
            for r in range(6):
                a(f"v_add_f32 v{T0+r}, v{T0+r}, v{T0+8+r}")
        for n in range(3):
            b = T0 + 2 * n
            stats_finish(a, b, b + 1, RN + 2 * n, RN + 2 * n + 1, T0 + 8 + n, False)
            a(f"ds_write_b32 v12, v{RN+2*n} offset:{n*128}")
            a(f"ds_write_b32 v12, v{RN+2*n+1} offset:{n*128+64}")
        for n in range(3):
            a(f"ds_read_b128 {vr(RS+8*n,4)}, v13 offset:{n*128}")
            a(f"ds_read_b128 {vr(RS+8*n+4,4)}, v13 offset:{n*128+64}")

    def reads(ks):
        b = AB + 40 * (ks & 1)
        o = (ks % 8) * 8192
        r = [f"ds_read_b128 {vr(b+28,4)}, v9 offset:{o+7*1024}",
             f"ds_read_b128 {vr(b+32,4)}, v10 offset:{o}",
             f"ds_read_b128 {vr(b+36,4)}, v11 offset:{o}"]
        r += [f"ds_read_b128 {vr(b+4*fr,4)}, v9 offset:{o+fr*1024}" for fr in (0, 1, 2, 3, 6, 4, 5)]
        return r

    def mfmas(ks):
        b = AB + 40 * (ks & 1)
        r = []
        acc = vr(ACC + 64, 4); c = "0" if ks == 0 else acc
        r.append(f"v_mfma_f32_16x16x32_bf16 {acc}, {vr(b+32,4)}, {vr(b+28,4)}, {c}")
        acc = vr(ACC + 68, 4); c = "0" if ks == 0 else acc
        r.append(f"v_mfma_f32_16x16x32_bf16 {acc}, {vr(b+28,4)}, {vr(b+36,4)}, {c}")
        for slot, fr in enumerate((0, 1, 2, 3, 6, 4, 5, 6)):
            for n in range(2):
                acc = vr(ACC + 32 * n + 4 * slot, 4)
                x = ar(72 * n + 4 * ks, 4)
                w = vr(b + 4 * fr, 4)
                c = "0" if ks == 0 else acc
                if slot < 5:
                    r.append(f"v_mfma_f32_16x16x32_bf16 {acc}, {w}, {x}, {c}")
                else:
                    r.append(f"v_mfma_f32_16x16x32_bf16 {acc}, {x}, {w}, {c}")
        return r

    def xloads(ks):
        o = (ks % 4) * 1024
        return [[f"buffer_load_dwordx4 {ar(4*ks,4)}, v3, s[4:7], s18 offen offset:{o} sc1"],
                [f"buffer_load_dwordx4 {ar(72+4*ks,4)}, v15, s[4:7], s18 offen offset:{o} sc1"] + (["s_add_u32 s18, s18, 4096"] if ks % 4 == 3 else [])]

    def do_load(grp, ks):
        for t in grp:
            a(t)
        vm.issue(("k", ks))

    def p1_loop(loads, PF, CH):
        for t in reads(0):
            a(t)
        a("s_waitcnt lgkmcnt(0)")
        wo_early = [wo_load(2, ks) for ks in range(18)]
        for ks in range(18):
            m = mfmas(ks)
            nxt = ks + 1
            rd = []
            if not CH:
                vm.wait(("k", ks))
            if nxt < 18:
                if CH and nxt % CH == 0:
                    vm.wait(("k", min(nxt + CH - 1, 17)))
                    a("s_barrier")
                if nxt % 8 == 0:
                    a("v_add_u32 v9, 0x10000, v9")
                    a("v_add_u32 v10, 0x10000, v10")
                    a("v_add_u32 v11, 0x10000, v11")
                rd = reads(nxt)
            else:
                a("s_lshl_b32 s32, s27, 6")
                a(f"s_add_u32 s32, s32, {CQL}")
                a("v_add_u32 v12, s32, v7")
                a("s_lshl_b32 s33, s28, 6")
                a(f"s_add_u32 s33, s33, {CQL}")
                a("v_add_u32 v13, s33, v8")
                a("s_mov_b32 s34, 0x00010001")
                a("s_mov_b32 s35, 0x00010001")
            ld = loads(ks + PF) if ks + PF < 18 else []
            for i, t in enumerate(m):
                a(t)
                if i < len(rd):
                    a(rd[i])
                if i >= 10 and (i - 10) % 2 == 0:
                    if (i - 10) // 2 < len(ld):
                        do_load(ld[(i - 10) // 2], ks + PF)
                    elif ks + PF >= 18 and wo_early:
                        wo_early.pop(0)()
                if ks == 17 and i == 10:
                    a("s_mov_b64 exec, s[34:35]")
                    a(f"ds_write_b128 v12, {vr(ACC+64,4)}")
                    a("s_mov_b64 exec, 0xffff")
                    a(f"ds_write_b32 v13, v{ACC+68}")
                    a("s_mov_b64 exec, -1")
            a("s_waitcnt lgkmcnt(0)")
        while wo_early:
            wo_early.pop(0)()

    p1_setup()
    a(f"s_mul_i32 s20, s9, {18*7168}")
    a("s_lshl_b32 s21, s3, 11")
    a("s_add_u32 s20, s20, s21")
    a(f"s_add_u32 s20, s20, {L['WQ']}")
    a("s_sub_u32 s22, s22, 1024")
    a("s_mov_b32 s52, 7168")
    a("s_mov_b32 s44, 0xfffefffe")
    a("s_cmp_eq_u32 s3, 3")
    a("s_cselect_b32 s22, s22, s20")
    a("s_cselect_b32 s52, 1024, s52")
    a("s_cselect_b32 s44, s44, -1")
    a("s_mov_b32 s45, s44")
    a("s_mov_b32 s24, s21")
    p1_stats_load()

    def loads_a(ks):
        return [["s_mov_b32 m0, s24", "s_add_u32 s24, s24, 8192", "buffer_load_dwordx4 v3, s[4:7], s20 offen lds", "s_add_u32 s20, s20, 7168"],
                ["s_mov_b64 exec, s[44:45]", "buffer_load_dwordx4 v3, s[4:7], s22 offen offset:1024 lds", "s_mov_b64 exec, -1",
                 "s_add_u32 s22, s22, s52"]] + xloads(ks)
    for ks in range(2):
        for grp in loads_a(ks):
            do_load(grp, ks)
    p1_consts()
    for ks in range(2, 4):
        for grp in loads_a(ks):
            do_load(grp, ks)
    p1_stats_math()
    for grp in loads_a(4):
        do_load(grp, 4)
    vm.wait(("k", 1))
    a("s_waitcnt lgkmcnt(0)")
    a("s_barrier")
    ts()
    p1_loop(loads_a, 5, 2)

    a.label(f"{name}_epi")
    vm.q = ["wo"] * 18
    ts.n = 3
    ts()
    a("s_barrier")
    a(f"v_add_u32 v9, {CQL}, v7")
    a(f"v_add_u32 v10, {CQL}, v8")
    for i, fr in enumerate((0, 1, 2, 3, 6)):
        a(f"ds_read_b128 {vr(CQN+4*i,4)}, v9 offset:{fr*64}")
    a(f"ds_read_b128 {vr(CQH,4)}, v12")
    for i, fr in enumerate((4, 5, 6)):
        a(f"ds_read_b32 v{CQS+i}, v10 offset:{fr*64}")
    a(f"ds_read_b32 v{CQS+3}, v13")
    NBG = int(OPT.get("nbg", 30))
    wo_rest = [wo_load(j, ks) for ks in range(18) for j in range(2)]
    a.bg = wo_rest[:NBG]; wo_rest = wo_rest[NBG:]
    a.bg_every = int(OPT.get("bgevery", 11))
    KF = 88; QF = 112; VF = 128; ONE = 148; T = 152
    for i in range(4):
        a(f"v_mul_f32 v{ACC+64+i}, v{ACC+64+i}, v{RN+4}")
        a(f"v_mul_f32 v{ACC+68+i}, v{ACC+68+i}, v{RS+16+i}")
    for n in (1, 0):
        for j in range(5):
            for i in range(4):
                a(f"v_mul_f32 v{ACC+32*n+4*j+i}, v{ACC+32*n+4*j+i}, v{RN+2*n}")
        for j in range(5, 8):
            for i in range(4):
                a(f"v_mul_f32 v{ACC+32*n+4*j+i}, v{ACC+32*n+4*j+i}, v{RS+8*n+i}")

    def corr_n(acc, n, cq):
        for i in range(4):
            a(f"v_fma_f32 v{acc+i}, -v{RN+2*n+1}, v{cq+i}, v{acc+i}")

    def corr_s(acc, n, cq):
        for i in range(4):
            a(f"v_fma_f32 v{acc+i}, -v{RS+8*n+4+i}, v{cq}, v{acc+i}")

    def pack2(dst, acc):
        a(f"v_cvt_pk_bf16_f32 v{dst}, v{acc}, v{acc+1}")
        a(f"v_cvt_pk_bf16_f32 v{dst+1}, v{acc+2}, v{acc+3}")

    a("v_cmp_eq_u32 s[36:37], 0, v5")
    a("v_cmp_eq_u32 s[38:39], 1, v5")
    a("v_lshlrev_b32 v12, 3, v1")
    a("s_mul_i32 s32, s3, 3072")
    a(f"s_add_u32 s33, s32, {EX}")
    a("v_add_u32 v13, s33, v12")
    a("s_lshl_b32 s32, s3, 9")
    a(f"s_add_u32 s32, s32, {EX}")
    a("s_cmp_eq_u32 s3, 3")
    a(f"s_cselect_b32 s32, {EX+4*3072}, s32")
    a("v_add_u32 v14, s32, v12")
    a("s_waitcnt lgkmcnt(0)")

    def conv_tile(n):
        ac = ACC + 32 * n
        tl = n + 1
        for i in range(5):
            corr_n(ac + 4 * i, n, CQN + 4 * i)
        for h in range(2):
            pack2(QF + (2 * n + h) * 4, ac + 4 * h)
            pack2(KF + (2 * tl + h) * 4, ac + 8 + 4 * h)
        pack2(T + 8 + 2 * n, ac + 16)
        for h in range(2):
            a(f"v_mov_b32 v{KF+(2*tl+h)*4+2}, v{T+8+2*n+1}")
            a(f"v_cndmask_b32 v{QF+(2*n+h)*4+2}, 0, v{T+8+2*n}, s[{36+2*h}:{37+2*h}]")
        for h in range(3):
            corr_s(ac + 20 + 4 * h, n, CQS + h)
            pack2(VF + 6 * h + 2 * tl, ac + 20 + 4 * h)

    corr_n(ACC + 64, 2, CQH)
    corr_s(ACC + 68, 2, CQS + 3)
    pack2(T + 12, ACC + 64)
    pack2(T + 14, ACC + 68)
    a(f"ds_write_b64 v14, {vr(T+12,2)}")
    a(f"ds_write_b64 v14, {vr(T+14,2)} offset:1536")
    conv_tile(1)
    a(f"ds_write_b64 v13, {vr(KF+16,2)} offset:{3072}")
    a(f"ds_write_b64 v13, {vr(KF+20,2)} offset:{3072+512}")
    a(f"ds_write_b64 v13, {vr(T+10,2)} offset:{3072+1024}")
    for h in range(3):
        a(f"ds_write_b64 v13, {vr(VF+6*h+4,2)} offset:{3072+1536+512*h}")
    conv_tile(0)
    for i in range(6):
        a(f"v_mov_b32 v{KF+4*i+3}, 0")
    for i in range(4):
        a(f"v_mov_b32 v{QF+4*i+3}, 0")
        a(f"v_mov_b32 v{ONE+i}, 0x3f803f80")
    a("s_waitcnt lgkmcnt(0)")
    a("s_barrier")
    a(f"ds_read_b64 {vr(KF,2)}, v13")
    a(f"ds_read_b64 {vr(KF+4,2)}, v13 offset:512")
    a(f"ds_read_b32 v{KF+2}, v13 offset:{1024+4}")
    a(f"ds_read_b32 v{KF+6}, v13 offset:{1024+4}")
    for h in range(3):
        a(f"ds_read_b64 {vr(VF+6*h,2)}, v13 offset:{1536+512*h}")
    SB = 16; PB = 48; MX = 64; OB = 168; OO = 72
    jobs = [(1, 0), (1, 1), (0, 0), (0, 1)]
    cs = (18 ** -0.5) * LOG2E
    a(f"s_mov_b32 s50, {f32(cs)}")
    for j, (n, h) in enumerate(jobs):
        if j == 2:
            a("s_waitcnt lgkmcnt(0)")
        q = vr(QF + (2 * n + h) * 4, 4)
        mp = MPA if n == 0 else MPB
        a(f"v_mfma_f32_16x16x32_bf16 {vr(SB+8*j,4)}, {vr(KF+(2*n+h)*4,4)}, {q}, {vr(mp,4)}")
        a(f"v_mfma_f32_16x16x32_bf16 {vr(SB+8*j+4,4)}, {vr(KF+(2*(n+1)+h)*4,4)}, {q}, {vr(MS,4)}")
    a("s_mul_i32 s32, s17, 18432")
    a("s_lshl_b32 s33, s9, 10")
    a("s_add_u32 s33, s33, s32")
    a(f"s_add_u32 s33, s33, {OUT}")
    a("s_add_u32 s34, s33, 18432")
    a("s_lshr_b32 s35, s9, 3")
    a("s_lshl_b32 s35, s35, 10")
    a("s_and_b32 s36, s9, 3")
    a("s_lshl_b32 s36, s36, 8")
    a("s_add_u32 s35, s35, s36")
    a("s_lshr_b32 s36, s9, 2")
    a("s_and_b32 s36, s36, 1")
    a("s_lshl_b32 s36, s36, 3")
    a("s_add_u32 s35, s35, s36")
    a("s_add_u32 s35, s35, s32")
    a(f"s_add_u32 s35, s35, {OUT + 16*1024}")
    a("s_add_u32 s36, s35, 18432")
    for j in range(4):
        s = SB + 8 * j; m = MX + 2 * j
        a(f"v_max3_f32 v{m}, v{s}, v{s+1}, v{s+2}")
        a(f"v_max3_f32 v{m+1}, v{s+3}, v{s+4}, v{s+5}")
        a(f"v_max3_f32 v{m}, v{m}, v{s+6}, v{s+7}")
        a(f"v_max_f32 v{m}, v{m}, v{m+1}")
    for sw in ("v_permlane16_swap_b32", "v_permlane32_swap_b32"):
        for j in range(4):
            a(f"v_mov_b32 v{MX+2*j+1}, v{MX+2*j}")
        for j in range(4):
            a(f"{sw} v{MX+2*j}, v{MX+2*j+1}")
        for j in range(4):
            a(f"v_max_f32 v{MX+2*j}, v{MX+2*j}, v{MX+2*j+1}")
    for j in range(4):
        a(f"v_mul_f32 v{MX+2*j}, s50, v{MX+2*j}")
    for j, (n, h) in enumerate(jobs):
        s = SB + 8 * j
        for i in range(8):
            a(f"v_fma_f32 v{s+i}, v{s+i}, s50, -v{MX+2*j}")
        for i in range(8):
            a(f"v_exp_f32 v{s+i}, v{s+i}")
        for i in range(4):
            a(f"v_cvt_pk_bf16_f32 v{PB+4*j+i}, v{s+2*i}, v{s+2*i+1}")
        p = vr(PB + 4 * j, 4)
        a(f"v_mfma_f32_16x16x32_bf16 {vr(OB+12*j+8,4)}, {vr(ONE,4)}, {p}, 0")
        a(f"v_mfma_f32_16x16x32_bf16 {vr(OB+12*j,4)}, {vr(VF+6*h+2*n,4)}, {p}, 0")
        a(f"v_mfma_f32_16x16x32_bf16 {vr(OB+12*j+4,4)}, {vr(VF+12+2*n,4)}, {p}, 0")
    wo_rest = a.bg + wo_rest
    a.bg = []
    a("v_lshlrev_b32 v12, 4, v4")
    a("v_mov_b32 v13, 0x40000000")
    a("v_cmp_eq_u32 vcc, 2, v5")
    a("v_cndmask_b32 v12, v13, v12, vcc")
    for j, (n, h) in enumerate(jobs):
        o = OB + 12 * j
        a(f"v_rcp_f32 v{o+8}, v{o+8}")
        for i in range(4):
            a(f"v_mul_f32 v{o+i}, v{o+i}, v{o+8}")
        a(f"v_mul_f32 v{o+4+2*h}, v{o+4+2*h}, v{o+8}")
        a(f"v_mul_f32 v{o+5+2*h}, v{o+5+2*h}, v{o+8}")
        a(f"v_cvt_pk_bf16_f32 v{OO+4*n+2*h}, v{o}, v{o+1}")
        a(f"v_cvt_pk_bf16_f32 v{OO+4*n+2*h+1}, v{o+2}, v{o+3}")
        a(f"v_cvt_pk_bf16_f32 v{OO+8+2*n+h}, v{o+4+2*h}, v{o+5+2*h}")
        if h == 1:
            a(f"buffer_store_dwordx4 {vr(OO+4*n,4)}, v3, s[4:7], s{33+n} offen sc1")
            a(f"buffer_store_dwordx2 {vr(OO+8+2*n,2)}, v12, s[4:7], s{35+n} offen sc1")
    ts()

    OL = 98304
    PA = 16; PBB = 40; RES = 88
    NPRE = int(OPT.get("npre", 4))

    CF = int(OPT.get("cf", 24)); NS = 144 // CF; PW = CF // 4; NCH = (666 + CF - 1) // CF
    LASTB = ((PW - 1) // 4) * 4096
    NPRE = NPRE * 24 // CF

    def mk_w(c, i):
        def fn():
            if i == 0:
                a(f"s_add_u32 m0, s54, {(c % NS) * CF * 1024}")
                a(f"s_add_u32 s55, s55, {CF*1024-LASTB}")
            elif i % 4 == 0:
                a("s_add_u32 m0, m0, 4096")
                a("s_add_u32 s55, s55, 4096")
            if not ("nodma" in OPT and c >= 6):
                a(f"buffer_load_dwordx4 v3, s[4:7], s55 offen offset:{(i%4)*1024} {OPT.get('wsc', 'sc1')} lds"); vm.issue(("w", c))
        return fn
    WPRE = [mk_w(c, i) for c in range(NPRE) for i in range(PW)]
    NW2 = int(OPT.get("nw2", 18))

    def p2_prefetch():
        for fn in wo_rest:
            fn()
        a(f"s_mul_i32 s54, s3, {PW*1024}")
        a(f"s_mul_i32 s55, s9, {SLB}")
        a("s_add_u32 s55, s55, s54")
        a(f"s_add_u32 s55, s55, {L['W12'] - (CF*1024-LASTB)}")
        a("s_sub_u32 s55, s55, s59")
        a("s_lshr_b32 s12, s9, 2")
        a("s_lshl_b32 s13, s8, 3")
        a("s_lshl_b32 s14, s12, 1")
        a("s_add_u32 s13, s13, s14")
        a("s_mul_i32 s15, s13, 18432")
        a("s_lshr_b32 s16, s43, 1")
        a("s_lshl_b32 s16, s16, 10")
        a("s_add_u32 s16, s16, s15")
        a("s_lshr_b32 s17, s46, 1")
        a("s_lshl_b32 s17, s17, 10")
        a("s_lshl_b32 s18, s41, 3")
        a("s_add_u32 s17, s17, s18")
        a("s_add_u32 s17, s17, s15")
        a("s_and_b32 s18, s3, 1")
        a("s_mul_i32 s18, s18, 18432")
        a("s_add_u32 s17, s17, s18")
        a(f"s_add_u32 s19, s16, {XIN}")
        a(f"s_add_u32 s20, s17, {XIN}")
        a(f"buffer_load_dwordx4 {vr(RES,4)}, v3, s[4:7], s19 offen sc1")
        a(f"buffer_load_dwordx4 {vr(RES+4,4)}, v15, s[4:7], s19 offen sc1")
        a(f"buffer_load_dwordx2 {vr(RES+8,2)}, v3, s[4:7], s20 offen sc1")
        a("s_mul_i32 s21, s3, 9216")
        a("s_add_u32 s22, s15, s21")
        a(f"s_add_u32 s22, s22, {OUT}")
        a(f"s_add_u32 s21, s21, {OL}")
        a(f"v_add_u32 v9, {OL}, v3")
        a("v_add_u32 v10, s18, v9")
    sync(16, p2_prefetch, wts=LATE)
    ts()
    a("s_mov_b32 m0, s21")
    for i in range(9):
        a(f"buffer_load_dwordx4 v3, s[4:7], s22 offen offset:{(i%3)*1024} sc1 lds")
        if i % 3 == 2 and i < 8:
            a("s_add_u32 s22, s22, 3072")
            a("s_add_u32 m0, m0, 3072")
    for n in range(2):
        for mh in range(2):
            ac = PA + (2 * mh + n) * 4; r = RES + 4 * n + 2 * mh
            a(f"v_lshlrev_b32 v{ac}, 16, v{r}")
            a(f"v_and_b32 v{ac+1}, 0xffff0000, v{r}")
            a(f"v_lshlrev_b32 v{ac+2}, 16, v{r+1}")
            a(f"v_and_b32 v{ac+3}, 0xffff0000, v{r+1}")
    a(f"v_lshlrev_b32 v{PA+16}, 16, v{RES+8}")
    a(f"v_and_b32 v{PA+17}, 0xffff0000, v{RES+8}")
    a(f"v_lshlrev_b32 v{PA+18}, 16, v{RES+9}")
    a(f"v_and_b32 v{PA+19}, 0xffff0000, v{RES+9}")
    a(f"s_add_u32 s19, s16, {X1}")
    a(f"s_add_u32 s20, s17, {X1}")
    a("s_cmp_ge_u32 s3, 2")
    a(f"s_cselect_b32 s20, {OOB}, s20")
    a("s_cmp_eq_u32 s3, 0")
    a("s_cselect_b32 s23, 1.0, 0")
    a("s_cmp_eq_u32 s3, 1")
    a("s_cselect_b32 s24, 1.0, 0")
    a("s_lshl_b32 s25, s3, 10")
    a(f"s_add_u32 s25, s25, {EX}")
    a("v_add_u32 v11, s25, v3")
    a("s_lshl_b32 s25, s3, 2")
    a(f"s_add_u32 s25, s25, {EX}")
    a("v_add_u32 v12, s25, v3")
    a("s_lshl_b32 s25, s13, 9")
    a("s_lshl_b32 s26, s40, 3")
    a("s_add_u32 s25, s25, s26")
    a("s_lshr_b32 s26, s3, 1")
    a("s_lshl_b32 s26, s26, 9")
    a("s_add_u32 s25, s25, s26")
    a("s_and_b32 s26, s3, 1")
    a("s_lshl_b32 s26, s26, 2")
    a("s_add_u32 s25, s25, s26")
    a(f"s_add_u32 s25, s25, {ST1}")
    a("v_lshlrev_b32 v13, 5, v4")
    a("s_waitcnt vmcnt(0)")
    a("s_barrier")
    NB = 4

    def rd2(ks):
        b = PBB + 12 * (ks % NB)
        a(f"ds_read_b128 {vr(b,4)}, v9 offset:{ks*1024}"); lg.issue(("b", ks))
        a(f"ds_read_b128 {vr(b+4,4)}, v9 offset:{18432+ks*1024}"); lg.issue(("b", ks))
        a(f"ds_read_b128 {vr(b+8,4)}, v10 offset:{ks*1024}"); lg.issue(("b", ks))
    for ks in range(NB - 1):
        rd2(ks)
    for ks in range(18):
        if ks + NB - 1 < 18:
            rd2(ks + NB - 1)
        lg.wait(("b", ks))
        b = PBB + 12 * (ks % NB)
        for mh in range(2):
            for n in range(2):
                acc = vr(PA + (2 * mh + n) * 4, 4)
                a(f"v_mfma_f32_16x16x32_bf16 {acc}, {ar((mh*18+ks)*4,4)}, {vr(b+4*n,4)}, {acc}")
        acc = vr(PA + 16, 4)
        a(f"v_mfma_f32_16x16x32_bf16 {acc}, {ar((36+ks)*4,4)}, {vr(b+8,4)}, {acc}")
        for _ in range((NW2 * (ks + 1)) // 18 - (NW2 * ks) // 18):
            WPRE.pop(0)()
    O2 = 100
    for n in range(2):
        for mh in range(2):
            ac = PA + (2 * mh + n) * 4
            a(f"v_cvt_pk_bf16_f32 v{O2+4*n+2*mh}, v{ac}, v{ac+1}")
            a(f"v_cvt_pk_bf16_f32 v{O2+4*n+2*mh+1}, v{ac+2}, v{ac+3}")
        a(f"buffer_store_dwordx4 {vr(O2+4*n,4)}, {'v15' if n else 'v3'}, s[4:7], s19 offen sc1")
    a(f"v_cvt_pk_bf16_f32 v{O2+8}, v{PA+16}, v{PA+17}")
    a(f"v_cvt_pk_bf16_f32 v{O2+9}, v{PA+18}, v{PA+19}")
    a(f"buffer_store_dwordx2 {vr(O2+8,2)}, v3, s[4:7], s20 offen sc1")
    SS = 112

    def sumsq(dst, regs):
        a(f"v_add_f32 v{dst}, v{regs[0]}, v{regs[1]}")
        a(f"v_mul_f32 v{dst+1}, v{regs[0]}, v{regs[0]}")
        a(f"v_fmac_f32 v{dst+1}, v{regs[1]}, v{regs[1]}")
        for r in regs[2:]:
            a(f"v_add_f32 v{dst}, v{dst}, v{r}")
            a(f"v_fmac_f32 v{dst+1}, v{r}, v{r}")
    for n in range(2):
        sumsq(SS + 2 * n, [PA + (2 * mh + n) * 4 + i for mh in range(2) for i in range(4)])
    sumsq(SS + 4, [PA + 16 + i for i in range(4)])
    for n in range(2):
        a(f"v_fmac_f32 v{SS+2*n}, s{23+n}, v{SS+4}")
        a(f"v_fmac_f32 v{SS+2*n+1}, s{23+n}, v{SS+5}")
    a(f"ds_write_b128 v11, {vr(SS,4)}")
    a("s_waitcnt lgkmcnt(0)")
    a("s_barrier")
    for w in range(4):
        a(f"ds_read_b32 v{SS+8+w}, v12 offset:{w*1024}")
    a("s_waitcnt lgkmcnt(0)")
    a(f"v_add_f32 v{SS+8}, v{SS+8}, v{SS+9}")
    a(f"v_add_f32 v{SS+10}, v{SS+10}, v{SS+11}")
    a(f"v_add_f32 v{SS+8}, v{SS+8}, v{SS+10}")
    xg_reduce(a, "v_add_f32", SS + 8, SS + 9)
    a(f"buffer_store_dword v{SS+8}, v13, s[4:7], s25 offen sc1")
    ts()

    BUD = float(OPT.get("p3bud", 7))
    NAB = int(OPT.get("nab", 13)); RA = NAB - 2; NSL = 6 if NAB <= 9 else 5
    WE = int(OPT.get("we", 3))
    N0 = int(OPT.get("p3n0", 12))
    PACE0 = int(OPT.get("p3pace0", 1)); PACE1 = int(OPT.get("p3pace1", 3))
    DFLAG = int(OPT.get("p3dflag", 45)); DPOLL = int(OPT.get("p3dpoll", 35)); DCHK = int(OPT.get("p3dchk", 40))
    K1, K3, RI, PV = 8, 10, 12, 14
    T = 16; AB3 = 32; AC1 = 164 - 16 * NSL; HO = 164; OST = 236; BX = 244
    assert AB3 + 4 * NAB <= AC1
    HP = 144

    def p3_prefetch():
        while WPRE:
            WPRE.pop(0)()
        a("v_add_u32 v4, 0x10000, v3")
        a("v_add_u32 v5, 0x20000, v3")
        a("v_mov_b32 v7, v6")
        a("v_add_u32 v6, 18432, v3")
        a("s_lshl_b32 s16, s8, 3")
        a("s_lshl_b32 s17, s3, 1")
        a("s_add_u32 s16, s16, s17")
        a("s_mul_i32 s17, s16, 18432")
        a(f"s_add_u32 s18, s17, {X1}")
        a("s_lshl_b32 s21, s16, 9")
        a(f"s_add_u32 s21, s21, {ST1}")
        a("s_lshl_b32 s22, s8, 4")
        a("s_add_u32 s22, s22, s9")
        a("s_lshl_b32 s22, s22, 2")
        a("s_add_u32 s22, s22, s3")
        a("s_xor_b32 s23, s22, 4")
        a("s_mul_i32 s24, s22, 18432")
        a(f"s_add_u32 s24, s24, {HX}")
        a("s_mul_i32 s25, s23, 18432")
        a(f"s_add_u32 s25, s25, {HX}")
        a("s_lshl_b32 s26, s22, 4")
        a(f"s_add_u32 s26, s26, {FL}")
        a("s_lshl_b32 s27, s23, 4")
        a(f"s_add_u32 s27, s27, {FL}")
        a("s_lshr_b32 s28, s9, 1")
        a(f"s_mul_i32 s28, s28, {XT}")
        a("s_add_u32 s28, s28, s17")
        a("s_and_b32 s29, s9, 1")
        a("s_mul_i32 s29, s29, 9216")
        a("s_add_u32 s28, s28, s29")
        a(f"s_add_u32 s28, s28, {PART}")
        a("s_lshl_b32 s50, s3, 11")
        a(f"s_mul_i32 s51, s9, {18*7168}")
        a("s_add_u32 s51, s51, s50")
        a(f"s_add_u32 s51, s51, {L['WQ']}")
        a("s_cmp_lg_u32 s59, 0")
        a(f"s_cselect_b32 s51, {OOB}, s51")
        a("s_cmp_eq_u32 s3, 3")
        a("s_cselect_b32 s56, 0, 1024")
        a("s_add_u32 s52, s51, s56")
        a("s_add_u32 s53, s50, s56")
    sync(32, p3_prefetch)
    ts()
    for n in range(2):
        a(f"buffer_load_dwordx2 {vr(T+2*n,2)}, v7, s[4:7], s21 offen offset:{n*512} sc1"); vm.issue("st")

    U = []
    for k in range(19):
        for t in range(G0):
            for mh in range(2):
                U.append(("p1", t, k, mh))
    for t in range(G0, 9):
        for k in range(19):
            for mh in range(2):
                U.append(("p1", t, k, mh))
    for hk in range(KO):
        for dt in range(9):
            for mh in range(2):
                U.append(("p2", dt, hk, mh))
    for dt in range(9):
        for hk in range(KO, 18):
            for mh in range(2):
                U.append(("p2", dt, hk, mh))
    NU = len(U)

    def mfma3(i, n):
        kind, t, k, mh = U[i]
        if kind == "p1":
            acc = vr(AC1 + 16 * (t % NSL) + (2 * mh + n) * 4, 4)
            b = ar((18 * n + k) * 4, 4) if k < 18 else vr(BX + 4 * n, 4)
        else:
            acc = ar(16 * t + (2 * mh + n) * 4, 4)
            b = vr(HO + (2 * k + n) * 4, 4) if k < 9 else ar(HP + (2 * (k - 9) + n) * 4, 4)
        a(f"v_mfma_f32_16x16x32_bf16 {acc}, {vr(AB3+4*(i%NAB),4)}, {b}, {'0' if k == 0 else acc}")

    def mk_y(k, n):
        def fn():
            if k % 4 == 0 and k and n == 0:
                a("s_add_u32 s18, s18, 4096")
            a(f"buffer_load_dwordx4 {ar((18*n+k)*4,4)}, {'v6' if n else 'v3'}, s[4:7], s18 offen offset:{(k%4)*1024} sc1"); vm.issue(("y", k))
        return fn
    LQ = []
    for c in range(NPRE, NCH):
        for i in range(PW):
            LQ.append((CF * c - RA - 0.5 + i * 0.01, c - (NS - 2) if c >= NS else -1, 1, mk_w(c, i), "w"))
    for k in range(18):
        for n in range(2):
            LQ.append((k * G0 * 2 - 0.1 + n * 0.01, -1, 1, mk_y(k, n), "y"))
    def mk_q(slot, i):
        ks = 3 * slot + i // 2; e = i % 2

        def fn():
            a(f"s_add_u32 m0, s{50 if e == 0 else 53}, {ks*8192}")
            a(f"s_add_u32 s56, s{51 if e == 0 else 52}, {ks*7168}")
            a("buffer_load_dwordx4 v3, s[4:7], s56 offen lds"); vm.issue("wq")
        return fn
    assert CF == 24
    qslots = []
    for c in range(NCH, NCH + 4):
        qslots.append(c % NS)
        for i in range(6):
            LQ.append((1000 + c + i * 0.01, c - (NS - 2), 1, mk_q(c % NS, i), "q"))
    LQ.sort(key=lambda x: x[0])
    ny_left = [36]

    def lq_issue():
        it = LQ.pop(0)
        it[3]()
        if it[4] == "y":
            ny_left[0] -= 1
        return it[2]

    for _ in range(N0):
        lq_issue()

    def dsread(f):
        off = (f % 144) * 1024
        base = "v3" if off < 65536 else ("v4" if off < 131072 else "v5")
        a(f"ds_read_b128 {vr(AB3+4*(f%NAB),4)}, {base} offset:{off % 65536}"); lg.issue(("a", f))
    for f in range(RA):
        dsread(f)

    kk = math.sqrt(2.0 / math.pi)
    C1 = -2.0 * kk * LOG2E
    C3 = C1 * 0.044715
    EV = {}
    cur = [0]

    def ev(g, cost, fn):
        EV.setdefault(g, []).append((cost, fn))

    def mk(text):
        return lambda: a(text)

    class Rec:
        def __init__(self): self.l = []
        def __call__(self, t): self.l.append(t)
    rec = Rec()
    rec("v_mov_b32 v7, 0")
    for b in range(3):
        rec(f"v_mov_b32 v{OST+b}, {b+1}")
    for sw in ("v_permlane16_swap_b32", "v_permlane32_swap_b32"):
        for r in range(4):
            rec(f"v_mov_b32 v{T+4+r}, v{T+r}")
        for r in range(4):
            rec(f"{sw} v{T+r}, v{T+4+r}")
        for r in range(4):
            rec(f"v_add_f32 v{T+r}, v{T+r}, v{T+4+r}")
    for n in range(2):
        m = T + 2 * n; r = T + 8 + n; t = T + 4 + n; bx = BX + 4 * n
        stats_finish(rec, m, m + 1, r, T + 10 + n, t, True)
        rec(f"v_rcp_f32 v{RI+n}, v{r}")
        rec(f"v_mul_f32 v{K1+n}, {f32(C1)}, v{r}")
        rec(f"v_mul_f32 v{K3+n}, v{r}, v{r}")
        rec(f"v_mul_f32 v{K3+n}, v{K3+n}, v{r}")
        rec(f"v_mul_f32 v{K3+n}, {f32(C3)}, v{K3+n}")
        rec(f"v_cvt_pk_bf16_f32 v{t}, v{RI+n}, v{RI+n}")
        rec(f"v_and_b32 v{t}, 0xffff0000, v{t}")
        rec(f"v_sub_f32 v{t}, v{RI+n}, v{t}")
        rec(f"v_cvt_pk_bf16_f32 v{bx}, v{RI+n}, v{t}")
        rec(f"v_sub_f32 v{m}, 0, v{m}")
        rec(f"v_cvt_pk_bf16_f32 v{bx+1}, v{m}, v{m}")
        rec(f"v_and_b32 v{t}, 0xffff0000, v{bx+1}")
        rec(f"v_sub_f32 v{t}, v{m}, v{t}")
        rec(f"v_cvt_pk_bf16_f32 v{bx+2}, v{t}, v7")
        rec(f"v_mov_b32 v{bx+3}, 0")
    VQ = [(0, 1, mk(t), None) for t in rec.l]
    VQ[-1] = (0, 1, VQ[-1][2], ("bx",))

    hl_done = set()
    MQ = []

    def defer(fn):
        return lambda: MQ.append(fn)

    def mk_hstore(q):
        def fn():
            if q % 4 == 0 and q:
                a("s_add_u32 s24, s24, 4096")
            a(f"buffer_store_dwordx4 {vr(HO+4*q,4)}, v3, s[4:7], s24 offen offset:{(q%4)*1024} sc1"); vm.issue(("hs", q))
            if q % 6 == 5:
                b = q // 6
                g = cur[0] + DFLAG
                ev(g, 2, lambda: flag_store(b))
                ev(g + DPOLL, 2, lambda: poll_issue(b))
                ev(g + DPOLL + DCHK, 4, lambda: poll_check(b))
        return fn

    def flag_store(b):
        vm.wait(("hs", 6 * b + 5))
        a("s_mov_b64 exec, 1")
        a(f"buffer_store_dword v{OST+b}, v7, s[4:7], s26 offen sc1"); vm.issue("fs")
        a("s_mov_b64 exec, -1")

    def poll_issue(b):
        a("s_mov_b64 exec, 1")
        a(f"buffer_load_dword v2, v7, s[4:7], s27 offen sc1"); vm.issue(("pl", b))
        a("s_mov_b64 exec, -1")

    def poll_check(b):
        vm.wait(("pl", b))
        a("v_readfirstlane_b32 s30, v2")
        a(f"s_cmp_gt_u32 s30, {b}")
        a.nf(f"s_cbranch_scc0 {name}_w{b}")
        a.label(f"{name}_r{b}", safe=False)
        slowcode.append(b)
        for i in range(6):
            ev(cur[0] + 1 + 2 * i, 1, mk_hload(6 * b + i))

    def mk_hload(q):
        def fn():
            if q % 4 == 0 and q:
                a("s_add_u32 s25, s25, 4096")
            a(f"buffer_load_dwordx4 {ar(HP+4*q,4)}, v3, s[4:7], s25 offen offset:{(q%4)*1024} sc1"); vm.issue(("hl", q))
            hl_done.add(q)
        return fn

    SK = 2.5
    gel = []

    def add_gelu(t, ready):
        ac = AC1 + 16 * (t % NSL)
        for v in range(16):
            n = v // 8; mh = (v // 4) % 2; i = v % 4
            x = ac + (2 * mh + n) * 4 + i; tm = T + v
            ops = [(1, f"v_mul_f32 v{tm}, v{x}, v{x}"), (1, f"v_fma_f32 v{tm}, v{tm}, v{K3+n}, v{K1+n}"), (1, f"v_mul_f32 v{tm}, v{tm}, v{x}"),
                   (2, f"v_exp_f32 v{tm}, v{tm}"), (1, f"v_fma_f32 v{tm}, v{tm}, v{RI+n}, v{RI+n}"), (2, f"v_rcp_f32 v{tm}, v{tm}"),
                   (1, f"v_mul_f32 v{x}, v{x}, v{tm}")]
            for st, (c, tx) in enumerate(ops):
                gel.append((16 * t + v + st * SK, ready, c, mk(tx), None))
            if v % 2 == 1:
                gel.append((16 * t + v + 6 * SK + 1.2, ready, 1, mk(f"v_cvt_pk_bf16_f32 v{HO+8*t+v//2}, v{x-1}, v{x}"), None))
            if v % 8 == 7:
                q = 2 * t + n
                gel.append((16 * t + v + 6 * SK + 1.3, ready, 0, defer(mk_hstore(q)), ("h", q)))
    last_idx = {}
    for i, u in enumerate(U):
        last_idx[u[:2]] = i
    for t in range(9):
        add_gelu(t, last_idx[("p1", t)] + 2)
    gel.sort(key=lambda x: x[0])
    VQ += [(g[1], g[2], g[3], g[4]) for g in gel]
    for dt in range(9):
        rdy = last_idx[("p2", dt)] + 2
        for n in range(2):
            o = AC1 + ((2 * dt + n) % 8) * 4
            for mh in range(2):
                for i in range(4):
                    VQ.append((rdy, 1, mk(f"v_accvgpr_read_b32 v{T+8*n+4*mh+i}, a{16*dt+(2*mh+n)*4+i}"), None))
            for e in range(4):
                VQ.append((rdy, 1, mk(f"v_cvt_pk_bf16_f32 v{o+e}, v{T+8*n+2*e}, v{T+8*n+2*e+1}"), None))

            def st(n=n, o=o, dt=dt):
                if dt % 4 == 0 and dt and n == 0:
                    a("s_add_u32 s28, s28, 4096")
                a(f"buffer_store_dwordx4 {vr(o,4)}, {'v6' if n else 'v3'}, s[4:7], s28 offen offset:{(dt%4)*1024} sc1"); vm.issue("po")
            VQ.append((rdy, 0, defer(st), None))
    done_tags = set()

    def vq_pop():
        it = VQ.pop(0)
        assert it[0] - 2 < cur[0] + (1 if cur[0] == NU - 1 else 0), (it[0], cur[0])
        it[2]()
        if it[3]:
            done_tags.add(it[3])
        return it[1]

    bar_done = [0]

    def chunk_barrier(c):
        while LQ and LQ[0][0] <= CF * c - RA:
            lq_issue()
        bar_done[0] = c
        if c < NPRE and c < 2:
            return
        vm.wait(("w", c))
        if "nobar" not in OPT:
            a("s_barrier")

    TSA = int(OPT.get('tsa', 38 * G0)); TSB = int(OPT.get('tsb', 342))
    last_lq = -10
    forced = 0
    GAP = float(OPT.get("gap", 11))
    credit = [0.0]

    def prereq(i):
        nonlocal forced
        kind, t, k, mh = U[i]
        if kind == "p1" and t == 0 and mh == 0 and k < 18:
            while LQ and LQ[0][0] <= i:
                lq_issue()
            vm.wait(("y", k))
        if kind == "p2" and k >= 9:
            q = 2 * (k - 9) + 1
            while q not in hl_done:
                while MQ:
                    MQ.pop(0)()
                g = min(EV)
                for c, fn in EV.pop(g):
                    fn()
                forced += 1000
            vm.wait(("hl", q))
        if i % WE == 0:
            lg.wait(("a", min(i + WE - 1, NU - 1)))

    def force_valu(i):
        nonlocal forced
        kind, t, k, mh = U[i]
        need = []
        if kind == "p1" and k == 18:
            need.append(("bx",))
        if kind == "p2" and k < 9:
            need.append(("h", 2 * k + 1))
        if kind == "p1" and k == 0 and t >= NSL:
            need.append(("h", 2 * (t - NSL) + 1))
        for tg in need:
            while tg not in done_tags:
                vq_pop(); forced += 1

    def fill(i, used):
        credit[0] = min(credit[0] + GAP - used, 8.0 + GAP - used)
        lo = 8 - used
        while VQ and VQ[0][0] <= i:
            c = VQ[0][1] * 4
            if c <= credit[0] or c <= lo or c == 0:
                vq_pop(); credit[0] -= c; lo -= c
            else:
                break
        if not (VQ and VQ[0][0] <= i):
            credit[0] = 0.0

    prereq(0)
    for i in range(NU):
        cur[0] = i
        force_valu(i)
        if ts.on and i in (TSA, TSB):
            ts(); lg.q = []
        mfma3(i, 0)
        used = 0
        evs = EV.pop(i, [])
        pace = PACE0 if ny_left[0] else PACE1
        if evs:
            for c, fn in evs:
                fn(); used += 4 * c
        elif MQ:
            MQ.pop(0)(); used += 4
        elif LQ and LQ[0][1] <= bar_done[0] and i - last_lq >= pace:
            lq_issue(); last_lq = i; used += 4
        fill(i, used)
        mfma3(i, 1)
        used = 0
        if i + 1 < NU:
            prereq(i + 1)
        if i + RA < NU:
            if (i + RA) % CF == 0:
                chunk_barrier((i + RA) // CF)
            dsread(i + RA); used += 4
        fill(i, used)
    assert not EV, EV.keys()
    while VQ or MQ:
        if MQ:
            MQ.pop(0)()
        else:
            vq_pop()
    qleft = [it[3] for it in LQ] + [mk_q(sl, i) for sl in range(NS) if sl not in qslots for i in range(6)]
    print("wq loads left:", len(qleft), file=sys.stderr)
    print("p3 forced:", forced, file=sys.stderr)
    ts()

    P4P = 64; P4A = 16; P4X = 160; P4B = 172

    def p4_prefetch():
        a("s_load_dwordx4 s[36:39], s[0:1], 56")
        a("v_and_b32 v4, 15, v1")
        a("v_lshrrev_b32 v5, 4, v1")
        a("s_lshl_b32 s12, s8, 4")
        a("s_add_u32 s12, s12, s9")
        a("s_mul_i32 s12, s12, 9")
        a("s_add_u32 s12, s12, s3")
        a("s_lshl_b32 s12, s12, 10")
        a("s_add_u32 s13, s12, 4096")
        a("s_add_u32 s14, s12, 8192")
        a("s_cmp_lg_u32 s3, 0")
        a(f"s_cselect_b32 s14, {OOB}, s14")
        a("s_and_b32 s15, s9, 1")
        a("s_mul_i32 s16, s15, 9")
        a("s_add_u32 s16, s16, s3")
        a("s_lshl_b32 s16, s16, 6")
        a("s_add_u32 s17, s16, 512")
        a("s_cmp_lg_u32 s3, 0")
        a(f"s_cselect_b32 s17, {OOB}, s17")
        a("v_lshlrev_b32 v6, 3, v5")
        for i in range(3):
            a(f"s_add_u32 s18, s{12+i}, {X1}")
            a(f"buffer_load_dwordx4 {vr(P4X+4*i,4)}, v3, s[4:7], s18 offen sc1")
        a("s_waitcnt lgkmcnt(0)")
        srd(a, 40, 36, D * 2)
        for i in range(3):
            so, off = ("s16", 256 * i) if i < 2 else ("s17", 0)
            a(f"buffer_load_dwordx2 {vr(P4B+4*i,2)}, v6, s[40:43], {so} offen offset:{off}")
            a(f"buffer_load_dwordx2 {vr(P4B+4*i+2,2)}, v6, s[40:43], {so} offen offset:{off+32}")
        for i in range(3):
            a(f"s_add_u32 s{20+i}, s{12+i}, {PART}")
    sync(48, p4_prefetch)
    ts()
    for s in range(8):
        for i in range(3):
            a(f"buffer_load_dwordx4 {vr(P4P+12*s+4*i,4)}, v3, s[4:7], s{20+i} offen sc1"); vm.issue(("p", s))
            if s < 7:
                a(f"s_add_u32 s{20+i}, s{20+i}, {XT}")
    a("v_mov_b32 v6, 0x00003f80")
    a("v_mov_b32 v7, 0x3f800000")
    for i in range(3):
        for j in range(4):
            a(f"v_lshlrev_b32 v{P4A+8*i+2*j}, 16, v{P4B+4*i+j}")
            a(f"v_and_b32 v{P4A+8*i+2*j+1}, 0xffff0000, v{P4B+4*i+j}")

    def acc4(src):
        for i in range(3):
            for j in range(4):
                a(f"v_dot2c_f32_bf16 v{P4A+8*i+2*j}, v{src+4*i+j}, v6")
                a(f"v_dot2c_f32_bf16 v{P4A+8*i+2*j+1}, v{src+4*i+j}, v7")
    acc4(P4X)
    for s in range(8):
        vm.wait(("p", s))
        acc4(P4P + 12 * s)
    O4 = 40
    for i in range(3):
        for j in range(4):
            a(f"v_cvt_pk_bf16_f32 v{O4+4*i+j}, v{P4A+8*i+2*j}, v{P4A+8*i+2*j+1}")
    a("s_cmp_lg_u32 s59, 0" if "tsl0" not in OPT else "s_cmp_eq_u32 s59, 0")
    a(f"s_cbranch_scc1 {name}_fin")
    for i in range(3):
        a(f"s_add_u32 s18, s{12+i}, {XIN + LSTR}")
        a(f"buffer_store_dwordx4 {vr(O4+4*i,4)}, v3, s[4:7], s18 offen sc1")
    sumsq(56, [P4A + j for j in range(12)])
    sumsq(58, [P4A + 12 + j for j in range(12)])
    a("v_add_f32 v56, v56, v58")
    a("v_add_f32 v57, v57, v59")
    a("v_lshlrev_b32 v58, 3, v0")
    a(f"v_add_u32 v58, {EX}, v58")
    a("ds_write_b64 v58, v[56:57]")
    a("v_lshlrev_b32 v58, 3, v1")
    a(f"v_add_u32 v58, {EX}, v58")
    a("v_lshlrev_b32 v59, 5, v4")
    a("v_lshrrev_b32 v60, 1, v5")
    a("v_lshl_add_u32 v59, v60, 3, v59")
    a("s_lshl_b32 s20, s8, 3")
    a("s_lshr_b32 s21, s9, 1")
    a("s_add_u32 s20, s20, s21")
    a("s_lshl_b32 s20, s20, 9")
    a("s_lshl_b32 s21, s15, 4")
    a("s_add_u32 s20, s20, s21")
    a(f"s_add_u32 s20, s20, {STI + LSTR}")
    a("s_cmp_lg_u32 s3, 0")
    a(f"s_cselect_b32 s20, {OOB}, s20")
    a("s_waitcnt lgkmcnt(0)")
    a("s_barrier")
    for w in range(4):
        a(f"ds_read_b64 {vr(64+2*w,2)}, v58 offset:{w*512}")
    a("s_waitcnt lgkmcnt(0)")
    for i in range(2):
        a(f"v_add_f32 v{64+i}, v{64+i}, v{66+i}")
        a(f"v_add_f32 v{68+i}, v{68+i}, v{70+i}")
    for i in range(2):
        a(f"v_add_f32 v{64+i}, v{64+i}, v{68+i}")
    a("v_mov_b32 v66, v64")
    a("v_mov_b32 v67, v65")
    a("v_permlane16_swap_b32 v64, v66")
    a("v_permlane16_swap_b32 v65, v67")
    a("v_add_f32 v64, v64, v66")
    a("v_add_f32 v65, v65, v67")
    a("buffer_store_dwordx2 v[64:65], v59, s[4:7], s20 offen sc1")
    ts()

    def p1b_prefetch():
        for fn in qleft:
            fn()
        a(f"s_mov_b32 s59, {LSTR}")
        p1_setup()
        p1_consts()
        a("s_lshl_b32 s24, s3, 13")
        a("s_add_u32 s24, s24, 7168")
        a("s_lshl_b32 s21, s3, 10")
        a("s_add_u32 s22, s22, s21")
        a("s_mov_b32 s44, 0xfffefffe")
        a("s_mov_b32 s45, 0xfffefffe")
    sync(64, p1b_prefetch, prev=True)
    ts()
    a(f"s_add_u32 s4, s4, {LSTR}")
    a("s_addc_u32 s5, s5, 0")
    p1_stats_load()
    for grp in xloads(0):
        do_load(grp, 0)
    a("s_mov_b64 exec, s[44:45]")
    for j in range(5):
        if j == 4:
            a("s_cmp_ge_u32 s3, 2")
            a(f"s_cselect_b32 s22, {OOB}, s22")
        a("s_mov_b32 m0, s24")
        a("buffer_load_dwordx4 v3, s[4:7], s22 offen sc1 lds"); vm.issue("halo")
        a("s_add_u32 s22, s22, 4096")
        a("s_add_u32 s24, s24, 32768")
    a("s_mov_b64 exec, -1")
    PFB = int(OPT.get("p1pfb", 6))
    for ks in range(1, 3):
        for grp in xloads(ks):
            do_load(grp, ks)
    p1_stats_math()
    for ks in range(3, PFB):
        for grp in xloads(ks):
            do_load(grp, ks)
    vm.wait("halo")
    a("s_waitcnt lgkmcnt(0)")
    a("s_barrier")
    if ts.on:
        ts.n = 2
        ts()
    p1_loop(xloads, PFB, 0)
    a(f"s_branch {name}_epi")

    a.label(f"{name}_fin")
    srd(a, 40, 38, XT)
    a("v_mul_u32_u24 v6, 1152, v4")
    a("v_lshl_add_u32 v6, v5, 3, v6")
    a("s_lshl_b32 s20, s8, 3")
    a("s_lshr_b32 s21, s9, 1")
    a("s_add_u32 s20, s20, s21")
    a("s_mul_i32 s20, s20, 18432")
    a("s_add_u32 s21, s20, s17")
    a("s_add_u32 s20, s20, s16")
    for i in range(3):
        so, off = ("s20", 256 * i) if i < 2 else ("s21", 0)
        a(f"buffer_store_dwordx2 {vr(O4+4*i,2)}, v6, s[40:43], {so} offen offset:{off}")
        a(f"buffer_store_dwordx2 {vr(O4+4*i+2,2)}, v6, s[40:43], {so} offen offset:{off+32}")
    if ts.on:
        ts.n = 14
        a("s_waitcnt vmcnt(0)")
        ts(); ts(True)
        ts.store()
    a("s_endpgm")
    for b in slowcode:
        a.label(f"{name}_w{b}")
        a("s_add_u32 s57, s57, 1")
        a("s_cmp_gt_u32 s57, 0x40000")
        a(f"s_cbranch_scc1 {name}_r{b}")
        a("s_sleep 2")
        a(f"buffer_load_dword v2, v7, s[4:7], s27 offen sc1")
        a("s_waitcnt vmcnt(0)")
        a("v_readfirstlane_b32 s30, v2")
        a(f"s_cmp_gt_u32 s30, {b}")
        a(f"s_cbranch_scc0 {name}_w{b}")
        a(f"s_branch {name}_r{b}")
    a.label(f"{name}_end")
    a("s_endpgm")
    return name, a.text(), dict(vgpr=512, sgpr=102, accum=256), dict(grid=256, block=256, lds=163840)


def main():
    ks = [gen_p0(CODE0="main_kernel", CPN=8, zero=True, w12="nolate" in OPT), gen_main()]
    ref = open(f"cdna_kernels/{NAME}.s.ref").read().split("\n")
    hdr = [ln for ln in ref if ln.startswith(";") and "@launch" not in ln and "Override launch" not in ln and "grid=ceil" not in ln]
    out = hdr[:]
    for name, _, _, g in ks:
        out.append(f"; @launch kernel={name} grid=({g['grid']},1,1) block=({g['block']},1,1) lds={g['lds']}")
    out.append('.amdgcn_target "amdgcn-amd-amdhsa--gfx950"')
    out.append(".text")
    for _, txt, _, _ in ks:
        out.append(txt)
    out.append("code_end:")
    out.append("    s_endpgm")
    out.append('.section .rodata,"a"')
    for name, _, kd, _ in ks:
        out.append(KD.format(name=name, **kd))
    path = sys.argv[1] if len(sys.argv) > 1 else f"cdna_kernels/{NAME}.s"
    open(path, "w").write("\n".join(out))
    json.dump(L, open("layout.json", "w"))
    print("written", path)


if __name__ == "__main__":
    main()
```

```python
import sys, json, math
from asmb import Asm, KD, vr, ar, sr
from gen import (OPT, NAME, S, D, F, XT, TILE, OOB, WS_BYTES, L, G0, KT, KO, NCHUNK, SLB, f32, Cnt, Stamps, srd,
                 xg_reduce, stats_finish, gen_p0, w12_roles)

LOG2E = math.log2(math.e)
EX = 147456
CQL = EX + 5 * 3072
CNT = 16384


def gen_main():
    name = "main_kernel"
    a = Asm()
    vm = Cnt(a, "vmcnt", 63); lg = Cnt(a, "lgkmcnt", 15)
    ts = Stamps(a, name)
    XIN = L["X0"]; STI = L["ST0"]; OUT = L["O0"]; X1 = L["X1_0"]; ST1 = L["ST1_0"]
    PART = L["PART0"]; HX = L["HX0"]; FL = L["FL0"]; LSTR = L["LSTR"]
    slowcode = []

    a.raw(f".globl {name}\n.p2align 8\n.type {name},@function\n{name}:")
    a("s_cmp_ge_u32 s2, 256")
    a(f"s_cbranch_scc1 {name}_end")
    ts(True); ts()
    a("s_load_dwordx2 s[4:5], s[0:1], 80")
    a("s_mov_b32 s59, 0")
    a("s_mov_b32 s57, 0")
    a("v_and_b32 v1, 63, v0")
    a("v_lshrrev_b32 v2, 6, v0")
    a("v_readfirstlane_b32 s3, v2")
    a("v_lshlrev_b32 v3, 4, v1")
    a("s_and_b32 s12, s2, 7")
    a("s_lshr_b32 s13, s2, 3")
    a("s_lshr_b32 s8, s12, 2")
    a("s_lshl_b32 s8, s8, 3")
    a("s_lshr_b32 s14, s13, 2")
    a("s_add_u32 s8, s8, s14")
    a("s_and_b32 s9, s12, 3")
    a("s_lshl_b32 s9, s9, 2")
    a("s_and_b32 s14, s13, 3")
    a("s_add_u32 s9, s9, s14")
    a("s_lshl_b32 s10, s8, 7")
    a(f"s_add_u32 s10, s10, {FL + CNT}")
    a("s_sub_u32 s11, s10, 128")
    a("s_cmp_eq_u32 s8, 0")
    a("s_cselect_b32 s11, s10, s11")
    a("s_sub_u32 s12, s10, s11")
    a("v_mov_b32 v254, s12")
    a("v_cmp_eq_u32 vcc, 0, v1")
    a("v_cndmask_b32 v254, 0, v254, vcc")

    if "stag" in OPT:
        a(f"s_and_b32 s12, s8, {OPT.get('stagm', 4)}")
        a("s_cmp_eq_u32 s12, 0")
        a(f"s_cbranch_scc1 {name}_nostag")
        for _ in range(int(OPT["stag"])):
            a("s_sleep 36")
        a.label(f"{name}_nostag")
    LATE = "late" in OPT
    a("s_lshr_b32 s12, s9, 1")
    a("s_lshl_b32 s12, s12, 7")
    a(f"s_add_u32 s12, s12, {FL + CNT + 64 + 2048}")
    a("s_sub_u32 s12, s12, s11")
    a("v_writelane_b32 v254, s12, 2")
    a("s_waitcnt lgkmcnt(0)")
    a("s_and_b32 s5, s5, 0xffff")
    a(f"s_mov_b32 s6, {WS_BYTES}")
    a("s_mov_b32 s7, 0x00020000")
    if LATE:
        a("s_and_b32 s12, s8, 7")
        a("s_cmp_ge_u32 s12, 4")
        a("s_cselect_b32 s13, 1, 0")
        a("s_cmp_eq_u32 s8, 3")
        a("s_cselect_b32 s13, 1, s13")
        a("s_cmp_eq_u32 s13, 0")
        a(f"s_cbranch_scc1 {name}_early")
        a("s_load_dwordx4 s[24:27], s[0:1], 32")
        a("s_load_dwordx2 s[28:29], s[0:1], 48")
        a("s_sub_u32 s12, s8, 3")
        a("s_sub_u32 s13, s8, 7")
        a("s_cmp_ge_u32 s8, 8")
        a("s_cselect_b32 s12, s13, s12")
        a("s_lshl_b32 s31, s12, 4")
        a("s_add_u32 s31, s31, s9")
        a("v_and_b32 v4, 15, v1")
        a("v_lshrrev_b32 v5, 4, v1")
        a("v_lshrrev_b32 v6, 3, v1")
        a("v_and_b32 v7, 7, v1")
        a("v_lshrrev_b32 v11, 2, v1")
        a("v_lshlrev_b32 v11, 7, v11")
        a("v_and_b32 v12, 3, v1")
        a("v_lshl_add_u32 v11, v12, 3, v11")
        a("s_lshl_b32 s38, s3, 5")
        a("v_add_u32 v11, s38, v11")
        a("s_waitcnt lgkmcnt(0)")
        w12_roles(a, name, "s31", lambda: a(f"s_branch {name}_tiled"), lambda k: None, "nt")
        a.label(f"{name}_tiled")
        a("s_lshl_b32 s56, s56, 7")
        a(f"s_add_u32 s56, s56, {FL + CNT + 64 + 2048}")
        a("s_cmp_lg_u32 s3, 0")
        a(f"s_cselect_b32 s56, {OOB}, s56")
        a("v_mov_b32 v2, 1")
        a("v_mov_b32 v4, 0")
        a("s_waitcnt vmcnt(0)")
        a("s_barrier")
        a("s_mov_b64 exec, 1")
        a("buffer_atomic_add v2, v4, s[4:7], s56 offen")
        a("s_mov_b64 exec, -1")
        a.label(f"{name}_early")
    nsync = [0]

    def sync(target, prefetch=None, prev=False, wts=False):
        k = nsync[0]; nsync[0] += 1
        a("s_waitcnt vmcnt(0)")
        a("s_barrier")
        vm.q = []
        a("s_cmp_lg_u32 s3, 0")
        a(f"s_cbranch_scc1 {name}_sa{k}")
        a("v_mov_b32 v2, 1")
        a("s_mov_b64 exec, 1")
        a("buffer_atomic_add v2, v254, s[4:7], s11 offen")
        a("s_mov_b64 exec, -1")
        a.label(f"{name}_sa{k}")
        if prefetch:
            prefetch()
        a("s_cmp_lg_u32 s3, 0")
        a(f"s_cbranch_scc1 {name}_sb{k}")
        a(f"v_mov_b32 v2, {target}")
        if wts:
            a("s_cmp_eq_u32 s59, 0")
            a("s_cselect_b32 s58, 18, 0")
            a("v_writelane_b32 v2, s58, 2")
        a(f"s_mov_b64 exec, {3 if prev else (5 if wts else 1)}")
        PP = int(OPT.get("pp", 0))
        if PP:
            a("buffer_load_dword v252, v254, s[4:7], s11 offen sc1")
            a(f"s_sleep {PP}")
            a("buffer_load_dword v253, v254, s[4:7], s11 offen sc1")
        a.label(f"{name}_sp{k}")
        regs = ((255, 252), (252, 253), (253, 255)) if PP else ((252, 252),)
        for new, old in regs:
            if PP:
                a(f"s_sleep {PP}")
            a(f"buffer_load_dword v{new}, v254, s[4:7], s11 offen sc1")
            a(f"s_waitcnt vmcnt({2 if PP else 0})")
            a(f"v_cmp_gt_u32 vcc, v2, v{old}")
            a("s_nop 4")
            a(f"s_cbranch_vccz {name}_sq{k}")
        a("s_add_u32 s57, s57, 1")
        a("s_cmp_lt_u32 s57, 0x40000")
        a(f"s_cbranch_scc1 {name}_sp{k}")
        a.label(f"{name}_sq{k}")
        a("s_mov_b64 exec, -1")
        a(f"s_branch {name}_sc{k}")
        a.label(f"{name}_sb{k}")
        a("s_waitcnt vmcnt(0)")
        a.label(f"{name}_sc{k}")
        a("s_waitcnt lgkmcnt(0)")
        a("s_barrier")
        vm.q = []; lg.q = []

    ACC = 16; AB = 88
    RN = 168; RS = 176; CQN = 200; CQH = 220; CQS = 224
    MS = 228; MPA = 232; MPB = 236
    T0 = 200

    def p1_setup():
        a("v_and_b32 v4, 15, v1")
        a("v_lshrrev_b32 v5, 4, v1")
        a("s_lshl_b32 s16, s8, 3")
        a("s_lshl_b32 s17, s3, 1")
        a("s_add_u32 s17, s17, s16")
        a("s_mul_i32 s18, s17, 18432")
        a(f"s_add_u32 s18, s18, {XIN}")
        a("s_mul_i32 s22, s16, 18432")
        a(f"s_add_u32 s22, s22, {XIN - 18432}")
        a("s_cmp_eq_u32 s8, 0")
        a(f"s_cselect_b32 s22, {OOB}, s22")
        a("s_lshl_b32 s25, s17, 9")
        a(f"s_add_u32 s25, s25, {STI}")
        a("s_lshl_b32 s26, s16, 9")
        a(f"s_add_u32 s26, s26, {STI - 512}")
        a("s_cmp_eq_u32 s8, 0")
        a(f"s_cselect_b32 s26, {OOB}, s26")
        a("s_lshl_b32 s27, s3, 2")
        a("s_lshr_b32 s28, 0x1654, s27")
        a("s_and_b32 s28, s28, 15")
        a("s_lshr_b32 s27, 0x0632, s27")
        a("s_and_b32 s27, s27, 15")
        a("v_lshlrev_b32 v6, 5, v4")
        a("v_lshl_add_u32 v6, v5, 3, v6")
        a("v_lshlrev_b32 v7, 4, v5")
        a("v_lshlrev_b32 v8, 2, v4")
        a("v_add_u32 v15, 18432, v3")

    def p1_consts():
        a("v_min_u32 v12, 71, v0")
        a("v_lshrrev_b32 v13, 2, v12")
        a("v_lshlrev_b32 v13, 13, v13")
        a("v_and_b32 v12, 3, v12")
        a("v_lshl_add_u32 v13, v12, 8, v13")
        for i in range(4):
            a(f"v_mov_b32 v{ACC+i}, 0x3f803f80")
        a(f"ds_write_b128 v13, {vr(ACC,4)} offset:7168")
        a("v_mov_b32 v9, v3")
        a("s_lshl_b32 s32, s27, 10")
        a("v_add_u32 v10, s32, v3")
        a("s_lshl_b32 s32, s28, 10")
        a("v_add_u32 v11, s32, v3")
        a(f"v_mov_b32 v12, {f32(-1e30)}")
        a("v_lshlrev_b32 v13, 2, v5")
        a("v_sub_u32 v13, v4, v13")
        a("s_cmp_eq_u32 s17, 0")
        a("s_cselect_b32 s33, -100, -2")
        for i in range(4):
            a(f"v_subrev_u32 v14, {i}, v13")
            a("v_and_b32 v2, 1, v14")
            a("v_cmp_eq_u32 s[34:35], 0, v2")
            a("v_cmp_le_i32 vcc, 0, v14")
            a("s_and_b64 vcc, vcc, s[34:35]")
            a(f"v_cndmask_b32 v{MS+i}, v12, 0, vcc")
            a("v_cmp_ge_i32 vcc, -2, v14")
            a("s_and_b64 vcc, vcc, s[34:35]")
            a(f"v_cndmask_b32 v{MPB+i}, v12, 0, vcc")
            a("v_cmp_ge_i32 vcc, s33, v14")
            a("s_and_b64 vcc, vcc, s[34:35]")
            a(f"v_cndmask_b32 v{MPA+i}, v12, 0, vcc")
        a("s_mul_i32 s32, s3, 384")
        a(f"s_add_u32 s32, s32, {EX}")
        a("v_add_u32 v12, s32, v8")
        a("v_add_u32 v13, s32, v7")
        for i in range(1, 5):
            a(f"v_add_u32 v{239+i}, {4096*i}, v3")
        a("s_and_b32 s40, s9, 3")
        a("s_and_b32 s41, s40, 1")
        a("s_mul_i32 s42, s40, 9")
        a("s_add_u32 s43, s42, s41")
        a("s_lshl_b32 s46, s3, 1")
        a("s_add_u32 s43, s43, s46")
        a("s_add_u32 s46, s42, 8")
        a("s_cmp_eq_u32 s41, 1")
        a("s_cselect_b32 s46, s42, s46")
        a("s_mul_i32 s47, s43, 18432")
        a(f"s_add_u32 s47, s47, {L['WO']}")
        a("s_sub_u32 s47, s47, s59")
        a("s_add_u32 s48, s47, 18432")
        a("s_mul_i32 s49, s46, 18432")
        a(f"s_add_u32 s49, s49, {L['WO']}")
        a("s_sub_u32 s49, s49, s59")

    def wo_load(j, ks):
        def fn():
            vo = "v3" if ks < 4 else f"v{239 + ks // 4}"
            a(f"buffer_load_dwordx4 {ar((j*18+ks)*4,4)}, {vo}, s[4:7], s{47+j} offen offset:{(ks%4)*1024}"); vm.issue("wo")
        return fn

    def p1_stats_load():
        for n, so, off in ((0, "s25", 0), (1, "s25", 512), (2, "s26", 0)):
            a(f"buffer_load_dwordx2 {vr(T0+2*n,2)}, v6, s[4:7], {so} offen offset:{off} sc1"); vm.issue("st")

    def p1_stats_math():
        vm.wait("st")
        for sw in ("v_permlane16_swap_b32", "v_permlane32_swap_b32"):
            for r in range(6):
                a(f"v_mov_b32 v{T0+8+r}, v{T0+r}")
            for r in range(6):
                a(f"{sw} v{T0+r}, v{T0+8+r}")
            for r in range(6):
                a(f"v_add_f32 v{T0+r}, v{T0+r}, v{T0+8+r}")
        for n in range(3):
            b = T0 + 2 * n
            stats_finish(a, b, b + 1, RN + 2 * n, RN + 2 * n + 1, T0 + 8 + n, False)
            a(f"ds_write_b32 v12, v{RN+2*n} offset:{n*128}")
            a(f"ds_write_b32 v12, v{RN+2*n+1} offset:{n*128+64}")
        for n in range(3):
            a(f"ds_read_b128 {vr(RS+8*n,4)}, v13 offset:{n*128}")
            a(f"ds_read_b128 {vr(RS+8*n+4,4)}, v13 offset:{n*128+64}")

    def reads(ks):
        b = AB + 40 * (ks & 1)
        o = (ks % 8) * 8192
        r = [f"ds_read_b128 {vr(b+28,4)}, v9 offset:{o+7*1024}",
             f"ds_read_b128 {vr(b+32,4)}, v10 offset:{o}",
             f"ds_read_b128 {vr(b+36,4)}, v11 offset:{o}"]
        r += [f"ds_read_b128 {vr(b+4*fr,4)}, v9 offset:{o+fr*1024}" for fr in (0, 1, 2, 3, 6, 4, 5)]
        return r

    def mfmas(ks):
        b = AB + 40 * (ks & 1)
        r = []
        acc = vr(ACC + 64, 4); c = "0" if ks == 0 else acc
        r.append(f"v_mfma_f32_16x16x32_bf16 {acc}, {vr(b+32,4)}, {vr(b+28,4)}, {c}")
        acc = vr(ACC + 68, 4); c = "0" if ks == 0 else acc
        r.append(f"v_mfma_f32_16x16x32_bf16 {acc}, {vr(b+28,4)}, {vr(b+36,4)}, {c}")
        for slot, fr in enumerate((0, 1, 2, 3, 6, 4, 5, 6)):
            for n in range(2):
                acc = vr(ACC + 32 * n + 4 * slot, 4)
                x = ar(72 * n + 4 * ks, 4)
                w = vr(b + 4 * fr, 4)
                c = "0" if ks == 0 else acc
                if slot < 5:
                    r.append(f"v_mfma_f32_16x16x32_bf16 {acc}, {w}, {x}, {c}")
                else:
                    r.append(f"v_mfma_f32_16x16x32_bf16 {acc}, {x}, {w}, {c}")
        return r

    def xloads(ks):
        o = (ks % 4) * 1024
        return [[f"buffer_load_dwordx4 {ar(4*ks,4)}, v3, s[4:7], s18 offen offset:{o} sc1"],
                [f"buffer_load_dwordx4 {ar(72+4*ks,4)}, v15, s[4:7], s18 offen offset:{o} sc1"] + (["s_add_u32 s18, s18, 4096"] if ks % 4 == 3 else [])]

    def do_load(grp, ks):
        for t in grp:
            a(t)
        vm.issue(("k", ks))

    def p1_loop(loads, PF, CH):
        for t in reads(0):
            a(t)
        a("s_waitcnt lgkmcnt(0)")
        wo_early = [wo_load(2, ks) for ks in range(18)]
        for ks in range(18):
            m = mfmas(ks)
            nxt = ks + 1
            rd = []
            if not CH:
                vm.wait(("k", ks))
            if nxt < 18:
                if CH and nxt % CH == 0:
                    vm.wait(("k", min(nxt + CH - 1, 17)))
                    a("s_barrier")
                if nxt % 8 == 0:
                    a("v_add_u32 v9, 0x10000, v9")
                    a("v_add_u32 v10, 0x10000, v10")
                    a("v_add_u32 v11, 0x10000, v11")
                rd = reads(nxt)
            else:
                a("s_lshl_b32 s32, s27, 6")
                a(f"s_add_u32 s32, s32, {CQL}")
                a("v_add_u32 v12, s32, v7")
                a("s_lshl_b32 s33, s28, 6")
                a(f"s_add_u32 s33, s33, {CQL}")
                a("v_add_u32 v13, s33, v8")
                a("s_mov_b32 s34, 0x00010001")
                a("s_mov_b32 s35, 0x00010001")
            ld = loads(ks + PF) if ks + PF < 18 else []
            for i, t in enumerate(m):
                a(t)
                if i < len(rd):
                    a(rd[i])
                if i >= 10 and (i - 10) % 2 == 0:
                    if (i - 10) // 2 < len(ld):
                        do_load(ld[(i - 10) // 2], ks + PF)
                    elif ks + PF >= 18 and wo_early:
                        wo_early.pop(0)()
                if ks == 17 and i == 10:
                    a("s_mov_b64 exec, s[34:35]")
                    a(f"ds_write_b128 v12, {vr(ACC+64,4)}")
                    a("s_mov_b64 exec, 0xffff")
                    a(f"ds_write_b32 v13, v{ACC+68}")
                    a("s_mov_b64 exec, -1")
            a("s_waitcnt lgkmcnt(0)")
        while wo_early:
            wo_early.pop(0)()

    p1_setup()
    a(f"s_mul_i32 s20, s9, {18*7168}")
    a("s_lshl_b32 s21, s3, 11")
    a("s_add_u32 s20, s20, s21")
    a(f"s_add_u32 s20, s20, {L['WQ']}")
    a("s_sub_u32 s22, s22, 1024")
    a("s_mov_b32 s52, 7168")
    a("s_mov_b32 s44, 0xfffefffe")
    a("s_cmp_eq_u32 s3, 3")
    a("s_cselect_b32 s22, s22, s20")
    a("s_cselect_b32 s52, 1024, s52")
    a("s_cselect_b32 s44, s44, -1")
    a("s_mov_b32 s45, s44")
    a("s_mov_b32 s24, s21")
    p1_stats_load()

    def loads_a(ks):
        return [["s_mov_b32 m0, s24", "s_add_u32 s24, s24, 8192", "buffer_load_dwordx4 v3, s[4:7], s20 offen lds", "s_add_u32 s20, s20, 7168"],
                ["s_mov_b64 exec, s[44:45]", "buffer_load_dwordx4 v3, s[4:7], s22 offen offset:1024 lds", "s_mov_b64 exec, -1",
                 "s_add_u32 s22, s22, s52"]] + xloads(ks)
    for ks in range(2):
        for grp in loads_a(ks):
            do_load(grp, ks)
    p1_consts()
    for ks in range(2, 4):
        for grp in loads_a(ks):
            do_load(grp, ks)
    p1_stats_math()
    for grp in loads_a(4):
        do_load(grp, 4)
    vm.wait(("k", 1))
    a("s_waitcnt lgkmcnt(0)")
    a("s_barrier")
    ts()
    p1_loop(loads_a, 5, 2)

    a.label(f"{name}_epi")
    vm.q = ["wo"] * 18
    ts.n = 3
    ts()
    a("s_barrier")
    a(f"v_add_u32 v9, {CQL}, v7")
    a(f"v_add_u32 v10, {CQL}, v8")
    for i, fr in enumerate((0, 1, 2, 3, 6)):
        a(f"ds_read_b128 {vr(CQN+4*i,4)}, v9 offset:{fr*64}")
    a(f"ds_read_b128 {vr(CQH,4)}, v12")
    for i, fr in enumerate((4, 5, 6)):
        a(f"ds_read_b32 v{CQS+i}, v10 offset:{fr*64}")
    a(f"ds_read_b32 v{CQS+3}, v13")
    NBG = int(OPT.get("nbg", 30))
    wo_rest = [wo_load(j, ks) for ks in range(18) for j in range(2)]
    a.bg = wo_rest[:NBG]; wo_rest = wo_rest[NBG:]
    a.bg_every = int(OPT.get("bgevery", 11))
    KF = 88; QF = 112; VF = 128; ONE = 148; T = 152
    for i in range(4):
        a(f"v_mul_f32 v{ACC+64+i}, v{ACC+64+i}, v{RN+4}")
        a(f"v_mul_f32 v{ACC+68+i}, v{ACC+68+i}, v{RS+16+i}")
    for n in (1, 0):
        for j in range(5):
            for i in range(4):
                a(f"v_mul_f32 v{ACC+32*n+4*j+i}, v{ACC+32*n+4*j+i}, v{RN+2*n}")
        for j in range(5, 8):
            for i in range(4):
                a(f"v_mul_f32 v{ACC+32*n+4*j+i}, v{ACC+32*n+4*j+i}, v{RS+8*n+i}")

    def corr_n(acc, n, cq):
        for i in range(4):
            a(f"v_fma_f32 v{acc+i}, -v{RN+2*n+1}, v{cq+i}, v{acc+i}")

    def corr_s(acc, n, cq):
        for i in range(4):
            a(f"v_fma_f32 v{acc+i}, -v{RS+8*n+4+i}, v{cq}, v{acc+i}")

    def pack2(dst, acc):
        a(f"v_cvt_pk_bf16_f32 v{dst}, v{acc}, v{acc+1}")
        a(f"v_cvt_pk_bf16_f32 v{dst+1}, v{acc+2}, v{acc+3}")

    a("v_cmp_eq_u32 s[36:37], 0, v5")
    a("v_cmp_eq_u32 s[38:39], 1, v5")
    a("v_lshlrev_b32 v12, 3, v1")
    a("s_mul_i32 s32, s3, 3072")
    a(f"s_add_u32 s33, s32, {EX}")
    a("v_add_u32 v13, s33, v12")
    a("s_lshl_b32 s32, s3, 9")
    a(f"s_add_u32 s32, s32, {EX}")
    a("s_cmp_eq_u32 s3, 3")
    a(f"s_cselect_b32 s32, {EX+4*3072}, s32")
    a("v_add_u32 v14, s32, v12")
    a("s_waitcnt lgkmcnt(0)")

    def conv_tile(n):
        ac = ACC + 32 * n
        tl = n + 1
        for i in range(5):
            corr_n(ac + 4 * i, n, CQN + 4 * i)
        for h in range(2):
            pack2(QF + (2 * n + h) * 4, ac + 4 * h)
            pack2(KF + (2 * tl + h) * 4, ac + 8 + 4 * h)
        pack2(T + 8 + 2 * n, ac + 16)
        for h in range(2):
            a(f"v_mov_b32 v{KF+(2*tl+h)*4+2}, v{T+8+2*n+1}")
            a(f"v_cndmask_b32 v{QF+(2*n+h)*4+2}, 0, v{T+8+2*n}, s[{36+2*h}:{37+2*h}]")
        for h in range(3):
            corr_s(ac + 20 + 4 * h, n, CQS + h)
            pack2(VF + 6 * h + 2 * tl, ac + 20 + 4 * h)

    corr_n(ACC + 64, 2, CQH)
    corr_s(ACC + 68, 2, CQS + 3)
    pack2(T + 12, ACC + 64)
    pack2(T + 14, ACC + 68)
    a(f"ds_write_b64 v14, {vr(T+12,2)}")
    a(f"ds_write_b64 v14, {vr(T+14,2)} offset:1536")
    conv_tile(1)
    a(f"ds_write_b64 v13, {vr(KF+16,2)} offset:{3072}")
    a(f"ds_write_b64 v13, {vr(KF+20,2)} offset:{3072+512}")
    a(f"ds_write_b64 v13, {vr(T+10,2)} offset:{3072+1024}")
    for h in range(3):
        a(f"ds_write_b64 v13, {vr(VF+6*h+4,2)} offset:{3072+1536+512*h}")
    conv_tile(0)
    for i in range(6):
        a(f"v_mov_b32 v{KF+4*i+3}, 0")
    for i in range(4):
        a(f"v_mov_b32 v{QF+4*i+3}, 0")
        a(f"v_mov_b32 v{ONE+i}, 0x3f803f80")
    a("s_waitcnt lgkmcnt(0)")
    a("s_barrier")
    a(f"ds_read_b64 {vr(KF,2)}, v13")
    a(f"ds_read_b64 {vr(KF+4,2)}, v13 offset:512")
    a(f"ds_read_b32 v{KF+2}, v13 offset:{1024+4}")
    a(f"ds_read_b32 v{KF+6}, v13 offset:{1024+4}")
    for h in range(3):
        a(f"ds_read_b64 {vr(VF+6*h,2)}, v13 offset:{1536+512*h}")
    SB = 16; PB = 48; MX = 64; OB = 168; OO = 72
    jobs = [(1, 0), (1, 1), (0, 0), (0, 1)]
    cs = (18 ** -0.5) * LOG2E
    a(f"s_mov_b32 s50, {f32(cs)}")
    for j, (n, h) in enumerate(jobs):
        if j == 2:
            a("s_waitcnt lgkmcnt(0)")
        q = vr(QF + (2 * n + h) * 4, 4)
        mp = MPA if n == 0 else MPB
        a(f"v_mfma_f32_16x16x32_bf16 {vr(SB+8*j,4)}, {vr(KF+(2*n+h)*4,4)}, {q}, {vr(mp,4)}")
        a(f"v_mfma_f32_16x16x32_bf16 {vr(SB+8*j+4,4)}, {vr(KF+(2*(n+1)+h)*4,4)}, {q}, {vr(MS,4)}")
    a("s_mul_i32 s32, s17, 18432")
    a("s_lshl_b32 s33, s9, 10")
    a("s_add_u32 s33, s33, s32")
    a(f"s_add_u32 s33, s33, {OUT}")
    a("s_add_u32 s34, s33, 18432")
    a("s_lshr_b32 s35, s9, 3")
    a("s_lshl_b32 s35, s35, 10")
    a("s_and_b32 s36, s9, 3")
    a("s_lshl_b32 s36, s36, 8")
    a("s_add_u32 s35, s35, s36")
    a("s_lshr_b32 s36, s9, 2")
    a("s_and_b32 s36, s36, 1")
    a("s_lshl_b32 s36, s36, 3")
    a("s_add_u32 s35, s35, s36")
    a("s_add_u32 s35, s35, s32")
    a(f"s_add_u32 s35, s35, {OUT + 16*1024}")
    a("s_add_u32 s36, s35, 18432")
    for j in range(4):
        s = SB + 8 * j; m = MX + 2 * j
        a(f"v_max3_f32 v{m}, v{s}, v{s+1}, v{s+2}")
        a(f"v_max3_f32 v{m+1}, v{s+3}, v{s+4}, v{s+5}")
        a(f"v_max3_f32 v{m}, v{m}, v{s+6}, v{s+7}")
        a(f"v_max_f32 v{m}, v{m}, v{m+1}")
    for sw in ("v_permlane16_swap_b32", "v_permlane32_swap_b32"):
        for j in range(4):
            a(f"v_mov_b32 v{MX+2*j+1}, v{MX+2*j}")
        for j in range(4):
            a(f"{sw} v{MX+2*j}, v{MX+2*j+1}")
        for j in range(4):
            a(f"v_max_f32 v{MX+2*j}, v{MX+2*j}, v{MX+2*j+1}")
    for j in range(4):
        a(f"v_mul_f32 v{MX+2*j}, s50, v{MX+2*j}")
    for j, (n, h) in enumerate(jobs):
        s = SB + 8 * j
        for i in range(8):
            a(f"v_fma_f32 v{s+i}, v{s+i}, s50, -v{MX+2*j}")
        for i in range(8):
            a(f"v_exp_f32 v{s+i}, v{s+i}")
        for i in range(4):
            a(f"v_cvt_pk_bf16_f32 v{PB+4*j+i}, v{s+2*i}, v{s+2*i+1}")
        p = vr(PB + 4 * j, 4)
        a(f"v_mfma_f32_16x16x32_bf16 {vr(OB+12*j+8,4)}, {vr(ONE,4)}, {p}, 0")
        a(f"v_mfma_f32_16x16x32_bf16 {vr(OB+12*j,4)}, {vr(VF+6*h+2*n,4)}, {p}, 0")
        a(f"v_mfma_f32_16x16x32_bf16 {vr(OB+12*j+4,4)}, {vr(VF+12+2*n,4)}, {p}, 0")
    wo_rest = a.bg + wo_rest
    a.bg = []
    a("v_lshlrev_b32 v12, 4, v4")
    a("v_mov_b32 v13, 0x40000000")
    a("v_cmp_eq_u32 vcc, 2, v5")
    a("v_cndmask_b32 v12, v13, v12, vcc")
    for j, (n, h) in enumerate(jobs):
        o = OB + 12 * j
        a(f"v_rcp_f32 v{o+8}, v{o+8}")
        for i in range(4):
            a(f"v_mul_f32 v{o+i}, v{o+i}, v{o+8}")
        a(f"v_mul_f32 v{o+4+2*h}, v{o+4+2*h}, v{o+8}")
        a(f"v_mul_f32 v{o+5+2*h}, v{o+5+2*h}, v{o+8}")
        a(f"v_cvt_pk_bf16_f32 v{OO+4*n+2*h}, v{o}, v{o+1}")
        a(f"v_cvt_pk_bf16_f32 v{OO+4*n+2*h+1}, v{o+2}, v{o+3}")
        a(f"v_cvt_pk_bf16_f32 v{OO+8+2*n+h}, v{o+4+2*h}, v{o+5+2*h}")
        if h == 1:
            a(f"buffer_store_dwordx4 {vr(OO+4*n,4)}, v3, s[4:7], s{33+n} offen sc1")
            a(f"buffer_store_dwordx2 {vr(OO+8+2*n,2)}, v12, s[4:7], s{35+n} offen sc1")
    ts()

    OL = 98304
    PA = 16; PBB = 40; RES = 88
    NPRE = int(OPT.get("npre", 4))

    CF = int(OPT.get("cf", 24)); NS = 144 // CF; PW = CF // 4; NCH = (666 + CF - 1) // CF
    LASTB = ((PW - 1) // 4) * 4096
    NPRE = NPRE * 24 // CF

    def mk_w(c, i):
        def fn():
            if i == 0:
                a(f"s_add_u32 m0, s54, {(c % NS) * CF * 1024}")
                a(f"s_add_u32 s55, s55, {CF*1024-LASTB}")
            elif i % 4 == 0:
                a("s_add_u32 m0, m0, 4096")
                a("s_add_u32 s55, s55, 4096")
            if not ("nodma" in OPT and c >= 6):
                a(f"buffer_load_dwordx4 v3, s[4:7], s55 offen offset:{(i%4)*1024} {OPT.get('wsc', 'sc1')} lds"); vm.issue(("w", c))
        return fn
    WPRE = [mk_w(c, i) for c in range(NPRE) for i in range(PW)]
    NW2 = int(OPT.get("nw2", 18))

    def p2_prefetch():
        for fn in wo_rest:
            fn()
        a(f"s_mul_i32 s54, s3, {PW*1024}")
        a(f"s_mul_i32 s55, s9, {SLB}")
        a("s_add_u32 s55, s55, s54")
        a(f"s_add_u32 s55, s55, {L['W12'] - (CF*1024-LASTB)}")
        a("s_sub_u32 s55, s55, s59")
        a("s_lshr_b32 s12, s9, 2")
        a("s_lshl_b32 s13, s8, 3")
        a("s_lshl_b32 s14, s12, 1")
        a("s_add_u32 s13, s13, s14")
        a("s_mul_i32 s15, s13, 18432")
        a("s_lshr_b32 s16, s43, 1")
        a("s_lshl_b32 s16, s16, 10")
        a("s_add_u32 s16, s16, s15")
        a("s_lshr_b32 s17, s46, 1")
        a("s_lshl_b32 s17, s17, 10")
        a("s_lshl_b32 s18, s41, 3")
        a("s_add_u32 s17, s17, s18")
        a("s_add_u32 s17, s17, s15")
        a("s_and_b32 s18, s3, 1")
        a("s_mul_i32 s18, s18, 18432")
        a("s_add_u32 s17, s17, s18")
        a(f"s_add_u32 s19, s16, {XIN}")
        a(f"s_add_u32 s20, s17, {XIN}")
        a(f"buffer_load_dwordx4 {vr(RES,4)}, v3, s[4:7], s19 offen sc1")
        a(f"buffer_load_dwordx4 {vr(RES+4,4)}, v15, s[4:7], s19 offen sc1")
        a(f"buffer_load_dwordx2 {vr(RES+8,2)}, v3, s[4:7], s20 offen sc1")
        a("s_mul_i32 s21, s3, 9216")
        a("s_add_u32 s22, s15, s21")
        a(f"s_add_u32 s22, s22, {OUT}")
        a(f"s_add_u32 s21, s21, {OL}")
        a(f"v_add_u32 v9, {OL}, v3")
        a("v_add_u32 v10, s18, v9")
    sync(16, p2_prefetch, wts=LATE)
    ts()
    a("s_mov_b32 m0, s21")
    for i in range(9):
        a(f"buffer_load_dwordx4 v3, s[4:7], s22 offen offset:{(i%3)*1024} sc1 lds")
        if i % 3 == 2 and i < 8:
            a("s_add_u32 s22, s22, 3072")
            a("s_add_u32 m0, m0, 3072")
    for n in range(2):
        for mh in range(2):
            ac = PA + (2 * mh + n) * 4; r = RES + 4 * n + 2 * mh
            a(f"v_lshlrev_b32 v{ac}, 16, v{r}")
            a(f"v_and_b32 v{ac+1}, 0xffff0000, v{r}")
            a(f"v_lshlrev_b32 v{ac+2}, 16, v{r+1}")
            a(f"v_and_b32 v{ac+3}, 0xffff0000, v{r+1}")
    a(f"v_lshlrev_b32 v{PA+16}, 16, v{RES+8}")
    a(f"v_and_b32 v{PA+17}, 0xffff0000, v{RES+8}")
    a(f"v_lshlrev_b32 v{PA+18}, 16, v{RES+9}")
    a(f"v_and_b32 v{PA+19}, 0xffff0000, v{RES+9}")
    a(f"s_add_u32 s19, s16, {X1}")
    a(f"s_add_u32 s20, s17, {X1}")
    a("s_cmp_ge_u32 s3, 2")
    a(f"s_cselect_b32 s20, {OOB}, s20")
    a("s_cmp_eq_u32 s3, 0")
    a("s_cselect_b32 s23, 1.0, 0")
    a("s_cmp_eq_u32 s3, 1")
    a("s_cselect_b32 s24, 1.0, 0")
    a("s_lshl_b32 s25, s3, 10")
    a(f"s_add_u32 s25, s25, {EX}")
    a("v_add_u32 v11, s25, v3")
    a("s_lshl_b32 s25, s3, 2")
    a(f"s_add_u32 s25, s25, {EX}")
    a("v_add_u32 v12, s25, v3")
    a("s_lshl_b32 s25, s13, 9")
    a("s_lshl_b32 s26, s40, 3")
    a("s_add_u32 s25, s25, s26")
    a("s_lshr_b32 s26, s3, 1")
    a("s_lshl_b32 s26, s26, 9")
    a("s_add_u32 s25, s25, s26")
    a("s_and_b32 s26, s3, 1")
    a("s_lshl_b32 s26, s26, 2")
    a("s_add_u32 s25, s25, s26")
    a(f"s_add_u32 s25, s25, {ST1}")
    a("v_lshlrev_b32 v13, 5, v4")
    a("s_waitcnt vmcnt(0)")
    a("s_barrier")
    NB = 4

    def rd2(ks):
        b = PBB + 12 * (ks % NB)
        a(f"ds_read_b128 {vr(b,4)}, v9 offset:{ks*1024}"); lg.issue(("b", ks))
        a(f"ds_read_b128 {vr(b+4,4)}, v9 offset:{18432+ks*1024}"); lg.issue(("b", ks))
        a(f"ds_read_b128 {vr(b+8,4)}, v10 offset:{ks*1024}"); lg.issue(("b", ks))
    for ks in range(NB - 1):
        rd2(ks)
    for ks in range(18):
        if ks + NB - 1 < 18:
            rd2(ks + NB - 1)
        lg.wait(("b", ks))
        b = PBB + 12 * (ks % NB)
        for mh in range(2):
            for n in range(2):
                acc = vr(PA + (2 * mh + n) * 4, 4)
                a(f"v_mfma_f32_16x16x32_bf16 {acc}, {ar((mh*18+ks)*4,4)}, {vr(b+4*n,4)}, {acc}")
        acc = vr(PA + 16, 4)
        a(f"v_mfma_f32_16x16x32_bf16 {acc}, {ar((36+ks)*4,4)}, {vr(b+8,4)}, {acc}")
        for _ in range((NW2 * (ks + 1)) // 18 - (NW2 * ks) // 18):
            WPRE.pop(0)()
    O2 = 100
    for n in range(2):
        for mh in range(2):
            ac = PA + (2 * mh + n) * 4
            a(f"v_cvt_pk_bf16_f32 v{O2+4*n+2*mh}, v{ac}, v{ac+1}")
            a(f"v_cvt_pk_bf16_f32 v{O2+4*n+2*mh+1}, v{ac+2}, v{ac+3}")
        a(f"buffer_store_dwordx4 {vr(O2+4*n,4)}, {'v15' if n else 'v3'}, s[4:7], s19 offen sc1")
    a(f"v_cvt_pk_bf16_f32 v{O2+8}, v{PA+16}, v{PA+17}")
    a(f"v_cvt_pk_bf16_f32 v{O2+9}, v{PA+18}, v{PA+19}")
    a(f"buffer_store_dwordx2 {vr(O2+8,2)}, v3, s[4:7], s20 offen sc1")
    SS = 112

    def sumsq(dst, regs):
        a(f"v_add_f32 v{dst}, v{regs[0]}, v{regs[1]}")
        a(f"v_mul_f32 v{dst+1}, v{regs[0]}, v{regs[0]}")
        a(f"v_fmac_f32 v{dst+1}, v{regs[1]}, v{regs[1]}")
        for r in regs[2:]:
            a(f"v_add_f32 v{dst}, v{dst}, v{r}")
            a(f"v_fmac_f32 v{dst+1}, v{r}, v{r}")
    for n in range(2):
        sumsq(SS + 2 * n, [PA + (2 * mh + n) * 4 + i for mh in range(2) for i in range(4)])
    sumsq(SS + 4, [PA + 16 + i for i in range(4)])
    for n in range(2):
        a(f"v_fmac_f32 v{SS+2*n}, s{23+n}, v{SS+4}")
        a(f"v_fmac_f32 v{SS+2*n+1}, s{23+n}, v{SS+5}")
    a(f"ds_write_b128 v11, {vr(SS,4)}")
    a("s_waitcnt lgkmcnt(0)")
    a("s_barrier")
    for w in range(4):
        a(f"ds_read_b32 v{SS+8+w}, v12 offset:{w*1024}")
    a("s_waitcnt lgkmcnt(0)")
    a(f"v_add_f32 v{SS+8}, v{SS+8}, v{SS+9}")
    a(f"v_add_f32 v{SS+10}, v{SS+10}, v{SS+11}")
    a(f"v_add_f32 v{SS+8}, v{SS+8}, v{SS+10}")
    xg_reduce(a, "v_add_f32", SS + 8, SS + 9)
    a(f"buffer_store_dword v{SS+8}, v13, s[4:7], s25 offen sc1")
    ts()

    BUD = float(OPT.get("p3bud", 7))
    NAB = int(OPT.get("nab", 13)); RA = NAB - 2; NSL = 6 if NAB <= 9 else 5
    WE = int(OPT.get("we", 3))
    N0 = int(OPT.get("p3n0", 12))
    PACE0 = int(OPT.get("p3pace0", 1)); PACE1 = int(OPT.get("p3pace1", 3))
    DFLAG = int(OPT.get("p3dflag", 45)); DPOLL = int(OPT.get("p3dpoll", 35)); DCHK = int(OPT.get("p3dchk", 40))
    K1, K3, RI, PV = 8, 10, 12, 14
    T = 16; AB3 = 32; AC1 = 164 - 16 * NSL; HO = 164; OST = 236; BX = 244
    assert AB3 + 4 * NAB <= AC1
    HP = 144

    def p3_prefetch():
        while WPRE:
            WPRE.pop(0)()
        a("v_add_u32 v4, 0x10000, v3")
        a("v_add_u32 v5, 0x20000, v3")
        a("v_mov_b32 v7, v6")
        a("v_add_u32 v6, 18432, v3")
        a("s_lshl_b32 s16, s8, 3")
        a("s_lshl_b32 s17, s3, 1")
        a("s_add_u32 s16, s16, s17")
        a("s_mul_i32 s17, s16, 18432")
        a(f"s_add_u32 s18, s17, {X1}")
        a("s_lshl_b32 s21, s16, 9")
        a(f"s_add_u32 s21, s21, {ST1}")
        a("s_lshl_b32 s22, s8, 4")
        a("s_add_u32 s22, s22, s9")
        a("s_lshl_b32 s22, s22, 2")
        a("s_add_u32 s22, s22, s3")
        a("s_xor_b32 s23, s22, 4")
        a("s_mul_i32 s24, s22, 18432")
        a(f"s_add_u32 s24, s24, {HX}")
        a("s_mul_i32 s25, s23, 18432")
        a(f"s_add_u32 s25, s25, {HX}")
        a("s_lshl_b32 s26, s22, 4")
        a(f"s_add_u32 s26, s26, {FL}")
        a("s_lshl_b32 s27, s23, 4")
        a(f"s_add_u32 s27, s27, {FL}")
        a("s_lshr_b32 s28, s9, 1")
        a(f"s_mul_i32 s28, s28, {XT}")
        a("s_add_u32 s28, s28, s17")
        a("s_and_b32 s29, s9, 1")
        a("s_mul_i32 s29, s29, 9216")
        a("s_add_u32 s28, s28, s29")
        a(f"s_add_u32 s28, s28, {PART}")
        a("s_lshl_b32 s50, s3, 11")
        a(f"s_mul_i32 s51, s9, {18*7168}")
        a("s_add_u32 s51, s51, s50")
        a(f"s_add_u32 s51, s51, {L['WQ']}")
        a("s_cmp_lg_u32 s59, 0")
        a(f"s_cselect_b32 s51, {OOB}, s51")
        a("s_cmp_eq_u32 s3, 3")
        a("s_cselect_b32 s56, 0, 1024")
        a("s_add_u32 s52, s51, s56")
        a("s_add_u32 s53, s50, s56")
    sync(32, p3_prefetch)
    ts()
    for n in range(2):
        a(f"buffer_load_dwordx2 {vr(T+2*n,2)}, v7, s[4:7], s21 offen offset:{n*512} sc1"); vm.issue("st")

    U = []
    for k in range(19):
        for t in range(G0):
            for mh in range(2):
                U.append(("p1", t, k, mh))
    for t in range(G0, 9):
        for k in range(19):
            for mh in range(2):
                U.append(("p1", t, k, mh))
    for hk in range(KO):
        for dt in range(9):
            for mh in range(2):
                U.append(("p2", dt, hk, mh))
    for dt in range(9):
        for hk in range(KO, 18):
            for mh in range(2):
                U.append(("p2", dt, hk, mh))
    NU = len(U)

    def mfma3(i, n):
        kind, t, k, mh = U[i]
        if kind == "p1":
            acc = vr(AC1 + 16 * (t % NSL) + (2 * mh + n) * 4, 4)
            b = ar((18 * n + k) * 4, 4) if k < 18 else vr(BX + 4 * n, 4)
        else:
            acc = ar(16 * t + (2 * mh + n) * 4, 4)
            b = vr(HO + (2 * k + n) * 4, 4) if k < 9 else ar(HP + (2 * (k - 9) + n) * 4, 4)
        a(f"v_mfma_f32_16x16x32_bf16 {acc}, {vr(AB3+4*(i%NAB),4)}, {b}, {'0' if k == 0 else acc}")

    def mk_y(k, n):
        def fn():
            if k % 4 == 0 and k and n == 0:
                a("s_add_u32 s18, s18, 4096")
            a(f"buffer_load_dwordx4 {ar((18*n+k)*4,4)}, {'v6' if n else 'v3'}, s[4:7], s18 offen offset:{(k%4)*1024} sc1"); vm.issue(("y", k))
        return fn
    LQ = []
    for c in range(NPRE, NCH):
        for i in range(PW):
            LQ.append((CF * c - RA - 0.5 + i * 0.01, c - (NS - 2) if c >= NS else -1, 1, mk_w(c, i), "w"))
    for k in range(18):
        for n in range(2):
            LQ.append((k * G0 * 2 - 0.1 + n * 0.01, -1, 1, mk_y(k, n), "y"))
    def mk_q(slot, i):
        ks = 3 * slot + i // 2; e = i % 2

        def fn():
            a(f"s_add_u32 m0, s{50 if e == 0 else 53}, {ks*8192}")
            a(f"s_add_u32 s56, s{51 if e == 0 else 52}, {ks*7168}")
            a("buffer_load_dwordx4 v3, s[4:7], s56 offen lds"); vm.issue("wq")
        return fn
    assert CF == 24
    qslots = []
    for c in range(NCH, NCH + 4):
        qslots.append(c % NS)
        for i in range(6):
            LQ.append((1000 + c + i * 0.01, c - (NS - 2), 1, mk_q(c % NS, i), "q"))
    LQ.sort(key=lambda x: x[0])
    ny_left = [36]

    def lq_issue():
        it = LQ.pop(0)
        it[3]()
        if it[4] == "y":
            ny_left[0] -= 1
        return it[2]

    for _ in range(N0):
        lq_issue()

    def dsread(f):
        off = (f % 144) * 1024
        base = "v3" if off < 65536 else ("v4" if off < 131072 else "v5")
        a(f"ds_read_b128 {vr(AB3+4*(f%NAB),4)}, {base} offset:{off % 65536}"); lg.issue(("a", f))
    for f in range(RA):
        dsread(f)

    kk = math.sqrt(2.0 / math.pi)
    C1 = -2.0 * kk * LOG2E
    C3 = C1 * 0.044715
    EV = {}
    cur = [0]

    def ev(g, cost, fn):
        EV.setdefault(g, []).append((cost, fn))

    def mk(text):
        return lambda: a(text)

    class Rec:
        def __init__(self): self.l = []
        def __call__(self, t): self.l.append(t)
    rec = Rec()
    rec("v_mov_b32 v7, 0")
    for b in range(3):
        rec(f"v_mov_b32 v{OST+b}, {b+1}")
    for sw in ("v_permlane16_swap_b32", "v_permlane32_swap_b32"):
        for r in range(4):
            rec(f"v_mov_b32 v{T+4+r}, v{T+r}")
        for r in range(4):
            rec(f"{sw} v{T+r}, v{T+4+r}")
        for r in range(4):
            rec(f"v_add_f32 v{T+r}, v{T+r}, v{T+4+r}")
    for n in range(2):
        m = T + 2 * n; r = T + 8 + n; t = T + 4 + n; bx = BX + 4 * n
        stats_finish(rec, m, m + 1, r, T + 10 + n, t, True)
        rec(f"v_rcp_f32 v{RI+n}, v{r}")
        rec(f"v_mul_f32 v{K1+n}, {f32(C1)}, v{r}")
        rec(f"v_mul_f32 v{K3+n}, v{r}, v{r}")
        rec(f"v_mul_f32 v{K3+n}, v{K3+n}, v{r}")
        rec(f"v_mul_f32 v{K3+n}, {f32(C3)}, v{K3+n}")
        rec(f"v_cvt_pk_bf16_f32 v{t}, v{RI+n}, v{RI+n}")
        rec(f"v_and_b32 v{t}, 0xffff0000, v{t}")
        rec(f"v_sub_f32 v{t}, v{RI+n}, v{t}")
        rec(f"v_cvt_pk_bf16_f32 v{bx}, v{RI+n}, v{t}")
        rec(f"v_sub_f32 v{m}, 0, v{m}")
        rec(f"v_cvt_pk_bf16_f32 v{bx+1}, v{m}, v{m}")
        rec(f"v_and_b32 v{t}, 0xffff0000, v{bx+1}")
        rec(f"v_sub_f32 v{t}, v{m}, v{t}")
        rec(f"v_cvt_pk_bf16_f32 v{bx+2}, v{t}, v7")
        rec(f"v_mov_b32 v{bx+3}, 0")
    VQ = [(0, 1, mk(t), None) for t in rec.l]
    VQ[-1] = (0, 1, VQ[-1][2], ("bx",))

    hl_done = set()
    MQ = []

    def defer(fn):
        return lambda: MQ.append(fn)

    def mk_hstore(q):
        def fn():
            if q % 4 == 0 and q:
                a("s_add_u32 s24, s24, 4096")
            a(f"buffer_store_dwordx4 {vr(HO+4*q,4)}, v3, s[4:7], s24 offen offset:{(q%4)*1024} sc1"); vm.issue(("hs", q))
            if q % 6 == 5:
                b = q // 6
                g = cur[0] + DFLAG
                ev(g, 2, lambda: flag_store(b))
                ev(g + DPOLL, 2, lambda: poll_issue(b))
                ev(g + DPOLL + DCHK, 4, lambda: poll_check(b))
        return fn

    def flag_store(b):
        vm.wait(("hs", 6 * b + 5))
        a("s_mov_b64 exec, 1")
        a(f"buffer_store_dword v{OST+b}, v7, s[4:7], s26 offen sc1"); vm.issue("fs")
        a("s_mov_b64 exec, -1")

    def poll_issue(b):
        a("s_mov_b64 exec, 1")
        a(f"buffer_load_dword v2, v7, s[4:7], s27 offen sc1"); vm.issue(("pl", b))
        a("s_mov_b64 exec, -1")

    def poll_check(b):
        vm.wait(("pl", b))
        a("v_readfirstlane_b32 s30, v2")
        a(f"s_cmp_gt_u32 s30, {b}")
        a.nf(f"s_cbranch_scc0 {name}_w{b}")
        a.label(f"{name}_r{b}", safe=False)
        slowcode.append(b)
        for i in range(6):
            ev(cur[0] + 1 + 2 * i, 1, mk_hload(6 * b + i))

    def mk_hload(q):
        def fn():
            if q % 4 == 0 and q:
                a("s_add_u32 s25, s25, 4096")
            a(f"buffer_load_dwordx4 {ar(HP+4*q,4)}, v3, s[4:7], s25 offen offset:{(q%4)*1024} sc1"); vm.issue(("hl", q))
            hl_done.add(q)
        return fn

    SK = 2.5
    gel = []

    def add_gelu(t, ready):
        ac = AC1 + 16 * (t % NSL)
        for v in range(16):
            n = v // 8; mh = (v // 4) % 2; i = v % 4
            x = ac + (2 * mh + n) * 4 + i; tm = T + v
            ops = [(1, f"v_mul_f32 v{tm}, v{x}, v{x}"), (1, f"v_fma_f32 v{tm}, v{tm}, v{K3+n}, v{K1+n}"), (1, f"v_mul_f32 v{tm}, v{tm}, v{x}"),
                   (2, f"v_exp_f32 v{tm}, v{tm}"), (1, f"v_fma_f32 v{tm}, v{tm}, v{RI+n}, v{RI+n}"), (2, f"v_rcp_f32 v{tm}, v{tm}"),
                   (1, f"v_mul_f32 v{x}, v{x}, v{tm}")]
            for st, (c, tx) in enumerate(ops):
                gel.append((16 * t + v + st * SK, ready, c, mk(tx), None))
            if v % 2 == 1:
                gel.append((16 * t + v + 6 * SK + 1.2, ready, 1, mk(f"v_cvt_pk_bf16_f32 v{HO+8*t+v//2}, v{x-1}, v{x}"), None))
            if v % 8 == 7:
                q = 2 * t + n
                gel.append((16 * t + v + 6 * SK + 1.3, ready, 0, defer(mk_hstore(q)), ("h", q)))
    last_idx = {}
    for i, u in enumerate(U):
        last_idx[u[:2]] = i
    for t in range(9):
        add_gelu(t, last_idx[("p1", t)] + 2)
    gel.sort(key=lambda x: x[0])
    VQ += [(g[1], g[2], g[3], g[4]) for g in gel]
    for dt in range(9):
        rdy = last_idx[("p2", dt)] + 2
        for n in range(2):
            o = AC1 + ((2 * dt + n) % 8) * 4
            for mh in range(2):
                for i in range(4):
                    VQ.append((rdy, 1, mk(f"v_accvgpr_read_b32 v{T+8*n+4*mh+i}, a{16*dt+(2*mh+n)*4+i}"), None))
            for e in range(4):
                VQ.append((rdy, 1, mk(f"v_cvt_pk_bf16_f32 v{o+e}, v{T+8*n+2*e}, v{T+8*n+2*e+1}"), None))

            def st(n=n, o=o, dt=dt):
                if dt % 4 == 0 and dt and n == 0:
                    a("s_add_u32 s28, s28, 4096")
                a(f"buffer_store_dwordx4 {vr(o,4)}, {'v6' if n else 'v3'}, s[4:7], s28 offen offset:{(dt%4)*1024} sc1"); vm.issue("po")
            VQ.append((rdy, 0, defer(st), None))
    done_tags = set()

    def vq_pop():
        it = VQ.pop(0)
        assert it[0] - 2 < cur[0] + (1 if cur[0] == NU - 1 else 0), (it[0], cur[0])
        it[2]()
        if it[3]:
            done_tags.add(it[3])
        return it[1]

    bar_done = [0]

    def chunk_barrier(c):
        while LQ and LQ[0][0] <= CF * c - RA:
            lq_issue()
        bar_done[0] = c
        if c < NPRE and c < 2:
            return
        vm.wait(("w", c))
        if "nobar" not in OPT:
            a("s_barrier")

    TSA = int(OPT.get('tsa', 38 * G0)); TSB = int(OPT.get('tsb', 342))
    last_lq = -10
    forced = 0
    GAP = float(OPT.get("gap", 11))
    credit = [0.0]

    def prereq(i):
        nonlocal forced
        kind, t, k, mh = U[i]
        if kind == "p1" and t == 0 and mh == 0 and k < 18:
            while LQ and LQ[0][0] <= i:
                lq_issue()
            vm.wait(("y", k))
        if kind == "p2" and k >= 9:
            q = 2 * (k - 9) + 1
            while q not in hl_done:
                while MQ:
                    MQ.pop(0)()
                g = min(EV)
                for c, fn in EV.pop(g):
                    fn()
                forced += 1000
            vm.wait(("hl", q))
        if i % WE == 0:
            lg.wait(("a", min(i + WE - 1, NU - 1)))

    def force_valu(i):
        nonlocal forced
        kind, t, k, mh = U[i]
        need = []
        if kind == "p1" and k == 18:
            need.append(("bx",))
        if kind == "p2" and k < 9:
            need.append(("h", 2 * k + 1))
        if kind == "p1" and k == 0 and t >= NSL:
            need.append(("h", 2 * (t - NSL) + 1))
        for tg in need:
            while tg not in done_tags:
                vq_pop(); forced += 1

    def fill(i, used):
        credit[0] = min(credit[0] + GAP - used, 8.0 + GAP - used)
        lo = 8 - used
        while VQ and VQ[0][0] <= i:
            c = VQ[0][1] * 4
            if c <= credit[0] or c <= lo or c == 0:
                vq_pop(); credit[0] -= c; lo -= c
            else:
                break
        if not (VQ and VQ[0][0] <= i):
            credit[0] = 0.0

    prereq(0)
    for i in range(NU):
        cur[0] = i
        force_valu(i)
        if ts.on and i in (TSA, TSB):
            ts(); lg.q = []
        mfma3(i, 0)
        used = 0
        evs = EV.pop(i, [])
        pace = PACE0 if ny_left[0] else PACE1
        if evs:
            for c, fn in evs:
                fn(); used += 4 * c
        elif MQ:
            MQ.pop(0)(); used += 4
        elif LQ and LQ[0][1] <= bar_done[0] and i - last_lq >= pace:
            lq_issue(); last_lq = i; used += 4
        fill(i, used)
        mfma3(i, 1)
        used = 0
        if i + 1 < NU:
            prereq(i + 1)
        if i + RA < NU:
            if (i + RA) % CF == 0:
                chunk_barrier((i + RA) // CF)
            dsread(i + RA); used += 4
        fill(i, used)
    assert not EV, EV.keys()
    while VQ or MQ:
        if MQ:
            MQ.pop(0)()
        else:
            vq_pop()
    qleft = [it[3] for it in LQ] + [mk_q(sl, i) for sl in range(NS) if sl not in qslots for i in range(6)]
    print("wq loads left:", len(qleft), file=sys.stderr)
    print("p3 forced:", forced, file=sys.stderr)
    ts()

    P4P = 64; P4A = 16; P4X = 160; P4B = 172

    def p4_prefetch():
        a("s_load_dwordx4 s[36:39], s[0:1], 56")
        a("v_and_b32 v4, 15, v1")
        a("v_lshrrev_b32 v5, 4, v1")
        a("s_lshl_b32 s12, s8, 4")
        a("s_add_u32 s12, s12, s9")
        a("s_mul_i32 s12, s12, 9")
        a("s_add_u32 s12, s12, s3")
        a("s_lshl_b32 s12, s12, 10")
        a("s_add_u32 s13, s12, 4096")
        a("s_add_u32 s14, s12, 8192")
        a("s_cmp_lg_u32 s3, 0")
        a(f"s_cselect_b32 s14, {OOB}, s14")
        a("s_and_b32 s15, s9, 1")
        a("s_mul_i32 s16, s15, 9")
        a("s_add_u32 s16, s16, s3")
        a("s_lshl_b32 s16, s16, 6")
        a("s_add_u32 s17, s16, 512")
        a("s_cmp_lg_u32 s3, 0")
        a(f"s_cselect_b32 s17, {OOB}, s17")
        a("v_lshlrev_b32 v6, 3, v5")
        for i in range(3):
            a(f"s_add_u32 s18, s{12+i}, {X1}")
            a(f"buffer_load_dwordx4 {vr(P4X+4*i,4)}, v3, s[4:7], s18 offen sc1")
        a("s_waitcnt lgkmcnt(0)")
        srd(a, 40, 36, D * 2)
        for i in range(3):
            so, off = ("s16", 256 * i) if i < 2 else ("s17", 0)
            a(f"buffer_load_dwordx2 {vr(P4B+4*i,2)}, v6, s[40:43], {so} offen offset:{off}")
            a(f"buffer_load_dwordx2 {vr(P4B+4*i+2,2)}, v6, s[40:43], {so} offen offset:{off+32}")
        for i in range(3):
            a(f"s_add_u32 s{20+i}, s{12+i}, {PART}")
    sync(48, p4_prefetch)
    ts()
    for s in range(8):
        for i in range(3):
            a(f"buffer_load_dwordx4 {vr(P4P+12*s+4*i,4)}, v3, s[4:7], s{20+i} offen sc1"); vm.issue(("p", s))
            if s < 7:
                a(f"s_add_u32 s{20+i}, s{20+i}, {XT}")
    a("v_mov_b32 v6, 0x00003f80")
    a("v_mov_b32 v7, 0x3f800000")
    for i in range(3):
        for j in range(4):
            a(f"v_lshlrev_b32 v{P4A+8*i+2*j}, 16, v{P4B+4*i+j}")
            a(f"v_and_b32 v{P4A+8*i+2*j+1}, 0xffff0000, v{P4B+4*i+j}")

    def acc4(src):
        for i in range(3):
            for j in range(4):
                a(f"v_dot2c_f32_bf16 v{P4A+8*i+2*j}, v{src+4*i+j}, v6")
                a(f"v_dot2c_f32_bf16 v{P4A+8*i+2*j+1}, v{src+4*i+j}, v7")
    acc4(P4X)
    for s in range(8):
        vm.wait(("p", s))
        acc4(P4P + 12 * s)
    O4 = 40
    for i in range(3):
        for j in range(4):
            a(f"v_cvt_pk_bf16_f32 v{O4+4*i+j}, v{P4A+8*i+2*j}, v{P4A+8*i+2*j+1}")
    a("s_cmp_lg_u32 s59, 0" if "tsl0" not in OPT else "s_cmp_eq_u32 s59, 0")
    a(f"s_cbranch_scc1 {name}_fin")
    for i in range(3):
        a(f"s_add_u32 s18, s{12+i}, {XIN + LSTR}")
        a(f"buffer_store_dwordx4 {vr(O4+4*i,4)}, v3, s[4:7], s18 offen sc1")
    sumsq(56, [P4A + j for j in range(12)])
    sumsq(58, [P4A + 12 + j for j in range(12)])
    a("v_add_f32 v56, v56, v58")
    a("v_add_f32 v57, v57, v59")
    a("v_lshlrev_b32 v58, 3, v0")
    a(f"v_add_u32 v58, {EX}, v58")
    a("ds_write_b64 v58, v[56:57]")
    a("v_lshlrev_b32 v58, 3, v1")
    a(f"v_add_u32 v58, {EX}, v58")
    a("v_lshlrev_b32 v59, 5, v4")
    a("v_lshrrev_b32 v60, 1, v5")
    a("v_lshl_add_u32 v59, v60, 3, v59")
    a("s_lshl_b32 s20, s8, 3")
    a("s_lshr_b32 s21, s9, 1")
    a("s_add_u32 s20, s20, s21")
    a("s_lshl_b32 s20, s20, 9")
    a("s_lshl_b32 s21, s15, 4")
    a("s_add_u32 s20, s20, s21")
    a(f"s_add_u32 s20, s20, {STI + LSTR}")
    a("s_cmp_lg_u32 s3, 0")
    a(f"s_cselect_b32 s20, {OOB}, s20")
    a("s_waitcnt lgkmcnt(0)")
    a("s_barrier")
    for w in range(4):
        a(f"ds_read_b64 {vr(64+2*w,2)}, v58 offset:{w*512}")
    a("s_waitcnt lgkmcnt(0)")
    for i in range(2):
        a(f"v_add_f32 v{64+i}, v{64+i}, v{66+i}")
        a(f"v_add_f32 v{68+i}, v{68+i}, v{70+i}")
    for i in range(2):
        a(f"v_add_f32 v{64+i}, v{64+i}, v{68+i}")
    a("v_mov_b32 v66, v64")
    a("v_mov_b32 v67, v65")
    a("v_permlane16_swap_b32 v64, v66")
    a("v_permlane16_swap_b32 v65, v67")
    a("v_add_f32 v64, v64, v66")
    a("v_add_f32 v65, v65, v67")
    a("buffer_store_dwordx2 v[64:65], v59, s[4:7], s20 offen sc1")
    ts()

    def p1b_prefetch():
        for fn in qleft:
            fn()
        a(f"s_mov_b32 s59, {LSTR}")
        p1_setup()
        p1_consts()
        a("s_lshl_b32 s24, s3, 13")
        a("s_add_u32 s24, s24, 7168")
        a("s_lshl_b32 s21, s3, 10")
        a("s_add_u32 s22, s22, s21")
        a("s_mov_b32 s44, 0xfffefffe")
        a("s_mov_b32 s45, 0xfffefffe")
    sync(64, p1b_prefetch, prev=True)
    ts()
    a(f"s_add_u32 s4, s4, {LSTR}")
    a("s_addc_u32 s5, s5, 0")
    p1_stats_load()
    for grp in xloads(0):
        do_load(grp, 0)
    a("s_mov_b64 exec, s[44:45]")
    for j in range(5):
        if j == 4:
            a("s_cmp_ge_u32 s3, 2")
            a(f"s_cselect_b32 s22, {OOB}, s22")
        a("s_mov_b32 m0, s24")
        a("buffer_load_dwordx4 v3, s[4:7], s22 offen sc1 lds"); vm.issue("halo")
        a("s_add_u32 s22, s22, 4096")
        a("s_add_u32 s24, s24, 32768")
    a("s_mov_b64 exec, -1")
    PFB = int(OPT.get("p1pfb", 6))
    for ks in range(1, 3):
        for grp in xloads(ks):
            do_load(grp, ks)
    p1_stats_math()
    for ks in range(3, PFB):
        for grp in xloads(ks):
            do_load(grp, ks)
    vm.wait("halo")
    a("s_waitcnt lgkmcnt(0)")
    a("s_barrier")
    if ts.on:
        ts.n = 2
        ts()
    p1_loop(xloads, PFB, 0)
    a(f"s_branch {name}_epi")

    a.label(f"{name}_fin")
    srd(a, 40, 38, XT)
    a("v_mul_u32_u24 v6, 1152, v4")
    a("v_lshl_add_u32 v6, v5, 3, v6")
    a("s_lshl_b32 s20, s8, 3")
    a("s_lshr_b32 s21, s9, 1")
    a("s_add_u32 s20, s20, s21")
    a("s_mul_i32 s20, s20, 18432")
    a("s_add_u32 s21, s20, s17")
    a("s_add_u32 s20, s20, s16")
    for i in range(3):
        so, off = ("s20", 256 * i) if i < 2 else ("s21", 0)
        a(f"buffer_store_dwordx2 {vr(O4+4*i,2)}, v6, s[40:43], {so} offen offset:{off}")
        a(f"buffer_store_dwordx2 {vr(O4+4*i+2,2)}, v6, s[40:43], {so} offen offset:{off+32}")
    if ts.on:
        ts.n = 14
        a("s_waitcnt vmcnt(0)")
        ts(); ts(True)
        ts.store()
    a("s_endpgm")
    for b in slowcode:
        a.label(f"{name}_w{b}")
        a("s_add_u32 s57, s57, 1")
        a("s_cmp_gt_u32 s57, 0x40000")
        a(f"s_cbranch_scc1 {name}_r{b}")
        a("s_sleep 2")
        a(f"buffer_load_dword v2, v7, s[4:7], s27 offen sc1")
        a("s_waitcnt vmcnt(0)")
        a("v_readfirstlane_b32 s30, v2")
        a(f"s_cmp_gt_u32 s30, {b}")
        a(f"s_cbranch_scc0 {name}_w{b}")
        a(f"s_branch {name}_r{b}")
    a.label(f"{name}_end")
    a("s_endpgm")
    return name, a.text(), dict(vgpr=512, sgpr=102, accum=256), dict(grid=256, block=256, lds=163840)


def main():
    ks = [gen_p0(CODE0="main_kernel", CPN=8, zero=True, w12="late" not in OPT), gen_main()]
    ref = open(f"cdna_kernels/{NAME}.s.ref").read().split("\n")
    hdr = [ln for ln in ref if ln.startswith(";") and "@launch" not in ln and "Override launch" not in ln and "grid=ceil" not in ln]
    out = hdr[:]
    if "nop" in OPT:
        na = Asm()
        na.raw(".globl nop_kernel\n.p2align 8\n.type nop_kernel,@function\nnop_kernel:")
        na("s_endpgm")
        nk = ("nop_kernel", na.text(), dict(vgpr=8, sgpr=16, accum=8), dict(grid=8, block=64, lds=0))
        pos = OPT["nop"]
        seq = {"a": [nk] + ks, "b": [ks[0], nk, ks[1]], "c": ks + [nk], "d": [nk, nk, nk] + ks}[pos]
        for name, _, _, g in seq:
            out.append(f"; @launch kernel={name} grid=({g['grid']},1,1) block=({g['block']},1,1) lds={g['lds']}")
        ks = [nk] + ks
    for name, _, _, g in (ks if "nop" not in OPT else []):
        out.append(f"; @launch kernel={name} grid=({g['grid']},1,1) block=({g['block']},1,1) lds={g['lds']}")
    out.append('.amdgcn_target "amdgcn-amd-amdhsa--gfx950"')
    out.append(".text")
    for _, txt, _, _ in ks:
        out.append(txt)
    out.append("code_end:")
    out.append("    s_endpgm")
    out.append('.section .rodata,"a"')
    for name, _, kd, _ in ks:
        out.append(KD.format(name=name, **kd))
    path = sys.argv[1] if len(sys.argv) > 1 else f"cdna_kernels/{NAME}.s"
    open(path, "w").write("\n".join(out))
    json.dump(L, open("layout.json", "w"))
    print("written", path)


if __name__ == "__main__":
    main()
```

```python
import sys, json, math
from asmb import Asm, KD, vr, ar, sr
from gen import (OPT, NAME, S, D, F, XT, TILE, OOB, WS_BYTES, L, G0, KT, KO, NCHUNK, SLB, f32, Cnt, Stamps, srd,
                 xg_reduce, stats_finish, gen_p0, w12_roles)

LOG2E = math.log2(math.e)
EX = 147456
CQL = EX + 5 * 3072
CNT = 16384


def gen_main():
    name = "main_kernel"
    a = Asm()
    vm = Cnt(a, "vmcnt", 63); lg = Cnt(a, "lgkmcnt", 15)
    ts = Stamps(a, name)
    XIN = L["X0"]; STI = L["ST0"]; OUT = L["O0"]; X1 = L["X1_0"]; ST1 = L["ST1_0"]
    PART = L["PART0"]; HX = L["HX0"]; FL = L["FL0"]; LSTR = L["LSTR"]
    slowcode = []
    REUSE = "reuse" in OPT
    if REUSE:
        PART = L["PART1"]; HX = L["HX1"]

    a.raw(f".globl {name}\n.p2align 8\n.type {name},@function\n{name}:")
    a("s_cmp_ge_u32 s2, 256")
    a(f"s_cbranch_scc1 {name}_end")
    ts(True); ts()
    a("s_load_dwordx2 s[4:5], s[0:1], 80")
    a("s_mov_b32 s59, 0")
    a("s_mov_b32 s57, 0")
    a("v_and_b32 v1, 63, v0")
    a("v_lshrrev_b32 v2, 6, v0")
    a("v_readfirstlane_b32 s3, v2")
    a("v_lshlrev_b32 v3, 4, v1")
    a("s_and_b32 s12, s2, 7")
    a("s_lshr_b32 s13, s2, 3")
    a("s_lshr_b32 s8, s12, 2")
    a("s_lshl_b32 s8, s8, 3")
    a("s_lshr_b32 s14, s13, 2")
    a("s_add_u32 s8, s8, s14")
    a("s_and_b32 s9, s12, 3")
    a("s_lshl_b32 s9, s9, 2")
    a("s_and_b32 s14, s13, 3")
    a("s_add_u32 s9, s9, s14")
    a("s_lshl_b32 s10, s8, 7")
    a(f"s_add_u32 s10, s10, {FL + CNT}")
    a("s_sub_u32 s11, s10, 128")
    a("s_cmp_eq_u32 s8, 0")
    a("s_cselect_b32 s11, s10, s11")
    a("s_sub_u32 s12, s10, s11")
    a("v_mov_b32 v254, s12")
    a("v_cmp_eq_u32 vcc, 0, v1")
    a("v_cndmask_b32 v254, 0, v254, vcc")

    if "stag" in OPT:
        a(f"s_and_b32 s12, s8, {OPT.get('stagm', 4)}")
        a("s_cmp_eq_u32 s12, 0")
        a(f"s_cbranch_scc1 {name}_nostag")
        for _ in range(int(OPT["stag"])):
            a("s_sleep 36")
        a.label(f"{name}_nostag")
    LATE = "late" in OPT
    a("s_lshr_b32 s12, s9, 1")
    a("s_lshl_b32 s12, s12, 7")
    a(f"s_add_u32 s12, s12, {FL + CNT + 64 + 2048}")
    a("s_sub_u32 s12, s12, s11")
    a("v_writelane_b32 v254, s12, 2")
    a("s_waitcnt lgkmcnt(0)")
    a("s_and_b32 s5, s5, 0xffff")
    a(f"s_mov_b32 s6, {WS_BYTES}")
    a("s_mov_b32 s7, 0x00020000")
    if LATE:
        a("s_and_b32 s12, s8, 7")
        a("s_cmp_ge_u32 s12, 4")
        a("s_cselect_b32 s13, 1, 0")
        a("s_cmp_eq_u32 s8, 3")
        a("s_cselect_b32 s13, 1, s13")
        a("s_cmp_eq_u32 s13, 0")
        a(f"s_cbranch_scc1 {name}_early")
        a("s_load_dwordx4 s[24:27], s[0:1], 32")
        a("s_load_dwordx2 s[28:29], s[0:1], 48")
        a("s_sub_u32 s12, s8, 3")
        a("s_sub_u32 s13, s8, 7")
        a("s_cmp_ge_u32 s8, 8")
        a("s_cselect_b32 s12, s13, s12")
        a("s_lshl_b32 s31, s12, 4")
        a("s_add_u32 s31, s31, s9")
        a("v_and_b32 v4, 15, v1")
        a("v_lshrrev_b32 v5, 4, v1")
        a("v_lshrrev_b32 v6, 3, v1")
        a("v_and_b32 v7, 7, v1")
        a("v_lshrrev_b32 v11, 2, v1")
        a("v_lshlrev_b32 v11, 7, v11")
        a("v_and_b32 v12, 3, v1")
        a("v_lshl_add_u32 v11, v12, 3, v11")
        a("s_lshl_b32 s38, s3, 5")
        a("v_add_u32 v11, s38, v11")
        a("s_waitcnt lgkmcnt(0)")
        w12_roles(a, name, "s31", lambda: a(f"s_branch {name}_tiled"), lambda k: None, "nt")
        a.label(f"{name}_tiled")
        a("s_lshl_b32 s56, s56, 7")
        a(f"s_add_u32 s56, s56, {FL + CNT + 64 + 2048}")
        a("s_cmp_lg_u32 s3, 0")
        a(f"s_cselect_b32 s56, {OOB}, s56")
        a("v_mov_b32 v2, 1")
        a("v_mov_b32 v4, 0")
        a("s_waitcnt vmcnt(0)")
        a("s_barrier")
        a("s_mov_b64 exec, 1")
        a("buffer_atomic_add v2, v4, s[4:7], s56 offen")
        a("s_mov_b64 exec, -1")
        a.label(f"{name}_early")
    nsync = [0]

    def sync(target, prefetch=None, prev=False, wts=False):
        k = nsync[0]; nsync[0] += 1
        a("s_waitcnt vmcnt(0)")
        a("s_barrier")
        vm.q = []
        a("s_cmp_lg_u32 s3, 0")
        a(f"s_cbranch_scc1 {name}_sa{k}")
        a("v_mov_b32 v2, 1")
        a("s_mov_b64 exec, 1")
        a("buffer_atomic_add v2, v254, s[4:7], s11 offen")
        a("s_mov_b64 exec, -1")
        a.label(f"{name}_sa{k}")
        if prefetch:
            prefetch()
        a("s_cmp_lg_u32 s3, 0")
        a(f"s_cbranch_scc1 {name}_sb{k}")
        a(f"v_mov_b32 v2, {target}")
        if wts:
            a("s_cmp_eq_u32 s59, 0")
            a("s_cselect_b32 s58, 18, 0")
            a("v_writelane_b32 v2, s58, 2")
        a(f"s_mov_b64 exec, {3 if prev else (5 if wts else 1)}")
        PP = int(OPT.get("pp", 0))
        if PP:
            a("buffer_load_dword v252, v254, s[4:7], s11 offen sc1")
            a(f"s_sleep {PP}")
            a("buffer_load_dword v253, v254, s[4:7], s11 offen sc1")
        a.label(f"{name}_sp{k}")
        regs = ((255, 252), (252, 253), (253, 255)) if PP else ((252, 252),)
        for new, old in regs:
            if PP:
                a(f"s_sleep {PP}")
            a(f"buffer_load_dword v{new}, v254, s[4:7], s11 offen sc1")
            a(f"s_waitcnt vmcnt({2 if PP else 0})")
            a(f"v_cmp_gt_u32 vcc, v2, v{old}")
            a("s_nop 4")
            a(f"s_cbranch_vccz {name}_sq{k}")
        a("s_add_u32 s57, s57, 1")
        a("s_cmp_lt_u32 s57, 0x40000")
        a(f"s_cbranch_scc1 {name}_sp{k}")
        a.label(f"{name}_sq{k}")
        a("s_mov_b64 exec, -1")
        a(f"s_branch {name}_sc{k}")
        a.label(f"{name}_sb{k}")
        a("s_waitcnt vmcnt(0)")
        a.label(f"{name}_sc{k}")
        a("s_waitcnt lgkmcnt(0)")
        a("s_barrier")
        vm.q = []; lg.q = []

    ACC = 16; AB = 88
    RN = 168; RS = 176; CQN = 200; CQH = 220; CQS = 224
    MS = 228; MPA = 232; MPB = 236
    T0 = 200

    def p1_setup():
        a("v_and_b32 v4, 15, v1")
        a("v_lshrrev_b32 v5, 4, v1")
        a("s_lshl_b32 s16, s8, 3")
        a("s_lshl_b32 s17, s3, 1")
        a("s_add_u32 s17, s17, s16")
        a("s_mul_i32 s18, s17, 18432")
        a(f"s_add_u32 s18, s18, {XIN}")
        a("s_mul_i32 s22, s16, 18432")
        a(f"s_add_u32 s22, s22, {XIN - 18432}")
        a("s_cmp_eq_u32 s8, 0")
        a(f"s_cselect_b32 s22, {OOB}, s22")
        a("s_lshl_b32 s25, s17, 9")
        a(f"s_add_u32 s25, s25, {STI}")
        a("s_lshl_b32 s26, s16, 9")
        a(f"s_add_u32 s26, s26, {STI - 512}")
        a("s_cmp_eq_u32 s8, 0")
        a(f"s_cselect_b32 s26, {OOB}, s26")
        a("s_lshl_b32 s27, s3, 2")
        a("s_lshr_b32 s28, 0x1654, s27")
        a("s_and_b32 s28, s28, 15")
        a("s_lshr_b32 s27, 0x0632, s27")
        a("s_and_b32 s27, s27, 15")
        a("v_lshlrev_b32 v6, 5, v4")
        a("v_lshl_add_u32 v6, v5, 3, v6")
        a("v_lshlrev_b32 v7, 4, v5")
        a("v_lshlrev_b32 v8, 2, v4")
        a("v_add_u32 v15, 18432, v3")

    def p1_consts():
        a("v_min_u32 v12, 71, v0")
        a("v_lshrrev_b32 v13, 2, v12")
        a("v_lshlrev_b32 v13, 13, v13")
        a("v_and_b32 v12, 3, v12")
        a("v_lshl_add_u32 v13, v12, 8, v13")
        for i in range(4):
            a(f"v_mov_b32 v{ACC+i}, 0x3f803f80")
        a(f"ds_write_b128 v13, {vr(ACC,4)} offset:7168")
        a("v_mov_b32 v9, v3")
        a("s_lshl_b32 s32, s27, 10")
        a("v_add_u32 v10, s32, v3")
        a("s_lshl_b32 s32, s28, 10")
        a("v_add_u32 v11, s32, v3")
        a(f"v_mov_b32 v12, {f32(-1e30)}")
        a("v_lshlrev_b32 v13, 2, v5")
        a("v_sub_u32 v13, v4, v13")
        a("s_cmp_eq_u32 s17, 0")
        a("s_cselect_b32 s33, -100, -2")
        for i in range(4):
            a(f"v_subrev_u32 v14, {i}, v13")
            a("v_and_b32 v2, 1, v14")
            a("v_cmp_eq_u32 s[34:35], 0, v2")
            a("v_cmp_le_i32 vcc, 0, v14")
            a("s_and_b64 vcc, vcc, s[34:35]")
            a(f"v_cndmask_b32 v{MS+i}, v12, 0, vcc")
            a("v_cmp_ge_i32 vcc, -2, v14")
            a("s_and_b64 vcc, vcc, s[34:35]")
            a(f"v_cndmask_b32 v{MPB+i}, v12, 0, vcc")
            a("v_cmp_ge_i32 vcc, s33, v14")
            a("s_and_b64 vcc, vcc, s[34:35]")
            a(f"v_cndmask_b32 v{MPA+i}, v12, 0, vcc")
        a("s_mul_i32 s32, s3, 384")
        a(f"s_add_u32 s32, s32, {EX}")
        a("v_add_u32 v12, s32, v8")
        a("v_add_u32 v13, s32, v7")
        for i in range(1, 5):
            a(f"v_add_u32 v{239+i}, {4096*i}, v3")
        a("s_and_b32 s40, s9, 3")
        a("s_and_b32 s41, s40, 1")
        a("s_mul_i32 s42, s40, 9")
        a("s_add_u32 s43, s42, s41")
        a("s_lshl_b32 s46, s3, 1")
        a("s_add_u32 s43, s43, s46")
        a("s_add_u32 s46, s42, 8")
        a("s_cmp_eq_u32 s41, 1")
        a("s_cselect_b32 s46, s42, s46")
        a("s_mul_i32 s47, s43, 18432")
        a(f"s_add_u32 s47, s47, {L['WO']}")
        a("s_sub_u32 s47, s47, s59")
        a("s_add_u32 s48, s47, 18432")
        a("s_mul_i32 s49, s46, 18432")
        a(f"s_add_u32 s49, s49, {L['WO']}")
        a("s_sub_u32 s49, s49, s59")

    def wo_load(j, ks):
        def fn():
            vo = "v3" if ks < 4 else f"v{239 + ks // 4}"
            a(f"buffer_load_dwordx4 {ar((j*18+ks)*4,4)}, {vo}, s[4:7], s{47+j} offen offset:{(ks%4)*1024}"); vm.issue("wo")
        return fn

    def p1_stats_load():
        for n, so, off in ((0, "s25", 0), (1, "s25", 512), (2, "s26", 0)):
            a(f"buffer_load_dwordx2 {vr(T0+2*n,2)}, v6, s[4:7], {so} offen offset:{off} sc1"); vm.issue("st")

    def p1_stats_math():
        vm.wait("st")
        for sw in ("v_permlane16_swap_b32", "v_permlane32_swap_b32"):
            for r in range(6):
                a(f"v_mov_b32 v{T0+8+r}, v{T0+r}")
            for r in range(6):
                a(f"{sw} v{T0+r}, v{T0+8+r}")
            for r in range(6):
                a(f"v_add_f32 v{T0+r}, v{T0+r}, v{T0+8+r}")
        for n in range(3):
            b = T0 + 2 * n
            stats_finish(a, b, b + 1, RN + 2 * n, RN + 2 * n + 1, T0 + 8 + n, False)
            a(f"ds_write_b32 v12, v{RN+2*n} offset:{n*128}")
            a(f"ds_write_b32 v12, v{RN+2*n+1} offset:{n*128+64}")
        for n in range(3):
            a(f"ds_read_b128 {vr(RS+8*n,4)}, v13 offset:{n*128}")
            a(f"ds_read_b128 {vr(RS+8*n+4,4)}, v13 offset:{n*128+64}")

    def reads(ks):
        b = AB + 40 * (ks & 1)
        o = (ks % 8) * 8192
        r = [f"ds_read_b128 {vr(b+28,4)}, v9 offset:{o+7*1024}",
             f"ds_read_b128 {vr(b+32,4)}, v10 offset:{o}",
             f"ds_read_b128 {vr(b+36,4)}, v11 offset:{o}"]
        r += [f"ds_read_b128 {vr(b+4*fr,4)}, v9 offset:{o+fr*1024}" for fr in (0, 1, 2, 3, 6, 4, 5)]
        return r

    def mfmas(ks):
        b = AB + 40 * (ks & 1)
        r = []
        acc = vr(ACC + 64, 4); c = "0" if ks == 0 else acc
        r.append(f"v_mfma_f32_16x16x32_bf16 {acc}, {vr(b+32,4)}, {vr(b+28,4)}, {c}")
        acc = vr(ACC + 68, 4); c = "0" if ks == 0 else acc
        r.append(f"v_mfma_f32_16x16x32_bf16 {acc}, {vr(b+28,4)}, {vr(b+36,4)}, {c}")
        for slot, fr in enumerate((0, 1, 2, 3, 6, 4, 5, 6)):
            for n in range(2):
                acc = vr(ACC + 32 * n + 4 * slot, 4)
                x = ar(72 * n + 4 * ks, 4)
                w = vr(b + 4 * fr, 4)
                c = "0" if ks == 0 else acc
                if slot < 5:
                    r.append(f"v_mfma_f32_16x16x32_bf16 {acc}, {w}, {x}, {c}")
                else:
                    r.append(f"v_mfma_f32_16x16x32_bf16 {acc}, {x}, {w}, {c}")
        return r

    def xloads(ks):
        o = (ks % 4) * 1024
        return [[f"buffer_load_dwordx4 {ar(4*ks,4)}, v3, s[4:7], s18 offen offset:{o} sc1"],
                [f"buffer_load_dwordx4 {ar(72+4*ks,4)}, v15, s[4:7], s18 offen offset:{o} sc1"] + (["s_add_u32 s18, s18, 4096"] if ks % 4 == 3 else [])]

    def do_load(grp, ks):
        for t in grp:
            a(t)
        vm.issue(("k", ks))

    def p1_loop(loads, PF, CH):
        for t in reads(0):
            a(t)
        a("s_waitcnt lgkmcnt(0)")
        wo_early = [wo_load(2, ks) for ks in range(18)]
        for ks in range(18):
            m = mfmas(ks)
            nxt = ks + 1
            rd = []
            if not CH:
                vm.wait(("k", ks))
            if nxt < 18:
                if CH and nxt % CH == 0:
                    vm.wait(("k", min(nxt + CH - 1, 17)))
                    a("s_barrier")
                if nxt % 8 == 0:
                    a("v_add_u32 v9, 0x10000, v9")
                    a("v_add_u32 v10, 0x10000, v10")
                    a("v_add_u32 v11, 0x10000, v11")
                rd = reads(nxt)
            else:
                a("s_lshl_b32 s32, s27, 6")
                a(f"s_add_u32 s32, s32, {CQL}")
                a("v_add_u32 v12, s32, v7")
                a("s_lshl_b32 s33, s28, 6")
                a(f"s_add_u32 s33, s33, {CQL}")
                a("v_add_u32 v13, s33, v8")
                a("s_mov_b32 s34, 0x00010001")
                a("s_mov_b32 s35, 0x00010001")
            ld = loads(ks + PF) if ks + PF < 18 else []
            for i, t in enumerate(m):
                a(t)
                if i < len(rd):
                    a(rd[i])
                if i >= 10 and (i - 10) % 2 == 0:
                    if (i - 10) // 2 < len(ld):
                        do_load(ld[(i - 10) // 2], ks + PF)
                    elif ks + PF >= 18 and wo_early:
                        wo_early.pop(0)()
                if ks == 17 and i == 10:
                    a("s_mov_b64 exec, s[34:35]")
                    a(f"ds_write_b128 v12, {vr(ACC+64,4)}")
                    a("s_mov_b64 exec, 0xffff")
                    a(f"ds_write_b32 v13, v{ACC+68}")
                    a("s_mov_b64 exec, -1")
            a("s_waitcnt lgkmcnt(0)")
        while wo_early:
            wo_early.pop(0)()

    p1_setup()
    a(f"s_mul_i32 s20, s9, {18*7168}")
    a("s_lshl_b32 s21, s3, 11")
    a("s_add_u32 s20, s20, s21")
    a(f"s_add_u32 s20, s20, {L['WQ']}")
    a("s_sub_u32 s22, s22, 1024")
    a("s_mov_b32 s52, 7168")
    a("s_mov_b32 s44, 0xfffefffe")
    a("s_cmp_eq_u32 s3, 3")
    a("s_cselect_b32 s22, s22, s20")
    a("s_cselect_b32 s52, 1024, s52")
    a("s_cselect_b32 s44, s44, -1")
    a("s_mov_b32 s45, s44")
    a("s_mov_b32 s24, s21")
    p1_stats_load()

    def loads_a(ks):
        return [["s_mov_b32 m0, s24", "s_add_u32 s24, s24, 8192", "buffer_load_dwordx4 v3, s[4:7], s20 offen lds", "s_add_u32 s20, s20, 7168"],
                ["s_mov_b64 exec, s[44:45]", "buffer_load_dwordx4 v3, s[4:7], s22 offen offset:1024 lds", "s_mov_b64 exec, -1",
                 "s_add_u32 s22, s22, s52"]] + xloads(ks)
    for ks in range(2):
        for grp in loads_a(ks):
            do_load(grp, ks)
    p1_consts()
    for ks in range(2, 4):
        for grp in loads_a(ks):
            do_load(grp, ks)
    p1_stats_math()
    for grp in loads_a(4):
        do_load(grp, 4)
    vm.wait(("k", 1))
    a("s_waitcnt lgkmcnt(0)")
    a("s_barrier")
    ts()
    p1_loop(loads_a, 5, 2)

    a.label(f"{name}_epi")
    vm.q = ["wo"] * 18
    ts.n = 3
    ts()
    a("s_barrier")
    a(f"v_add_u32 v9, {CQL}, v7")
    a(f"v_add_u32 v10, {CQL}, v8")
    for i, fr in enumerate((0, 1, 2, 3, 6)):
        a(f"ds_read_b128 {vr(CQN+4*i,4)}, v9 offset:{fr*64}")
    a(f"ds_read_b128 {vr(CQH,4)}, v12")
    for i, fr in enumerate((4, 5, 6)):
        a(f"ds_read_b32 v{CQS+i}, v10 offset:{fr*64}")
    a(f"ds_read_b32 v{CQS+3}, v13")
    NBG = int(OPT.get("nbg", 30))
    wo_rest = [wo_load(j, ks) for ks in range(18) for j in range(2)]
    a.bg = wo_rest[:NBG]; wo_rest = wo_rest[NBG:]
    a.bg_every = int(OPT.get("bgevery", 11))
    KF = 88; QF = 112; VF = 128; ONE = 148; T = 152
    for i in range(4):
        a(f"v_mul_f32 v{ACC+64+i}, v{ACC+64+i}, v{RN+4}")
        a(f"v_mul_f32 v{ACC+68+i}, v{ACC+68+i}, v{RS+16+i}")
    for n in (1, 0):
        for j in range(5):
            for i in range(4):
                a(f"v_mul_f32 v{ACC+32*n+4*j+i}, v{ACC+32*n+4*j+i}, v{RN+2*n}")
        for j in range(5, 8):
            for i in range(4):
                a(f"v_mul_f32 v{ACC+32*n+4*j+i}, v{ACC+32*n+4*j+i}, v{RS+8*n+i}")

    def corr_n(acc, n, cq):
        for i in range(4):
            a(f"v_fma_f32 v{acc+i}, -v{RN+2*n+1}, v{cq+i}, v{acc+i}")

    def corr_s(acc, n, cq):
        for i in range(4):
            a(f"v_fma_f32 v{acc+i}, -v{RS+8*n+4+i}, v{cq}, v{acc+i}")

    def pack2(dst, acc):
        a(f"v_cvt_pk_bf16_f32 v{dst}, v{acc}, v{acc+1}")
        a(f"v_cvt_pk_bf16_f32 v{dst+1}, v{acc+2}, v{acc+3}")

    a("v_cmp_eq_u32 s[36:37], 0, v5")
    a("v_cmp_eq_u32 s[38:39], 1, v5")
    a("v_lshlrev_b32 v12, 3, v1")
    a("s_mul_i32 s32, s3, 3072")
    a(f"s_add_u32 s33, s32, {EX}")
    a("v_add_u32 v13, s33, v12")
    a("s_lshl_b32 s32, s3, 9")
    a(f"s_add_u32 s32, s32, {EX}")
    a("s_cmp_eq_u32 s3, 3")
    a(f"s_cselect_b32 s32, {EX+4*3072}, s32")
    a("v_add_u32 v14, s32, v12")
    a("s_waitcnt lgkmcnt(0)")

    def conv_tile(n):
        ac = ACC + 32 * n
        tl = n + 1
        for i in range(5):
            corr_n(ac + 4 * i, n, CQN + 4 * i)
        for h in range(2):
            pack2(QF + (2 * n + h) * 4, ac + 4 * h)
            pack2(KF + (2 * tl + h) * 4, ac + 8 + 4 * h)
        pack2(T + 8 + 2 * n, ac + 16)
        for h in range(2):
            a(f"v_mov_b32 v{KF+(2*tl+h)*4+2}, v{T+8+2*n+1}")
            a(f"v_cndmask_b32 v{QF+(2*n+h)*4+2}, 0, v{T+8+2*n}, s[{36+2*h}:{37+2*h}]")
        for h in range(3):
            corr_s(ac + 20 + 4 * h, n, CQS + h)
            pack2(VF + 6 * h + 2 * tl, ac + 20 + 4 * h)

    corr_n(ACC + 64, 2, CQH)
    corr_s(ACC + 68, 2, CQS + 3)
    pack2(T + 12, ACC + 64)
    pack2(T + 14, ACC + 68)
    a(f"ds_write_b64 v14, {vr(T+12,2)}")
    a(f"ds_write_b64 v14, {vr(T+14,2)} offset:1536")
    conv_tile(1)
    a(f"ds_write_b64 v13, {vr(KF+16,2)} offset:{3072}")
    a(f"ds_write_b64 v13, {vr(KF+20,2)} offset:{3072+512}")
    a(f"ds_write_b64 v13, {vr(T+10,2)} offset:{3072+1024}")
    for h in range(3):
        a(f"ds_write_b64 v13, {vr(VF+6*h+4,2)} offset:{3072+1536+512*h}")
    conv_tile(0)
    for i in range(6):
        a(f"v_mov_b32 v{KF+4*i+3}, 0")
    for i in range(4):
        a(f"v_mov_b32 v{QF+4*i+3}, 0")
        a(f"v_mov_b32 v{ONE+i}, 0x3f803f80")
    a("s_waitcnt lgkmcnt(0)")
    a("s_barrier")
    a(f"ds_read_b64 {vr(KF,2)}, v13")
    a(f"ds_read_b64 {vr(KF+4,2)}, v13 offset:512")
    a(f"ds_read_b32 v{KF+2}, v13 offset:{1024+4}")
    a(f"ds_read_b32 v{KF+6}, v13 offset:{1024+4}")
    for h in range(3):
        a(f"ds_read_b64 {vr(VF+6*h,2)}, v13 offset:{1536+512*h}")
    SB = 16; PB = 48; MX = 64; OB = 168; OO = 72
    jobs = [(1, 0), (1, 1), (0, 0), (0, 1)]
    cs = (18 ** -0.5) * LOG2E
    a(f"s_mov_b32 s50, {f32(cs)}")
    for j, (n, h) in enumerate(jobs):
        if j == 2:
            a("s_waitcnt lgkmcnt(0)")
        q = vr(QF + (2 * n + h) * 4, 4)
        mp = MPA if n == 0 else MPB
        a(f"v_mfma_f32_16x16x32_bf16 {vr(SB+8*j,4)}, {vr(KF+(2*n+h)*4,4)}, {q}, {vr(mp,4)}")
        a(f"v_mfma_f32_16x16x32_bf16 {vr(SB+8*j+4,4)}, {vr(KF+(2*(n+1)+h)*4,4)}, {q}, {vr(MS,4)}")
    a("s_mul_i32 s32, s17, 18432")
    a("s_lshl_b32 s33, s9, 10")
    a("s_add_u32 s33, s33, s32")
    a(f"s_add_u32 s33, s33, {OUT}")
    a("s_add_u32 s34, s33, 18432")
    a("s_lshr_b32 s35, s9, 3")
    a("s_lshl_b32 s35, s35, 10")
    a("s_and_b32 s36, s9, 3")
    a("s_lshl_b32 s36, s36, 8")
    a("s_add_u32 s35, s35, s36")
    a("s_lshr_b32 s36, s9, 2")
    a("s_and_b32 s36, s36, 1")
    a("s_lshl_b32 s36, s36, 3")
    a("s_add_u32 s35, s35, s36")
    a("s_add_u32 s35, s35, s32")
    a(f"s_add_u32 s35, s35, {OUT + 16*1024}")
    a("s_add_u32 s36, s35, 18432")
    for j in range(4):
        s = SB + 8 * j; m = MX + 2 * j
        a(f"v_max3_f32 v{m}, v{s}, v{s+1}, v{s+2}")
        a(f"v_max3_f32 v{m+1}, v{s+3}, v{s+4}, v{s+5}")
        a(f"v_max3_f32 v{m}, v{m}, v{s+6}, v{s+7}")
        a(f"v_max_f32 v{m}, v{m}, v{m+1}")
    for sw in ("v_permlane16_swap_b32", "v_permlane32_swap_b32"):
        for j in range(4):
            a(f"v_mov_b32 v{MX+2*j+1}, v{MX+2*j}")
        for j in range(4):
            a(f"{sw} v{MX+2*j}, v{MX+2*j+1}")
        for j in range(4):
            a(f"v_max_f32 v{MX+2*j}, v{MX+2*j}, v{MX+2*j+1}")
    for j in range(4):
        a(f"v_mul_f32 v{MX+2*j}, s50, v{MX+2*j}")
    for j, (n, h) in enumerate(jobs):
        s = SB + 8 * j
        for i in range(8):
            a(f"v_fma_f32 v{s+i}, v{s+i}, s50, -v{MX+2*j}")
        for i in range(8):
            a(f"v_exp_f32 v{s+i}, v{s+i}")
        for i in range(4):
            a(f"v_cvt_pk_bf16_f32 v{PB+4*j+i}, v{s+2*i}, v{s+2*i+1}")
        p = vr(PB + 4 * j, 4)
        a(f"v_mfma_f32_16x16x32_bf16 {vr(OB+12*j+8,4)}, {vr(ONE,4)}, {p}, 0")
        a(f"v_mfma_f32_16x16x32_bf16 {vr(OB+12*j,4)}, {vr(VF+6*h+2*n,4)}, {p}, 0")
        a(f"v_mfma_f32_16x16x32_bf16 {vr(OB+12*j+4,4)}, {vr(VF+12+2*n,4)}, {p}, 0")
    wo_rest = a.bg + wo_rest
    a.bg = []
    a("v_lshlrev_b32 v12, 4, v4")
    a("v_mov_b32 v13, 0x40000000")
    a("v_cmp_eq_u32 vcc, 2, v5")
    a("v_cndmask_b32 v12, v13, v12, vcc")
    for j, (n, h) in enumerate(jobs):
        o = OB + 12 * j
        a(f"v_rcp_f32 v{o+8}, v{o+8}")
        for i in range(4):
            a(f"v_mul_f32 v{o+i}, v{o+i}, v{o+8}")
        a(f"v_mul_f32 v{o+4+2*h}, v{o+4+2*h}, v{o+8}")
        a(f"v_mul_f32 v{o+5+2*h}, v{o+5+2*h}, v{o+8}")
        a(f"v_cvt_pk_bf16_f32 v{OO+4*n+2*h}, v{o}, v{o+1}")
        a(f"v_cvt_pk_bf16_f32 v{OO+4*n+2*h+1}, v{o+2}, v{o+3}")
        a(f"v_cvt_pk_bf16_f32 v{OO+8+2*n+h}, v{o+4+2*h}, v{o+5+2*h}")
        if h == 1:
            a(f"buffer_store_dwordx4 {vr(OO+4*n,4)}, v3, s[4:7], s{33+n} offen sc1")
            a(f"buffer_store_dwordx2 {vr(OO+8+2*n,2)}, v12, s[4:7], s{35+n} offen sc1")
    ts()

    OL = 98304
    PA = 16; PBB = 40; RES = 88
    NPRE = int(OPT.get("npre", 4))

    CF = int(OPT.get("cf", 24)); NS = 144 // CF; PW = CF // 4; NCH = (666 + CF - 1) // CF
    LASTB = ((PW - 1) // 4) * 4096
    NPRE = NPRE * 24 // CF

    def mk_w(c, i):
        def fn():
            if i == 0:
                a(f"s_add_u32 m0, s54, {(c % NS) * CF * 1024}")
                a(f"s_add_u32 s55, s55, {CF*1024-LASTB}")
            elif i % 4 == 0:
                a("s_add_u32 m0, m0, 4096")
                a("s_add_u32 s55, s55, 4096")
            if not ("nodma" in OPT and c >= 6):
                a(f"buffer_load_dwordx4 v3, s[4:7], s55 offen offset:{(i%4)*1024} {OPT.get('wsc', 'sc1')} lds"); vm.issue(("w", c))
        return fn
    WPRE = [mk_w(c, i) for c in range(NPRE) for i in range(PW)]
    NW2 = int(OPT.get("nw2", 18))

    def p2_prefetch():
        for fn in wo_rest:
            fn()
        a(f"s_mul_i32 s54, s3, {PW*1024}")
        a(f"s_mul_i32 s55, s9, {SLB}")
        a("s_add_u32 s55, s55, s54")
        a(f"s_add_u32 s55, s55, {L['W12'] - (CF*1024-LASTB)}")
        a("s_sub_u32 s55, s55, s59")
        a("s_lshr_b32 s12, s9, 2")
        a("s_lshl_b32 s13, s8, 3")
        a("s_lshl_b32 s14, s12, 1")
        a("s_add_u32 s13, s13, s14")
        a("s_mul_i32 s15, s13, 18432")
        a("s_lshr_b32 s16, s43, 1")
        a("s_lshl_b32 s16, s16, 10")
        a("s_add_u32 s16, s16, s15")
        a("s_lshr_b32 s17, s46, 1")
        a("s_lshl_b32 s17, s17, 10")
        a("s_lshl_b32 s18, s41, 3")
        a("s_add_u32 s17, s17, s18")
        a("s_add_u32 s17, s17, s15")
        a("s_and_b32 s18, s3, 1")
        a("s_mul_i32 s18, s18, 18432")
        a("s_add_u32 s17, s17, s18")
        a(f"s_add_u32 s19, s16, {XIN}")
        a(f"s_add_u32 s20, s17, {XIN}")
        a(f"buffer_load_dwordx4 {vr(RES,4)}, v3, s[4:7], s19 offen sc1")
        a(f"buffer_load_dwordx4 {vr(RES+4,4)}, v15, s[4:7], s19 offen sc1")
        a(f"buffer_load_dwordx2 {vr(RES+8,2)}, v3, s[4:7], s20 offen sc1")
        a("s_mul_i32 s21, s3, 9216")
        a("s_add_u32 s22, s15, s21")
        a(f"s_add_u32 s22, s22, {OUT}")
        a(f"s_add_u32 s21, s21, {OL}")
        a(f"v_add_u32 v9, {OL}, v3")
        a("v_add_u32 v10, s18, v9")
    sync(16, p2_prefetch, wts=LATE)
    ts()
    a("s_mov_b32 m0, s21")
    for i in range(9):
        a(f"buffer_load_dwordx4 v3, s[4:7], s22 offen offset:{(i%3)*1024} sc1 lds")
        if i % 3 == 2 and i < 8:
            a("s_add_u32 s22, s22, 3072")
            a("s_add_u32 m0, m0, 3072")
    for n in range(2):
        for mh in range(2):
            ac = PA + (2 * mh + n) * 4; r = RES + 4 * n + 2 * mh
            a(f"v_lshlrev_b32 v{ac}, 16, v{r}")
            a(f"v_and_b32 v{ac+1}, 0xffff0000, v{r}")
            a(f"v_lshlrev_b32 v{ac+2}, 16, v{r+1}")
            a(f"v_and_b32 v{ac+3}, 0xffff0000, v{r+1}")
    a(f"v_lshlrev_b32 v{PA+16}, 16, v{RES+8}")
    a(f"v_and_b32 v{PA+17}, 0xffff0000, v{RES+8}")
    a(f"v_lshlrev_b32 v{PA+18}, 16, v{RES+9}")
    a(f"v_and_b32 v{PA+19}, 0xffff0000, v{RES+9}")
    a(f"s_add_u32 s19, s16, {X1}")
    a(f"s_add_u32 s20, s17, {X1}")
    a("s_cmp_ge_u32 s3, 2")
    a(f"s_cselect_b32 s20, {OOB}, s20")
    a("s_cmp_eq_u32 s3, 0")
    a("s_cselect_b32 s23, 1.0, 0")
    a("s_cmp_eq_u32 s3, 1")
    a("s_cselect_b32 s24, 1.0, 0")
    a("s_lshl_b32 s25, s3, 10")
    a(f"s_add_u32 s25, s25, {EX}")
    a("v_add_u32 v11, s25, v3")
    a("s_lshl_b32 s25, s3, 2")
    a(f"s_add_u32 s25, s25, {EX}")
    a("v_add_u32 v12, s25, v3")
    a("s_lshl_b32 s25, s13, 9")
    a("s_lshl_b32 s26, s40, 3")
    a("s_add_u32 s25, s25, s26")
    a("s_lshr_b32 s26, s3, 1")
    a("s_lshl_b32 s26, s26, 9")
    a("s_add_u32 s25, s25, s26")
    a("s_and_b32 s26, s3, 1")
    a("s_lshl_b32 s26, s26, 2")
    a("s_add_u32 s25, s25, s26")
    a(f"s_add_u32 s25, s25, {ST1}")
    a("v_lshlrev_b32 v13, 5, v4")
    a("s_waitcnt vmcnt(0)")
    a("s_barrier")
    NB = 4

    def rd2(ks):
        b = PBB + 12 * (ks % NB)
        a(f"ds_read_b128 {vr(b,4)}, v9 offset:{ks*1024}"); lg.issue(("b", ks))
        a(f"ds_read_b128 {vr(b+4,4)}, v9 offset:{18432+ks*1024}"); lg.issue(("b", ks))
        a(f"ds_read_b128 {vr(b+8,4)}, v10 offset:{ks*1024}"); lg.issue(("b", ks))
    for ks in range(NB - 1):
        rd2(ks)
    for ks in range(18):
        if ks + NB - 1 < 18:
            rd2(ks + NB - 1)
        lg.wait(("b", ks))
        b = PBB + 12 * (ks % NB)
        for mh in range(2):
            for n in range(2):
                acc = vr(PA + (2 * mh + n) * 4, 4)
                a(f"v_mfma_f32_16x16x32_bf16 {acc}, {ar((mh*18+ks)*4,4)}, {vr(b+4*n,4)}, {acc}")
        acc = vr(PA + 16, 4)
        a(f"v_mfma_f32_16x16x32_bf16 {acc}, {ar((36+ks)*4,4)}, {vr(b+8,4)}, {acc}")
        for _ in range((NW2 * (ks + 1)) // 18 - (NW2 * ks) // 18):
            WPRE.pop(0)()
    O2 = 100
    for n in range(2):
        for mh in range(2):
            ac = PA + (2 * mh + n) * 4
            a(f"v_cvt_pk_bf16_f32 v{O2+4*n+2*mh}, v{ac}, v{ac+1}")
            a(f"v_cvt_pk_bf16_f32 v{O2+4*n+2*mh+1}, v{ac+2}, v{ac+3}")
        a(f"buffer_store_dwordx4 {vr(O2+4*n,4)}, {'v15' if n else 'v3'}, s[4:7], s19 offen sc1")
    a(f"v_cvt_pk_bf16_f32 v{O2+8}, v{PA+16}, v{PA+17}")
    a(f"v_cvt_pk_bf16_f32 v{O2+9}, v{PA+18}, v{PA+19}")
    a(f"buffer_store_dwordx2 {vr(O2+8,2)}, v3, s[4:7], s20 offen sc1")
    SS = 112

    def sumsq(dst, regs):
        a(f"v_add_f32 v{dst}, v{regs[0]}, v{regs[1]}")
        a(f"v_mul_f32 v{dst+1}, v{regs[0]}, v{regs[0]}")
        a(f"v_fmac_f32 v{dst+1}, v{regs[1]}, v{regs[1]}")
        for r in regs[2:]:
            a(f"v_add_f32 v{dst}, v{dst}, v{r}")
            a(f"v_fmac_f32 v{dst+1}, v{r}, v{r}")
    for n in range(2):
        sumsq(SS + 2 * n, [PA + (2 * mh + n) * 4 + i for mh in range(2) for i in range(4)])
    sumsq(SS + 4, [PA + 16 + i for i in range(4)])
    for n in range(2):
        a(f"v_fmac_f32 v{SS+2*n}, s{23+n}, v{SS+4}")
        a(f"v_fmac_f32 v{SS+2*n+1}, s{23+n}, v{SS+5}")
    a(f"ds_write_b128 v11, {vr(SS,4)}")
    a("s_waitcnt lgkmcnt(0)")
    a("s_barrier")
    for w in range(4):
        a(f"ds_read_b32 v{SS+8+w}, v12 offset:{w*1024}")
    a("s_waitcnt lgkmcnt(0)")
    a(f"v_add_f32 v{SS+8}, v{SS+8}, v{SS+9}")
    a(f"v_add_f32 v{SS+10}, v{SS+10}, v{SS+11}")
    a(f"v_add_f32 v{SS+8}, v{SS+8}, v{SS+10}")
    xg_reduce(a, "v_add_f32", SS + 8, SS + 9)
    a(f"buffer_store_dword v{SS+8}, v13, s[4:7], s25 offen sc1")
    ts()

    BUD = float(OPT.get("p3bud", 7))
    NAB = int(OPT.get("nab", 13)); RA = NAB - 2; NSL = 6 if NAB <= 9 else 5
    WE = int(OPT.get("we", 3))
    N0 = int(OPT.get("p3n0", 12))
    PACE0 = int(OPT.get("p3pace0", 1)); PACE1 = int(OPT.get("p3pace1", 3))
    DFLAG = int(OPT.get("p3dflag", 45)); DPOLL = int(OPT.get("p3dpoll", 35)); DCHK = int(OPT.get("p3dchk", 40))
    K1, K3, RI, PV = 8, 10, 12, 14
    T = 16; AB3 = 32; AC1 = 164 - 16 * NSL; HO = 164; OST = 236; BX = 244
    assert AB3 + 4 * NAB <= AC1
    HP = 144

    def p3_prefetch():
        while WPRE:
            WPRE.pop(0)()
        a("v_add_u32 v4, 0x10000, v3")
        a("v_add_u32 v5, 0x20000, v3")
        a("v_mov_b32 v7, v6")
        a("v_add_u32 v6, 18432, v3")
        a("s_lshl_b32 s16, s8, 3")
        a("s_lshl_b32 s17, s3, 1")
        a("s_add_u32 s16, s16, s17")
        a("s_mul_i32 s17, s16, 18432")
        a(f"s_add_u32 s18, s17, {X1}")
        a("s_lshl_b32 s21, s16, 9")
        a(f"s_add_u32 s21, s21, {ST1}")
        a("s_lshl_b32 s22, s8, 4")
        a("s_add_u32 s22, s22, s9")
        a("s_lshl_b32 s22, s22, 2")
        a("s_add_u32 s22, s22, s3")
        a("s_xor_b32 s23, s22, 4")
        a("s_mul_i32 s24, s22, 18432")
        a(f"s_add_u32 s24, s24, {HX}")
        a("s_mul_i32 s25, s23, 18432")
        a(f"s_add_u32 s25, s25, {HX}")
        a("s_lshl_b32 s26, s22, 4")
        a(f"s_add_u32 s26, s26, {FL}")
        a("s_lshl_b32 s27, s23, 4")
        a(f"s_add_u32 s27, s27, {FL}")
        a("s_lshr_b32 s28, s9, 1")
        a(f"s_mul_i32 s28, s28, {XT}")
        a("s_add_u32 s28, s28, s17")
        a("s_and_b32 s29, s9, 1")
        a("s_mul_i32 s29, s29, 9216")
        a("s_add_u32 s28, s28, s29")
        a(f"s_add_u32 s28, s28, {PART}")
        if REUSE:
            for r in (24, 25, 28):
                a(f"s_sub_u32 s{r}, s{r}, s59")
        a("s_lshl_b32 s50, s3, 11")
        a(f"s_mul_i32 s51, s9, {18*7168}")
        a("s_add_u32 s51, s51, s50")
        a(f"s_add_u32 s51, s51, {L['WQ']}")
        a("s_cmp_lg_u32 s59, 0")
        a(f"s_cselect_b32 s51, {OOB}, s51")
        a("s_cmp_eq_u32 s3, 3")
        a("s_cselect_b32 s56, 0, 1024")
        a("s_add_u32 s52, s51, s56")
        a("s_add_u32 s53, s50, s56")
    sync(32, p3_prefetch)
    ts()
    for n in range(2):
        a(f"buffer_load_dwordx2 {vr(T+2*n,2)}, v7, s[4:7], s21 offen offset:{n*512} sc1"); vm.issue("st")

    U = []
    for k in range(19):
        for t in range(G0):
            for mh in range(2):
                U.append(("p1", t, k, mh))
    for t in range(G0, 9):
        for k in range(19):
            for mh in range(2):
                U.append(("p1", t, k, mh))
    for hk in range(KO):
        for dt in range(9):
            for mh in range(2):
                U.append(("p2", dt, hk, mh))
    for dt in range(9):
        for hk in range(KO, 18):
            for mh in range(2):
                U.append(("p2", dt, hk, mh))
    NU = len(U)

    def mfma3(i, n):
        kind, t, k, mh = U[i]
        if kind == "p1":
            acc = vr(AC1 + 16 * (t % NSL) + (2 * mh + n) * 4, 4)
            b = ar((18 * n + k) * 4, 4) if k < 18 else vr(BX + 4 * n, 4)
        else:
            acc = ar(16 * t + (2 * mh + n) * 4, 4)
            b = vr(HO + (2 * k + n) * 4, 4) if k < 9 else ar(HP + (2 * (k - 9) + n) * 4, 4)
        a(f"v_mfma_f32_16x16x32_bf16 {acc}, {vr(AB3+4*(i%NAB),4)}, {b}, {'0' if k == 0 else acc}")

    def mk_y(k, n):
        def fn():
            if k % 4 == 0 and k and n == 0:
                a("s_add_u32 s18, s18, 4096")
            a(f"buffer_load_dwordx4 {ar((18*n+k)*4,4)}, {'v6' if n else 'v3'}, s[4:7], s18 offen offset:{(k%4)*1024} sc1"); vm.issue(("y", k))
        return fn
    LQ = []
    for c in range(NPRE, NCH):
        for i in range(PW):
            LQ.append((CF * c - RA - 0.5 + i * 0.01, c - (NS - 2) if c >= NS else -1, 1, mk_w(c, i), "w"))
    for k in range(18):
        for n in range(2):
            LQ.append((k * G0 * 2 - 0.1 + n * 0.01, -1, 1, mk_y(k, n), "y"))
    def mk_q(slot, i):
        ks = 3 * slot + i // 2; e = i % 2

        def fn():
            a(f"s_add_u32 m0, s{50 if e == 0 else 53}, {ks*8192}")
            a(f"s_add_u32 s56, s{51 if e == 0 else 52}, {ks*7168}")
            a("buffer_load_dwordx4 v3, s[4:7], s56 offen lds"); vm.issue("wq")
        return fn
    assert CF == 24
    qslots = []
    for c in range(NCH, NCH + 4):
        qslots.append(c % NS)
        for i in range(6):
            LQ.append((1000 + c + i * 0.01, c - (NS - 2), 1, mk_q(c % NS, i), "q"))
    LQ.sort(key=lambda x: x[0])
    ny_left = [36]

    def lq_issue():
        it = LQ.pop(0)
        it[3]()
        if it[4] == "y":
            ny_left[0] -= 1
        return it[2]

    for _ in range(N0):
        lq_issue()

    def dsread(f):
        off = (f % 144) * 1024
        base = "v3" if off < 65536 else ("v4" if off < 131072 else "v5")
        a(f"ds_read_b128 {vr(AB3+4*(f%NAB),4)}, {base} offset:{off % 65536}"); lg.issue(("a", f))
    for f in range(RA):
        dsread(f)

    kk = math.sqrt(2.0 / math.pi)
    C1 = -2.0 * kk * LOG2E
    C3 = C1 * 0.044715
    EV = {}
    cur = [0]

    def ev(g, cost, fn):
        EV.setdefault(g, []).append((cost, fn))

    def mk(text):
        return lambda: a(text)

    class Rec:
        def __init__(self): self.l = []
        def __call__(self, t): self.l.append(t)
    rec = Rec()
    rec("v_mov_b32 v7, 0")
    for b in range(3):
        rec(f"v_mov_b32 v{OST+b}, {b+1}")
    for sw in ("v_permlane16_swap_b32", "v_permlane32_swap_b32"):
        for r in range(4):
            rec(f"v_mov_b32 v{T+4+r}, v{T+r}")
        for r in range(4):
            rec(f"{sw} v{T+r}, v{T+4+r}")
        for r in range(4):
            rec(f"v_add_f32 v{T+r}, v{T+r}, v{T+4+r}")
    for n in range(2):
        m = T + 2 * n; r = T + 8 + n; t = T + 4 + n; bx = BX + 4 * n
        stats_finish(rec, m, m + 1, r, T + 10 + n, t, True)
        rec(f"v_rcp_f32 v{RI+n}, v{r}")
        rec(f"v_mul_f32 v{K1+n}, {f32(C1)}, v{r}")
        rec(f"v_mul_f32 v{K3+n}, v{r}, v{r}")
        rec(f"v_mul_f32 v{K3+n}, v{K3+n}, v{r}")
        rec(f"v_mul_f32 v{K3+n}, {f32(C3)}, v{K3+n}")
        rec(f"v_cvt_pk_bf16_f32 v{t}, v{RI+n}, v{RI+n}")
        rec(f"v_and_b32 v{t}, 0xffff0000, v{t}")
        rec(f"v_sub_f32 v{t}, v{RI+n}, v{t}")
        rec(f"v_cvt_pk_bf16_f32 v{bx}, v{RI+n}, v{t}")
        rec(f"v_sub_f32 v{m}, 0, v{m}")
        rec(f"v_cvt_pk_bf16_f32 v{bx+1}, v{m}, v{m}")
        rec(f"v_and_b32 v{t}, 0xffff0000, v{bx+1}")
        rec(f"v_sub_f32 v{t}, v{m}, v{t}")
        rec(f"v_cvt_pk_bf16_f32 v{bx+2}, v{t}, v7")
        rec(f"v_mov_b32 v{bx+3}, 0")
    VQ = [(0, 1, mk(t), None) for t in rec.l]
    VQ[-1] = (0, 1, VQ[-1][2], ("bx",))

    hl_done = set()
    MQ = []

    def defer(fn):
        return lambda: MQ.append(fn)

    def mk_hstore(q):
        def fn():
            if q % 4 == 0 and q:
                a("s_add_u32 s24, s24, 4096")
            a(f"buffer_store_dwordx4 {vr(HO+4*q,4)}, v3, s[4:7], s24 offen offset:{(q%4)*1024} sc1"); vm.issue(("hs", q))
            if q % 6 == 5:
                b = q // 6
                g = cur[0] + DFLAG
                ev(g, 2, lambda: flag_store(b))
                ev(g + DPOLL, 2, lambda: poll_issue(b))
                ev(g + DPOLL + DCHK, 4, lambda: poll_check(b))
        return fn

    def flag_store(b):
        vm.wait(("hs", 6 * b + 5))
        a("s_mov_b64 exec, 1")
        a(f"buffer_store_dword v{OST+b}, v7, s[4:7], s26 offen sc1"); vm.issue("fs")
        a("s_mov_b64 exec, -1")

    def poll_issue(b):
        a("s_mov_b64 exec, 1")
        a(f"buffer_load_dword v2, v7, s[4:7], s27 offen sc1"); vm.issue(("pl", b))
        a("s_mov_b64 exec, -1")

    def poll_check(b):
        vm.wait(("pl", b))
        a("v_readfirstlane_b32 s30, v2")
        a(f"s_cmp_gt_u32 s30, {b}")
        a.nf(f"s_cbranch_scc0 {name}_w{b}")
        a.label(f"{name}_r{b}", safe=False)
        slowcode.append(b)
        for i in range(6):
            ev(cur[0] + 1 + 2 * i, 1, mk_hload(6 * b + i))

    def mk_hload(q):
        def fn():
            if q % 4 == 0 and q:
                a("s_add_u32 s25, s25, 4096")
            a(f"buffer_load_dwordx4 {ar(HP+4*q,4)}, v3, s[4:7], s25 offen offset:{(q%4)*1024} sc1"); vm.issue(("hl", q))
            hl_done.add(q)
        return fn

    SK = 2.5
    gel = []

    def add_gelu(t, ready):
        ac = AC1 + 16 * (t % NSL)
        for v in range(16):
            n = v // 8; mh = (v // 4) % 2; i = v % 4
            x = ac + (2 * mh + n) * 4 + i; tm = T + v
            ops = [(1, f"v_mul_f32 v{tm}, v{x}, v{x}"), (1, f"v_fma_f32 v{tm}, v{tm}, v{K3+n}, v{K1+n}"), (1, f"v_mul_f32 v{tm}, v{tm}, v{x}"),
                   (2, f"v_exp_f32 v{tm}, v{tm}"), (1, f"v_fma_f32 v{tm}, v{tm}, v{RI+n}, v{RI+n}"), (2, f"v_rcp_f32 v{tm}, v{tm}"),
                   (1, f"v_mul_f32 v{x}, v{x}, v{tm}")]
            for st, (c, tx) in enumerate(ops):
                gel.append((16 * t + v + st * SK, ready, c, mk(tx), None))
            if v % 2 == 1:
                gel.append((16 * t + v + 6 * SK + 1.2, ready, 1, mk(f"v_cvt_pk_bf16_f32 v{HO+8*t+v//2}, v{x-1}, v{x}"), None))
            if v % 8 == 7:
                q = 2 * t + n
                gel.append((16 * t + v + 6 * SK + 1.3, ready, 0, defer(mk_hstore(q)), ("h", q)))
    last_idx = {}
    for i, u in enumerate(U):
        last_idx[u[:2]] = i
    for t in range(9):
        add_gelu(t, last_idx[("p1", t)] + 2)
    gel.sort(key=lambda x: x[0])
    VQ += [(g[1], g[2], g[3], g[4]) for g in gel]
    for dt in range(9):
        rdy = last_idx[("p2", dt)] + 2
        for n in range(2):
            o = AC1 + ((2 * dt + n) % 8) * 4
            for mh in range(2):
                for i in range(4):
                    VQ.append((rdy, 1, mk(f"v_accvgpr_read_b32 v{T+8*n+4*mh+i}, a{16*dt+(2*mh+n)*4+i}"), None))
            for e in range(4):
                VQ.append((rdy, 1, mk(f"v_cvt_pk_bf16_f32 v{o+e}, v{T+8*n+2*e}, v{T+8*n+2*e+1}"), None))

            def st(n=n, o=o, dt=dt):
                if dt % 4 == 0 and dt and n == 0:
                    a("s_add_u32 s28, s28, 4096")
                a(f"buffer_store_dwordx4 {vr(o,4)}, {'v6' if n else 'v3'}, s[4:7], s28 offen offset:{(dt%4)*1024} sc1"); vm.issue("po")
            VQ.append((rdy, 0, defer(st), None))
    done_tags = set()

    def vq_pop():
        it = VQ.pop(0)
        assert it[0] - 2 < cur[0] + (1 if cur[0] == NU - 1 else 0), (it[0], cur[0])
        it[2]()
        if it[3]:
            done_tags.add(it[3])
        return it[1]

    bar_done = [0]

    def chunk_barrier(c):
        while LQ and LQ[0][0] <= CF * c - RA:
            lq_issue()
        bar_done[0] = c
        if c < NPRE and c < 2:
            return
        vm.wait(("w", c))
        if "nobar" not in OPT:
            a("s_barrier")

    TSA = int(OPT.get('tsa', 38 * G0)); TSB = int(OPT.get('tsb', 342))
    last_lq = -10
    forced = 0
    GAP = float(OPT.get("gap", 11))
    credit = [0.0]

    def prereq(i):
        nonlocal forced
        kind, t, k, mh = U[i]
        if kind == "p1" and t == 0 and mh == 0 and k < 18:
            while LQ and LQ[0][0] <= i:
                lq_issue()
            vm.wait(("y", k))
        if kind == "p2" and k >= 9:
            q = 2 * (k - 9) + 1
            while q not in hl_done:
                while MQ:
                    MQ.pop(0)()
                g = min(EV)
                for c, fn in EV.pop(g):
                    fn()
                forced += 1000
            vm.wait(("hl", q))
        if i % WE == 0:
            lg.wait(("a", min(i + WE - 1, NU - 1)))

    def force_valu(i):
        nonlocal forced
        kind, t, k, mh = U[i]
        need = []
        if kind == "p1" and k == 18:
            need.append(("bx",))
        if kind == "p2" and k < 9:
            need.append(("h", 2 * k + 1))
        if kind == "p1" and k == 0 and t >= NSL:
            need.append(("h", 2 * (t - NSL) + 1))
        for tg in need:
            while tg not in done_tags:
                vq_pop(); forced += 1

    def fill(i, used):
        credit[0] = min(credit[0] + GAP - used, 8.0 + GAP - used)
        lo = 8 - used
        while VQ and VQ[0][0] <= i:
            c = VQ[0][1] * 4
            if c <= credit[0] or c <= lo or c == 0:
                vq_pop(); credit[0] -= c; lo -= c
            else:
                break
        if not (VQ and VQ[0][0] <= i):
            credit[0] = 0.0

    prereq(0)
    for i in range(NU):
        cur[0] = i
        force_valu(i)
        if ts.on and i in (TSA, TSB):
            ts(); lg.q = []
        mfma3(i, 0)
        used = 0
        evs = EV.pop(i, [])
        pace = PACE0 if ny_left[0] else PACE1
        if evs:
            for c, fn in evs:
                fn(); used += 4 * c
        elif MQ:
            MQ.pop(0)(); used += 4
        elif LQ and LQ[0][1] <= bar_done[0] and i - last_lq >= pace:
            lq_issue(); last_lq = i; used += 4
        fill(i, used)
        mfma3(i, 1)
        used = 0
        if i + 1 < NU:
            prereq(i + 1)
        if i + RA < NU:
            if (i + RA) % CF == 0:
                chunk_barrier((i + RA) // CF)
            dsread(i + RA); used += 4
        fill(i, used)
    assert not EV, EV.keys()
    while VQ or MQ:
        if MQ:
            MQ.pop(0)()
        else:
            vq_pop()
    qleft = [it[3] for it in LQ] + [mk_q(sl, i) for sl in range(NS) if sl not in qslots for i in range(6)]
    print("wq loads left:", len(qleft), file=sys.stderr)
    print("p3 forced:", forced, file=sys.stderr)
    ts()

    P4P = 64; P4A = 16; P4X = 160; P4B = 172

    def p4_prefetch():
        a("s_load_dwordx4 s[36:39], s[0:1], 56")
        a("v_and_b32 v4, 15, v1")
        a("v_lshrrev_b32 v5, 4, v1")
        a("s_lshl_b32 s12, s8, 4")
        a("s_add_u32 s12, s12, s9")
        a("s_mul_i32 s12, s12, 9")
        a("s_add_u32 s12, s12, s3")
        a("s_lshl_b32 s12, s12, 10")
        a("s_add_u32 s13, s12, 4096")
        a("s_add_u32 s14, s12, 8192")
        a("s_cmp_lg_u32 s3, 0")
        a(f"s_cselect_b32 s14, {OOB}, s14")
        a("s_and_b32 s15, s9, 1")
        a("s_mul_i32 s16, s15, 9")
        a("s_add_u32 s16, s16, s3")
        a("s_lshl_b32 s16, s16, 6")
        a("s_add_u32 s17, s16, 512")
        a("s_cmp_lg_u32 s3, 0")
        a(f"s_cselect_b32 s17, {OOB}, s17")
        a("v_lshlrev_b32 v6, 3, v5")
        for i in range(3):
            a(f"s_add_u32 s18, s{12+i}, {X1}")
            a(f"buffer_load_dwordx4 {vr(P4X+4*i,4)}, v3, s[4:7], s18 offen sc1")
        a("s_waitcnt lgkmcnt(0)")
        srd(a, 40, 36, D * 2)
        for i in range(3):
            so, off = ("s16", 256 * i) if i < 2 else ("s17", 0)
            a(f"buffer_load_dwordx2 {vr(P4B+4*i,2)}, v6, s[40:43], {so} offen offset:{off}")
            a(f"buffer_load_dwordx2 {vr(P4B+4*i+2,2)}, v6, s[40:43], {so} offen offset:{off+32}")
        for i in range(3):
            a(f"s_add_u32 s{20+i}, s{12+i}, {PART}")
            if REUSE:
                a(f"s_sub_u32 s{20+i}, s{20+i}, s59")
    sync(48, p4_prefetch)
    ts()
    for s in range(8):
        for i in range(3):
            a(f"buffer_load_dwordx4 {vr(P4P+12*s+4*i,4)}, v3, s[4:7], s{20+i} offen sc1"); vm.issue(("p", s))
            if s < 7:
                a(f"s_add_u32 s{20+i}, s{20+i}, {XT}")
    a("v_mov_b32 v6, 0x00003f80")
    a("v_mov_b32 v7, 0x3f800000")
    for i in range(3):
        for j in range(4):
            a(f"v_lshlrev_b32 v{P4A+8*i+2*j}, 16, v{P4B+4*i+j}")
            a(f"v_and_b32 v{P4A+8*i+2*j+1}, 0xffff0000, v{P4B+4*i+j}")

    def acc4(src):
        for i in range(3):
            for j in range(4):
                a(f"v_dot2c_f32_bf16 v{P4A+8*i+2*j}, v{src+4*i+j}, v6")
                a(f"v_dot2c_f32_bf16 v{P4A+8*i+2*j+1}, v{src+4*i+j}, v7")
    acc4(P4X)
    for s in range(8):
        vm.wait(("p", s))
        acc4(P4P + 12 * s)
    O4 = 40
    for i in range(3):
        for j in range(4):
            a(f"v_cvt_pk_bf16_f32 v{O4+4*i+j}, v{P4A+8*i+2*j}, v{P4A+8*i+2*j+1}")
    a("s_cmp_lg_u32 s59, 0" if "tsl0" not in OPT else "s_cmp_eq_u32 s59, 0")
    a(f"s_cbranch_scc1 {name}_fin")
    for i in range(3):
        a(f"s_add_u32 s18, s{12+i}, {XIN + LSTR}")
        a(f"buffer_store_dwordx4 {vr(O4+4*i,4)}, v3, s[4:7], s18 offen sc1")
    sumsq(56, [P4A + j for j in range(12)])
    sumsq(58, [P4A + 12 + j for j in range(12)])
    a("v_add_f32 v56, v56, v58")
    a("v_add_f32 v57, v57, v59")
    a("v_lshlrev_b32 v58, 3, v0")
    a(f"v_add_u32 v58, {EX}, v58")
    a("ds_write_b64 v58, v[56:57]")
    a("v_lshlrev_b32 v58, 3, v1")
    a(f"v_add_u32 v58, {EX}, v58")
    a("v_lshlrev_b32 v59, 5, v4")
    a("v_lshrrev_b32 v60, 1, v5")
    a("v_lshl_add_u32 v59, v60, 3, v59")
    a("s_lshl_b32 s20, s8, 3")
    a("s_lshr_b32 s21, s9, 1")
    a("s_add_u32 s20, s20, s21")
    a("s_lshl_b32 s20, s20, 9")
    a("s_lshl_b32 s21, s15, 4")
    a("s_add_u32 s20, s20, s21")
    a(f"s_add_u32 s20, s20, {STI + LSTR}")
    a("s_cmp_lg_u32 s3, 0")
    a(f"s_cselect_b32 s20, {OOB}, s20")
    a("s_waitcnt lgkmcnt(0)")
    a("s_barrier")
    for w in range(4):
        a(f"ds_read_b64 {vr(64+2*w,2)}, v58 offset:{w*512}")
    a("s_waitcnt lgkmcnt(0)")
    for i in range(2):
        a(f"v_add_f32 v{64+i}, v{64+i}, v{66+i}")
        a(f"v_add_f32 v{68+i}, v{68+i}, v{70+i}")
    for i in range(2):
        a(f"v_add_f32 v{64+i}, v{64+i}, v{68+i}")
    a("v_mov_b32 v66, v64")
    a("v_mov_b32 v67, v65")
    a("v_permlane16_swap_b32 v64, v66")
    a("v_permlane16_swap_b32 v65, v67")
    a("v_add_f32 v64, v64, v66")
    a("v_add_f32 v65, v65, v67")
    a("buffer_store_dwordx2 v[64:65], v59, s[4:7], s20 offen sc1")
    ts()

    def p1b_prefetch():
        for fn in qleft:
            fn()
        a(f"s_mov_b32 s59, {LSTR}")
        p1_setup()
        p1_consts()
        a("s_lshl_b32 s24, s3, 13")
        a("s_add_u32 s24, s24, 7168")
        a("s_lshl_b32 s21, s3, 10")
        a("s_add_u32 s22, s22, s21")
        a("s_mov_b32 s44, 0xfffefffe")
        a("s_mov_b32 s45, 0xfffefffe")
    sync(64, p1b_prefetch, prev=True)
    ts()
    a(f"s_add_u32 s4, s4, {LSTR}")
    a("s_addc_u32 s5, s5, 0")
    p1_stats_load()
    for grp in xloads(0):
        do_load(grp, 0)
    a("s_mov_b64 exec, s[44:45]")
    for j in range(5):
        if j == 4:
            a("s_cmp_ge_u32 s3, 2")
            a(f"s_cselect_b32 s22, {OOB}, s22")
        a("s_mov_b32 m0, s24")
        a("buffer_load_dwordx4 v3, s[4:7], s22 offen sc1 lds"); vm.issue("halo")
        a("s_add_u32 s22, s22, 4096")
        a("s_add_u32 s24, s24, 32768")
    a("s_mov_b64 exec, -1")
    PFB = int(OPT.get("p1pfb", 6))
    for ks in range(1, 3):
        for grp in xloads(ks):
            do_load(grp, ks)
    p1_stats_math()
    for ks in range(3, PFB):
        for grp in xloads(ks):
            do_load(grp, ks)
    vm.wait("halo")
    a("s_waitcnt lgkmcnt(0)")
    a("s_barrier")
    if ts.on:
        ts.n = 2
        ts()
    p1_loop(xloads, PFB, 0)
    a(f"s_branch {name}_epi")

    a.label(f"{name}_fin")
    srd(a, 40, 38, XT)
    a("v_mul_u32_u24 v6, 1152, v4")
    a("v_lshl_add_u32 v6, v5, 3, v6")
    a("s_lshl_b32 s20, s8, 3")
    a("s_lshr_b32 s21, s9, 1")
    a("s_add_u32 s20, s20, s21")
    a("s_mul_i32 s20, s20, 18432")
    a("s_add_u32 s21, s20, s17")
    a("s_add_u32 s20, s20, s16")
    for i in range(3):
        so, off = ("s20", 256 * i) if i < 2 else ("s21", 0)
        a(f"buffer_store_dwordx2 {vr(O4+4*i,2)}, v6, s[40:43], {so} offen offset:{off}")
        a(f"buffer_store_dwordx2 {vr(O4+4*i+2,2)}, v6, s[40:43], {so} offen offset:{off+32}")
    if ts.on:
        ts.n = 14
        a("s_waitcnt vmcnt(0)")
        ts(); ts(True)
        ts.store()
    a("s_endpgm")
    for b in slowcode:
        a.label(f"{name}_w{b}")
        a("s_add_u32 s57, s57, 1")
        a("s_cmp_gt_u32 s57, 0x40000")
        a(f"s_cbranch_scc1 {name}_r{b}")
        a("s_sleep 2")
        a(f"buffer_load_dword v2, v7, s[4:7], s27 offen sc1")
        a("s_waitcnt vmcnt(0)")
        a("v_readfirstlane_b32 s30, v2")
        a(f"s_cmp_gt_u32 s30, {b}")
        a(f"s_cbranch_scc0 {name}_w{b}")
        a(f"s_branch {name}_r{b}")
    a.label(f"{name}_end")
    a("s_endpgm")
    return name, a.text(), dict(vgpr=512, sgpr=102, accum=256), dict(grid=256, block=256, lds=163840)


def main():
    ks = [gen_p0(CODE0="main_kernel", CPN=8, zero=True, w12="late" not in OPT), gen_main()]
    ref = open(f"cdna_kernels/{NAME}.s.ref").read().split("\n")
    hdr = [ln for ln in ref if ln.startswith(";") and "@launch" not in ln and "Override launch" not in ln and "grid=ceil" not in ln]
    out = hdr[:]
    if "nop" in OPT:
        na = Asm()
        na.raw(".globl nop_kernel\n.p2align 8\n.type nop_kernel,@function\nnop_kernel:")
        na("s_endpgm")
        nk = ("nop_kernel", na.text(), dict(vgpr=8, sgpr=16, accum=8), dict(grid=8, block=64, lds=0))
        pos = OPT["nop"]
        seq = {"a": [nk] + ks, "b": [ks[0], nk, ks[1]], "c": ks + [nk], "d": [nk, nk, nk] + ks}[pos]
        for name, _, _, g in seq:
            out.append(f"; @launch kernel={name} grid=({g['grid']},1,1) block=({g['block']},1,1) lds={g['lds']}")
        ks = [nk] + ks
    for name, _, _, g in (ks if "nop" not in OPT else []):
        out.append(f"; @launch kernel={name} grid=({g['grid']},1,1) block=({g['block']},1,1) lds={g['lds']}")
    out.append('.amdgcn_target "amdgcn-amd-amdhsa--gfx950"')
    out.append(".text")
    for _, txt, _, _ in ks:
        out.append(txt)
    out.append("code_end:")
    out.append("    s_endpgm")
    out.append('.section .rodata,"a"')
    for name, _, kd, _ in ks:
        out.append(KD.format(name=name, **kd))
    path = sys.argv[1] if len(sys.argv) > 1 else f"cdna_kernels/{NAME}.s"
    open(path, "w").write("\n".join(out))
    json.dump(L, open("layout.json", "w"))
    print("written", path)


if __name__ == "__main__":
    main()
```

```python
import sys, json, math
from asmb import Asm, KD, vr, ar, sr
from gen import (OPT, NAME, S, D, F, XT, TILE, OOB, WS_BYTES, L, G0, KT, KO, NCHUNK, SLB, f32, Cnt, Stamps, srd,
                 xg_reduce, stats_finish, gen_p0, w12_roles)

LOG2E = math.log2(math.e)
EX = 147456
CQL = EX + 5 * 3072
CNT = 16384


def gen_main():
    name = "main_kernel"
    a = Asm()
    vm = Cnt(a, "vmcnt", 63); lg = Cnt(a, "lgkmcnt", 15)
    ts = Stamps(a, name)
    XIN = L["X0"]; STI = L["ST0"]; OUT = L["O0"]; X1 = L["X1_0"]; ST1 = L["ST1_0"]
    PART = L["PART0"]; HX = L["HX0"]; FL = L["FL0"]; LSTR = L["LSTR"]
    slowcode = []
    REUSE = "reuse" in OPT
    if REUSE:
        PART = L["PART1"]; HX = L["HX1"]

    a.raw(f".globl {name}\n.p2align 8\n.type {name},@function\n{name}:")
    a("s_cmp_ge_u32 s2, 256")
    a(f"s_cbranch_scc1 {name}_end")
    ts(True); ts()
    a("s_load_dwordx2 s[4:5], s[0:1], 80")
    a("s_mov_b32 s59, 0")
    a("s_mov_b32 s57, 0")
    a("v_and_b32 v1, 63, v0")
    a("v_lshrrev_b32 v2, 6, v0")
    a("v_readfirstlane_b32 s3, v2")
    a("v_lshlrev_b32 v3, 4, v1")
    a("s_and_b32 s12, s2, 7")
    a("s_lshr_b32 s13, s2, 3")
    RB = int(OPT.get("rbits", 1))
    CB = 3 - RB
    MB = 4 - CB
    a(f"s_lshr_b32 s8, s12, {CB}")
    a(f"s_lshl_b32 s8, s8, {4 - RB}")
    a(f"s_lshr_b32 s14, s13, {MB}")
    a("s_add_u32 s8, s8, s14")
    a(f"s_and_b32 s9, s12, {(1 << CB) - 1}")
    a(f"s_lshl_b32 s9, s9, {MB}")
    a(f"s_and_b32 s14, s13, {(1 << MB) - 1}")
    a("s_add_u32 s9, s9, s14")
    a("s_lshl_b32 s10, s8, 7")
    a(f"s_add_u32 s10, s10, {FL + CNT}")
    a("s_sub_u32 s11, s10, 128")
    a("s_cmp_eq_u32 s8, 0")
    a("s_cselect_b32 s11, s10, s11")
    a("s_sub_u32 s12, s10, s11")
    a("v_mov_b32 v254, s12")
    a("v_cmp_eq_u32 vcc, 0, v1")
    a("v_cndmask_b32 v254, 0, v254, vcc")

    if "stag" in OPT:
        a(f"s_and_b32 s12, s8, {OPT.get('stagm', 4)}")
        a("s_cmp_eq_u32 s12, 0")
        a(f"s_cbranch_scc1 {name}_nostag")
        for _ in range(int(OPT["stag"])):
            a("s_sleep 36")
        a.label(f"{name}_nostag")
    L2PF = OPT.get("l2pf", "n")
    a("v_lshlrev_b32 v253, 6, v1")

    def l2pf(sreg, off=0):
        a(f"buffer_load_dword v255, v253, s[4:7], {sreg} offen offset:{off}"); vm.issue("pf")
    LATE = "late" in OPT
    a("s_lshr_b32 s12, s9, 1")
    a("s_lshl_b32 s12, s12, 7")
    a(f"s_add_u32 s12, s12, {FL + CNT + 64 + 2048}")
    a("s_sub_u32 s12, s12, s11")
    a("v_writelane_b32 v254, s12, 2")
    a("s_waitcnt lgkmcnt(0)")
    a("s_and_b32 s5, s5, 0xffff")
    a(f"s_mov_b32 s6, {WS_BYTES}")
    a("s_mov_b32 s7, 0x00020000")
    if LATE:
        a("s_and_b32 s12, s8, 7")
        a("s_cmp_ge_u32 s12, 4")
        a("s_cselect_b32 s13, 1, 0")
        a("s_cmp_eq_u32 s8, 3")
        a("s_cselect_b32 s13, 1, s13")
        a("s_cmp_eq_u32 s13, 0")
        a(f"s_cbranch_scc1 {name}_early")
        a("s_load_dwordx4 s[24:27], s[0:1], 32")
        a("s_load_dwordx2 s[28:29], s[0:1], 48")
        a("s_sub_u32 s12, s8, 3")
        a("s_sub_u32 s13, s8, 7")
        a("s_cmp_ge_u32 s8, 8")
        a("s_cselect_b32 s12, s13, s12")
        a("s_lshl_b32 s31, s12, 4")
        a("s_add_u32 s31, s31, s9")
        a("v_and_b32 v4, 15, v1")
        a("v_lshrrev_b32 v5, 4, v1")
        a("v_lshrrev_b32 v6, 3, v1")
        a("v_and_b32 v7, 7, v1")
        a("v_lshrrev_b32 v11, 2, v1")
        a("v_lshlrev_b32 v11, 7, v11")
        a("v_and_b32 v12, 3, v1")
        a("v_lshl_add_u32 v11, v12, 3, v11")
        a("s_lshl_b32 s38, s3, 5")
        a("v_add_u32 v11, s38, v11")
        a("s_waitcnt lgkmcnt(0)")
        w12_roles(a, name, "s31", lambda: a(f"s_branch {name}_tiled"), lambda k: None, "nt")
        a.label(f"{name}_tiled")
        a("s_lshl_b32 s56, s56, 7")
        a(f"s_add_u32 s56, s56, {FL + CNT + 64 + 2048}")
        a("s_cmp_lg_u32 s3, 0")
        a(f"s_cselect_b32 s56, {OOB}, s56")
        a("v_mov_b32 v2, 1")
        a("v_mov_b32 v4, 0")
        a("s_waitcnt vmcnt(0)")
        a("s_barrier")
        a("s_mov_b64 exec, 1")
        a("buffer_atomic_add v2, v4, s[4:7], s56 offen")
        a("s_mov_b64 exec, -1")
        a.label(f"{name}_early")
    nsync = [0]

    def sync(target, prefetch=None, prev=False, wts=False, waited=False):
        k = nsync[0]; nsync[0] += 1
        if not waited:
            a("s_waitcnt vmcnt(0)")
        if ts.on and OPT.get("tsk") == str(k):
            sv = ts.n; ts.n = 16; ts(); ts.n = sv
        a("s_barrier")
        vm.q = []
        if ts.on and OPT.get("tsk") == str(k):
            sv = ts.n; ts.n = 17; ts(); ts.n = sv
        a("s_cmp_lg_u32 s3, 0")
        a(f"s_cbranch_scc1 {name}_sa{k}")
        a("v_mov_b32 v2, 1")
        a("s_mov_b64 exec, 1")
        a("buffer_atomic_add v2, v254, s[4:7], s11 offen")
        a("s_mov_b64 exec, -1")
        a.label(f"{name}_sa{k}")
        if prefetch:
            prefetch()
        if ts.on and OPT.get("tsk") == str(k):
            sv = ts.n; ts.n = 18; ts(); ts.n = sv
        a("s_cmp_lg_u32 s3, 0")
        a(f"s_cbranch_scc1 {name}_sb{k}")
        a(f"v_mov_b32 v2, {target}")
        if wts:
            a("s_cmp_eq_u32 s59, 0")
            a("s_cselect_b32 s58, 18, 0")
            a("v_writelane_b32 v2, s58, 2")
        a(f"s_mov_b64 exec, {3 if prev else (5 if wts else 1)}")
        PP = int(OPT.get("pp", 0))
        if PP:
            a("buffer_load_dword v252, v254, s[4:7], s11 offen sc1")
            a(f"s_sleep {PP}")
            a("buffer_load_dword v253, v254, s[4:7], s11 offen sc1")
        a.label(f"{name}_sp{k}")
        regs = ((255, 252), (252, 253), (253, 255)) if PP else ((252, 252),)
        for new, old in regs:
            if PP:
                a(f"s_sleep {PP}")
            a(f"buffer_load_dword v{new}, v254, s[4:7], s11 offen sc1")
            a(f"s_waitcnt vmcnt({2 if PP else 0})")
            a(f"v_cmp_gt_u32 vcc, v2, v{old}")
            a("s_nop 4")
            a(f"s_cbranch_vccz {name}_sq{k}")
        a("s_add_u32 s57, s57, 1")
        a("s_cmp_lt_u32 s57, 0x40000")
        a(f"s_cbranch_scc1 {name}_sp{k}")
        a.label(f"{name}_sq{k}")
        a("s_mov_b64 exec, -1")
        a(f"s_branch {name}_sc{k}")
        a.label(f"{name}_sb{k}")
        a("s_waitcnt vmcnt(0)")
        a.label(f"{name}_sc{k}")
        a("s_waitcnt lgkmcnt(0)")
        a("s_barrier")
        vm.q = []; lg.q = []

    ACC = 16; AB = 88
    RN = 168; RS = 176; CQN = 200; CQH = 220; CQS = 224
    MS = 228; MPA = 232; MPB = 236
    T0 = 200

    def p1_setup():
        a("v_and_b32 v4, 15, v1")
        a("v_lshrrev_b32 v5, 4, v1")
        a("s_lshl_b32 s16, s8, 3")
        a("s_lshl_b32 s17, s3, 1")
        a("s_add_u32 s17, s17, s16")
        a("s_mul_i32 s18, s17, 18432")
        a(f"s_add_u32 s18, s18, {XIN}")
        a("s_mul_i32 s22, s16, 18432")
        a(f"s_add_u32 s22, s22, {XIN - 18432}")
        a("s_cmp_eq_u32 s8, 0")
        a(f"s_cselect_b32 s22, {OOB}, s22")
        a("s_lshl_b32 s25, s17, 9")
        a(f"s_add_u32 s25, s25, {STI}")
        a("s_lshl_b32 s26, s16, 9")
        a(f"s_add_u32 s26, s26, {STI - 512}")
        a("s_cmp_eq_u32 s8, 0")
        a(f"s_cselect_b32 s26, {OOB}, s26")
        a("s_lshl_b32 s27, s3, 2")
        a("s_lshr_b32 s28, 0x1654, s27")
        a("s_and_b32 s28, s28, 15")
        a("s_lshr_b32 s27, 0x0632, s27")
        a("s_and_b32 s27, s27, 15")
        a("v_lshlrev_b32 v6, 3, v1")
        a("v_lshlrev_b32 v7, 4, v5")
        a("v_lshlrev_b32 v8, 2, v4")
        a("v_add_u32 v15, 18432, v3")

    def p1_consts():
        a("v_min_u32 v12, 71, v0")
        a("v_lshrrev_b32 v13, 2, v12")
        a("v_lshlrev_b32 v13, 13, v13")
        a("v_and_b32 v12, 3, v12")
        a("v_lshl_add_u32 v13, v12, 8, v13")
        for i in range(4):
            a(f"v_mov_b32 v{ACC+i}, 0x3f803f80")
        a(f"ds_write_b128 v13, {vr(ACC,4)} offset:7168")
        a("v_mov_b32 v9, v3")
        a("s_lshl_b32 s32, s27, 10")
        a("v_add_u32 v10, s32, v3")
        a("s_lshl_b32 s32, s28, 10")
        a("v_add_u32 v11, s32, v3")
        a(f"v_mov_b32 v12, {f32(-1e30)}")
        a("v_lshlrev_b32 v13, 2, v5")
        a("v_sub_u32 v13, v4, v13")
        a("s_cmp_eq_u32 s17, 0")
        a("s_cselect_b32 s33, -100, -2")
        for i in range(4):
            a(f"v_subrev_u32 v14, {i}, v13")
            a("v_and_b32 v2, 1, v14")
            a("v_cmp_eq_u32 s[34:35], 0, v2")
            a("v_cmp_le_i32 vcc, 0, v14")
            a("s_and_b64 vcc, vcc, s[34:35]")
            a(f"v_cndmask_b32 v{MS+i}, v12, 0, vcc")
            a("v_cmp_ge_i32 vcc, -2, v14")
            a("s_and_b64 vcc, vcc, s[34:35]")
            a(f"v_cndmask_b32 v{MPB+i}, v12, 0, vcc")
            a("v_cmp_ge_i32 vcc, s33, v14")
            a("s_and_b64 vcc, vcc, s[34:35]")
            a(f"v_cndmask_b32 v{MPA+i}, v12, 0, vcc")
        a("s_mul_i32 s32, s3, 384")
        a(f"s_add_u32 s32, s32, {EX}")
        a("v_add_u32 v12, s32, v8")
        a("v_add_u32 v13, s32, v7")
        if "o" in L2PF:
            a("s_lshr_b32 s58, s2, 3")
            a("s_lshl_b32 s58, s58, 2")
            a("s_add_u32 s58, s58, s3")
            a("s_mul_i32 s58, s58, 5184")
            a(f"s_add_u32 s58, s58, {L['WO']}")
            l2pf("s58"); l2pf("s58", 1088)
        for i in range(1, 5):
            a(f"v_add_u32 v{239+i}, {4096*i}, v3")
        a("s_and_b32 s40, s9, 3")
        a("s_and_b32 s41, s40, 1")
        a("s_mul_i32 s42, s40, 9")
        a("s_add_u32 s42, s42, s41")
        a("s_lshr_b32 s42, s42, 1")
        a("s_add_u32 s43, s42, s3")
        a("s_add_u32 s46, s42, 4")
        a("s_mul_i32 s47, s43, 36864")
        a(f"s_add_u32 s47, s47, {L['WO']}")
        a("s_sub_u32 s47, s47, s59")
        a("s_add_u32 s48, s47, 18432")
        a("s_lshl_b32 s49, s46, 1")
        a("s_lshr_b32 s32, s3, 1")
        a("s_add_u32 s49, s49, s32")
        a("s_mul_i32 s49, s49, 18432")
        a(f"s_add_u32 s49, s49, {L['WO']}")
        a("s_sub_u32 s49, s49, s59")
        a("s_cmp_eq_u32 s41, 1")
        a(f"s_cselect_b32 s49, {OOB}, s49")

    def wo_load(j, ks):
        def fn():
            vo = "v3" if ks < 4 else f"v{239 + ks // 4}"
            a(f"buffer_load_dwordx4 {ar((j*18+ks)*4,4)}, {vo}, s[4:7], s{47+j} offen offset:{(ks%4)*1024}"); vm.issue("wo")
        return fn

    def p1_stats_load():
        for n, so, off in ((0, "s25", 0), (1, "s25", 512), (2, "s26", 0)):
            a(f"buffer_load_dwordx2 {vr(T0+2*n,2)}, v6, s[4:7], {so} offen offset:{off} sc1"); vm.issue("st")

    def p1_stats_math():
        vm.wait("st")
        for sw in ("v_permlane16_swap_b32", "v_permlane32_swap_b32"):
            for r in range(6):
                a(f"v_mov_b32 v{T0+8+r}, v{T0+r}")
            for r in range(6):
                a(f"{sw} v{T0+r}, v{T0+8+r}")
            for r in range(6):
                a(f"v_add_f32 v{T0+r}, v{T0+r}, v{T0+8+r}")
        for n in range(3):
            b = T0 + 2 * n
            stats_finish(a, b, b + 1, RN + 2 * n, RN + 2 * n + 1, T0 + 8 + n, False)
            a(f"ds_write_b32 v12, v{RN+2*n} offset:{n*128}")
            a(f"ds_write_b32 v12, v{RN+2*n+1} offset:{n*128+64}")
        for n in range(3):
            a(f"ds_read_b128 {vr(RS+8*n,4)}, v13 offset:{n*128}")
            a(f"ds_read_b128 {vr(RS+8*n+4,4)}, v13 offset:{n*128+64}")

    def reads(ks):
        b = AB + 40 * (ks & 1)
        o = (ks % 8) * 8192
        r = [f"ds_read_b128 {vr(b+28,4)}, v9 offset:{o+7*1024}",
             f"ds_read_b128 {vr(b+32,4)}, v10 offset:{o}",
             f"ds_read_b128 {vr(b+36,4)}, v11 offset:{o}"]
        r += [f"ds_read_b128 {vr(b+4*fr,4)}, v9 offset:{o+fr*1024}" for fr in (0, 1, 2, 3, 6, 4, 5)]
        return r

    def mfmas(ks):
        b = AB + 40 * (ks & 1)
        r = []
        acc = vr(ACC + 64, 4); c = "0" if ks == 0 else acc
        r.append(f"v_mfma_f32_16x16x32_bf16 {acc}, {vr(b+32,4)}, {vr(b+28,4)}, {c}")
        acc = vr(ACC + 68, 4); c = "0" if ks == 0 else acc
        r.append(f"v_mfma_f32_16x16x32_bf16 {acc}, {vr(b+28,4)}, {vr(b+36,4)}, {c}")
        for slot, fr in enumerate((0, 1, 2, 3, 6, 4, 5, 6)):
            for n in range(2):
                acc = vr(ACC + 32 * n + 4 * slot, 4)
                x = ar(72 * n + 4 * ks, 4)
                w = vr(b + 4 * fr, 4)
                c = "0" if ks == 0 else acc
                if slot < 5:
                    r.append(f"v_mfma_f32_16x16x32_bf16 {acc}, {w}, {x}, {c}")
                else:
                    r.append(f"v_mfma_f32_16x16x32_bf16 {acc}, {x}, {w}, {c}")
        return r

    def xloads(ks):
        o = (ks % 4) * 1024
        return [[f"buffer_load_dwordx4 {ar(4*ks,4)}, v3, s[4:7], s18 offen offset:{o} sc1"],
                [f"buffer_load_dwordx4 {ar(72+4*ks,4)}, v15, s[4:7], s18 offen offset:{o} sc1"] + (["s_add_u32 s18, s18, 4096"] if ks % 4 == 3 else [])]

    def do_load(grp, ks):
        for t in grp:
            a(t)
        vm.issue(("k", ks))

    NLOOP = int(OPT.get("nloop", 18))

    def p1_loop(loads, PF, CH, WPS, LATE2):
        for t in reads(0):
            a(t)
        a("s_waitcnt lgkmcnt(0)")
        wo_early = [(-1, wo_load(2, ks)) for ks in range(18)] + [(ks, wo_load(j, ks)) for ks in range(18) for j in range(2)]
        wo_early = wo_early[:NLOOP]
        for ks in range(18):
            m = mfmas(ks)
            nxt = ks + 1
            rd = []
            if not CH:
                vm.wait(("k", ks))
            if nxt < 18:
                if CH and nxt % CH == 0:
                    vm.wait(("k", min(nxt + CH - 1, 17)))
                    a("s_barrier")
                if nxt % 8 == 0:
                    a("v_add_u32 v9, 0x10000, v9")
                    a("v_add_u32 v10, 0x10000, v10")
                    a("v_add_u32 v11, 0x10000, v11")
                rd = reads(nxt)
            else:
                a("s_lshl_b32 s32, s27, 6")
                a(f"s_add_u32 s32, s32, {CQL}")
                a("v_add_u32 v12, s32, v7")
                a("s_lshl_b32 s33, s28, 6")
                a(f"s_add_u32 s33, s33, {CQL}")
                a("v_add_u32 v13, s33, v8")
                a("s_mov_b32 s34, 0x00010001")
                a("s_mov_b32 s35, 0x00010001")
            ld = loads(ks + PF) if ks + PF < 18 else []
            for i, t in enumerate(m):
                a(t)
                if i < len(rd):
                    a(rd[i])
                if i >= 10 and (i - 10) % 2 == 0:
                    if (i - 10) // 2 < len(ld):
                        do_load(ld[(i - 10) // 2], ks + PF)
                    elif wo_early and wo_early[0][0] < ks and (i - 10) // 2 < (4 if ks + PF >= 18 else WPS):
                        wo_early.pop(0)[1]()
                if 2 <= i < 10 and i % 2 == 0 and ks + PF >= 18 and wo_early and wo_early[0][0] < ks and LATE2:
                    wo_early.pop(0)[1]()
                if ks == 17 and i == 10:
                    a("s_mov_b64 exec, s[34:35]")
                    a(f"ds_write_b128 v12, {vr(ACC+64,4)}")
                    a("s_mov_b64 exec, 0xffff")
                    a(f"ds_write_b32 v13, v{ACC+68}")
                    a("s_mov_b64 exec, -1")
            a("s_waitcnt lgkmcnt(0)")
        print("wo left after loop:", len(wo_early), file=sys.stderr)
        while wo_early:
            wo_early.pop(0)[1]()

    p1_setup()
    a(f"s_mul_i32 s20, s9, {18*7168}")
    a("s_lshl_b32 s21, s3, 11")
    a("s_add_u32 s20, s20, s21")
    a(f"s_add_u32 s20, s20, {L['WQ']}")
    a("s_sub_u32 s22, s22, 1024")
    a("s_mov_b32 s52, 7168")
    a("s_mov_b32 s44, 0xfffefffe")
    a("s_cmp_eq_u32 s3, 3")
    a("s_cselect_b32 s22, s22, s20")
    a("s_cselect_b32 s52, 1024, s52")
    a("s_cselect_b32 s44, s44, -1")
    a("s_mov_b32 s45, s44")
    a("s_mov_b32 s24, s21")
    p1_stats_load()

    def loads_a(ks):
        return [["s_mov_b32 m0, s24", "s_add_u32 s24, s24, 8192", "buffer_load_dwordx4 v3, s[4:7], s20 offen lds", "s_add_u32 s20, s20, 7168"],
                ["s_mov_b64 exec, s[44:45]", "buffer_load_dwordx4 v3, s[4:7], s22 offen offset:1024 lds", "s_mov_b64 exec, -1",
                 "s_add_u32 s22, s22, s52"]] + xloads(ks)
    for ks in range(2):
        for grp in loads_a(ks):
            do_load(grp, ks)
    p1_consts()
    for ks in range(2, 4):
        for grp in loads_a(ks):
            do_load(grp, ks)
    p1_stats_math()
    for grp in loads_a(4):
        do_load(grp, 4)
    vm.wait(("k", 1))
    a("s_waitcnt lgkmcnt(0)")
    a("s_barrier")
    ts()
    p1_loop(loads_a, 5, 2, 0, True)

    a.label(f"{name}_epi")
    vm.q = ["wo"] * 18
    ts.n = 3
    ts()
    a("s_barrier")
    if "w" in L2PF:
        a("s_and_b32 s58, s8, 7")
        a("s_lshl_b32 s58, s58, 2")
        a("s_add_u32 s58, s58, s3")
        a("s_lshl_b32 s58, s58, 12")
        a(f"s_mul_i32 s29, s9, {SLB}")
        a("s_add_u32 s29, s29, s58")
        a(f"s_add_u32 s29, s29, {L['W12']}")
        a("s_sub_u32 s29, s29, s59")
        l2pf("s29")
    a(f"v_add_u32 v9, {CQL}, v7")
    a(f"v_add_u32 v10, {CQL}, v8")
    for i, fr in enumerate((0, 1, 2, 3, 6)):
        a(f"ds_read_b128 {vr(CQN+4*i,4)}, v9 offset:{fr*64}")
    a(f"ds_read_b128 {vr(CQH,4)}, v12")
    for i, fr in enumerate((4, 5, 6)):
        a(f"ds_read_b32 v{CQS+i}, v10 offset:{fr*64}")
    a(f"ds_read_b32 v{CQS+3}, v13")
    NBG = int(OPT.get("nbg", 30))
    wo_rest = [wo_load(j, ks) for ks in range(18) for j in range(2)][NLOOP - 18:]
    a.bg = wo_rest[:NBG]; wo_rest = wo_rest[NBG:]
    a.bg_every = int(OPT.get("bgevery", 11))
    KF = 88; QF = 112; VF = 128; ONE = 148; T = 152
    for i in range(4):
        a(f"v_mul_f32 v{ACC+64+i}, v{ACC+64+i}, v{RN+4}")
        a(f"v_mul_f32 v{ACC+68+i}, v{ACC+68+i}, v{RS+16+i}")
    for n in (1, 0):
        for j in range(5):
            for i in range(4):
                a(f"v_mul_f32 v{ACC+32*n+4*j+i}, v{ACC+32*n+4*j+i}, v{RN+2*n}")
        for j in range(5, 8):
            for i in range(4):
                a(f"v_mul_f32 v{ACC+32*n+4*j+i}, v{ACC+32*n+4*j+i}, v{RS+8*n+i}")

    def corr_n(acc, n, cq):
        for i in range(4):
            a(f"v_fma_f32 v{acc+i}, -v{RN+2*n+1}, v{cq+i}, v{acc+i}")

    def corr_s(acc, n, cq):
        for i in range(4):
            a(f"v_fma_f32 v{acc+i}, -v{RS+8*n+4+i}, v{cq}, v{acc+i}")

    def pack2(dst, acc):
        a(f"v_cvt_pk_bf16_f32 v{dst}, v{acc}, v{acc+1}")
        a(f"v_cvt_pk_bf16_f32 v{dst+1}, v{acc+2}, v{acc+3}")

    a("v_cmp_eq_u32 s[36:37], 0, v5")
    a("v_cmp_eq_u32 s[38:39], 1, v5")
    a("v_lshlrev_b32 v12, 3, v1")
    a("s_mul_i32 s32, s3, 3072")
    a(f"s_add_u32 s33, s32, {EX}")
    a("v_add_u32 v13, s33, v12")
    a("s_lshl_b32 s32, s3, 9")
    a(f"s_add_u32 s32, s32, {EX}")
    a("s_cmp_eq_u32 s3, 3")
    a(f"s_cselect_b32 s32, {EX+4*3072}, s32")
    a("v_add_u32 v14, s32, v12")
    a("s_waitcnt lgkmcnt(0)")

    def conv_tile(n):
        ac = ACC + 32 * n
        tl = n + 1
        for i in range(5):
            corr_n(ac + 4 * i, n, CQN + 4 * i)
        for h in range(2):
            pack2(QF + (2 * n + h) * 4, ac + 4 * h)
            pack2(KF + (2 * tl + h) * 4, ac + 8 + 4 * h)
        pack2(T + 8 + 2 * n, ac + 16)
        for h in range(2):
            a(f"v_mov_b32 v{KF+(2*tl+h)*4+2}, v{T+8+2*n+1}")
            a(f"v_cndmask_b32 v{QF+(2*n+h)*4+2}, 0, v{T+8+2*n}, s[{36+2*h}:{37+2*h}]")
        for h in range(3):
            corr_s(ac + 20 + 4 * h, n, CQS + h)
            pack2(VF + 6 * h + 2 * tl, ac + 20 + 4 * h)

    corr_n(ACC + 64, 2, CQH)
    corr_s(ACC + 68, 2, CQS + 3)
    pack2(T + 12, ACC + 64)
    pack2(T + 14, ACC + 68)
    a(f"ds_write_b64 v14, {vr(T+12,2)}")
    a(f"ds_write_b64 v14, {vr(T+14,2)} offset:1536")
    conv_tile(1)
    a(f"ds_write_b64 v13, {vr(KF+16,2)} offset:{3072}")
    a(f"ds_write_b64 v13, {vr(KF+20,2)} offset:{3072+512}")
    a(f"ds_write_b64 v13, {vr(T+10,2)} offset:{3072+1024}")
    for h in range(3):
        a(f"ds_write_b64 v13, {vr(VF+6*h+4,2)} offset:{3072+1536+512*h}")
    conv_tile(0)
    for i in range(6):
        a(f"v_mov_b32 v{KF+4*i+3}, 0")
    for i in range(4):
        a(f"v_mov_b32 v{QF+4*i+3}, 0")
        a(f"v_mov_b32 v{ONE+i}, 0x3f803f80")
    a("s_waitcnt lgkmcnt(0)")
    a("s_barrier")
    a(f"ds_read_b64 {vr(KF,2)}, v13")
    a(f"ds_read_b64 {vr(KF+4,2)}, v13 offset:512")
    a(f"ds_read_b32 v{KF+2}, v13 offset:{1024+4}")
    a(f"ds_read_b32 v{KF+6}, v13 offset:{1024+4}")
    for h in range(3):
        a(f"ds_read_b64 {vr(VF+6*h,2)}, v13 offset:{1536+512*h}")
    SB = 16; PB = 48; MX = 64; OB = 168; OO = 72
    jobs = [(1, 0), (1, 1), (0, 0), (0, 1)]
    cs = (18 ** -0.5) * LOG2E
    a(f"s_mov_b32 s50, {f32(cs)}")
    for j, (n, h) in enumerate(jobs):
        if j == 2:
            a("s_waitcnt lgkmcnt(0)")
        q = vr(QF + (2 * n + h) * 4, 4)
        mp = MPA if n == 0 else MPB
        a(f"v_mfma_f32_16x16x32_bf16 {vr(SB+8*j,4)}, {vr(KF+(2*n+h)*4,4)}, {q}, {vr(mp,4)}")
        a(f"v_mfma_f32_16x16x32_bf16 {vr(SB+8*j+4,4)}, {vr(KF+(2*(n+1)+h)*4,4)}, {q}, {vr(MS,4)}")
    a("s_mul_i32 s32, s17, 18432")
    a("s_lshl_b32 s33, s9, 10")
    a("s_add_u32 s33, s33, s32")
    a(f"s_add_u32 s33, s33, {OUT}")
    a("s_add_u32 s34, s33, 18432")
    a("s_lshr_b32 s35, s9, 3")
    a("s_lshl_b32 s35, s35, 10")
    a("s_and_b32 s36, s9, 7")
    a("s_lshl_b32 s36, s36, 7")
    a("s_add_u32 s35, s35, s36")
    a("s_add_u32 s35, s35, s32")
    a(f"s_add_u32 s35, s35, {OUT + 16*1024}")
    a("s_add_u32 s36, s35, 18432")
    for j in range(4):
        s = SB + 8 * j; m = MX + 2 * j
        a(f"v_max3_f32 v{m}, v{s}, v{s+1}, v{s+2}")
        a(f"v_max3_f32 v{m+1}, v{s+3}, v{s+4}, v{s+5}")
        a(f"v_max3_f32 v{m}, v{m}, v{s+6}, v{s+7}")
        a(f"v_max_f32 v{m}, v{m}, v{m+1}")
    for sw in ("v_permlane16_swap_b32", "v_permlane32_swap_b32"):
        for j in range(4):
            a(f"v_mov_b32 v{MX+2*j+1}, v{MX+2*j}")
        for j in range(4):
            a(f"{sw} v{MX+2*j}, v{MX+2*j+1}")
        for j in range(4):
            a(f"v_max_f32 v{MX+2*j}, v{MX+2*j}, v{MX+2*j+1}")
    for j in range(4):
        a(f"v_mul_f32 v{MX+2*j}, s50, v{MX+2*j}")
    for j, (n, h) in enumerate(jobs):
        s = SB + 8 * j
        for i in range(8):
            a(f"v_fma_f32 v{s+i}, v{s+i}, s50, -v{MX+2*j}")
        for i in range(8):
            a(f"v_exp_f32 v{s+i}, v{s+i}")
        for i in range(4):
            a(f"v_cvt_pk_bf16_f32 v{PB+4*j+i}, v{s+2*i}, v{s+2*i+1}")
        p = vr(PB + 4 * j, 4)
        a(f"v_mfma_f32_16x16x32_bf16 {vr(OB+12*j+8,4)}, {vr(ONE,4)}, {p}, 0")
        a(f"v_mfma_f32_16x16x32_bf16 {vr(OB+12*j,4)}, {vr(VF+6*h+2*n,4)}, {p}, 0")
        a(f"v_mfma_f32_16x16x32_bf16 {vr(OB+12*j+4,4)}, {vr(VF+12+2*n,4)}, {p}, 0")
    wo_rest = a.bg + wo_rest
    a.bg = []
    a("v_lshlrev_b32 v12, 3, v4")
    a("v_mov_b32 v13, 0x40000000")
    a("v_cmp_eq_u32 vcc, 2, v5")
    a("v_cndmask_b32 v12, v13, v12, vcc")
    for j, (n, h) in enumerate(jobs):
        o = OB + 12 * j
        a(f"v_rcp_f32 v{o+8}, v{o+8}")
        for i in range(4):
            a(f"v_mul_f32 v{o+i}, v{o+i}, v{o+8}")
        a(f"v_mul_f32 v{o+4+2*h}, v{o+4+2*h}, v{o+8}")
        a(f"v_mul_f32 v{o+5+2*h}, v{o+5+2*h}, v{o+8}")
        a(f"v_cvt_pk_bf16_f32 v{OO+4*n+2*h}, v{o}, v{o+1}")
        a(f"v_cvt_pk_bf16_f32 v{OO+4*n+2*h+1}, v{o+2}, v{o+3}")
        a(f"v_cvt_pk_bf16_f32 v{OO+8+2*n+h}, v{o+4+2*h}, v{o+5+2*h}")
        if h == 1:
            a(f"buffer_store_dwordx4 {vr(OO+4*n,4)}, v3, s[4:7], s{33+n} offen sc1")
            a(f"buffer_store_dwordx2 {vr(OO+8+2*n,2)}, v12, s[4:7], s{35+n} offen sc1")
    ts()

    OL = 98304
    PA = 16; PBB = 40; RES = 88
    NPRE = int(OPT.get("npre", 4))

    CF = int(OPT.get("cf", 24)); NS = 144 // CF; PW = CF // 4; NCH = (666 + CF - 1) // CF
    LASTB = ((PW - 1) // 4) * 4096
    NPRE = NPRE * 24 // CF

    def mk_w(c, i):
        def fn():
            if i == 0:
                a(f"s_add_u32 m0, s54, {(c % NS) * CF * 1024}")
                a(f"s_add_u32 s55, s55, {CF*1024-LASTB}")
            elif i % 4 == 0:
                a("s_add_u32 m0, m0, 4096")
                a("s_add_u32 s55, s55, 4096")
            if not ("nodma" in OPT and c >= 6):
                a(f"buffer_load_dwordx4 v3, s[4:7], s55 offen offset:{(i%4)*1024} {OPT.get('wsc', 'sc1')} lds"); vm.issue(("w", c))
        return fn
    WPRE = [mk_w(c, i) for c in range(NPRE) for i in range(PW)]
    NW2 = int(OPT.get("nw2", 18))

    def p2_prefetch():
        for fn in wo_rest:
            fn()
        a(f"s_mul_i32 s54, s3, {PW*1024}")
        a(f"s_mul_i32 s55, s9, {SLB}")
        a("s_add_u32 s55, s55, s54")
        a(f"s_add_u32 s55, s55, {L['W12'] - (CF*1024-LASTB)}")
        a("s_sub_u32 s55, s55, s59")
        if not LATE:
            for _ in range(int(OPT.get("nw1", 0))):
                WPRE.pop(0)()
        a("s_lshr_b32 s12, s9, 2")
        a("s_lshl_b32 s13, s8, 3")
        a("s_lshl_b32 s14, s12, 1")
        a("s_add_u32 s13, s13, s14")
        a("s_mul_i32 s15, s13, 18432")
        a("s_lshl_b32 s16, s43, 10")
        a("s_add_u32 s16, s16, s15")
        a("s_lshl_b32 s17, s46, 10")
        a("s_add_u32 s17, s17, s15")
        a("s_and_b32 s18, s3, 1")
        a("s_mul_i32 s18, s18, 18432")
        a("s_add_u32 s17, s17, s18")
        a("s_cmp_eq_u32 s41, 1")
        a(f"s_cselect_b32 s17, {OOB}, s17")
        a(f"s_add_u32 s19, s16, {XIN}")
        a("s_lshr_b32 s20, s3, 1")
        a("s_lshl_b32 s20, s20, 3")
        a("s_add_u32 s20, s20, s17")
        a(f"s_add_u32 s20, s20, {XIN}")
        a(f"buffer_load_dwordx4 {vr(RES,4)}, v3, s[4:7], s19 offen sc1")
        a(f"buffer_load_dwordx4 {vr(RES+4,4)}, v15, s[4:7], s19 offen sc1")
        a(f"buffer_load_dwordx2 {vr(RES+8,2)}, v3, s[4:7], s20 offen sc1")
        a("s_mul_i32 s21, s3, 9216")
        a("s_add_u32 s22, s15, s21")
        a(f"s_add_u32 s22, s22, {OUT}")
        a(f"s_add_u32 s21, s21, {OL}")
        a(f"v_add_u32 v9, {OL}, v3")
        a("v_add_u32 v10, s18, v9")
        a(f"v_add_u32 v7, {OL + 16384}, v6")
        a("v_add_u32 v8, 18432, v7")
        a("v_add_u32 v14, s18, v7")
    sync(16, p2_prefetch, wts=LATE)
    ts()
    a("s_mov_b32 m0, s21")
    for i in range(9):
        a(f"buffer_load_dwordx4 v3, s[4:7], s22 offen offset:{(i%3)*1024} sc1 lds")
        if i % 3 == 2 and i < 8:
            a("s_add_u32 s22, s22, 3072")
            a("s_add_u32 m0, m0, 3072")
    for n in range(2):
        for mh in range(2):
            ac = PA + (2 * mh + n) * 4; r = RES + 4 * n + 2 * mh
            a(f"v_lshlrev_b32 v{ac}, 16, v{r}")
            a(f"v_and_b32 v{ac+1}, 0xffff0000, v{r}")
            a(f"v_lshlrev_b32 v{ac+2}, 16, v{r+1}")
            a(f"v_and_b32 v{ac+3}, 0xffff0000, v{r+1}")
    a(f"v_lshlrev_b32 v{PA+16}, 16, v{RES+8}")
    a(f"v_and_b32 v{PA+17}, 0xffff0000, v{RES+8}")
    a(f"v_lshlrev_b32 v{PA+18}, 16, v{RES+9}")
    a(f"v_and_b32 v{PA+19}, 0xffff0000, v{RES+9}")
    a(f"s_add_u32 s19, s16, {X1}")
    a(f"s_add_u32 s20, s17, {X1}")
    a("s_cmp_ge_u32 s3, 2")
    a(f"s_cselect_b32 s20, {OOB}, s20")
    a("s_and_b32 s26, s3, 1")
    a("s_cmp_eq_u32 s26, 0")
    a("s_cselect_b32 s23, 1.0, 0")
    a("s_cselect_b32 s24, 0, 1.0")
    a("s_lshl_b32 s25, s3, 10")
    a(f"s_add_u32 s25, s25, {EX}")
    a("v_add_u32 v11, s25, v3")
    a("s_lshl_b32 s25, s26, 3")
    a(f"s_add_u32 s25, s25, {EX}")
    a("v_add_u32 v12, s25, v3")
    a("s_lshl_b32 s25, s26, 10")
    a(f"s_add_u32 s25, s25, {EX + 4096}")
    a("v_add_u32 v124, s25, v3")
    a("s_lshr_b32 s25, s3, 1")
    a("s_lshl_b32 s25, s25, 3")
    a("v_add_u32 v125, s25, v124")
    a("s_add_u32 s25, s13, s26")
    a("s_lshl_b32 s25, s25, 9")
    a("s_lshl_b32 s27, s40, 7")
    a("s_add_u32 s25, s25, s27")
    a(f"s_add_u32 s25, s25, {ST1}")
    a("s_cmp_ge_u32 s3, 2")
    a(f"s_cselect_b32 s25, {OOB}, s25")
    a("v_mov_b32 v13, 0x40000000")
    a("v_cmp_eq_u32 vcc, 0, v5")
    a("v_cndmask_b32 v13, v13, v6, vcc")
    a("s_waitcnt vmcnt(0)")
    a("s_barrier")
    NB = 4

    def rd2(ks):
        b = PBB + 12 * (ks % NB)
        if ks >= 16:
            o0 = (ks - 16) * 128
            for e, ad in enumerate(("v7", "v8", "v14")):
                a(f"ds_read2_b64 {vr(b+4*e,4)}, {ad} offset0:{o0} offset1:{o0+64}"); lg.issue(("b", ks))
            return
        a(f"ds_read_b128 {vr(b,4)}, v9 offset:{ks*1024}"); lg.issue(("b", ks))
        a(f"ds_read_b128 {vr(b+4,4)}, v9 offset:{18432+ks*1024}"); lg.issue(("b", ks))
        a(f"ds_read_b128 {vr(b+8,4)}, v10 offset:{ks*1024}"); lg.issue(("b", ks))
    for ks in range(NB - 1):
        rd2(ks)
    for ks in range(18):
        if ks + NB - 1 < 18:
            rd2(ks + NB - 1)
        lg.wait(("b", ks))
        b = PBB + 12 * (ks % NB)
        for mh in range(2):
            for n in range(2):
                acc = vr(PA + (2 * mh + n) * 4, 4)
                a(f"v_mfma_f32_16x16x32_bf16 {acc}, {ar((mh*18+ks)*4,4)}, {vr(b+4*n,4)}, {acc}")
        acc = vr(PA + 16, 4)
        a(f"v_mfma_f32_16x16x32_bf16 {acc}, {ar((36+ks)*4,4)}, {vr(b+8,4)}, {acc}")
        if ks < NW2:
            WPRE.pop(0)()
    O2 = 100
    for n in range(2):
        for mh in range(2):
            ac = PA + (2 * mh + n) * 4
            a(f"v_cvt_pk_bf16_f32 v{O2+4*n+2*mh}, v{ac}, v{ac+1}")
            a(f"v_cvt_pk_bf16_f32 v{O2+4*n+2*mh+1}, v{ac+2}, v{ac+3}")
        a(f"buffer_store_dwordx4 {vr(O2+4*n,4)}, {'v15' if n else 'v3'}, s[4:7], s19 offen sc1")
    a(f"v_cvt_pk_bf16_f32 v{O2+8}, v{PA+16}, v{PA+17}")
    a(f"v_cvt_pk_bf16_f32 v{O2+9}, v{PA+18}, v{PA+19}")
    a(f"ds_write_b64 v125, {vr(O2+8,2)}")
    SS = 112

    def sumsq(dst, regs):
        a(f"v_add_f32 v{dst}, v{regs[0]}, v{regs[1]}")
        a(f"v_mul_f32 v{dst+1}, v{regs[0]}, v{regs[0]}")
        a(f"v_fmac_f32 v{dst+1}, v{regs[1]}, v{regs[1]}")
        for r in regs[2:]:
            a(f"v_add_f32 v{dst}, v{dst}, v{r}")
            a(f"v_fmac_f32 v{dst+1}, v{r}, v{r}")
    for n in range(2):
        sumsq(SS + 2 * n, [PA + (2 * mh + n) * 4 + i for mh in range(2) for i in range(4)])
    sumsq(SS + 4, [PA + 16 + i for i in range(4)])
    for n in range(2):
        a(f"v_fmac_f32 v{SS+2*n}, s{23+n}, v{SS+4}")
        a(f"v_fmac_f32 v{SS+2*n+1}, s{23+n}, v{SS+5}")
    a(f"ds_write_b128 v11, {vr(SS,4)}")
    a("s_waitcnt lgkmcnt(0)")
    a("s_barrier")
    a(f"ds_read_b128 {vr(128,4)}, v124")
    for w in range(4):
        a(f"ds_read_b64 {vr(132+2*w,2)}, v12 offset:{w*1024}")
    a("s_waitcnt lgkmcnt(4)")
    a(f"buffer_store_dwordx4 {vr(128,4)}, v3, s[4:7], s20 offen sc1")
    a("s_waitcnt lgkmcnt(0)")
    for i in range(2):
        a(f"v_add_f32 v{132+i}, v{132+i}, v{134+i}")
        a(f"v_add_f32 v{136+i}, v{136+i}, v{138+i}")
    for i in range(2):
        a(f"v_add_f32 v{132+i}, v{132+i}, v{136+i}")
    for sw in ("v_permlane16_swap_b32", "v_permlane32_swap_b32"):
        for i in range(2):
            a(f"v_mov_b32 v{134+i}, v{132+i}")
        for i in range(2):
            a(f"{sw} v{132+i}, v{134+i}")
        for i in range(2):
            a(f"v_add_f32 v{132+i}, v{132+i}, v{134+i}")
    a("buffer_store_dwordx2 v[132:133], v13, s[4:7], s25 offen sc1")
    ts()

    BUD = float(OPT.get("p3bud", 7))
    NAB = int(OPT.get("nab", 13)); RA = NAB - 2; NSL = 6 if NAB <= 9 else 5
    WE = int(OPT.get("we", 3))
    N0 = int(OPT.get("p3n0", 12))
    PACE0 = int(OPT.get("p3pace0", 1)); PACE1 = int(OPT.get("p3pace1", 3))
    DFLAG = int(OPT.get("p3dflag", 45)); DPOLL = int(OPT.get("p3dpoll", 35)); DCHK = int(OPT.get("p3dchk", 40))
    K1, K3, RI, PV = 8, 10, 12, 14
    T = 16; AB3 = 32; AC1 = 164 - 16 * NSL; HO = 164; OST = 236; BX = 244
    assert AB3 + 4 * NAB <= AC1
    HP = 144

    def p3_prefetch():
        while WPRE:
            WPRE.pop(0)()
        a("v_add_u32 v4, 0x10000, v3")
        a("v_add_u32 v5, 0x20000, v3")
        a("v_mov_b32 v7, v6")
        a("v_add_u32 v6, 18432, v3")
        a("s_lshl_b32 s16, s8, 3")
        a("s_lshl_b32 s17, s3, 1")
        a("s_add_u32 s16, s16, s17")
        a("s_mul_i32 s17, s16, 18432")
        a(f"s_add_u32 s18, s17, {X1}")
        a("s_lshl_b32 s21, s16, 9")
        a(f"s_add_u32 s21, s21, {ST1}")
        a("s_lshl_b32 s22, s8, 4")
        a("s_add_u32 s22, s22, s9")
        a("s_lshl_b32 s22, s22, 2")
        a("s_add_u32 s22, s22, s3")
        a("s_xor_b32 s23, s22, 4")
        a("s_mul_i32 s24, s22, 18432")
        a(f"s_add_u32 s24, s24, {HX}")
        a("s_mul_i32 s25, s23, 18432")
        a(f"s_add_u32 s25, s25, {HX}")
        a("s_lshl_b32 s26, s22, 4")
        a(f"s_add_u32 s26, s26, {FL}")
        a("s_lshl_b32 s27, s23, 4")
        a(f"s_add_u32 s27, s27, {FL}")
        a("s_lshr_b32 s28, s9, 1")
        a(f"s_mul_i32 s28, s28, {XT}")
        a("s_add_u32 s28, s28, s17")
        a("s_and_b32 s29, s9, 1")
        a("s_mul_i32 s29, s29, 9216")
        a("s_add_u32 s28, s28, s29")
        a(f"s_add_u32 s28, s28, {PART}")
        if REUSE:
            for r in (24, 25, 28):
                a(f"s_sub_u32 s{r}, s{r}, s59")
        a("s_and_b32 s58, s8, 7")
        a("s_lshl_b32 s58, s58, 2")
        a("s_add_u32 s58, s58, s3")
        a("s_lshl_b32 s58, s58, 12")
        a(f"s_mul_i32 s32, s9, {SLB}")
        a("s_add_u32 s32, s32, s58")
        a(f"s_add_u32 s32, s32, {L['W12'] + 131072}")
        a("s_sub_u32 s32, s32, s59")
        if "w" in L2PF:
            l2pf("s32")
        a(f"s_mul_i32 s33, s9, {18*7168}")
        a("s_add_u32 s33, s33, s58")
        a(f"s_add_u32 s33, s33, {L['WQ']}")
        a("s_cmp_lg_u32 s59, 0")
        a(f"s_cselect_b32 s33, {OOB}, s33")
        a("s_add_u32 s31, s10, 64")
        a("s_cmp_lg_u32 s3, 0")
        a(f"s_cselect_b32 s31, {OOB}, s31")
        a("s_lshl_b32 s12, s8, 4")
        a("s_add_u32 s12, s12, s9")
        a("s_mul_i32 s12, s12, 9")
        a("s_add_u32 s12, s12, s3")
        a("s_lshl_b32 s12, s12, 10")
        a("s_lshl_b32 s50, s3, 11")
        a(f"s_mul_i32 s51, s9, {18*7168}")
        a("s_add_u32 s51, s51, s50")
        a(f"s_add_u32 s51, s51, {L['WQ']}")
        a("s_cmp_lg_u32 s59, 0")
        a(f"s_cselect_b32 s51, {OOB}, s51")
        a("s_cmp_eq_u32 s3, 3")
        a("s_cselect_b32 s56, 0, 1024")
        a("s_add_u32 s52, s51, s56")
        a("s_add_u32 s53, s50, s56")
    sync(32, p3_prefetch)
    ts()
    for n in range(2):
        a(f"buffer_load_dwordx2 {vr(T+2*n,2)}, v7, s[4:7], s21 offen offset:{n*512} sc1"); vm.issue("st")

    U = []
    for k in range(19):
        for t in range(G0):
            for mh in range(2):
                U.append(("p1", t, k, mh))
    for t in range(G0, 9):
        for k in range(19):
            for mh in range(2):
                U.append(("p1", t, k, mh))
    for hk in range(KO):
        for dt in range(9):
            for mh in range(2):
                U.append(("p2", dt, hk, mh))
    for dt in range(9):
        for hk in range(KO, 18):
            for mh in range(2):
                U.append(("p2", dt, hk, mh))
    NU = len(U)

    def mfma3(i, n):
        kind, t, k, mh = U[i]
        if "snake" in OPT and i % 2:
            n = 1 - n
        if kind == "p1":
            acc = vr(AC1 + 16 * (t % NSL) + (2 * mh + n) * 4, 4)
            b = ar((18 * n + k) * 4, 4) if k < 18 else vr(BX + 4 * n, 4)
        else:
            acc = ar(16 * t + (2 * mh + n) * 4, 4)
            b = vr(HO + (2 * k + n) * 4, 4) if k < 9 else ar(HP + (2 * (k - 9) + n) * 4, 4)
        a(f"v_mfma_f32_16x16x32_bf16 {acc}, {vr(AB3+4*(i%NAB),4)}, {b}, {'0' if k == 0 else acc}")

    def mk_y(k, n):
        def fn():
            if k % 4 == 0 and k and n == 0:
                a("s_add_u32 s18, s18, 4096")
            a(f"buffer_load_dwordx4 {ar((18*n+k)*4,4)}, {'v6' if n else 'v3'}, s[4:7], s18 offen offset:{(k%4)*1024} sc1"); vm.issue(("y", k))
        return fn
    LQ = []
    for c in range(NPRE, NCH):
        for i in range(PW):
            LQ.append((CF * c - RA - 0.5 + i * 0.01, c - (NS - 2) if c >= NS else -1, 1, mk_w(c, i), "w"))
    for k in range(18):
        for n in range(2):
            LQ.append((k * G0 * 2 - 0.1 + n * 0.01, -1, 1, mk_y(k, n), "y"))
    def mk_q(slot, i):
        ks = 3 * slot + i // 2; e = i % 2

        def fn():
            a(f"s_add_u32 m0, s{50 if e == 0 else 53}, {ks*8192}")
            a(f"s_add_u32 s56, s{51 if e == 0 else 52}, {ks*7168}")
            a("buffer_load_dwordx4 v3, s[4:7], s56 offen lds"); vm.issue("wq")
        return fn
    assert CF == 24
    qslots = []
    for c in range(NCH, NCH + 4):
        qslots.append(c % NS)
        for i in range(6):
            LQ.append((1000 + c + i * 0.01, c - (NS - 2), 1, mk_q(c % NS, i), "q"))
    LQ.sort(key=lambda x: x[0])
    ny_left = [36]

    def lq_issue():
        it = LQ.pop(0)
        it[3]()
        if it[4] == "y":
            ny_left[0] -= 1
        return it[2]

    for _ in range(N0):
        lq_issue()

    def dsread(f):
        off = (f % 144) * 1024
        base = "v3" if off < 65536 else ("v4" if off < 131072 else "v5")
        a(f"ds_read_b128 {vr(AB3+4*(f%NAB),4)}, {base} offset:{off % 65536}"); lg.issue(("a", f))
    for f in range(RA):
        dsread(f)

    kk = math.sqrt(2.0 / math.pi)
    C1 = -2.0 * kk * LOG2E
    C3 = C1 * 0.044715
    EV = {}
    cur = [0]

    def ev(g, cost, fn):
        EV.setdefault(g, []).append((cost, fn))

    def mk(text):
        return lambda: a(text)

    class Rec:
        def __init__(self): self.l = []
        def __call__(self, t): self.l.append(t)
    rec = Rec()
    rec("v_mov_b32 v7, 0")
    for b in range(3):
        rec(f"v_mov_b32 v{OST+b}, {b+1}")
    for sw in ("v_permlane16_swap_b32", "v_permlane32_swap_b32"):
        for r in range(4):
            rec(f"v_mov_b32 v{T+4+r}, v{T+r}")
        for r in range(4):
            rec(f"{sw} v{T+r}, v{T+4+r}")
        for r in range(4):
            rec(f"v_add_f32 v{T+r}, v{T+r}, v{T+4+r}")
    for n in range(2):
        m = T + 2 * n; r = T + 8 + n; t = T + 4 + n; bx = BX + 4 * n
        stats_finish(rec, m, m + 1, r, T + 10 + n, t, True)
        rec(f"v_rcp_f32 v{RI+n}, v{r}")
        rec(f"v_mul_f32 v{K1+n}, {f32(C1)}, v{r}")
        rec(f"v_mul_f32 v{K3+n}, v{r}, v{r}")
        rec(f"v_mul_f32 v{K3+n}, v{K3+n}, v{r}")
        rec(f"v_mul_f32 v{K3+n}, {f32(C3)}, v{K3+n}")
        rec(f"v_cvt_pk_bf16_f32 v{t}, v{RI+n}, v{RI+n}")
        rec(f"v_and_b32 v{t}, 0xffff0000, v{t}")
        rec(f"v_sub_f32 v{t}, v{RI+n}, v{t}")
        rec(f"v_cvt_pk_bf16_f32 v{bx}, v{RI+n}, v{t}")
        rec(f"v_sub_f32 v{m}, 0, v{m}")
        rec(f"v_cvt_pk_bf16_f32 v{bx+1}, v{m}, v{m}")
        rec(f"v_and_b32 v{t}, 0xffff0000, v{bx+1}")
        rec(f"v_sub_f32 v{t}, v{m}, v{t}")
        rec(f"v_cvt_pk_bf16_f32 v{bx+2}, v{t}, v7")
        rec(f"v_mov_b32 v{bx+3}, 0")
    VQ = [(0, 1, mk(t), None) for t in rec.l]
    VQ[-1] = (0, 1, VQ[-1][2], ("bx",))

    hl_done = set()
    MQ = []
    EARLY = "early" in OPT
    po3 = [None]; sigA = [False]; polledA = [False]

    def defer(fn):
        return lambda: MQ.append(fn)

    def mk_hstore(q):
        def fn():
            if q % 4 == 0 and q:
                a("s_add_u32 s24, s24, 4096")
            a(f"buffer_store_dwordx4 {vr(HO+4*q,4)}, v3, s[4:7], s24 offen offset:{(q%4)*1024} sc1"); vm.issue(("hs", q))
            if q % 6 == 5:
                b = q // 6
                g = cur[0] + DFLAG
                ev(g, 2, lambda: flag_store(b))
                ev(g + DPOLL, 2, lambda: poll_issue(b))
                ev(g + DPOLL + DCHK, 4, lambda: poll_check(b))
        return fn

    def flag_store(b):
        vm.wait(("hs", 6 * b + 5))
        a("s_mov_b64 exec, 1")
        a(f"buffer_store_dword v{OST+b}, v7, s[4:7], s26 offen sc1"); vm.issue("fs")
        a("s_mov_b64 exec, -1")

    def poll_issue(b):
        a("s_mov_b64 exec, 1")
        a(f"buffer_load_dword v2, v7, s[4:7], s27 offen sc1"); vm.issue(("pl", b))
        a("s_mov_b64 exec, -1")

    def poll_check(b):
        vm.wait(("pl", b))
        a("v_readfirstlane_b32 s30, v2")
        a(f"s_cmp_gt_u32 s30, {b}")
        a.nf(f"s_cbranch_scc0 {name}_w{b}")
        a.label(f"{name}_r{b}", safe=False)
        slowcode.append(b)
        for i in range(6):
            ev(cur[0] + 1 + 2 * i, 1, mk_hload(6 * b + i))

    def mk_hload(q):
        def fn():
            if q % 4 == 0 and q:
                a("s_add_u32 s25, s25, 4096")
            a(f"buffer_load_dwordx4 {ar(HP+4*q,4)}, v3, s[4:7], s25 offen offset:{(q%4)*1024} sc1"); vm.issue(("hl", q))
            hl_done.add(q)
        return fn

    SK = 2.5
    gel = []

    def add_gelu(t, ready):
        ac = AC1 + 16 * (t % NSL)
        for v in range(16):
            n = v // 8; mh = (v // 4) % 2; i = v % 4
            x = ac + (2 * mh + n) * 4 + i; tm = T + v
            ops = [(1, f"v_mul_f32 v{tm}, v{x}, v{x}"), (1, f"v_fma_f32 v{tm}, v{tm}, v{K3+n}, v{K1+n}"), (1, f"v_mul_f32 v{tm}, v{tm}, v{x}"),
                   (2, f"v_exp_f32 v{tm}, v{tm}"), (1, f"v_fma_f32 v{tm}, v{tm}, v{RI+n}, v{RI+n}"), (2, f"v_rcp_f32 v{tm}, v{tm}"),
                   (1, f"v_mul_f32 v{x}, v{x}, v{tm}")]
            for st, (c, tx) in enumerate(ops):
                gel.append((16 * t + v + st * SK, ready, c, mk(tx), None))
            if v % 2 == 1:
                gel.append((16 * t + v + 6 * SK + 1.2, ready, 1, mk(f"v_cvt_pk_bf16_f32 v{HO+8*t+v//2}, v{x-1}, v{x}"), None))
            if v % 8 == 7:
                q = 2 * t + n
                gel.append((16 * t + v + 6 * SK + 1.3, ready, 0, defer(mk_hstore(q)), ("h", q)))
    last_idx = {}
    for i, u in enumerate(U):
        last_idx[u[:2]] = i
    for t in range(9):
        add_gelu(t, last_idx[("p1", t)] + 2)
    gel.sort(key=lambda x: x[0])
    VQ += [(g[1], g[2], g[3], g[4]) for g in gel]
    for dt in range(9):
        rdy = last_idx[("p2", dt)] + 2
        for n in range(2):
            o = AC1 + ((2 * dt + n) % 8) * 4
            for mh in range(2):
                for i in range(4):
                    VQ.append((rdy, 1, mk(f"v_accvgpr_read_b32 v{T+8*n+4*mh+i}, a{16*dt+(2*mh+n)*4+i}"), None))
            for e in range(4):
                VQ.append((rdy, 1, mk(f"v_cvt_pk_bf16_f32 v{o+e}, v{T+8*n+2*e}, v{T+8*n+2*e+1}"), None))

            def st(n=n, o=o, dt=dt):
                if dt % 4 == 0 and dt and n == 0:
                    a("s_add_u32 s28, s28, 4096")
                a(f"buffer_store_dwordx4 {vr(o,4)}, {'v6' if n else 'v3'}, s[4:7], s28 offen offset:{(dt%4)*1024} sc1"); vm.issue(("po", dt))
                if dt == 3 and n == 1:
                    po3[0] = cur[0]
            VQ.append((rdy, 0, defer(st), None))
    done_tags = set()

    def vq_pop():
        it = VQ.pop(0)
        assert it[0] - 2 < cur[0] + (1 if cur[0] == NU - 1 else 0), (it[0], cur[0])
        it[2]()
        if it[3]:
            done_tags.add(it[3])
        return it[1]

    bar_done = [0]

    def chunk_barrier(c):
        while LQ and LQ[0][0] <= CF * c - RA:
            lq_issue()
        bar_done[0] = c
        if c < NPRE and c < 2:
            return
        vm.wait(("w", c))
        doA = EARLY and not sigA[0] and po3[0] is not None and (cur[0] >= po3[0] + int(OPT.get("dack", 20)) or c == NCH - 1)
        if doA:
            vm.wait(("po", 3))
        a("s_barrier")
        if doA:
            sigA[0] = True
            print("signal A at unit", cur[0], "po3", po3[0], file=sys.stderr)
            a("s_mov_b64 exec, 1")
            a(f"buffer_atomic_add v{OST}, v7, s[4:7], s31 offen"); vm.issue("at")
            a("s_mov_b64 exec, -1")

            def pollA():
                a("s_mov_b64 exec, 1")
                a("buffer_load_dword v2, v7, s[4:7], s10 offen offset:64 sc1"); vm.issue("pa")
                a("s_mov_b64 exec, -1")
                polledA[0] = True
            ev(min(NU - 1, max(cur[0] + int(OPT.get("dp2", 14)), NU - int(OPT.get("dp3", 14)))), 2, pollA)

    TSA = int(OPT.get('tsa', 38 * G0)); TSB = int(OPT.get('tsb', 342))
    last_lq = -10
    forced = 0
    GAP = float(OPT.get("gap", 11))
    credit = [0.0]

    def prereq(i):
        nonlocal forced
        kind, t, k, mh = U[i]
        if kind == "p1" and t == 0 and mh == 0 and k < 18:
            while LQ and LQ[0][0] <= i:
                lq_issue()
            vm.wait(("y", k))
        if kind == "p2" and k >= 9:
            q = 2 * (k - 9) + 1
            while q not in hl_done:
                while MQ:
                    MQ.pop(0)()
                g = min(EV)
                for c, fn in EV.pop(g):
                    fn()
                forced += 1000
            vm.wait(("hl", q))
        if i % WE == 0:
            lg.wait(("a", min(i + WE - 1, NU - 1)))

    def force_valu(i):
        nonlocal forced
        kind, t, k, mh = U[i]
        need = []
        if kind == "p1" and k == 18:
            need.append(("bx",))
        if kind == "p2" and k < 9:
            need.append(("h", 2 * k + 1))
        if kind == "p1" and k == 0 and t >= NSL:
            need.append(("h", 2 * (t - NSL) + 1))
        for tg in need:
            while tg not in done_tags:
                vq_pop(); forced += 1

    def fill(i, used):
        credit[0] = min(credit[0] + GAP - used, 8.0 + GAP - used)
        lo = 8 - used
        while VQ and VQ[0][0] <= i:
            c = VQ[0][1] * 4
            if c <= credit[0] or c <= lo or c == 0:
                vq_pop(); credit[0] -= c; lo -= c
            else:
                break
        if not (VQ and VQ[0][0] <= i):
            credit[0] = 0.0

    def pf_w():
        a("s_add_u32 s32, s32, 131072")
        l2pf("s32")
    if "w" in L2PF:
        for r in range(2, 6):
            ev(128 * r - int(OPT.get("pflead", 200)), 1, pf_w)
    if "q" in L2PF:
        ev(500, 1, lambda: l2pf("s33"))
    prereq(0)
    for i in range(NU):
        cur[0] = i
        force_valu(i)
        if ts.on and i in (TSA, TSB):
            ts(); lg.q = []
        mfma3(i, 0)
        used = 0
        evs = EV.pop(i, [])
        pace = PACE0 if ny_left[0] else PACE1
        if evs:
            for c, fn in evs:
                fn(); used += 4 * c
        elif MQ:
            MQ.pop(0)(); used += 4
        elif LQ and LQ[0][1] <= bar_done[0] and i - last_lq >= pace:
            lq_issue(); last_lq = i; used += 4
        fill(i, used)
        mfma3(i, 1)
        used = 0
        if i + 1 < NU:
            prereq(i + 1)
        if i + RA < NU:
            if (i + RA) % CF == 0:
                chunk_barrier((i + RA) // CF)
            dsread(i + RA); used += 4
        fill(i, used)
    assert not EV, EV.keys()
    while VQ or MQ:
        if MQ:
            MQ.pop(0)()
        else:
            vq_pop()
    qleft = [it[3] for it in LQ] + [mk_q(sl, i) for sl in range(NS) if sl not in qslots for i in range(6)]
    print("wq loads left:", len(qleft), file=sys.stderr)
    print("p3 forced:", forced, file=sys.stderr)
    ts()

    P4P = 64; P4A = 16; P4X = 160; P4B = 172

    def p4_prefetch():
        a("s_load_dwordx4 s[36:39], s[0:1], 56")
        a("v_and_b32 v4, 15, v1")
        a("v_lshrrev_b32 v5, 4, v1")
        a("s_lshl_b32 s12, s8, 4")
        a("s_add_u32 s12, s12, s9")
        a("s_mul_i32 s12, s12, 9")
        a("s_add_u32 s12, s12, s3")
        a("s_lshl_b32 s12, s12, 10")
        a("s_add_u32 s13, s12, 4096")
        a("s_add_u32 s14, s12, 8192")
        a("s_cmp_lg_u32 s3, 0")
        a(f"s_cselect_b32 s14, {OOB}, s14")
        a("s_and_b32 s15, s9, 1")
        a("s_mul_i32 s16, s15, 9")
        a("s_add_u32 s16, s16, s3")
        a("s_lshl_b32 s16, s16, 6")
        a("s_add_u32 s17, s16, 512")
        a("s_cmp_lg_u32 s3, 0")
        a(f"s_cselect_b32 s17, {OOB}, s17")
        a("v_lshlrev_b32 v6, 3, v5")
        for i in range(3):
            a(f"s_add_u32 s18, s{12+i}, {X1}")
            a(f"buffer_load_dwordx4 {vr(P4X+4*i,4)}, v3, s[4:7], s18 offen sc1")
        a("s_waitcnt lgkmcnt(0)")
        srd(a, 40, 36, D * 2)
        for i in range(3):
            so, off = ("s16", 256 * i) if i < 2 else ("s17", 0)
            a(f"buffer_load_dwordx2 {vr(P4B+4*i,2)}, v6, s[40:43], {so} offen offset:{off}")
            a(f"buffer_load_dwordx2 {vr(P4B+4*i+2,2)}, v6, s[40:43], {so} offen offset:{off+32}")
        for i in range(3):
            a(f"s_add_u32 s{20+i}, s{12+i}, {PART}")
            if REUSE:
                a(f"s_sub_u32 s{20+i}, s{20+i}, s59")
    P4E = 196

    def slot0_loads():
        a(f"s_add_u32 s20, s12, {PART}")
        if REUSE:
            a("s_sub_u32 s20, s20, s59")
        for s in range(8):
            a(f"buffer_load_dwordx4 {vr(P4E+4*s,4)}, v3, s[4:7], s20 offen sc1")
            if s < 7:
                a(f"s_add_u32 s20, s20, {XT}")
    if EARLY:
        assert polledA[0]
        vm.wait("pa")
        a("v_readfirstlane_b32 s30, v2")
        a("s_cmp_ge_u32 s30, 16")
        a(f"s_cbranch_scc0 {name}_e0")
        slot0_loads()
        a("s_waitcnt vmcnt(8)")
        a(f"s_branch {name}_e1")
        a.label(f"{name}_e0")
        a("s_waitcnt vmcnt(0)")
        a.label(f"{name}_e1")
    else:
        a("s_mov_b32 s30, 0")
    sync(48, p4_prefetch, waited=EARLY)
    ts()
    a("s_cmp_ge_u32 s30, 16")
    a(f"s_cbranch_scc1 {name}_e2")
    slot0_loads()
    a.label(f"{name}_e2")
    for s in range(8):
        for i in range(1, 3):
            a(f"buffer_load_dwordx4 {vr(P4P+8*s+4*(i-1),4)}, v3, s[4:7], s{20+i} offen sc1"); vm.issue(("p", s))
            if s < 7:
                a(f"s_add_u32 s{20+i}, s{20+i}, {XT}")
    a("v_mov_b32 v6, 0x00003f80")
    a("v_mov_b32 v7, 0x3f800000")
    for i in range(3):
        for j in range(4):
            a(f"v_lshlrev_b32 v{P4A+8*i+2*j}, 16, v{P4B+4*i+j}")
            a(f"v_and_b32 v{P4A+8*i+2*j+1}, 0xffff0000, v{P4B+4*i+j}")

    def acc1(i, src):
        for j in range(4):
            a(f"v_dot2c_f32_bf16 v{P4A+8*i+2*j}, v{src+j}, v6")
            a(f"v_dot2c_f32_bf16 v{P4A+8*i+2*j+1}, v{src+j}, v7")
    for i in range(3):
        acc1(i, P4X + 4 * i)
    a("s_waitcnt vmcnt(16)")
    for s in range(8):
        acc1(0, P4E + 4 * s)
    for s in range(8):
        vm.wait(("p", s))
        for i in range(1, 3):
            acc1(i, P4P + 8 * s + 4 * (i - 1))
    O4 = 40
    for i in range(3):
        for j in range(4):
            a(f"v_cvt_pk_bf16_f32 v{O4+4*i+j}, v{P4A+8*i+2*j}, v{P4A+8*i+2*j+1}")
    a("s_cmp_lg_u32 s59, 0" if "tsl0" not in OPT else "s_cmp_eq_u32 s59, 0")
    a(f"s_cbranch_scc1 {name}_fin")
    for i in range(3):
        a(f"s_add_u32 s18, s{12+i}, {XIN + LSTR}")
        a(f"buffer_store_dwordx4 {vr(O4+4*i,4)}, v3, s[4:7], s18 offen sc1")
    sumsq(56, [P4A + j for j in range(12)])
    sumsq(58, [P4A + 12 + j for j in range(12)])
    a("v_add_f32 v56, v56, v58")
    a("v_add_f32 v57, v57, v59")
    a("v_lshlrev_b32 v58, 3, v0")
    a(f"v_add_u32 v58, {EX}, v58")
    a("ds_write_b64 v58, v[56:57]")
    a("v_lshlrev_b32 v58, 3, v1")
    a(f"v_add_u32 v58, {EX}, v58")
    a("v_lshlrev_b32 v59, 3, v4")
    a("v_lshl_add_u32 v59, v5, 6, v59")
    a("v_and_b32 v60, 1, v5")
    a("v_lshl_add_u32 v59, v60, 30, v59")
    a("s_lshl_b32 s20, s8, 3")
    a("s_lshr_b32 s21, s9, 1")
    a("s_add_u32 s20, s20, s21")
    a("s_lshl_b32 s20, s20, 9")
    a("s_lshl_b32 s21, s15, 8")
    a("s_add_u32 s20, s20, s21")
    a(f"s_add_u32 s20, s20, {STI + LSTR}")
    a("s_cmp_lg_u32 s3, 0")
    a(f"s_cselect_b32 s20, {OOB}, s20")
    a("s_waitcnt lgkmcnt(0)")
    a("s_barrier")
    for w in range(4):
        a(f"ds_read_b64 {vr(64+2*w,2)}, v58 offset:{w*512}")
    a("s_waitcnt lgkmcnt(0)")
    for i in range(2):
        a(f"v_add_f32 v{64+i}, v{64+i}, v{66+i}")
        a(f"v_add_f32 v{68+i}, v{68+i}, v{70+i}")
    for i in range(2):
        a(f"v_add_f32 v{64+i}, v{64+i}, v{68+i}")
    a("v_mov_b32 v66, v64")
    a("v_mov_b32 v67, v65")
    a("v_permlane16_swap_b32 v64, v66")
    a("v_permlane16_swap_b32 v65, v67")
    a("v_add_f32 v64, v64, v66")
    a("v_add_f32 v65, v65, v67")
    a("buffer_store_dwordx2 v[64:65], v59, s[4:7], s20 offen sc1")
    ts()

    def p1b_prefetch():
        for fn in qleft:
            fn()
        a(f"s_mov_b32 s59, {LSTR}")
        p1_setup()
        p1_consts()
        a("s_lshl_b32 s24, s3, 13")
        a("s_add_u32 s24, s24, 7168")
        a("s_lshl_b32 s21, s3, 10")
        a("s_add_u32 s22, s22, s21")
        a("s_mov_b32 s44, 0xfffefffe")
        a("s_mov_b32 s45, 0xfffefffe")
    sync(64, p1b_prefetch, prev=True)
    ts()
    a(f"s_add_u32 s4, s4, {LSTR}")
    a("s_addc_u32 s5, s5, 0")
    p1_stats_load()
    for grp in xloads(0):
        do_load(grp, 0)
    a("s_mov_b64 exec, s[44:45]")
    for j in range(5):
        if j == 4:
            a("s_cmp_ge_u32 s3, 2")
            a(f"s_cselect_b32 s22, {OOB}, s22")
        a("s_mov_b32 m0, s24")
        a("buffer_load_dwordx4 v3, s[4:7], s22 offen sc1 lds"); vm.issue("halo")
        a("s_add_u32 s22, s22, 4096")
        a("s_add_u32 s24, s24, 32768")
    a("s_mov_b64 exec, -1")
    PFB = int(OPT.get("p1pfb", 6))
    for ks in range(1, 3):
        for grp in xloads(ks):
            do_load(grp, ks)
    p1_stats_math()
    for ks in range(3, PFB):
        for grp in xloads(ks):
            do_load(grp, ks)
    vm.wait("halo")
    a("s_waitcnt lgkmcnt(0)")
    a("s_barrier")
    if ts.on:
        ts.n = 2
        ts()
    p1_loop(xloads, PFB, 0, int(OPT.get('wps', 0)), False)
    a(f"s_branch {name}_epi")

    a.label(f"{name}_fin")
    srd(a, 40, 38, XT)
    a("v_mul_u32_u24 v6, 1152, v4")
    a("v_lshl_add_u32 v6, v5, 3, v6")
    a("s_lshl_b32 s20, s8, 3")
    a("s_lshr_b32 s21, s9, 1")
    a("s_add_u32 s20, s20, s21")
    a("s_mul_i32 s20, s20, 18432")
    a("s_add_u32 s21, s20, s17")
    a("s_add_u32 s20, s20, s16")
    for i in range(3):
        so, off = ("s20", 256 * i) if i < 2 else ("s21", 0)
        a(f"buffer_store_dwordx2 {vr(O4+4*i,2)}, v6, s[40:43], {so} offen offset:{off}")
        a(f"buffer_store_dwordx2 {vr(O4+4*i+2,2)}, v6, s[40:43], {so} offen offset:{off+32}")
    if ts.on:
        ts.n = 14
        a("s_waitcnt vmcnt(0)")
        ts(); ts(True)
        if "tsk" in OPT:
            ts.n = 19; ts()
        ts.store()
    a("s_endpgm")
    for b in slowcode:
        a.label(f"{name}_w{b}")
        a("s_add_u32 s57, s57, 1")
        a("s_cmp_gt_u32 s57, 0x40000")
        a(f"s_cbranch_scc1 {name}_r{b}")
        a("s_sleep 2")
        a(f"buffer_load_dword v2, v7, s[4:7], s27 offen sc1")
        a("s_waitcnt vmcnt(0)")
        a("v_readfirstlane_b32 s30, v2")
        a(f"s_cmp_gt_u32 s30, {b}")
        a(f"s_cbranch_scc0 {name}_w{b}")
        a(f"s_branch {name}_r{b}")
    a.label(f"{name}_end")
    a("s_endpgm")
    return name, a.text(), dict(vgpr=512, sgpr=102, accum=256), dict(grid=256, block=256, lds=163840)


def main():
    ks = [gen_p0(CODE0="main_kernel", CPN=8, zero=True, w12="late" not in OPT), gen_main()]
    ref = open(f"cdna_kernels/{NAME}.s.ref").read().split("\n")
    hdr = [ln for ln in ref if ln.startswith(";") and "@launch" not in ln and "Override launch" not in ln and "grid=ceil" not in ln]
    out = hdr[:]
    if "nop" in OPT:
        na = Asm()
        na.raw(".globl nop_kernel\n.p2align 8\n.type nop_kernel,@function\nnop_kernel:")
        na("s_endpgm")
        nk = ("nop_kernel", na.text(), dict(vgpr=8, sgpr=16, accum=8), dict(grid=8, block=64, lds=0))
        pos = OPT["nop"]
        seq = {"a": [nk] + ks, "b": [ks[0], nk, ks[1]], "c": ks + [nk], "d": [nk, nk, nk] + ks}[pos]
        for name, _, _, g in seq:
            out.append(f"; @launch kernel={name} grid=({g['grid']},1,1) block=({g['block']},1,1) lds={g['lds']}")
        ks = [nk] + ks
    for name, _, _, g in (ks if "nop" not in OPT else []):
        out.append(f"; @launch kernel={name} grid=({g['grid']},1,1) block=({g['block']},1,1) lds={g['lds']}")
    out.append('.amdgcn_target "amdgcn-amd-amdhsa--gfx950"')
    out.append(".text")
    for _, txt, _, _ in ks:
        out.append(txt)
    out.append("code_end:")
    out.append("    s_endpgm")
    out.append('.section .rodata,"a"')
    for name, _, kd, _ in ks:
        out.append(KD.format(name=name, **kd))
    path = sys.argv[1] if len(sys.argv) > 1 else f"cdna_kernels/{NAME}.s"
    open(path, "w").write("\n".join(out))
    json.dump(L, open("layout.json", "w"))
    print("written", path)


if __name__ == "__main__":
    main()
```

```python
import sys, json, math
from asmb import Asm, KD, vr, ar, sr
from gen import (OPT, NAME, S, D, F, XT, TILE, OOB, WS_BYTES, L, G0, KT, KO, NCHUNK, SLB, f32, Cnt, Stamps, srd,
                 xg_reduce, stats_finish, gen_p0, w12_roles)

LOG2E = math.log2(math.e)
EX = 147456
CQL = EX + 5 * 3072
CNT = 16384


def gen_main():
    name = "main_kernel"
    a = Asm()
    vm = Cnt(a, "vmcnt", 63); lg = Cnt(a, "lgkmcnt", 15)
    ts = Stamps(a, name)
    XIN = L["X0"]; STI = L["ST0"]; OUT = L["O0"]; X1 = L["X1_0"]; ST1 = L["ST1_0"]
    PART = L["PART0"]; HX = L["HX0"]; FL = L["FL0"]; LSTR = L["LSTR"]
    slowcode = []
    REUSE = "reuse" in OPT
    if REUSE:
        PART = L["PART1"]; HX = L["HX1"]

    a.raw(f".globl {name}\n.p2align 8\n.type {name},@function\n{name}:")
    a("s_cmp_ge_u32 s2, 256")
    a(f"s_cbranch_scc1 {name}_end")
    ts(True); ts()
    a("s_load_dwordx2 s[4:5], s[0:1], 80")
    a("s_mov_b32 s59, 0")
    a("s_mov_b32 s57, 0")
    a("v_and_b32 v1, 63, v0")
    a("v_lshrrev_b32 v2, 6, v0")
    a("v_readfirstlane_b32 s3, v2")
    a("v_lshlrev_b32 v3, 4, v1")
    a("s_and_b32 s12, s2, 7")
    a("s_lshr_b32 s13, s2, 3")
    RB = int(OPT.get("rbits", 1))
    CB = 3 - RB
    MB = 4 - CB
    a(f"s_lshr_b32 s8, s12, {CB}")
    a(f"s_lshl_b32 s8, s8, {4 - RB}")
    a(f"s_lshr_b32 s14, s13, {MB}")
    a("s_add_u32 s8, s8, s14")
    a(f"s_and_b32 s9, s12, {(1 << CB) - 1}")
    a(f"s_lshl_b32 s9, s9, {MB}")
    a(f"s_and_b32 s14, s13, {(1 << MB) - 1}")
    a("s_add_u32 s9, s9, s14")
    a("s_lshl_b32 s10, s8, 7")
    a(f"s_add_u32 s10, s10, {FL + CNT}")
    a("s_sub_u32 s11, s10, 128")
    a("s_cmp_eq_u32 s8, 0")
    a("s_cselect_b32 s11, s10, s11")
    a("s_sub_u32 s12, s10, s11")
    a("v_mov_b32 v254, s12")
    a("v_cmp_eq_u32 vcc, 0, v1")
    a("v_cndmask_b32 v254, 0, v254, vcc")

    if "stag" in OPT:
        a(f"s_and_b32 s12, s8, {OPT.get('stagm', 4)}")
        a("s_cmp_eq_u32 s12, 0")
        a(f"s_cbranch_scc1 {name}_nostag")
        for _ in range(int(OPT["stag"])):
            a("s_sleep 36")
        a.label(f"{name}_nostag")
    L2PF = OPT.get("l2pf", "n")

    def l2pf(sreg, off=0):
        a(f"buffer_load_dword v255, v253, s[4:7], {sreg} offen offset:{off}"); vm.issue("pf")
    LATE = "late" in OPT
    a("s_lshr_b32 s12, s9, 1")
    a("s_lshl_b32 s12, s12, 7")
    a(f"s_add_u32 s12, s12, {FL + CNT + 64 + 2048}")
    a("s_sub_u32 s12, s12, s11")
    a("v_writelane_b32 v254, s12, 2")
    a("s_waitcnt lgkmcnt(0)")
    a("s_and_b32 s5, s5, 0xffff")
    a(f"s_mov_b32 s6, {WS_BYTES}")
    a("s_mov_b32 s7, 0x00020000")
    if LATE:
        a("s_and_b32 s12, s8, 7")
        a("s_cmp_ge_u32 s12, 4")
        a("s_cselect_b32 s13, 1, 0")
        a("s_cmp_eq_u32 s8, 3")
        a("s_cselect_b32 s13, 1, s13")
        a("s_cmp_eq_u32 s13, 0")
        a(f"s_cbranch_scc1 {name}_early")
        a("s_load_dwordx4 s[24:27], s[0:1], 32")
        a("s_load_dwordx2 s[28:29], s[0:1], 48")
        a("s_sub_u32 s12, s8, 3")
        a("s_sub_u32 s13, s8, 7")
        a("s_cmp_ge_u32 s8, 8")
        a("s_cselect_b32 s12, s13, s12")
        a("s_lshl_b32 s31, s12, 4")
        a("s_add_u32 s31, s31, s9")
        a("v_and_b32 v4, 15, v1")
        a("v_lshrrev_b32 v5, 4, v1")
        a("v_lshrrev_b32 v6, 3, v1")
        a("v_and_b32 v7, 7, v1")
        a("v_lshrrev_b32 v11, 2, v1")
        a("v_lshlrev_b32 v11, 7, v11")
        a("v_and_b32 v12, 3, v1")
        a("v_lshl_add_u32 v11, v12, 3, v11")
        a("s_lshl_b32 s38, s3, 5")
        a("v_add_u32 v11, s38, v11")
        a("s_waitcnt lgkmcnt(0)")
        w12_roles(a, name, "s31", lambda: a(f"s_branch {name}_tiled"), lambda k: None, "nt")
        a.label(f"{name}_tiled")
        a("s_lshl_b32 s56, s56, 7")
        a(f"s_add_u32 s56, s56, {FL + CNT + 64 + 2048}")
        a("s_cmp_lg_u32 s3, 0")
        a(f"s_cselect_b32 s56, {OOB}, s56")
        a("v_mov_b32 v2, 1")
        a("v_mov_b32 v4, 0")
        a("s_waitcnt vmcnt(0)")
        a("s_barrier")
        a("s_mov_b64 exec, 1")
        a("buffer_atomic_add v2, v4, s[4:7], s56 offen")
        a("s_mov_b64 exec, -1")
        a.label(f"{name}_early")
    nsync = [0]

    def sync(target, prefetch=None, prev=False, wts=False, waited=False, pre=None):
        k = nsync[0]; nsync[0] += 1
        PFE = OPT.get("pfe", "0000")[k] == "1" and not waited
        PREM = OPT.get("prem", "0000")[k] == "1" or PFE
        if pre and PREM and not (PFE and k == 3):
            pre()
        npe = 0
        if PFE:
            n0 = len(a.out)
            prefetch()
            npe = sum(1 for ln in a.out[n0:] if ln.strip().startswith("buffer_"))
            prefetch = None
            if k == 3:
                PREM = False
        RET = "ret" in OPT
        mask = 3 if prev else (5 if wts else 1)
        a("v_cmp_eq_u32 vcc, 0, v1")
        a("v_cndmask_b32 v252, 0, 1, vcc")
        a(f"v_mov_b32 v255, {target}")
        if wts:
            a("s_cmp_eq_u32 s59, 0")
            a("s_cselect_b32 s58, 18, 0")
            a("v_writelane_b32 v255, s58, 2")
        a("v_sub_u32 v253, v255, v252")
        if not waited:
            a(f"s_waitcnt vmcnt({npe})")
        if ts.on and OPT.get("tsk") == str(k):
            sv = ts.n; ts.n = 16; ts(); ts.n = sv
        a("s_barrier")
        vm.q = []
        if ts.on and OPT.get("tsk") == str(k):
            sv = ts.n; ts.n = 17; ts(); ts.n = sv
        a("s_cmp_lg_u32 s3, 0")
        a(f"s_cbranch_scc1 {name}_sa{k}")
        a(f"s_mov_b64 exec, {mask if RET else 1}")
        a("buffer_atomic_add v252, v254, s[4:7], s11 offen" + (" sc0" if RET else ""))
        if "poll1" in OPT:
            a(f"s_mov_b64 exec, {mask}")
            a("buffer_load_dword v253, v254, s[4:7], s11 offen sc1")
        a("s_mov_b64 exec, -1")
        a.label(f"{name}_sa{k}")
        if pre and not PREM:
            pre()
        n0 = len(a.out)
        if prefetch:
            prefetch()
        npf = sum(1 for ln in a.out[n0:] if ln.strip().startswith("buffer_"))
        if ts.on and OPT.get("tsk") == str(k):
            sv = ts.n; ts.n = 18; ts(); ts.n = sv
        a("s_cmp_lg_u32 s3, 0")
        a(f"s_cbranch_scc1 {name}_sb{k}")
        a(f"s_mov_b64 exec, {mask}")
        if RET or "poll1" in OPT:
            a(f"s_waitcnt vmcnt({npf})")
            a("v_cmp_gt_u32 vcc, v253, v252" if RET else "v_cmp_gt_u32 vcc, v255, v253")
            a("s_nop 4")
            a(f"s_cbranch_vccz {name}_sq{k}")
        if "sl0" in OPT:
            a(f"s_sleep {OPT['sl0']}")
        a.label(f"{name}_sp{k}")
        if "sl1" in OPT:
            a(f"s_sleep {OPT['sl1']}")
        a("buffer_load_dword v252, v254, s[4:7], s11 offen sc1")
        a("s_add_u32 s57, s57, 1")
        a("s_waitcnt vmcnt(0)")
        a("v_cmp_gt_u32 vcc, v255, v252")
        a("s_nop 4")
        a(f"s_cbranch_vccz {name}_sq{k}")
        a("s_cmp_lt_u32 s57, 0x40000")
        a(f"s_cbranch_scc1 {name}_sp{k}")
        a.label(f"{name}_sq{k}")
        a("s_mov_b64 exec, -1")
        a.label(f"{name}_sb{k}")
        a("s_waitcnt vmcnt(0) lgkmcnt(0)")
        if OPT.get("idlek") == str(k):
            for _ in range(int(OPT["idlen"])):
                a("s_sleep 36")
        a("s_barrier")
        vm.q = []; lg.q = []

    def split(fn):
        return fn

    ACC = 16; AB = 88
    RN = 168; RS = 176; CQN = 200; CQH = 220; CQS = 224
    MS = 228; MPA = 232; MPB = 236
    T0 = 200

    def p1_setup():
        a("v_and_b32 v4, 15, v1")
        a("v_lshrrev_b32 v5, 4, v1")
        a("s_lshl_b32 s16, s8, 3")
        a("s_lshl_b32 s17, s3, 1")
        a("s_add_u32 s17, s17, s16")
        a("s_mul_i32 s18, s17, 18432")
        a(f"s_add_u32 s18, s18, {XIN}")
        a("s_mul_i32 s22, s16, 18432")
        a(f"s_add_u32 s22, s22, {XIN - 18432}")
        a("s_cmp_eq_u32 s8, 0")
        a(f"s_cselect_b32 s22, {OOB}, s22")
        a("s_lshl_b32 s25, s17, 9")
        a(f"s_add_u32 s25, s25, {STI}")
        a("s_lshl_b32 s26, s16, 9")
        a(f"s_add_u32 s26, s26, {STI - 512}")
        a("s_cmp_eq_u32 s8, 0")
        a(f"s_cselect_b32 s26, {OOB}, s26")
        a("s_lshl_b32 s27, s3, 2")
        a("s_lshr_b32 s28, 0x1654, s27")
        a("s_and_b32 s28, s28, 15")
        a("s_lshr_b32 s27, 0x0632, s27")
        a("s_and_b32 s27, s27, 15")
        a("v_lshlrev_b32 v6, 3, v1")
        a("v_lshlrev_b32 v7, 4, v5")
        a("v_lshlrev_b32 v8, 2, v4")
        a("v_add_u32 v15, 18432, v3")

    def p1_consts():
        a("v_min_u32 v12, 71, v0")
        a("v_lshrrev_b32 v13, 2, v12")
        a("v_lshlrev_b32 v13, 13, v13")
        a("v_and_b32 v12, 3, v12")
        a("v_lshl_add_u32 v13, v12, 8, v13")
        for i in range(4):
            a(f"v_mov_b32 v{ACC+i}, 0x3f803f80")
        a(f"ds_write_b128 v13, {vr(ACC,4)} offset:7168")
        a("v_mov_b32 v9, v3")
        a("s_lshl_b32 s32, s27, 10")
        a("v_add_u32 v10, s32, v3")
        a("s_lshl_b32 s32, s28, 10")
        a("v_add_u32 v11, s32, v3")
        a(f"v_mov_b32 v12, {f32(-1e30)}")
        a("v_lshlrev_b32 v13, 2, v5")
        a("v_sub_u32 v13, v4, v13")
        a("s_cmp_eq_u32 s17, 0")
        a("s_cselect_b32 s33, -100, -2")
        for i in range(4):
            a(f"v_subrev_u32 v14, {i}, v13")
            a("v_and_b32 v2, 1, v14")
            a("v_cmp_eq_u32 s[34:35], 0, v2")
            a("v_cmp_le_i32 vcc, 0, v14")
            a("s_and_b64 vcc, vcc, s[34:35]")
            a(f"v_cndmask_b32 v{MS+i}, v12, 0, vcc")
            a("v_cmp_ge_i32 vcc, -2, v14")
            a("s_and_b64 vcc, vcc, s[34:35]")
            a(f"v_cndmask_b32 v{MPB+i}, v12, 0, vcc")
            a("v_cmp_ge_i32 vcc, s33, v14")
            a("s_and_b64 vcc, vcc, s[34:35]")
            a(f"v_cndmask_b32 v{MPA+i}, v12, 0, vcc")
        a("s_mul_i32 s32, s3, 384")
        a(f"s_add_u32 s32, s32, {EX}")
        a("v_add_u32 v12, s32, v8")
        a("v_add_u32 v13, s32, v7")
        if "o" in L2PF:
            a("s_lshr_b32 s58, s2, 3")
            a("s_lshl_b32 s58, s58, 2")
            a("s_add_u32 s58, s58, s3")
            a("s_mul_i32 s58, s58, 5184")
            a(f"s_add_u32 s58, s58, {L['WO']}")
            l2pf("s58"); l2pf("s58", 1088)
        for i in range(1, 5):
            a(f"v_add_u32 v{239+i}, {4096*i}, v3")
        a("s_and_b32 s40, s9, 3")
        a("s_and_b32 s41, s40, 1")
        a("s_mul_i32 s42, s40, 9")
        a("s_add_u32 s42, s42, s41")
        a("s_lshr_b32 s42, s42, 1")
        a("s_add_u32 s43, s42, s3")
        a("s_add_u32 s46, s42, 4")
        a("s_mul_i32 s47, s43, 36864")
        a(f"s_add_u32 s47, s47, {L['WO']}")
        a("s_sub_u32 s47, s47, s59")
        a("s_add_u32 s48, s47, 18432")
        a("s_lshl_b32 s49, s46, 1")
        a("s_lshr_b32 s32, s3, 1")
        a("s_add_u32 s49, s49, s32")
        a("s_mul_i32 s49, s49, 18432")
        a(f"s_add_u32 s49, s49, {L['WO']}")
        a("s_sub_u32 s49, s49, s59")
        a("s_cmp_eq_u32 s41, 1")
        a(f"s_cselect_b32 s49, {OOB}, s49")

    def wo_load(j, ks):
        def fn():
            vo = "v3" if ks < 4 else f"v{239 + ks // 4}"
            a(f"buffer_load_dwordx4 {ar((j*18+ks)*4,4)}, {vo}, s[4:7], s{47+j} offen offset:{(ks%4)*1024}"); vm.issue("wo")
        return fn

    def p1_stats_load():
        for n, so, off in ((0, "s25", 0), (1, "s25", 512), (2, "s26", 0)):
            a(f"buffer_load_dwordx2 {vr(T0+2*n,2)}, v6, s[4:7], {so} offen offset:{off} sc1"); vm.issue("st")

    def p1_stats_math():
        vm.wait("st")
        for sw in ("v_permlane16_swap_b32", "v_permlane32_swap_b32"):
            for r in range(6):
                a(f"v_mov_b32 v{T0+8+r}, v{T0+r}")
            for r in range(6):
                a(f"{sw} v{T0+r}, v{T0+8+r}")
            for r in range(6):
                a(f"v_add_f32 v{T0+r}, v{T0+r}, v{T0+8+r}")
        for n in range(3):
            b = T0 + 2 * n
            stats_finish(a, b, b + 1, RN + 2 * n, RN + 2 * n + 1, T0 + 8 + n, False)
            a(f"ds_write_b32 v12, v{RN+2*n} offset:{n*128}")
            a(f"ds_write_b32 v12, v{RN+2*n+1} offset:{n*128+64}")
        for n in range(3):
            a(f"ds_read_b128 {vr(RS+8*n,4)}, v13 offset:{n*128}")
            a(f"ds_read_b128 {vr(RS+8*n+4,4)}, v13 offset:{n*128+64}")

    def reads(ks):
        b = AB + 40 * (ks & 1)
        o = (ks % 8) * 8192
        r = [f"ds_read_b128 {vr(b+28,4)}, v9 offset:{o+7*1024}",
             f"ds_read_b128 {vr(b+32,4)}, v10 offset:{o}",
             f"ds_read_b128 {vr(b+36,4)}, v11 offset:{o}"]
        r += [f"ds_read_b128 {vr(b+4*fr,4)}, v9 offset:{o+fr*1024}" for fr in (0, 1, 2, 3, 6, 4, 5)]
        return r

    def mfmas(ks):
        b = AB + 40 * (ks & 1)
        r = []
        acc = vr(ACC + 64, 4); c = "0" if ks == 0 else acc
        r.append(f"v_mfma_f32_16x16x32_bf16 {acc}, {vr(b+32,4)}, {vr(b+28,4)}, {c}")
        acc = vr(ACC + 68, 4); c = "0" if ks == 0 else acc
        r.append(f"v_mfma_f32_16x16x32_bf16 {acc}, {vr(b+28,4)}, {vr(b+36,4)}, {c}")
        for slot, fr in enumerate((0, 1, 2, 3, 6, 4, 5, 6)):
            for n in range(2):
                acc = vr(ACC + 32 * n + 4 * slot, 4)
                x = ar(72 * n + 4 * ks, 4)
                w = vr(b + 4 * fr, 4)
                c = "0" if ks == 0 else acc
                if slot < 5:
                    r.append(f"v_mfma_f32_16x16x32_bf16 {acc}, {w}, {x}, {c}")
                else:
                    r.append(f"v_mfma_f32_16x16x32_bf16 {acc}, {x}, {w}, {c}")
        return r

    def xloads(ks):
        o = (ks % 4) * 1024
        return [[f"buffer_load_dwordx4 {ar(4*ks,4)}, v3, s[4:7], s18 offen offset:{o} sc1"],
                [f"buffer_load_dwordx4 {ar(72+4*ks,4)}, v15, s[4:7], s18 offen offset:{o} sc1"] + (["s_add_u32 s18, s18, 4096"] if ks % 4 == 3 else [])]

    def do_load(grp, ks):
        for t in grp:
            a(t)
        vm.issue(("k", ks))

    NLOOP = int(OPT.get("nloop", 18))

    def p1_loop(loads, PF, CH, WPS, LATE2):
        for t in reads(0):
            a(t)
        a("s_waitcnt lgkmcnt(0)")
        wo_early = [(-1, wo_load(2, ks)) for ks in range(18)] + [(ks, wo_load(j, ks)) for ks in range(18) for j in range(2)]
        wo_early = wo_early[:NLOOP]
        for ks in range(18):
            m = mfmas(ks)
            nxt = ks + 1
            rd = []
            if not CH:
                vm.wait(("k", ks))
            if nxt < 18:
                if CH and nxt % CH == 0:
                    vm.wait(("k", min(nxt + CH - 1, 17)))
                    a("s_barrier")
                if nxt % 8 == 0:
                    a("v_add_u32 v9, 0x10000, v9")
                    a("v_add_u32 v10, 0x10000, v10")
                    a("v_add_u32 v11, 0x10000, v11")
                rd = reads(nxt)
            else:
                a("s_lshl_b32 s32, s27, 6")
                a(f"s_add_u32 s32, s32, {CQL}")
                a("v_add_u32 v12, s32, v7")
                a("s_lshl_b32 s33, s28, 6")
                a(f"s_add_u32 s33, s33, {CQL}")
                a("v_add_u32 v13, s33, v8")
                a("s_mov_b32 s34, 0x00010001")
                a("s_mov_b32 s35, 0x00010001")
            ld = loads(ks + PF) if ks + PF < 18 else []
            for i, t in enumerate(m):
                a(t)
                if i < len(rd):
                    a(rd[i])
                if i >= 10 and (i - 10) % 2 == 0:
                    if (i - 10) // 2 < len(ld):
                        do_load(ld[(i - 10) // 2], ks + PF)
                    elif wo_early and wo_early[0][0] < ks and (i - 10) // 2 < (4 if ks + PF >= 18 else WPS):
                        wo_early.pop(0)[1]()
                if 2 <= i < 10 and i % 2 == 0 and ks + PF >= 18 and wo_early and wo_early[0][0] < ks and LATE2:
                    wo_early.pop(0)[1]()
                if ks == 17 and i == 10:
                    a("s_mov_b64 exec, s[34:35]")
                    a(f"ds_write_b128 v12, {vr(ACC+64,4)}")
                    a("s_mov_b64 exec, 0xffff")
                    a(f"ds_write_b32 v13, v{ACC+68}")
                    a("s_mov_b64 exec, -1")
            a("s_waitcnt lgkmcnt(0)")
        print("wo left after loop:", len(wo_early), file=sys.stderr)
        while wo_early:
            wo_early.pop(0)[1]()

    a.label(f"{name}_p1a")
    p1_setup()
    a(f"s_mul_i32 s20, s9, {18*7168}")
    a("s_lshl_b32 s21, s3, 11")
    a("s_add_u32 s20, s20, s21")
    a(f"s_add_u32 s20, s20, {L['WQ']}")
    a("s_sub_u32 s20, s20, s59")
    a("s_sub_u32 s22, s22, 1024")
    a("s_mov_b32 s52, 7168")
    a("s_mov_b32 s44, 0xfffefffe")
    a("s_cmp_eq_u32 s3, 3")
    a("s_cselect_b32 s22, s22, s20")
    a("s_cselect_b32 s52, 1024, s52")
    a("s_cselect_b32 s44, s44, -1")
    a("s_mov_b32 s45, s44")
    a("s_mov_b32 s24, s21")
    p1_stats_load()

    def loads_a(ks):
        return [["s_mov_b32 m0, s24", "s_add_u32 s24, s24, 8192", "buffer_load_dwordx4 v3, s[4:7], s20 offen lds", "s_add_u32 s20, s20, 7168"],
                ["s_mov_b64 exec, s[44:45]", "buffer_load_dwordx4 v3, s[4:7], s22 offen offset:1024 lds", "s_mov_b64 exec, -1",
                 "s_add_u32 s22, s22, s52"]] + xloads(ks)
    for ks in range(2):
        for grp in loads_a(ks):
            do_load(grp, ks)
    p1_consts()
    for ks in range(2, 4):
        for grp in loads_a(ks):
            do_load(grp, ks)
    p1_stats_math()
    for grp in loads_a(4):
        do_load(grp, 4)
    vm.wait(("k", 1))
    a("s_waitcnt lgkmcnt(0)")
    a("s_barrier")
    ts()
    p1_loop(loads_a, 5, 2, 0, True)

    a.label(f"{name}_epi")
    vm.q = ["wo"] * 18
    ts.n = 3
    ts()
    a("s_barrier")
    if "w" in L2PF:
        a("s_and_b32 s58, s8, 7")
        a("s_lshl_b32 s58, s58, 2")
        a("s_add_u32 s58, s58, s3")
        a("s_lshl_b32 s58, s58, 12")
        a(f"s_mul_i32 s29, s9, {SLB}")
        a("s_add_u32 s29, s29, s58")
        a(f"s_add_u32 s29, s29, {L['W12']}")
        a("s_sub_u32 s29, s29, s59")
        l2pf("s29")
    a(f"v_add_u32 v9, {CQL}, v7")
    a(f"v_add_u32 v10, {CQL}, v8")
    for i, fr in enumerate((0, 1, 2, 3, 6)):
        a(f"ds_read_b128 {vr(CQN+4*i,4)}, v9 offset:{fr*64}")
    a(f"ds_read_b128 {vr(CQH,4)}, v12")
    for i, fr in enumerate((4, 5, 6)):
        a(f"ds_read_b32 v{CQS+i}, v10 offset:{fr*64}")
    a(f"ds_read_b32 v{CQS+3}, v13")
    NBG = int(OPT.get("nbg", 30))
    wo_rest = [wo_load(j, ks) for ks in range(18) for j in range(2)][NLOOP - 18:]
    a.bg = wo_rest[:NBG]; wo_rest = wo_rest[NBG:]
    a.bg_every = int(OPT.get("bgevery", 11))
    KF = 88; QF = 112; VF = 128; ONE = 148; T = 152
    for i in range(4):
        a(f"v_mul_f32 v{ACC+64+i}, v{ACC+64+i}, v{RN+4}")
        a(f"v_mul_f32 v{ACC+68+i}, v{ACC+68+i}, v{RS+16+i}")
    for n in (1, 0):
        for j in range(5):
            for i in range(4):
                a(f"v_mul_f32 v{ACC+32*n+4*j+i}, v{ACC+32*n+4*j+i}, v{RN+2*n}")
        for j in range(5, 8):
            for i in range(4):
                a(f"v_mul_f32 v{ACC+32*n+4*j+i}, v{ACC+32*n+4*j+i}, v{RS+8*n+i}")

    def corr_n(acc, n, cq):
        for i in range(4):
            a(f"v_fma_f32 v{acc+i}, -v{RN+2*n+1}, v{cq+i}, v{acc+i}")

    def corr_s(acc, n, cq):
        for i in range(4):
            a(f"v_fma_f32 v{acc+i}, -v{RS+8*n+4+i}, v{cq}, v{acc+i}")

    def pack2(dst, acc):
        a(f"v_cvt_pk_bf16_f32 v{dst}, v{acc}, v{acc+1}")
        a(f"v_cvt_pk_bf16_f32 v{dst+1}, v{acc+2}, v{acc+3}")

    a("v_cmp_eq_u32 s[36:37], 0, v5")
    a("v_cmp_eq_u32 s[38:39], 1, v5")
    a("v_lshlrev_b32 v12, 3, v1")
    a("s_mul_i32 s32, s3, 3072")
    a(f"s_add_u32 s33, s32, {EX}")
    a("v_add_u32 v13, s33, v12")
    a("s_lshl_b32 s32, s3, 9")
    a(f"s_add_u32 s32, s32, {EX}")
    a("s_cmp_eq_u32 s3, 3")
    a(f"s_cselect_b32 s32, {EX+4*3072}, s32")
    a("v_add_u32 v14, s32, v12")
    a("s_waitcnt lgkmcnt(0)")

    def conv_tile(n):
        ac = ACC + 32 * n
        tl = n + 1
        for i in range(5):
            corr_n(ac + 4 * i, n, CQN + 4 * i)
        for h in range(2):
            pack2(QF + (2 * n + h) * 4, ac + 4 * h)
            pack2(KF + (2 * tl + h) * 4, ac + 8 + 4 * h)
        pack2(T + 8 + 2 * n, ac + 16)
        for h in range(2):
            a(f"v_mov_b32 v{KF+(2*tl+h)*4+2}, v{T+8+2*n+1}")
            a(f"v_cndmask_b32 v{QF+(2*n+h)*4+2}, 0, v{T+8+2*n}, s[{36+2*h}:{37+2*h}]")
        for h in range(3):
            corr_s(ac + 20 + 4 * h, n, CQS + h)
            pack2(VF + 6 * h + 2 * tl, ac + 20 + 4 * h)

    corr_n(ACC + 64, 2, CQH)
    corr_s(ACC + 68, 2, CQS + 3)
    pack2(T + 12, ACC + 64)
    pack2(T + 14, ACC + 68)
    a(f"ds_write_b64 v14, {vr(T+12,2)}")
    a(f"ds_write_b64 v14, {vr(T+14,2)} offset:1536")
    conv_tile(1)
    a(f"ds_write_b64 v13, {vr(KF+16,2)} offset:{3072}")
    a(f"ds_write_b64 v13, {vr(KF+20,2)} offset:{3072+512}")
    a(f"ds_write_b64 v13, {vr(T+10,2)} offset:{3072+1024}")
    for h in range(3):
        a(f"ds_write_b64 v13, {vr(VF+6*h+4,2)} offset:{3072+1536+512*h}")
    conv_tile(0)
    for i in range(6):
        a(f"v_mov_b32 v{KF+4*i+3}, 0")
    for i in range(4):
        a(f"v_mov_b32 v{QF+4*i+3}, 0")
        a(f"v_mov_b32 v{ONE+i}, 0x3f803f80")
    a("s_waitcnt lgkmcnt(0)")
    a("s_barrier")
    a(f"ds_read_b64 {vr(KF,2)}, v13")
    a(f"ds_read_b64 {vr(KF+4,2)}, v13 offset:512")
    a(f"ds_read_b32 v{KF+2}, v13 offset:{1024+4}")
    a(f"ds_read_b32 v{KF+6}, v13 offset:{1024+4}")
    for h in range(3):
        a(f"ds_read_b64 {vr(VF+6*h,2)}, v13 offset:{1536+512*h}")
    SB = 16; PB = 48; MX = 64; OB = 168; OO = 72
    jobs = [(1, 0), (1, 1), (0, 0), (0, 1)]
    cs = (18 ** -0.5) * LOG2E
    a(f"s_mov_b32 s50, {f32(cs)}")
    for j, (n, h) in enumerate(jobs):
        if j == 2:
            a("s_waitcnt lgkmcnt(0)")
        q = vr(QF + (2 * n + h) * 4, 4)
        mp = MPA if n == 0 else MPB
        a(f"v_mfma_f32_16x16x32_bf16 {vr(SB+8*j,4)}, {vr(KF+(2*n+h)*4,4)}, {q}, {vr(mp,4)}")
        a(f"v_mfma_f32_16x16x32_bf16 {vr(SB+8*j+4,4)}, {vr(KF+(2*(n+1)+h)*4,4)}, {q}, {vr(MS,4)}")
    a("s_mul_i32 s32, s17, 18432")
    a("s_lshl_b32 s33, s9, 10")
    a("s_add_u32 s33, s33, s32")
    a(f"s_add_u32 s33, s33, {OUT}")
    a("s_add_u32 s34, s33, 18432")
    a("s_lshr_b32 s35, s9, 3")
    a("s_lshl_b32 s35, s35, 10")
    a("s_and_b32 s36, s9, 7")
    a("s_lshl_b32 s36, s36, 7")
    a("s_add_u32 s35, s35, s36")
    a("s_add_u32 s35, s35, s32")
    a(f"s_add_u32 s35, s35, {OUT + 16*1024}")
    a("s_add_u32 s36, s35, 18432")
    for j in range(4):
        s = SB + 8 * j; m = MX + 2 * j
        a(f"v_max3_f32 v{m}, v{s}, v{s+1}, v{s+2}")
        a(f"v_max3_f32 v{m+1}, v{s+3}, v{s+4}, v{s+5}")
        a(f"v_max3_f32 v{m}, v{m}, v{s+6}, v{s+7}")
        a(f"v_max_f32 v{m}, v{m}, v{m+1}")
    for sw in ("v_permlane16_swap_b32", "v_permlane32_swap_b32"):
        for j in range(4):
            a(f"v_mov_b32 v{MX+2*j+1}, v{MX+2*j}")
        for j in range(4):
            a(f"{sw} v{MX+2*j}, v{MX+2*j+1}")
        for j in range(4):
            a(f"v_max_f32 v{MX+2*j}, v{MX+2*j}, v{MX+2*j+1}")
    for j in range(4):
        a(f"v_mul_f32 v{MX+2*j}, s50, v{MX+2*j}")
    for j, (n, h) in enumerate(jobs):
        s = SB + 8 * j
        for i in range(8):
            a(f"v_fma_f32 v{s+i}, v{s+i}, s50, -v{MX+2*j}")
        for i in range(8):
            a(f"v_exp_f32 v{s+i}, v{s+i}")
        for i in range(4):
            a(f"v_cvt_pk_bf16_f32 v{PB+4*j+i}, v{s+2*i}, v{s+2*i+1}")
        p = vr(PB + 4 * j, 4)
        a(f"v_mfma_f32_16x16x32_bf16 {vr(OB+12*j+8,4)}, {vr(ONE,4)}, {p}, 0")
        a(f"v_mfma_f32_16x16x32_bf16 {vr(OB+12*j,4)}, {vr(VF+6*h+2*n,4)}, {p}, 0")
        a(f"v_mfma_f32_16x16x32_bf16 {vr(OB+12*j+4,4)}, {vr(VF+12+2*n,4)}, {p}, 0")
    wo_rest = a.bg + wo_rest
    a.bg = []
    a("v_lshlrev_b32 v12, 3, v4")
    a("v_mov_b32 v13, 0x40000000")
    a("v_cmp_eq_u32 vcc, 2, v5")
    a("v_cndmask_b32 v12, v13, v12, vcc")
    for j, (n, h) in enumerate(jobs):
        o = OB + 12 * j
        a(f"v_rcp_f32 v{o+8}, v{o+8}")
        for i in range(4):
            a(f"v_mul_f32 v{o+i}, v{o+i}, v{o+8}")
        a(f"v_mul_f32 v{o+4+2*h}, v{o+4+2*h}, v{o+8}")
        a(f"v_mul_f32 v{o+5+2*h}, v{o+5+2*h}, v{o+8}")
        a(f"v_cvt_pk_bf16_f32 v{OO+4*n+2*h}, v{o}, v{o+1}")
        a(f"v_cvt_pk_bf16_f32 v{OO+4*n+2*h+1}, v{o+2}, v{o+3}")
        a(f"v_cvt_pk_bf16_f32 v{OO+8+2*n+h}, v{o+4+2*h}, v{o+5+2*h}")
        if h == 1:
            a(f"buffer_store_dwordx4 {vr(OO+4*n,4)}, v3, s[4:7], s{33+n} offen sc1")
            a(f"buffer_store_dwordx2 {vr(OO+8+2*n,2)}, v12, s[4:7], s{35+n} offen sc1")
    ts()

    OL = 98304
    PA = 16; PBB = 40; RES = 88
    NPRE = int(OPT.get("npre", 4))

    CF = int(OPT.get("cf", 24)); NS = 144 // CF; PW = CF // 4; NCH = (666 + CF - 1) // CF
    LASTB = ((PW - 1) // 4) * 4096
    NPRE = NPRE * 24 // CF

    def mk_w(c, i):
        def fn():
            if i == 0:
                a(f"s_add_u32 m0, s54, {(c % NS) * CF * 1024}")
                a(f"s_add_u32 s55, s55, {CF*1024-LASTB}")
            elif i % 4 == 0:
                a("s_add_u32 m0, m0, 4096")
                a("s_add_u32 s55, s55, 4096")
            if not ("nodma" in OPT and c >= 6):
                a(f"buffer_load_dwordx4 v3, s[4:7], s55 offen offset:{(i%4)*1024} {OPT.get('wsc', 'sc1')} lds"); vm.issue(("w", c))
        return fn
    WPRE = [mk_w(c, i) for c in range(NPRE) for i in range(PW)]
    NW2 = int(OPT.get("nw2", 18))

    def p2_pre():
        a(f"s_mul_i32 s54, s3, {PW*1024}")
        a(f"s_mul_i32 s55, s9, {SLB}")
        a("s_add_u32 s55, s55, s54")
        a(f"s_add_u32 s55, s55, {L['W12'] - (CF*1024-LASTB)}")
        a("s_sub_u32 s55, s55, s59")
        a("s_lshr_b32 s12, s9, 2")
        a("s_lshl_b32 s13, s8, 3")
        a("s_lshl_b32 s14, s12, 1")
        a("s_add_u32 s13, s13, s14")
        a("s_mul_i32 s15, s13, 18432")
        a("s_lshl_b32 s16, s43, 10")
        a("s_add_u32 s16, s16, s15")
        a("s_lshl_b32 s17, s46, 10")
        a("s_add_u32 s17, s17, s15")
        a("s_and_b32 s18, s3, 1")
        a("s_mul_i32 s18, s18, 18432")
        a("s_add_u32 s17, s17, s18")
        a("s_cmp_eq_u32 s41, 1")
        a(f"s_cselect_b32 s17, {OOB}, s17")
        a(f"s_add_u32 s19, s16, {XIN}")
        a("s_lshr_b32 s20, s3, 1")
        a("s_lshl_b32 s20, s20, 3")
        a("s_add_u32 s20, s20, s17")
        a(f"s_add_u32 s20, s20, {XIN}")
        a("s_mul_i32 s21, s3, 9216")
        a("s_add_u32 s22, s15, s21")
        a(f"s_add_u32 s22, s22, {OUT}")
        a(f"s_add_u32 s21, s21, {OL}")
        a(f"v_add_u32 v9, {OL}, v3")
        a("v_add_u32 v10, s18, v9")
        a(f"v_add_u32 v7, {OL + 16384}, v6")
        a("v_add_u32 v8, 18432, v7")
        a("v_add_u32 v14, s18, v7")

    def p2_prefetch():
        a(f"buffer_load_dwordx4 {vr(RES,4)}, v3, s[4:7], s19 offen sc1")
        a(f"buffer_load_dwordx4 {vr(RES+4,4)}, v15, s[4:7], s19 offen sc1")
        a(f"buffer_load_dwordx2 {vr(RES+8,2)}, v3, s[4:7], s20 offen sc1")
        for fn in wo_rest:
            fn()
        if not LATE:
            for _ in range(int(OPT.get("nw1", 0))):
                WPRE.pop(0)()
    sync(16, p2_prefetch, wts=LATE, pre=p2_pre)
    ts()
    a("s_mov_b32 m0, s21")
    for i in range(9):
        a(f"buffer_load_dwordx4 v3, s[4:7], s22 offen offset:{(i%3)*1024} sc1 lds")
        if i % 3 == 2 and i < 8:
            a("s_add_u32 s22, s22, 3072")
            a("s_add_u32 m0, m0, 3072")
    for n in range(2):
        for mh in range(2):
            ac = PA + (2 * mh + n) * 4; r = RES + 4 * n + 2 * mh
            a(f"v_lshlrev_b32 v{ac}, 16, v{r}")
            a(f"v_and_b32 v{ac+1}, 0xffff0000, v{r}")
            a(f"v_lshlrev_b32 v{ac+2}, 16, v{r+1}")
            a(f"v_and_b32 v{ac+3}, 0xffff0000, v{r+1}")
    a(f"v_lshlrev_b32 v{PA+16}, 16, v{RES+8}")
    a(f"v_and_b32 v{PA+17}, 0xffff0000, v{RES+8}")
    a(f"v_lshlrev_b32 v{PA+18}, 16, v{RES+9}")
    a(f"v_and_b32 v{PA+19}, 0xffff0000, v{RES+9}")
    a(f"s_add_u32 s19, s16, {X1}")
    a(f"s_add_u32 s20, s17, {X1}")
    a("s_cmp_ge_u32 s3, 2")
    a(f"s_cselect_b32 s20, {OOB}, s20")
    a("s_and_b32 s26, s3, 1")
    a("s_cmp_eq_u32 s26, 0")
    a("s_cselect_b32 s23, 1.0, 0")
    a("s_cselect_b32 s24, 0, 1.0")
    a("s_lshl_b32 s25, s3, 10")
    a(f"s_add_u32 s25, s25, {EX}")
    a("v_add_u32 v11, s25, v3")
    a("s_lshl_b32 s25, s26, 3")
    a(f"s_add_u32 s25, s25, {EX}")
    a("v_add_u32 v12, s25, v3")
    a("s_lshl_b32 s25, s26, 10")
    a(f"s_add_u32 s25, s25, {EX + 4096}")
    a("v_add_u32 v124, s25, v3")
    a("s_lshr_b32 s25, s3, 1")
    a("s_lshl_b32 s25, s25, 3")
    a("v_add_u32 v125, s25, v124")
    a("s_add_u32 s25, s13, s26")
    a("s_lshl_b32 s25, s25, 9")
    a("s_lshl_b32 s27, s40, 7")
    a("s_add_u32 s25, s25, s27")
    a(f"s_add_u32 s25, s25, {ST1}")
    a("s_cmp_ge_u32 s3, 2")
    a(f"s_cselect_b32 s25, {OOB}, s25")
    a("v_mov_b32 v13, 0x40000000")
    a("v_cmp_eq_u32 vcc, 0, v5")
    a("v_cndmask_b32 v13, v13, v6, vcc")
    a("s_waitcnt vmcnt(0)")
    a("s_barrier")
    NB = 4

    def rd2(ks):
        b = PBB + 12 * (ks % NB)
        if ks >= 16:
            o0 = (ks - 16) * 128
            return [f"ds_read2_b64 {vr(b+4*e,4)}, {ad} offset0:{o0} offset1:{o0+64}" for e, ad in enumerate(("v7", "v8", "v14"))]
        return [f"ds_read_b128 {vr(b,4)}, v9 offset:{ks*1024}", f"ds_read_b128 {vr(b+4,4)}, v9 offset:{18432+ks*1024}",
                f"ds_read_b128 {vr(b+8,4)}, v10 offset:{ks*1024}"]
    for ks in range(NB - 1):
        for t in rd2(ks):
            a(t); lg.issue(("b", ks))
    lg.wait(("b", 0))
    for ks in range(18):
        rr = rd2(ks + NB - 1) if ks + NB - 1 < 18 else []
        b = PBB + 12 * (ks % NB)
        mm = []
        for mh in range(2):
            for n in range(2):
                acc = vr(PA + (2 * mh + n) * 4, 4)
                mm.append(f"v_mfma_f32_16x16x32_bf16 {acc}, {ar((mh*18+ks)*4,4)}, {vr(b+4*n,4)}, {acc}")
        acc = vr(PA + 16, 4)
        mm.append(f"v_mfma_f32_16x16x32_bf16 {acc}, {ar((36+ks)*4,4)}, {vr(b+8,4)}, {acc}")
        for i, t in enumerate(mm):
            a(t)
            if i < len(rr):
                a(rr[i]); lg.issue(("b", ks + NB - 1))
            if i == 3 and ks < NW2:
                WPRE.pop(0)()
            if i == 4 and ks < 17:
                lg.wait(("b", ks + 1))
    O2 = 100
    for n in range(2):
        for mh in range(2):
            ac = PA + (2 * mh + n) * 4
            a(f"v_cvt_pk_bf16_f32 v{O2+4*n+2*mh}, v{ac}, v{ac+1}")
            a(f"v_cvt_pk_bf16_f32 v{O2+4*n+2*mh+1}, v{ac+2}, v{ac+3}")
        a(f"buffer_store_dwordx4 {vr(O2+4*n,4)}, {'v15' if n else 'v3'}, s[4:7], s19 offen sc1")
    a(f"v_cvt_pk_bf16_f32 v{O2+8}, v{PA+16}, v{PA+17}")
    a(f"v_cvt_pk_bf16_f32 v{O2+9}, v{PA+18}, v{PA+19}")
    a(f"ds_write_b64 v125, {vr(O2+8,2)}")
    SS = 112

    def sumsq(dst, regs):
        a(f"v_add_f32 v{dst}, v{regs[0]}, v{regs[1]}")
        a(f"v_mul_f32 v{dst+1}, v{regs[0]}, v{regs[0]}")
        a(f"v_fmac_f32 v{dst+1}, v{regs[1]}, v{regs[1]}")
        for r in regs[2:]:
            a(f"v_add_f32 v{dst}, v{dst}, v{r}")
            a(f"v_fmac_f32 v{dst+1}, v{r}, v{r}")
    for n in range(2):
        sumsq(SS + 2 * n, [PA + (2 * mh + n) * 4 + i for mh in range(2) for i in range(4)])
    sumsq(SS + 4, [PA + 16 + i for i in range(4)])
    for n in range(2):
        a(f"v_fmac_f32 v{SS+2*n}, s{23+n}, v{SS+4}")
        a(f"v_fmac_f32 v{SS+2*n+1}, s{23+n}, v{SS+5}")
    a(f"ds_write_b128 v11, {vr(SS,4)}")
    a("s_waitcnt lgkmcnt(0)")
    a("s_barrier")
    a(f"ds_read_b128 {vr(128,4)}, v124")
    for w in range(4):
        a(f"ds_read_b64 {vr(132+2*w,2)}, v12 offset:{w*1024}")
    a("s_waitcnt lgkmcnt(4)")
    a(f"buffer_store_dwordx4 {vr(128,4)}, v3, s[4:7], s20 offen sc1")
    a("s_waitcnt lgkmcnt(0)")
    for i in range(2):
        a(f"v_add_f32 v{132+i}, v{132+i}, v{134+i}")
        a(f"v_add_f32 v{136+i}, v{136+i}, v{138+i}")
    for i in range(2):
        a(f"v_add_f32 v{132+i}, v{132+i}, v{136+i}")
    for sw in ("v_permlane16_swap_b32", "v_permlane32_swap_b32"):
        for i in range(2):
            a(f"v_mov_b32 v{134+i}, v{132+i}")
        for i in range(2):
            a(f"{sw} v{132+i}, v{134+i}")
        for i in range(2):
            a(f"v_add_f32 v{132+i}, v{132+i}, v{134+i}")
    a("buffer_store_dwordx2 v[132:133], v13, s[4:7], s25 offen sc1")
    ts()

    BUD = float(OPT.get("p3bud", 7))
    NAB = int(OPT.get("nab", 13)); RA = NAB - 2; NSL = 6 if NAB <= 9 else 5
    WE = int(OPT.get("we", 3))
    N0 = int(OPT.get("p3n0", 12))
    PACE0 = int(OPT.get("p3pace0", 1)); PACE1 = int(OPT.get("p3pace1", 3))
    DFLAG = int(OPT.get("p3dflag", 45)); DPOLL = int(OPT.get("p3dpoll", 35)); DCHK = int(OPT.get("p3dchk", 40))
    K1, K3, RI, PV = 8, 10, 12, 14
    T = 16; AB3 = 32; AC1 = 164 - 16 * NSL; HO = 164; OST = 236; BX = 244
    assert AB3 + 4 * NAB <= AC1
    HP = 144

    def p3_pre():
        a("v_add_u32 v4, 0x10000, v3")
        a("v_add_u32 v5, 0x20000, v3")
        a("v_mov_b32 v7, v6")
        a("v_add_u32 v6, 18432, v3")
        a("s_lshl_b32 s16, s8, 3")
        a("s_lshl_b32 s17, s3, 1")
        a("s_add_u32 s16, s16, s17")
        a("s_mul_i32 s17, s16, 18432")
        a(f"s_add_u32 s18, s17, {X1}")
        a("s_lshl_b32 s21, s16, 9")
        a(f"s_add_u32 s21, s21, {ST1}")
        a("s_lshl_b32 s22, s8, 4")
        a("s_add_u32 s22, s22, s9")
        a("s_lshl_b32 s22, s22, 2")
        a("s_add_u32 s22, s22, s3")
        a("s_xor_b32 s23, s22, 4")
        a("s_mul_i32 s24, s22, 18432")
        a(f"s_add_u32 s24, s24, {HX}")
        a("s_mul_i32 s25, s23, 18432")
        a(f"s_add_u32 s25, s25, {HX}")
        a("s_lshl_b32 s26, s22, 4")
        a(f"s_add_u32 s26, s26, {FL}")
        a("s_lshl_b32 s27, s23, 4")
        a(f"s_add_u32 s27, s27, {FL}")
        a("s_lshr_b32 s28, s9, 1")
        a(f"s_mul_i32 s28, s28, {XT}")
        a("s_add_u32 s28, s28, s17")
        a("s_and_b32 s29, s9, 1")
        a("s_mul_i32 s29, s29, 9216")
        a("s_add_u32 s28, s28, s29")
        a(f"s_add_u32 s28, s28, {PART}")
        if REUSE:
            for r in (24, 25, 28):
                a(f"s_sub_u32 s{r}, s{r}, s59")
        a("s_and_b32 s58, s8, 7")
        a("s_lshl_b32 s58, s58, 2")
        a("s_add_u32 s58, s58, s3")
        a("s_lshl_b32 s58, s58, 12")
        a(f"s_mul_i32 s32, s9, {SLB}")
        a("s_add_u32 s32, s32, s58")
        a(f"s_add_u32 s32, s32, {L['W12'] + 131072}")
        a("s_sub_u32 s32, s32, s59")
        if "w" in L2PF:
            l2pf("s32")
        a(f"s_mul_i32 s33, s9, {18*7168}")
        a("s_add_u32 s33, s33, s58")
        a(f"s_add_u32 s33, s33, {L['WQ']}")
        a("s_cmp_lg_u32 s59, 0")
        a(f"s_cselect_b32 s33, {OOB}, s33")
        a("s_add_u32 s31, s10, 64")
        a("s_cmp_lg_u32 s3, 0")
        a(f"s_cselect_b32 s31, {OOB}, s31")
        a("s_lshl_b32 s12, s8, 4")
        a("s_add_u32 s12, s12, s9")
        a("s_mul_i32 s12, s12, 9")
        a("s_add_u32 s12, s12, s3")
        a("s_lshl_b32 s12, s12, 10")
        a("s_lshl_b32 s50, s3, 11")
        a(f"s_mul_i32 s51, s9, {18*7168}")
        a("s_add_u32 s51, s51, s50")
        a(f"s_add_u32 s51, s51, {L['WQ']}")
        a("s_cmp_lg_u32 s59, 0")
        a(f"s_cselect_b32 s51, {OOB}, s51")
        a("s_cmp_eq_u32 s3, 3")
        a("s_cselect_b32 s56, 0, 1024")
        a("s_add_u32 s52, s51, s56")
        a("s_add_u32 s53, s50, s56")

    def p3_prefetch():
        while WPRE:
            WPRE.pop(0)()
    sync(32, p3_prefetch, pre=p3_pre)
    ts()
    for n in range(2):
        a(f"buffer_load_dwordx2 {vr(T+2*n,2)}, v7, s[4:7], s21 offen offset:{n*512} sc1"); vm.issue("st")

    U = []
    for k in range(19):
        for t in range(G0):
            for mh in range(2):
                U.append(("p1", t, k, mh))
    for t in range(G0, 9):
        for k in range(19):
            for mh in range(2):
                U.append(("p1", t, k, mh))
    for hk in range(KO):
        for dt in range(9):
            for mh in range(2):
                U.append(("p2", dt, hk, mh))
    for dt in range(9):
        for hk in range(KO, 18):
            for mh in range(2):
                U.append(("p2", dt, hk, mh))
    NU = len(U)

    def mfma3(i, n):
        kind, t, k, mh = U[i]
        if "snake" in OPT and i % 2:
            n = 1 - n
        if kind == "p1":
            acc = vr(AC1 + 16 * (t % NSL) + (2 * mh + n) * 4, 4)
            b = ar((18 * n + k) * 4, 4) if k < 18 else vr(BX + 4 * n, 4)
        else:
            acc = ar(16 * t + (2 * mh + n) * 4, 4)
            b = vr(HO + (2 * k + n) * 4, 4) if k < 9 else ar(HP + (2 * (k - 9) + n) * 4, 4)
        a(f"v_mfma_f32_16x16x32_bf16 {acc}, {vr(AB3+4*(i%NAB),4)}, {b}, {'0' if k == 0 else acc}")

    def mk_y(k, n):
        def fn():
            if k % 4 == 0 and k and n == 0:
                a("s_add_u32 s18, s18, 4096")
            a(f"buffer_load_dwordx4 {ar((18*n+k)*4,4)}, {'v6' if n else 'v3'}, s[4:7], s18 offen offset:{(k%4)*1024} sc1"); vm.issue(("y", k))
        return fn
    LQ = []
    for c in range(NPRE, NCH):
        for i in range(PW):
            LQ.append((CF * c - RA - 0.5 + i * 0.01, c - (NS - 2) if c >= NS else -1, 1, mk_w(c, i), "w"))
    for k in range(18):
        for n in range(2):
            LQ.append((k * G0 * 2 - 0.1 + n * 0.01, -1, 1, mk_y(k, n), "y"))
    def mk_q(slot, i):
        ks = 3 * slot + i // 2; e = i % 2

        def fn():
            a(f"s_add_u32 m0, s{50 if e == 0 else 53}, {ks*8192}")
            a(f"s_add_u32 s56, s{51 if e == 0 else 52}, {ks*7168}")
            a("buffer_load_dwordx4 v3, s[4:7], s56 offen lds"); vm.issue("wq")
        return fn
    assert CF == 24
    qslots = []
    for c in range(NCH + 4 - int(OPT.get("nqt", 4)), NCH + 4):
        qslots.append(c % NS)
        for i in range(6):
            LQ.append((1000 + c + i * 0.01, c - (NS - 2), 1, mk_q(c % NS, i), "q"))
    LQ.sort(key=lambda x: x[0])
    ny_left = [36]

    def lq_issue():
        it = LQ.pop(0)
        it[3]()
        if it[4] == "y":
            ny_left[0] -= 1
        return it[2]

    for _ in range(N0):
        lq_issue()

    def dsread(f):
        off = (f % 144) * 1024
        base = "v3" if off < 65536 else ("v4" if off < 131072 else "v5")
        a(f"ds_read_b128 {vr(AB3+4*(f%NAB),4)}, {base} offset:{off % 65536}"); lg.issue(("a", f))
    for f in range(RA):
        dsread(f)

    kk = math.sqrt(2.0 / math.pi)
    C1 = -2.0 * kk * LOG2E
    C3 = C1 * 0.044715
    EV = {}
    cur = [0]

    def ev(g, cost, fn):
        EV.setdefault(g, []).append((cost, fn))

    def mk(text):
        return lambda: a(text)

    class Rec:
        def __init__(self): self.l = []
        def __call__(self, t): self.l.append(t)
    rec = Rec()
    rec("v_mov_b32 v7, 0")
    for b in range(3):
        rec(f"v_mov_b32 v{OST+b}, {b+1}")
    for sw in ("v_permlane16_swap_b32", "v_permlane32_swap_b32"):
        for r in range(4):
            rec(f"v_mov_b32 v{T+4+r}, v{T+r}")
        for r in range(4):
            rec(f"{sw} v{T+r}, v{T+4+r}")
        for r in range(4):
            rec(f"v_add_f32 v{T+r}, v{T+r}, v{T+4+r}")
    for n in range(2):
        m = T + 2 * n; r = T + 8 + n; t = T + 4 + n; bx = BX + 4 * n
        stats_finish(rec, m, m + 1, r, T + 10 + n, t, True)
        rec(f"v_rcp_f32 v{RI+n}, v{r}")
        rec(f"v_mul_f32 v{K1+n}, {f32(C1)}, v{r}")
        rec(f"v_mul_f32 v{K3+n}, v{r}, v{r}")
        rec(f"v_mul_f32 v{K3+n}, v{K3+n}, v{r}")
        rec(f"v_mul_f32 v{K3+n}, {f32(C3)}, v{K3+n}")
        rec(f"v_cvt_pk_bf16_f32 v{t}, v{RI+n}, v{RI+n}")
        rec(f"v_and_b32 v{t}, 0xffff0000, v{t}")
        rec(f"v_sub_f32 v{t}, v{RI+n}, v{t}")
        rec(f"v_cvt_pk_bf16_f32 v{bx}, v{RI+n}, v{t}")
        rec(f"v_sub_f32 v{m}, 0, v{m}")
        rec(f"v_cvt_pk_bf16_f32 v{bx+1}, v{m}, v{m}")
        rec(f"v_and_b32 v{t}, 0xffff0000, v{bx+1}")
        rec(f"v_sub_f32 v{t}, v{m}, v{t}")
        rec(f"v_cvt_pk_bf16_f32 v{bx+2}, v{t}, v7")
        rec(f"v_mov_b32 v{bx+3}, 0")
    VQ = [(0, 1, mk(t), None) for t in rec.l]
    VQ[-1] = (0, 1, VQ[-1][2], ("bx",))

    hl_done = set()
    MQ = []
    EARLY = "early" in OPT
    po3 = [None]; sigA = [False]; polledA = [False]

    def defer(fn):
        return lambda: MQ.append(fn)

    def mk_hstore(q):
        def fn():
            if q % 4 == 0 and q:
                a("s_add_u32 s24, s24, 4096")
            a(f"buffer_store_dwordx4 {vr(HO+4*q,4)}, v3, s[4:7], s24 offen offset:{(q%4)*1024} sc1"); vm.issue(("hs", q))
            if q % 6 == 5:
                b = q // 6
                g = cur[0] + DFLAG
                ev(g, 2, lambda: flag_store(b))
                ev(g + DPOLL, 2, lambda: poll_issue(b))
                ev(g + DPOLL + DCHK, 4, lambda: poll_check(b))
        return fn

    def flag_store(b):
        vm.wait(("hs", 6 * b + 5))
        a("s_mov_b64 exec, 1")
        a(f"buffer_store_dword v{OST+b}, v7, s[4:7], s26 offen sc1"); vm.issue("fs")
        a("s_mov_b64 exec, -1")

    def poll_issue(b):
        a("s_mov_b64 exec, 1")
        a(f"buffer_load_dword v2, v7, s[4:7], s27 offen sc1"); vm.issue(("pl", b))
        a("s_mov_b64 exec, -1")

    def poll_check(b):
        vm.wait(("pl", b))
        a("v_readfirstlane_b32 s30, v2")
        a(f"s_cmp_gt_u32 s30, {b}")
        a.nf(f"s_cbranch_scc0 {name}_w{b}")
        a.label(f"{name}_r{b}", safe=False)
        slowcode.append(b)
        for i in range(6):
            ev(cur[0] + 1 + 2 * i, 1, mk_hload(6 * b + i))

    def mk_hload(q):
        def fn():
            if q % 4 == 0 and q:
                a("s_add_u32 s25, s25, 4096")
            a(f"buffer_load_dwordx4 {ar(HP+4*q,4)}, v3, s[4:7], s25 offen offset:{(q%4)*1024} sc1"); vm.issue(("hl", q))
            hl_done.add(q)
        return fn

    SK = 2.5
    gel = []

    def add_gelu(t, ready):
        ac = AC1 + 16 * (t % NSL)
        for v in range(16):
            n = v // 8; mh = (v // 4) % 2; i = v % 4
            x = ac + (2 * mh + n) * 4 + i; tm = T + v
            ops = [(1, f"v_mul_f32 v{tm}, v{x}, v{x}"), (1, f"v_fma_f32 v{tm}, v{tm}, v{K3+n}, v{K1+n}"), (1, f"v_mul_f32 v{tm}, v{tm}, v{x}"),
                   (2, f"v_exp_f32 v{tm}, v{tm}"), (1, f"v_fma_f32 v{tm}, v{tm}, v{RI+n}, v{RI+n}"), (2, f"v_rcp_f32 v{tm}, v{tm}"),
                   (1, f"v_mul_f32 v{x}, v{x}, v{tm}")]
            for st, (c, tx) in enumerate(ops):
                gel.append((16 * t + v + st * SK, ready, c, mk(tx), None))
            if v % 2 == 1:
                gel.append((16 * t + v + 6 * SK + 1.2, ready, 1, mk(f"v_cvt_pk_bf16_f32 v{HO+8*t+v//2}, v{x-1}, v{x}"), None))
            if v % 8 == 7:
                q = 2 * t + n
                gel.append((16 * t + v + 6 * SK + 1.3, ready, 0, defer(mk_hstore(q)), ("h", q)))
    last_idx = {}
    for i, u in enumerate(U):
        last_idx[u[:2]] = i
    for t in range(9):
        add_gelu(t, last_idx[("p1", t)] + 2)
    gel.sort(key=lambda x: x[0])
    VQ += [(g[1], g[2], g[3], g[4]) for g in gel]
    for dt in range(9):
        rdy = last_idx[("p2", dt)] + 2
        for n in range(2):
            o = AC1 + ((2 * dt + n) % 8) * 4
            for mh in range(2):
                for i in range(4):
                    VQ.append((rdy, 1, mk(f"v_accvgpr_read_b32 v{T+8*n+4*mh+i}, a{16*dt+(2*mh+n)*4+i}"), None))
            for e in range(4):
                VQ.append((rdy, 1, mk(f"v_cvt_pk_bf16_f32 v{o+e}, v{T+8*n+2*e}, v{T+8*n+2*e+1}"), None))

            def st(n=n, o=o, dt=dt):
                if dt % 4 == 0 and dt and n == 0:
                    a("s_add_u32 s28, s28, 4096")
                a(f"buffer_store_dwordx4 {vr(o,4)}, {'v6' if n else 'v3'}, s[4:7], s28 offen offset:{(dt%4)*1024} sc1"); vm.issue(("po", dt))
                if dt == 3 and n == 1:
                    po3[0] = cur[0]
            VQ.append((rdy, 0, defer(st), None))
    done_tags = set()

    def vq_pop():
        it = VQ.pop(0)
        assert it[0] - 2 < cur[0] + (1 if cur[0] == NU - 1 else 0), (it[0], cur[0])
        it[2]()
        if it[3]:
            done_tags.add(it[3])
        return it[1]

    bar_done = [0]

    def chunk_barrier(c):
        while LQ and LQ[0][0] <= CF * c - RA:
            lq_issue()
        bar_done[0] = c
        if c < NPRE and c < 2:
            return
        vm.wait(("w", c))
        doA = EARLY and not sigA[0] and po3[0] is not None and (cur[0] >= po3[0] + int(OPT.get("dack", 20)) or c == NCH - 1)
        if doA:
            vm.wait(("po", 3))
        a("s_barrier")
        if doA:
            sigA[0] = True
            print("signal A at unit", cur[0], "po3", po3[0], file=sys.stderr)
            a("s_mov_b64 exec, 1")
            a(f"buffer_atomic_add v{OST}, v7, s[4:7], s31 offen"); vm.issue("at")
            a("s_mov_b64 exec, -1")

            def pollA():
                a("s_mov_b64 exec, 1")
                a("buffer_load_dword v2, v7, s[4:7], s10 offen offset:64 sc1"); vm.issue("pa")
                a("s_mov_b64 exec, -1")
                polledA[0] = True
            ev(min(NU - 1, max(cur[0] + int(OPT.get("dp2", 14)), NU - int(OPT.get("dp3", 14)))), 2, pollA)

    TSA = int(OPT.get('tsa', 38 * G0)); TSB = int(OPT.get('tsb', 342))
    last_lq = -10
    forced = 0
    GAP = float(OPT.get("gap", 11))
    credit = [0.0]

    def prereq(i):
        nonlocal forced
        kind, t, k, mh = U[i]
        if kind == "p1" and t == 0 and mh == 0 and k < 18:
            while LQ and LQ[0][0] <= i:
                lq_issue()
            vm.wait(("y", k))
        if kind == "p2" and k >= 9:
            q = 2 * (k - 9) + 1
            while q not in hl_done:
                while MQ:
                    MQ.pop(0)()
                g = min(EV)
                for c, fn in EV.pop(g):
                    fn()
                forced += 1000
            vm.wait(("hl", q))
        if i % WE == 0:
            lg.wait(("a", min(i + WE - 1, NU - 1)))

    def force_valu(i):
        nonlocal forced
        kind, t, k, mh = U[i]
        need = []
        if kind == "p1" and k == 18:
            need.append(("bx",))
        if kind == "p2" and k < 9:
            need.append(("h", 2 * k + 1))
        if kind == "p1" and k == 0 and t >= NSL:
            need.append(("h", 2 * (t - NSL) + 1))
        for tg in need:
            while tg not in done_tags:
                vq_pop(); forced += 1

    def fill(i, used):
        credit[0] = min(credit[0] + GAP - used, 8.0 + GAP - used)
        lo = 8 - used
        while VQ and VQ[0][0] <= i:
            c = VQ[0][1] * 4
            if c <= credit[0] or c <= lo or c == 0:
                vq_pop(); credit[0] -= c; lo -= c
            else:
                break
        if not (VQ and VQ[0][0] <= i):
            credit[0] = 0.0

    def pf_w():
        a("s_add_u32 s32, s32, 131072")
        l2pf("s32")
    if "w" in L2PF:
        for r in range(2, 6):
            ev(128 * r - int(OPT.get("pflead", 200)), 1, pf_w)
    if "q" in L2PF:
        ev(500, 1, lambda: l2pf("s33"))
    prereq(0)
    for i in range(NU):
        cur[0] = i
        force_valu(i)
        if ts.on and i in (TSA, TSB):
            ts(); lg.q = []
        mfma3(i, 0)
        used = 0
        evs = EV.pop(i, [])
        pace = PACE0 if ny_left[0] else PACE1
        if evs:
            for c, fn in evs:
                fn(); used += 4 * c
        elif MQ:
            MQ.pop(0)(); used += 4
        elif LQ and LQ[0][1] <= bar_done[0] and i - last_lq >= pace:
            lq_issue(); last_lq = i; used += 4
        fill(i, used)
        mfma3(i, 1)
        used = 0
        if i + 1 < NU:
            prereq(i + 1)
        if i + RA < NU:
            if (i + RA) % CF == 0:
                chunk_barrier((i + RA) // CF)
            dsread(i + RA); used += 4
        fill(i, used)
    assert not EV, EV.keys()
    while VQ or MQ:
        if MQ:
            MQ.pop(0)()
        else:
            vq_pop()
    qleft = [it[3] for it in LQ] + [mk_q(sl, i) for sl in range(NS) if sl not in qslots for i in range(6)]
    print("wq loads left:", len(qleft), file=sys.stderr)
    print("p3 forced:", forced, file=sys.stderr)
    ts()

    P4P = 64; P4A = 16; P4X = 160; P4B = 172

    def p4_pre():
        a("s_load_dwordx4 s[36:39], s[0:1], 56")
        a("v_and_b32 v4, 15, v1")
        a("v_lshrrev_b32 v5, 4, v1")
        a("s_lshl_b32 s12, s8, 4")
        a("s_add_u32 s12, s12, s9")
        a("s_mul_i32 s12, s12, 9")
        a("s_add_u32 s12, s12, s3")
        a("s_lshl_b32 s12, s12, 10")
        a("s_add_u32 s13, s12, 4096")
        a("s_add_u32 s14, s12, 8192")
        a("s_cmp_lg_u32 s3, 0")
        a(f"s_cselect_b32 s14, {OOB}, s14")
        a("s_and_b32 s15, s9, 1")
        a("s_mul_i32 s16, s15, 9")
        a("s_add_u32 s16, s16, s3")
        a("s_lshl_b32 s16, s16, 6")
        a("s_add_u32 s17, s16, 512")
        a("s_cmp_lg_u32 s3, 0")
        a(f"s_cselect_b32 s17, {OOB}, s17")
        a("v_lshlrev_b32 v6, 3, v5")
        a("s_waitcnt lgkmcnt(0)")
        srd(a, 40, 36, D * 2)
        for i in range(3):
            a(f"s_add_u32 s{20+i}, s{12+i}, {PART}")
            if REUSE:
                a(f"s_sub_u32 s{20+i}, s{20+i}, s59")

    def p4_prefetch():
        for i in range(3):
            a(f"s_add_u32 s18, s{12+i}, {X1}")
            a(f"buffer_load_dwordx4 {vr(P4X+4*i,4)}, v3, s[4:7], s18 offen sc1")
        for i in range(3):
            so, off = ("s16", 256 * i) if i < 2 else ("s17", 0)
            a(f"buffer_load_dwordx2 {vr(P4B+4*i,2)}, v6, s[40:43], {so} offen offset:{off}")
            a(f"buffer_load_dwordx2 {vr(P4B+4*i+2,2)}, v6, s[40:43], {so} offen offset:{off+32}")
        for _ in range(int(OPT.get("nq48", 0))):
            qleft.pop(0)()
    P4E = 196

    def slot0_loads():
        a(f"s_add_u32 s20, s12, {PART}")
        if REUSE:
            a("s_sub_u32 s20, s20, s59")
        for s in range(8):
            a(f"buffer_load_dwordx4 {vr(P4E+4*s,4)}, v3, s[4:7], s20 offen sc1")
            if s < 7:
                a(f"s_add_u32 s20, s20, {XT}")
    if EARLY:
        assert polledA[0]
        vm.wait("pa")
        a("v_readfirstlane_b32 s30, v2")
        a("s_cmp_ge_u32 s30, 16")
        a(f"s_cbranch_scc0 {name}_e0")
        slot0_loads()
        a("s_waitcnt vmcnt(8)")
        a(f"s_branch {name}_e1")
        a.label(f"{name}_e0")
        a("s_waitcnt vmcnt(0)")
        a.label(f"{name}_e1")
    else:
        a("s_mov_b32 s30, 0")
    sync(48, p4_prefetch, waited=EARLY, pre=p4_pre)
    ts()
    a("s_cmp_ge_u32 s30, 16")
    a(f"s_cbranch_scc1 {name}_e2")
    slot0_loads()
    a.label(f"{name}_e2")
    for s in range(8):
        for i in range(1, 3):
            a(f"buffer_load_dwordx4 {vr(P4P+8*s+4*(i-1),4)}, v3, s[4:7], s{20+i} offen sc1"); vm.issue(("p", s))
            if s < 7:
                a(f"s_add_u32 s{20+i}, s{20+i}, {XT}")
    a("v_mov_b32 v6, 0x00003f80")
    a("v_mov_b32 v7, 0x3f800000")
    for i in range(3):
        for j in range(4):
            a(f"v_lshlrev_b32 v{P4A+8*i+2*j}, 16, v{P4B+4*i+j}")
            a(f"v_and_b32 v{P4A+8*i+2*j+1}, 0xffff0000, v{P4B+4*i+j}")

    def acc1(i, src):
        for j in range(4):
            a(f"v_dot2c_f32_bf16 v{P4A+8*i+2*j}, v{src+j}, v6")
            a(f"v_dot2c_f32_bf16 v{P4A+8*i+2*j+1}, v{src+j}, v7")
    for i in range(3):
        acc1(i, P4X + 4 * i)
    a("s_waitcnt vmcnt(16)")
    for s in range(8):
        acc1(0, P4E + 4 * s)
    for s in range(8):
        vm.wait(("p", s))
        for i in range(1, 3):
            acc1(i, P4P + 8 * s + 4 * (i - 1))
    O4 = 40
    for i in range(3):
        for j in range(4):
            a(f"v_cvt_pk_bf16_f32 v{O4+4*i+j}, v{P4A+8*i+2*j}, v{P4A+8*i+2*j+1}")
    a("s_cmp_lg_u32 s59, 0" if "tsl0" not in OPT else "s_cmp_eq_u32 s59, 0")
    a(f"s_cbranch_scc1 {name}_fin")
    for i in range(3):
        a(f"s_add_u32 s18, s{12+i}, {XIN + LSTR}")
        a(f"buffer_store_dwordx4 {vr(O4+4*i,4)}, v3, s[4:7], s18 offen sc1")
    sumsq(56, [P4A + j for j in range(12)])
    sumsq(58, [P4A + 12 + j for j in range(12)])
    a("v_add_f32 v56, v56, v58")
    a("v_add_f32 v57, v57, v59")
    a("v_lshlrev_b32 v58, 3, v0")
    a(f"v_add_u32 v58, {EX}, v58")
    a("ds_write_b64 v58, v[56:57]")
    a("v_lshlrev_b32 v58, 3, v1")
    a(f"v_add_u32 v58, {EX}, v58")
    a("v_lshlrev_b32 v59, 3, v4")
    a("v_lshl_add_u32 v59, v5, 6, v59")
    a("v_and_b32 v60, 1, v5")
    a("v_lshl_add_u32 v59, v60, 30, v59")
    a("s_lshl_b32 s20, s8, 3")
    a("s_lshr_b32 s21, s9, 1")
    a("s_add_u32 s20, s20, s21")
    a("s_lshl_b32 s20, s20, 9")
    a("s_lshl_b32 s21, s15, 8")
    a("s_add_u32 s20, s20, s21")
    a(f"s_add_u32 s20, s20, {STI + LSTR}")
    a("s_cmp_lg_u32 s3, 0")
    a(f"s_cselect_b32 s20, {OOB}, s20")
    a("s_waitcnt lgkmcnt(0)")
    a("s_barrier")
    for w in range(4):
        a(f"ds_read_b64 {vr(64+2*w,2)}, v58 offset:{w*512}")
    a("s_waitcnt lgkmcnt(0)")
    for i in range(2):
        a(f"v_add_f32 v{64+i}, v{64+i}, v{66+i}")
        a(f"v_add_f32 v{68+i}, v{68+i}, v{70+i}")
    for i in range(2):
        a(f"v_add_f32 v{64+i}, v{64+i}, v{68+i}")
    a("v_mov_b32 v66, v64")
    a("v_mov_b32 v67, v65")
    a("v_permlane16_swap_b32 v64, v66")
    a("v_permlane16_swap_b32 v65, v67")
    a("v_add_f32 v64, v64, v66")
    a("v_add_f32 v65, v65, v67")
    a("buffer_store_dwordx2 v[64:65], v59, s[4:7], s20 offen sc1")
    ts()

    def p1b_prefetch():
        for fn in qleft:
            fn()

    def p1b_pre():
        a(f"s_mov_b32 s59, {LSTR}")
        p1_setup()
        p1_consts()
        a("s_lshl_b32 s24, s3, 13")
        a("s_add_u32 s24, s24, 7168")
        a("s_lshl_b32 s21, s3, 10")
        a("s_add_u32 s22, s22, s21")
        a("s_mov_b32 s44, 0xfffefffe")
        a("s_mov_b32 s45, 0xfffefffe")
    if "noq" in OPT:
        sync(64, None, prev=True)
        a(f"s_mov_b32 s59, {LSTR}")
        a(f"s_add_u32 s4, s4, {LSTR}")
        a("s_addc_u32 s5, s5, 0")
        a(f"s_branch {name}_p1a")
        nsync[0] = 3; name_ = name
    sync(64, p1b_prefetch, prev=True, pre=p1b_pre) if "noq" not in OPT else None
    ts()
    a(f"s_add_u32 s4, s4, {LSTR}")
    a("s_addc_u32 s5, s5, 0")
    p1_stats_load()
    for grp in xloads(0):
        do_load(grp, 0)
    a("s_mov_b64 exec, s[44:45]")
    for j in range(5):
        if j == 4:
            a("s_cmp_ge_u32 s3, 2")
            a(f"s_cselect_b32 s22, {OOB}, s22")
        a("s_mov_b32 m0, s24")
        a("buffer_load_dwordx4 v3, s[4:7], s22 offen sc1 lds"); vm.issue("halo")
        a("s_add_u32 s22, s22, 4096")
        a("s_add_u32 s24, s24, 32768")
    a("s_mov_b64 exec, -1")
    PFB = int(OPT.get("p1pfb", 6))
    for ks in range(1, 3):
        for grp in xloads(ks):
            do_load(grp, ks)
    p1_stats_math()
    for ks in range(3, PFB):
        for grp in xloads(ks):
            do_load(grp, ks)
    vm.wait("halo")
    a("s_waitcnt lgkmcnt(0)")
    a("s_barrier")
    if ts.on:
        ts.n = 2
        ts()
    p1_loop(xloads, PFB, 0, int(OPT.get('wps', 0)), False)
    a(f"s_branch {name}_epi")

    a.label(f"{name}_fin")
    srd(a, 40, 38, XT)
    FS = OPT.get("fs", "sc1")
    a("s_lshl_b32 s20, s8, 3")
    a("s_lshr_b32 s21, s9, 1")
    a("s_add_u32 s20, s20, s21")
    a("s_mul_i32 s20, s20, 18432")
    if OPT.get("fin", "lds") == "old":
        a("v_mul_u32_u24 v6, 1152, v4")
        a("v_lshl_add_u32 v6, v5, 3, v6")
        a("s_add_u32 s21, s20, s17")
        a("s_add_u32 s20, s20, s16")
        for i in range(3):
            so, off = ("s20", 256 * i) if i < 2 else ("s21", 0)
            a(f"buffer_store_dwordx2 {vr(O4+4*i,2)}, v6, s[40:43], {so} offen offset:{off} {FS}")
            a(f"buffer_store_dwordx2 {vr(O4+4*i+2,2)}, v6, s[40:43], {so} offen offset:{off+32} {FS}")
    else:
        a("v_mul_u32_u24 v6, 592, v4")
        a("v_lshl_add_u32 v6, v5, 3, v6")
        a("s_lshl_b32 s21, s3, 6")
        a("v_add_u32 v6, s21, v6")
        a("s_mov_b32 s21, 16384")
        a("s_cmp_eq_u32 s3, 0")
        a("s_cselect_b32 s21, 512, s21")
        a("v_add_u32 v7, s21, v6")
        for i in range(3):
            ad, off = ("v6", 256 * i) if i < 2 else ("v7", 0)
            a(f"ds_write_b64 {ad}, {vr(O4+4*i,2)} offset:{off}")
            a(f"ds_write_b64 {ad}, {vr(O4+4*i+2,2)} offset:{off+32}")
        for i in range(3):
            a(f"v_add_u32 v{60+i}, {256*i}, v0")
            a(f"v_mul_u32_u24 v{64+i}, 1821, v{60+i}")
            a(f"v_lshrrev_b32 v{64+i}, 16, v{64+i}")
            a(f"v_mul_u32_u24 v{68+i}, 36, v{64+i}")
            a(f"v_sub_u32 v{68+i}, v{60+i}, v{68+i}")
            a(f"v_lshlrev_b32 v{68+i}, 4, v{68+i}")
            a(f"v_mul_u32_u24 v{72+i}, 592, v{64+i}")
            a(f"v_add_u32 v{72+i}, v{72+i}, v{68+i}")
            a(f"v_mul_u32_u24 v{76+i}, 1152, v{64+i}")
            a(f"v_add_u32 v{76+i}, v{76+i}, v{68+i}")
        a("s_mul_i32 s21, s15, 576")
        a("s_add_u32 s20, s20, s21")
        a("s_cmp_eq_u32 s3, 0")
        a(f"s_cselect_b32 s21, s20, {OOB}")
        a("s_waitcnt lgkmcnt(0)")
        a("s_barrier")
        for i in range(3):
            a(f"ds_read_b128 {vr(80+4*i,4)}, v{72+i}")
        for i in range(3):
            a(f"s_waitcnt lgkmcnt({2-i})")
            a(f"buffer_store_dwordx4 {vr(80+4*i,4)}, v{76+i}, s[40:43], {'s20' if i < 2 else 's21'} offen {FS}")
    if ts.on:
        ts.n = 14
        a("s_waitcnt vmcnt(0)")
        ts(); ts(True)
        if "tsk" in OPT:
            ts.n = 19; ts()
        if "spin" in OPT:
            a("s_add_u32 s64, s62, s57")
        ts.store()
    a("s_endpgm")
    for b in slowcode:
        a.label(f"{name}_w{b}")
        a(f"s_add_u32 s57, s57, {1 if 'spin' not in OPT else 100 * 10 ** b}")
        a("s_cmp_gt_u32 s57, 0x40000")
        a(f"s_cbranch_scc1 {name}_r{b}")
        a("s_sleep 2")
        a(f"buffer_load_dword v2, v7, s[4:7], s27 offen sc1")
        a("s_waitcnt vmcnt(0)")
        a("v_readfirstlane_b32 s30, v2")
        a(f"s_cmp_gt_u32 s30, {b}")
        a(f"s_cbranch_scc0 {name}_w{b}")
        a(f"s_branch {name}_r{b}")
    a.label(f"{name}_end")
    a("s_endpgm")
    return name, a.text(), dict(vgpr=512, sgpr=102, accum=256), dict(grid=256, block=256, lds=163840)


def main():
    ks = [gen_p0(CODE0="main_kernel", CPN=8, zero=True, w12="late" not in OPT), gen_main()]
    ref = open(f"cdna_kernels/{NAME}.s.ref").read().split("\n")
    hdr = [ln for ln in ref if ln.startswith(";") and "@launch" not in ln and "Override launch" not in ln and "grid=ceil" not in ln]
    out = hdr[:]
    if "nop" in OPT:
        na = Asm()
        na.raw(".globl nop_kernel\n.p2align 8\n.type nop_kernel,@function\nnop_kernel:")
        na("s_endpgm")
        nk = ("nop_kernel", na.text(), dict(vgpr=8, sgpr=16, accum=8), dict(grid=8, block=64, lds=0))
        pos = OPT["nop"]
        seq = {"a": [nk] + ks, "b": [ks[0], nk, ks[1]], "c": ks + [nk], "d": [nk, nk, nk] + ks}[pos]
        for name, _, _, g in seq:
            out.append(f"; @launch kernel={name} grid=({g['grid']},1,1) block=({g['block']},1,1) lds={g['lds']}")
        ks = [nk] + ks
    for name, _, _, g in (ks if "nop" not in OPT else []):
        out.append(f"; @launch kernel={name} grid=({g['grid']},1,1) block=({g['block']},1,1) lds={g['lds']}")
    out.append('.amdgcn_target "amdgcn-amd-amdhsa--gfx950"')
    out.append(".text")
    for _, txt, _, _ in ks:
        out.append(txt)
    out.append("code_end:")
    out.append("    s_endpgm")
    out.append('.section .rodata,"a"')
    for name, _, kd, _ in ks:
        out.append(KD.format(name=name, **kd))
    path = sys.argv[1] if len(sys.argv) > 1 else f"cdna_kernels/{NAME}.s"
    open(path, "w").write("\n".join(out))
    json.dump(L, open("layout.json", "w"))
    print("written", path)


if __name__ == "__main__":
    main()
```

```python
import sys, json, math
from asmb import Asm, KD, vr, ar, sr
from gen import (OPT, NAME, S, D, F, XT, TILE, OOB, WS_BYTES, L, G0, KT, KO, NCHUNK, SLB, f32, Cnt, Stamps, srd,
                 xg_reduce, stats_finish, gen_p0, w12_roles)

LOG2E = math.log2(math.e)
EX = 147456
CQL = EX + 5 * 3072
CNT = 16384


def gen_main():
    name = "main_kernel"
    a = Asm()
    vm = Cnt(a, "vmcnt", 63); lg = Cnt(a, "lgkmcnt", 15)
    ts = Stamps(a, name)
    XIN = L["X0"]; STI = L["ST0"]; OUT = L["O0"]; X1 = L["X1_0"]; ST1 = L["ST1_0"]
    PART = L["PART0"]; HX = L["HX0"]; FL = L["FL0"]; LSTR = L["LSTR"]
    slowcode = []
    DBL = OPT.get("dbl", "")

    def hst(text, kind, tag=None):
        a(text + " sc1")
        if tag is not None:
            vm.issue(tag)
        if kind in DBL:
            a(text)
            if tag is not None:
                vm.issue(tag)
    REUSE = "reuse" in OPT
    if REUSE:
        PART = L["PART1"]; HX = L["HX1"]

    a.raw(f".globl {name}\n.p2align 8\n.type {name},@function\n{name}:")
    a("s_cmp_ge_u32 s2, 256")
    a(f"s_cbranch_scc1 {name}_end")
    ts(True); ts()
    a("s_load_dwordx2 s[4:5], s[0:1], 80")
    a("s_mov_b32 s59, 0")
    a("s_mov_b32 s57, 0")
    a("v_and_b32 v1, 63, v0")
    a("v_lshrrev_b32 v2, 6, v0")
    a("v_readfirstlane_b32 s3, v2")
    a("v_lshlrev_b32 v3, 4, v1")
    a("s_and_b32 s12, s2, 7")
    a("s_lshr_b32 s13, s2, 3")
    RB = int(OPT.get("rbits", 1))
    CB = 3 - RB
    MB = 4 - CB
    a(f"s_lshr_b32 s8, s12, {CB}")
    a(f"s_lshl_b32 s8, s8, {4 - RB}")
    a(f"s_lshr_b32 s14, s13, {MB}")
    a("s_add_u32 s8, s8, s14")
    a(f"s_and_b32 s9, s12, {(1 << CB) - 1}")
    a(f"s_lshl_b32 s9, s9, {MB}")
    a(f"s_and_b32 s14, s13, {(1 << MB) - 1}")
    a("s_add_u32 s9, s9, s14")
    a("s_lshl_b32 s10, s8, 7")
    a(f"s_add_u32 s10, s10, {FL + CNT}")
    a("s_sub_u32 s11, s10, 128")
    a("s_cmp_eq_u32 s8, 0")
    a("s_cselect_b32 s11, s10, s11")
    a("s_sub_u32 s12, s10, s11")
    a("v_mov_b32 v254, s12")
    a("v_cmp_eq_u32 vcc, 0, v1")
    a("v_cndmask_b32 v254, 0, v254, vcc")

    if "stag" in OPT:
        a(f"s_and_b32 s12, s8, {OPT.get('stagm', 4)}")
        a("s_cmp_eq_u32 s12, 0")
        a(f"s_cbranch_scc1 {name}_nostag")
        for _ in range(int(OPT["stag"])):
            a("s_sleep 36")
        a.label(f"{name}_nostag")
    L2PF = OPT.get("l2pf", "n")

    def l2pf(sreg, off=0, n=4):
        for i in range(n):
            a(f"buffer_load_dwordx4 a[252:255], v3, s[4:7], {sreg} offen offset:{off+i*1024}"); vm.issue("pf")
    CPF = "cpf" in OPT
    if CPF:
        a("s_getpc_b64 s[98:99]")
        a.raw(f"{name}_pc:")
        a("s_lshl_b32 s12, s13, 2")
        a("s_add_u32 s12, s12, s3")
        a("s_lshl_b32 s12, s12, 7")
        a("s_add_u32 s98, s98, s12")
        a("s_addc_u32 s99, s99, 0")

    def cpf(expr):
        if CPF:
            a(f"s_mov_b32 s101, {expr}-{name}_pc")
            a("s_load_dword s100, s[98:99], s101")
            a("s_load_dword s100, s[98:99], s101 offset:64")
    LATE = "late" in OPT
    a("s_lshr_b32 s12, s9, 1")
    a("s_lshl_b32 s12, s12, 7")
    a(f"s_add_u32 s12, s12, {FL + CNT + 64 + 2048}")
    a("s_sub_u32 s12, s12, s11")
    a("v_writelane_b32 v254, s12, 2")
    a("s_waitcnt lgkmcnt(0)")
    a("s_and_b32 s5, s5, 0xffff")
    a(f"s_mov_b32 s6, {WS_BYTES}")
    a("s_mov_b32 s7, 0x00020000")
    if LATE:
        a("s_and_b32 s12, s8, 7")
        a("s_cmp_ge_u32 s12, 4")
        a("s_cselect_b32 s13, 1, 0")
        a("s_cmp_eq_u32 s8, 3")
        a("s_cselect_b32 s13, 1, s13")
        a("s_cmp_eq_u32 s13, 0")
        a(f"s_cbranch_scc1 {name}_early")
        a("s_load_dwordx4 s[24:27], s[0:1], 32")
        a("s_load_dwordx2 s[28:29], s[0:1], 48")
        a("s_sub_u32 s12, s8, 3")
        a("s_sub_u32 s13, s8, 7")
        a("s_cmp_ge_u32 s8, 8")
        a("s_cselect_b32 s12, s13, s12")
        a("s_lshl_b32 s31, s12, 4")
        a("s_add_u32 s31, s31, s9")
        a("v_and_b32 v4, 15, v1")
        a("v_lshrrev_b32 v5, 4, v1")
        a("v_lshrrev_b32 v6, 3, v1")
        a("v_and_b32 v7, 7, v1")
        a("v_lshrrev_b32 v11, 2, v1")
        a("v_lshlrev_b32 v11, 7, v11")
        a("v_and_b32 v12, 3, v1")
        a("v_lshl_add_u32 v11, v12, 3, v11")
        a("s_lshl_b32 s38, s3, 5")
        a("v_add_u32 v11, s38, v11")
        a("s_waitcnt lgkmcnt(0)")
        w12_roles(a, name, "s31", lambda: a(f"s_branch {name}_tiled"), lambda k: None, "nt")
        a.label(f"{name}_tiled")
        a("s_lshl_b32 s56, s56, 7")
        a(f"s_add_u32 s56, s56, {FL + CNT + 64 + 2048}")
        a("s_cmp_lg_u32 s3, 0")
        a(f"s_cselect_b32 s56, {OOB}, s56")
        a("v_mov_b32 v2, 1")
        a("v_mov_b32 v4, 0")
        a("s_waitcnt vmcnt(0)")
        a("s_barrier")
        a("s_mov_b64 exec, 1")
        a("buffer_atomic_add v2, v4, s[4:7], s56 offen")
        a("s_mov_b64 exec, -1")
        a.label(f"{name}_early")
    nsync = [0]

    def sync(target, prefetch=None, prev=False, wts=False, waited=False, pre=None):
        k = nsync[0]; nsync[0] += 1
        PFE = OPT.get("pfe", "0000")[k] == "1" and not waited
        PREM = OPT.get("prem", "0000")[k] == "1" or PFE
        if pre and PREM and not (PFE and k == 3):
            pre()
        npe = 0
        if PFE:
            n0 = len(a.out)
            prefetch()
            npe = sum(1 for ln in a.out[n0:] if ln.strip().startswith("buffer_"))
            prefetch = None
            if k == 3:
                PREM = False
        RET = "ret" in OPT
        mask = 3 if prev else (5 if wts else 1)
        a("v_cmp_eq_u32 vcc, 0, v1")
        a("v_cndmask_b32 v252, 0, 1, vcc")
        a(f"v_mov_b32 v255, {target}")
        if wts:
            a("s_cmp_eq_u32 s59, 0")
            a("s_cselect_b32 s58, 18, 0")
            a("v_writelane_b32 v255, s58, 2")
        a("v_sub_u32 v253, v255, v252")
        if not waited:
            a(f"s_waitcnt vmcnt({npe})")
        if ts.on and OPT.get("tsk") == str(k):
            sv = ts.n; ts.n = 16; ts(); ts.n = sv
        a("s_barrier")
        vm.q = []
        if ts.on and OPT.get("tsk") == str(k):
            sv = ts.n; ts.n = 17; ts(); ts.n = sv
        a("s_cmp_lg_u32 s3, 0")
        a(f"s_cbranch_scc1 {name}_sa{k}")
        a(f"s_mov_b64 exec, {mask if RET else 1}")
        a("buffer_atomic_add v252, v254, s[4:7], s11 offen" + (" sc0" if RET else ""))
        if "poll1" in OPT:
            a(f"s_mov_b64 exec, {mask}")
            a("buffer_load_dword v253, v254, s[4:7], s11 offen sc1")
        a("s_mov_b64 exec, -1")
        a.label(f"{name}_sa{k}")
        if pre and not PREM:
            pre()
        n0 = len(a.out)
        if prefetch:
            prefetch()
        npf = sum(1 for ln in a.out[n0:] if ln.strip().startswith("buffer_"))
        if ts.on and OPT.get("tsk") == str(k):
            sv = ts.n; ts.n = 18; ts(); ts.n = sv
        a("s_cmp_lg_u32 s3, 0")
        a(f"s_cbranch_scc1 {name}_sb{k}")
        a(f"s_mov_b64 exec, {mask}")
        if RET or "poll1" in OPT:
            a(f"s_waitcnt vmcnt({npf})")
            a("v_cmp_gt_u32 vcc, v253, v252" if RET else "v_cmp_gt_u32 vcc, v255, v253")
            a("s_nop 4")
            a(f"s_cbranch_vccz {name}_sq{k}")
        if "sl0" in OPT:
            a(f"s_sleep {OPT['sl0']}")
        a.label(f"{name}_sp{k}")
        if "sl1" in OPT:
            a(f"s_sleep {OPT['sl1']}")
        a("buffer_load_dword v252, v254, s[4:7], s11 offen sc1")
        a("s_add_u32 s57, s57, 1")
        a("s_waitcnt vmcnt(0)")
        a("v_cmp_gt_u32 vcc, v255, v252")
        a("s_nop 4")
        a(f"s_cbranch_vccz {name}_sq{k}")
        a("s_cmp_lt_u32 s57, 0x40000")
        a(f"s_cbranch_scc1 {name}_sp{k}")
        a.label(f"{name}_sq{k}")
        a("s_mov_b64 exec, -1")
        a.label(f"{name}_sb{k}")
        a("s_waitcnt vmcnt(0) lgkmcnt(0)")
        if OPT.get("idlek") == str(k):
            for _ in range(int(OPT["idlen"])):
                a("s_sleep 36")
        a("s_barrier")
        vm.q = []; lg.q = []

    def split(fn):
        return fn

    ACC = 16; AB = 88
    RN = 168; RS = 176; CQN = 200; CQH = 220; CQS = 224
    MS = 228; MPA = 232; MPB = 236
    T0 = 200
    WW = 244; AM = 248
    cs = (18 ** -0.5) * LOG2E

    def p1_setup():
        a("v_and_b32 v4, 15, v1")
        a("v_lshrrev_b32 v5, 4, v1")
        a("s_lshl_b32 s16, s8, 3")
        a("s_lshl_b32 s17, s3, 1")
        a("s_add_u32 s17, s17, s16")
        a("s_mul_i32 s18, s17, 18432")
        a(f"s_add_u32 s18, s18, {XIN}")
        a("s_mul_i32 s22, s16, 18432")
        a(f"s_add_u32 s22, s22, {XIN - 18432}")
        a("s_cmp_eq_u32 s8, 0")
        a(f"s_cselect_b32 s22, {OOB}, s22")
        a("s_lshl_b32 s25, s17, 9")
        a(f"s_add_u32 s25, s25, {STI}")
        a("s_lshl_b32 s26, s16, 9")
        a(f"s_add_u32 s26, s26, {STI - 512}")
        a("s_cmp_eq_u32 s8, 0")
        a(f"s_cselect_b32 s26, {OOB}, s26")
        a("s_sub_u32 s23, s25, 512")
        a("s_cmp_eq_u32 s17, 0")
        a(f"s_cselect_b32 s23, {OOB}, s23")
        a("s_lshl_b32 s27, s3, 2")
        a("s_lshr_b32 s28, 0x1654, s27")
        a("s_and_b32 s28, s28, 15")
        a("s_lshr_b32 s27, 0x0632, s27")
        a("s_and_b32 s27, s27, 15")
        a("v_lshlrev_b32 v6, 3, v1")
        a("v_lshlrev_b32 v7, 4, v5")
        a("v_lshlrev_b32 v8, 2, v4")
        a("v_add_u32 v15, 18432, v3")

    def p1_consts():
        a("v_min_u32 v12, 71, v0")
        a("v_lshrrev_b32 v13, 2, v12")
        a("v_lshlrev_b32 v13, 13, v13")
        a("v_and_b32 v12, 3, v12")
        a("v_lshl_add_u32 v13, v12, 8, v13")
        for i in range(4):
            a(f"v_mov_b32 v{ACC+i}, 0x3f803f80")
        a(f"ds_write_b128 v13, {vr(ACC,4)} offset:7168")
        a("v_mov_b32 v9, v3")
        a("s_lshl_b32 s32, s27, 10")
        a("v_add_u32 v10, s32, v3")
        a("s_lshl_b32 s32, s28, 10")
        a("v_add_u32 v11, s32, v3")
        a(f"v_mov_b32 v12, {f32(-1e28)}")
        a("v_lshlrev_b32 v13, 2, v5")
        a("v_sub_u32 v13, v4, v13")
        a("s_cmp_eq_u32 s17, 0")
        a("s_cselect_b32 s33, -100, -2")
        for i in range(4):
            a(f"v_subrev_u32 v14, {i}, v13")
            a("v_and_b32 v2, 1, v14")
            a("v_cmp_eq_u32 s[34:35], 0, v2")
            a("v_cmp_le_i32 vcc, 0, v14")
            a("s_and_b64 vcc, vcc, s[34:35]")
            a(f"v_cndmask_b32 v{MS+i}, v12, 0, vcc")
            a("v_cmp_ge_i32 vcc, -2, v14")
            a("s_and_b64 vcc, vcc, s[34:35]")
            a(f"v_cndmask_b32 v{MPB+i}, v12, 0, vcc")
            a("v_cmp_ge_i32 vcc, s33, v14")
            a("s_and_b64 vcc, vcc, s[34:35]")
            a(f"v_cndmask_b32 v{MPA+i}, v12, 0, vcc")
        a("v_and_b32 v2, 1, v4")
        a("v_cmp_eq_u32 s[30:31], 1, v2")
        a("v_lshlrev_b32 v14, 4, v2")
        a("v_lshlrev_b32 v14, v14, 0xffff" if False else "v_mov_b32 v12, 0xffff")
        a("v_lshlrev_b32 v14, v14, v12")
        a("v_sub_u32 v13, v13, v2")
        for p in range(2):
            a(f"v_cmp_le_i32 vcc, {2*p}, v13")
            a(f"v_cndmask_b32 v{AM+p}, 0, v14, vcc")
            a(f"v_cndmask_b32 v{AM+2+p}, v14, 0, vcc")
        a("s_lshl_b32 s32, s3, 9")
        a(f"s_add_u32 s32, s32, {EX}")
        a("v_add_u32 v12, s32, v8")
        a("v_add_u32 v13, s32, v7")
        if "o" in L2PF:
            a("s_lshr_b32 s58, s2, 3")
            a("s_lshl_b32 s58, s58, 2")
            a("s_add_u32 s58, s58, s3")
            a("s_mul_i32 s58, s58, 5184")
            a(f"s_add_u32 s58, s58, {L['WO']}")
            l2pf("s58")
            a("s_add_u32 s58, s58, 4096")
            l2pf("s58", 0, 1); l2pf("s58", 64, 1)
        for i in range(1, 5):
            a(f"v_add_u32 v{239+i}, {4096*i}, v3")
        a("s_and_b32 s40, s9, 3")
        a("s_and_b32 s41, s40, 1")
        a("s_mul_i32 s42, s40, 9")
        a("s_add_u32 s42, s42, s41")
        a("s_lshr_b32 s42, s42, 1")
        a("s_add_u32 s43, s42, s3")
        a("s_add_u32 s46, s42, 4")
        a("s_mul_i32 s47, s43, 36864")
        a(f"s_add_u32 s47, s47, {L['WO']}")
        a("s_sub_u32 s47, s47, s59")
        a("s_add_u32 s48, s47, 18432")
        a("s_lshl_b32 s49, s46, 1")
        a("s_lshr_b32 s32, s3, 1")
        a("s_add_u32 s49, s49, s32")
        a("s_mul_i32 s49, s49, 18432")
        a(f"s_add_u32 s49, s49, {L['WO']}")
        a("s_sub_u32 s49, s49, s59")
        a("s_cmp_eq_u32 s41, 1")
        a(f"s_cselect_b32 s49, {OOB}, s49")

    def wo_load(j, ks):
        def fn():
            vo = "v3" if ks < 4 else f"v{239 + ks // 4}"
            a(f"buffer_load_dwordx4 {ar((j*18+ks)*4,4)}, {vo}, s[4:7], s{47+j} offen offset:{(ks%4)*1024}"); vm.issue("wo")
        return fn

    def p1_stats_load():
        for n, so, off in ((0, "s25", 0), (1, "s25", 512), (2, "s26", 0), (3, "s23", 0)):
            a(f"buffer_load_dwordx2 {vr(T0+2*n,2)}, v6, s[4:7], {so} offen offset:{off} sc1"); vm.issue("st")

    def p1_stats_math():
        lst = []
        a = lst.append
        for sw in ("v_permlane16_swap_b32", "v_permlane32_swap_b32"):
            for r in range(8):
                a(f"v_mov_b32 v{T0+8+r}, v{T0+r}")
            for r in range(8):
                a(f"{sw} v{T0+r}, v{T0+8+r}")
            for r in range(8):
                a(f"v_add_f32 v{T0+r}, v{T0+r}, v{T0+8+r}")
        for n in range(4):
            b = T0 + 2 * n
            stats_finish(a, b, b + 1, RN + 2 * n, T0 + 12 + n, T0 + 8 + n, False)
            a(f"v_mov_b32 v{RN+2*n+1}, v{b}")
            a(f"ds_write_b32 v12, v{RN+2*n} offset:{n*128}")
            if n < 3:
                a(f"ds_write_b32 v12, v{T0+12+n} offset:{n*128+64}")
        for n in range(3):
            a(f"ds_read_b128 {vr(RS+8*n,4)}, v13 offset:{n*128}")
            a(f"ds_read_b128 {vr(RS+8*n+4,4)}, v13 offset:{n*128+64}")
        a(f"ds_read_b128 {vr(T0+16,4)}, v13 offset:{3*128}")
        return lst

    def p1_ww():
        r = []
        sel = {}
        for ti, base in enumerate((T0 + 16, RS, RS + 8)):
            for p in range(2):
                d = T0 + 2 * ti + p
                r.append(f"v_cndmask_b32 v{d}, v{base+2*p}, v{base+2*p+1}, s[30:31]")
                sel[(ti, p)] = d
        for p in range(2):
            r.append(f"v_cmp_ne_u32 vcc, 0, v{AM+p}")
            for n in range(2):
                r.append(f"v_cndmask_b32 v{WW+2*n+p}, v{sel[(n, p)]}, v{sel[(n+1, p)]}, vcc")
        for n in range(2):
            r.append(f"v_mul_f32 v{T0+6+n}, {f32(cs)}, v{RN+2*n}")
            for p in range(2):
                r.append(f"v_mul_f32 v{WW+2*n+p}, v{WW+2*n+p}, v{T0+6+n}")
        return r

    def reads(ks):
        b = AB + 40 * (ks & 1)
        o = (ks % 8) * 8192
        r = [f"ds_read_b128 {vr(b+28,4)}, v9 offset:{o+7*1024}",
             f"ds_read_b128 {vr(b+32,4)}, v10 offset:{o}",
             f"ds_read_b128 {vr(b+36,4)}, v11 offset:{o}"]
        r += [f"ds_read_b128 {vr(b+4*fr,4)}, v9 offset:{o+fr*1024}" for fr in (0, 1, 2, 3, 6, 4, 5)]
        return r

    def mfmas(ks):
        b = AB + 40 * (ks & 1)
        r = []
        acc = vr(ACC + 64, 4); c = "0" if ks == 0 else acc
        r.append(f"v_mfma_f32_16x16x32_bf16 {acc}, {vr(b+32,4)}, {vr(b+28,4)}, {c}")
        acc = vr(ACC + 68, 4); c = "0" if ks == 0 else acc
        r.append(f"v_mfma_f32_16x16x32_bf16 {acc}, {vr(b+28,4)}, {vr(b+36,4)}, {c}")
        for slot, fr in enumerate((0, 1, 2, 3, 6, 4, 5, 6)):
            for n in range(2):
                acc = vr(ACC + 32 * n + 4 * slot, 4)
                x = ar(72 * n + 4 * ks, 4)
                w = vr(b + 4 * fr, 4)
                c = "0" if ks == 0 else acc
                if slot < 5:
                    r.append(f"v_mfma_f32_16x16x32_bf16 {acc}, {w}, {x}, {c}")
                else:
                    r.append(f"v_mfma_f32_16x16x32_bf16 {acc}, {x}, {w}, {c}")
        return r

    def xloads(ks):
        o = (ks % 4) * 1024
        return [[f"buffer_load_dwordx4 {ar(4*ks,4)}, v3, s[4:7], s18 offen offset:{o} sc1"],
                [f"buffer_load_dwordx4 {ar(72+4*ks,4)}, v15, s[4:7], s18 offen offset:{o} sc1"] + (["s_add_u32 s18, s18, 4096"] if ks % 4 == 3 else [])]

    def do_load(grp, ks):
        for t in grp:
            a(t)
        vm.issue(("k", ks))

    NLOOP = int(OPT.get("nloop", 18))
    SFILL = "nosfill" not in OPT

    def p1_loop(loads, PF, CH, WPS, LATE2):
        for t in reads(0):
            a(t)
        a("s_waitcnt lgkmcnt(0)")
        wo_early = [(-1, wo_load(2, ks)) for ks in range(18)] + [(ks, wo_load(j, ks)) for ks in range(18) for j in range(2)]
        wo_early = wo_early[:NLOOP]
        sfl = p1_stats_math() if SFILL else []
        for ks in range(18):
            m = mfmas(ks)
            nxt = ks + 1
            rd = []
            if not CH:
                vm.wait(("k", ks))
            if nxt < 18:
                if CH and nxt % CH == 0:
                    vm.wait(("k", min(nxt + CH - 1, 17)))
                    a("s_barrier")
                if nxt % 8 == 0:
                    a("v_add_u32 v9, 0x10000, v9")
                    a("v_add_u32 v10, 0x10000, v10")
                    a("v_add_u32 v11, 0x10000, v11")
                rd = reads(nxt)
            else:
                a("s_lshl_b32 s32, s27, 6")
                a(f"s_add_u32 s32, s32, {CQL}")
                a("v_add_u32 v12, s32, v7")
                a("s_lshl_b32 s33, s28, 6")
                a(f"s_add_u32 s33, s33, {CQL}")
                a("v_add_u32 v13, s33, v8")
                a("s_mov_b32 s34, 0x00010001")
                a("s_mov_b32 s35, 0x00010001")
            ld = loads(ks + PF) if ks + PF < 18 else []
            fl = []
            if SFILL and 1 <= ks < 16:
                fl = sfl[:16]; del sfl[:16]
            if ks == 16:
                assert not sfl
            if ks == 16:
                fl = p1_ww()
            if ks == 17:
                fl = [f"v_mov_b32 v{88+4*i+3}, 0" for i in range(10)]
            for i, t in enumerate(m):
                a(t)
                if i < len(rd):
                    a(rd[i])
                if fl and not (ks == 17 and i == 10):
                    a(fl.pop(0))
                if i >= 10 and (i - 10) % 2 == 0:
                    if (i - 10) // 2 < len(ld):
                        do_load(ld[(i - 10) // 2], ks + PF)
                    elif wo_early and wo_early[0][0] < ks and (i - 10) // 2 < (4 if ks + PF >= 18 else WPS):
                        wo_early.pop(0)[1]()
                if 2 <= i < 10 and i % 2 == 0 and ks + PF >= 18 and wo_early and wo_early[0][0] < ks and LATE2:
                    wo_early.pop(0)[1]()
                if ks == 17 and i == 10:
                    a("s_mov_b64 exec, s[34:35]")
                    a(f"ds_write_b128 v12, {vr(ACC+64,4)}")
                    a("s_mov_b64 exec, 0xffff")
                    a(f"ds_write_b32 v13, v{ACC+68}")
                    a("s_mov_b64 exec, -1")
            for t in fl:
                a(t)
            a("s_waitcnt lgkmcnt(0)")
        print("wo left after loop:", len(wo_early), file=sys.stderr)
        while wo_early:
            wo_early.pop(0)[1]()

    a.label(f"{name}_p1a")
    p1_setup()
    a(f"s_mul_i32 s20, s9, {18*7168}")
    a("s_lshl_b32 s21, s3, 11")
    a("s_add_u32 s20, s20, s21")
    a(f"s_add_u32 s20, s20, {L['WQ']}")
    a("s_sub_u32 s20, s20, s59")
    a("s_sub_u32 s22, s22, 1024")
    a("s_mov_b32 s52, 7168")
    a("s_mov_b32 s44, 0xfffefffe")
    a("s_cmp_eq_u32 s3, 3")
    a("s_cselect_b32 s22, s22, s20")
    a("s_cselect_b32 s52, 1024, s52")
    a("s_cselect_b32 s44, s44, -1")
    a("s_mov_b32 s45, s44")
    a("s_mov_b32 s24, s21")
    p1_stats_load()

    def loads_a(ks):
        return [["s_mov_b32 m0, s24", "s_add_u32 s24, s24, 8192", "buffer_load_dwordx4 v3, s[4:7], s20 offen lds", "s_add_u32 s20, s20, 7168"],
                ["s_mov_b64 exec, s[44:45]", "buffer_load_dwordx4 v3, s[4:7], s22 offen offset:1024 lds", "s_mov_b64 exec, -1",
                 "s_add_u32 s22, s22, s52"]] + xloads(ks)
    for ks in range(2):
        for grp in loads_a(ks):
            do_load(grp, ks)
    p1_consts()
    for ks in range(2, 4):
        for grp in loads_a(ks):
            do_load(grp, ks)
    if not SFILL:
        vm.wait("st")
        for t in p1_stats_math():
            a(t)
    for grp in loads_a(4):
        do_load(grp, 4)
    vm.wait(("k", 1))
    a("s_waitcnt lgkmcnt(0)")
    a("s_barrier")
    ts()
    p1_loop(loads_a, 5, 2, 0, True)

    a.label(f"{name}_epi")
    vm.q = ["wo"] * 18
    ts.n = 3
    ts()
    a("s_barrier")
    if "w" in L2PF:
        a("s_and_b32 s58, s8, 7")
        a("s_lshl_b32 s58, s58, 2")
        a("s_add_u32 s58, s58, s3")
        a("s_lshl_b32 s58, s58, 12")
        a(f"s_mul_i32 s29, s9, {SLB}")
        a("s_add_u32 s29, s29, s58")
        a(f"s_add_u32 s29, s29, {L['W12']}")
        a("s_sub_u32 s29, s29, s59")
        l2pf("s29")
    a(f"v_add_u32 v9, {CQL}, v7")
    a(f"v_add_u32 v10, {CQL}, v8")
    for i, fr in enumerate((0, 1, 2, 3, 6)):
        a(f"ds_read_b128 {vr(CQN+4*i,4)}, v9 offset:{fr*64}")
    a(f"ds_read_b128 {vr(CQH,4)}, v12")
    for i, fr in enumerate((4, 5, 6)):
        a(f"ds_read_b32 v{CQS+i}, v10 offset:{fr*64}")
    a(f"ds_read_b32 v{CQS+3}, v13")
    NBG = int(OPT.get("nbg", 30))
    wo_rest = [wo_load(j, ks) for ks in range(18) for j in range(2)][NLOOP - 18:]
    a.bg = wo_rest[:NBG]; wo_rest = wo_rest[NBG:]
    a.bg_every = int(OPT.get("bgevery", 8))
    KF = 88; QF = 112; VF = 128; ONE = 148; T = 152
    for i in range(4):
        a(f"v_mul_f32 v{ACC+68+i}, v{ACC+68+i}, v{RS+16+i}")
    for n in (1, 0):
        for j in range(5, 8):
            for i in range(4):
                a(f"v_mul_f32 v{ACC+32*n+4*j+i}, v{ACC+32*n+4*j+i}, v{RS+8*n+i}")

    def corr_n(acc, n, cq):
        for i in range(4):
            a(f"v_fma_f32 v{acc+i}, -v{RN+2*n+1}, v{cq+i}, v{acc+i}")

    def corr_s(acc, n, cq):
        for i in range(4):
            a(f"v_fma_f32 v{acc+i}, -v{RS+8*n+4+i}, v{cq}, v{acc+i}")

    def pack2(dst, acc):
        a(f"v_cvt_pk_bf16_f32 v{dst}, v{acc}, v{acc+1}")
        a(f"v_cvt_pk_bf16_f32 v{dst+1}, v{acc+2}, v{acc+3}")

    a("v_cmp_eq_u32 s[36:37], 0, v5")
    a("v_cmp_eq_u32 s[38:39], 1, v5")
    a("v_lshlrev_b32 v12, 3, v1")
    a("s_mul_i32 s32, s3, 3072")
    a(f"s_add_u32 s33, s32, {EX}")
    a("v_add_u32 v13, s33, v12")
    a("s_lshl_b32 s32, s3, 9")
    a(f"s_add_u32 s32, s32, {EX}")
    a("s_cmp_eq_u32 s3, 3")
    a(f"s_cselect_b32 s32, {EX+4*3072}, s32")
    a("v_add_u32 v14, s32, v12")
    a("s_waitcnt lgkmcnt(0)")

    def conv_tile(n):
        ac = ACC + 32 * n
        tl = n + 1
        for i in range(5):
            corr_n(ac + 4 * i, n, CQN + 4 * i)
        for h in range(2):
            pack2(QF + (2 * n + h) * 4, ac + 4 * h)
            pack2(KF + (2 * tl + h) * 4, ac + 8 + 4 * h)
        pack2(T + 8 + 2 * n, ac + 16)
        for h in range(2):
            a(f"v_mov_b32 v{KF+(2*tl+h)*4+2}, v{T+8+2*n+1}")
            a(f"v_cndmask_b32 v{QF+(2*n+h)*4+2}, 0, v{T+8+2*n}, s[{36+2*h}:{37+2*h}]")
        for h in range(3):
            corr_s(ac + 20 + 4 * h, n, CQS + h)
            pack2(VF + 6 * h + 2 * tl, ac + 20 + 4 * h)

    corr_n(ACC + 64, 2, CQH)
    corr_s(ACC + 68, 2, CQS + 3)
    pack2(T + 12, ACC + 64)
    pack2(T + 14, ACC + 68)
    a(f"ds_write_b64 v14, {vr(T+12,2)}")
    a(f"ds_write_b64 v14, {vr(T+14,2)} offset:1536")
    conv_tile(1)
    a(f"ds_write_b64 v13, {vr(KF+16,2)} offset:{3072}")
    a(f"ds_write_b64 v13, {vr(KF+20,2)} offset:{3072+512}")
    a(f"ds_write_b64 v13, {vr(T+10,2)} offset:{3072+1024}")
    for h in range(3):
        a(f"ds_write_b64 v13, {vr(VF+6*h+4,2)} offset:{3072+1536+512*h}")
    conv_tile(0)
    for i in range(4):
        a(f"v_mov_b32 v{ONE+i}, 0x3f803f80")
    a("s_waitcnt lgkmcnt(0)")
    a("s_barrier")
    a(f"ds_read_b64 {vr(KF,2)}, v13")
    a(f"ds_read_b64 {vr(KF+4,2)}, v13 offset:512")
    a(f"ds_read_b32 v{KF+2}, v13 offset:{1024+4}")
    a(f"ds_read_b32 v{KF+6}, v13 offset:{1024+4}")
    for h in range(3):
        a(f"ds_read_b64 {vr(VF+6*h,2)}, v13 offset:{1536+512*h}")
    SB = 16; PB = 48; MX = 64; OB = 168; OO = 72
    jobs = [(1, 0), (1, 1), (0, 0), (0, 1)]
    for j, (n, h) in enumerate(jobs):
        if j == 2:
            a("s_waitcnt lgkmcnt(0)")
        q = vr(QF + (2 * n + h) * 4, 4)
        mp = MPA if n == 0 else MPB
        a(f"v_mfma_f32_16x16x32_bf16 {vr(SB+8*j,4)}, {vr(KF+(2*n+h)*4,4)}, {q}, {vr(mp,4)}")
        a(f"v_mfma_f32_16x16x32_bf16 {vr(SB+8*j+4,4)}, {vr(KF+(2*(n+1)+h)*4,4)}, {q}, {vr(MS,4)}")
    a("s_mul_i32 s32, s17, 18432")
    a("s_lshl_b32 s33, s9, 10")
    a("s_add_u32 s33, s33, s32")
    a(f"s_add_u32 s33, s33, {OUT}")
    a("s_add_u32 s34, s33, 18432")
    a("s_lshr_b32 s35, s9, 3")
    a("s_lshl_b32 s35, s35, 10")
    a("s_and_b32 s36, s9, 7")
    a("s_lshl_b32 s36, s36, 7")
    a("s_add_u32 s35, s35, s36")
    a("s_add_u32 s35, s35, s32")
    a(f"s_add_u32 s35, s35, {OUT + 16*1024}")
    a("s_add_u32 s36, s35, 18432")
    for j, (n, h) in enumerate(jobs):
        s = SB + 8 * j
        for p in range(2):
            a(f"v_max3_f32 v{s+2*p}, v{s+2*p}, v{s+2*p+1}, v{s+4+2*p}")
        for p in range(2):
            a(f"v_max_f32 v{s+2*p}, v{s+2*p}, v{s+5+2*p}")
        for p in range(2):
            a(f"v_mul_f32 v{s+2*p}, v{s+2*p}, v{WW+2*n+p}")
        a(f"v_max_f32 v{MX+2*j}, v{s}, v{s+2}")
    for sw in ("v_permlane16_swap_b32", "v_permlane32_swap_b32"):
        for j in range(4):
            a(f"v_mov_b32 v{MX+2*j+1}, v{MX+2*j}")
        for j in range(4):
            a(f"{sw} v{MX+2*j}, v{MX+2*j+1}")
        for j in range(4):
            a(f"v_max_f32 v{MX+2*j}, v{MX+2*j}, v{MX+2*j+1}")
    for j in range(4):
        for p in range(2):
            a(f"v_sub_f32 v{SB+8*j+2*p}, v{SB+8*j+2*p}, v{MX+2*j}")
    for j in range(4):
        for p in range(2):
            a(f"v_exp_f32 v{SB+8*j+2*p}, v{SB+8*j+2*p}")
    for j, (n, h) in enumerate(jobs):
        s = SB + 8 * j
        for p in range(2):
            a(f"v_cvt_pk_bf16_f32 v{s+2*p}, v{s+2*p}, v{s+2*p}")
        for p in range(2):
            a(f"v_and_b32 v{PB+4*j+p}, v{s+2*p}, v{AM+2+p}")
            a(f"v_and_b32 v{PB+4*j+2+p}, v{s+2*p}, v{AM+p}")
        p = vr(PB + 4 * j, 4)
        a(f"v_mfma_f32_16x16x32_bf16 {vr(OB+12*j+8,4)}, {vr(ONE,4)}, {p}, 0")
        a(f"v_mfma_f32_16x16x32_bf16 {vr(OB+12*j,4)}, {vr(VF+6*h+2*n,4)}, {p}, 0")
        a(f"v_mfma_f32_16x16x32_bf16 {vr(OB+12*j+4,4)}, {vr(VF+12+2*n,4)}, {p}, 0")
    wo_rest = a.bg + wo_rest
    a.bg = []
    a("v_lshlrev_b32 v12, 3, v4")
    a("v_mov_b32 v13, 0x40000000")
    a("v_cmp_eq_u32 vcc, 2, v5")
    a("v_cndmask_b32 v12, v13, v12, vcc")
    for j, (n, h) in enumerate(jobs):
        o = OB + 12 * j
        a(f"v_rcp_f32 v{o+8}, v{o+8}")
        for i in range(4):
            a(f"v_mul_f32 v{o+i}, v{o+i}, v{o+8}")
        a(f"v_mul_f32 v{o+4+2*h}, v{o+4+2*h}, v{o+8}")
        a(f"v_mul_f32 v{o+5+2*h}, v{o+5+2*h}, v{o+8}")
        a(f"v_cvt_pk_bf16_f32 v{OO+4*n+2*h}, v{o}, v{o+1}")
        a(f"v_cvt_pk_bf16_f32 v{OO+4*n+2*h+1}, v{o+2}, v{o+3}")
        a(f"v_cvt_pk_bf16_f32 v{OO+8+2*n+h}, v{o+4+2*h}, v{o+5+2*h}")
        if h == 1:
            hst(f"buffer_store_dwordx4 {vr(OO+4*n,4)}, v3, s[4:7], s{33+n} offen", "o")
            hst(f"buffer_store_dwordx2 {vr(OO+8+2*n,2)}, v12, s[4:7], s{35+n} offen", "o")
    ts()

    OL = 98304
    PA = 16; PBB = 40; RES = 88
    NPRE = int(OPT.get("npre", 4))

    CF = int(OPT.get("cf", 24)); NS = 144 // CF; PW = CF // 4; NCH = (666 + CF - 1) // CF
    LASTB = ((PW - 1) // 4) * 4096
    NPRE = NPRE * 24 // CF

    def mk_w(c, i):
        def fn():
            if i == 0:
                a(f"s_add_u32 m0, s54, {(c % NS) * CF * 1024}")
                a(f"s_add_u32 s55, s55, {CF*1024-LASTB}")
            elif i % 4 == 0:
                a("s_add_u32 m0, m0, 4096")
                a("s_add_u32 s55, s55, 4096")
            if not ("nodma" in OPT and c >= 6):
                a(f"buffer_load_dwordx4 v3, s[4:7], s55 offen offset:{(i%4)*1024} {OPT.get('wsc', 'sc1')} lds"); vm.issue(("w", c))
        return fn
    WPRE = [mk_w(c, i) for c in range(NPRE) for i in range(PW)]
    NW2 = int(OPT.get("nw2", 18))

    def p2_pre():
        a(f"s_mul_i32 s54, s3, {PW*1024}")
        a(f"s_mul_i32 s55, s9, {SLB}")
        a("s_add_u32 s55, s55, s54")
        a(f"s_add_u32 s55, s55, {L['W12'] - (CF*1024-LASTB)}")
        a("s_sub_u32 s55, s55, s59")
        a("s_lshr_b32 s12, s9, 2")
        a("s_lshl_b32 s13, s8, 3")
        a("s_lshl_b32 s14, s12, 1")
        a("s_add_u32 s13, s13, s14")
        a("s_mul_i32 s15, s13, 18432")
        a("s_lshl_b32 s16, s43, 10")
        a("s_add_u32 s16, s16, s15")
        a("s_lshl_b32 s17, s46, 10")
        a("s_add_u32 s17, s17, s15")
        a("s_and_b32 s18, s3, 1")
        a("s_mul_i32 s18, s18, 18432")
        a("s_add_u32 s17, s17, s18")
        a("s_cmp_eq_u32 s41, 1")
        a(f"s_cselect_b32 s17, {OOB}, s17")
        a(f"s_add_u32 s19, s16, {XIN}")
        a("s_lshr_b32 s20, s3, 1")
        a("s_lshl_b32 s20, s20, 3")
        a("s_add_u32 s20, s20, s17")
        a(f"s_add_u32 s20, s20, {XIN}")
        a("s_mul_i32 s21, s3, 9216")
        a("s_add_u32 s22, s15, s21")
        a(f"s_add_u32 s22, s22, {OUT}")
        a(f"s_add_u32 s21, s21, {OL}")
        a(f"v_add_u32 v9, {OL}, v3")
        a("v_add_u32 v10, s18, v9")
        a(f"v_add_u32 v7, {OL + 16384}, v6")
        a("v_add_u32 v8, 18432, v7")
        a("v_add_u32 v14, s18, v7")

    def p2_prefetch():
        cpf(f"{name}_c0")
        a(f"buffer_load_dwordx4 {vr(RES,4)}, v3, s[4:7], s19 offen sc1")
        a(f"buffer_load_dwordx4 {vr(RES+4,4)}, v15, s[4:7], s19 offen sc1")
        a(f"buffer_load_dwordx2 {vr(RES+8,2)}, v3, s[4:7], s20 offen sc1")
        for fn in wo_rest:
            fn()
        if not LATE:
            for _ in range(int(OPT.get("nw1", 0))):
                WPRE.pop(0)()
    sync(16, p2_prefetch, wts=LATE, pre=p2_pre)
    ts()
    a("s_mov_b32 m0, s21")
    for i in range(9):
        a(f"buffer_load_dwordx4 v3, s[4:7], s22 offen offset:{(i%3)*1024} sc1 lds")
        if i % 3 == 2 and i < 8:
            a("s_add_u32 s22, s22, 3072")
            a("s_add_u32 m0, m0, 3072")
    for n in range(2):
        for mh in range(2):
            ac = PA + (2 * mh + n) * 4; r = RES + 4 * n + 2 * mh
            a(f"v_lshlrev_b32 v{ac}, 16, v{r}")
            a(f"v_and_b32 v{ac+1}, 0xffff0000, v{r}")
            a(f"v_lshlrev_b32 v{ac+2}, 16, v{r+1}")
            a(f"v_and_b32 v{ac+3}, 0xffff0000, v{r+1}")
    a(f"v_lshlrev_b32 v{PA+16}, 16, v{RES+8}")
    a(f"v_and_b32 v{PA+17}, 0xffff0000, v{RES+8}")
    a(f"v_lshlrev_b32 v{PA+18}, 16, v{RES+9}")
    a(f"v_and_b32 v{PA+19}, 0xffff0000, v{RES+9}")
    a(f"s_add_u32 s19, s16, {X1}")
    a(f"s_add_u32 s20, s17, {X1}")
    a("s_cmp_ge_u32 s3, 2")
    a(f"s_cselect_b32 s20, {OOB}, s20")
    a("s_and_b32 s26, s3, 1")
    a("s_cmp_eq_u32 s26, 0")
    a("s_cselect_b32 s23, 1.0, 0")
    a("s_cselect_b32 s24, 0, 1.0")
    a("s_lshl_b32 s25, s3, 10")
    a(f"s_add_u32 s25, s25, {EX}")
    a("v_add_u32 v11, s25, v3")
    a("s_lshl_b32 s25, s26, 3")
    a(f"s_add_u32 s25, s25, {EX}")
    a("v_add_u32 v12, s25, v3")
    a("s_lshl_b32 s25, s26, 10")
    a(f"s_add_u32 s25, s25, {EX + 4096}")
    a("v_add_u32 v124, s25, v3")
    a("s_lshr_b32 s25, s3, 1")
    a("s_lshl_b32 s25, s25, 3")
    a("v_add_u32 v125, s25, v124")
    a("s_add_u32 s25, s13, s26")
    a("s_lshl_b32 s25, s25, 9")
    a("s_lshl_b32 s27, s40, 7")
    a("s_add_u32 s25, s25, s27")
    a(f"s_add_u32 s25, s25, {ST1}")
    a("s_cmp_ge_u32 s3, 2")
    a(f"s_cselect_b32 s25, {OOB}, s25")
    a("v_mov_b32 v13, 0x40000000")
    a("v_cmp_eq_u32 vcc, 0, v5")
    a("v_cndmask_b32 v13, v13, v6, vcc")
    a("s_waitcnt vmcnt(0)")
    a("s_barrier")
    NB = 4

    def rd2(ks):
        b = PBB + 12 * (ks % NB)
        if ks >= 16:
            o0 = (ks - 16) * 128
            return [f"ds_read2_b64 {vr(b+4*e,4)}, {ad} offset0:{o0} offset1:{o0+64}" for e, ad in enumerate(("v7", "v8", "v14"))]
        return [f"ds_read_b128 {vr(b,4)}, v9 offset:{ks*1024}", f"ds_read_b128 {vr(b+4,4)}, v9 offset:{18432+ks*1024}",
                f"ds_read_b128 {vr(b+8,4)}, v10 offset:{ks*1024}"]
    for ks in range(NB - 1):
        for t in rd2(ks):
            a(t); lg.issue(("b", ks))
    lg.wait(("b", 0))
    for ks in range(18):
        rr = rd2(ks + NB - 1) if ks + NB - 1 < 18 else []
        b = PBB + 12 * (ks % NB)
        mm = []
        for mh in range(2):
            for n in range(2):
                acc = vr(PA + (2 * mh + n) * 4, 4)
                mm.append(f"v_mfma_f32_16x16x32_bf16 {acc}, {ar((mh*18+ks)*4,4)}, {vr(b+4*n,4)}, {acc}")
        acc = vr(PA + 16, 4)
        mm.append(f"v_mfma_f32_16x16x32_bf16 {acc}, {ar((36+ks)*4,4)}, {vr(b+8,4)}, {acc}")
        for i, t in enumerate(mm):
            a(t)
            if i < len(rr):
                a(rr[i]); lg.issue(("b", ks + NB - 1))
            if i == 3 and ks < NW2:
                WPRE.pop(0)()
            if i == 4 and ks < 17:
                lg.wait(("b", ks + 1))
    O2 = 100
    for n in range(2):
        for mh in range(2):
            ac = PA + (2 * mh + n) * 4
            a(f"v_cvt_pk_bf16_f32 v{O2+4*n+2*mh}, v{ac}, v{ac+1}")
            a(f"v_cvt_pk_bf16_f32 v{O2+4*n+2*mh+1}, v{ac+2}, v{ac+3}")
        hst(f"buffer_store_dwordx4 {vr(O2+4*n,4)}, {'v15' if n else 'v3'}, s[4:7], s19 offen", "y")
    a(f"v_cvt_pk_bf16_f32 v{O2+8}, v{PA+16}, v{PA+17}")
    a(f"v_cvt_pk_bf16_f32 v{O2+9}, v{PA+18}, v{PA+19}")
    a(f"ds_write_b64 v125, {vr(O2+8,2)}")
    SS = 112

    def sumsq(dst, regs):
        a(f"v_add_f32 v{dst}, v{regs[0]}, v{regs[1]}")
        a(f"v_mul_f32 v{dst+1}, v{regs[0]}, v{regs[0]}")
        a(f"v_fmac_f32 v{dst+1}, v{regs[1]}, v{regs[1]}")
        for r in regs[2:]:
            a(f"v_add_f32 v{dst}, v{dst}, v{r}")
            a(f"v_fmac_f32 v{dst+1}, v{r}, v{r}")
    for n in range(2):
        sumsq(SS + 2 * n, [PA + (2 * mh + n) * 4 + i for mh in range(2) for i in range(4)])
    sumsq(SS + 4, [PA + 16 + i for i in range(4)])
    for n in range(2):
        a(f"v_fmac_f32 v{SS+2*n}, s{23+n}, v{SS+4}")
        a(f"v_fmac_f32 v{SS+2*n+1}, s{23+n}, v{SS+5}")
    a(f"ds_write_b128 v11, {vr(SS,4)}")
    a("s_waitcnt lgkmcnt(0)")
    a("s_barrier")
    a(f"ds_read_b128 {vr(128,4)}, v124")
    for w in range(4):
        a(f"ds_read_b64 {vr(132+2*w,2)}, v12 offset:{w*1024}")
    a("s_waitcnt lgkmcnt(4)")
    hst(f"buffer_store_dwordx4 {vr(128,4)}, v3, s[4:7], s20 offen", "y")
    a("s_waitcnt lgkmcnt(0)")
    for i in range(2):
        a(f"v_add_f32 v{132+i}, v{132+i}, v{134+i}")
        a(f"v_add_f32 v{136+i}, v{136+i}, v{138+i}")
    for i in range(2):
        a(f"v_add_f32 v{132+i}, v{132+i}, v{136+i}")
    for sw in ("v_permlane16_swap_b32", "v_permlane32_swap_b32"):
        for i in range(2):
            a(f"v_mov_b32 v{134+i}, v{132+i}")
        for i in range(2):
            a(f"{sw} v{132+i}, v{134+i}")
        for i in range(2):
            a(f"v_add_f32 v{132+i}, v{132+i}, v{134+i}")
    a("buffer_store_dwordx2 v[132:133], v13, s[4:7], s25 offen sc1")
    ts()

    BUD = float(OPT.get("p3bud", 7))
    NAB = int(OPT.get("nab", 13)); RA = NAB - 2; NSL = 6 if NAB <= 9 else 5
    WE = int(OPT.get("we", 3))
    N0 = int(OPT.get("p3n0", 12))
    PACE0 = int(OPT.get("p3pace0", 1)); PACE1 = int(OPT.get("p3pace1", 3))
    DFLAG = int(OPT.get("p3dflag", 45)); DPOLL = int(OPT.get("p3dpoll", 35)); DCHK = int(OPT.get("p3dchk", 40))
    K1, K3, RI, PV = 8, 10, 12, 14
    T = 16; AB3 = 32; AC1 = 164 - 16 * NSL; HO = 164; OST = 236; BX = 244
    assert AB3 + 4 * NAB <= AC1
    HP = 144

    def p3_pre():
        a("v_add_u32 v4, 0x10000, v3")
        a("v_add_u32 v5, 0x20000, v3")
        a("v_mov_b32 v7, v6")
        a("v_add_u32 v6, 18432, v3")
        a("s_lshl_b32 s16, s8, 3")
        a("s_lshl_b32 s17, s3, 1")
        a("s_add_u32 s16, s16, s17")
        a("s_mul_i32 s17, s16, 18432")
        a(f"s_add_u32 s18, s17, {X1}")
        a("s_lshl_b32 s21, s16, 9")
        a(f"s_add_u32 s21, s21, {ST1}")
        a("s_lshl_b32 s22, s8, 4")
        a("s_add_u32 s22, s22, s9")
        a("s_lshl_b32 s22, s22, 2")
        a("s_add_u32 s22, s22, s3")
        a("s_xor_b32 s23, s22, 4")
        a("s_mul_i32 s24, s22, 18432")
        a(f"s_add_u32 s24, s24, {HX}")
        a("s_mul_i32 s25, s23, 18432")
        a(f"s_add_u32 s25, s25, {HX}")
        a("s_lshl_b32 s26, s22, 4")
        a(f"s_add_u32 s26, s26, {FL}")
        a("s_lshl_b32 s27, s23, 4")
        a(f"s_add_u32 s27, s27, {FL}")
        a("s_lshr_b32 s28, s9, 1")
        a(f"s_mul_i32 s28, s28, {XT}")
        a("s_add_u32 s28, s28, s17")
        a("s_and_b32 s29, s9, 1")
        a("s_mul_i32 s29, s29, 9216")
        a("s_add_u32 s28, s28, s29")
        a(f"s_add_u32 s28, s28, {PART}")
        if REUSE:
            for r in (24, 25, 28):
                a(f"s_sub_u32 s{r}, s{r}, s59")
        a("s_and_b32 s58, s8, 7")
        a("s_lshl_b32 s58, s58, 2")
        a("s_add_u32 s58, s58, s3")
        a("s_lshl_b32 s58, s58, 12")
        a(f"s_mul_i32 s32, s9, {SLB}")
        a("s_add_u32 s32, s32, s58")
        a(f"s_add_u32 s32, s32, {L['W12'] + 131072}")
        a("s_sub_u32 s32, s32, s59")
        if "W" in L2PF:
            l2pf("s32")
        a(f"s_mul_i32 s33, s9, {18*7168}")
        a("s_add_u32 s33, s33, s58")
        a(f"s_add_u32 s33, s33, {L['WQ']}")
        a("s_cmp_lg_u32 s59, 0")
        a(f"s_cselect_b32 s33, {OOB}, s33")
        a("s_add_u32 s31, s10, 64")
        a("s_cmp_lg_u32 s3, 0")
        a(f"s_cselect_b32 s31, {OOB}, s31")
        a("s_lshl_b32 s12, s8, 4")
        a("s_add_u32 s12, s12, s9")
        a("s_mul_i32 s12, s12, 9")
        a("s_add_u32 s12, s12, s3")
        a("s_lshl_b32 s12, s12, 10")
        a("s_lshl_b32 s50, s3, 11")
        a(f"s_mul_i32 s51, s9, {18*7168}")
        a("s_add_u32 s51, s51, s50")
        a(f"s_add_u32 s51, s51, {L['WQ']}")
        a("s_cmp_lg_u32 s59, 0")
        a(f"s_cselect_b32 s51, {OOB}, s51")
        a("s_cmp_eq_u32 s3, 3")
        a("s_cselect_b32 s56, 0, 1024")
        a("s_add_u32 s52, s51, s56")
        a("s_add_u32 s53, s50, s56")

    def p3_prefetch():
        while WPRE:
            WPRE.pop(0)()
    sync(32, p3_prefetch, pre=p3_pre)
    ts()
    a.raw(f"{name}_c0:")
    for n in range(2):
        a(f"buffer_load_dwordx2 {vr(T+2*n,2)}, v7, s[4:7], s21 offen offset:{n*512} sc1"); vm.issue("st")

    U = []
    for k in range(19):
        for t in range(G0):
            for mh in range(2):
                U.append(("p1", t, k, mh))
    for t in range(G0, 9):
        for k in range(19):
            for mh in range(2):
                U.append(("p1", t, k, mh))
    for hk in range(KO):
        for dt in range(9):
            for mh in range(2):
                U.append(("p2", dt, hk, mh))
    for dt in range(9):
        for hk in range(KO, 18):
            for mh in range(2):
                U.append(("p2", dt, hk, mh))
    NU = len(U)

    def mfma3(i, n):
        kind, t, k, mh = U[i]
        if "snake" in OPT and i % 2:
            n = 1 - n
        if kind == "p1":
            acc = vr(AC1 + 16 * (t % NSL) + (2 * mh + n) * 4, 4)
            b = ar((18 * n + k) * 4, 4) if k < 18 else vr(BX + 4 * n, 4)
        else:
            acc = ar(16 * t + (2 * mh + n) * 4, 4)
            b = vr(HO + (2 * k + n) * 4, 4) if k < 9 else ar(HP + (2 * (k - 9) + n) * 4, 4)
        a(f"v_mfma_f32_16x16x32_bf16 {acc}, {vr(AB3+4*(i%NAB),4)}, {b}, {'0' if k == 0 else acc}")

    def mk_y(k, n):
        def fn():
            if k % 4 == 0 and k and n == 0:
                a("s_add_u32 s18, s18, 4096")
            a(f"buffer_load_dwordx4 {ar((18*n+k)*4,4)}, {'v6' if n else 'v3'}, s[4:7], s18 offen offset:{(k%4)*1024} sc1"); vm.issue(("y", k))
        return fn
    LQ = []
    for c in range(NPRE, NCH):
        for i in range(PW):
            LQ.append((CF * c - RA - 0.5 + i * 0.01, c - (NS - 2) if c >= NS else -1, 1, mk_w(c, i), "w"))
    for k in range(18):
        for n in range(2):
            LQ.append((k * G0 * 2 - 0.1 + n * 0.01, -1, 1, mk_y(k, n), "y"))
    def mk_q(slot, i):
        ks = 3 * slot + i // 2; e = i % 2

        def fn():
            a(f"s_add_u32 m0, s{50 if e == 0 else 53}, {ks*8192}")
            a(f"s_add_u32 s56, s{51 if e == 0 else 52}, {ks*7168}")
            a("buffer_load_dwordx4 v3, s[4:7], s56 offen lds"); vm.issue("wq")
        return fn
    assert CF == 24
    qslots = []
    for c in range(NCH + 4 - int(OPT.get("nqt", 4)), NCH + 4):
        qslots.append(c % NS)
        for i in range(6):
            LQ.append((1000 + c + i * 0.01, c - (NS - 2), 1, mk_q(c % NS, i), "q"))
    LQ.sort(key=lambda x: x[0])
    ny_left = [36]

    def lq_issue():
        it = LQ.pop(0)
        it[3]()
        if it[4] == "y":
            ny_left[0] -= 1
        return it[2]

    for _ in range(N0):
        lq_issue()

    def dsread(f):
        off = (f % 144) * 1024
        base = "v3" if off < 65536 else ("v4" if off < 131072 else "v5")
        a(f"ds_read_b128 {vr(AB3+4*(f%NAB),4)}, {base} offset:{off % 65536}"); lg.issue(("a", f))
    for f in range(RA):
        dsread(f)

    kk = math.sqrt(2.0 / math.pi)
    C1 = -2.0 * kk * LOG2E
    C3 = C1 * 0.044715
    EV = {}
    cur = [0]

    def ev(g, cost, fn):
        EV.setdefault(g, []).append((cost, fn))

    def mk(text):
        return lambda: a(text)

    class Rec:
        def __init__(self): self.l = []
        def __call__(self, t): self.l.append(t)
    rec = Rec()
    rec("v_mov_b32 v7, 0")
    for b in range(3):
        rec(f"v_mov_b32 v{OST+b}, {b+1}")
    for sw in ("v_permlane16_swap_b32", "v_permlane32_swap_b32"):
        for r in range(4):
            rec(f"v_mov_b32 v{T+4+r}, v{T+r}")
        for r in range(4):
            rec(f"{sw} v{T+r}, v{T+4+r}")
        for r in range(4):
            rec(f"v_add_f32 v{T+r}, v{T+r}, v{T+4+r}")
    for n in range(2):
        m = T + 2 * n; r = T + 8 + n; t = T + 4 + n; bx = BX + 4 * n
        stats_finish(rec, m, m + 1, r, T + 10 + n, t, True)
        rec(f"v_rcp_f32 v{RI+n}, v{r}")
        rec(f"v_mul_f32 v{K1+n}, {f32(C1)}, v{r}")
        rec(f"v_mul_f32 v{K3+n}, v{r}, v{r}")
        rec(f"v_mul_f32 v{K3+n}, v{K3+n}, v{r}")
        rec(f"v_mul_f32 v{K3+n}, {f32(C3)}, v{K3+n}")
        rec(f"v_cvt_pk_bf16_f32 v{t}, v{RI+n}, v{RI+n}")
        rec(f"v_and_b32 v{t}, 0xffff0000, v{t}")
        rec(f"v_sub_f32 v{t}, v{RI+n}, v{t}")
        rec(f"v_cvt_pk_bf16_f32 v{bx}, v{RI+n}, v{t}")
        rec(f"v_sub_f32 v{m}, 0, v{m}")
        rec(f"v_cvt_pk_bf16_f32 v{bx+1}, v{m}, v{m}")
        rec(f"v_and_b32 v{t}, 0xffff0000, v{bx+1}")
        rec(f"v_sub_f32 v{t}, v{m}, v{t}")
        rec(f"v_cvt_pk_bf16_f32 v{bx+2}, v{t}, v7")
        rec(f"v_mov_b32 v{bx+3}, 0")
    VQ = [(0, 1, mk(t), None) for t in rec.l]
    VQ[-1] = (0, 1, VQ[-1][2], ("bx",))

    hl_done = set()
    MQ = []
    EARLY = "early" in OPT
    po3 = [None]; sigA = [False]; polledA = [False]

    def defer(fn):
        return lambda: MQ.append(fn)

    def mk_hstore(q):
        def fn():
            if q % 4 == 0 and q:
                a("s_add_u32 s24, s24, 4096")
            hst(f"buffer_store_dwordx4 {vr(HO+4*q,4)}, v3, s[4:7], s24 offen offset:{(q%4)*1024}", "h", ("hs", q))
            if q % 6 == 5:
                b = q // 6
                g = cur[0] + DFLAG
                ev(g, 2, lambda: flag_store(b))
                ev(g + DPOLL, 2, lambda: poll_issue(b))
                ev(g + DPOLL + DCHK, 4, lambda: poll_check(b))
        return fn

    def flag_store(b):
        vm.wait(("hs", 6 * b + 5))
        a("s_mov_b64 exec, 1")
        a(f"buffer_store_dword v{OST+b}, v7, s[4:7], s26 offen sc1"); vm.issue("fs")
        a("s_mov_b64 exec, -1")

    def poll_issue(b):
        a("s_mov_b64 exec, 1")
        a(f"buffer_load_dword v2, v7, s[4:7], s27 offen sc1"); vm.issue(("pl", b))
        a("s_mov_b64 exec, -1")

    def poll_check(b):
        vm.wait(("pl", b))
        a("v_readfirstlane_b32 s30, v2")
        a(f"s_cmp_gt_u32 s30, {b}")
        a.nf(f"s_cbranch_scc0 {name}_w{b}")
        a.label(f"{name}_r{b}", safe=False)
        slowcode.append(b)
        for i in range(6):
            ev(cur[0] + 1 + 2 * i, 1, mk_hload(6 * b + i))

    def mk_hload(q):
        def fn():
            if q % 4 == 0 and q:
                a("s_add_u32 s25, s25, 4096")
            a(f"buffer_load_dwordx4 {ar(HP+4*q,4)}, v3, s[4:7], s25 offen offset:{(q%4)*1024} sc1"); vm.issue(("hl", q))
            hl_done.add(q)
        return fn

    SK = 2.5
    gel = []

    def add_gelu(t, ready):
        ac = AC1 + 16 * (t % NSL)
        for v in range(16):
            n = v // 8; mh = (v // 4) % 2; i = v % 4
            x = ac + (2 * mh + n) * 4 + i; tm = T + v
            ops = [(1, f"v_mul_f32 v{tm}, v{x}, v{x}"), (1, f"v_fma_f32 v{tm}, v{tm}, v{K3+n}, v{K1+n}"), (1, f"v_mul_f32 v{tm}, v{tm}, v{x}"),
                   (2, f"v_exp_f32 v{tm}, v{tm}"), (1, f"v_fma_f32 v{tm}, v{tm}, v{RI+n}, v{RI+n}"), (2, f"v_rcp_f32 v{tm}, v{tm}"),
                   (1, f"v_mul_f32 v{x}, v{x}, v{tm}")]
            for st, (c, tx) in enumerate(ops):
                gel.append((16 * t + v + st * SK, ready, c, mk(tx), None))
            if v % 2 == 1:
                gel.append((16 * t + v + 6 * SK + 1.2, ready, 1, mk(f"v_cvt_pk_bf16_f32 v{HO+8*t+v//2}, v{x-1}, v{x}"), None))
            if v % 8 == 7:
                q = 2 * t + n
                gel.append((16 * t + v + 6 * SK + 1.3, ready, 0, defer(mk_hstore(q)), ("h", q)))
    last_idx = {}
    for i, u in enumerate(U):
        last_idx[u[:2]] = i
    for t in range(9):
        add_gelu(t, last_idx[("p1", t)] + 2)
    gel.sort(key=lambda x: x[0])
    VQ += [(g[1], g[2], g[3], g[4]) for g in gel]
    for dt in range(9):
        rdy = last_idx[("p2", dt)] + 2
        for n in range(2):
            o = AC1 + ((2 * dt + n) % 8) * 4
            for mh in range(2):
                for i in range(4):
                    VQ.append((rdy, 1, mk(f"v_accvgpr_read_b32 v{T+8*n+4*mh+i}, a{16*dt+(2*mh+n)*4+i}"), None))
            for e in range(4):
                VQ.append((rdy, 1, mk(f"v_cvt_pk_bf16_f32 v{o+e}, v{T+8*n+2*e}, v{T+8*n+2*e+1}"), None))

            def st(n=n, o=o, dt=dt):
                if dt % 4 == 0 and dt and n == 0:
                    a("s_add_u32 s28, s28, 4096")
                hst(f"buffer_store_dwordx4 {vr(o,4)}, {'v6' if n else 'v3'}, s[4:7], s28 offen offset:{(dt%4)*1024}", "p", ("po", dt))
                if dt == 3 and n == 1:
                    po3[0] = cur[0]
            VQ.append((rdy, 0, defer(st), None))
    done_tags = set()

    def vq_pop():
        it = VQ.pop(0)
        assert it[0] - 2 < cur[0] + (1 if cur[0] == NU - 1 else 0), (it[0], cur[0])
        it[2]()
        if it[3]:
            done_tags.add(it[3])
        return it[1]

    bar_done = [0]

    def chunk_barrier(c):
        while LQ and LQ[0][0] <= CF * c - RA:
            lq_issue()
        bar_done[0] = c
        if c < NPRE and c < 2:
            return
        vm.wait(("w", c))
        doA = EARLY and not sigA[0] and po3[0] is not None and (cur[0] >= po3[0] + int(OPT.get("dack", 20)) or c == NCH - 1)
        if doA:
            vm.wait(("po", 3))
        a("s_barrier")
        if doA:
            sigA[0] = True
            print("signal A at unit", cur[0], "po3", po3[0], file=sys.stderr)
            a("s_mov_b64 exec, 1")
            a(f"buffer_atomic_add v{OST}, v7, s[4:7], s31 offen"); vm.issue("at")
            a("s_mov_b64 exec, -1")

            def pollA():
                a("s_mov_b64 exec, 1")
                a("buffer_load_dword v2, v7, s[4:7], s10 offen offset:64 sc1"); vm.issue("pa")
                a("s_mov_b64 exec, -1")
                polledA[0] = True
            ev(min(NU - 1, max(cur[0] + int(OPT.get("dp2", 14)), NU - int(OPT.get("dp3", 14)))), 2, pollA)

    TSA = int(OPT.get('tsa', 38 * G0)); TSB = int(OPT.get('tsb', 342))
    last_lq = -10
    forced = 0
    GAP = float(OPT.get("gap", 11))
    credit = [0.0]

    def prereq(i):
        nonlocal forced
        kind, t, k, mh = U[i]
        if kind == "p1" and t == 0 and mh == 0 and k < 18:
            while LQ and LQ[0][0] <= i:
                lq_issue()
            vm.wait(("y", k))
        if kind == "p2" and k >= 9:
            q = 2 * (k - 9) + 1
            while q not in hl_done:
                while MQ:
                    MQ.pop(0)()
                g = min(EV)
                for c, fn in EV.pop(g):
                    fn()
                forced += 1000
            vm.wait(("hl", q))
        if i % WE == 0:
            lg.wait(("a", min(i + WE - 1, NU - 1)))

    def force_valu(i):
        nonlocal forced
        kind, t, k, mh = U[i]
        need = []
        if kind == "p1" and k == 18:
            need.append(("bx",))
        if kind == "p2" and k < 9:
            need.append(("h", 2 * k + 1))
        if kind == "p1" and k == 0 and t >= NSL:
            need.append(("h", 2 * (t - NSL) + 1))
        for tg in need:
            while tg not in done_tags:
                vq_pop(); forced += 1

    def fill(i, used):
        credit[0] = min(credit[0] + GAP - used, 8.0 + GAP - used)
        lo = 8 - used
        while VQ and VQ[0][0] <= i:
            c = VQ[0][1] * 4
            if c <= credit[0] or c <= lo or c == 0:
                vq_pop(); credit[0] -= c; lo -= c
            else:
                break
        if not (VQ and VQ[0][0] <= i):
            credit[0] = 0.0

    def pf_w():
        a("s_add_u32 s32, s32, 131072")
        l2pf("s32")
    if "W" in L2PF:
        for r in range(2, 6):
            ev(128 * r - int(OPT.get("pflead", 200)), 1, pf_w)
    if "q" in L2PF:
        ev(500, 1, lambda: l2pf("s33"))
    ev(int(OPT.get("cp1", 220)), 0, lambda: cpf(f"{name}_c0+16384"))
    ev(int(OPT.get("cp2", 560)), 0, lambda: cpf("code_end-16384"))
    prereq(0)
    for i in range(NU):
        cur[0] = i
        force_valu(i)
        if ts.on and i in (TSA, TSB):
            ts(); lg.q = []
        mfma3(i, 0)
        used = 0
        evs = EV.pop(i, [])
        pace = PACE0 if ny_left[0] else PACE1
        if evs:
            for c, fn in evs:
                fn(); used += 4 * c
        elif MQ:
            MQ.pop(0)(); used += 4
        elif LQ and LQ[0][1] <= bar_done[0] and i - last_lq >= pace:
            lq_issue(); last_lq = i; used += 4
        fill(i, used)
        mfma3(i, 1)
        used = 0
        if i + 1 < NU:
            prereq(i + 1)
        if i + RA < NU:
            if (i + RA) % CF == 0:
                chunk_barrier((i + RA) // CF)
            dsread(i + RA); used += 4
        fill(i, used)
    assert not EV, EV.keys()
    while VQ or MQ:
        if MQ:
            MQ.pop(0)()
        else:
            vq_pop()
    qleft = [it[3] for it in LQ] + [mk_q(sl, i) for sl in range(NS) if sl not in qslots for i in range(6)]
    print("wq loads left:", len(qleft), file=sys.stderr)
    print("p3 forced:", forced, file=sys.stderr)
    ts()

    P4P = 64; P4A = 16; P4X = 160; P4B = 172

    def p4_pre():
        a("s_load_dwordx4 s[36:39], s[0:1], 56")
        a("v_and_b32 v4, 15, v1")
        a("v_lshrrev_b32 v5, 4, v1")
        a("s_lshl_b32 s12, s8, 4")
        a("s_add_u32 s12, s12, s9")
        a("s_mul_i32 s12, s12, 9")
        a("s_add_u32 s12, s12, s3")
        a("s_lshl_b32 s12, s12, 10")
        a("s_add_u32 s13, s12, 4096")
        a("s_add_u32 s14, s12, 8192")
        a("s_cmp_lg_u32 s3, 0")
        a(f"s_cselect_b32 s14, {OOB}, s14")
        a("s_and_b32 s15, s9, 1")
        a("s_mul_i32 s16, s15, 9")
        a("s_add_u32 s16, s16, s3")
        a("s_lshl_b32 s16, s16, 6")
        a("s_add_u32 s17, s16, 512")
        a("s_cmp_lg_u32 s3, 0")
        a(f"s_cselect_b32 s17, {OOB}, s17")
        a("v_lshlrev_b32 v6, 3, v5")
        a("s_waitcnt lgkmcnt(0)")
        srd(a, 40, 36, D * 2)
        for i in range(3):
            a(f"s_add_u32 s{20+i}, s{12+i}, {PART}")
            if REUSE:
                a(f"s_sub_u32 s{20+i}, s{20+i}, s59")

    def p4_prefetch():
        for i in range(3):
            a(f"s_add_u32 s18, s{12+i}, {X1}")
            a(f"buffer_load_dwordx4 {vr(P4X+4*i,4)}, v3, s[4:7], s18 offen sc1")
        for i in range(3):
            so, off = ("s16", 256 * i) if i < 2 else ("s17", 0)
            a(f"buffer_load_dwordx2 {vr(P4B+4*i,2)}, v6, s[40:43], {so} offen offset:{off}")
            a(f"buffer_load_dwordx2 {vr(P4B+4*i+2,2)}, v6, s[40:43], {so} offen offset:{off+32}")
        for _ in range(int(OPT.get("nq48", 0))):
            qleft.pop(0)()
    P4E = 196

    def slot0_loads():
        a(f"s_add_u32 s20, s12, {PART}")
        if REUSE:
            a("s_sub_u32 s20, s20, s59")
        for s in range(8):
            a(f"buffer_load_dwordx4 {vr(P4E+4*s,4)}, v3, s[4:7], s20 offen sc1")
            if s < 7:
                a(f"s_add_u32 s20, s20, {XT}")
    if EARLY:
        assert polledA[0]
        vm.wait("pa")
        a("v_readfirstlane_b32 s30, v2")
        a("s_cmp_ge_u32 s30, 16")
        a(f"s_cbranch_scc0 {name}_e0")
        slot0_loads()
        a("s_waitcnt vmcnt(8)")
        a(f"s_branch {name}_e1")
        a.label(f"{name}_e0")
        a("s_waitcnt vmcnt(0)")
        a.label(f"{name}_e1")
    else:
        a("s_mov_b32 s30, 0")
    sync(48, p4_prefetch, waited=EARLY, pre=p4_pre)
    ts()
    a("s_cmp_ge_u32 s30, 16")
    a(f"s_cbranch_scc1 {name}_e2")
    slot0_loads()
    a.label(f"{name}_e2")
    for s in range(8):
        for i in range(1, 3):
            a(f"buffer_load_dwordx4 {vr(P4P+8*s+4*(i-1),4)}, v3, s[4:7], s{20+i} offen sc1"); vm.issue(("p", s))
            if s < 7:
                a(f"s_add_u32 s{20+i}, s{20+i}, {XT}")
    a("v_mov_b32 v6, 0x00003f80")
    a("v_mov_b32 v7, 0x3f800000")
    for i in range(3):
        for j in range(4):
            a(f"v_lshlrev_b32 v{P4A+8*i+2*j}, 16, v{P4B+4*i+j}")
            a(f"v_and_b32 v{P4A+8*i+2*j+1}, 0xffff0000, v{P4B+4*i+j}")

    def acc1(i, src):
        for j in range(4):
            a(f"v_dot2c_f32_bf16 v{P4A+8*i+2*j}, v{src+j}, v6")
            a(f"v_dot2c_f32_bf16 v{P4A+8*i+2*j+1}, v{src+j}, v7")
    for i in range(3):
        acc1(i, P4X + 4 * i)
    a("s_waitcnt vmcnt(16)")
    for s in range(8):
        acc1(0, P4E + 4 * s)
    for s in range(8):
        vm.wait(("p", s))
        for i in range(1, 3):
            acc1(i, P4P + 8 * s + 4 * (i - 1))
    O4 = 40
    for i in range(3):
        for j in range(4):
            a(f"v_cvt_pk_bf16_f32 v{O4+4*i+j}, v{P4A+8*i+2*j}, v{P4A+8*i+2*j+1}")
    a("s_cmp_lg_u32 s59, 0" if "tsl0" not in OPT else "s_cmp_eq_u32 s59, 0")
    a(f"s_cbranch_scc1 {name}_fin")
    for i in range(3):
        a(f"s_add_u32 s18, s{12+i}, {XIN + LSTR}")
        hst(f"buffer_store_dwordx4 {vr(O4+4*i,4)}, v3, s[4:7], s18 offen", "x")
    sumsq(56, [P4A + j for j in range(12)])
    sumsq(58, [P4A + 12 + j for j in range(12)])
    a("v_add_f32 v56, v56, v58")
    a("v_add_f32 v57, v57, v59")
    a("v_lshlrev_b32 v58, 3, v0")
    a(f"v_add_u32 v58, {EX}, v58")
    a("ds_write_b64 v58, v[56:57]")
    a("v_lshlrev_b32 v58, 3, v1")
    a(f"v_add_u32 v58, {EX}, v58")
    a("v_lshlrev_b32 v59, 3, v4")
    a("v_lshl_add_u32 v59, v5, 6, v59")
    a("v_and_b32 v60, 1, v5")
    a("v_lshl_add_u32 v59, v60, 30, v59")
    a("s_lshl_b32 s20, s8, 3")
    a("s_lshr_b32 s21, s9, 1")
    a("s_add_u32 s20, s20, s21")
    a("s_lshl_b32 s20, s20, 9")
    a("s_lshl_b32 s21, s15, 8")
    a("s_add_u32 s20, s20, s21")
    a(f"s_add_u32 s20, s20, {STI + LSTR}")
    a("s_cmp_lg_u32 s3, 0")
    a(f"s_cselect_b32 s20, {OOB}, s20")
    a("s_waitcnt lgkmcnt(0)")
    a("s_barrier")
    for w in range(4):
        a(f"ds_read_b64 {vr(64+2*w,2)}, v58 offset:{w*512}")
    a("s_waitcnt lgkmcnt(0)")
    for i in range(2):
        a(f"v_add_f32 v{64+i}, v{64+i}, v{66+i}")
        a(f"v_add_f32 v{68+i}, v{68+i}, v{70+i}")
    for i in range(2):
        a(f"v_add_f32 v{64+i}, v{64+i}, v{68+i}")
    a("v_mov_b32 v66, v64")
    a("v_mov_b32 v67, v65")
    a("v_permlane16_swap_b32 v64, v66")
    a("v_permlane16_swap_b32 v65, v67")
    a("v_add_f32 v64, v64, v66")
    a("v_add_f32 v65, v65, v67")
    a("buffer_store_dwordx2 v[64:65], v59, s[4:7], s20 offen sc1")
    ts()

    def p1b_prefetch():
        for fn in qleft:
            fn()

    def p1b_pre():
        a(f"s_mov_b32 s59, {LSTR}")
        p1_setup()
        p1_consts()
        a("s_lshl_b32 s24, s3, 13")
        a("s_add_u32 s24, s24, 7168")
        a("s_lshl_b32 s21, s3, 10")
        a("s_add_u32 s22, s22, s21")
        a("s_mov_b32 s44, 0xfffefffe")
        a("s_mov_b32 s45, 0xfffefffe")
    if "noq" in OPT:
        sync(64, None, prev=True)
        a(f"s_mov_b32 s59, {LSTR}")
        a(f"s_add_u32 s4, s4, {LSTR}")
        a("s_addc_u32 s5, s5, 0")
        a(f"s_branch {name}_p1a")
        nsync[0] = 3; name_ = name
    sync(64, p1b_prefetch, prev=True, pre=p1b_pre) if "noq" not in OPT else None
    ts()
    a(f"s_add_u32 s4, s4, {LSTR}")
    a("s_addc_u32 s5, s5, 0")
    p1_stats_load()
    for grp in xloads(0):
        do_load(grp, 0)
    a("s_mov_b64 exec, s[44:45]")
    for j in range(5):
        if j == 4:
            a("s_cmp_ge_u32 s3, 2")
            a(f"s_cselect_b32 s22, {OOB}, s22")
        a("s_mov_b32 m0, s24")
        a("buffer_load_dwordx4 v3, s[4:7], s22 offen sc1 lds"); vm.issue("halo")
        a("s_add_u32 s22, s22, 4096")
        a("s_add_u32 s24, s24, 32768")
    a("s_mov_b64 exec, -1")
    PFB = int(OPT.get("p1pfb", 6))
    for ks in range(1, 3):
        for grp in xloads(ks):
            do_load(grp, ks)
    if not SFILL:
        vm.wait("st")
        for t in p1_stats_math():
            a(t)
    for ks in range(3, PFB):
        for grp in xloads(ks):
            do_load(grp, ks)
    vm.wait("halo")
    a("s_waitcnt lgkmcnt(0)")
    a("s_barrier")
    if ts.on:
        ts.n = 2
        ts()
    p1_loop(xloads, PFB, 0, int(OPT.get('wps', 0)), False)
    a(f"s_branch {name}_epi")

    a.label(f"{name}_fin")
    srd(a, 40, 38, XT)
    FS = OPT.get("fs", "sc1")
    a("s_lshl_b32 s20, s8, 3")
    a("s_lshr_b32 s21, s9, 1")
    a("s_add_u32 s20, s20, s21")
    a("s_mul_i32 s20, s20, 18432")
    if OPT.get("fin", "lds") == "old":
        a("v_mul_u32_u24 v6, 1152, v4")
        a("v_lshl_add_u32 v6, v5, 3, v6")
        a("s_add_u32 s21, s20, s17")
        a("s_add_u32 s20, s20, s16")
        for i in range(3):
            so, off = ("s20", 256 * i) if i < 2 else ("s21", 0)
            a(f"buffer_store_dwordx2 {vr(O4+4*i,2)}, v6, s[40:43], {so} offen offset:{off} {FS}")
            a(f"buffer_store_dwordx2 {vr(O4+4*i+2,2)}, v6, s[40:43], {so} offen offset:{off+32} {FS}")
    else:
        a("v_mul_u32_u24 v6, 592, v4")
        a("v_lshl_add_u32 v6, v5, 3, v6")
        a("s_lshl_b32 s21, s3, 6")
        a("v_add_u32 v6, s21, v6")
        a("s_mov_b32 s21, 16384")
        a("s_cmp_eq_u32 s3, 0")
        a("s_cselect_b32 s21, 512, s21")
        a("v_add_u32 v7, s21, v6")
        for i in range(3):
            ad, off = ("v6", 256 * i) if i < 2 else ("v7", 0)
            a(f"ds_write_b64 {ad}, {vr(O4+4*i,2)} offset:{off}")
            a(f"ds_write_b64 {ad}, {vr(O4+4*i+2,2)} offset:{off+32}")
        for i in range(3):
            a(f"v_add_u32 v{60+i}, {256*i}, v0")
            a(f"v_mul_u32_u24 v{64+i}, 1821, v{60+i}")
            a(f"v_lshrrev_b32 v{64+i}, 16, v{64+i}")
            a(f"v_mul_u32_u24 v{68+i}, 36, v{64+i}")
            a(f"v_sub_u32 v{68+i}, v{60+i}, v{68+i}")
            a(f"v_lshlrev_b32 v{68+i}, 4, v{68+i}")
            a(f"v_mul_u32_u24 v{72+i}, 592, v{64+i}")
            a(f"v_add_u32 v{72+i}, v{72+i}, v{68+i}")
            a(f"v_mul_u32_u24 v{76+i}, 1152, v{64+i}")
            a(f"v_add_u32 v{76+i}, v{76+i}, v{68+i}")
        a("s_mul_i32 s21, s15, 576")
        a("s_add_u32 s20, s20, s21")
        a("s_cmp_eq_u32 s3, 0")
        a(f"s_cselect_b32 s21, s20, {OOB}")
        a("s_waitcnt lgkmcnt(0)")
        a("s_barrier")
        for i in range(3):
            a(f"ds_read_b128 {vr(80+4*i,4)}, v{72+i}")
        for i in range(3):
            a(f"s_waitcnt lgkmcnt({2-i})")
            a(f"buffer_store_dwordx4 {vr(80+4*i,4)}, v{76+i}, s[40:43], {'s20' if i < 2 else 's21'} offen {FS}")
    if ts.on:
        ts.n = 14
        a("s_waitcnt vmcnt(0)")
        ts(); ts(True)
        if "tsk" in OPT:
            ts.n = 19; ts()
        if "spin" in OPT:
            a("s_add_u32 s64, s62, s57")
        ts.store()
    a("s_endpgm")
    for b in slowcode:
        a.label(f"{name}_w{b}")
        a(f"s_add_u32 s57, s57, {1 if 'spin' not in OPT else 100 * 10 ** b}")
        a("s_cmp_gt_u32 s57, 0x40000")
        a(f"s_cbranch_scc1 {name}_r{b}")
        a("s_sleep 2")
        a(f"buffer_load_dword v2, v7, s[4:7], s27 offen sc1")
        a("s_waitcnt vmcnt(0)")
        a("v_readfirstlane_b32 s30, v2")
        a(f"s_cmp_gt_u32 s30, {b}")
        a(f"s_cbranch_scc0 {name}_w{b}")
        a(f"s_branch {name}_r{b}")
    a.label(f"{name}_end")
    a("s_endpgm")
    return name, a.text(), dict(vgpr=512, sgpr=102, accum=256), dict(grid=256, block=256, lds=163840)


def main():
    ks = [gen_p0(CODE0="main_kernel", CPN=8, zero=True, w12="late" not in OPT), gen_main()]
    ref = open(f"cdna_kernels/{NAME}.s.ref").read().split("\n")
    hdr = [ln for ln in ref if ln.startswith(";") and "@launch" not in ln and "Override launch" not in ln and "grid=ceil" not in ln]
    out = hdr[:]
    if "nop" in OPT:
        na = Asm()
        na.raw(".globl nop_kernel\n.p2align 8\n.type nop_kernel,@function\nnop_kernel:")
        na("s_endpgm")
        nk = ("nop_kernel", na.text(), dict(vgpr=8, sgpr=16, accum=8), dict(grid=8, block=64, lds=0))
        pos = OPT["nop"]
        seq = {"a": [nk] + ks, "b": [ks[0], nk, ks[1]], "c": ks + [nk], "d": [nk, nk, nk] + ks}[pos]
        for name, _, _, g in seq:
            out.append(f"; @launch kernel={name} grid=({g['grid']},1,1) block=({g['block']},1,1) lds={g['lds']}")
        ks = [nk] + ks
    for name, _, _, g in (ks if "nop" not in OPT else []):
        out.append(f"; @launch kernel={name} grid=({g['grid']},1,1) block=({g['block']},1,1) lds={g['lds']}")
    out.append('.amdgcn_target "amdgcn-amd-amdhsa--gfx950"')
    out.append(".text")
    for _, txt, _, _ in ks:
        out.append(txt)
    out.append("code_end:")
    out.append("    s_endpgm")
    out.append('.section .rodata,"a"')
    for name, _, kd, _ in ks:
        out.append(KD.format(name=name, **kd))
    path = sys.argv[1] if len(sys.argv) > 1 else f"cdna_kernels/{NAME}.s"
    open(path, "w").write("\n".join(out))
    json.dump(L, open("layout.json", "w"))
    print("written", path)


if __name__ == "__main__":
    main()
```

```python
import sys, struct, json, math
from asmb import Asm, KD, vr, ar, sr

NAME = "interleave_layers__sliding_local_dilated__mixer_channel_mlp__prompt"
S, D, F = 2048, 576, 4608
XT = S * D * 2
TILE = 18432
OOB = 0x10000000
WS_BYTES = 0x0c000000


import os
OPT = dict(kv.split("=") if "=" in kv else (kv, "1") for kv in os.environ.get("GOPT", "").split(",") if kv)


math_sqrt = math.sqrt; PI = math.pi; LOG2E = math.log2(math.e)


def f32(x):
    return "0x%08x" % struct.unpack("<I", struct.pack("<f", x))[0]


G0 = int(OPT.get("g0", 2))
KT = int(OPT.get("kt", 6))
KO = 18 - KT
KT2 = int(OPT.get("kt2", 12)); KO2 = 36 - KT2
BATCH = [int(c) for c in OPT.get("batch", "333")]
BSTART = [sum(BATCH[:i]) for i in range(len(BATCH))]
BOF = [max(b for b in range(len(BATCH)) if BSTART[b] <= t) for t in range(9)]
assert sum(BATCH) == 9
NCHUNK = 30
SLB = NCHUNK * 24576


class WS:
    pass


def layout():
    off = 0
    L = {}

    def alloc(name, n):
        nonlocal off
        L[name] = off
        off += (n + 4095) // 4096 * 4096
    for l in (0, 1):
        alloc(f"FL{l}", 32768)
        alloc("X0" if l == 0 else "X2", XT); alloc("ST0" if l == 0 else "ST2", S * 32)
        alloc(f"O{l}", XT)
        alloc(f"X1_{l}", XT); alloc(f"ST1_{l}", S * 32)
        alloc(f"PART{l}", 8 * XT)
        alloc(f"HX{l}", 1024 * 18432)
    L["LSTR"] = L["FL1"]
    alloc("WQ", 16 * 18 * 7 * 1024)
    alloc("WO", 36 * 18 * 1024)
    alloc("W12", 16 * NCHUNK * 24576)
    alloc("TS", 512 * 16 * 128)
    L["END"] = off
    return L


L = layout()


class Cnt:
    def __init__(self, a, name, maxv):
        self.a = a; self.name = name; self.maxv = maxv; self.q = []

    def issue(self, tag):
        self.q.append(tag)

    def wait(self, tag):
        if tag not in self.q:
            return
        i = len(self.q) - 1 - self.q[::-1].index(tag)
        n = len(self.q) - 1 - i
        n = min(n, self.maxv)
        self.a(f"s_waitcnt {self.name}({n})")
        self.q = self.q[len(self.q) - n:] if n else []

    def wait_all(self):
        self.a(f"s_waitcnt {self.name}(0)")
        self.q = []


def header(a, name, nwg):
    if "l0_" in name:
        n1 = name.replace("l0_", "l1_")
        a.raw(f".globl {n1}\n.p2align 8\n.type {n1},@function\n{n1}:")
        a(f"s_mov_b32 s59, {L['LSTR']}")
        a(f"s_branch {name}_body")
    a.raw(f".globl {name}\n.p2align 8\n.type {name},@function\n{name}:")
    a("s_mov_b32 s59, 0")
    a.raw(f"{name}_body:")
    a(f"s_cmp_ge_u32 s2, {nwg}")
    a(f"s_cbranch_scc1 {name}_end")


def footer(a, name):
    a.label(f"{name}_end")
    a("s_endpgm")


def srd(a, d, base, nbytes):
    a(f"s_mov_b32 s{d}, s{base}")
    a(f"s_and_b32 s{d+1}, s{base+1}, 0xffff")
    a(f"s_mov_b32 s{d+2}, {nbytes}")
    a(f"s_mov_b32 s{d+3}, 0x00020000")


class Stamps:
    def __init__(self, a, name):
        self.a = a; self.n = 0; self.on = OPT.get("ts") == name[:-7]

    def __call__(self, real=False):
        if not self.on:
            return
        self.a(f"{'s_memrealtime' if real or 'tsreal' in OPT else 's_memtime'} s[{60+2*self.n}:{61+2*self.n}]")
        self.a("s_waitcnt lgkmcnt(0)")
        self.n += 1

    def store(self):
        if not self.on:
            return
        a = self.a
        a("s_lshl_b32 s58, s2, 4")
        a("s_add_u32 s58, s58, s3")
        a("s_lshl_b32 s58, s58, 7")
        a(f"s_add_u32 s58, s58, {L['TS']}")
        a("s_sub_u32 s58, s58, s59")
        a("v_mov_b32 v2, 0")
        for i in range(self.n):
            a(f"v_mov_b32 v0, s{60+2*i}")
            a(f"buffer_store_dword v0, v2, s[4:7], s58 offen offset:{4*i}")


def xg_reduce(a, op, v, t):
    a(f"v_mov_b32 v{t}, v{v}")
    a(f"v_permlane16_swap_b32 v{v}, v{t}")
    a(f"{op} v{v}, v{v}, v{t}")
    a(f"v_mov_b32 v{t}, v{v}")
    a(f"v_permlane32_swap_b32 v{v}, v{t}")
    a(f"{op} v{v}, v{v}, v{t}")


def w12_roles(a, name, U, fin, mid, NT, AD=60):
    def dma18():
        a("s_lshl_b32 s44, s3, 10")
        a("s_mov_b32 m0, s44")
        for ks in range(18):
            a("buffer_load_dwordx4 v8, s[12:15], s32 offen " + NT + " lds")
            a("s_add_u32 s32, s32, s33")
            a("s_add_u32 m0, m0, 4096")

    def tile_decode():
        a("s_lshl_b32 s43, s42, 1")
        a("s_lshr_b32 s44, s3, 1")
        a("s_add_u32 s43, s43, s44")
        a("s_cmp_ge_u32 s43, 9")
        a("s_cselect_b32 s46, 1, 0")
        a("s_mul_i32 s47, s46, 9")
        a("s_sub_u32 s47, s43, s47")
        a("s_lshl_b32 s34, s41, 1")
        a("s_add_u32 s34, s34, s46")
        a(f"s_mul_i32 s34, s34, {SLB}")
        a(f"s_add_u32 s34, s34, {L['W12']}")
        a("s_and_b32 s44, s3, 1")
        a("s_lshl_b32 s44, s44, 10")
        a("s_add_u32 s34, s34, s44")

    a(f"s_and_b32 s41, {U}, 7")
    a(f"s_lshr_b32 s42, {U}, 3")
    a("s_cmp_ge_u32 s42, 9")
    a(f"s_cbranch_scc1 {name}_rw2")
    srd(a, 12, 24, D * F * 2)
    a(f"s_mul_i32 s41, {U}, 2731")
    a("s_lshr_b32 s41, s41, 16")
    a("s_mul_i32 s42, s41, 24")
    a(f"s_sub_u32 s42, {U}, s42")
    a("s_mul_i32 s56, s42, 43691")
    a("s_lshr_b32 s56, s56, 17")
    a("v_mul_u32_u24 v8, 9216, v6")
    a("v_lshl_add_u32 v8, v7, 4, v8")
    a("s_mul_i32 s32, s42, 384")
    a("s_add_u32 s45, s32, s38")
    a(f"s_mul_i32 s44, s41, {192*9216}")
    a("s_add_u32 s32, s32, s44")
    a(f"s_mul_i32 s44, s3, {8*9216}")
    a("s_add_u32 s32, s32, s44")
    srd(a, 48, 26, F * 2)
    a("v_lshlrev_b32 v12, 1, v4")
    for l3 in range(3):
        a(f"buffer_load_ushort v{88+l3}, v12, s[48:51], s45 offen offset:{l3*128}")
    a("s_lshl_b32 s44, s3, 10")
    for ks in range(6):
        for l3 in range(3):
            a(f"s_add_u32 m0, s44, {l3*24576 + ks*4096}")
            a(f"s_add_u32 s33, s32, {ks*32*9216 + l3*128}")
            a("buffer_load_dwordx4 v8, s[12:15], s33 offen " + NT + " lds")
    DST = ((34, 35), (36, 37), (39, 40))
    for l3 in range(3):
        d, st = DST[l3]
        a("s_mul_i32 s43, s42, 6")
        a("s_lshr_b32 s44, s3, 1")
        a("s_add_u32 s43, s43, s44")
        a(f"s_add_u32 s43, s43, {2*l3}")
        a("s_mul_i32 s46, s43, 7282")
        a("s_lshr_b32 s46, s46, 16")
        a("s_mul_i32 s47, s46, 9")
        a("s_sub_u32 s47, s43, s47")
        a(f"s_mul_i32 s{d}, s46, {SLB}")
        a("s_mul_i32 s44, s47, 19")
        a(f"s_cmp_lt_u32 s47, {G0}")
        a("s_cselect_b32 s44, s47, s44")
        a(f"s_cselect_b32 s45, {G0}, 1")
        a("s_lshl_b32 s44, s44, 11")
        a(f"s_add_u32 s{d}, s{d}, s44")
        a(f"s_lshl_b32 s{st}, s45, 11")
        a("s_and_b32 s44, s3, 1")
        a("s_lshl_b32 s44, s44, 10")
        a(f"s_add_u32 s{d}, s{d}, s44")
        a(f"s_add_u32 s{d}, s{d}, {L['W12']}")
        a(f"s_mul_i32 s44, s{st}, 18")
        a(f"s_add_u32 s{52+l3}, s{d}, s44")
        a("s_mul_i32 s44, s41, 6")
        a(f"s_mul_i32 s44, s44, s{st}")
        a(f"s_add_u32 s{d}, s{d}, s44")
    a("v_add_u32 v15, 24576, v11")
    a("v_mov_b32 v12, 0x3f803f80")
    for l3 in range(3):
        a(f"v_mov_b32 v{92+l3}, 0")
    mid(2)
    for ks in range(6):
        a("s_waitcnt vmcnt(15)")
        a("s_barrier")
        if ks == 5:
            mid(3)
        for l3 in range(3):
            f = 3 * ks + l3
            for r in range(2):
                off = l3 * 24576 + ks * 4096 + r * 2048
                base, off = ("v11", off) if l3 < 2 else ("v15", off - 24576)
                a(f"ds_read_b64_tr_b16 v[{16+4*f+2*r}:{17+4*f+2*r}], {base} offset:{off}")
        a("s_waitcnt lgkmcnt(0)")
        for l3 in range(3):
            f = 3 * ks + l3
            d, st = DST[l3]
            a(f"buffer_store_dwordx4 v[{16+4*f}:{19+4*f}], v3, s[4:7], s{d} offen sc1")
            a(f"s_add_u32 s{d}, s{d}, s{st}")
            for j in range(4):
                a(f"v_dot2c_f32_bf16 v{92+l3}, v{16+4*f+j}, v12")
    a("v_cmp_eq_u32 s[46:47], s41, v5")
    a("s_cmp_eq_u32 s41, 0")
    a("s_cselect_b32 s44, 3, s41")
    a("s_cselect_b32 s45, -1, 0")
    a("v_cmp_eq_u32 vcc, s44, v5")
    a("s_or_b64 vcc, vcc, s[46:47]")
    a("v_mov_b32 v8, 0x40000000")
    a("v_cndmask_b32 v9, v8, v3, vcc")
    for l3 in range(3):
        c = 92 + l3; o = 16 + 4 * l3
        xg_reduce(a, "v_add_f32", c, 8)
        a(f"v_lshl_or_b32 v{o}, v{88+l3}, 16, v{88+l3}")
        a(f"v_and_b32 v{o}, s45, v{o}")
        a(f"v_cvt_pk_bf16_f32 v{o+2}, v{c}, v{c}")
        a(f"v_and_b32 v8, 0xffff0000, v{o+2}")
        a(f"v_sub_f32 v8, v{c}, v8")
        a(f"v_cvt_pk_bf16_f32 v{o+1}, v{c}, v8")
        a(f"v_and_b32 v{o+2}, 0xffff, v{o+2}")
        a(f"v_mov_b32 v{o+3}, 0")
        for r in range(3):
            a(f"v_cndmask_b32 v{o+r}, 0, v{o+r}, s[46:47]")
        a(f"buffer_store_dwordx4 {vr(o,4)}, v9, s[4:7], s{52+l3} offen sc1")
    fin()

    a.label(f"{name}_rw2")
    srd(a, 12, 28, D * F * 2)
    a("s_mov_b32 s56, s41")
    a("s_sub_u32 s42, s42, 9")
    a("v_mul_u32_u24 v8, 1152, v6")
    a("v_lshl_add_u32 v8, v7, 4, v8")
    a(f"s_mul_i32 s32, s41, {576*1152}")
    a("s_lshl_b32 s44, s42, 7")
    a("s_add_u32 s32, s32, s44")
    a(f"s_mul_i32 s44, s3, {8*1152}")
    a("s_add_u32 s32, s32, s44")
    a(f"s_mov_b32 s33, {32*1152}")
    dma18()
    a("s_lshl_b32 s43, s42, 1")
    a("s_lshr_b32 s44, s3, 1")
    a("s_add_u32 s43, s43, s44")
    a("s_cmp_ge_u32 s43, 9")
    a("s_cselect_b32 s46, 1, 0")
    a("s_mul_i32 s47, s46, 9")
    a("s_sub_u32 s47, s43, s47")
    a("s_cmp_ge_u32 s47, 5")
    a("s_cselect_b32 s45, 1, 0")
    a("s_lshl_b32 s46, s46, 1")
    a("s_add_u32 s46, s46, s45")
    a("s_mul_i32 s45, s45, 5")
    a("s_sub_u32 s47, s47, s45")
    a("v_add_u32 v15, 36864, v11")
    for dest in range(2):
        if dest == 1:
            a("s_cmp_lg_u32 s47, 4")
            a(f"s_cbranch_scc1 {name}_w2a")
            a("s_add_u32 s46, s46, 1")
        a("s_lshr_b32 s34, s41, 1")
        a("s_lshl_b32 s34, s34, 2")
        a("s_add_u32 s34, s34, s46")
        a(f"s_mul_i32 s34, s34, {SLB}")
        a("s_and_b32 s44, s3, 1")
        a("s_lshl_b32 s44, s44, 10")
        a("s_add_u32 s34, s34, s44")
        a(f"s_add_u32 s34, s34, {L['W12'] + 342*1024}")
        a("s_lshl_b32 s44, s47, 11")
        a("s_add_u32 s35, s34, s44")
        a(f"s_mul_i32 s44, s47, {KT2*2048}")
        a("s_add_u32 s36, s34, s44")
        a(f"s_add_u32 s36, s36, {KO2*10240 - KO2*2048}")
        for half in range(2):
            a("s_and_b32 s37, s41, 1")
            a("s_lshl_b32 s37, s37, 1")
            a(f"s_add_u32 s37, s37, {half}")
            a("s_xor_b32 s37, s37, s46")
            for tl in range(9):
                b = 9 * half + tl
                bb = BOF[tl]
                a(f"s_mul_i32 s39, s37, {BATCH[bb]}")
                a(f"s_add_u32 s40, s39, {9 + 3*BSTART[bb] - BATCH[bb] + tl - BSTART[bb]}")
                a("s_cmp_eq_u32 s37, 0")
                a(f"s_cselect_b32 s40, {tl}, s40")
                a("s_mul_i32 s44, s40, 10240")
                a("s_add_u32 s44, s44, s35")
                a("s_lshl_b32 s45, s40, 11")
                a("s_add_u32 s45, s45, s36")
                a(f"s_cmp_lt_u32 s40, {KO2}")
                a(f"s_cselect_b32 s{AD+18*dest+b}, s44, s45")
    a.label(f"{name}_w2a")
    for grp in range(6):
        a("s_waitcnt vmcnt(15)")
        a("s_barrier")
        for b in range(3 * grp, 3 * grp + 3):
            for r in range(2):
                a(f"ds_read_b64_tr_b16 v[{16+4*b+2*r}:{17+4*b+2*r}], {'v11' if b < 9 else 'v15'} offset:{(b%9)*4096+r*2048}")
        a("s_waitcnt lgkmcnt(0)")
        for b in range(3 * grp, 3 * grp + 3):
            a(f"buffer_store_dwordx4 v[{16+4*b}:{19+4*b}], v3, s[4:7], s{AD+b} offen sc1")
    a("s_cmp_lg_u32 s47, 4")
    a(f"s_cbranch_scc1 {name}_w2d")
    for b in range(18):
        a(f"buffer_store_dwordx4 v[{16+4*b}:{19+4*b}], v3, s[4:7], s{AD+18+b} offen sc1")
    a.label(f"{name}_w2d")
    fin()


def gen_p0(CODE0="p1l1_kernel", CPN=6, zero=False, w12=True):
    name = "p0_kernel"
    NT = OPT.get("p0nt", "nt")
    NWG = 248
    a = Asm()
    header(a, name, NWG)
    ts = Stamps(a, name)
    ts(True); ts()
    a("s_load_dwordx4 s[16:19], s[0:1], 0")
    a("s_load_dwordx2 s[20:21], s[0:1], 16")
    a("s_load_dwordx4 s[24:27], s[0:1], 32")
    a("s_load_dwordx2 s[28:29], s[0:1], 48")
    a("s_load_dwordx2 s[30:31], s[0:1], 80")
    a("v_and_b32 v1, 63, v0")
    a("v_lshrrev_b32 v2, 6, v0")
    a("v_readfirstlane_b32 s3, v2")
    a("v_lshlrev_b32 v3, 4, v1")
    a("v_and_b32 v4, 15, v1")
    a("v_lshrrev_b32 v5, 4, v1")
    a("v_lshrrev_b32 v6, 3, v1")
    a("v_and_b32 v7, 7, v1")
    a("s_mul_i32 s40, s3, 18432")
    a("v_lshrrev_b32 v11, 2, v1")
    a("v_lshlrev_b32 v11, 7, v11")
    a("v_and_b32 v12, 3, v1")
    a("v_lshl_add_u32 v11, v12, 3, v11")
    a("s_lshl_b32 s38, s3, 5")
    a("v_add_u32 v11, s38, v11")
    a("s_waitcnt lgkmcnt(0)")
    if "nocp" not in OPT:
        a("s_getpc_b64 s[52:53]")
        a.raw(f"{name}_pc:")
        a("s_lshr_b32 s54, s2, 3")
        a("s_lshl_b32 s54, s54, 2")
        a("s_add_u32 s54, s54, s3")
        a(f"s_mul_i32 s54, s54, {64*CPN}")
        a(f"s_add_u32 s54, s54, {CODE0}-{name}_pc")
        a(f"s_min_u32 s54, s54, code_end-{name}_pc-{64*(CPN-1)}")
        a("s_add_u32 s52, s52, s54")
        a("s_addc_u32 s53, s53, 0")
        for i in range(CPN):
            a(f"s_load_dword s55, s[52:53], {64*i}")
    PT = int(OPT.get("pt", 0))
    if PT:
        npg = (L["TS"] + PT * 1024 - 1) // (PT * 1024)
        per = (npg + 123) // 124
        a("s_lshr_b32 s54, s2, 3")
        a("s_lshl_b32 s54, s54, 2")
        a("s_add_u32 s54, s54, s3")
        a(f"s_mul_i32 s54, s54, {per * PT * 1024}")
        a(f"s_min_u32 s54, s54, {L['TS']}")
        a("s_add_u32 s52, s30, s54")
        a("s_addc_u32 s53, s31, 0")
        for i in range(per):
            a(f"s_load_dword s55, s[52:53], {i * PT * 1024 + 64 * 37}")
    srd(a, 4, 30, WS_BYTES)
    a(f"s_mov_b32 s36, {OOB}")
    a(f"s_mov_b32 s37, {OOB}")
    a("v_lshlrev_b32 v9, 2, v4")
    a("v_mov_b32 v10, 0")
    if zero:
        a("s_cmp_ge_u32 s2, 76")
        a(f"s_cselect_b32 s44, {L['FL1'] - 76*256}, 0")
        a("s_lshl_b32 s45, s2, 8")
        a("s_add_u32 s44, s44, s45")
        a("s_cmp_ge_u32 s2, 152")
        a(f"s_cselect_b32 s44, {OOB}, s44")
        a("s_cmp_lg_u32 s3, 1")
        a(f"s_cselect_b32 s44, {OOB}, s44")
        a("v_lshlrev_b32 v12, 2, v1")
        a("buffer_store_dword v10, v12, s[4:7], s44 offen")
    BQ, BO, BX_ = (144, 198, 216) if w12 else (0, 54, 72)
    if not w12:
        a("s_cmp_ge_u32 s2, 200")
        a(f"s_cbranch_scc1 {name}_end")
    a(f"s_cmp_ge_u32 s2, {BX_}")
    a(f"s_cbranch_scc1 {name}_x")
    a(f"s_cmp_ge_u32 s2, {BO}")
    a(f"s_cbranch_scc1 {name}_wo")
    a(f"s_cmp_ge_u32 s2, {BQ}")
    a(f"s_cbranch_scc1 {name}_wq")
    def fin():
        if ts.on:
            a(f"s_branch {name}_ts")
        else:
            a("s_endpgm")

    def mid(k):
        ts.n = k
        ts()

    if w12:
        w12_roles(a, name, "s2", fin, mid, NT)
    else:
        a("s_endpgm")

    a.label(f"{name}_wo")
    srd(a, 12, 20, D * D * 2)
    a(f"s_sub_u32 s41, s2, {BO}")
    a("s_lshl_b32 s44, s3, 3")
    a("v_add_u32 v12, s44, v6")
    a("v_lshrrev_b32 v13, 4, v12")
    a("v_mul_u32_u24 v13, 18, v13")
    a("v_and_b32 v14, 15, v12")
    a("v_add_u32 v13, v13, v14")
    a("v_lshrrev_b32 v14, 2, v12")
    a("v_mul_u32_u24 v14, 36, v14")
    a("v_and_b32 v15, 3, v12")
    a("v_lshrrev_b32 v2, 1, v15")
    a("v_lshlrev_b32 v2, 4, v2")
    a("v_add3_u32 v14, v14, v15, v2")
    a("v_add_u32 v14, 16, v14")
    a("s_mul_i32 s32, s41, 36")
    a("s_sub_u32 s33, s41, 16")
    a("s_mul_i32 s33, s33, 288")
    a("s_cmp_lt_u32 s41, 16")
    a("s_cselect_b32 s32, s32, s33")
    a("s_cselect_b64 vcc, -1, 0")
    a("v_cndmask_b32 v13, v14, v13, vcc")
    a("s_mul_i32 s32, s32, 1152")
    a("v_mul_u32_u24 v8, 1152, v13")
    a("v_lshl_add_u32 v8, v7, 4, v8")
    a("s_lshl_b32 s44, s3, 10")
    a("s_mov_b32 m0, s44")
    for cg in range(9):
        a("buffer_load_dwordx4 v8, s[12:15], s32 offen " + NT + " lds")
        a("s_add_u32 s32, s32, 128")
        a("s_add_u32 m0, m0, 4096")
    a("s_mul_i32 s34, s3, 18432")
    a("s_lshl_b32 s44, s41, 10")
    a("s_add_u32 s34, s34, s44")
    a(f"s_add_u32 s34, s34, {L['WO']}")
    mid(2)
    a("s_waitcnt vmcnt(0)")
    a("s_barrier")
    mid(3)
    for cg in range(9):
        for r in range(2):
            a(f"ds_read_b64_tr_b16 v[{16+4*cg+2*r}:{17+4*cg+2*r}], v11 offset:{cg*4096+r*2048}")
        if cg == 6:
            a("s_waitcnt lgkmcnt(0)")
    a("s_waitcnt lgkmcnt(0)")
    for cg in range(9):
        a(f"buffer_store_dwordx4 v[{16+4*cg}:{19+4*cg}], v3, s[4:7], s34 offen sc1")
        a(f"s_add_u32 s34, s34, {4*18432}")
    fin()

    a.label(f"{name}_wq")
    srd(a, 12, 18, D * 3 * D * 2)
    a(f"s_sub_u32 s41, s2, {BQ}")
    a("s_mul_i32 s42, s41, 43691")
    a("s_lshr_b32 s42, s42, 17")
    a("s_mul_i32 s43, s42, 3")
    a("s_sub_u32 s43, s41, s43")
    a(f"s_mul_i32 s32, s42, {32*3456}")
    a("s_mul_i32 s44, s43, 1152")
    a("s_add_u32 s32, s32, s44")
    a(f"s_mul_i32 s44, s3, {8*3456}")
    a("s_add_u32 s32, s32, s44")
    a("s_add_u32 s33, s32, 32")
    a("v_lshrrev_b32 v8, 1, v1")
    a("v_mul_u32_u24 v8, 36, v8")
    a("v_and_b32 v12, 1, v1")
    a("v_lshl_add_u32 v8, v12, 4, v8")
    a("v_and_b32 v12, 31, v1")
    a("v_mul_u32_u24 v12, 36, v12")
    a("v_lshrrev_b32 v13, 5, v1")
    a("v_mul_u32_u24 v13, 3456, v13")
    a("v_add_u32 v12, v12, v13")
    a("s_lshl_b32 s44, s3, 13")
    a("s_mov_b32 m0, s44")
    for i in range(8):
        a("buffer_load_dwordx4 v8, s[12:15], s32 offen " + NT + " lds")
        a("s_add_u32 s32, s32, 3456")
        a("s_add_u32 m0, m0, 1024")
    a("s_lshl_b32 s44, s3, 10")
    a("s_add_u32 m0, s44, 32768")
    for i in range(4):
        a("buffer_load_dword v12, s[12:15], s33 offen " + NT + " lds")
        a(f"s_add_u32 s33, s33, {2*3456}")
        a("s_add_u32 m0, m0, 256")
    a("v_lshrrev_b32 v13, 2, v1")
    a("v_lshlrev_b32 v13, 10, v13")
    a("v_and_b32 v14, 3, v1")
    a("v_lshl_add_u32 v13, v14, 3, v13")
    a("s_lshl_b32 s44, s3, 8")
    a("v_add_u32 v13, s44, v13")
    a(f"s_mul_i32 s34, s3, {4*129024}")
    a("s_mul_i32 s44, s42, 7168")
    a("s_add_u32 s34, s34, s44")
    a(f"s_add_u32 s35, s34, {L['WQ'] + 6*1024}")
    a("s_lshl_b32 s44, s43, 11")
    a("s_add_u32 s34, s34, s44")
    a(f"s_add_u32 s34, s34, {L['WQ']}")
    a("v_lshrrev_b32 v14, 2, v4")
    a(f"s_mov_b32 s44, 129024")
    a("v_mul_lo_u32 v14, v14, s44")
    a("v_lshrrev_b32 v15, 1, v4")
    a("v_and_b32 v15, 1, v15")
    a("s_cmp_eq_u32 s43, 2")
    a("s_cselect_b32 s44, 1, 2")
    a("s_lshl_b32 s45, s43, 1")
    a("s_cmp_eq_u32 s43, 2")
    a("s_cselect_b32 s45, 8, s45")
    a("v_lshlrev_b32 v15, s44, v15")
    a("v_and_b32 v2, 1, v4")
    a("v_add3_u32 v15, v15, v2, s45")
    a("v_lshl_add_u32 v15, v5, 4, v15")
    a("v_lshl_add_u32 v14, v15, 4, v14")
    mid(2)
    a("s_waitcnt vmcnt(0)")
    a("s_barrier")
    mid(3)
    for i in range(8):
        for r in range(2):
            a(f"ds_read_b64_tr_b16 v[{16+4*i+2*r}:{17+4*i+2*r}], v13 offset:{r*16384+i*32}")
        if i == 6:
            a("s_waitcnt lgkmcnt(0)")
    for r in range(2):
        a(f"ds_read_b64_tr_b16 v[{48+2*r}:{49+2*r}], v11 offset:{32768+r*2048}")
    for i in range(4):
        a(f"v_mov_b32 v{52+i}, 0")
    a("s_waitcnt lgkmcnt(0)")
    for i in range(8):
        a(f"buffer_store_dwordx4 v[{16+4*i}:{19+4*i}], v3, s[4:7], s34 offen offset:{(i&1)*1024} sc1")
        if i & 1:
            a("s_add_u32 s34, s34, 129024")
    a("buffer_store_dwordx4 v[48:51], v14, s[4:7], s35 offen")
    a("s_cmp_eq_u32 s43, 2")
    a(f"s_cselect_b32 s35, s35, {OOB}")
    a("buffer_store_dwordx4 v[52:55], v14, s[4:7], s35 offen offset:64")
    fin()

    a.label(f"{name}_x")
    srd(a, 12, 16, XT)
    a(f"s_sub_u32 s41, s2, {BX_}")
    if w12:
        a("s_lshl_b32 s41, s41, 2")
        a("s_add_u32 s41, s41, s3")
    else:
        a("s_cmp_lg_u32 s3, 0")
        a(f"s_cbranch_scc1 {name}_end")
    a("s_mul_i32 s33, s41, 18432")
    a(f"s_add_u32 s34, s33, {L['X0']}")
    a("s_mov_b32 m0, s40")
    for i in range(18):
        a(f"buffer_load_dwordx4 v3, s[12:15], s33 offen offset:{(i%3)*1024} " + NT + " lds")
        if i % 3 == 2:
            a("s_add_u32 s33, s33, 3072")
            a("s_add_u32 m0, m0, 3072")
    a("v_mul_u32_u24 v8, 1152, v4")
    a("v_lshl_add_u32 v8, v5, 3, v8")
    a("v_add_u32 v8, s40, v8")
    a("v_mov_b32 v12, 0x3f803f80")
    a("v_mov_b32 v14, 0")
    a("v_mov_b32 v15, 0")
    mid(2)
    a("s_waitcnt vmcnt(0)")
    mid(3)
    for grp in range(3):
        for ks in range(6 * grp, 6 * grp + 6):
            a(f"ds_read_b64 v[{16+4*ks}:{17+4*ks}], v8 offset:{ks*64}")
            a(f"ds_read_b64 v[{18+4*ks}:{19+4*ks}], v8 offset:{ks*64+32}")
        a("s_waitcnt lgkmcnt(0)")
        for ks in range(6 * grp, 6 * grp + 6):
            a(f"buffer_store_dwordx4 v[{16+4*ks}:{19+4*ks}], v3, s[4:7], s34 offen sc1")
            a("s_add_u32 s34, s34, 1024")
    for ks in range(18):
        for j in range(4):
            a(f"v_dot2c_f32_bf16 v14, v{16+4*ks+j}, v12")
            a(f"v_dot2c_f32_bf16 v15, v{16+4*ks+j}, v{16+4*ks+j}")
    a("v_lshlrev_b32 v9, 3, v1")
    a("s_lshl_b32 s36, s41, 9")
    a(f"s_add_u32 s36, s36, {L['ST0']}")
    a("buffer_store_dwordx2 v[14:15], v9, s[4:7], s36 offen")
    if ts.on:
        a.label(f"{name}_ts")
        ts()
        a("s_waitcnt vmcnt(0)")
        ts(); ts(True)
        ts.store()
    footer(a, name)
    return name, a.text(), dict(vgpr=96, sgpr=102, accum=96), dict(grid=248, block=256, lds=81920 + 4096)


def stats_finish(a, s, q, r, mr, t, double_ln):
    a(f"v_mul_f32 v{s}, {f32(1.0/D)}, v{s}")
    a(f"v_mul_f32 v{q}, {f32(1.0/D)}, v{q}")
    a(f"v_fma_f32 v{q}, -v{s}, v{s}, v{q}")
    a(f"v_max_f32 v{q}, 0, v{q}")
    a(f"v_add_f32 v{t}, {f32(1e-5)}, v{q}")
    a(f"v_rsq_f32 v{r}, v{t}")
    if double_ln:
        a(f"v_mul_f32 v{t}, v{r}, v{r}")
        a(f"v_mul_f32 v{t}, v{t}, v{q}")
        a(f"v_add_f32 v{t}, {f32(1e-5)}, v{t}")
        a(f"v_rsq_f32 v{t}, v{t}")
        a(f"v_mul_f32 v{r}, v{r}, v{t}")
    a(f"v_mul_f32 v{mr}, v{s}, v{r}")


def gen_p1(layer):
    name = f"p1l{layer}_kernel"
    XIN = L["X0"] if layer == 0 else L["X2"]
    STI = L["ST0"] if layer == 0 else L["ST2"]
    OUT = L[f"O{layer}"]
    a = Asm()
    vm = Cnt(a, "vmcnt", 63); lg = Cnt(a, "lgkmcnt", 15)
    header(a, name, 256)
    ts = Stamps(a, name)
    ts(True); ts()
    ROT = int(OPT.get("p1rot", 0))
    a("s_load_dwordx2 s[4:5], s[0:1], 80")
    a("v_and_b32 v1, 63, v0")
    a("v_lshrrev_b32 v2, 6, v0")
    a("v_readfirstlane_b32 s3, v2")
    a("v_lshlrev_b32 v3, 4, v1")
    a("v_and_b32 v4, 15, v1")
    a("v_lshrrev_b32 v5, 4, v1")
    a("s_and_b32 s12, s2, 7")
    a("s_lshr_b32 s13, s2, 3")
    a("s_lshr_b32 s14, s12, 1")
    a("s_lshl_b32 s14, s14, 2")
    a("s_and_b32 s15, s13, 3")
    a("s_mul_i32 s46, s15, 5")
    a("s_add_u32 s14, s14, s15")
    a("s_and_b32 s15, s12, 1")
    a("s_lshl_b32 s15, s15, 3")
    a("s_lshr_b32 s16, s13, 2")
    a("s_add_u32 s15, s15, s16")
    a("s_lshl_b32 s16, s16, 1")
    a("s_add_u32 s46, s46, s16")
    a("s_cmp_ge_u32 s46, 18")
    a("s_cselect_b32 s16, 18, 0")
    a("s_sub_u32 s46, s46, s16")
    if not ROT:
        a("s_mov_b32 s46, 0")
    a("s_lshl_b32 s47, s46, 10")
    a("s_lshl_b32 s16, s14, 3")
    a("s_lshl_b32 s17, s3, 1")
    a("s_add_u32 s17, s17, s16")
    a("s_mul_i32 s18, s17, 18432")
    a("s_add_u32 s18, s18, s47")
    a(f"s_add_u32 s18, s18, {XIN}")
    a(f"s_mul_i32 s20, s15, {18*7168}")
    a("s_lshl_b32 s21, s3, 11")
    a("s_add_u32 s20, s20, s21")
    a("s_mul_i32 s19, s46, 7168")
    a("s_add_u32 s20, s20, s19")
    a(f"s_add_u32 s20, s20, {L['WQ']}")
    a("s_sub_u32 s20, s20, s59")
    a("s_mul_i32 s22, s16, 18432")
    a(f"s_add_u32 s22, s22, {XIN - 18432 - 1024}")
    a("s_cmp_eq_u32 s14, 0")
    a(f"s_cselect_b32 s22, {OOB}, s22")
    a("s_add_u32 s22, s22, s47")
    a("s_mov_b32 s48, 7168")
    a(f"s_mov_b32 s49, {-17*7168}")
    a("s_mov_b32 s50, 1024")
    a(f"s_mov_b32 s51, {-17*1024}")
    a("s_mov_b32 s44, 0xfffefffe")
    a("s_cmp_eq_u32 s3, 3")
    a("s_cselect_b32 s22, s22, s20")
    a("s_cselect_b32 s52, s50, s48")
    a("s_cselect_b32 s53, s51, s49")
    a("s_cselect_b32 s44, s44, -1")
    a("s_mov_b32 s45, s44")
    a("s_mov_b32 s24, s21")
    a("s_lshl_b32 s25, s17, 9")
    a(f"s_add_u32 s25, s25, {STI}")
    a("s_lshl_b32 s26, s16, 9")
    a(f"s_add_u32 s26, s26, {STI - 512}")
    a("s_cmp_eq_u32 s14, 0")
    a(f"s_cselect_b32 s26, {OOB}, s26")
    a("s_lshl_b32 s27, s3, 2")
    a("s_lshr_b32 s28, 0x1654, s27")
    a("s_and_b32 s28, s28, 15")
    a("s_lshr_b32 s27, 0x0632, s27")
    a("s_and_b32 s27, s27, 15")
    a("v_lshlrev_b32 v6, 5, v4")
    a("v_lshl_add_u32 v6, v5, 3, v6")
    a("v_lshlrev_b32 v7, 4, v5")
    a("v_lshlrev_b32 v8, 2, v4")
    a("v_add_u32 v15, 18432, v3")
    a("s_waitcnt lgkmcnt(0)")
    a("s_add_u32 s4, s4, s59")
    a("s_addc_u32 s5, s5, 0")
    a("s_and_b32 s5, s5, 0xffff")
    a(f"s_mov_b32 s6, {WS_BYTES}")
    a("s_mov_b32 s7, 0x00020000")
    ACC = 16; AB = 88
    RN = 168
    RS = 176
    CQN = 200
    CQH = 220
    CQS = 224
    MS = 228; MPA = 232; MPB = 236
    T0 = 200
    EX = 147456
    CQL = EX + 5 * 3072
    for n, so, off in ((0, "s25", 0), (1, "s25", 512), (2, "s26", 0)):
        a(f"buffer_load_dwordx2 {vr(T0+2*n,2)}, v6, s[4:7], {so} offen offset:{off}"); vm.issue("st")

    def loads(ks):
        if not ROT:
            o = (ks % 4) * 1024
            return [
                ["s_mov_b32 m0, s24", "s_add_u32 s24, s24, 8192", "buffer_load_dwordx4 v3, s[4:7], s20 offen lds", "s_add_u32 s20, s20, 7168"],
                ["s_mov_b64 exec, s[44:45]", "buffer_load_dwordx4 v3, s[4:7], s22 offen offset:1024 lds", "s_mov_b64 exec, -1",
                 "s_add_u32 s22, s22, s52"],
                [f"buffer_load_dwordx4 {ar(4*ks,4)}, v3, s[4:7], s18 offen offset:{o}"],
                [f"buffer_load_dwordx4 {ar(72+4*ks,4)}, v15, s[4:7], s18 offen offset:{o}"] + (["s_add_u32 s18, s18, 4096"] if ks % 4 == 3 else []),
            ]
        return [
            ["s_mov_b32 m0, s24", "s_add_u32 s46, s46, 1", "buffer_load_dwordx4 v3, s[4:7], s20 offen lds",
             "s_cmp_eq_u32 s46, 18", "s_cselect_b32 s54, s49, s48", "s_cselect_b32 s55, s53, s52", "s_cselect_b32 s56, s51, s50",
             "s_add_u32 s20, s20, s54"],
            ["s_mov_b64 exec, s[44:45]", "buffer_load_dwordx4 v3, s[4:7], s22 offen offset:1024 lds", "s_mov_b64 exec, -1",
             "s_add_u32 s22, s22, s55", "s_add_u32 s24, s24, 8192"],
            [f"buffer_load_dwordx4 {ar(4*ks,4)}, v3, s[4:7], s18 offen"],
            [f"buffer_load_dwordx4 {ar(72+4*ks,4)}, v15, s[4:7], s18 offen", "s_add_u32 s18, s18, s56"],
        ]

    def do_load(grp, ks):
        for t in grp:
            a(t)
        vm.issue(("k", ks))

    PF = int(OPT.get("p1pf", 5))
    PF0 = int(OPT.get("p1pf0", 2))
    PF1 = int(OPT.get("p1pf1", 4))
    for ks in range(PF0):
        for grp in loads(ks):
            do_load(grp, ks)
    ts()
    a("v_min_u32 v12, 71, v0")
    a("v_lshrrev_b32 v13, 2, v12")
    a("v_lshlrev_b32 v13, 13, v13")
    a("v_and_b32 v12, 3, v12")
    a("v_lshl_add_u32 v13, v12, 8, v13")
    for i in range(4):
        a(f"v_mov_b32 v{ACC+i}, 0x3f803f80")
    a(f"ds_write_b128 v13, {vr(ACC,4)} offset:7168")
    a("v_mov_b32 v9, v3")
    a("s_lshl_b32 s32, s27, 10")
    a("v_add_u32 v10, s32, v3")
    a("s_lshl_b32 s32, s28, 10")
    a("v_add_u32 v11, s32, v3")
    a(f"v_mov_b32 v12, {f32(-1e30)}")
    a("v_lshlrev_b32 v13, 2, v5")
    a("v_sub_u32 v13, v4, v13")
    a("s_cmp_eq_u32 s17, 0")
    a("s_cselect_b32 s33, -100, -2")
    for i in range(4):
        a(f"v_subrev_u32 v14, {i}, v13")
        a("v_and_b32 v2, 1, v14")
        a("v_cmp_eq_u32 s[34:35], 0, v2")
        a("v_cmp_le_i32 vcc, 0, v14")
        a("s_and_b64 vcc, vcc, s[34:35]")
        a(f"v_cndmask_b32 v{MS+i}, v12, 0, vcc")
        a("v_cmp_ge_i32 vcc, -2, v14")
        a("s_and_b64 vcc, vcc, s[34:35]")
        a(f"v_cndmask_b32 v{MPB+i}, v12, 0, vcc")
        a("v_cmp_ge_i32 vcc, s33, v14")
        a("s_and_b64 vcc, vcc, s[34:35]")
        a(f"v_cndmask_b32 v{MPA+i}, v12, 0, vcc")
    a("s_mul_i32 s32, s3, 384")
    a(f"s_add_u32 s32, s32, {EX}")
    a("v_add_u32 v12, s32, v8")
    a("v_add_u32 v13, s32, v7")
    for ks in range(PF0, PF1):
        for grp in loads(ks):
            do_load(grp, ks)
    vm.wait("st")
    for r in range(6):
        a(f"v_mov_b32 v{T0+8+r}, v{T0+r}")
    for r in range(6):
        a(f"v_permlane16_swap_b32 v{T0+r}, v{T0+8+r}")
    for r in range(6):
        a(f"v_add_f32 v{T0+r}, v{T0+r}, v{T0+8+r}")
    for r in range(6):
        a(f"v_mov_b32 v{T0+8+r}, v{T0+r}")
    for r in range(6):
        a(f"v_permlane32_swap_b32 v{T0+r}, v{T0+8+r}")
    for r in range(6):
        a(f"v_add_f32 v{T0+r}, v{T0+r}, v{T0+8+r}")
    for n in range(3):
        b = T0 + 2 * n
        stats_finish(a, b, b + 1, RN + 2 * n, RN + 2 * n + 1, T0 + 8 + n, False)
        a(f"ds_write_b32 v12, v{RN+2*n} offset:{n*128}")
        a(f"ds_write_b32 v12, v{RN+2*n+1} offset:{n*128+64}")
    for n in range(3):
        a(f"ds_read_b128 {vr(RS+8*n,4)}, v13 offset:{n*128}")
        a(f"ds_read_b128 {vr(RS+8*n+4,4)}, v13 offset:{n*128+64}")
    for ks in range(PF1, PF):
        for grp in loads(ks):
            do_load(grp, ks)

    def reads(ks):
        b = AB + 40 * (ks & 1)
        o = (ks % 8) * 8192
        r = [f"ds_read_b128 {vr(b+28,4)}, v9 offset:{o+7*1024}",
             f"ds_read_b128 {vr(b+32,4)}, v10 offset:{o}",
             f"ds_read_b128 {vr(b+36,4)}, v11 offset:{o}"]
        r += [f"ds_read_b128 {vr(b+4*fr,4)}, v9 offset:{o+fr*1024}" for fr in (0, 1, 2, 3, 6, 4, 5)]
        return r

    def mfmas(ks):
        b = AB + 40 * (ks & 1)
        r = []
        acc = vr(ACC + 64, 4); c = "0" if ks == 0 else acc
        r.append(f"v_mfma_f32_16x16x32_bf16 {acc}, {vr(b+32,4)}, {vr(b+28,4)}, {c}")
        acc = vr(ACC + 68, 4); c = "0" if ks == 0 else acc
        r.append(f"v_mfma_f32_16x16x32_bf16 {acc}, {vr(b+28,4)}, {vr(b+36,4)}, {c}")
        for slot, fr in enumerate((0, 1, 2, 3, 6, 4, 5, 6)):
            for n in range(2):
                acc = vr(ACC + 32 * n + 4 * slot, 4)
                x = ar(72 * n + 4 * ks, 4)
                w = vr(b + 4 * fr, 4)
                c = "0" if ks == 0 else acc
                if slot < 5:
                    r.append(f"v_mfma_f32_16x16x32_bf16 {acc}, {w}, {x}, {c}")
                else:
                    r.append(f"v_mfma_f32_16x16x32_bf16 {acc}, {x}, {w}, {c}")
        return r

    CH = int(OPT.get("p1ch", 2))
    nload = [PF]
    ts()
    vm.wait(("k", CH - 1))
    a("s_waitcnt lgkmcnt(0)")
    a("s_barrier")
    for t in reads(0):
        a(t)
    a("s_waitcnt lgkmcnt(0)")
    for ks in range(18):
        if ks in (0, 6, 12):
            ts()
        m = mfmas(ks)
        nxt = ks + 1
        rd = []
        if nxt < 18:
            if nxt % CH == 0:
                vm.wait(("k", min(nxt + CH - 1, 17)))
                a("s_barrier")
            if nxt % 8 == 0:
                a("v_add_u32 v9, 0x10000, v9")
                a("v_add_u32 v10, 0x10000, v10")
                a("v_add_u32 v11, 0x10000, v11")
            rd = reads(nxt)
        else:
            a("s_lshl_b32 s32, s27, 6")
            a(f"s_add_u32 s32, s32, {CQL}")
            a("v_add_u32 v12, s32, v7")
            a("s_lshl_b32 s33, s28, 6")
            a(f"s_add_u32 s33, s33, {CQL}")
            a("v_add_u32 v13, s33, v8")
            a("s_mov_b32 s34, 0x00010001")
            a("s_mov_b32 s35, 0x00010001")
        RAMP = int(OPT.get("p1ramp", 0))
        ld = []
        for _ in range(2 if ks < RAMP else 1):
            if nload[0] < 18:
                ld += [(g, nload[0]) for g in loads(nload[0])]
                nload[0] += 1
        for i, t in enumerate(m):
            a(t)
            if i < len(rd):
                a(rd[i])
            st0 = 10 if len(ld) <= 4 else 2
            if i >= st0 and (i - st0) % 2 == 0 and (i - st0) // 2 < len(ld):
                do_load(*ld[(i - st0) // 2])
            if ks == 17 and i == 10:
                a("s_mov_b64 exec, s[34:35]")
                a(f"ds_write_b128 v12, {vr(ACC+64,4)}")
                a("s_mov_b64 exec, 0xffff")
                a(f"ds_write_b32 v13, v{ACC+68}")
                a("s_mov_b64 exec, -1")
        a("s_waitcnt lgkmcnt(0)")
    a("s_barrier")
    if "nopf" not in OPT:
        a("s_lshl_b32 s48, s13, 2")
        a("s_add_u32 s48, s48, s3")
        a("s_mul_i32 s49, s48, 5184")
        a(f"s_add_u32 s49, s49, {L['WO']}")
        a("s_sub_u32 s49, s49, s59")
        for i in range(6):
            if i == 4:
                a("s_add_u32 s49, s49, 4096")
            a(f"buffer_load_dwordx4 {ar(4*i,4)}, v3, s[4:7], s49 offen offset:{(i%4)*1024}")
        NPW = int(OPT.get("p1pw", 0))
        a("s_and_b32 s50, s12, 3")
        a("s_lshl_b32 s50, s50, 2")
        a("s_add_u32 s50, s50, s3")
        a(f"s_mul_i32 s50, s50, {SLB}")
        a(f"s_mul_i32 s51, s13, {NPW*1024}")
        a("s_add_u32 s50, s50, s51")
        a(f"s_add_u32 s50, s50, {L['W12']}")
        a("s_sub_u32 s50, s50, s59")
        for i in range(NPW):
            if i and i % 4 == 0:
                a("s_add_u32 s50, s50, 4096")
            a(f"buffer_load_dwordx4 {ar(24+4*i,4)}, v3, s[4:7], s50 offen offset:{(i%4)*1024}")
    a(f"v_add_u32 v9, {CQL}, v7")
    a(f"v_add_u32 v10, {CQL}, v8")
    for i, fr in enumerate((0, 1, 2, 3, 6)):
        a(f"ds_read_b128 {vr(CQN+4*i,4)}, v9 offset:{fr*64}")
    a(f"ds_read_b128 {vr(CQH,4)}, v12")
    for i, fr in enumerate((4, 5, 6)):
        a(f"ds_read_b32 v{CQS+i}, v10 offset:{fr*64}")
    a(f"ds_read_b32 v{CQS+3}, v13")

    KF = 88; QF = 112; VF = 128; ONE = 148; T = 152
    ts()
    for i in range(4):
        a(f"v_mul_f32 v{ACC+64+i}, v{ACC+64+i}, v{RN+4}")
        a(f"v_mul_f32 v{ACC+68+i}, v{ACC+68+i}, v{RS+16+i}")
    for n in (1, 0):
        for j in range(5):
            for i in range(4):
                a(f"v_mul_f32 v{ACC+32*n+4*j+i}, v{ACC+32*n+4*j+i}, v{RN+2*n}")
        for j in range(5, 8):
            for i in range(4):
                a(f"v_mul_f32 v{ACC+32*n+4*j+i}, v{ACC+32*n+4*j+i}, v{RS+8*n+i}")

    def corr_n(acc, n, cq):
        for i in range(4):
            a(f"v_fma_f32 v{acc+i}, -v{RN+2*n+1}, v{cq+i}, v{acc+i}")

    def corr_s(acc, n, cq):
        for i in range(4):
            a(f"v_fma_f32 v{acc+i}, -v{RS+8*n+4+i}, v{cq}, v{acc+i}")

    def pack2(dst, acc):
        a(f"v_cvt_pk_bf16_f32 v{dst}, v{acc}, v{acc+1}")
        a(f"v_cvt_pk_bf16_f32 v{dst+1}, v{acc+2}, v{acc+3}")

    a("v_cmp_eq_u32 s[36:37], 0, v5")
    a("v_cmp_eq_u32 s[38:39], 1, v5")
    a("v_lshlrev_b32 v12, 3, v1")
    a("s_mul_i32 s32, s3, 3072")
    a(f"s_add_u32 s33, s32, {EX}")
    a("v_add_u32 v13, s33, v12")
    a("s_lshl_b32 s32, s3, 9")
    a(f"s_add_u32 s32, s32, {EX}")
    a("s_cmp_eq_u32 s3, 3")
    a(f"s_cselect_b32 s32, {EX+4*3072}, s32")
    a("v_add_u32 v14, s32, v12")
    a("s_waitcnt lgkmcnt(0)")

    def conv_tile(n):
        ac = ACC + 32 * n
        tl = n + 1
        for i in range(5):
            corr_n(ac + 4 * i, n, CQN + 4 * i)
        for h in range(2):
            pack2(QF + (2 * n + h) * 4, ac + 4 * h)
            pack2(KF + (2 * tl + h) * 4, ac + 8 + 4 * h)
        pack2(T + 8 + 2 * n, ac + 16)
        for h in range(2):
            a(f"v_mov_b32 v{KF+(2*tl+h)*4+2}, v{T+8+2*n+1}")
            a(f"v_cndmask_b32 v{QF+(2*n+h)*4+2}, 0, v{T+8+2*n}, s[{36+2*h}:{37+2*h}]")
        for h in range(3):
            corr_s(ac + 20 + 4 * h, n, CQS + h)
            pack2(VF + 6 * h + 2 * tl, ac + 20 + 4 * h)

    corr_n(ACC + 64, 2, CQH)
    corr_s(ACC + 68, 2, CQS + 3)
    pack2(T + 12, ACC + 64)
    pack2(T + 14, ACC + 68)
    a(f"ds_write_b64 v14, {vr(T+12,2)}")
    a(f"ds_write_b64 v14, {vr(T+14,2)} offset:1536")
    conv_tile(1)
    a(f"ds_write_b64 v13, {vr(KF+16,2)} offset:{3072}")
    a(f"ds_write_b64 v13, {vr(KF+20,2)} offset:{3072+512}")
    a(f"ds_write_b64 v13, {vr(T+10,2)} offset:{3072+1024}")
    for h in range(3):
        a(f"ds_write_b64 v13, {vr(VF+6*h+4,2)} offset:{3072+1536+512*h}")
    conv_tile(0)
    for i in range(6):
        a(f"v_mov_b32 v{KF+4*i+3}, 0")
    for i in range(4):
        a(f"v_mov_b32 v{QF+4*i+3}, 0")
        a(f"v_mov_b32 v{ONE+i}, 0x3f803f80")
    a("s_waitcnt lgkmcnt(0)")
    ts()
    a("s_barrier")
    ts()
    a(f"ds_read_b64 {vr(KF,2)}, v13")
    a(f"ds_read_b64 {vr(KF+4,2)}, v13 offset:512")
    a(f"ds_read_b32 v{KF+2}, v13 offset:{1024+4}")
    a(f"ds_read_b32 v{KF+6}, v13 offset:{1024+4}")
    for h in range(3):
        a(f"ds_read_b64 {vr(VF+6*h,2)}, v13 offset:{1536+512*h}")
    SB = 16
    PB = 48
    MX = 64
    OB = 168
    OO = 72
    jobs = [(1, 0), (1, 1), (0, 0), (0, 1)]
    cs = (18 ** -0.5) * math.log2(math.e)
    a(f"s_mov_b32 s40, {f32(cs)}")
    for j, (n, h) in enumerate(jobs):
        if j == 2:
            a("s_waitcnt lgkmcnt(0)")
        q = vr(QF + (2 * n + h) * 4, 4)
        mp = MPA if n == 0 else MPB
        a(f"v_mfma_f32_16x16x32_bf16 {vr(SB+8*j,4)}, {vr(KF+(2*n+h)*4,4)}, {q}, {vr(mp,4)}")
        a(f"v_mfma_f32_16x16x32_bf16 {vr(SB+8*j+4,4)}, {vr(KF+(2*(n+1)+h)*4,4)}, {q}, {vr(MS,4)}")
    for j in range(4):
        s = SB + 8 * j; m = MX + 2 * j
        a(f"v_max3_f32 v{m}, v{s}, v{s+1}, v{s+2}")
        a(f"v_max3_f32 v{m+1}, v{s+3}, v{s+4}, v{s+5}")
        a(f"v_max3_f32 v{m}, v{m}, v{s+6}, v{s+7}")
        a(f"v_max_f32 v{m}, v{m}, v{m+1}")
    for j in range(4):
        a(f"v_mov_b32 v{MX+2*j+1}, v{MX+2*j}")
    for j in range(4):
        a(f"v_permlane16_swap_b32 v{MX+2*j}, v{MX+2*j+1}")
    for j in range(4):
        a(f"v_max_f32 v{MX+2*j}, v{MX+2*j}, v{MX+2*j+1}")
    for j in range(4):
        a(f"v_mov_b32 v{MX+2*j+1}, v{MX+2*j}")
    for j in range(4):
        a(f"v_permlane32_swap_b32 v{MX+2*j}, v{MX+2*j+1}")
    for j in range(4):
        a(f"v_max_f32 v{MX+2*j}, v{MX+2*j}, v{MX+2*j+1}")
    for j in range(4):
        a(f"v_mul_f32 v{MX+2*j}, s40, v{MX+2*j}")
    for j, (n, h) in enumerate(jobs):
        s = SB + 8 * j
        for i in range(8):
            a(f"v_fma_f32 v{s+i}, v{s+i}, s40, -v{MX+2*j}")
        for i in range(8):
            a(f"v_exp_f32 v{s+i}, v{s+i}")
        for i in range(4):
            a(f"v_cvt_pk_bf16_f32 v{PB+4*j+i}, v{s+2*i}, v{s+2*i+1}")
        p = vr(PB + 4 * j, 4)
        a(f"v_mfma_f32_16x16x32_bf16 {vr(OB+12*j+8,4)}, {vr(ONE,4)}, {p}, 0")
        a(f"v_mfma_f32_16x16x32_bf16 {vr(OB+12*j,4)}, {vr(VF+6*h+2*n,4)}, {p}, 0")
        a(f"v_mfma_f32_16x16x32_bf16 {vr(OB+12*j+4,4)}, {vr(VF+12+2*n,4)}, {p}, 0")
    a("s_mul_i32 s32, s17, 18432")
    a("s_lshl_b32 s33, s15, 10")
    a("s_add_u32 s33, s33, s32")
    a(f"s_add_u32 s33, s33, {OUT}")
    a("s_add_u32 s34, s33, 18432")
    a("s_lshr_b32 s35, s15, 3")
    a("s_lshl_b32 s35, s35, 10")
    a("s_and_b32 s36, s15, 3")
    a("s_lshl_b32 s36, s36, 8")
    a("s_add_u32 s35, s35, s36")
    a("s_lshr_b32 s36, s15, 2")
    a("s_and_b32 s36, s36, 1")
    a("s_lshl_b32 s36, s36, 3")
    a("s_add_u32 s35, s35, s36")
    a("s_add_u32 s35, s35, s32")
    a(f"s_add_u32 s35, s35, {OUT + 16*1024}")
    a("s_add_u32 s36, s35, 18432")
    a("v_lshlrev_b32 v12, 4, v4")
    a("v_mov_b32 v13, 0x40000000")
    a("v_cmp_eq_u32 vcc, 2, v5")
    a("v_cndmask_b32 v12, v13, v12, vcc")
    for j, (n, h) in enumerate(jobs):
        o = OB + 12 * j
        a(f"v_rcp_f32 v{o+8}, v{o+8}")
        for i in range(4):
            a(f"v_mul_f32 v{o+i}, v{o+i}, v{o+8}")
        a(f"v_mul_f32 v{o+4+2*h}, v{o+4+2*h}, v{o+8}")
        a(f"v_mul_f32 v{o+5+2*h}, v{o+5+2*h}, v{o+8}")
        a(f"v_cvt_pk_bf16_f32 v{OO+4*n+2*h}, v{o}, v{o+1}")
        a(f"v_cvt_pk_bf16_f32 v{OO+4*n+2*h+1}, v{o+2}, v{o+3}")
        a(f"v_cvt_pk_bf16_f32 v{OO+8+2*n+h}, v{o+4+2*h}, v{o+5+2*h}")
        if h == 1:
            a(f"buffer_store_dwordx4 {vr(OO+4*n,4)}, v3, s[4:7], s{33+n} offen {OPT.get('p1st', 'sc1')}")
            a(f"buffer_store_dwordx2 {vr(OO+8+2*n,2)}, v12, s[4:7], s{35+n} offen")
    ts()
    if ts.on:
        a("s_waitcnt vmcnt(0)")
    ts(); ts(True)
    ts.store()
    footer(a, name)
    return name, a.text(), dict(vgpr=240 + 144, sgpr=96, accum=240), dict(grid=256, block=256, lds=163840)


def pq_decode(a):
    a("v_and_b32 v1, 63, v0")
    a("v_lshrrev_b32 v2, 6, v0")
    a("v_readfirstlane_b32 s3, v2")
    a("v_lshlrev_b32 v3, 4, v1")
    a("v_and_b32 v4, 15, v1")
    a("v_lshrrev_b32 v5, 4, v1")
    a("s_and_b32 s12, s2, 7")
    a("s_lshl_b32 s12, s12, 3")
    a("s_lshr_b32 s13, s2, 3")
    a("s_and_b32 s15, s13, 7")
    a("s_add_u32 s12, s12, s15")
    a("s_lshr_b32 s13, s13, 3")
    a("s_mul_i32 s14, s13, 9")
    a("s_add_u32 s14, s14, s3")
    a("s_mul_i32 s15, s12, 36864")
    a("s_lshr_b32 s16, s14, 1")
    a("s_lshl_b32 s16, s16, 10")
    a("s_and_b32 s17, s14, 1")
    a("s_lshl_b32 s17, s17, 3")
    a("s_add_u32 s16, s16, s17")
    a("s_add_u32 s16, s16, s15")


def pq_epilogue(a, V, XOUT, STOUT, SCR, T):
    a(f"s_add_u32 s18, s16, {XOUT}")
    a("s_add_u32 s19, s18, 18432")
    for n in range(2):
        v = V + 4 * n
        a(f"v_cvt_pk_bf16_f32 v{T+2*n}, v{v}, v{v+1}")
        a(f"v_cvt_pk_bf16_f32 v{T+2*n+1}, v{v+2}, v{v+3}")
        a(f"buffer_store_dwordx2 {vr(T+2*n,2)}, v3, s[4:7], s{18+n} offen")
    for n in range(2):
        v = V + 4 * n; s = T + 4 + 2 * n
        a(f"v_add_f32 v{s}, v{v}, v{v+1}")
        a(f"v_mul_f32 v{s+1}, v{v}, v{v}")
        a(f"v_add_f32 v{s}, v{s}, v{v+2}")
        a(f"v_fmac_f32 v{s+1}, v{v+1}, v{v+1}")
        a(f"v_add_f32 v{s}, v{s}, v{v+3}")
        a(f"v_fmac_f32 v{s+1}, v{v+2}, v{v+2}")
        a(f"v_fmac_f32 v{s+1}, v{v+3}, v{v+3}")
    a("s_lshl_b32 s20, s3, 10")
    a(f"s_add_u32 s20, s20, {SCR}")
    a(f"v_add_u32 v{T+8}, s20, v3")
    a(f"ds_write_b128 v{T+8}, {vr(T+4,4)}")
    a("s_lshl_b32 s20, s3, 2")
    a(f"v_add_u32 v{T+9}, s20, v3")
    a("s_lshl_b32 s20, s12, 10")
    a("s_lshl_b32 s21, s13, 3")
    a("s_add_u32 s20, s20, s21")
    a("s_lshr_b32 s21, s3, 1")
    a("s_lshl_b32 s21, s21, 9")
    a("s_add_u32 s20, s20, s21")
    a("s_and_b32 s21, s3, 1")
    a("s_lshl_b32 s21, s21, 2")
    a("s_add_u32 s20, s20, s21")
    a(f"s_add_u32 s20, s20, {STOUT}")
    a(f"v_lshlrev_b32 v{T+8}, 5, v4")
    a("s_waitcnt lgkmcnt(0)")
    a("s_barrier")
    a("s_cmp_ge_u32 s3, 4")
    a("s_cbranch_scc1 " + a.endlabel)
    R = T + 12
    for w in range(9):
        a(f"ds_read_b32 v{R+w}, v{T+9} offset:{SCR+w*1024}")
    a("s_waitcnt lgkmcnt(0)")
    for st in ((0, 1), (2, 3), (4, 5), (6, 7), (0, 2), (4, 6), (0, 8), (0, 4)):
        a(f"v_add_f32 v{R+st[0]}, v{R+st[0]}, v{R+st[1]}")
    xg_reduce(a, "v_add_f32", R, T)
    a(f"buffer_store_dword v{R}, v{T+8}, s[4:7], s20 offen")


def unpack_add(a, dst, src):
    a(f"v_lshlrev_b32 v{src+2}, 16, v{src}")
    a(f"v_and_b32 v{src}, 0xffff0000, v{src}")
    a(f"v_lshlrev_b32 v{src+3}, 16, v{src+1}")
    a(f"v_and_b32 v{src+1}, 0xffff0000, v{src+1}")
    a(f"v_add_f32 v{dst}, v{dst}, v{src+2}")
    a(f"v_add_f32 v{dst+1}, v{dst+1}, v{src}")
    a(f"v_add_f32 v{dst+2}, v{dst+2}, v{src+3}")
    a(f"v_add_f32 v{dst+3}, v{dst+3}, v{src+1}")


def gen_p2(layer):
    name = f"p2l{layer}_kernel"
    XIN = L["X0"] if layer == 0 else L["X2"]
    OIN = L[f"O{layer}"]
    a = Asm(); a.endlabel = f"{name}_end"
    vm = Cnt(a, "vmcnt", 63); lg = Cnt(a, "lgkmcnt", 15)
    header(a, name, 256)
    ts = Stamps(a, name)
    ts(True); ts()
    a("s_load_dwordx2 s[4:5], s[0:1], 80")
    pq_decode(a)
    a("s_lshl_b32 s20, s3, 12")
    a("s_add_u32 s21, s15, s20")
    a(f"s_add_u32 s21, s21, {OIN}")
    a("s_mul_i32 s22, s14, 18432")
    a(f"s_add_u32 s22, s22, {L['WO']}")
    a("s_sub_u32 s22, s22, s59")
    a(f"s_add_u32 s23, s16, {XIN}")
    a("s_add_u32 s24, s23, 18432")
    a("s_mov_b32 m0, s20")
    a("s_waitcnt lgkmcnt(0)")
    a("s_add_u32 s4, s4, s59")
    a("s_addc_u32 s5, s5, 0")
    a("s_and_b32 s5, s5, 0xffff")
    a(f"s_mov_b32 s6, {WS_BYTES}")
    a("s_mov_b32 s7, 0x00020000")
    A = 16; B = 88; ACC = 8; RES = 120; T = 128
    for i in range(4):
        a(f"buffer_load_dwordx4 v3, s[4:7], s21 offen offset:{i*1024} lds"); vm.issue("o")

    def aload(ks):
        if ks and ks % 4 == 0:
            a("s_add_u32 s22, s22, 4096")
        a(f"buffer_load_dwordx4 {vr(A+4*ks,4)}, v3, s[4:7], s22 offen offset:{(ks%4)*1024}"); vm.issue(("a", ks))
    NA0 = int(OPT.get("p2na0", 2)); DA = int(OPT.get("p2da", 10))
    for ks in range(NA0):
        aload(ks)
    ts()
    vm.wait("o")
    ts()
    a("s_barrier")
    ts()
    NB = 4
    a(f"buffer_load_dwordx2 {vr(RES,2)}, v3, s[4:7], s23 offen"); vm.issue("r")
    a(f"buffer_load_dwordx2 {vr(RES+4,2)}, v3, s[4:7], s24 offen"); vm.issue("r")
    for ks in range(NA0, DA):
        aload(ks)

    def rd(ks):
        for n in range(2):
            a(f"ds_read_b128 {vr(B+8*(ks%NB)+4*n,4)}, v3 offset:{n*18432+ks*1024}"); lg.issue(("b", ks))
    for ks in range(NB - 1):
        rd(ks)
    for ks in range(18):
        if ks + DA < 18:
            aload(ks + DA)
        if ks + NB - 1 < 18:
            rd(ks + NB - 1)
        vm.wait(("a", ks))
        lg.wait(("b", ks))
        for n in range(2):
            acc = vr(ACC + 4 * n, 4)
            a(f"v_mfma_f32_16x16x32_bf16 {acc}, {vr(A+4*ks,4)}, {vr(B+8*(ks%NB)+4*n,4)}, {'0' if ks == 0 else acc}")
    a("s_lshl_b32 s25, s2, 6")
    a(f"s_add_u32 s25, s25, {L[f'FL{layer}']}")
    a("s_cmp_eq_u32 s3, 0")
    a(f"s_cselect_b32 s25, s25, {OOB}")
    a("v_lshlrev_b32 v6, 2, v4")
    a("v_mov_b32 v7, 0")
    a("buffer_store_dword v7, v6, s[4:7], s25 offen")
    vm.q = []
    ts()
    unpack_add(a, ACC, RES)
    unpack_add(a, ACC + 4, RES + 4)
    if ts.on:
        a.endlabel = f"{name}_ts"
    pq_epilogue(a, ACC, L[f"X1_{layer}"], L[f"ST1_{layer}"], 36864, 16)
    if ts.on:
        a.label(f"{name}_ts")
        ts()
        a("s_waitcnt vmcnt(0)")
    ts(); ts(True)
    ts.store()
    footer(a, name)
    return name, a.text(), dict(vgpr=128, sgpr=96, accum=128), dict(grid=256, block=576, lds=36864 + 9216)


def gen_p4(layer):
    name = f"p4l{layer}_kernel"
    a = Asm(); a.endlabel = f"{name}_end"
    vm = Cnt(a, "vmcnt", 63)
    header(a, name, 256)
    a("s_load_dwordx2 s[4:5], s[0:1], 80")
    a("s_load_dwordx4 s[24:27], s[0:1], 56")
    a("v_and_b32 v1, 63, v0")
    a("v_lshrrev_b32 v2, 6, v0")
    a("v_readfirstlane_b32 s3, v2")
    a("v_lshlrev_b32 v3, 4, v1")
    a("v_and_b32 v4, 15, v1")
    a("v_lshrrev_b32 v5, 4, v1")
    a("s_mul_i32 s12, s2, 9")
    a("s_add_u32 s12, s12, s3")
    a("s_lshl_b32 s12, s12, 10")
    a("s_and_b32 s13, s2, 1")
    a("s_mul_i32 s14, s13, 9")
    a("s_add_u32 s14, s14, s3")
    a("s_lshl_b32 s21, s14, 6")
    a(f"s_add_u32 s20, s12, {L['PART1'] if 'reuse' in OPT else L[f'PART{layer}']}")
    if "reuse" in OPT:
        a("s_sub_u32 s20, s20, s59")
    a(f"s_add_u32 s22, s12, {L[f'X1_{layer}']}")
    a("v_lshlrev_b32 v6, 3, v5")
    a("s_waitcnt lgkmcnt(0)")
    a("s_add_u32 s4, s4, s59")
    a("s_addc_u32 s5, s5, 0")
    a("s_and_b32 s5, s5, 0xffff")
    a(f"s_mov_b32 s6, {WS_BYTES}")
    a("s_mov_b32 s7, 0x00020000")
    srd(a, 28, 24, D * 2)
    P = 24; ACC = 8; BB = 16
    a(f"buffer_load_dwordx2 {vr(BB,2)}, v6, s[28:31], s21 offen"); vm.issue("r")
    a(f"buffer_load_dwordx2 {vr(BB+2,2)}, v6, s[28:31], s21 offen offset:32"); vm.issue("r")
    a(f"buffer_load_dwordx4 {vr(P,4)}, v3, s[4:7], s22 offen"); vm.issue(("p", 0))
    for s in range(8):
        a(f"buffer_load_dwordx4 {vr(P+4+4*s,4)}, v3, s[4:7], s20 offen"); vm.issue(("p", s + 1))
        a(f"s_add_u32 s20, s20, {XT}")
    a("v_mov_b32 v6, 0x00003f80")
    a("v_mov_b32 v7, 0x3f800000")
    vm.wait("r")
    for j in range(4):
        a(f"v_lshlrev_b32 v{ACC+2*j}, 16, v{BB+j}")
        a(f"v_and_b32 v{ACC+2*j+1}, 0xffff0000, v{BB+j}")
    for s in range(9):
        vm.wait(("p", s))
        for j in range(4):
            a(f"v_dot2c_f32_bf16 v{ACC+2*j}, v{P+4*s+j}, v6")
            a(f"v_dot2c_f32_bf16 v{ACC+2*j+1}, v{P+4*s+j}, v7")
    for j in range(4):
        a(f"v_cvt_pk_bf16_f32 v{16+j}, v{ACC+2*j}, v{ACC+2*j+1}")
    a("s_cmp_lg_u32 s59, 0")
    a(f"s_cbranch_scc1 {name}_fin")
    if True:
        a(f"s_add_u32 s18, s12, {L['X2']}")
        a("buffer_store_dwordx4 v[16:19], v3, s[4:7], s18 offen sc1")
        a(f"v_add_f32 v20, v{ACC}, v{ACC+1}")
        a(f"v_mul_f32 v21, v{ACC}, v{ACC}")
        a(f"v_fmac_f32 v21, v{ACC+1}, v{ACC+1}")
        for j in range(2, 8):
            a(f"v_add_f32 v20, v20, v{ACC+j}")
            a(f"v_fmac_f32 v21, v{ACC+j}, v{ACC+j}")
        a("v_lshlrev_b32 v22, 3, v0")
        a("ds_write_b64 v22, v[20:21]")
        a("s_waitcnt lgkmcnt(0)")
        a("s_barrier")
        a("s_cmp_lg_u32 s3, 0")
        a("s_cbranch_scc1 " + a.endlabel)
        for w in range(9):
            a(f"ds_read_b64 {vr(24+2*w,2)}, v22 offset:{w*512}")
        a("s_waitcnt lgkmcnt(0)")
        for st in ((0, 1), (2, 3), (4, 5), (6, 7), (0, 2), (4, 6), (0, 4), (0, 8)):
            for i in range(2):
                a(f"v_add_f32 v{24+2*st[0]+i}, v{24+2*st[0]+i}, v{24+2*st[1]+i}")
        a("v_mov_b32 v26, v24")
        a("v_mov_b32 v27, v25")
        a("v_permlane16_swap_b32 v24, v26")
        a("v_permlane16_swap_b32 v25, v27")
        a("v_add_f32 v24, v24, v26")
        a("v_add_f32 v25, v25, v27")
        a("v_lshlrev_b32 v22, 5, v4")
        a("v_lshrrev_b32 v5, 1, v5")
        a("v_lshl_add_u32 v22, v5, 3, v22")
        a("s_lshr_b32 s20, s2, 1")
        a("s_lshl_b32 s20, s20, 9")
        a("s_lshl_b32 s21, s13, 4")
        a("s_add_u32 s20, s20, s21")
        a(f"s_add_u32 s20, s20, {L['ST2']}")
        a("buffer_store_dwordx2 v[24:25], v22, s[4:7], s20 offen")
        a("s_endpgm")
        lds = 4608
        a.label(f"{name}_fin")
        srd(a, 8, 26, XT)
        a("v_mul_u32_u24 v6, 1152, v4")
        a("v_lshl_add_u32 v6, v5, 3, v6")
        a("s_lshr_b32 s20, s2, 1")
        a("s_mul_i32 s20, s20, 18432")
        a("s_add_u32 s20, s20, s21")
        a("buffer_store_dwordx2 v[16:17], v6, s[8:11], s20 offen")
        a("buffer_store_dwordx2 v[18:19], v6, s[8:11], s20 offen offset:32")
    footer(a, name)
    return name, a.text(), dict(vgpr=64, sgpr=64, accum=64), dict(grid=256, block=576, lds=lds)


def gen_p3(layer):
    name = f"p3l{layer}_kernel"
    XIN = L[f"X1_{layer}"]; STI = L[f"ST1_{layer}"]; PART = L[f"PART{layer}"]
    HX = L[f"HX{layer}"]; FL = L[f"FL{layer}"]
    if "reuse" in OPT:
        HX = L["HX1"]; PART = L["PART1"]
    a = Asm()
    vm = Cnt(a, "vmcnt", 63); lg = Cnt(a, "lgkmcnt", 15)
    header(a, name, 256)
    ts = Stamps(a, name)
    ts(True); ts()
    BUD = float(OPT.get("p3bud", 7))
    RA = 7
    N0 = int(OPT.get("p3n0", 14))
    PACE0 = int(OPT.get("p3pace0", 1)); PACE1 = int(OPT.get("p3pace1", 3))
    DFLAG = int(OPT.get("p3dflag", 45)); DPOLL = int(OPT.get("p3dpoll", 35)); DCHK = int(OPT.get("p3dchk", 40))
    K1, K3, RI, PV = 8, 10, 12, 14
    T = 16; AB = 32; AC1 = 68; HO = 164; OST = 236; BX = 244
    HP = 144
    a("s_load_dwordx2 s[4:5], s[0:1], 80")
    a("v_and_b32 v1, 63, v0")
    a("v_lshrrev_b32 v2, 6, v0")
    a("v_readfirstlane_b32 s3, v2")
    a("v_lshlrev_b32 v3, 4, v1")
    a("v_add_u32 v4, 0x10000, v3")
    a("v_add_u32 v5, 0x20000, v3")
    a("v_add_u32 v6, 18432, v3")
    a("v_and_b32 v7, 15, v1")
    a("v_lshlrev_b32 v7, 5, v7")
    a("v_lshrrev_b32 v2, 4, v1")
    a("v_lshl_add_u32 v7, v2, 3, v7")
    a("s_and_b32 s12, s2, 7")
    a("s_lshr_b32 s13, s2, 3")
    a("s_lshr_b32 s14, s12, 2")
    a("s_lshl_b32 s14, s14, 3")
    a("s_lshr_b32 s15, s13, 2")
    a("s_add_u32 s14, s14, s15")
    a("s_and_b32 s15, s12, 3")
    a("s_lshl_b32 s15, s15, 2")
    a("s_and_b32 s16, s13, 3")
    a("s_add_u32 s15, s15, s16")
    a("s_lshl_b32 s16, s14, 3")
    a("s_lshl_b32 s17, s3, 1")
    a("s_add_u32 s16, s16, s17")
    a("s_mul_i32 s17, s16, 18432")
    a(f"s_add_u32 s18, s17, {XIN}")
    a("s_mul_i32 s19, s3, 6144")
    a(f"s_mul_i32 s20, s15, {SLB}")
    a("s_add_u32 s20, s20, s19")
    a(f"s_add_u32 s20, s20, {L['W12']}")
    a("s_sub_u32 s20, s20, s59")
    a("s_lshl_b32 s21, s16, 9")
    a(f"s_add_u32 s21, s21, {STI}")
    a("s_lshl_b32 s22, s14, 4")
    a("s_add_u32 s22, s22, s15")
    a("s_lshl_b32 s22, s22, 2")
    a("s_add_u32 s22, s22, s3")
    a("s_xor_b32 s23, s22, 4")
    a("s_mul_i32 s24, s22, 18432")
    a(f"s_add_u32 s24, s24, {HX}")
    a("s_mul_i32 s25, s23, 18432")
    a(f"s_add_u32 s25, s25, {HX}")
    a("s_lshl_b32 s26, s22, 4")
    a(f"s_add_u32 s26, s26, {FL}")
    a("s_lshl_b32 s27, s23, 4")
    a(f"s_add_u32 s27, s27, {FL}")
    a("s_lshr_b32 s28, s15, 1")
    a(f"s_mul_i32 s28, s28, {XT}")
    a("s_add_u32 s28, s28, s17")
    a("s_and_b32 s29, s15, 1")
    a("s_mul_i32 s29, s29, 9216")
    a("s_add_u32 s28, s28, s29")
    a(f"s_add_u32 s28, s28, {PART}")
    a("s_mov_b32 s31, 0")
    if "reuse" in OPT:
        for r in (24, 25, 28):
            a(f"s_sub_u32 s{r}, s{r}, s59")
    a("s_waitcnt lgkmcnt(0)")
    a("s_add_u32 s4, s4, s59")
    a("s_addc_u32 s5, s5, 0")
    a("s_and_b32 s5, s5, 0xffff")
    a(f"s_mov_b32 s6, {WS_BYTES}")
    a("s_mov_b32 s7, 0x00020000")
    for n in range(2):
        a(f"buffer_load_dwordx2 {vr(T+2*n,2)}, v7, s[4:7], s21 offen offset:{n*512}"); vm.issue("st")

    U = []
    for k in range(19):
        for t in range(G0):
            for mh in range(2):
                U.append(("p1", t, k, mh))
    for t in range(G0, 9):
        for k in range(19):
            for mh in range(2):
                U.append(("p1", t, k, mh))
    for hk in range(KO):
        for dt in range(9):
            for mh in range(2):
                U.append(("p2", dt, hk, mh))
    for dt in range(9):
        for hk in range(KO, 18):
            for mh in range(2):
                U.append(("p2", dt, hk, mh))
    NU = len(U)
    assert NU == 666

    def mfma(i, n):
        kind, t, k, mh = U[i]
        if kind == "p1":
            acc = vr(AC1 + 16 * (t % 6) + (2 * mh + n) * 4, 4)
            b = ar((18 * n + k) * 4, 4) if k < 18 else vr(BX + 4 * n, 4)
        else:
            acc = ar(16 * t + (2 * mh + n) * 4, 4)
            b = vr(HO + (2 * k + n) * 4, 4) if k < 9 else ar(HP + (2 * (k - 9) + n) * 4, 4)
        a(f"v_mfma_f32_16x16x32_bf16 {acc}, {vr(AB+4*(i%9),4)}, {b}, {'0' if k == 0 else acc}")

    LQ = []

    def mk_w(c, i):
        def fn():
            if i == 0:
                a(f"s_add_u32 m0, s19, {(c % 6) * 24576}")
            if i == 4:
                a("s_add_u32 m0, m0, 4096")
                a("s_add_u32 s20, s20, 4096")
            if not ("p3nodma" in OPT and c >= 6):
                a(f"buffer_load_dwordx4 v3, s[4:7], s20 offen offset:{(i%4)*1024} lds"); vm.issue(("w", c))
            if i == 5:
                a(f"s_add_u32 s20, s20, {24576-4096}")
        return fn

    def mk_y(k, n):
        def fn():
            a(f"buffer_load_dwordx4 {ar((18*n+k)*4,4)}, {'v6' if n else 'v3'}, s[4:7], s18 offen offset:{(k%4)*1024}"); vm.issue(("y", k))
            if k % 4 == 3 and n == 1:
                a("s_add_u32 s18, s18, 4096")
        return fn
    for c in range(NCHUNK):
        for i in range(6):
            LQ.append((24 * c - RA - 0.5 + i * 0.01, c - 4 if c >= 6 else -1, 2 if i in (0, 5) else (3 if i == 4 else 1), mk_w(c, i), "w"))
    for k in range(18):
        for n in range(2):
            LQ.append((k * G0 * 2 - 0.1 + n * 0.01, -1, 1, mk_y(k, n), "y"))
    LQ.sort(key=lambda x: x[0])
    ny_left = [36]

    def lq_issue():
        it = LQ.pop(0)
        it[3]()
        if it[4] == "y":
            ny_left[0] -= 1
        return it[2]

    for _ in range(N0):
        lq_issue()
    ts()
    kk = math_sqrt(2.0 / PI)
    C1 = -2.0 * kk * LOG2E
    C3 = C1 * 0.044715
    a("v_mov_b32 v7, 0")
    vm.wait("st")
    for sw in ("v_permlane16_swap_b32", "v_permlane32_swap_b32"):
        for r in range(4):
            a(f"v_mov_b32 v{T+4+r}, v{T+r}")
        for r in range(4):
            a(f"{sw} v{T+r}, v{T+4+r}")
        for r in range(4):
            a(f"v_add_f32 v{T+r}, v{T+r}, v{T+4+r}")
    for n in range(2):
        m = T + 2 * n; r = T + 8 + n; t = T + 4 + n; bx = BX + 4 * n
        stats_finish(a, m, m + 1, r, T + 10 + n, t, True)
        a(f"v_rcp_f32 v{RI+n}, v{r}")
        a(f"v_mul_f32 v{K1+n}, {f32(C1)}, v{r}")
        a(f"v_mul_f32 v{K3+n}, v{r}, v{r}")
        a(f"v_mul_f32 v{K3+n}, v{K3+n}, v{r}")
        a(f"v_mul_f32 v{K3+n}, {f32(C3)}, v{K3+n}")
        a(f"v_cvt_pk_bf16_f32 v{t}, v{RI+n}, v{RI+n}")
        a(f"v_and_b32 v{t}, 0xffff0000, v{t}")
        a(f"v_sub_f32 v{t}, v{RI+n}, v{t}")
        a(f"v_cvt_pk_bf16_f32 v{bx}, v{RI+n}, v{t}")
        a(f"v_sub_f32 v{m}, 0, v{m}")
        a(f"v_cvt_pk_bf16_f32 v{bx+1}, v{m}, v{m}")
        a(f"v_and_b32 v{t}, 0xffff0000, v{bx+1}")
        a(f"v_sub_f32 v{t}, v{m}, v{t}")
        a(f"v_cvt_pk_bf16_f32 v{bx+2}, v{t}, v7")
        a(f"v_mov_b32 v{bx+3}, 0")

    EV = {}
    cur = [0]
    slow = []

    def ev(g, cost, fn):
        EV.setdefault(g, []).append((cost, fn))

    def mk(text):
        return lambda: a(text)

    def mk_hstore(q):
        def fn():
            if "p3nox" in OPT:
                hl_done.add(q)
                return
            if q % 4 == 0 and q:
                a("s_add_u32 s24, s24, 4096")
            a(f"buffer_store_dwordx4 {vr(HO+4*q,4)}, v3, s[4:7], s24 offen offset:{(q%4)*1024} sc1"); vm.issue(("hs", q))
            if q % 6 == 5:
                b = q // 6
                g = cur[0] + DFLAG
                ev(g, 3, lambda: flag_store(b))
                ev(g + DPOLL, 1, lambda: poll_issue(b))
                ev(g + DPOLL + DCHK, 4, lambda: poll_check(b))
        return fn

    def flag_store(b):
        a(f"v_mov_b32 v{PV}, {b+1}")
        vm.wait(("hs", 6 * b + 5))
        a("s_mov_b64 exec, 1")
        a(f"buffer_store_dword v{PV}, v7, s[4:7], s26 offen sc1"); vm.issue("fs")
        a("s_mov_b64 exec, -1")

    def poll_issue(b):
        a("s_mov_b64 exec, 1")
        a(f"buffer_load_dword v2, v7, s[4:7], s27 offen sc1"); vm.issue(("pl", b))
        a("s_mov_b64 exec, -1")

    def poll_check(b):
        vm.wait(("pl", b))
        a("v_readfirstlane_b32 s30, v2")
        a(f"s_cmp_gt_u32 s30, {b}")
        a.nf(f"s_cbranch_scc0 {name}_w{b}")
        a.label(f"{name}_r{b}", safe=False)
        slow.append(b)
        for i in range(6):
            ev(cur[0] + 1 + 2 * i, 1, mk_hload(6 * b + i))

    def mk_hload(q):
        def fn():
            if q % 4 == 0 and q:
                a("s_add_u32 s25, s25, 4096")
            a(f"buffer_load_dwordx4 {ar(HP+4*q,4)}, v3, s[4:7], s25 offen offset:{(q%4)*1024} sc1"); vm.issue(("hl", q))
            hl_done.add(q)
        return fn
    hl_done = set()

    SK = float(OPT.get("p3skew", 2.5))
    gel = []

    def add_gelu(t, ready):
        ac = AC1 + 16 * (t % 6)
        for v in range(16):
            n = v // 8; mh = (v // 4) % 2; i = v % 4
            x = ac + (2 * mh + n) * 4 + i; tm = T + v
            ops = [(1, f"v_mul_f32 v{tm}, v{x}, v{x}"), (1, f"v_fma_f32 v{tm}, v{tm}, v{K3+n}, v{K1+n}"), (1, f"v_mul_f32 v{tm}, v{tm}, v{x}"),
                   (2, f"v_exp_f32 v{tm}, v{tm}"), (1, f"v_fma_f32 v{tm}, v{tm}, v{RI+n}, v{RI+n}"), (2, f"v_rcp_f32 v{tm}, v{tm}"),
                   (1, f"v_mul_f32 v{x}, v{x}, v{tm}")]
            if "p3pk" in OPT:
                sel = "op_sel:[0,1,1] op_sel_hi:[1,1,1]" if n else "op_sel_hi:[1,0,0]"
                c = float(OPT["p3pk"])
                if v % 2 == 0:
                    X = vr(x, 2); TM = vr(tm, 2)
                    ops = [(c, f"v_pk_mul_f32 {TM}, {X}, {X}"), (c, f"v_pk_fma_f32 {TM}, {TM}, {vr(K3,2)}, {vr(K1,2)} {sel}"), (c, f"v_pk_mul_f32 {TM}, {TM}, {X}"),
                           (2, f"v_exp_f32 v{tm}, v{tm}"), None, (2, f"v_rcp_f32 v{tm}, v{tm}"), None]
                else:
                    X = vr(x - 1, 2); TM = vr(tm - 1, 2)
                    ops = [None, None, None, (2, f"v_exp_f32 v{tm}, v{tm}"), (c, f"v_pk_fma_f32 {TM}, {TM}, {vr(RI,2)}, {vr(RI,2)} {sel}"),
                           (2, f"v_rcp_f32 v{tm}, v{tm}"), (c, f"v_pk_mul_f32 {X}, {X}, {TM}")]
                for st, o in enumerate(ops):
                    if o is None:
                        continue
                    key = 16 * t + (v | 1) + st * SK + (0.3 if v % 2 else 0)
                    gel.append((key, ready, o[0], mk(o[1]), None))
                ops = []
            if "p3nogelu" in OPT:
                ops = []
            for st, (c, tx) in enumerate(ops):
                gel.append((16 * t + v + st * SK, ready, c, mk(tx), None))
            if v % 2 == 1:
                gel.append((16 * t + v + 6 * SK + 1.2, ready, 1, mk(f"v_cvt_pk_bf16_f32 v{HO+8*t+v//2}, v{x-1}, v{x}"), None))
            if v % 8 == 7:
                q = 2 * t + n
                gel.append((16 * t + v + 6 * SK + 2.4, ready, 1, mk_hstore(q), ("h", q)))
    last_idx = {}
    for i, u in enumerate(U):
        last_idx[u[:2]] = i
    for t in range(9):
        add_gelu(t, last_idx[("p1", t)] + 2)
    gel.sort(key=lambda x: x[0])
    VQ = [(g[1], g[2], g[3], g[4]) for g in gel]
    for dt in range(9):
        rdy = last_idx[("p2", dt)] + 2
        for n in range(2):
            o = OST + 4 * n
            for mh in range(2):
                for i in range(4):
                    VQ.append((rdy, 1, mk(f"v_accvgpr_read_b32 v{T+8*n+4*mh+i}, a{16*dt+(2*mh+n)*4+i}"), None))
            for e in range(4):
                VQ.append((rdy, 1, mk(f"v_cvt_pk_bf16_f32 v{o+e}, v{T+8*n+2*e}, v{T+8*n+2*e+1}"), None))

            def st(n=n, o=o, dt=dt):
                if dt % 4 == 0 and dt and n == 0:
                    a("s_add_u32 s28, s28, 4096")
                a(f"buffer_store_dwordx4 {vr(o,4)}, {'v6' if n else 'v3'}, s[4:7], s28 offen offset:{(dt%4)*1024} sc1"); vm.issue("po")
            VQ.append((rdy, 1, st, None))
    done_tags = set()

    def vq_pop():
        it = VQ.pop(0)
        assert it[0] - 2 < cur[0] + (1 if cur[0] == NU - 1 else 0), (it[0], cur[0])
        it[2]()
        if it[3]:
            done_tags.add(it[3])
        return it[1]

    def dsread(f):
        if "p3nolds" in OPT and f >= 9:
            return
        off = ((f // 24) % 6) * 24576 + (f % 24) * 1024
        base = "v3" if off < 65536 else ("v4" if off < 131072 else "v5")
        a(f"ds_read_b128 {vr(AB+4*(f%9),4)}, {base} offset:{off % 65536}"); lg.issue(("a", f))

    bar_done = [-1]

    def chunk_barrier(c):
        while LQ and LQ[0][0] <= 24 * c - RA:
            lq_issue()
        vm.wait(("w", c))
        a("s_barrier")
        bar_done[0] = c

    ts()
    chunk_barrier(0)
    ts()
    for f in range(RA):
        dsread(f)
    last_lq = -10
    forced = 0
    for i in range(NU):
        cur[0] = i
        kind, t, k, mh = U[i]
        if kind == "p1" and t == 0 and mh == 0 and k < 18:
            while LQ and LQ[0][0] <= i:
                lq_issue()
            vm.wait(("y", k))
        if kind == "p2":
            if k < 9:
                while ("h", 2 * k + 1) not in done_tags:
                    vq_pop(); forced += 1
            else:
                q = 2 * (k - 9) + 1
                while q not in hl_done:
                    g = min(EV)
                    for c, fn in EV.pop(g):
                        fn()
                    forced += 1000
                vm.wait(("hl", q))
        if kind == "p1" and k == 0 and t >= 6:
            while ("h", 2 * (t - 6) + 1) not in done_tags:
                vq_pop(); forced += 1
        if i % 3 == 0:
            lg.wait(("a", min(i + 2, NU - 1)))
        if ts.on and i in (38 * G0, 190, 266, 342, 396, 450, 504, 558, 612):
            ts(); lg.q = []
        mfma(i, 0)
        bud = BUD / 2
        for c, fn in EV.pop(i, []):
            fn(); bud -= c
        pace = PACE0 if ny_left[0] else PACE1
        if LQ and LQ[0][1] <= bar_done[0] and i - last_lq >= pace:
            bud -= lq_issue(); last_lq = i
        while VQ and VQ[0][0] <= i and bud >= VQ[0][1] - 0.5:
            bud -= vq_pop()
        mfma(i, 1)
        if "p3idle" in OPT:
            a(f"s_nop {OPT['p3idle']}")
        bud += BUD / 2 - 1 / 3
        if i + RA < NU:
            if (i + RA) % 24 == 0:
                chunk_barrier((i + RA) // 24); bud -= 2
            dsread(i + RA); bud -= 1
        while VQ and VQ[0][0] <= i and bud >= VQ[0][1] - 0.5:
            bud -= vq_pop()
    assert not EV, EV.keys()
    ts()
    while VQ:
        vq_pop()
    print(name, "forced:", forced, file=sys.stderr)
    ts()
    if ts.on:
        a("s_waitcnt vmcnt(0)")
    ts(); ts(True)
    ts.store()
    a("s_endpgm")
    for b in slow:
        a.label(f"{name}_w{b}")
        a("s_add_u32 s31, s31, 1")
        a("s_cmp_gt_u32 s31, 0x4000")
        a(f"s_cbranch_scc1 {name}_r{b}")
        a("s_sleep 2")
        a(f"buffer_load_dword v2, v7, s[4:7], s27 offen sc1")
        a("s_waitcnt vmcnt(0)")
        a("v_readfirstlane_b32 s30, v2")
        a(f"s_cmp_gt_u32 s30, {b}")
        a(f"s_cbranch_scc0 {name}_w{b}")
        a(f"s_branch {name}_r{b}")
    footer(a, name)
    return name, a.text(), dict(vgpr=512, sgpr=102, accum=256), dict(grid=256, block=256, lds=147456)


def main():
    ks = [gen_p0(), gen_p1(0), gen_p2(0), gen_p3(0), gen_p4(0)]
    allk = [ks[0]] + ks[1:] + [(k[0].replace("l0_", "l1_"), "", k[2], k[3]) for k in ks[1:]]
    seq = allk
    if "seq" in OPT:
        byname = {k[0][:-7]: k for k in allk}
        seq = [byname[n] for n in OPT["seq"].split("+")]
    ref = open(f"cdna_kernels/{NAME}.s.ref").read().split("\n")
    hdr = [ln for ln in ref if ln.startswith(";") and "@launch" not in ln and "Override launch" not in ln and "grid=ceil" not in ln]
    out = hdr[:]
    for name, _, _, g in seq:
        out.append(f"; @launch kernel={name} grid=({g['grid']},1,1) block=({g['block']},1,1) lds={g['lds']}")
    out.append('.amdgcn_target "amdgcn-amd-amdhsa--gfx950"')
    out.append(".text")
    for _, txt, _, _ in ks:
        out.append(txt)
    out.append("code_end:")
    out.append("    s_endpgm")
    out.append('.section .rodata,"a"')
    for name, _, kd, _ in allk:
        out.append(KD.format(name=name, **kd))
    path = sys.argv[1] if len(sys.argv) > 1 else f"cdna_kernels/{NAME}.s"
    open(path, "w").write("\n".join(out))
    json.dump(L, open("layout.json", "w"))
    print("written", path, "ws end", L["END"])


if __name__ == "__main__":
    main()
```

```python
import sys, json, math
from asmb import Asm, KD, vr, ar, sr
from gen import (OPT, NAME, S, D, F, XT, TILE, OOB, WS_BYTES, L, G0, KT, KO, KT2, KO2, BATCH, BSTART, BOF, NCHUNK, SLB, f32, Cnt, Stamps, srd,
                 xg_reduce, stats_finish, gen_p0, w12_roles)

LOG2E = math.log2(math.e)
EX = 147456
CQL = EX + 5 * 3072
CNT = 16384


def gen_main():
    name = "main_kernel"
    a = Asm()
    vm = Cnt(a, "vmcnt", 63); lg = Cnt(a, "lgkmcnt", 15)
    ts = Stamps(a, name)
    XIN = L["X0"]; STI = L["ST0"]; OUT = L["O0"]; X1 = L["X1_0"]; ST1 = L["ST1_0"]
    PART = L["PART0"]; HX = L["HX0"]; FL = L["FL0"]; LSTR = L["LSTR"]
    slowcode = []
    DBL = OPT.get("dbl", "")

    def hst(text, kind, tag=None):
        a(text + " sc1")
        if tag is not None:
            vm.issue(tag)
        if kind in DBL:
            a(text)
            if tag is not None:
                vm.issue(tag)
    REUSE = "reuse" in OPT
    if REUSE:
        PART = L["PART1"]; HX = L["HX1"]

    a.raw(f".globl {name}\n.p2align 8\n.type {name},@function\n{name}:")
    a("s_cmp_ge_u32 s2, 256")
    a(f"s_cbranch_scc1 {name}_end")
    ts(True); ts()
    a("s_load_dwordx2 s[4:5], s[0:1], 80")
    a("s_mov_b32 s59, 0")
    a("s_mov_b32 s57, 0")
    a("v_and_b32 v1, 63, v0")
    a("v_lshrrev_b32 v2, 6, v0")
    a("v_readfirstlane_b32 s3, v2")
    a("v_lshlrev_b32 v3, 4, v1")
    a("s_and_b32 s12, s2, 7")
    a("s_lshr_b32 s13, s2, 3")
    RB = int(OPT.get("rbits", 1))
    CB = 3 - RB
    MB = 4 - CB
    a(f"s_lshr_b32 s8, s12, {CB}")
    a(f"s_lshl_b32 s8, s8, {4 - RB}")
    a(f"s_lshr_b32 s14, s13, {MB}")
    a("s_add_u32 s8, s8, s14")
    a(f"s_and_b32 s9, s12, {(1 << CB) - 1}")
    a(f"s_lshl_b32 s9, s9, {MB}")
    a(f"s_and_b32 s14, s13, {(1 << MB) - 1}")
    a("s_add_u32 s9, s9, s14")
    a("s_lshl_b32 s10, s8, 7")
    a(f"s_add_u32 s10, s10, {FL + CNT}")
    a("s_sub_u32 s11, s10, 128")
    a("s_cmp_eq_u32 s8, 0")
    a("s_cselect_b32 s11, s10, s11")
    a("s_sub_u32 s12, s10, s11")
    a("v_mov_b32 v254, s12")
    a("v_cmp_eq_u32 vcc, 0, v1")
    a("v_cndmask_b32 v254, 0, v254, vcc")

    if "stag" in OPT:
        a(f"s_and_b32 s12, s8, {OPT.get('stagm', 4)}")
        a("s_cmp_eq_u32 s12, 0")
        a(f"s_cbranch_scc1 {name}_nostag")
        for _ in range(int(OPT["stag"])):
            a("s_sleep 36")
        a.label(f"{name}_nostag")
    L2PF = OPT.get("l2pf", "n")

    def l2pf(sreg, off=0, n=4):
        for i in range(n):
            a(f"buffer_load_dwordx4 a[252:255], v3, s[4:7], {sreg} offen offset:{off+i*1024}"); vm.issue("pf")
    CPF = "nocpf" not in OPT
    if CPF:
        a("s_getpc_b64 s[98:99]")
        a.raw(f"{name}_pc:")
        a("s_lshl_b32 s12, s13, 2")
        a("s_add_u32 s12, s12, s3")
        a("s_lshl_b32 s12, s12, 7")
        a("s_add_u32 s98, s98, s12")
        a("s_addc_u32 s99, s99, 0")

    def cpf(expr):
        if CPF:
            a(f"s_mov_b32 s101, {expr}-{name}_pc")
            a("s_load_dword s100, s[98:99], s101")
            a("s_load_dword s100, s[98:99], s101 offset:64")
    LATE = "late" in OPT
    a("s_lshr_b32 s12, s9, 1")
    a("s_lshl_b32 s12, s12, 7")
    a(f"s_add_u32 s12, s12, {FL + CNT + 64 + 2048}")
    a("s_sub_u32 s12, s12, s11")
    a("v_writelane_b32 v254, s12, 2")
    a("s_waitcnt lgkmcnt(0)")
    a("s_and_b32 s5, s5, 0xffff")
    a(f"s_mov_b32 s6, {WS_BYTES}")
    a("s_mov_b32 s7, 0x00020000")
    if LATE:
        a("s_and_b32 s12, s8, 7")
        a("s_cmp_ge_u32 s12, 4")
        a("s_cselect_b32 s13, 1, 0")
        a("s_cmp_eq_u32 s8, 3")
        a("s_cselect_b32 s13, 1, s13")
        a("s_cmp_eq_u32 s13, 0")
        a(f"s_cbranch_scc1 {name}_early")
        a("s_load_dwordx4 s[24:27], s[0:1], 32")
        a("s_load_dwordx2 s[28:29], s[0:1], 48")
        a("s_sub_u32 s12, s8, 3")
        a("s_sub_u32 s13, s8, 7")
        a("s_cmp_ge_u32 s8, 8")
        a("s_cselect_b32 s12, s13, s12")
        a("s_lshl_b32 s31, s12, 4")
        a("s_add_u32 s31, s31, s9")
        a("v_and_b32 v4, 15, v1")
        a("v_lshrrev_b32 v5, 4, v1")
        a("v_lshrrev_b32 v6, 3, v1")
        a("v_and_b32 v7, 7, v1")
        a("v_lshrrev_b32 v11, 2, v1")
        a("v_lshlrev_b32 v11, 7, v11")
        a("v_and_b32 v12, 3, v1")
        a("v_lshl_add_u32 v11, v12, 3, v11")
        a("s_lshl_b32 s38, s3, 5")
        a("v_add_u32 v11, s38, v11")
        a("s_waitcnt lgkmcnt(0)")
        w12_roles(a, name, "s31", lambda: a(f"s_branch {name}_tiled"), lambda k: None, "nt")
        a.label(f"{name}_tiled")
        a("s_lshl_b32 s56, s56, 7")
        a(f"s_add_u32 s56, s56, {FL + CNT + 64 + 2048}")
        a("s_cmp_lg_u32 s3, 0")
        a(f"s_cselect_b32 s56, {OOB}, s56")
        a("v_mov_b32 v2, 1")
        a("v_mov_b32 v4, 0")
        a("s_waitcnt vmcnt(0)")
        a("s_barrier")
        a("s_mov_b64 exec, 1")
        a("buffer_atomic_add v2, v4, s[4:7], s56 offen")
        a("s_mov_b64 exec, -1")
        a.label(f"{name}_early")
    nsync = [0]

    def sync(target, prefetch=None, prev=False, wts=False, waited=False, pre=None):
        k = nsync[0]; nsync[0] += 1
        PFE = OPT.get("pfe", "0000")[k] == "1" and not waited
        PREM = OPT.get("prem", "0000")[k] == "1" or PFE
        if pre and PREM and not (PFE and k == 3):
            pre()
        npe = 0
        if PFE:
            n0 = len(a.out)
            prefetch()
            npe = sum(1 for ln in a.out[n0:] if ln.strip().startswith("buffer_"))
            prefetch = None
            if k == 3:
                PREM = False
        RET = "ret" in OPT
        mask = 3 if prev else (5 if wts else 1)
        a("v_cmp_eq_u32 vcc, 0, v1")
        a("v_cndmask_b32 v252, 0, 1, vcc")
        a(f"v_mov_b32 v255, {target}")
        if wts:
            a("s_cmp_eq_u32 s59, 0")
            a("s_cselect_b32 s58, 18, 0")
            a("v_writelane_b32 v255, s58, 2")
        a("v_sub_u32 v253, v255, v252")
        if not waited:
            a(f"s_waitcnt vmcnt({npe})")
        if ts.on and OPT.get("tsk") == str(k):
            sv = ts.n; ts.n = 16; ts(); ts.n = sv
        a("s_barrier")
        vm.q = []
        if ts.on and OPT.get("tsk") == str(k):
            sv = ts.n; ts.n = 17; ts(); ts.n = sv
        a("s_cmp_lg_u32 s3, 0")
        a(f"s_cbranch_scc1 {name}_sa{k}")
        a(f"s_mov_b64 exec, {mask if RET else 1}")
        a("buffer_atomic_add v252, v254, s[4:7], s11 offen" + (" sc0" if RET else ""))
        if "poll1" in OPT:
            a(f"s_mov_b64 exec, {mask}")
            a("buffer_load_dword v253, v254, s[4:7], s11 offen sc1")
        a("s_mov_b64 exec, -1")
        a.label(f"{name}_sa{k}")
        if pre and not PREM:
            pre()
        n0 = len(a.out)
        if prefetch:
            prefetch()
        npf = sum(1 for ln in a.out[n0:] if ln.strip().startswith("buffer_"))
        if ts.on and OPT.get("tsk") == str(k):
            sv = ts.n; ts.n = 18; ts(); ts.n = sv
        a("s_cmp_lg_u32 s3, 0")
        a(f"s_cbranch_scc1 {name}_sb{k}")
        a(f"s_mov_b64 exec, {mask}")
        if RET or "poll1" in OPT:
            a(f"s_waitcnt vmcnt({npf})")
            a("v_cmp_gt_u32 vcc, v253, v252" if RET else "v_cmp_gt_u32 vcc, v255, v253")
            a("s_nop 4")
            a(f"s_cbranch_vccz {name}_sq{k}")
        if "sl0" in OPT:
            a(f"s_sleep {OPT['sl0']}")
        a.label(f"{name}_sp{k}")
        if "sl1" in OPT:
            a(f"s_sleep {OPT['sl1']}")
        a("buffer_load_dword v252, v254, s[4:7], s11 offen sc1")
        a("s_add_u32 s57, s57, 1")
        a("s_waitcnt vmcnt(0)")
        a("v_cmp_gt_u32 vcc, v255, v252")
        a("s_nop 4")
        a(f"s_cbranch_vccz {name}_sq{k}")
        a("s_cmp_lt_u32 s57, 0x40000")
        a(f"s_cbranch_scc1 {name}_sp{k}")
        a.label(f"{name}_sq{k}")
        a("s_mov_b64 exec, -1")
        a.label(f"{name}_sb{k}")
        a("s_waitcnt vmcnt(0) lgkmcnt(0)")
        if OPT.get("idlek") == str(k):
            for _ in range(int(OPT["idlen"])):
                a("s_sleep 36")
        a("s_barrier")
        vm.q = []; lg.q = []

    def split(fn):
        return fn

    ACC = 16; AB = 88
    RN = 168; RS = 176; CQN = 200; CQH = 220; CQS = 224
    MS = 228; MPA = 232; MPB = 236
    T0 = 200
    WW = 244; AM = 248
    cs = (18 ** -0.5) * LOG2E

    def p1_setup():
        a("v_and_b32 v4, 15, v1")
        a("v_lshrrev_b32 v5, 4, v1")
        a("s_lshl_b32 s16, s8, 3")
        a("s_lshl_b32 s17, s3, 1")
        a("s_add_u32 s17, s17, s16")
        a("s_mul_i32 s18, s17, 18432")
        a(f"s_add_u32 s18, s18, {XIN}")
        a("s_mul_i32 s22, s16, 18432")
        a(f"s_add_u32 s22, s22, {XIN - 18432}")
        a("s_cmp_eq_u32 s8, 0")
        a(f"s_cselect_b32 s22, {OOB}, s22")
        a("s_lshl_b32 s25, s17, 9")
        a(f"s_add_u32 s25, s25, {STI}")
        a("s_lshl_b32 s26, s16, 9")
        a(f"s_add_u32 s26, s26, {STI - 512}")
        a("s_cmp_eq_u32 s8, 0")
        a(f"s_cselect_b32 s26, {OOB}, s26")
        a("s_sub_u32 s23, s25, 512")
        a("s_cmp_eq_u32 s17, 0")
        a(f"s_cselect_b32 s23, {OOB}, s23")
        a("s_lshl_b32 s27, s3, 2")
        a("s_lshr_b32 s28, 0x1654, s27")
        a("s_and_b32 s28, s28, 15")
        a("s_lshr_b32 s27, 0x0632, s27")
        a("s_and_b32 s27, s27, 15")
        a("v_lshlrev_b32 v6, 3, v1")
        a("v_lshlrev_b32 v7, 4, v5")
        a("v_lshlrev_b32 v8, 2, v4")
        a("v_add_u32 v15, 18432, v3")

    def p1_consts():
        a("v_min_u32 v12, 71, v0")
        a("v_lshrrev_b32 v13, 2, v12")
        a("v_lshlrev_b32 v13, 13, v13")
        a("v_and_b32 v12, 3, v12")
        a("v_lshl_add_u32 v13, v12, 8, v13")
        for i in range(4):
            a(f"v_mov_b32 v{ACC+i}, 0x3f803f80")
        a(f"ds_write_b128 v13, {vr(ACC,4)} offset:7168")
        a("v_mov_b32 v9, v3")
        a("s_lshl_b32 s32, s27, 10")
        a("v_add_u32 v10, s32, v3")
        a("s_lshl_b32 s32, s28, 10")
        a("v_add_u32 v11, s32, v3")
        a(f"v_mov_b32 v12, {f32(-1e28)}")
        a("v_lshlrev_b32 v13, 2, v5")
        a("v_sub_u32 v13, v4, v13")
        a("s_cmp_eq_u32 s17, 0")
        a("s_cselect_b32 s33, -100, -2")
        for i in range(4):
            a(f"v_subrev_u32 v14, {i}, v13")
            a("v_and_b32 v2, 1, v14")
            a("v_cmp_eq_u32 s[34:35], 0, v2")
            a("v_cmp_le_i32 vcc, 0, v14")
            a("s_and_b64 vcc, vcc, s[34:35]")
            a(f"v_cndmask_b32 v{MS+i}, v12, 0, vcc")
            a("v_cmp_ge_i32 vcc, -2, v14")
            a("s_and_b64 vcc, vcc, s[34:35]")
            a(f"v_cndmask_b32 v{MPB+i}, v12, 0, vcc")
            a("v_cmp_ge_i32 vcc, s33, v14")
            a("s_and_b64 vcc, vcc, s[34:35]")
            a(f"v_cndmask_b32 v{MPA+i}, v12, 0, vcc")
        a("v_and_b32 v2, 1, v4")
        a("v_cmp_eq_u32 s[30:31], 1, v2")
        a("v_lshlrev_b32 v14, 4, v2")
        a("v_lshlrev_b32 v14, v14, 0xffff" if False else "v_mov_b32 v12, 0xffff")
        a("v_lshlrev_b32 v14, v14, v12")
        a("v_sub_u32 v13, v13, v2")
        for p in range(2):
            a(f"v_cmp_le_i32 vcc, {2*p}, v13")
            a(f"v_cndmask_b32 v{AM+p}, 0, v14, vcc")
            a(f"v_cndmask_b32 v{AM+2+p}, v14, 0, vcc")
        a("s_lshl_b32 s32, s3, 9")
        a(f"s_add_u32 s32, s32, {EX}")
        a("v_add_u32 v12, s32, v8")
        a("v_add_u32 v13, s32, v7")
        if "o" in L2PF:
            a("s_lshr_b32 s58, s2, 3")
            a("s_lshl_b32 s58, s58, 2")
            a("s_add_u32 s58, s58, s3")
            a("s_mul_i32 s58, s58, 5184")
            a(f"s_add_u32 s58, s58, {L['WO']}")
            l2pf("s58")
            a("s_add_u32 s58, s58, 4096")
            l2pf("s58", 0, 1); l2pf("s58", 64, 1)
        for i in range(1, 5):
            a(f"v_add_u32 v{239+i}, {4096*i}, v3")
        a("s_and_b32 s40, s9, 3")
        a("s_and_b32 s41, s40, 1")
        a("s_mul_i32 s42, s40, 9")
        a("s_add_u32 s42, s42, s41")
        a("s_lshr_b32 s42, s42, 1")
        a("s_add_u32 s43, s42, s3")
        a("s_lshr_b32 s46, s40, 1")
        a("s_mul_i32 s46, s46, 9")
        a("s_add_u32 s46, s46, 4")
        a("s_mul_i32 s47, s43, 36864")
        a(f"s_add_u32 s47, s47, {L['WO']}")
        a("s_sub_u32 s47, s47, s59")
        a("s_add_u32 s48, s47, 18432")
        a("s_lshl_b32 s49, s46, 1")
        a("s_add_u32 s49, s49, s3")
        a("s_mul_i32 s49, s49, 18432")
        a(f"s_add_u32 s49, s49, {L['WO']}")
        a("s_sub_u32 s49, s49, s59")
        a("s_cmp_ge_u32 s3, 2")
        a(f"s_cselect_b32 s49, {OOB}, s49")

    def wo_load(j, ks):
        def fn():
            vo = "v3" if ks < 4 else f"v{239 + ks // 4}"
            a(f"buffer_load_dwordx4 {ar((j*18+ks)*4,4)}, {vo}, s[4:7], s{47+j} offen offset:{(ks%4)*1024}"); vm.issue("wo")
        return fn

    def p1_stats_load():
        for n, so, off in ((0, "s25", 0), (1, "s25", 512), (2, "s26", 0), (3, "s23", 0)):
            a(f"buffer_load_dwordx2 {vr(T0+2*n,2)}, v6, s[4:7], {so} offen offset:{off} sc1"); vm.issue("st")

    def p1_stats_math():
        lst = []
        a = lst.append
        for sw in ("v_permlane16_swap_b32", "v_permlane32_swap_b32"):
            for r in range(8):
                a(f"v_mov_b32 v{T0+8+r}, v{T0+r}")
            for r in range(8):
                a(f"{sw} v{T0+r}, v{T0+8+r}")
            for r in range(8):
                a(f"v_add_f32 v{T0+r}, v{T0+r}, v{T0+8+r}")
        for n in range(4):
            b = T0 + 2 * n
            stats_finish(a, b, b + 1, RN + 2 * n, T0 + 12 + n, T0 + 8 + n, False)
            a(f"v_mov_b32 v{RN+2*n+1}, v{b}")
            a(f"ds_write_b32 v12, v{RN+2*n} offset:{n*128}")
            if n < 3:
                a(f"ds_write_b32 v12, v{T0+12+n} offset:{n*128+64}")
        for n in range(3):
            a(f"ds_read_b128 {vr(RS+8*n,4)}, v13 offset:{n*128}")
            a(f"ds_read_b128 {vr(RS+8*n+4,4)}, v13 offset:{n*128+64}")
        a(f"ds_read_b128 {vr(T0+16,4)}, v13 offset:{3*128}")
        return lst

    def p1_ww():
        r = []
        sel = {}
        for ti, base in enumerate((T0 + 16, RS, RS + 8)):
            for p in range(2):
                d = T0 + 2 * ti + p
                r.append(f"v_cndmask_b32 v{d}, v{base+2*p}, v{base+2*p+1}, s[30:31]")
                sel[(ti, p)] = d
        for p in range(2):
            r.append(f"v_cmp_ne_u32 vcc, 0, v{AM+p}")
            for n in range(2):
                r.append(f"v_cndmask_b32 v{WW+2*n+p}, v{sel[(n, p)]}, v{sel[(n+1, p)]}, vcc")
        for n in range(2):
            r.append(f"v_mul_f32 v{T0+6+n}, {f32(cs)}, v{RN+2*n}")
            for p in range(2):
                r.append(f"v_mul_f32 v{WW+2*n+p}, v{WW+2*n+p}, v{T0+6+n}")
        return r

    def reads(ks):
        b = AB + 40 * (ks & 1)
        o = (ks % 8) * 8192
        r = [f"ds_read_b128 {vr(b+28,4)}, v9 offset:{o+7*1024}",
             f"ds_read_b128 {vr(b+32,4)}, v10 offset:{o}",
             f"ds_read_b128 {vr(b+36,4)}, v11 offset:{o}"]
        r += [f"ds_read_b128 {vr(b+4*fr,4)}, v9 offset:{o+fr*1024}" for fr in (0, 1, 2, 3, 6, 4, 5)]
        return r

    def mfmas(ks):
        b = AB + 40 * (ks & 1)
        r = []
        acc = vr(ACC + 64, 4); c = "0" if ks == 0 else acc
        r.append(f"v_mfma_f32_16x16x32_bf16 {acc}, {vr(b+32,4)}, {vr(b+28,4)}, {c}")
        acc = vr(ACC + 68, 4); c = "0" if ks == 0 else acc
        r.append(f"v_mfma_f32_16x16x32_bf16 {acc}, {vr(b+28,4)}, {vr(b+36,4)}, {c}")
        for slot, fr in enumerate((0, 1, 2, 3, 6, 4, 5, 6)):
            for n in range(2):
                acc = vr(ACC + 32 * n + 4 * slot, 4)
                x = ar(72 * n + 4 * ks, 4)
                w = vr(b + 4 * fr, 4)
                c = "0" if ks == 0 else acc
                if slot < 5:
                    r.append(f"v_mfma_f32_16x16x32_bf16 {acc}, {w}, {x}, {c}")
                else:
                    r.append(f"v_mfma_f32_16x16x32_bf16 {acc}, {x}, {w}, {c}")
        return r

    def xloads(ks):
        o = (ks % 4) * 1024
        return [[f"buffer_load_dwordx4 {ar(4*ks,4)}, v3, s[4:7], s18 offen offset:{o} sc1"],
                [f"buffer_load_dwordx4 {ar(72+4*ks,4)}, v15, s[4:7], s18 offen offset:{o} sc1"] + (["s_add_u32 s18, s18, 4096"] if ks % 4 == 3 else [])]

    def do_load(grp, ks):
        for t in grp:
            a(t)
        vm.issue(("k", ks))

    NLOOP = int(OPT.get("nloop", 18))
    SFILL = "nosfill" not in OPT

    def p1_loop(loads, PF, CH, WPS, LATE2):
        for t in reads(0):
            a(t)
        a("s_waitcnt lgkmcnt(0)")
        wo_early = [(-1, wo_load(2, ks)) for ks in range(18)] + [(ks, wo_load(j, ks)) for ks in range(18) for j in range(2)]
        wo_early = wo_early[:NLOOP]
        sfl = p1_stats_math() if SFILL else []
        for ks in range(18):
            m = mfmas(ks)
            nxt = ks + 1
            rd = []
            if not CH:
                vm.wait(("k", ks))
            if nxt < 18:
                if CH and nxt % CH == 0:
                    vm.wait(("k", min(nxt + CH - 1, 17)))
                    a("s_barrier")
                if nxt % 8 == 0:
                    a("v_add_u32 v9, 0x10000, v9")
                    a("v_add_u32 v10, 0x10000, v10")
                    a("v_add_u32 v11, 0x10000, v11")
                rd = reads(nxt)
            else:
                a("s_lshl_b32 s32, s27, 6")
                a(f"s_add_u32 s32, s32, {CQL}")
                a("v_add_u32 v12, s32, v7")
                a("s_lshl_b32 s33, s28, 6")
                a(f"s_add_u32 s33, s33, {CQL}")
                a("v_add_u32 v13, s33, v8")
                a("s_mov_b32 s34, 0x00010001")
                a("s_mov_b32 s35, 0x00010001")
            ld = loads(ks + PF) if ks + PF < 18 else []
            fl = []
            if SFILL and 1 <= ks < 16:
                fl = sfl[:16]; del sfl[:16]
            if ks == 16:
                assert not sfl
            if ks == 16:
                fl = p1_ww()
            if ks == 17:
                fl = [f"v_mov_b32 v{88+4*i+3}, 0" for i in range(10)]
            for i, t in enumerate(m):
                a(t)
                if i < len(rd):
                    a(rd[i])
                if fl and not (ks == 17 and i == 10):
                    a(fl.pop(0))
                if i >= 10 and (i - 10) % 2 == 0:
                    if (i - 10) // 2 < len(ld):
                        do_load(ld[(i - 10) // 2], ks + PF)
                    elif wo_early and wo_early[0][0] < ks and (i - 10) // 2 < (4 if ks + PF >= 18 else WPS):
                        wo_early.pop(0)[1]()
                if 2 <= i < 10 and i % 2 == 0 and ks + PF >= 18 and wo_early and wo_early[0][0] < ks and LATE2:
                    wo_early.pop(0)[1]()
                if ks == 17 and i == 10:
                    a("s_mov_b64 exec, s[34:35]")
                    a(f"ds_write_b128 v12, {vr(ACC+64,4)}")
                    a("s_mov_b64 exec, 0xffff")
                    a(f"ds_write_b32 v13, v{ACC+68}")
                    a("s_mov_b64 exec, -1")
            for t in fl:
                a(t)
            a("s_waitcnt lgkmcnt(0)")
        print("wo left after loop:", len(wo_early), file=sys.stderr)
        while wo_early:
            wo_early.pop(0)[1]()

    a.label(f"{name}_p1a")
    p1_setup()
    a(f"s_mul_i32 s20, s9, {18*7168}")
    a("s_lshl_b32 s21, s3, 11")
    a("s_add_u32 s20, s20, s21")
    a(f"s_add_u32 s20, s20, {L['WQ']}")
    a("s_sub_u32 s20, s20, s59")
    a("s_sub_u32 s22, s22, 1024")
    a("s_mov_b32 s52, 7168")
    a("s_mov_b32 s44, 0xfffefffe")
    a("s_cmp_eq_u32 s3, 3")
    a("s_cselect_b32 s22, s22, s20")
    a("s_cselect_b32 s52, 1024, s52")
    a("s_cselect_b32 s44, s44, -1")
    a("s_mov_b32 s45, s44")
    a("s_mov_b32 s24, s21")
    p1_stats_load()

    def loads_a(ks):
        return [["s_mov_b32 m0, s24", "s_add_u32 s24, s24, 8192", "buffer_load_dwordx4 v3, s[4:7], s20 offen lds", "s_add_u32 s20, s20, 7168"],
                ["s_mov_b64 exec, s[44:45]", "buffer_load_dwordx4 v3, s[4:7], s22 offen offset:1024 lds", "s_mov_b64 exec, -1",
                 "s_add_u32 s22, s22, s52"]] + xloads(ks)
    for ks in range(2):
        for grp in loads_a(ks):
            do_load(grp, ks)
    p1_consts()
    for ks in range(2, 4):
        for grp in loads_a(ks):
            do_load(grp, ks)
    if not SFILL:
        vm.wait("st")
        for t in p1_stats_math():
            a(t)
    for grp in loads_a(4):
        do_load(grp, 4)
    vm.wait(("k", 1))
    a("s_waitcnt lgkmcnt(0)")
    a("s_barrier")
    ts()
    p1_loop(loads_a, 5, 2, 0, True)

    a.label(f"{name}_epi")
    vm.q = ["wo"] * 18
    ts.n = 3
    ts()
    a("s_barrier")
    if "w" in L2PF:
        a("s_and_b32 s58, s8, 7")
        a("s_lshl_b32 s58, s58, 2")
        a("s_add_u32 s58, s58, s3")
        a("s_lshl_b32 s58, s58, 12")
        a(f"s_mul_i32 s29, s9, {SLB}")
        a("s_add_u32 s29, s29, s58")
        a(f"s_add_u32 s29, s29, {L['W12']}")
        a("s_sub_u32 s29, s29, s59")
        l2pf("s29")
    a(f"v_add_u32 v9, {CQL}, v7")
    a(f"v_add_u32 v10, {CQL}, v8")
    for i, fr in enumerate((0, 1, 2, 3, 6)):
        a(f"ds_read_b128 {vr(CQN+4*i,4)}, v9 offset:{fr*64}")
    a(f"ds_read_b128 {vr(CQH,4)}, v12")
    for i, fr in enumerate((4, 5, 6)):
        a(f"ds_read_b32 v{CQS+i}, v10 offset:{fr*64}")
    a(f"ds_read_b32 v{CQS+3}, v13")
    NBG = int(OPT.get("nbg", 30))
    wo_rest = [wo_load(j, ks) for ks in range(18) for j in range(2)][NLOOP - 18:]
    a.bg = wo_rest[:NBG]; wo_rest = wo_rest[NBG:]
    a.bg_every = int(OPT.get("bgevery", 8))
    KF = 88; QF = 112; VF = 128; ONE = 148; T = 152
    for i in range(4):
        a(f"v_mul_f32 v{ACC+68+i}, v{ACC+68+i}, v{RS+16+i}")
    for n in (1, 0):
        for j in range(5, 8):
            for i in range(4):
                a(f"v_mul_f32 v{ACC+32*n+4*j+i}, v{ACC+32*n+4*j+i}, v{RS+8*n+i}")

    def corr_n(acc, n, cq):
        for i in range(4):
            a(f"v_fma_f32 v{acc+i}, -v{RN+2*n+1}, v{cq+i}, v{acc+i}")

    def corr_s(acc, n, cq):
        for i in range(4):
            a(f"v_fma_f32 v{acc+i}, -v{RS+8*n+4+i}, v{cq}, v{acc+i}")

    def pack2(dst, acc):
        a(f"v_cvt_pk_bf16_f32 v{dst}, v{acc}, v{acc+1}")
        a(f"v_cvt_pk_bf16_f32 v{dst+1}, v{acc+2}, v{acc+3}")

    a("v_cmp_eq_u32 s[36:37], 0, v5")
    a("v_cmp_eq_u32 s[38:39], 1, v5")
    a("v_lshlrev_b32 v12, 3, v1")
    a("s_mul_i32 s32, s3, 3072")
    a(f"s_add_u32 s33, s32, {EX}")
    a("v_add_u32 v13, s33, v12")
    a("s_lshl_b32 s32, s3, 9")
    a(f"s_add_u32 s32, s32, {EX}")
    a("s_cmp_eq_u32 s3, 3")
    a(f"s_cselect_b32 s32, {EX+4*3072}, s32")
    a("v_add_u32 v14, s32, v12")
    a("s_waitcnt lgkmcnt(0)")

    def conv_tile(n):
        ac = ACC + 32 * n
        tl = n + 1
        for i in range(5):
            corr_n(ac + 4 * i, n, CQN + 4 * i)
        for h in range(2):
            pack2(QF + (2 * n + h) * 4, ac + 4 * h)
            pack2(KF + (2 * tl + h) * 4, ac + 8 + 4 * h)
        pack2(T + 8 + 2 * n, ac + 16)
        for h in range(2):
            a(f"v_mov_b32 v{KF+(2*tl+h)*4+2}, v{T+8+2*n+1}")
            a(f"v_cndmask_b32 v{QF+(2*n+h)*4+2}, 0, v{T+8+2*n}, s[{36+2*h}:{37+2*h}]")
        for h in range(3):
            corr_s(ac + 20 + 4 * h, n, CQS + h)
            pack2(VF + 6 * h + 2 * tl, ac + 20 + 4 * h)

    corr_n(ACC + 64, 2, CQH)
    corr_s(ACC + 68, 2, CQS + 3)
    pack2(T + 12, ACC + 64)
    pack2(T + 14, ACC + 68)
    a(f"ds_write_b64 v14, {vr(T+12,2)}")
    a(f"ds_write_b64 v14, {vr(T+14,2)} offset:1536")
    conv_tile(1)
    a(f"ds_write_b64 v13, {vr(KF+16,2)} offset:{3072}")
    a(f"ds_write_b64 v13, {vr(KF+20,2)} offset:{3072+512}")
    a(f"ds_write_b64 v13, {vr(T+10,2)} offset:{3072+1024}")
    for h in range(3):
        a(f"ds_write_b64 v13, {vr(VF+6*h+4,2)} offset:{3072+1536+512*h}")
    conv_tile(0)
    for i in range(4):
        a(f"v_mov_b32 v{ONE+i}, 0x3f803f80")
    a("s_waitcnt lgkmcnt(0)")
    a("s_barrier")
    a(f"ds_read_b64 {vr(KF,2)}, v13")
    a(f"ds_read_b64 {vr(KF+4,2)}, v13 offset:512")
    a(f"ds_read_b32 v{KF+2}, v13 offset:{1024+4}")
    a(f"ds_read_b32 v{KF+6}, v13 offset:{1024+4}")
    for h in range(3):
        a(f"ds_read_b64 {vr(VF+6*h,2)}, v13 offset:{1536+512*h}")
    SB = 16; PB = 48; MX = 64; OB = 168; OO = 72
    jobs = [(1, 0), (1, 1), (0, 0), (0, 1)]
    for j, (n, h) in enumerate(jobs):
        if j == 2:
            a("s_waitcnt lgkmcnt(0)")
        q = vr(QF + (2 * n + h) * 4, 4)
        mp = MPA if n == 0 else MPB
        a(f"v_mfma_f32_16x16x32_bf16 {vr(SB+8*j,4)}, {vr(KF+(2*n+h)*4,4)}, {q}, {vr(mp,4)}")
        a(f"v_mfma_f32_16x16x32_bf16 {vr(SB+8*j+4,4)}, {vr(KF+(2*(n+1)+h)*4,4)}, {q}, {vr(MS,4)}")
    a("s_mul_i32 s32, s17, 18432")
    a("s_lshl_b32 s33, s9, 10")
    a("s_add_u32 s33, s33, s32")
    a(f"s_add_u32 s33, s33, {OUT}")
    a("s_add_u32 s34, s33, 18432")
    a("s_lshr_b32 s35, s9, 3")
    a("s_lshl_b32 s35, s35, 10")
    a("s_and_b32 s36, s9, 7")
    a("s_lshl_b32 s36, s36, 7")
    a("s_add_u32 s35, s35, s36")
    a("s_add_u32 s35, s35, s32")
    a(f"s_add_u32 s35, s35, {OUT + 16*1024}")
    a("s_add_u32 s36, s35, 18432")
    for j, (n, h) in enumerate(jobs):
        s = SB + 8 * j
        for p in range(2):
            a(f"v_max3_f32 v{s+2*p}, v{s+2*p}, v{s+2*p+1}, v{s+4+2*p}")
        for p in range(2):
            a(f"v_max_f32 v{s+2*p}, v{s+2*p}, v{s+5+2*p}")
        for p in range(2):
            a(f"v_mul_f32 v{s+2*p}, v{s+2*p}, v{WW+2*n+p}")
        a(f"v_max_f32 v{MX+2*j}, v{s}, v{s+2}")
    for sw in ("v_permlane16_swap_b32", "v_permlane32_swap_b32"):
        for j in range(4):
            a(f"v_mov_b32 v{MX+2*j+1}, v{MX+2*j}")
        for j in range(4):
            a(f"{sw} v{MX+2*j}, v{MX+2*j+1}")
        for j in range(4):
            a(f"v_max_f32 v{MX+2*j}, v{MX+2*j}, v{MX+2*j+1}")
    for j in range(4):
        for p in range(2):
            a(f"v_sub_f32 v{SB+8*j+2*p}, v{SB+8*j+2*p}, v{MX+2*j}")
    for j in range(4):
        for p in range(2):
            a(f"v_exp_f32 v{SB+8*j+2*p}, v{SB+8*j+2*p}")
    for j, (n, h) in enumerate(jobs):
        s = SB + 8 * j
        for p in range(2):
            a(f"v_cvt_pk_bf16_f32 v{s+2*p}, v{s+2*p}, v{s+2*p}")
        for p in range(2):
            a(f"v_and_b32 v{PB+4*j+p}, v{s+2*p}, v{AM+2+p}")
            a(f"v_and_b32 v{PB+4*j+2+p}, v{s+2*p}, v{AM+p}")
        p = vr(PB + 4 * j, 4)
        a(f"v_mfma_f32_16x16x32_bf16 {vr(OB+12*j+8,4)}, {vr(ONE,4)}, {p}, 0")
        a(f"v_mfma_f32_16x16x32_bf16 {vr(OB+12*j,4)}, {vr(VF+6*h+2*n,4)}, {p}, 0")
        a(f"v_mfma_f32_16x16x32_bf16 {vr(OB+12*j+4,4)}, {vr(VF+12+2*n,4)}, {p}, 0")
    wo_rest = a.bg + wo_rest
    a.bg = []
    a("v_lshlrev_b32 v12, 3, v4")
    a("v_mov_b32 v13, 0x40000000")
    a("v_cmp_eq_u32 vcc, 2, v5")
    a("v_cndmask_b32 v12, v13, v12, vcc")
    for j, (n, h) in enumerate(jobs):
        o = OB + 12 * j
        a(f"v_rcp_f32 v{o+8}, v{o+8}")
        for i in range(4):
            a(f"v_mul_f32 v{o+i}, v{o+i}, v{o+8}")
        a(f"v_mul_f32 v{o+4+2*h}, v{o+4+2*h}, v{o+8}")
        a(f"v_mul_f32 v{o+5+2*h}, v{o+5+2*h}, v{o+8}")
        a(f"v_cvt_pk_bf16_f32 v{OO+4*n+2*h}, v{o}, v{o+1}")
        a(f"v_cvt_pk_bf16_f32 v{OO+4*n+2*h+1}, v{o+2}, v{o+3}")
        a(f"v_cvt_pk_bf16_f32 v{OO+8+2*n+h}, v{o+4+2*h}, v{o+5+2*h}")
        if h == 1:
            hst(f"buffer_store_dwordx4 {vr(OO+4*n,4)}, v3, s[4:7], s{33+n} offen", "o")
            hst(f"buffer_store_dwordx2 {vr(OO+8+2*n,2)}, v12, s[4:7], s{35+n} offen", "o")
    ts()

    OL = 98304
    PA = 16; PBB = 40; RES = 88
    NPRE = int(OPT.get("npre", 4))

    CF = int(OPT.get("cf", 24)); NS = 144 // CF; PW = CF // 4; NCH = (702 + CF - 1) // CF
    LASTB = ((PW - 1) // 4) * 4096
    NPRE = NPRE * 24 // CF

    def mk_w(c, i):
        def fn():
            if i == 0:
                a(f"s_add_u32 m0, s54, {(c % NS) * CF * 1024}")
                a(f"s_add_u32 s55, s55, {CF*1024-LASTB}")
            elif i % 4 == 0:
                a("s_add_u32 m0, m0, 4096")
                a("s_add_u32 s55, s55, 4096")
            if not ("nodma" in OPT and c >= 6):
                a(f"buffer_load_dwordx4 v3, s[4:7], s55 offen offset:{(i%4)*1024} {OPT.get('wsc', 'sc1')} lds"); vm.issue(("w", c))
        return fn
    WPRE = [mk_w(c, i) for c in range(NPRE) for i in range(PW)]
    NW2 = int(OPT.get("nw2", 18))

    def p2_pre():
        a(f"s_mul_i32 s54, s3, {PW*1024}")
        a(f"s_mul_i32 s55, s9, {SLB}")
        a("s_add_u32 s55, s55, s54")
        a(f"s_add_u32 s55, s55, {L['W12'] - (CF*1024-LASTB)}")
        a("s_sub_u32 s55, s55, s59")
        a("s_lshr_b32 s12, s9, 2")
        a("s_lshl_b32 s13, s8, 3")
        a("s_lshl_b32 s14, s12, 1")
        a("s_add_u32 s13, s13, s14")
        a("s_mul_i32 s15, s13, 18432")
        a("s_lshl_b32 s16, s43, 10")
        a("s_add_u32 s16, s16, s15")
        a("s_lshl_b32 s17, s46, 10")
        a("s_add_u32 s17, s17, s15")
        a("s_mul_i32 s18, s41, 18432")
        a("s_add_u32 s17, s17, s18")
        a(f"s_add_u32 s19, s16, {XIN}")
        a("s_lshl_b32 s20, s3, 3")
        a("s_add_u32 s20, s20, s17")
        a(f"s_add_u32 s20, s20, {XIN}")
        a("s_cmp_ge_u32 s3, 2")
        a(f"s_cselect_b32 s20, {OOB}, s20")
        a("s_mul_i32 s21, s3, 9216")
        a("s_add_u32 s22, s15, s21")
        a(f"s_add_u32 s22, s22, {OUT}")
        a(f"s_add_u32 s21, s21, {OL}")
        a(f"v_add_u32 v9, {OL}, v3")
        a("v_add_u32 v10, s18, v9")
        a(f"v_add_u32 v7, {OL + 16384}, v6")
        a("v_add_u32 v8, 18432, v7")
        a("v_add_u32 v14, s18, v7")

    def p2_prefetch():
        cpf(f"{name}_c0")
        a(f"buffer_load_dwordx4 {vr(RES,4)}, v3, s[4:7], s19 offen sc1")
        a(f"buffer_load_dwordx4 {vr(RES+4,4)}, v15, s[4:7], s19 offen sc1")
        a(f"buffer_load_dwordx2 {vr(RES+8,2)}, v3, s[4:7], s20 offen sc1")
        for fn in wo_rest:
            fn()
        if not LATE:
            for _ in range(int(OPT.get("nw1", 0))):
                WPRE.pop(0)()
    sync(16, p2_prefetch, wts=LATE, pre=p2_pre)
    ts()
    a("s_mov_b32 m0, s21")
    for i in range(9):
        a(f"buffer_load_dwordx4 v3, s[4:7], s22 offen offset:{(i%3)*1024} sc1 lds")
        if i % 3 == 2 and i < 8:
            a("s_add_u32 s22, s22, 3072")
            a("s_add_u32 m0, m0, 3072")
    for n in range(2):
        for mh in range(2):
            ac = PA + (2 * mh + n) * 4; r = RES + 4 * n + 2 * mh
            a(f"v_lshlrev_b32 v{ac}, 16, v{r}")
            a(f"v_and_b32 v{ac+1}, 0xffff0000, v{r}")
            a(f"v_lshlrev_b32 v{ac+2}, 16, v{r+1}")
            a(f"v_and_b32 v{ac+3}, 0xffff0000, v{r+1}")
    a(f"v_lshlrev_b32 v{PA+16}, 16, v{RES+8}")
    a(f"v_and_b32 v{PA+17}, 0xffff0000, v{RES+8}")
    a(f"v_lshlrev_b32 v{PA+18}, 16, v{RES+9}")
    a(f"v_and_b32 v{PA+19}, 0xffff0000, v{RES+9}")
    a(f"s_add_u32 s19, s16, {X1}")
    a(f"s_add_u32 s20, s17, {X1}")
    a("s_cmp_lg_u32 s3, 2")
    a(f"s_cselect_b32 s20, {OOB}, s20")
    a("s_and_b32 s26, s3, 1")
    a("s_cmp_eq_u32 s41, 0")
    a("s_cselect_b32 s23, 1.0, 0")
    a("s_cselect_b32 s24, 0, 1.0")
    a("s_lshl_b32 s25, s3, 10")
    a(f"s_add_u32 s25, s25, {EX}")
    a("v_add_u32 v11, s25, v3")
    a("s_lshl_b32 s25, s26, 3")
    a(f"s_add_u32 s25, s25, {EX}")
    a("v_add_u32 v12, s25, v3")
    a(f"v_add_u32 v124, {EX + 4096}, v3")
    a("s_lshl_b32 s25, s26, 3")
    a("s_lshr_b32 s27, s3, 1")
    a("s_lshl_b32 s27, s27, 10")
    a("s_add_u32 s25, s25, s27")
    a("v_add_u32 v125, s25, v124")
    a("s_add_u32 s25, s13, s26")
    a("s_lshl_b32 s25, s25, 9")
    a("s_lshl_b32 s27, s40, 7")
    a("s_add_u32 s25, s25, s27")
    a(f"s_add_u32 s25, s25, {ST1}")
    a("s_cmp_ge_u32 s3, 2")
    a(f"s_cselect_b32 s25, {OOB}, s25")
    a("v_mov_b32 v13, 0x40000000")
    a("v_cmp_eq_u32 vcc, 0, v5")
    a("v_cndmask_b32 v13, v13, v6, vcc")
    a("s_waitcnt vmcnt(0)")
    a("s_barrier")
    NB = 4

    def rd2(ks):
        b = PBB + 12 * (ks % NB)
        if ks >= 16:
            o0 = (ks - 16) * 128
            return [f"ds_read2_b64 {vr(b+4*e,4)}, {ad} offset0:{o0} offset1:{o0+64}" for e, ad in enumerate(("v7", "v8", "v14"))]
        return [f"ds_read_b128 {vr(b,4)}, v9 offset:{ks*1024}", f"ds_read_b128 {vr(b+4,4)}, v9 offset:{18432+ks*1024}",
                f"ds_read_b128 {vr(b+8,4)}, v10 offset:{ks*1024}"]
    for ks in range(NB - 1):
        for t in rd2(ks):
            a(t); lg.issue(("b", ks))
    lg.wait(("b", 0))
    for ks in range(18):
        rr = rd2(ks + NB - 1) if ks + NB - 1 < 18 else []
        b = PBB + 12 * (ks % NB)
        mm = []
        for mh in range(2):
            for n in range(2):
                acc = vr(PA + (2 * mh + n) * 4, 4)
                mm.append(f"v_mfma_f32_16x16x32_bf16 {acc}, {ar((mh*18+ks)*4,4)}, {vr(b+4*n,4)}, {acc}")
        acc = vr(PA + 16, 4)
        mm.append(f"v_mfma_f32_16x16x32_bf16 {acc}, {ar((36+ks)*4,4)}, {vr(b+8,4)}, {acc}")
        for i, t in enumerate(mm):
            a(t)
            if i < len(rr):
                a(rr[i]); lg.issue(("b", ks + NB - 1))
            if i == 3 and ks < NW2:
                WPRE.pop(0)()
            if i == 4 and ks < 17:
                lg.wait(("b", ks + 1))
    O2 = 100
    for n in range(2):
        for mh in range(2):
            ac = PA + (2 * mh + n) * 4
            a(f"v_cvt_pk_bf16_f32 v{O2+4*n+2*mh}, v{ac}, v{ac+1}")
            a(f"v_cvt_pk_bf16_f32 v{O2+4*n+2*mh+1}, v{ac+2}, v{ac+3}")
        hst(f"buffer_store_dwordx4 {vr(O2+4*n,4)}, {'v15' if n else 'v3'}, s[4:7], s19 offen", "y")
    a(f"v_cvt_pk_bf16_f32 v{O2+8}, v{PA+16}, v{PA+17}")
    a(f"v_cvt_pk_bf16_f32 v{O2+9}, v{PA+18}, v{PA+19}")
    a(f"ds_write_b64 v125, {vr(O2+8,2)}")
    SS = 112

    def sumsq(dst, regs):
        a(f"v_add_f32 v{dst}, v{regs[0]}, v{regs[1]}")
        a(f"v_mul_f32 v{dst+1}, v{regs[0]}, v{regs[0]}")
        a(f"v_fmac_f32 v{dst+1}, v{regs[1]}, v{regs[1]}")
        for r in regs[2:]:
            a(f"v_add_f32 v{dst}, v{dst}, v{r}")
            a(f"v_fmac_f32 v{dst+1}, v{r}, v{r}")
    for n in range(2):
        sumsq(SS + 2 * n, [PA + (2 * mh + n) * 4 + i for mh in range(2) for i in range(4)])
    sumsq(SS + 4, [PA + 16 + i for i in range(4)])
    for n in range(2):
        a(f"v_fmac_f32 v{SS+2*n}, s{23+n}, v{SS+4}")
        a(f"v_fmac_f32 v{SS+2*n+1}, s{23+n}, v{SS+5}")
    a(f"ds_write_b128 v11, {vr(SS,4)}")
    a("s_waitcnt lgkmcnt(0)")
    a("s_barrier")
    a(f"ds_read_b128 {vr(128,4)}, v124")
    for w in range(4):
        a(f"ds_read_b64 {vr(132+2*w,2)}, v12 offset:{w*1024}")
    a("s_waitcnt lgkmcnt(4)")
    hst(f"buffer_store_dwordx4 {vr(128,4)}, v3, s[4:7], s20 offen", "y")
    a("s_waitcnt lgkmcnt(0)")
    for i in range(2):
        a(f"v_add_f32 v{132+i}, v{132+i}, v{134+i}")
        a(f"v_add_f32 v{136+i}, v{136+i}, v{138+i}")
    for i in range(2):
        a(f"v_add_f32 v{132+i}, v{132+i}, v{136+i}")
    for sw in ("v_permlane16_swap_b32", "v_permlane32_swap_b32"):
        for i in range(2):
            a(f"v_mov_b32 v{134+i}, v{132+i}")
        for i in range(2):
            a(f"{sw} v{132+i}, v{134+i}")
        for i in range(2):
            a(f"v_add_f32 v{132+i}, v{132+i}, v{134+i}")
    a("buffer_store_dwordx2 v[132:133], v13, s[4:7], s25 offen sc1")
    ts()

    BUD = float(OPT.get("p3bud", 7))
    NAB = int(OPT.get("nab", 13)); RA = NAB - 2; NSL = 6 if NAB <= 9 else 5
    WE = int(OPT.get("we", 3))
    N0 = int(OPT.get("p3n0", 12))
    PACE0 = int(OPT.get("p3pace0", 1)); PACE1 = int(OPT.get("p3pace1", 3))
    DFLAG = int(OPT.get("p3dflag", 35)); DPOLL = int(OPT.get("p3dpoll", 30)); DCHK = int(OPT.get("p3dchk", 35))
    K1, K3, RI, PV = 8, 10, 12, 14
    T = 16; AB3 = 32; AC1 = 164 - 16 * NSL; HO = 164; OST = 236; BX = 244
    assert AB3 + 4 * NAB <= AC1
    HP = 144

    def p3_pre():
        a("v_add_u32 v4, 0x10000, v3")
        a("v_add_u32 v5, 0x20000, v3")
        a("v_mov_b32 v7, v6")
        a("s_and_b32 s29, s9, 1")
        a("s_mul_i32 s16, s29, 18432")
        a("v_add_u32 v14, s16, v3")
        a("s_sub_u32 s16, 18432, s16")
        a("v_add_u32 v6, s16, v3")
        a("v_lshlrev_b32 v15, 6, v1")
        a("s_lshl_b32 s16, s8, 3")
        a("s_lshl_b32 s17, s3, 1")
        a("s_add_u32 s16, s16, s17")
        a("s_mul_i32 s17, s16, 18432")
        a(f"s_add_u32 s18, s17, {X1}")
        a("s_add_u32 s21, s16, s29")
        a("s_lshl_b32 s21, s21, 9")
        a(f"s_add_u32 s21, s21, {ST1}")
        a("s_xor_b32 s19, s21, 512")
        a("s_lshl_b32 s22, s8, 4")
        a("s_add_u32 s22, s22, s9")
        a("s_lshl_b32 s22, s22, 2")
        a("s_add_u32 s22, s22, s3")
        a("s_mul_i32 s24, s22, 18432")
        a(f"s_add_u32 s24, s24, {HX}")
        for r, d in ((1, 25), (2, 34), (3, 35)):
            a(f"s_xor_b32 s23, s22, {4*r}")
            a(f"s_mul_i32 s{d}, s23, 18432")
            a(f"s_add_u32 s{d}, s{d}, {HX}")
        a("s_lshl_b32 s26, s22, 4")
        a(f"s_add_u32 s26, s26, {FL}")
        a("s_andn2_b32 s27, s26, 192")
        a("s_lshr_b32 s28, s9, 2")
        a(f"s_mul_i32 s28, s28, {XT}")
        a("s_add_u32 s28, s28, s17")
        a(f"s_add_u32 s28, s28, {PART}")
        a("s_lshl_b32 s36, s46, 10")
        a("s_add_u32 s36, s36, s28")
        a("s_lshl_b32 s23, s42, 10")
        a("s_add_u32 s28, s28, s23")
        if REUSE:
            for r in (24, 25, 28):
                a(f"s_sub_u32 s{r}, s{r}, s59")
        a("s_and_b32 s58, s8, 7")
        a("s_lshl_b32 s58, s58, 2")
        a("s_add_u32 s58, s58, s3")
        a("s_lshl_b32 s58, s58, 12")
        a(f"s_mul_i32 s32, s9, {SLB}")
        a("s_add_u32 s32, s32, s58")
        a(f"s_add_u32 s32, s32, {L['W12'] + 131072}")
        a("s_sub_u32 s32, s32, s59")
        if "W" in L2PF:
            l2pf("s32")
        a(f"s_mul_i32 s33, s9, {18*7168}")
        a("s_add_u32 s33, s33, s58")
        a(f"s_add_u32 s33, s33, {L['WQ']}")
        a("s_cmp_lg_u32 s59, 0")
        a(f"s_cselect_b32 s33, {OOB}, s33")
        a("s_add_u32 s31, s10, 64")
        a("s_cmp_lg_u32 s3, 0")
        a(f"s_cselect_b32 s31, {OOB}, s31")
        a("s_lshl_b32 s12, s8, 4")
        a("s_add_u32 s12, s12, s9")
        a("s_mul_i32 s12, s12, 9")
        a("s_add_u32 s12, s12, s3")
        a("s_lshl_b32 s12, s12, 10")
        a("s_lshl_b32 s50, s3, 11")
        a(f"s_mul_i32 s51, s9, {18*7168}")
        a("s_add_u32 s51, s51, s50")
        a(f"s_add_u32 s51, s51, {L['WQ']}")
        a("s_cmp_lg_u32 s59, 0")
        a(f"s_cselect_b32 s51, {OOB}, s51")
        a("s_cmp_eq_u32 s3, 3")
        a("s_cselect_b32 s56, 0, 1024")
        a("s_add_u32 s52, s51, s56")
        a("s_add_u32 s53, s50, s56")

    def p3_prefetch():
        while WPRE:
            WPRE.pop(0)()
    sync(32, p3_prefetch, pre=p3_pre)
    ts()
    a.raw(f"{name}_c0:")
    for n in range(2):
        a(f"buffer_load_dwordx2 {vr(T+2*n,2)}, v7, s[4:7], {'s19' if n else 's21'} offen sc1"); vm.issue("st")

    U = []
    for k in range(19):
        for t in range(G0):
            for mh in range(2):
                U.append(("p1", t, k, mh))
    for t in range(G0, 9):
        for k in range(19):
            for mh in range(2):
                U.append(("p1", t, k, mh))
    for hk in range(KO2):
        for dt in range(5):
            for mh in range(2):
                U.append(("p2", dt, hk, mh))
    for dt in range(5):
        for hk in range(KO2, 36):
            for mh in range(2):
                U.append(("p2", dt, hk, mh))
    NU = len(U)

    def half(i):
        return U[i][0] == "p2" and U[i][1] == 4

    def hp_reg(j, n):
        if j < 14:
            return ar(144 + 8 * j + 4 * n, 4)
        if j < 23:
            return ar(72 + 8 * (j - 14) + 4 * n, 4)
        return vr(AC1 + 8 * (j - 23) + 4 * n, 4)

    def acc2(dt, mh, n):
        return 16 * dt + (2 * mh + n) * 4 if dt < 4 else 64 + 4 * mh

    def mfma3(i, n):
        kind, t, k, mh = U[i]
        if kind == "p1":
            acc = vr(AC1 + 16 * (t % NSL) + (2 * mh + n) * 4, 4)
            b = ar((18 * n + k) * 4, 4) if k < 18 else vr(BX + 4 * n, 4)
        else:
            acc = ar(acc2(t, mh, n), 4)
            b = vr(HO + (2 * k + n) * 4, 4) if k < 9 else hp_reg(k - 9, n)
        a(f"v_mfma_f32_16x16x32_bf16 {acc}, {vr(AB3+4*(i%NAB),4)}, {b}, {'0' if k == 0 else acc}")

    def mk_y(k, n):
        def fn():
            if k % 4 == 0 and k and n == 0:
                a("s_add_u32 s18, s18, 4096")
            a(f"buffer_load_dwordx4 {ar((18*n+k)*4,4)}, {'v6' if n else 'v14'}, s[4:7], s18 offen offset:{(k%4)*1024} sc1"); vm.issue(("y", k))
        return fn
    LQ = []
    for c in range(NPRE, NCH):
        for i in range(PW):
            LQ.append((CF * c - RA - 0.5 + i * 0.01, c - (NS - 2) if c >= NS else -1, 1, mk_w(c, i), "w"))
    for k in range(18):
        for n in range(2):
            LQ.append((k * G0 * 2 - 0.1 + n * 0.01, -1, 1, mk_y(k, n), "y"))
    def mk_q(slot, i):
        ks = 3 * slot + i // 2; e = i % 2

        def fn():
            a(f"s_add_u32 m0, s{50 if e == 0 else 53}, {ks*8192}")
            a(f"s_add_u32 s56, s{51 if e == 0 else 52}, {ks*7168}")
            a("buffer_load_dwordx4 v3, s[4:7], s56 offen lds"); vm.issue("wq")
        return fn
    assert CF == 24
    qslots = []
    for c in range(NCH + 4 - int(OPT.get("nqt", 4)), NCH + 4):
        qslots.append(c % NS)
        for i in range(6):
            LQ.append((1000 + c + i * 0.01, c - (NS - 2), 1, mk_q(c % NS, i), "q"))
    LQ.sort(key=lambda x: x[0])
    ny_left = [36]

    def lq_issue():
        it = LQ.pop(0)
        it[3]()
        if it[4] == "y":
            ny_left[0] -= 1
        return it[2]

    for _ in range(N0):
        lq_issue()

    def dsread(f):
        off = (f % 144) * 1024
        base = "v3" if off < 65536 else ("v4" if off < 131072 else "v5")
        a(f"ds_read_b128 {vr(AB3+4*(f%NAB),4)}, {base} offset:{off % 65536}"); lg.issue(("a", f))
    for f in range(RA):
        dsread(f)

    kk = math.sqrt(2.0 / math.pi)
    C1 = -2.0 * kk * LOG2E
    C3 = C1 * 0.044715
    EV = {}
    cur = [0]

    def ev(g, cost, fn):
        EV.setdefault(g, []).append((cost, fn))

    def mk(text):
        return lambda: a(text)

    class Rec:
        def __init__(self): self.l = []
        def __call__(self, t): self.l.append(t)
    rec = Rec()
    rec("v_mov_b32 v7, 0")
    for b in range(len(BATCH)):
        rec(f"v_mov_b32 v{OST+b}, {b+1}")
    for sw in ("v_permlane16_swap_b32", "v_permlane32_swap_b32"):
        for r in range(4):
            rec(f"v_mov_b32 v{T+4+r}, v{T+r}")
        for r in range(4):
            rec(f"{sw} v{T+r}, v{T+4+r}")
        for r in range(4):
            rec(f"v_add_f32 v{T+r}, v{T+r}, v{T+4+r}")
    for n in range(2):
        m = T + 2 * n; r = T + 8 + n; t = T + 4 + n; bx = BX + 4 * n
        stats_finish(rec, m, m + 1, r, T + 10 + n, t, True)
        rec(f"v_rcp_f32 v{RI+n}, v{r}")
        rec(f"v_mul_f32 v{K1+n}, {f32(C1)}, v{r}")
        rec(f"v_mul_f32 v{K3+n}, v{r}, v{r}")
        rec(f"v_mul_f32 v{K3+n}, v{K3+n}, v{r}")
        rec(f"v_mul_f32 v{K3+n}, {f32(C3)}, v{K3+n}")
        rec(f"v_cvt_pk_bf16_f32 v{t}, v{RI+n}, v{RI+n}")
        rec(f"v_and_b32 v{t}, 0xffff0000, v{t}")
        rec(f"v_sub_f32 v{t}, v{RI+n}, v{t}")
        rec(f"v_cvt_pk_bf16_f32 v{bx}, v{RI+n}, v{t}")
        rec(f"v_sub_f32 v{m}, 0, v{m}")
        rec(f"v_cvt_pk_bf16_f32 v{bx+1}, v{m}, v{m}")
        rec(f"v_and_b32 v{t}, 0xffff0000, v{bx+1}")
        rec(f"v_sub_f32 v{t}, v{m}, v{t}")
        rec(f"v_cvt_pk_bf16_f32 v{bx+2}, v{t}, v7")
        rec(f"v_mov_b32 v{bx+3}, 0")
    VQ = [(0, 1, mk(t), None) for t in rec.l]
    VQ[-1] = (0, 1, VQ[-1][2], ("bx",))

    hl_done = set()
    MQ = []
    EARLY = "early" in OPT
    po3 = [None]; sigA = [False]; polledA = [False]

    def defer(fn):
        return lambda: MQ.append(fn)

    def mk_hstore(q):
        def fn():
            if q % 4 == 0 and q:
                a("s_add_u32 s24, s24, 4096")
            hst(f"buffer_store_dwordx4 {vr(HO+4*q,4)}, v3, s[4:7], s24 offen offset:{(q%4)*1024}", "h", ("hs", q))
            b = BOF[q // 2]
            if q == 2 * (BSTART[b] + BATCH[b]) - 1:
                g = cur[0] + DFLAG
                ev(g, 2, lambda: flag_store(b))
                ev(g + DPOLL, 2, lambda: poll_issue(b))
                ev(g + DPOLL + DCHK, 4, lambda: poll_check(b))
        return fn

    def flag_store(b):
        vm.wait(("hs", 2 * (BSTART[b] + BATCH[b]) - 1))
        a("s_mov_b64 exec, 1")
        a(f"buffer_store_dword v{OST+b}, v7, s[4:7], s26 offen sc1"); vm.issue("fs")
        a("s_mov_b64 exec, -1")

    def poll_issue(b):
        a("s_mov_b64 exec, 15")
        a(f"buffer_load_dword v{(2, 243)[b & 1]}, v15, s[4:7], s27 offen sc1"); vm.issue(("pl", b))
        a("s_mov_b64 exec, -1")

    def poll_check(b):
        vm.wait(("pl", b))
        a(f"v_cmp_ge_u32 vcc, {b}, v{(2, 243)[b & 1]}")
        a("s_and_b32 s30, vcc_lo, 15")
        a.nf(f"s_cbranch_scc1 {name}_w{b}")
        a.label(f"{name}_r{b}", safe=False)
        slowcode.append(b)
        for i in range(6 * BATCH[b]):
            HQ.append(mk_hload(b, i // 2, i % 2))

    HQ = []

    def mk_hload(b, jj, n):
        j = 3 * BSTART[b] + jj; r = jj // BATCH[b] + 1; tile = BSTART[b] + jj % BATCH[b]

        def fn():
            assert j < 14 or cur[0] > 343, (j, cur[0])
            assert j < 23 or ("h", 17) in done_tags
            a(f"s_add_u32 s58, s{(25, 34, 35)[r-1]}, {(2*tile + (n ^ (r & 1)))*1024}")
            a(f"buffer_load_dwordx4 {hp_reg(j, n)}, v3, s[4:7], s58 offen sc1"); vm.issue(("hl", 2 * j + n))
            hl_done.add(2 * j + n)
        return fn

    SK = 2.5
    gel = []

    def add_gelu(t, ready):
        ac = AC1 + 16 * (t % NSL)
        for v in range(16):
            n = v // 8; mh = (v // 4) % 2; i = v % 4
            x = ac + (2 * mh + n) * 4 + i; tm = T + v
            ops = [(1, f"v_mul_f32 v{tm}, v{x}, v{x}"), (1, f"v_fma_f32 v{tm}, v{tm}, v{K3+n}, v{K1+n}"), (1, f"v_mul_f32 v{tm}, v{tm}, v{x}"),
                   (2, f"v_exp_f32 v{tm}, v{tm}"), (1, f"v_fma_f32 v{tm}, v{tm}, v{RI+n}, v{RI+n}"), (2, f"v_rcp_f32 v{tm}, v{tm}"),
                   (1, f"v_mul_f32 v{x}, v{x}, v{tm}")]
            for st, (c, tx) in enumerate(ops):
                gel.append((16 * t + v + st * SK, ready, c, mk(tx), None))
            if v % 2 == 1:
                gel.append((16 * t + v + 6 * SK + 1.2, ready, 1, mk(f"v_cvt_pk_bf16_f32 v{HO+8*t+v//2}, v{x-1}, v{x}"), None))
            if v % 8 == 7:
                q = 2 * t + n
                gel.append((16 * t + v + 6 * SK + 1.3, ready, 0, defer(mk_hstore(q)), ("h", q)))
    last_idx = {}
    for i, u in enumerate(U):
        last_idx[u[:2]] = i
    for t in range(9):
        add_gelu(t, last_idx[("p1", t)] + 2)
    gel.sort(key=lambda x: x[0])
    VQ += [(g[1], g[2], g[3], g[4]) for g in gel]
    for dt in range(5):
        rdy = last_idx[("p2", dt)] + 2
        for n in range(2 if dt < 4 else 1):
            o = HO + (2 * dt + n) * 4
            for mh in range(2):
                for i in range(4):
                    VQ.append((rdy, 1, mk(f"v_accvgpr_read_b32 v{T+8*n+4*mh+i}, a{acc2(dt, mh, n)+i}"), None))
            for e in range(4):
                VQ.append((rdy, 1, mk(f"v_cvt_pk_bf16_f32 v{o+e}, v{T+8*n+2*e}, v{T+8*n+2*e+1}"), None))

            def st(n=n, o=o, dt=dt):
                so = f"s28 offen offset:{dt*1024}" if dt < 4 else "s36 offen"
                hst(f"buffer_store_dwordx4 {vr(o,4)}, {'v6' if n else 'v14'}, s[4:7], {so}", "p", ("po", dt))
            VQ.append((rdy, 0, defer(st), None))
    done_tags = set()

    def vq_pop():
        it = VQ.pop(0)
        assert it[0] - 2 < cur[0] + (1 if cur[0] == NU - 1 else 0), (it[0], cur[0])
        it[2]()
        if it[3]:
            done_tags.add(it[3])
        return it[1]

    bar_done = [0]

    def chunk_barrier(c):
        while LQ and LQ[0][0] <= CF * c - RA:
            lq_issue()
        bar_done[0] = c
        if c < NPRE and c < 2:
            return
        vm.wait(("w", c))
        doA = EARLY and not sigA[0] and po3[0] is not None and (cur[0] >= po3[0] + int(OPT.get("dack", 20)) or c == NCH - 1)
        if doA:
            vm.wait(("po", 3))
        a("s_barrier")
        if doA:
            sigA[0] = True
            print("signal A at unit", cur[0], "po3", po3[0], file=sys.stderr)
            a("s_mov_b64 exec, 1")
            a(f"buffer_atomic_add v{OST}, v7, s[4:7], s31 offen"); vm.issue("at")
            a("s_mov_b64 exec, -1")

            def pollA():
                a("s_mov_b64 exec, 1")
                a("buffer_load_dword v2, v7, s[4:7], s10 offen offset:64 sc1"); vm.issue("pa")
                a("s_mov_b64 exec, -1")
                polledA[0] = True
            ev(min(NU - 1, max(cur[0] + int(OPT.get("dp2", 14)), NU - int(OPT.get("dp3", 14)))), 2, pollA)

    TSA = int(OPT.get('tsa', 38 * G0)); TSB = int(OPT.get('tsb', 342))
    last_lq = -10; last_hq = -10
    HPACE = int(OPT.get("hpace", 6)); HPACE2 = int(OPT.get("hpace2", 2))
    forced = 0
    GAP = float(OPT.get("gap", 11))
    credit = [0.0]

    def prereq(i):
        nonlocal forced
        kind, t, k, mh = U[i]
        if kind == "p1" and t == 0 and mh == 0 and k < 18:
            while LQ and LQ[0][0] <= i:
                lq_issue()
            vm.wait(("y", k))
        if kind == "p2" and k >= 9:
            q = 2 * (k - 9) + 1
            while q not in hl_done:
                while MQ:
                    MQ.pop(0)()
                if HQ:
                    HQ.pop(0)(); forced += 1000
                    continue
                g = min(EV)
                for c, fn in EV.pop(g):
                    fn()
                forced += 1000
            vm.wait(("hl", q))
        if i % WE == 0:
            lg.wait(("a", min(i + WE - 1, NU - 1)))

    def force_valu(i):
        nonlocal forced
        kind, t, k, mh = U[i]
        need = []
        if kind == "p1" and k == 18:
            need.append(("bx",))
        if kind == "p2" and k < 9:
            need.append(("h", 2 * k + 1))
        if kind == "p1" and k == 0 and t >= NSL:
            need.append(("h", 2 * (t - NSL) + 1))
        for tg in need:
            while tg not in done_tags:
                vq_pop(); forced += 1

    def fill(i, used):
        credit[0] = min(credit[0] + GAP - used, 8.0 + GAP - used)
        lo = 8 - used
        while VQ and VQ[0][0] <= i:
            c = VQ[0][1] * 4
            if c <= credit[0] or c <= lo or c == 0:
                vq_pop(); credit[0] -= c; lo -= c
            else:
                break
        if not (VQ and VQ[0][0] <= i):
            credit[0] = 0.0

    def hq_ok():
        if len(hl_done) >= 46:
            return ("h", 17) in done_tags
        return len(hl_done) < 28 or cur[0] > 343

    def pf_w():
        a("s_add_u32 s32, s32, 131072")
        l2pf("s32")
    if "W" in L2PF:
        for r in range(2, 6):
            ev(128 * r - int(OPT.get("pflead", 200)), 1, pf_w)
    if "q" in L2PF:
        ev(500, 1, lambda: l2pf("s33"))
    ev(int(OPT.get("cp1", 220)), 0, lambda: cpf(f"{name}_c0+16384"))
    ev(int(OPT.get("cp2", 560)), 0, lambda: cpf("code_end-16384"))
    prereq(0)
    for i in range(NU):
        cur[0] = i
        force_valu(i)
        if ts.on and i in (TSA, TSB):
            ts(); lg.q = []
        mfma3(i, 0)
        if half(i):
            if i in EV:
                EV[i + 1] = EV.pop(i) + EV.get(i + 1, [])
        else:
            used = 0
            evs = EV.pop(i, [])
            pace = PACE0 if ny_left[0] else PACE1
            if evs:
                for c, fn in evs:
                    fn(); used += 4 * c
            elif MQ:
                MQ.pop(0)(); used += 4
            elif LQ and LQ[0][1] <= bar_done[0] and i - last_lq >= pace:
                lq_issue(); last_lq = i; used += 4
            elif HQ and hq_ok() and i - last_hq >= (HPACE if len(hl_done) < 36 else HPACE2):
                HQ.pop(0)(); used += 4; last_hq = i
            fill(i, used)
            mfma3(i, 1)
        used = 0
        if i + 1 < NU:
            prereq(i + 1)
        if i + RA < NU:
            if (i + RA) % CF == 0:
                chunk_barrier((i + RA) // CF)
            dsread(i + RA); used += 4
        if half(i):
            if MQ:
                MQ.pop(0)(); used += 4
            elif LQ and LQ[0][1] <= bar_done[0] and i - last_lq >= PACE1:
                lq_issue(); last_lq = i; used += 4
        fill(i, used)
    assert not EV, EV.keys()
    while VQ or MQ:
        if MQ:
            MQ.pop(0)()
        else:
            vq_pop()
    qleft = [it[3] for it in LQ] + [mk_q(sl, i) for sl in range(NS) if sl not in qslots for i in range(6)]
    print("wq loads left:", len(qleft), file=sys.stderr)
    print("p3 forced:", forced, file=sys.stderr)
    ts()

    P4P = 64; P4A = 16; P4X = 160; P4B = 172

    def p4_pre():
        a("s_load_dwordx4 s[36:39], s[0:1], 56")
        a("v_and_b32 v4, 15, v1")
        a("v_lshrrev_b32 v5, 4, v1")
        a("s_lshl_b32 s12, s8, 4")
        a("s_add_u32 s12, s12, s9")
        a("s_mul_i32 s12, s12, 9")
        a("s_add_u32 s12, s12, s3")
        a("s_lshl_b32 s12, s12, 10")
        a("s_add_u32 s13, s12, 4096")
        a("s_add_u32 s14, s12, 8192")
        a("s_cmp_lg_u32 s3, 0")
        a(f"s_cselect_b32 s14, {OOB}, s14")
        a("s_and_b32 s15, s9, 1")
        a("s_mul_i32 s16, s15, 9")
        a("s_add_u32 s16, s16, s3")
        a("s_lshl_b32 s16, s16, 6")
        a("s_add_u32 s17, s16, 512")
        a("s_cmp_lg_u32 s3, 0")
        a(f"s_cselect_b32 s17, {OOB}, s17")
        a("v_lshlrev_b32 v6, 3, v5")
        a("s_waitcnt lgkmcnt(0)")
        srd(a, 40, 36, D * 2)
        for i in range(3):
            a(f"s_add_u32 s{20+i}, s{12+i}, {PART}")
            if REUSE:
                a(f"s_sub_u32 s{20+i}, s{20+i}, s59")

    def p4_prefetch():
        for i in range(3):
            a(f"s_add_u32 s18, s{12+i}, {X1}")
            a(f"buffer_load_dwordx4 {vr(P4X+4*i,4)}, v3, s[4:7], s18 offen sc1")
        for i in range(3):
            so, off = ("s16", 256 * i) if i < 2 else ("s17", 0)
            a(f"buffer_load_dwordx2 {vr(P4B+4*i,2)}, v6, s[40:43], {so} offen offset:{off}")
            a(f"buffer_load_dwordx2 {vr(P4B+4*i+2,2)}, v6, s[40:43], {so} offen offset:{off+32}")
        for _ in range(int(OPT.get("nq48", 0))):
            qleft.pop(0)()
    P4E = 196

    def slot0_loads():
        a(f"s_add_u32 s20, s12, {PART}")
        if REUSE:
            a("s_sub_u32 s20, s20, s59")
        for s in range(4):
            a(f"buffer_load_dwordx4 {vr(P4E+4*s,4)}, v3, s[4:7], s20 offen sc1")
            if s < 3:
                a(f"s_add_u32 s20, s20, {XT}")
    if EARLY:
        assert polledA[0]
        vm.wait("pa")
        a("v_readfirstlane_b32 s30, v2")
        a("s_cmp_ge_u32 s30, 16")
        a(f"s_cbranch_scc0 {name}_e0")
        slot0_loads()
        a("s_waitcnt vmcnt(8)")
        a(f"s_branch {name}_e1")
        a.label(f"{name}_e0")
        a("s_waitcnt vmcnt(0)")
        a.label(f"{name}_e1")
    else:
        a("s_mov_b32 s30, 0")
    sync(48, p4_prefetch, waited=EARLY, pre=p4_pre)
    ts()
    a("s_cmp_ge_u32 s30, 16")
    a(f"s_cbranch_scc1 {name}_e2")
    slot0_loads()
    a.label(f"{name}_e2")
    for s in range(4):
        for i in range(1, 3):
            a(f"buffer_load_dwordx4 {vr(P4P+8*s+4*(i-1),4)}, v3, s[4:7], s{20+i} offen sc1"); vm.issue(("p", s))
            if s < 3:
                a(f"s_add_u32 s{20+i}, s{20+i}, {XT}")
    a("v_mov_b32 v6, 0x00003f80")
    a("v_mov_b32 v7, 0x3f800000")
    for i in range(3):
        for j in range(4):
            a(f"v_lshlrev_b32 v{P4A+8*i+2*j}, 16, v{P4B+4*i+j}")
            a(f"v_and_b32 v{P4A+8*i+2*j+1}, 0xffff0000, v{P4B+4*i+j}")

    def acc1(i, src):
        for j in range(4):
            a(f"v_dot2c_f32_bf16 v{P4A+8*i+2*j}, v{src+j}, v6")
            a(f"v_dot2c_f32_bf16 v{P4A+8*i+2*j+1}, v{src+j}, v7")
    for i in range(3):
        acc1(i, P4X + 4 * i)
    a("s_waitcnt vmcnt(8)")
    for s in range(4):
        acc1(0, P4E + 4 * s)
    for s in range(4):
        vm.wait(("p", s))
        for i in range(1, 3):
            acc1(i, P4P + 8 * s + 4 * (i - 1))
    O4 = 40
    for i in range(3):
        for j in range(4):
            a(f"v_cvt_pk_bf16_f32 v{O4+4*i+j}, v{P4A+8*i+2*j}, v{P4A+8*i+2*j+1}")
    a("s_cmp_lg_u32 s59, 0" if "tsl0" not in OPT else "s_cmp_eq_u32 s59, 0")
    a(f"s_cbranch_scc1 {name}_fin")
    for i in range(3):
        a(f"s_add_u32 s18, s{12+i}, {XIN + LSTR}")
        hst(f"buffer_store_dwordx4 {vr(O4+4*i,4)}, v3, s[4:7], s18 offen", "x")
    sumsq(56, [P4A + j for j in range(12)])
    sumsq(58, [P4A + 12 + j for j in range(12)])
    a("v_add_f32 v56, v56, v58")
    a("v_add_f32 v57, v57, v59")
    a("v_lshlrev_b32 v58, 3, v0")
    a(f"v_add_u32 v58, {EX}, v58")
    a("ds_write_b64 v58, v[56:57]")
    a("v_lshlrev_b32 v58, 3, v1")
    a(f"v_add_u32 v58, {EX}, v58")
    a("v_lshlrev_b32 v59, 3, v4")
    a("v_lshl_add_u32 v59, v5, 6, v59")
    a("v_and_b32 v60, 1, v5")
    a("v_lshl_add_u32 v59, v60, 30, v59")
    a("s_lshl_b32 s20, s8, 3")
    a("s_lshr_b32 s21, s9, 1")
    a("s_add_u32 s20, s20, s21")
    a("s_lshl_b32 s20, s20, 9")
    a("s_lshl_b32 s21, s15, 8")
    a("s_add_u32 s20, s20, s21")
    a(f"s_add_u32 s20, s20, {STI + LSTR}")
    a("s_cmp_lg_u32 s3, 0")
    a(f"s_cselect_b32 s20, {OOB}, s20")
    a("s_waitcnt lgkmcnt(0)")
    a("s_barrier")
    for w in range(4):
        a(f"ds_read_b64 {vr(64+2*w,2)}, v58 offset:{w*512}")
    a("s_waitcnt lgkmcnt(0)")
    for i in range(2):
        a(f"v_add_f32 v{64+i}, v{64+i}, v{66+i}")
        a(f"v_add_f32 v{68+i}, v{68+i}, v{70+i}")
    for i in range(2):
        a(f"v_add_f32 v{64+i}, v{64+i}, v{68+i}")
    a("v_mov_b32 v66, v64")
    a("v_mov_b32 v67, v65")
    a("v_permlane16_swap_b32 v64, v66")
    a("v_permlane16_swap_b32 v65, v67")
    a("v_add_f32 v64, v64, v66")
    a("v_add_f32 v65, v65, v67")
    a("buffer_store_dwordx2 v[64:65], v59, s[4:7], s20 offen sc1")
    ts()

    def p1b_prefetch():
        for fn in qleft:
            fn()

    def p1b_pre():
        a(f"s_mov_b32 s59, {LSTR}")
        p1_setup()
        p1_consts()
        a("s_lshl_b32 s24, s3, 13")
        a("s_add_u32 s24, s24, 7168")
        a("s_lshl_b32 s21, s3, 10")
        a("s_add_u32 s22, s22, s21")
        a("s_mov_b32 s44, 0xfffefffe")
        a("s_mov_b32 s45, 0xfffefffe")
    if "noq" in OPT:
        sync(64, None, prev=True)
        a(f"s_mov_b32 s59, {LSTR}")
        a(f"s_add_u32 s4, s4, {LSTR}")
        a("s_addc_u32 s5, s5, 0")
        a(f"s_branch {name}_p1a")
        nsync[0] = 3; name_ = name
    sync(64, p1b_prefetch, prev=True, pre=p1b_pre) if "noq" not in OPT else None
    ts()
    a(f"s_add_u32 s4, s4, {LSTR}")
    a("s_addc_u32 s5, s5, 0")
    p1_stats_load()
    for grp in xloads(0):
        do_load(grp, 0)
    a("s_mov_b64 exec, s[44:45]")
    for j in range(5):
        if j == 4:
            a("s_cmp_ge_u32 s3, 2")
            a(f"s_cselect_b32 s22, {OOB}, s22")
        a("s_mov_b32 m0, s24")
        a("buffer_load_dwordx4 v3, s[4:7], s22 offen sc1 lds"); vm.issue("halo")
        a("s_add_u32 s22, s22, 4096")
        a("s_add_u32 s24, s24, 32768")
    a("s_mov_b64 exec, -1")
    PFB = int(OPT.get("p1pfb", 6))
    for ks in range(1, 3):
        for grp in xloads(ks):
            do_load(grp, ks)
    if not SFILL:
        vm.wait("st")
        for t in p1_stats_math():
            a(t)
    for ks in range(3, PFB):
        for grp in xloads(ks):
            do_load(grp, ks)
    vm.wait("halo")
    a("s_waitcnt lgkmcnt(0)")
    a("s_barrier")
    if ts.on:
        ts.n = 2
        ts()
    p1_loop(xloads, PFB, 0, int(OPT.get('wps', 0)), False)
    a(f"s_branch {name}_epi")

    a.label(f"{name}_fin")
    srd(a, 40, 38, XT)
    FS = OPT.get("fs", "sc1")
    a("s_lshl_b32 s20, s8, 3")
    a("s_lshr_b32 s21, s9, 1")
    a("s_add_u32 s20, s20, s21")
    a("s_mul_i32 s20, s20, 18432")
    if OPT.get("fin", "lds") == "old":
        a("v_mul_u32_u24 v6, 1152, v4")
        a("v_lshl_add_u32 v6, v5, 3, v6")
        a("s_add_u32 s21, s20, s17")
        a("s_add_u32 s20, s20, s16")
        for i in range(3):
            so, off = ("s20", 256 * i) if i < 2 else ("s21", 0)
            a(f"buffer_store_dwordx2 {vr(O4+4*i,2)}, v6, s[40:43], {so} offen offset:{off} {FS}")
            a(f"buffer_store_dwordx2 {vr(O4+4*i+2,2)}, v6, s[40:43], {so} offen offset:{off+32} {FS}")
    else:
        a("v_mul_u32_u24 v6, 592, v4")
        a("v_lshl_add_u32 v6, v5, 3, v6")
        a("s_lshl_b32 s21, s3, 6")
        a("v_add_u32 v6, s21, v6")
        a("s_mov_b32 s21, 16384")
        a("s_cmp_eq_u32 s3, 0")
        a("s_cselect_b32 s21, 512, s21")
        a("v_add_u32 v7, s21, v6")
        for i in range(3):
            ad, off = ("v6", 256 * i) if i < 2 else ("v7", 0)
            a(f"ds_write_b64 {ad}, {vr(O4+4*i,2)} offset:{off}")
            a(f"ds_write_b64 {ad}, {vr(O4+4*i+2,2)} offset:{off+32}")
        for i in range(3):
            a(f"v_add_u32 v{60+i}, {256*i}, v0")
            a(f"v_mul_u32_u24 v{64+i}, 1821, v{60+i}")
            a(f"v_lshrrev_b32 v{64+i}, 16, v{64+i}")
            a(f"v_mul_u32_u24 v{68+i}, 36, v{64+i}")
            a(f"v_sub_u32 v{68+i}, v{60+i}, v{68+i}")
            a(f"v_lshlrev_b32 v{68+i}, 4, v{68+i}")
            a(f"v_mul_u32_u24 v{72+i}, 592, v{64+i}")
            a(f"v_add_u32 v{72+i}, v{72+i}, v{68+i}")
            a(f"v_mul_u32_u24 v{76+i}, 1152, v{64+i}")
            a(f"v_add_u32 v{76+i}, v{76+i}, v{68+i}")
        a("s_mul_i32 s21, s15, 576")
        a("s_add_u32 s20, s20, s21")
        a("s_cmp_eq_u32 s3, 0")
        a(f"s_cselect_b32 s21, s20, {OOB}")
        a("s_waitcnt lgkmcnt(0)")
        a("s_barrier")
        for i in range(3):
            a(f"ds_read_b128 {vr(80+4*i,4)}, v{72+i}")
        for i in range(3):
            a(f"s_waitcnt lgkmcnt({2-i})")
            a(f"buffer_store_dwordx4 {vr(80+4*i,4)}, v{76+i}, s[40:43], {'s20' if i < 2 else 's21'} offen {FS}")
    if ts.on:
        ts.n = 14
        a("s_waitcnt vmcnt(0)")
        ts(); ts(True)
        if "tsk" in OPT:
            ts.n = 19; ts()
        if "spin" in OPT:
            a("s_add_u32 s64, s62, s57")
        ts.store()
    a("s_endpgm")
    for b in slowcode:
        a.label(f"{name}_w{b}")
        a(f"s_add_u32 s57, s57, {1 if 'spin' not in OPT else 100 * 10 ** b}")
        a("s_cmp_gt_u32 s57, 0x40000")
        a(f"s_cbranch_scc1 {name}_r{b}")
        a("s_sleep 2")
        a("s_mov_b64 exec, 15")
        a(f"buffer_load_dword v{(2, 243)[b & 1]}, v15, s[4:7], s27 offen sc1")
        a("s_mov_b64 exec, -1")
        a("s_waitcnt vmcnt(0)")
        a(f"v_cmp_ge_u32 vcc, {b}, v{(2, 243)[b & 1]}")
        a("s_and_b32 s30, vcc_lo, 15")
        a(f"s_cbranch_scc1 {name}_w{b}")
        a(f"s_branch {name}_r{b}")
    a.label(f"{name}_end")
    a("s_endpgm")
    return name, a.text(), dict(vgpr=512, sgpr=102, accum=256), dict(grid=256, block=256, lds=163840)


def main():
    ks = [gen_p0(CODE0=OPT.get("code0", "main_kernel"), CPN=int(OPT.get("cpn", 8)), zero=True, w12="late" not in OPT), gen_main()]
    ref = open(f"cdna_kernels/{NAME}.s.ref").read().split("\n")
    hdr = [ln for ln in ref if ln.startswith(";") and "@launch" not in ln and "Override launch" not in ln and "grid=ceil" not in ln]
    out = hdr[:]
    if "nop" in OPT:
        na = Asm()
        na.raw(".globl nop_kernel\n.p2align 8\n.type nop_kernel,@function\nnop_kernel:")
        na("s_endpgm")
        nk = ("nop_kernel", na.text(), dict(vgpr=8, sgpr=16, accum=8), dict(grid=8, block=64, lds=0))
        pos = OPT["nop"]
        seq = {"a": [nk] + ks, "b": [ks[0], nk, ks[1]], "c": ks + [nk], "d": [nk, nk, nk] + ks}[pos]
        for name, _, _, g in seq:
            out.append(f"; @launch kernel={name} grid=({g['grid']},1,1) block=({g['block']},1,1) lds={g['lds']}")
        ks = [nk] + ks
    for name, _, _, g in (ks if "nop" not in OPT else []):
        out.append(f"; @launch kernel={name} grid=({g['grid']},1,1) block=({g['block']},1,1) lds={g['lds']}")
    out.append('.amdgcn_target "amdgcn-amd-amdhsa--gfx950"')
    out.append(".text")
    for _, txt, _, _ in ks:
        out.append(txt)
    out.append("code_end:")
    out.append("    s_endpgm")
    out.append('.section .rodata,"a"')
    for name, _, kd, _ in ks:
        out.append(KD.format(name=name, **kd))
    path = sys.argv[1] if len(sys.argv) > 1 else f"cdna_kernels/{NAME}.s"
    open(path, "w").write("\n".join(out))
    json.dump(L, open("layout.json", "w"))
    print("written", path)


if __name__ == "__main__":
    main()
```

```python
import sys, struct, json, math
from asmb import Asm, KD, vr, ar, sr

NAME = "interleave_layers__sliding_local_dilated__mixer_channel_mlp__prompt"
S, D, F = 2048, 576, 4608
XT = S * D * 2
TILE = 18432
OOB = 0x10000000
WS_BYTES = 0x0c000000


import os
OPT = dict(kv.split("=") if "=" in kv else (kv, "1") for kv in os.environ.get("GOPT", "").split(",") if kv)


math_sqrt = math.sqrt; PI = math.pi; LOG2E = math.log2(math.e)


def f32(x):
    return "0x%08x" % struct.unpack("<I", struct.pack("<f", x))[0]


G0 = int(OPT.get("g0", 2))
KT = int(OPT.get("kt", 6))
KO = 18 - KT
KT2 = int(OPT.get("kt2", 12)); KO2 = 36 - KT2
BATCH = [int(c) for c in OPT.get("batch", "333")]
BSTART = [sum(BATCH[:i]) for i in range(len(BATCH))]
BOF = [max(b for b in range(len(BATCH)) if BSTART[b] <= t) for t in range(9)]
assert sum(BATCH) == 9
NCHUNK = 30
SLB = NCHUNK * 24576


class WS:
    pass


def layout():
    off = 0
    L = {}

    def alloc(name, n):
        nonlocal off
        L[name] = off
        off += (n + 4095) // 4096 * 4096
    for l in (0, 1):
        alloc(f"FL{l}", 32768)
        alloc("X0" if l == 0 else "X2", XT); alloc("ST0" if l == 0 else "ST2", S * 32)
        alloc(f"O{l}", XT)
        alloc(f"X1_{l}", XT); alloc(f"ST1_{l}", S * 32)
        alloc(f"PART{l}", 8 * XT)
        alloc(f"HX{l}", 1024 * 18432)
    L["LSTR"] = L["FL1"]
    alloc("WQ", 16 * 18 * 7 * 1024)
    alloc("WO", 36 * 18 * 1024)
    alloc("W12", 16 * NCHUNK * 24576)
    alloc("TS", 512 * 16 * 128)
    L["END"] = off
    return L


L = layout()


class Cnt:
    def __init__(self, a, name, maxv):
        self.a = a; self.name = name; self.maxv = maxv; self.q = []

    def issue(self, tag):
        self.q.append(tag)

    def wait(self, tag):
        if tag not in self.q:
            return
        i = len(self.q) - 1 - self.q[::-1].index(tag)
        n = len(self.q) - 1 - i
        n = min(n, self.maxv)
        self.a(f"s_waitcnt {self.name}({n})")
        self.q = self.q[len(self.q) - n:] if n else []

    def wait_all(self):
        self.a(f"s_waitcnt {self.name}(0)")
        self.q = []


def header(a, name, nwg):
    if "l0_" in name:
        n1 = name.replace("l0_", "l1_")
        a.raw(f".globl {n1}\n.p2align 8\n.type {n1},@function\n{n1}:")
        a(f"s_mov_b32 s59, {L['LSTR']}")
        a(f"s_branch {name}_body")
    a.raw(f".globl {name}\n.p2align 8\n.type {name},@function\n{name}:")
    a("s_mov_b32 s59, 0")
    a.raw(f"{name}_body:")
    a(f"s_cmp_ge_u32 s2, {nwg}")
    a(f"s_cbranch_scc1 {name}_end")


def footer(a, name):
    a.label(f"{name}_end")
    a("s_endpgm")


def srd(a, d, base, nbytes):
    a(f"s_mov_b32 s{d}, s{base}")
    a(f"s_and_b32 s{d+1}, s{base+1}, 0xffff")
    a(f"s_mov_b32 s{d+2}, {nbytes}")
    a(f"s_mov_b32 s{d+3}, 0x00020000")


class Stamps:
    def __init__(self, a, name):
        self.a = a; self.n = 0; self.on = OPT.get("ts") == name[:-7]

    def __call__(self, real=False):
        if not self.on:
            return
        self.a(f"{'s_memrealtime' if real or 'tsreal' in OPT else 's_memtime'} s[{60+2*self.n}:{61+2*self.n}]")
        self.a("s_waitcnt lgkmcnt(0)")
        self.n += 1

    def store(self):
        if not self.on:
            return
        a = self.a
        a("s_lshl_b32 s58, s2, 4")
        a("s_add_u32 s58, s58, s3")
        a("s_lshl_b32 s58, s58, 7")
        a(f"s_add_u32 s58, s58, {L['TS']}")
        a("s_sub_u32 s58, s58, s59")
        a("v_mov_b32 v2, 0")
        for i in range(self.n):
            a(f"v_mov_b32 v0, s{60+2*i}")
            a(f"buffer_store_dword v0, v2, s[4:7], s58 offen offset:{4*i}")


def xg_reduce(a, op, v, t):
    a(f"v_mov_b32 v{t}, v{v}")
    a(f"v_permlane16_swap_b32 v{v}, v{t}")
    a(f"{op} v{v}, v{v}, v{t}")
    a(f"v_mov_b32 v{t}, v{v}")
    a(f"v_permlane32_swap_b32 v{v}, v{t}")
    a(f"{op} v{v}, v{v}, v{t}")


def w12_roles(a, name, U, fin, mid, NT, AD=60):
    def dma18():
        a("s_lshl_b32 s44, s3, 10")
        a("s_mov_b32 m0, s44")
        for ks in range(18):
            a("buffer_load_dwordx4 v8, s[12:15], s32 offen " + NT + " lds")
            a("s_add_u32 s32, s32, s33")
            a("s_add_u32 m0, m0, 4096")

    def tile_decode():
        a("s_lshl_b32 s43, s42, 1")
        a("s_lshr_b32 s44, s3, 1")
        a("s_add_u32 s43, s43, s44")
        a("s_cmp_ge_u32 s43, 9")
        a("s_cselect_b32 s46, 1, 0")
        a("s_mul_i32 s47, s46, 9")
        a("s_sub_u32 s47, s43, s47")
        a("s_lshl_b32 s34, s41, 1")
        a("s_add_u32 s34, s34, s46")
        a(f"s_mul_i32 s34, s34, {SLB}")
        a(f"s_add_u32 s34, s34, {L['W12']}")
        a("s_and_b32 s44, s3, 1")
        a("s_lshl_b32 s44, s44, 10")
        a("s_add_u32 s34, s34, s44")

    a(f"s_and_b32 s41, {U}, 7")
    a(f"s_lshr_b32 s42, {U}, 3")
    a("s_cmp_ge_u32 s42, 9")
    a(f"s_cbranch_scc1 {name}_rw2")
    srd(a, 12, 24, D * F * 2)
    a(f"s_mul_i32 s41, {U}, 2731")
    a("s_lshr_b32 s41, s41, 16")
    a("s_mul_i32 s42, s41, 24")
    a(f"s_sub_u32 s42, {U}, s42")
    a("s_mul_i32 s56, s42, 43691")
    a("s_lshr_b32 s56, s56, 17")
    a("v_mul_u32_u24 v8, 9216, v6")
    a("v_lshl_add_u32 v8, v7, 4, v8")
    a("s_mul_i32 s32, s42, 384")
    a("s_add_u32 s45, s32, s38")
    a(f"s_mul_i32 s44, s41, {192*9216}")
    a("s_add_u32 s32, s32, s44")
    a(f"s_mul_i32 s44, s3, {8*9216}")
    a("s_add_u32 s32, s32, s44")
    srd(a, 48, 26, F * 2)
    a("v_lshlrev_b32 v12, 1, v4")
    for l3 in range(3):
        a(f"buffer_load_ushort v{88+l3}, v12, s[48:51], s45 offen offset:{l3*128}")
    a("s_lshl_b32 s44, s3, 10")
    for ks in range(6):
        for l3 in range(3):
            a(f"s_add_u32 m0, s44, {l3*24576 + ks*4096}")
            a(f"s_add_u32 s33, s32, {ks*32*9216 + l3*128}")
            a("buffer_load_dwordx4 v8, s[12:15], s33 offen " + NT + " lds")
    DST = ((34, 35), (36, 37), (39, 40))
    for l3 in range(3):
        d, st = DST[l3]
        a("s_mul_i32 s43, s42, 6")
        a("s_lshr_b32 s44, s3, 1")
        a("s_add_u32 s43, s43, s44")
        a(f"s_add_u32 s43, s43, {2*l3}")
        a("s_mul_i32 s46, s43, 7282")
        a("s_lshr_b32 s46, s46, 16")
        a("s_mul_i32 s47, s46, 9")
        a("s_sub_u32 s47, s43, s47")
        a(f"s_mul_i32 s{d}, s46, {SLB}")
        a("s_mul_i32 s44, s47, 19")
        a(f"s_cmp_lt_u32 s47, {G0}")
        a("s_cselect_b32 s44, s47, s44")
        a(f"s_cselect_b32 s45, {G0}, 1")
        a("s_lshl_b32 s44, s44, 11")
        a(f"s_add_u32 s{d}, s{d}, s44")
        a(f"s_lshl_b32 s{st}, s45, 11")
        a("s_and_b32 s44, s3, 1")
        a("s_lshl_b32 s44, s44, 10")
        a(f"s_add_u32 s{d}, s{d}, s44")
        a(f"s_add_u32 s{d}, s{d}, {L['W12']}")
        a(f"s_mul_i32 s44, s{st}, 18")
        a(f"s_add_u32 s{52+l3}, s{d}, s44")
        a("s_mul_i32 s44, s41, 6")
        a(f"s_mul_i32 s44, s44, s{st}")
        a(f"s_add_u32 s{d}, s{d}, s44")
    a("v_add_u32 v15, 24576, v11")
    a("v_mov_b32 v12, 0x3f803f80")
    for l3 in range(3):
        a(f"v_mov_b32 v{92+l3}, 0")
    mid(2)
    for ks in range(6):
        a("s_waitcnt vmcnt(15)")
        a("s_barrier")
        if ks == 5:
            mid(3)
        for l3 in range(3):
            f = 3 * ks + l3
            for r in range(2):
                off = l3 * 24576 + ks * 4096 + r * 2048
                base, off = ("v11", off) if l3 < 2 else ("v15", off - 24576)
                a(f"ds_read_b64_tr_b16 v[{16+4*f+2*r}:{17+4*f+2*r}], {base} offset:{off}")
        a("s_waitcnt lgkmcnt(0)")
        for l3 in range(3):
            f = 3 * ks + l3
            d, st = DST[l3]
            a(f"buffer_store_dwordx4 v[{16+4*f}:{19+4*f}], v3, s[4:7], s{d} offen sc1")
            a(f"s_add_u32 s{d}, s{d}, s{st}")
            for j in range(4):
                a(f"v_dot2c_f32_bf16 v{92+l3}, v{16+4*f+j}, v12")
    a("v_cmp_eq_u32 s[46:47], s41, v5")
    a("s_cmp_eq_u32 s41, 0")
    a("s_cselect_b32 s44, 3, s41")
    a("s_cselect_b32 s45, -1, 0")
    a("v_cmp_eq_u32 vcc, s44, v5")
    a("s_or_b64 vcc, vcc, s[46:47]")
    a("v_mov_b32 v8, 0x40000000")
    a("v_cndmask_b32 v9, v8, v3, vcc")
    for l3 in range(3):
        c = 92 + l3; o = 16 + 4 * l3
        xg_reduce(a, "v_add_f32", c, 8)
        a(f"v_lshl_or_b32 v{o}, v{88+l3}, 16, v{88+l3}")
        a(f"v_and_b32 v{o}, s45, v{o}")
        a(f"v_cvt_pk_bf16_f32 v{o+2}, v{c}, v{c}")
        a(f"v_and_b32 v8, 0xffff0000, v{o+2}")
        a(f"v_sub_f32 v8, v{c}, v8")
        a(f"v_cvt_pk_bf16_f32 v{o+1}, v{c}, v8")
        a(f"v_and_b32 v{o+2}, 0xffff, v{o+2}")
        a(f"v_mov_b32 v{o+3}, 0")
        for r in range(3):
            a(f"v_cndmask_b32 v{o+r}, 0, v{o+r}, s[46:47]")
        a(f"buffer_store_dwordx4 {vr(o,4)}, v9, s[4:7], s{52+l3} offen sc1")
    fin()

    a.label(f"{name}_rw2")
    srd(a, 12, 28, D * F * 2)
    a("s_mov_b32 s56, s41")
    a("s_sub_u32 s42, s42, 9")
    a("v_mul_u32_u24 v8, 1152, v6")
    a("v_lshl_add_u32 v8, v7, 4, v8")
    a(f"s_mul_i32 s32, s41, {576*1152}")
    a("s_lshl_b32 s44, s42, 7")
    a("s_add_u32 s32, s32, s44")
    a(f"s_mul_i32 s44, s3, {8*1152}")
    a("s_add_u32 s32, s32, s44")
    a(f"s_mov_b32 s33, {32*1152}")
    dma18()
    a("s_lshl_b32 s43, s42, 1")
    a("s_lshr_b32 s44, s3, 1")
    a("s_add_u32 s43, s43, s44")
    a("s_cmp_ge_u32 s43, 9")
    a("s_cselect_b32 s46, 1, 0")
    a("s_mul_i32 s47, s46, 9")
    a("s_sub_u32 s47, s43, s47")
    a("s_cmp_ge_u32 s47, 5")
    a("s_cselect_b32 s45, 1, 0")
    a("s_lshl_b32 s46, s46, 1")
    a("s_add_u32 s46, s46, s45")
    a("s_mul_i32 s45, s45, 5")
    a("s_sub_u32 s47, s47, s45")
    a("v_add_u32 v15, 36864, v11")
    for dest in range(2):
        if dest == 1:
            a("s_cmp_lg_u32 s47, 4")
            a(f"s_cbranch_scc1 {name}_w2a")
            a("s_add_u32 s46, s46, 1")
        a("s_lshr_b32 s34, s41, 1")
        a("s_lshl_b32 s34, s34, 2")
        a("s_add_u32 s34, s34, s46")
        a(f"s_mul_i32 s34, s34, {SLB}")
        a("s_and_b32 s44, s3, 1")
        a("s_lshl_b32 s44, s44, 10")
        a("s_add_u32 s34, s34, s44")
        a(f"s_add_u32 s34, s34, {L['W12'] + 342*1024}")
        a("s_lshl_b32 s44, s47, 11")
        a("s_add_u32 s35, s34, s44")
        a(f"s_mul_i32 s44, s47, {KT2*2048}")
        a("s_add_u32 s36, s34, s44")
        a(f"s_add_u32 s36, s36, {KO2*10240 - KO2*2048}")
        for half in range(2):
            a("s_and_b32 s37, s41, 1")
            a("s_lshl_b32 s37, s37, 1")
            a(f"s_add_u32 s37, s37, {half}")
            a("s_xor_b32 s37, s37, s46")
            for tl in range(9):
                b = 9 * half + tl
                bb = BOF[tl]
                a(f"s_mul_i32 s39, s37, {BATCH[bb]}")
                a(f"s_add_u32 s40, s39, {9 + 3*BSTART[bb] - BATCH[bb] + tl - BSTART[bb]}")
                a("s_cmp_eq_u32 s37, 0")
                a(f"s_cselect_b32 s40, {tl}, s40")
                a("s_mul_i32 s44, s40, 10240")
                a("s_add_u32 s44, s44, s35")
                a("s_lshl_b32 s45, s40, 11")
                a("s_add_u32 s45, s45, s36")
                a(f"s_cmp_lt_u32 s40, {KO2}")
                a(f"s_cselect_b32 s{AD+18*dest+b}, s44, s45")
    a.label(f"{name}_w2a")
    for grp in range(6):
        a("s_waitcnt vmcnt(15)")
        a("s_barrier")
        for b in range(3 * grp, 3 * grp + 3):
            for r in range(2):
                a(f"ds_read_b64_tr_b16 v[{16+4*b+2*r}:{17+4*b+2*r}], {'v11' if b < 9 else 'v15'} offset:{(b%9)*4096+r*2048}")
        a("s_waitcnt lgkmcnt(0)")
        for b in range(3 * grp, 3 * grp + 3):
            a(f"buffer_store_dwordx4 v[{16+4*b}:{19+4*b}], v3, s[4:7], s{AD+b} offen sc1")
    a("s_cmp_lg_u32 s47, 4")
    a(f"s_cbranch_scc1 {name}_w2d")
    for b in range(18):
        a(f"buffer_store_dwordx4 v[{16+4*b}:{19+4*b}], v3, s[4:7], s{AD+18+b} offen sc1")
    a.label(f"{name}_w2d")
    fin()


def gen_p0(CODE0="p1l1_kernel", CPN=6, zero=False, w12=True):
    name = "p0_kernel"
    NT = OPT.get("p0nt", "nt")
    NWG = 248
    a = Asm()
    header(a, name, NWG)
    ts = Stamps(a, name)
    ts(True); ts()
    a("s_load_dwordx4 s[16:19], s[0:1], 0")
    a("s_load_dwordx2 s[20:21], s[0:1], 16")
    a("s_load_dwordx4 s[24:27], s[0:1], 32")
    a("s_load_dwordx2 s[28:29], s[0:1], 48")
    a("s_load_dwordx2 s[30:31], s[0:1], 80")
    a("v_and_b32 v1, 63, v0")
    a("v_lshrrev_b32 v2, 6, v0")
    a("v_readfirstlane_b32 s3, v2")
    a("v_lshlrev_b32 v3, 4, v1")
    a("v_and_b32 v4, 15, v1")
    a("v_lshrrev_b32 v5, 4, v1")
    a("v_lshrrev_b32 v6, 3, v1")
    a("v_and_b32 v7, 7, v1")
    a("s_mul_i32 s40, s3, 18432")
    a("v_lshrrev_b32 v11, 2, v1")
    a("v_lshlrev_b32 v11, 7, v11")
    a("v_and_b32 v12, 3, v1")
    a("v_lshl_add_u32 v11, v12, 3, v11")
    a("s_lshl_b32 s38, s3, 5")
    a("v_add_u32 v11, s38, v11")
    a("s_waitcnt lgkmcnt(0)")
    if "nocp" not in OPT:
        a("s_getpc_b64 s[52:53]")
        a.raw(f"{name}_pc:")
        a("s_lshr_b32 s54, s2, 3")
        a("s_lshl_b32 s54, s54, 2")
        a("s_add_u32 s54, s54, s3")
        a(f"s_mul_i32 s54, s54, {64*CPN}")
        a(f"s_add_u32 s54, s54, {CODE0}-{name}_pc")
        a(f"s_min_u32 s54, s54, code_end-{name}_pc-{64*(CPN-1)}")
        a("s_add_u32 s52, s52, s54")
        a("s_addc_u32 s53, s53, 0")
        if "noselfcp" not in OPT:
            a("s_getpc_b64 s[56:57]")
            a("s_lshr_b32 s58, s2, 3")
            a("s_lshl_b32 s58, s58, 2")
            a("s_add_u32 s58, s58, s3")
            a("s_lshl_b32 s58, s58, 6")
            a("s_load_dword s55, s[56:57], s58")
        for i in range(CPN):
            a(f"s_load_dword s55, s[52:53], {64*i}")
    PT = int(OPT.get("pt", 0))
    if PT:
        npg = (L["TS"] + PT * 1024 - 1) // (PT * 1024)
        per = (npg + 123) // 124
        a("s_lshr_b32 s54, s2, 3")
        a("s_lshl_b32 s54, s54, 2")
        a("s_add_u32 s54, s54, s3")
        a(f"s_mul_i32 s54, s54, {per * PT * 1024}")
        a(f"s_min_u32 s54, s54, {L['TS']}")
        a("s_add_u32 s52, s30, s54")
        a("s_addc_u32 s53, s31, 0")
        for i in range(per):
            a(f"s_load_dword s55, s[52:53], {i * PT * 1024 + 64 * 37}")
    srd(a, 4, 30, WS_BYTES)
    a(f"s_mov_b32 s36, {OOB}")
    a(f"s_mov_b32 s37, {OOB}")
    a("v_lshlrev_b32 v9, 2, v4")
    a("v_mov_b32 v10, 0")
    if zero:
        a("s_cmp_ge_u32 s2, 76")
        a(f"s_cselect_b32 s44, {L['FL1'] - 76*256}, 0")
        a("s_lshl_b32 s45, s2, 8")
        a("s_add_u32 s44, s44, s45")
        a("s_cmp_ge_u32 s2, 152")
        a(f"s_cselect_b32 s44, {OOB}, s44")
        a("s_cmp_lg_u32 s3, 1")
        a(f"s_cselect_b32 s44, {OOB}, s44")
        a("v_lshlrev_b32 v12, 2, v1")
        a("buffer_store_dword v10, v12, s[4:7], s44 offen")
    BQ, BO, BX_ = (144, 198, 216) if w12 else (0, 54, 72)
    if not w12:
        a("s_cmp_ge_u32 s2, 200")
        a(f"s_cbranch_scc1 {name}_end")
    a(f"s_cmp_ge_u32 s2, {BX_}")
    a(f"s_cbranch_scc1 {name}_x")
    a(f"s_cmp_ge_u32 s2, {BO}")
    a(f"s_cbranch_scc1 {name}_wo")
    a(f"s_cmp_ge_u32 s2, {BQ}")
    a(f"s_cbranch_scc1 {name}_wq")
    def fin():
        if ts.on:
            a(f"s_branch {name}_ts")
        else:
            a("s_endpgm")

    def mid(k):
        ts.n = k
        ts()

    if w12:
        w12_roles(a, name, "s2", fin, mid, NT)
    else:
        a("s_endpgm")

    a.label(f"{name}_wo")
    srd(a, 12, 20, D * D * 2)
    a(f"s_sub_u32 s41, s2, {BO}")
    a("s_lshl_b32 s44, s3, 3")
    a("v_add_u32 v12, s44, v6")
    a("v_lshrrev_b32 v13, 4, v12")
    a("v_mul_u32_u24 v13, 18, v13")
    a("v_and_b32 v14, 15, v12")
    a("v_add_u32 v13, v13, v14")
    a("v_lshrrev_b32 v14, 2, v12")
    a("v_mul_u32_u24 v14, 36, v14")
    a("v_and_b32 v15, 3, v12")
    a("v_lshrrev_b32 v2, 1, v15")
    a("v_lshlrev_b32 v2, 4, v2")
    a("v_add3_u32 v14, v14, v15, v2")
    a("v_add_u32 v14, 16, v14")
    a("s_mul_i32 s32, s41, 36")
    a("s_sub_u32 s33, s41, 16")
    a("s_mul_i32 s33, s33, 288")
    a("s_cmp_lt_u32 s41, 16")
    a("s_cselect_b32 s32, s32, s33")
    a("s_cselect_b64 vcc, -1, 0")
    a("v_cndmask_b32 v13, v14, v13, vcc")
    a("s_mul_i32 s32, s32, 1152")
    a("v_mul_u32_u24 v8, 1152, v13")
    a("v_lshl_add_u32 v8, v7, 4, v8")
    a("s_lshl_b32 s44, s3, 10")
    a("s_mov_b32 m0, s44")
    for cg in range(9):
        a("buffer_load_dwordx4 v8, s[12:15], s32 offen " + NT + " lds")
        a("s_add_u32 s32, s32, 128")
        a("s_add_u32 m0, m0, 4096")
    a("s_mul_i32 s34, s3, 18432")
    a("s_lshl_b32 s44, s41, 10")
    a("s_add_u32 s34, s34, s44")
    a(f"s_add_u32 s34, s34, {L['WO']}")
    mid(2)
    a("s_waitcnt vmcnt(0)")
    a("s_barrier")
    mid(3)
    for cg in range(9):
        for r in range(2):
            a(f"ds_read_b64_tr_b16 v[{16+4*cg+2*r}:{17+4*cg+2*r}], v11 offset:{cg*4096+r*2048}")
        if cg == 6:
            a("s_waitcnt lgkmcnt(0)")
    a("s_waitcnt lgkmcnt(0)")
    for cg in range(9):
        a(f"buffer_store_dwordx4 v[{16+4*cg}:{19+4*cg}], v3, s[4:7], s34 offen sc1")
        a(f"s_add_u32 s34, s34, {4*18432}")
    fin()

    a.label(f"{name}_wq")
    srd(a, 12, 18, D * 3 * D * 2)
    a(f"s_sub_u32 s41, s2, {BQ}")
    a("s_mul_i32 s42, s41, 43691")
    a("s_lshr_b32 s42, s42, 17")
    a("s_mul_i32 s43, s42, 3")
    a("s_sub_u32 s43, s41, s43")
    a(f"s_mul_i32 s32, s42, {32*3456}")
    a("s_mul_i32 s44, s43, 1152")
    a("s_add_u32 s32, s32, s44")
    a(f"s_mul_i32 s44, s3, {8*3456}")
    a("s_add_u32 s32, s32, s44")
    a("s_add_u32 s33, s32, 32")
    a("v_lshrrev_b32 v8, 1, v1")
    a("v_mul_u32_u24 v8, 36, v8")
    a("v_and_b32 v12, 1, v1")
    a("v_lshl_add_u32 v8, v12, 4, v8")
    a("v_and_b32 v12, 31, v1")
    a("v_mul_u32_u24 v12, 36, v12")
    a("v_lshrrev_b32 v13, 5, v1")
    a("v_mul_u32_u24 v13, 3456, v13")
    a("v_add_u32 v12, v12, v13")
    a("s_lshl_b32 s44, s3, 13")
    a("s_mov_b32 m0, s44")
    for i in range(8):
        a("buffer_load_dwordx4 v8, s[12:15], s32 offen " + NT + " lds")
        a("s_add_u32 s32, s32, 3456")
        a("s_add_u32 m0, m0, 1024")
    a("s_lshl_b32 s44, s3, 10")
    a("s_add_u32 m0, s44, 32768")
    for i in range(4):
        a("buffer_load_dword v12, s[12:15], s33 offen " + NT + " lds")
        a(f"s_add_u32 s33, s33, {2*3456}")
        a("s_add_u32 m0, m0, 256")
    a("v_lshrrev_b32 v13, 2, v1")
    a("v_lshlrev_b32 v13, 10, v13")
    a("v_and_b32 v14, 3, v1")
    a("v_lshl_add_u32 v13, v14, 3, v13")
    a("s_lshl_b32 s44, s3, 8")
    a("v_add_u32 v13, s44, v13")
    a(f"s_mul_i32 s34, s3, {4*129024}")
    a("s_mul_i32 s44, s42, 7168")
    a("s_add_u32 s34, s34, s44")
    a(f"s_add_u32 s35, s34, {L['WQ'] + 6*1024}")
    a("s_lshl_b32 s44, s43, 11")
    a("s_add_u32 s34, s34, s44")
    a(f"s_add_u32 s34, s34, {L['WQ']}")
    a("v_lshrrev_b32 v14, 2, v4")
    a(f"s_mov_b32 s44, 129024")
    a("v_mul_lo_u32 v14, v14, s44")
    a("v_lshrrev_b32 v15, 1, v4")
    a("v_and_b32 v15, 1, v15")
    a("s_cmp_eq_u32 s43, 2")
    a("s_cselect_b32 s44, 1, 2")
    a("s_lshl_b32 s45, s43, 1")
    a("s_cmp_eq_u32 s43, 2")
    a("s_cselect_b32 s45, 8, s45")
    a("v_lshlrev_b32 v15, s44, v15")
    a("v_and_b32 v2, 1, v4")
    a("v_add3_u32 v15, v15, v2, s45")
    a("v_lshl_add_u32 v15, v5, 4, v15")
    a("v_lshl_add_u32 v14, v15, 4, v14")
    mid(2)
    a("s_waitcnt vmcnt(0)")
    a("s_barrier")
    mid(3)
    for i in range(8):
        for r in range(2):
            a(f"ds_read_b64_tr_b16 v[{16+4*i+2*r}:{17+4*i+2*r}], v13 offset:{r*16384+i*32}")
        if i == 6:
            a("s_waitcnt lgkmcnt(0)")
    for r in range(2):
        a(f"ds_read_b64_tr_b16 v[{48+2*r}:{49+2*r}], v11 offset:{32768+r*2048}")
    for i in range(4):
        a(f"v_mov_b32 v{52+i}, 0")
    a("s_waitcnt lgkmcnt(0)")
    for i in range(8):
        a(f"buffer_store_dwordx4 v[{16+4*i}:{19+4*i}], v3, s[4:7], s34 offen offset:{(i&1)*1024} sc1")
        if i & 1:
            a("s_add_u32 s34, s34, 129024")
    a("buffer_store_dwordx4 v[48:51], v14, s[4:7], s35 offen")
    a("s_cmp_eq_u32 s43, 2")
    a(f"s_cselect_b32 s35, s35, {OOB}")
    a("buffer_store_dwordx4 v[52:55], v14, s[4:7], s35 offen offset:64")
    fin()

    a.label(f"{name}_x")
    srd(a, 12, 16, XT)
    a(f"s_sub_u32 s41, s2, {BX_}")
    if w12:
        a("s_lshl_b32 s41, s41, 2")
        a("s_add_u32 s41, s41, s3")
    else:
        a("s_cmp_lg_u32 s3, 0")
        a(f"s_cbranch_scc1 {name}_end")
    a("s_mul_i32 s33, s41, 18432")
    a(f"s_add_u32 s34, s33, {L['X0']}")
    a("s_mov_b32 m0, s40")
    for i in range(18):
        a(f"buffer_load_dwordx4 v3, s[12:15], s33 offen offset:{(i%3)*1024} " + NT + " lds")
        if i % 3 == 2:
            a("s_add_u32 s33, s33, 3072")
            a("s_add_u32 m0, m0, 3072")
    a("v_mul_u32_u24 v8, 1152, v4")
    a("v_lshl_add_u32 v8, v5, 3, v8")
    a("v_add_u32 v8, s40, v8")
    a("v_mov_b32 v12, 0x3f803f80")
    a("v_mov_b32 v14, 0")
    a("v_mov_b32 v15, 0")
    mid(2)
    a("s_waitcnt vmcnt(0)")
    mid(3)
    for grp in range(3):
        for ks in range(6 * grp, 6 * grp + 6):
            a(f"ds_read_b64 v[{16+4*ks}:{17+4*ks}], v8 offset:{ks*64}")
            a(f"ds_read_b64 v[{18+4*ks}:{19+4*ks}], v8 offset:{ks*64+32}")
        a("s_waitcnt lgkmcnt(0)")
        for ks in range(6 * grp, 6 * grp + 6):
            a(f"buffer_store_dwordx4 v[{16+4*ks}:{19+4*ks}], v3, s[4:7], s34 offen sc1")
            a("s_add_u32 s34, s34, 1024")
    for ks in range(18):
        for j in range(4):
            a(f"v_dot2c_f32_bf16 v14, v{16+4*ks+j}, v12")
            a(f"v_dot2c_f32_bf16 v15, v{16+4*ks+j}, v{16+4*ks+j}")
    a("v_lshlrev_b32 v9, 3, v1")
    a("s_lshl_b32 s36, s41, 9")
    a(f"s_add_u32 s36, s36, {L['ST0']}")
    a("buffer_store_dwordx2 v[14:15], v9, s[4:7], s36 offen")
    if ts.on:
        a.label(f"{name}_ts")
        ts()
        a("s_waitcnt vmcnt(0)")
        ts(); ts(True)
        ts.store()
    footer(a, name)
    return name, a.text(), dict(vgpr=96, sgpr=102, accum=96), dict(grid=248, block=256, lds=81920 + 4096)


def stats_finish(a, s, q, r, mr, t, double_ln):
    a(f"v_mul_f32 v{s}, {f32(1.0/D)}, v{s}")
    a(f"v_mul_f32 v{q}, {f32(1.0/D)}, v{q}")
    a(f"v_fma_f32 v{q}, -v{s}, v{s}, v{q}")
    a(f"v_max_f32 v{q}, 0, v{q}")
    a(f"v_add_f32 v{t}, {f32(1e-5)}, v{q}")
    a(f"v_rsq_f32 v{r}, v{t}")
    if double_ln:
        a(f"v_mul_f32 v{t}, v{r}, v{r}")
        a(f"v_mul_f32 v{t}, v{t}, v{q}")
        a(f"v_add_f32 v{t}, {f32(1e-5)}, v{t}")
        a(f"v_rsq_f32 v{t}, v{t}")
        a(f"v_mul_f32 v{r}, v{r}, v{t}")
    a(f"v_mul_f32 v{mr}, v{s}, v{r}")


def gen_p1(layer):
    name = f"p1l{layer}_kernel"
    XIN = L["X0"] if layer == 0 else L["X2"]
    STI = L["ST0"] if layer == 0 else L["ST2"]
    OUT = L[f"O{layer}"]
    a = Asm()
    vm = Cnt(a, "vmcnt", 63); lg = Cnt(a, "lgkmcnt", 15)
    header(a, name, 256)
    ts = Stamps(a, name)
    ts(True); ts()
    ROT = int(OPT.get("p1rot", 0))
    a("s_load_dwordx2 s[4:5], s[0:1], 80")
    a("v_and_b32 v1, 63, v0")
    a("v_lshrrev_b32 v2, 6, v0")
    a("v_readfirstlane_b32 s3, v2")
    a("v_lshlrev_b32 v3, 4, v1")
    a("v_and_b32 v4, 15, v1")
    a("v_lshrrev_b32 v5, 4, v1")
    a("s_and_b32 s12, s2, 7")
    a("s_lshr_b32 s13, s2, 3")
    a("s_lshr_b32 s14, s12, 1")
    a("s_lshl_b32 s14, s14, 2")
    a("s_and_b32 s15, s13, 3")
    a("s_mul_i32 s46, s15, 5")
    a("s_add_u32 s14, s14, s15")
    a("s_and_b32 s15, s12, 1")
    a("s_lshl_b32 s15, s15, 3")
    a("s_lshr_b32 s16, s13, 2")
    a("s_add_u32 s15, s15, s16")
    a("s_lshl_b32 s16, s16, 1")
    a("s_add_u32 s46, s46, s16")
    a("s_cmp_ge_u32 s46, 18")
    a("s_cselect_b32 s16, 18, 0")
    a("s_sub_u32 s46, s46, s16")
    if not ROT:
        a("s_mov_b32 s46, 0")
    a("s_lshl_b32 s47, s46, 10")
    a("s_lshl_b32 s16, s14, 3")
    a("s_lshl_b32 s17, s3, 1")
    a("s_add_u32 s17, s17, s16")
    a("s_mul_i32 s18, s17, 18432")
    a("s_add_u32 s18, s18, s47")
    a(f"s_add_u32 s18, s18, {XIN}")
    a(f"s_mul_i32 s20, s15, {18*7168}")
    a("s_lshl_b32 s21, s3, 11")
    a("s_add_u32 s20, s20, s21")
    a("s_mul_i32 s19, s46, 7168")
    a("s_add_u32 s20, s20, s19")
    a(f"s_add_u32 s20, s20, {L['WQ']}")
    a("s_sub_u32 s20, s20, s59")
    a("s_mul_i32 s22, s16, 18432")
    a(f"s_add_u32 s22, s22, {XIN - 18432 - 1024}")
    a("s_cmp_eq_u32 s14, 0")
    a(f"s_cselect_b32 s22, {OOB}, s22")
    a("s_add_u32 s22, s22, s47")
    a("s_mov_b32 s48, 7168")
    a(f"s_mov_b32 s49, {-17*7168}")
    a("s_mov_b32 s50, 1024")
    a(f"s_mov_b32 s51, {-17*1024}")
    a("s_mov_b32 s44, 0xfffefffe")
    a("s_cmp_eq_u32 s3, 3")
    a("s_cselect_b32 s22, s22, s20")
    a("s_cselect_b32 s52, s50, s48")
    a("s_cselect_b32 s53, s51, s49")
    a("s_cselect_b32 s44, s44, -1")
    a("s_mov_b32 s45, s44")
    a("s_mov_b32 s24, s21")
    a("s_lshl_b32 s25, s17, 9")
    a(f"s_add_u32 s25, s25, {STI}")
    a("s_lshl_b32 s26, s16, 9")
    a(f"s_add_u32 s26, s26, {STI - 512}")
    a("s_cmp_eq_u32 s14, 0")
    a(f"s_cselect_b32 s26, {OOB}, s26")
    a("s_lshl_b32 s27, s3, 2")
    a("s_lshr_b32 s28, 0x1654, s27")
    a("s_and_b32 s28, s28, 15")
    a("s_lshr_b32 s27, 0x0632, s27")
    a("s_and_b32 s27, s27, 15")
    a("v_lshlrev_b32 v6, 5, v4")
    a("v_lshl_add_u32 v6, v5, 3, v6")
    a("v_lshlrev_b32 v7, 4, v5")
    a("v_lshlrev_b32 v8, 2, v4")
    a("v_add_u32 v15, 18432, v3")
    a("s_waitcnt lgkmcnt(0)")
    a("s_add_u32 s4, s4, s59")
    a("s_addc_u32 s5, s5, 0")
    a("s_and_b32 s5, s5, 0xffff")
    a(f"s_mov_b32 s6, {WS_BYTES}")
    a("s_mov_b32 s7, 0x00020000")
    ACC = 16; AB = 88
    RN = 168
    RS = 176
    CQN = 200
    CQH = 220
    CQS = 224
    MS = 228; MPA = 232; MPB = 236
    T0 = 200
    EX = 147456
    CQL = EX + 5 * 3072
    for n, so, off in ((0, "s25", 0), (1, "s25", 512), (2, "s26", 0)):
        a(f"buffer_load_dwordx2 {vr(T0+2*n,2)}, v6, s[4:7], {so} offen offset:{off}"); vm.issue("st")

    def loads(ks):
        if not ROT:
            o = (ks % 4) * 1024
            return [
                ["s_mov_b32 m0, s24", "s_add_u32 s24, s24, 8192", "buffer_load_dwordx4 v3, s[4:7], s20 offen lds", "s_add_u32 s20, s20, 7168"],
                ["s_mov_b64 exec, s[44:45]", "buffer_load_dwordx4 v3, s[4:7], s22 offen offset:1024 lds", "s_mov_b64 exec, -1",
                 "s_add_u32 s22, s22, s52"],
                [f"buffer_load_dwordx4 {ar(4*ks,4)}, v3, s[4:7], s18 offen offset:{o}"],
                [f"buffer_load_dwordx4 {ar(72+4*ks,4)}, v15, s[4:7], s18 offen offset:{o}"] + (["s_add_u32 s18, s18, 4096"] if ks % 4 == 3 else []),
            ]
        return [
            ["s_mov_b32 m0, s24", "s_add_u32 s46, s46, 1", "buffer_load_dwordx4 v3, s[4:7], s20 offen lds",
             "s_cmp_eq_u32 s46, 18", "s_cselect_b32 s54, s49, s48", "s_cselect_b32 s55, s53, s52", "s_cselect_b32 s56, s51, s50",
             "s_add_u32 s20, s20, s54"],
            ["s_mov_b64 exec, s[44:45]", "buffer_load_dwordx4 v3, s[4:7], s22 offen offset:1024 lds", "s_mov_b64 exec, -1",
             "s_add_u32 s22, s22, s55", "s_add_u32 s24, s24, 8192"],
            [f"buffer_load_dwordx4 {ar(4*ks,4)}, v3, s[4:7], s18 offen"],
            [f"buffer_load_dwordx4 {ar(72+4*ks,4)}, v15, s[4:7], s18 offen", "s_add_u32 s18, s18, s56"],
        ]

    def do_load(grp, ks):
        for t in grp:
            a(t)
        vm.issue(("k", ks))

    PF = int(OPT.get("p1pf", 5))
    PF0 = int(OPT.get("p1pf0", 2))
    PF1 = int(OPT.get("p1pf1", 4))
    for ks in range(PF0):
        for grp in loads(ks):
            do_load(grp, ks)
    ts()
    a("v_min_u32 v12, 71, v0")
    a("v_lshrrev_b32 v13, 2, v12")
    a("v_lshlrev_b32 v13, 13, v13")
    a("v_and_b32 v12, 3, v12")
    a("v_lshl_add_u32 v13, v12, 8, v13")
    for i in range(4):
        a(f"v_mov_b32 v{ACC+i}, 0x3f803f80")
    a(f"ds_write_b128 v13, {vr(ACC,4)} offset:7168")
    a("v_mov_b32 v9, v3")
    a("s_lshl_b32 s32, s27, 10")
    a("v_add_u32 v10, s32, v3")
    a("s_lshl_b32 s32, s28, 10")
    a("v_add_u32 v11, s32, v3")
    a(f"v_mov_b32 v12, {f32(-1e30)}")
    a("v_lshlrev_b32 v13, 2, v5")
    a("v_sub_u32 v13, v4, v13")
    a("s_cmp_eq_u32 s17, 0")
    a("s_cselect_b32 s33, -100, -2")
    for i in range(4):
        a(f"v_subrev_u32 v14, {i}, v13")
        a("v_and_b32 v2, 1, v14")
        a("v_cmp_eq_u32 s[34:35], 0, v2")
        a("v_cmp_le_i32 vcc, 0, v14")
        a("s_and_b64 vcc, vcc, s[34:35]")
        a(f"v_cndmask_b32 v{MS+i}, v12, 0, vcc")
        a("v_cmp_ge_i32 vcc, -2, v14")
        a("s_and_b64 vcc, vcc, s[34:35]")
        a(f"v_cndmask_b32 v{MPB+i}, v12, 0, vcc")
        a("v_cmp_ge_i32 vcc, s33, v14")
        a("s_and_b64 vcc, vcc, s[34:35]")
        a(f"v_cndmask_b32 v{MPA+i}, v12, 0, vcc")
    a("s_mul_i32 s32, s3, 384")
    a(f"s_add_u32 s32, s32, {EX}")
    a("v_add_u32 v12, s32, v8")
    a("v_add_u32 v13, s32, v7")
    for ks in range(PF0, PF1):
        for grp in loads(ks):
            do_load(grp, ks)
    vm.wait("st")
    for r in range(6):
        a(f"v_mov_b32 v{T0+8+r}, v{T0+r}")
    for r in range(6):
        a(f"v_permlane16_swap_b32 v{T0+r}, v{T0+8+r}")
    for r in range(6):
        a(f"v_add_f32 v{T0+r}, v{T0+r}, v{T0+8+r}")
    for r in range(6):
        a(f"v_mov_b32 v{T0+8+r}, v{T0+r}")
    for r in range(6):
        a(f"v_permlane32_swap_b32 v{T0+r}, v{T0+8+r}")
    for r in range(6):
        a(f"v_add_f32 v{T0+r}, v{T0+r}, v{T0+8+r}")
    for n in range(3):
        b = T0 + 2 * n
        stats_finish(a, b, b + 1, RN + 2 * n, RN + 2 * n + 1, T0 + 8 + n, False)
        a(f"ds_write_b32 v12, v{RN+2*n} offset:{n*128}")
        a(f"ds_write_b32 v12, v{RN+2*n+1} offset:{n*128+64}")
    for n in range(3):
        a(f"ds_read_b128 {vr(RS+8*n,4)}, v13 offset:{n*128}")
        a(f"ds_read_b128 {vr(RS+8*n+4,4)}, v13 offset:{n*128+64}")
    for ks in range(PF1, PF):
        for grp in loads(ks):
            do_load(grp, ks)

    def reads(ks):
        b = AB + 40 * (ks & 1)
        o = (ks % 8) * 8192
        r = [f"ds_read_b128 {vr(b+28,4)}, v9 offset:{o+7*1024}",
             f"ds_read_b128 {vr(b+32,4)}, v10 offset:{o}",
             f"ds_read_b128 {vr(b+36,4)}, v11 offset:{o}"]
        r += [f"ds_read_b128 {vr(b+4*fr,4)}, v9 offset:{o+fr*1024}" for fr in (0, 1, 2, 3, 6, 4, 5)]
        return r

    def mfmas(ks):
        b = AB + 40 * (ks & 1)
        r = []
        acc = vr(ACC + 64, 4); c = "0" if ks == 0 else acc
        r.append(f"v_mfma_f32_16x16x32_bf16 {acc}, {vr(b+32,4)}, {vr(b+28,4)}, {c}")
        acc = vr(ACC + 68, 4); c = "0" if ks == 0 else acc
        r.append(f"v_mfma_f32_16x16x32_bf16 {acc}, {vr(b+28,4)}, {vr(b+36,4)}, {c}")
        for slot, fr in enumerate((0, 1, 2, 3, 6, 4, 5, 6)):
            for n in range(2):
                acc = vr(ACC + 32 * n + 4 * slot, 4)
                x = ar(72 * n + 4 * ks, 4)
                w = vr(b + 4 * fr, 4)
                c = "0" if ks == 0 else acc
                if slot < 5:
                    r.append(f"v_mfma_f32_16x16x32_bf16 {acc}, {w}, {x}, {c}")
                else:
                    r.append(f"v_mfma_f32_16x16x32_bf16 {acc}, {x}, {w}, {c}")
        return r

    CH = int(OPT.get("p1ch", 2))
    nload = [PF]
    ts()
    vm.wait(("k", CH - 1))
    a("s_waitcnt lgkmcnt(0)")
    a("s_barrier")
    for t in reads(0):
        a(t)
    a("s_waitcnt lgkmcnt(0)")
    for ks in range(18):
        if ks in (0, 6, 12):
            ts()
        m = mfmas(ks)
        nxt = ks + 1
        rd = []
        if nxt < 18:
            if nxt % CH == 0:
                vm.wait(("k", min(nxt + CH - 1, 17)))
                a("s_barrier")
            if nxt % 8 == 0:
                a("v_add_u32 v9, 0x10000, v9")
                a("v_add_u32 v10, 0x10000, v10")
                a("v_add_u32 v11, 0x10000, v11")
            rd = reads(nxt)
        else:
            a("s_lshl_b32 s32, s27, 6")
            a(f"s_add_u32 s32, s32, {CQL}")
            a("v_add_u32 v12, s32, v7")
            a("s_lshl_b32 s33, s28, 6")
            a(f"s_add_u32 s33, s33, {CQL}")
            a("v_add_u32 v13, s33, v8")
            a("s_mov_b32 s34, 0x00010001")
            a("s_mov_b32 s35, 0x00010001")
        RAMP = int(OPT.get("p1ramp", 0))
        ld = []
        for _ in range(2 if ks < RAMP else 1):
            if nload[0] < 18:
                ld += [(g, nload[0]) for g in loads(nload[0])]
                nload[0] += 1
        for i, t in enumerate(m):
            a(t)
            if i < len(rd):
                a(rd[i])
            st0 = 10 if len(ld) <= 4 else 2
            if i >= st0 and (i - st0) % 2 == 0 and (i - st0) // 2 < len(ld):
                do_load(*ld[(i - st0) // 2])
            if ks == 17 and i == 10:
                a("s_mov_b64 exec, s[34:35]")
                a(f"ds_write_b128 v12, {vr(ACC+64,4)}")
                a("s_mov_b64 exec, 0xffff")
                a(f"ds_write_b32 v13, v{ACC+68}")
                a("s_mov_b64 exec, -1")
        a("s_waitcnt lgkmcnt(0)")
    a("s_barrier")
    if "nopf" not in OPT:
        a("s_lshl_b32 s48, s13, 2")
        a("s_add_u32 s48, s48, s3")
        a("s_mul_i32 s49, s48, 5184")
        a(f"s_add_u32 s49, s49, {L['WO']}")
        a("s_sub_u32 s49, s49, s59")
        for i in range(6):
            if i == 4:
                a("s_add_u32 s49, s49, 4096")
            a(f"buffer_load_dwordx4 {ar(4*i,4)}, v3, s[4:7], s49 offen offset:{(i%4)*1024}")
        NPW = int(OPT.get("p1pw", 0))
        a("s_and_b32 s50, s12, 3")
        a("s_lshl_b32 s50, s50, 2")
        a("s_add_u32 s50, s50, s3")
        a(f"s_mul_i32 s50, s50, {SLB}")
        a(f"s_mul_i32 s51, s13, {NPW*1024}")
        a("s_add_u32 s50, s50, s51")
        a(f"s_add_u32 s50, s50, {L['W12']}")
        a("s_sub_u32 s50, s50, s59")
        for i in range(NPW):
            if i and i % 4 == 0:
                a("s_add_u32 s50, s50, 4096")
            a(f"buffer_load_dwordx4 {ar(24+4*i,4)}, v3, s[4:7], s50 offen offset:{(i%4)*1024}")
    a(f"v_add_u32 v9, {CQL}, v7")
    a(f"v_add_u32 v10, {CQL}, v8")
    for i, fr in enumerate((0, 1, 2, 3, 6)):
        a(f"ds_read_b128 {vr(CQN+4*i,4)}, v9 offset:{fr*64}")
    a(f"ds_read_b128 {vr(CQH,4)}, v12")
    for i, fr in enumerate((4, 5, 6)):
        a(f"ds_read_b32 v{CQS+i}, v10 offset:{fr*64}")
    a(f"ds_read_b32 v{CQS+3}, v13")

    KF = 88; QF = 112; VF = 128; ONE = 148; T = 152
    ts()
    for i in range(4):
        a(f"v_mul_f32 v{ACC+64+i}, v{ACC+64+i}, v{RN+4}")
        a(f"v_mul_f32 v{ACC+68+i}, v{ACC+68+i}, v{RS+16+i}")
    for n in (1, 0):
        for j in range(5):
            for i in range(4):
                a(f"v_mul_f32 v{ACC+32*n+4*j+i}, v{ACC+32*n+4*j+i}, v{RN+2*n}")
        for j in range(5, 8):
            for i in range(4):
                a(f"v_mul_f32 v{ACC+32*n+4*j+i}, v{ACC+32*n+4*j+i}, v{RS+8*n+i}")

    def corr_n(acc, n, cq):
        for i in range(4):
            a(f"v_fma_f32 v{acc+i}, -v{RN+2*n+1}, v{cq+i}, v{acc+i}")

    def corr_s(acc, n, cq):
        for i in range(4):
            a(f"v_fma_f32 v{acc+i}, -v{RS+8*n+4+i}, v{cq}, v{acc+i}")

    def pack2(dst, acc):
        a(f"v_cvt_pk_bf16_f32 v{dst}, v{acc}, v{acc+1}")
        a(f"v_cvt_pk_bf16_f32 v{dst+1}, v{acc+2}, v{acc+3}")

    a("v_cmp_eq_u32 s[36:37], 0, v5")
    a("v_cmp_eq_u32 s[38:39], 1, v5")
    a("v_lshlrev_b32 v12, 3, v1")
    a("s_mul_i32 s32, s3, 3072")
    a(f"s_add_u32 s33, s32, {EX}")
    a("v_add_u32 v13, s33, v12")
    a("s_lshl_b32 s32, s3, 9")
    a(f"s_add_u32 s32, s32, {EX}")
    a("s_cmp_eq_u32 s3, 3")
    a(f"s_cselect_b32 s32, {EX+4*3072}, s32")
    a("v_add_u32 v14, s32, v12")
    a("s_waitcnt lgkmcnt(0)")

    def conv_tile(n):
        ac = ACC + 32 * n
        tl = n + 1
        for i in range(5):
            corr_n(ac + 4 * i, n, CQN + 4 * i)
        for h in range(2):
            pack2(QF + (2 * n + h) * 4, ac + 4 * h)
            pack2(KF + (2 * tl + h) * 4, ac + 8 + 4 * h)
        pack2(T + 8 + 2 * n, ac + 16)
        for h in range(2):
            a(f"v_mov_b32 v{KF+(2*tl+h)*4+2}, v{T+8+2*n+1}")
            a(f"v_cndmask_b32 v{QF+(2*n+h)*4+2}, 0, v{T+8+2*n}, s[{36+2*h}:{37+2*h}]")
        for h in range(3):
            corr_s(ac + 20 + 4 * h, n, CQS + h)
            pack2(VF + 6 * h + 2 * tl, ac + 20 + 4 * h)

    corr_n(ACC + 64, 2, CQH)
    corr_s(ACC + 68, 2, CQS + 3)
    pack2(T + 12, ACC + 64)
    pack2(T + 14, ACC + 68)
    a(f"ds_write_b64 v14, {vr(T+12,2)}")
    a(f"ds_write_b64 v14, {vr(T+14,2)} offset:1536")
    conv_tile(1)
    a(f"ds_write_b64 v13, {vr(KF+16,2)} offset:{3072}")
    a(f"ds_write_b64 v13, {vr(KF+20,2)} offset:{3072+512}")
    a(f"ds_write_b64 v13, {vr(T+10,2)} offset:{3072+1024}")
    for h in range(3):
        a(f"ds_write_b64 v13, {vr(VF+6*h+4,2)} offset:{3072+1536+512*h}")
    conv_tile(0)
    for i in range(6):
        a(f"v_mov_b32 v{KF+4*i+3}, 0")
    for i in range(4):
        a(f"v_mov_b32 v{QF+4*i+3}, 0")
        a(f"v_mov_b32 v{ONE+i}, 0x3f803f80")
    a("s_waitcnt lgkmcnt(0)")
    ts()
    a("s_barrier")
    ts()
    a(f"ds_read_b64 {vr(KF,2)}, v13")
    a(f"ds_read_b64 {vr(KF+4,2)}, v13 offset:512")
    a(f"ds_read_b32 v{KF+2}, v13 offset:{1024+4}")
    a(f"ds_read_b32 v{KF+6}, v13 offset:{1024+4}")
    for h in range(3):
        a(f"ds_read_b64 {vr(VF+6*h,2)}, v13 offset:{1536+512*h}")
    SB = 16
    PB = 48
    MX = 64
    OB = 168
    OO = 72
    jobs = [(1, 0), (1, 1), (0, 0), (0, 1)]
    cs = (18 ** -0.5) * math.log2(math.e)
    a(f"s_mov_b32 s40, {f32(cs)}")
    for j, (n, h) in enumerate(jobs):
        if j == 2:
            a("s_waitcnt lgkmcnt(0)")
        q = vr(QF + (2 * n + h) * 4, 4)
        mp = MPA if n == 0 else MPB
        a(f"v_mfma_f32_16x16x32_bf16 {vr(SB+8*j,4)}, {vr(KF+(2*n+h)*4,4)}, {q}, {vr(mp,4)}")
        a(f"v_mfma_f32_16x16x32_bf16 {vr(SB+8*j+4,4)}, {vr(KF+(2*(n+1)+h)*4,4)}, {q}, {vr(MS,4)}")
    for j in range(4):
        s = SB + 8 * j; m = MX + 2 * j
        a(f"v_max3_f32 v{m}, v{s}, v{s+1}, v{s+2}")
        a(f"v_max3_f32 v{m+1}, v{s+3}, v{s+4}, v{s+5}")
        a(f"v_max3_f32 v{m}, v{m}, v{s+6}, v{s+7}")
        a(f"v_max_f32 v{m}, v{m}, v{m+1}")
    for j in range(4):
        a(f"v_mov_b32 v{MX+2*j+1}, v{MX+2*j}")
    for j in range(4):
        a(f"v_permlane16_swap_b32 v{MX+2*j}, v{MX+2*j+1}")
    for j in range(4):
        a(f"v_max_f32 v{MX+2*j}, v{MX+2*j}, v{MX+2*j+1}")
    for j in range(4):
        a(f"v_mov_b32 v{MX+2*j+1}, v{MX+2*j}")
    for j in range(4):
        a(f"v_permlane32_swap_b32 v{MX+2*j}, v{MX+2*j+1}")
    for j in range(4):
        a(f"v_max_f32 v{MX+2*j}, v{MX+2*j}, v{MX+2*j+1}")
    for j in range(4):
        a(f"v_mul_f32 v{MX+2*j}, s40, v{MX+2*j}")
    for j, (n, h) in enumerate(jobs):
        s = SB + 8 * j
        for i in range(8):
            a(f"v_fma_f32 v{s+i}, v{s+i}, s40, -v{MX+2*j}")
        for i in range(8):
            a(f"v_exp_f32 v{s+i}, v{s+i}")
        for i in range(4):
            a(f"v_cvt_pk_bf16_f32 v{PB+4*j+i}, v{s+2*i}, v{s+2*i+1}")
        p = vr(PB + 4 * j, 4)
        a(f"v_mfma_f32_16x16x32_bf16 {vr(OB+12*j+8,4)}, {vr(ONE,4)}, {p}, 0")
        a(f"v_mfma_f32_16x16x32_bf16 {vr(OB+12*j,4)}, {vr(VF+6*h+2*n,4)}, {p}, 0")
        a(f"v_mfma_f32_16x16x32_bf16 {vr(OB+12*j+4,4)}, {vr(VF+12+2*n,4)}, {p}, 0")
    a("s_mul_i32 s32, s17, 18432")
    a("s_lshl_b32 s33, s15, 10")
    a("s_add_u32 s33, s33, s32")
    a(f"s_add_u32 s33, s33, {OUT}")
    a("s_add_u32 s34, s33, 18432")
    a("s_lshr_b32 s35, s15, 3")
    a("s_lshl_b32 s35, s35, 10")
    a("s_and_b32 s36, s15, 3")
    a("s_lshl_b32 s36, s36, 8")
    a("s_add_u32 s35, s35, s36")
    a("s_lshr_b32 s36, s15, 2")
    a("s_and_b32 s36, s36, 1")
    a("s_lshl_b32 s36, s36, 3")
    a("s_add_u32 s35, s35, s36")
    a("s_add_u32 s35, s35, s32")
    a(f"s_add_u32 s35, s35, {OUT + 16*1024}")
    a("s_add_u32 s36, s35, 18432")
    a("v_lshlrev_b32 v12, 4, v4")
    a("v_mov_b32 v13, 0x40000000")
    a("v_cmp_eq_u32 vcc, 2, v5")
    a("v_cndmask_b32 v12, v13, v12, vcc")
    for j, (n, h) in enumerate(jobs):
        o = OB + 12 * j
        a(f"v_rcp_f32 v{o+8}, v{o+8}")
        for i in range(4):
            a(f"v_mul_f32 v{o+i}, v{o+i}, v{o+8}")
        a(f"v_mul_f32 v{o+4+2*h}, v{o+4+2*h}, v{o+8}")
        a(f"v_mul_f32 v{o+5+2*h}, v{o+5+2*h}, v{o+8}")
        a(f"v_cvt_pk_bf16_f32 v{OO+4*n+2*h}, v{o}, v{o+1}")
        a(f"v_cvt_pk_bf16_f32 v{OO+4*n+2*h+1}, v{o+2}, v{o+3}")
        a(f"v_cvt_pk_bf16_f32 v{OO+8+2*n+h}, v{o+4+2*h}, v{o+5+2*h}")
        if h == 1:
            a(f"buffer_store_dwordx4 {vr(OO+4*n,4)}, v3, s[4:7], s{33+n} offen {OPT.get('p1st', 'sc1')}")
            a(f"buffer_store_dwordx2 {vr(OO+8+2*n,2)}, v12, s[4:7], s{35+n} offen")
    ts()
    if ts.on:
        a("s_waitcnt vmcnt(0)")
    ts(); ts(True)
    ts.store()
    footer(a, name)
    return name, a.text(), dict(vgpr=240 + 144, sgpr=96, accum=240), dict(grid=256, block=256, lds=163840)


def pq_decode(a):
    a("v_and_b32 v1, 63, v0")
    a("v_lshrrev_b32 v2, 6, v0")
    a("v_readfirstlane_b32 s3, v2")
    a("v_lshlrev_b32 v3, 4, v1")
    a("v_and_b32 v4, 15, v1")
    a("v_lshrrev_b32 v5, 4, v1")
    a("s_and_b32 s12, s2, 7")
    a("s_lshl_b32 s12, s12, 3")
    a("s_lshr_b32 s13, s2, 3")
    a("s_and_b32 s15, s13, 7")
    a("s_add_u32 s12, s12, s15")
    a("s_lshr_b32 s13, s13, 3")
    a("s_mul_i32 s14, s13, 9")
    a("s_add_u32 s14, s14, s3")
    a("s_mul_i32 s15, s12, 36864")
    a("s_lshr_b32 s16, s14, 1")
    a("s_lshl_b32 s16, s16, 10")
    a("s_and_b32 s17, s14, 1")
    a("s_lshl_b32 s17, s17, 3")
    a("s_add_u32 s16, s16, s17")
    a("s_add_u32 s16, s16, s15")


def pq_epilogue(a, V, XOUT, STOUT, SCR, T):
    a(f"s_add_u32 s18, s16, {XOUT}")
    a("s_add_u32 s19, s18, 18432")
    for n in range(2):
        v = V + 4 * n
        a(f"v_cvt_pk_bf16_f32 v{T+2*n}, v{v}, v{v+1}")
        a(f"v_cvt_pk_bf16_f32 v{T+2*n+1}, v{v+2}, v{v+3}")
        a(f"buffer_store_dwordx2 {vr(T+2*n,2)}, v3, s[4:7], s{18+n} offen")
    for n in range(2):
        v = V + 4 * n; s = T + 4 + 2 * n
        a(f"v_add_f32 v{s}, v{v}, v{v+1}")
        a(f"v_mul_f32 v{s+1}, v{v}, v{v}")
        a(f"v_add_f32 v{s}, v{s}, v{v+2}")
        a(f"v_fmac_f32 v{s+1}, v{v+1}, v{v+1}")
        a(f"v_add_f32 v{s}, v{s}, v{v+3}")
        a(f"v_fmac_f32 v{s+1}, v{v+2}, v{v+2}")
        a(f"v_fmac_f32 v{s+1}, v{v+3}, v{v+3}")
    a("s_lshl_b32 s20, s3, 10")
    a(f"s_add_u32 s20, s20, {SCR}")
    a(f"v_add_u32 v{T+8}, s20, v3")
    a(f"ds_write_b128 v{T+8}, {vr(T+4,4)}")
    a("s_lshl_b32 s20, s3, 2")
    a(f"v_add_u32 v{T+9}, s20, v3")
    a("s_lshl_b32 s20, s12, 10")
    a("s_lshl_b32 s21, s13, 3")
    a("s_add_u32 s20, s20, s21")
    a("s_lshr_b32 s21, s3, 1")
    a("s_lshl_b32 s21, s21, 9")
    a("s_add_u32 s20, s20, s21")
    a("s_and_b32 s21, s3, 1")
    a("s_lshl_b32 s21, s21, 2")
    a("s_add_u32 s20, s20, s21")
    a(f"s_add_u32 s20, s20, {STOUT}")
    a(f"v_lshlrev_b32 v{T+8}, 5, v4")
    a("s_waitcnt lgkmcnt(0)")
    a("s_barrier")
    a("s_cmp_ge_u32 s3, 4")
    a("s_cbranch_scc1 " + a.endlabel)
    R = T + 12
    for w in range(9):
        a(f"ds_read_b32 v{R+w}, v{T+9} offset:{SCR+w*1024}")
    a("s_waitcnt lgkmcnt(0)")
    for st in ((0, 1), (2, 3), (4, 5), (6, 7), (0, 2), (4, 6), (0, 8), (0, 4)):
        a(f"v_add_f32 v{R+st[0]}, v{R+st[0]}, v{R+st[1]}")
    xg_reduce(a, "v_add_f32", R, T)
    a(f"buffer_store_dword v{R}, v{T+8}, s[4:7], s20 offen")


def unpack_add(a, dst, src):
    a(f"v_lshlrev_b32 v{src+2}, 16, v{src}")
    a(f"v_and_b32 v{src}, 0xffff0000, v{src}")
    a(f"v_lshlrev_b32 v{src+3}, 16, v{src+1}")
    a(f"v_and_b32 v{src+1}, 0xffff0000, v{src+1}")
    a(f"v_add_f32 v{dst}, v{dst}, v{src+2}")
    a(f"v_add_f32 v{dst+1}, v{dst+1}, v{src}")
    a(f"v_add_f32 v{dst+2}, v{dst+2}, v{src+3}")
    a(f"v_add_f32 v{dst+3}, v{dst+3}, v{src+1}")


def gen_p2(layer):
    name = f"p2l{layer}_kernel"
    XIN = L["X0"] if layer == 0 else L["X2"]
    OIN = L[f"O{layer}"]
    a = Asm(); a.endlabel = f"{name}_end"
    vm = Cnt(a, "vmcnt", 63); lg = Cnt(a, "lgkmcnt", 15)
    header(a, name, 256)
    ts = Stamps(a, name)
    ts(True); ts()
    a("s_load_dwordx2 s[4:5], s[0:1], 80")
    pq_decode(a)
    a("s_lshl_b32 s20, s3, 12")
    a("s_add_u32 s21, s15, s20")
    a(f"s_add_u32 s21, s21, {OIN}")
    a("s_mul_i32 s22, s14, 18432")
    a(f"s_add_u32 s22, s22, {L['WO']}")
    a("s_sub_u32 s22, s22, s59")
    a(f"s_add_u32 s23, s16, {XIN}")
    a("s_add_u32 s24, s23, 18432")
    a("s_mov_b32 m0, s20")
    a("s_waitcnt lgkmcnt(0)")
    a("s_add_u32 s4, s4, s59")
    a("s_addc_u32 s5, s5, 0")
    a("s_and_b32 s5, s5, 0xffff")
    a(f"s_mov_b32 s6, {WS_BYTES}")
    a("s_mov_b32 s7, 0x00020000")
    A = 16; B = 88; ACC = 8; RES = 120; T = 128
    for i in range(4):
        a(f"buffer_load_dwordx4 v3, s[4:7], s21 offen offset:{i*1024} lds"); vm.issue("o")

    def aload(ks):
        if ks and ks % 4 == 0:
            a("s_add_u32 s22, s22, 4096")
        a(f"buffer_load_dwordx4 {vr(A+4*ks,4)}, v3, s[4:7], s22 offen offset:{(ks%4)*1024}"); vm.issue(("a", ks))
    NA0 = int(OPT.get("p2na0", 2)); DA = int(OPT.get("p2da", 10))
    for ks in range(NA0):
        aload(ks)
    ts()
    vm.wait("o")
    ts()
    a("s_barrier")
    ts()
    NB = 4
    a(f"buffer_load_dwordx2 {vr(RES,2)}, v3, s[4:7], s23 offen"); vm.issue("r")
    a(f"buffer_load_dwordx2 {vr(RES+4,2)}, v3, s[4:7], s24 offen"); vm.issue("r")
    for ks in range(NA0, DA):
        aload(ks)

    def rd(ks):
        for n in range(2):
            a(f"ds_read_b128 {vr(B+8*(ks%NB)+4*n,4)}, v3 offset:{n*18432+ks*1024}"); lg.issue(("b", ks))
    for ks in range(NB - 1):
        rd(ks)
    for ks in range(18):
        if ks + DA < 18:
            aload(ks + DA)
        if ks + NB - 1 < 18:
            rd(ks + NB - 1)
        vm.wait(("a", ks))
        lg.wait(("b", ks))
        for n in range(2):
            acc = vr(ACC + 4 * n, 4)
            a(f"v_mfma_f32_16x16x32_bf16 {acc}, {vr(A+4*ks,4)}, {vr(B+8*(ks%NB)+4*n,4)}, {'0' if ks == 0 else acc}")
    a("s_lshl_b32 s25, s2, 6")
    a(f"s_add_u32 s25, s25, {L[f'FL{layer}']}")
    a("s_cmp_eq_u32 s3, 0")
    a(f"s_cselect_b32 s25, s25, {OOB}")
    a("v_lshlrev_b32 v6, 2, v4")
    a("v_mov_b32 v7, 0")
    a("buffer_store_dword v7, v6, s[4:7], s25 offen")
    vm.q = []
    ts()
    unpack_add(a, ACC, RES)
    unpack_add(a, ACC + 4, RES + 4)
    if ts.on:
        a.endlabel = f"{name}_ts"
    pq_epilogue(a, ACC, L[f"X1_{layer}"], L[f"ST1_{layer}"], 36864, 16)
    if ts.on:
        a.label(f"{name}_ts")
        ts()
        a("s_waitcnt vmcnt(0)")
    ts(); ts(True)
    ts.store()
    footer(a, name)
    return name, a.text(), dict(vgpr=128, sgpr=96, accum=128), dict(grid=256, block=576, lds=36864 + 9216)


def gen_p4(layer):
    name = f"p4l{layer}_kernel"
    a = Asm(); a.endlabel = f"{name}_end"
    vm = Cnt(a, "vmcnt", 63)
    header(a, name, 256)
    a("s_load_dwordx2 s[4:5], s[0:1], 80")
    a("s_load_dwordx4 s[24:27], s[0:1], 56")
    a("v_and_b32 v1, 63, v0")
    a("v_lshrrev_b32 v2, 6, v0")
    a("v_readfirstlane_b32 s3, v2")
    a("v_lshlrev_b32 v3, 4, v1")
    a("v_and_b32 v4, 15, v1")
    a("v_lshrrev_b32 v5, 4, v1")
    a("s_mul_i32 s12, s2, 9")
    a("s_add_u32 s12, s12, s3")
    a("s_lshl_b32 s12, s12, 10")
    a("s_and_b32 s13, s2, 1")
    a("s_mul_i32 s14, s13, 9")
    a("s_add_u32 s14, s14, s3")
    a("s_lshl_b32 s21, s14, 6")
    a(f"s_add_u32 s20, s12, {L['PART1'] if 'reuse' in OPT else L[f'PART{layer}']}")
    if "reuse" in OPT:
        a("s_sub_u32 s20, s20, s59")
    a(f"s_add_u32 s22, s12, {L[f'X1_{layer}']}")
    a("v_lshlrev_b32 v6, 3, v5")
    a("s_waitcnt lgkmcnt(0)")
    a("s_add_u32 s4, s4, s59")
    a("s_addc_u32 s5, s5, 0")
    a("s_and_b32 s5, s5, 0xffff")
    a(f"s_mov_b32 s6, {WS_BYTES}")
    a("s_mov_b32 s7, 0x00020000")
    srd(a, 28, 24, D * 2)
    P = 24; ACC = 8; BB = 16
    a(f"buffer_load_dwordx2 {vr(BB,2)}, v6, s[28:31], s21 offen"); vm.issue("r")
    a(f"buffer_load_dwordx2 {vr(BB+2,2)}, v6, s[28:31], s21 offen offset:32"); vm.issue("r")
    a(f"buffer_load_dwordx4 {vr(P,4)}, v3, s[4:7], s22 offen"); vm.issue(("p", 0))
    for s in range(8):
        a(f"buffer_load_dwordx4 {vr(P+4+4*s,4)}, v3, s[4:7], s20 offen"); vm.issue(("p", s + 1))
        a(f"s_add_u32 s20, s20, {XT}")
    a("v_mov_b32 v6, 0x00003f80")
    a("v_mov_b32 v7, 0x3f800000")
    vm.wait("r")
    for j in range(4):
        a(f"v_lshlrev_b32 v{ACC+2*j}, 16, v{BB+j}")
        a(f"v_and_b32 v{ACC+2*j+1}, 0xffff0000, v{BB+j}")
    for s in range(9):
        vm.wait(("p", s))
        for j in range(4):
            a(f"v_dot2c_f32_bf16 v{ACC+2*j}, v{P+4*s+j}, v6")
            a(f"v_dot2c_f32_bf16 v{ACC+2*j+1}, v{P+4*s+j}, v7")
    for j in range(4):
        a(f"v_cvt_pk_bf16_f32 v{16+j}, v{ACC+2*j}, v{ACC+2*j+1}")
    a("s_cmp_lg_u32 s59, 0")
    a(f"s_cbranch_scc1 {name}_fin")
    if True:
        a(f"s_add_u32 s18, s12, {L['X2']}")
        a("buffer_store_dwordx4 v[16:19], v3, s[4:7], s18 offen sc1")
        a(f"v_add_f32 v20, v{ACC}, v{ACC+1}")
        a(f"v_mul_f32 v21, v{ACC}, v{ACC}")
        a(f"v_fmac_f32 v21, v{ACC+1}, v{ACC+1}")
        for j in range(2, 8):
            a(f"v_add_f32 v20, v20, v{ACC+j}")
            a(f"v_fmac_f32 v21, v{ACC+j}, v{ACC+j}")
        a("v_lshlrev_b32 v22, 3, v0")
        a("ds_write_b64 v22, v[20:21]")
        a("s_waitcnt lgkmcnt(0)")
        a("s_barrier")
        a("s_cmp_lg_u32 s3, 0")
        a("s_cbranch_scc1 " + a.endlabel)
        for w in range(9):
            a(f"ds_read_b64 {vr(24+2*w,2)}, v22 offset:{w*512}")
        a("s_waitcnt lgkmcnt(0)")
        for st in ((0, 1), (2, 3), (4, 5), (6, 7), (0, 2), (4, 6), (0, 4), (0, 8)):
            for i in range(2):
                a(f"v_add_f32 v{24+2*st[0]+i}, v{24+2*st[0]+i}, v{24+2*st[1]+i}")
        a("v_mov_b32 v26, v24")
        a("v_mov_b32 v27, v25")
        a("v_permlane16_swap_b32 v24, v26")
        a("v_permlane16_swap_b32 v25, v27")
        a("v_add_f32 v24, v24, v26")
        a("v_add_f32 v25, v25, v27")
        a("v_lshlrev_b32 v22, 5, v4")
        a("v_lshrrev_b32 v5, 1, v5")
        a("v_lshl_add_u32 v22, v5, 3, v22")
        a("s_lshr_b32 s20, s2, 1")
        a("s_lshl_b32 s20, s20, 9")
        a("s_lshl_b32 s21, s13, 4")
        a("s_add_u32 s20, s20, s21")
        a(f"s_add_u32 s20, s20, {L['ST2']}")
        a("buffer_store_dwordx2 v[24:25], v22, s[4:7], s20 offen")
        a("s_endpgm")
        lds = 4608
        a.label(f"{name}_fin")
        srd(a, 8, 26, XT)
        a("v_mul_u32_u24 v6, 1152, v4")
        a("v_lshl_add_u32 v6, v5, 3, v6")
        a("s_lshr_b32 s20, s2, 1")
        a("s_mul_i32 s20, s20, 18432")
        a("s_add_u32 s20, s20, s21")
        a("buffer_store_dwordx2 v[16:17], v6, s[8:11], s20 offen")
        a("buffer_store_dwordx2 v[18:19], v6, s[8:11], s20 offen offset:32")
    footer(a, name)
    return name, a.text(), dict(vgpr=64, sgpr=64, accum=64), dict(grid=256, block=576, lds=lds)


def gen_p3(layer):
    name = f"p3l{layer}_kernel"
    XIN = L[f"X1_{layer}"]; STI = L[f"ST1_{layer}"]; PART = L[f"PART{layer}"]
    HX = L[f"HX{layer}"]; FL = L[f"FL{layer}"]
    if "reuse" in OPT:
        HX = L["HX1"]; PART = L["PART1"]
    a = Asm()
    vm = Cnt(a, "vmcnt", 63); lg = Cnt(a, "lgkmcnt", 15)
    header(a, name, 256)
    ts = Stamps(a, name)
    ts(True); ts()
    BUD = float(OPT.get("p3bud", 7))
    RA = 7
    N0 = int(OPT.get("p3n0", 14))
    PACE0 = int(OPT.get("p3pace0", 1)); PACE1 = int(OPT.get("p3pace1", 3))
    DFLAG = int(OPT.get("p3dflag", 45)); DPOLL = int(OPT.get("p3dpoll", 35)); DCHK = int(OPT.get("p3dchk", 40))
    K1, K3, RI, PV = 8, 10, 12, 14
    T = 16; AB = 32; AC1 = 68; HO = 164; OST = 236; BX = 244
    HP = 144
    a("s_load_dwordx2 s[4:5], s[0:1], 80")
    a("v_and_b32 v1, 63, v0")
    a("v_lshrrev_b32 v2, 6, v0")
    a("v_readfirstlane_b32 s3, v2")
    a("v_lshlrev_b32 v3, 4, v1")
    a("v_add_u32 v4, 0x10000, v3")
    a("v_add_u32 v5, 0x20000, v3")
    a("v_add_u32 v6, 18432, v3")
    a("v_and_b32 v7, 15, v1")
    a("v_lshlrev_b32 v7, 5, v7")
    a("v_lshrrev_b32 v2, 4, v1")
    a("v_lshl_add_u32 v7, v2, 3, v7")
    a("s_and_b32 s12, s2, 7")
    a("s_lshr_b32 s13, s2, 3")
    a("s_lshr_b32 s14, s12, 2")
    a("s_lshl_b32 s14, s14, 3")
    a("s_lshr_b32 s15, s13, 2")
    a("s_add_u32 s14, s14, s15")
    a("s_and_b32 s15, s12, 3")
    a("s_lshl_b32 s15, s15, 2")
    a("s_and_b32 s16, s13, 3")
    a("s_add_u32 s15, s15, s16")
    a("s_lshl_b32 s16, s14, 3")
    a("s_lshl_b32 s17, s3, 1")
    a("s_add_u32 s16, s16, s17")
    a("s_mul_i32 s17, s16, 18432")
    a(f"s_add_u32 s18, s17, {XIN}")
    a("s_mul_i32 s19, s3, 6144")
    a(f"s_mul_i32 s20, s15, {SLB}")
    a("s_add_u32 s20, s20, s19")
    a(f"s_add_u32 s20, s20, {L['W12']}")
    a("s_sub_u32 s20, s20, s59")
    a("s_lshl_b32 s21, s16, 9")
    a(f"s_add_u32 s21, s21, {STI}")
    a("s_lshl_b32 s22, s14, 4")
    a("s_add_u32 s22, s22, s15")
    a("s_lshl_b32 s22, s22, 2")
    a("s_add_u32 s22, s22, s3")
    a("s_xor_b32 s23, s22, 4")
    a("s_mul_i32 s24, s22, 18432")
    a(f"s_add_u32 s24, s24, {HX}")
    a("s_mul_i32 s25, s23, 18432")
    a(f"s_add_u32 s25, s25, {HX}")
    a("s_lshl_b32 s26, s22, 4")
    a(f"s_add_u32 s26, s26, {FL}")
    a("s_lshl_b32 s27, s23, 4")
    a(f"s_add_u32 s27, s27, {FL}")
    a("s_lshr_b32 s28, s15, 1")
    a(f"s_mul_i32 s28, s28, {XT}")
    a("s_add_u32 s28, s28, s17")
    a("s_and_b32 s29, s15, 1")
    a("s_mul_i32 s29, s29, 9216")
    a("s_add_u32 s28, s28, s29")
    a(f"s_add_u32 s28, s28, {PART}")
    a("s_mov_b32 s31, 0")
    if "reuse" in OPT:
        for r in (24, 25, 28):
            a(f"s_sub_u32 s{r}, s{r}, s59")
    a("s_waitcnt lgkmcnt(0)")
    a("s_add_u32 s4, s4, s59")
    a("s_addc_u32 s5, s5, 0")
    a("s_and_b32 s5, s5, 0xffff")
    a(f"s_mov_b32 s6, {WS_BYTES}")
    a("s_mov_b32 s7, 0x00020000")
    for n in range(2):
        a(f"buffer_load_dwordx2 {vr(T+2*n,2)}, v7, s[4:7], s21 offen offset:{n*512}"); vm.issue("st")

    U = []
    for k in range(19):
        for t in range(G0):
            for mh in range(2):
                U.append(("p1", t, k, mh))
    for t in range(G0, 9):
        for k in range(19):
            for mh in range(2):
                U.append(("p1", t, k, mh))
    for hk in range(KO):
        for dt in range(9):
            for mh in range(2):
                U.append(("p2", dt, hk, mh))
    for dt in range(9):
        for hk in range(KO, 18):
            for mh in range(2):
                U.append(("p2", dt, hk, mh))
    NU = len(U)
    assert NU == 666

    def mfma(i, n):
        kind, t, k, mh = U[i]
        if kind == "p1":
            acc = vr(AC1 + 16 * (t % 6) + (2 * mh + n) * 4, 4)
            b = ar((18 * n + k) * 4, 4) if k < 18 else vr(BX + 4 * n, 4)
        else:
            acc = ar(16 * t + (2 * mh + n) * 4, 4)
            b = vr(HO + (2 * k + n) * 4, 4) if k < 9 else ar(HP + (2 * (k - 9) + n) * 4, 4)
        a(f"v_mfma_f32_16x16x32_bf16 {acc}, {vr(AB+4*(i%9),4)}, {b}, {'0' if k == 0 else acc}")

    LQ = []

    def mk_w(c, i):
        def fn():
            if i == 0:
                a(f"s_add_u32 m0, s19, {(c % 6) * 24576}")
            if i == 4:
                a("s_add_u32 m0, m0, 4096")
                a("s_add_u32 s20, s20, 4096")
            if not ("p3nodma" in OPT and c >= 6):
                a(f"buffer_load_dwordx4 v3, s[4:7], s20 offen offset:{(i%4)*1024} lds"); vm.issue(("w", c))
            if i == 5:
                a(f"s_add_u32 s20, s20, {24576-4096}")
        return fn

    def mk_y(k, n):
        def fn():
            a(f"buffer_load_dwordx4 {ar((18*n+k)*4,4)}, {'v6' if n else 'v3'}, s[4:7], s18 offen offset:{(k%4)*1024}"); vm.issue(("y", k))
            if k % 4 == 3 and n == 1:
                a("s_add_u32 s18, s18, 4096")
        return fn
    for c in range(NCHUNK):
        for i in range(6):
            LQ.append((24 * c - RA - 0.5 + i * 0.01, c - 4 if c >= 6 else -1, 2 if i in (0, 5) else (3 if i == 4 else 1), mk_w(c, i), "w"))
    for k in range(18):
        for n in range(2):
            LQ.append((k * G0 * 2 - 0.1 + n * 0.01, -1, 1, mk_y(k, n), "y"))
    LQ.sort(key=lambda x: x[0])
    ny_left = [36]

    def lq_issue():
        it = LQ.pop(0)
        it[3]()
        if it[4] == "y":
            ny_left[0] -= 1
        return it[2]

    for _ in range(N0):
        lq_issue()
    ts()
    kk = math_sqrt(2.0 / PI)
    C1 = -2.0 * kk * LOG2E
    C3 = C1 * 0.044715
    a("v_mov_b32 v7, 0")
    vm.wait("st")
    for sw in ("v_permlane16_swap_b32", "v_permlane32_swap_b32"):
        for r in range(4):
            a(f"v_mov_b32 v{T+4+r}, v{T+r}")
        for r in range(4):
            a(f"{sw} v{T+r}, v{T+4+r}")
        for r in range(4):
            a(f"v_add_f32 v{T+r}, v{T+r}, v{T+4+r}")
    for n in range(2):
        m = T + 2 * n; r = T + 8 + n; t = T + 4 + n; bx = BX + 4 * n
        stats_finish(a, m, m + 1, r, T + 10 + n, t, True)
        a(f"v_rcp_f32 v{RI+n}, v{r}")
        a(f"v_mul_f32 v{K1+n}, {f32(C1)}, v{r}")
        a(f"v_mul_f32 v{K3+n}, v{r}, v{r}")
        a(f"v_mul_f32 v{K3+n}, v{K3+n}, v{r}")
        a(f"v_mul_f32 v{K3+n}, {f32(C3)}, v{K3+n}")
        a(f"v_cvt_pk_bf16_f32 v{t}, v{RI+n}, v{RI+n}")
        a(f"v_and_b32 v{t}, 0xffff0000, v{t}")
        a(f"v_sub_f32 v{t}, v{RI+n}, v{t}")
        a(f"v_cvt_pk_bf16_f32 v{bx}, v{RI+n}, v{t}")
        a(f"v_sub_f32 v{m}, 0, v{m}")
        a(f"v_cvt_pk_bf16_f32 v{bx+1}, v{m}, v{m}")
        a(f"v_and_b32 v{t}, 0xffff0000, v{bx+1}")
        a(f"v_sub_f32 v{t}, v{m}, v{t}")
        a(f"v_cvt_pk_bf16_f32 v{bx+2}, v{t}, v7")
        a(f"v_mov_b32 v{bx+3}, 0")

    EV = {}
    cur = [0]
    slow = []

    def ev(g, cost, fn):
        EV.setdefault(g, []).append((cost, fn))

    def mk(text):
        return lambda: a(text)

    def mk_hstore(q):
        def fn():
            if "p3nox" in OPT:
                hl_done.add(q)
                return
            if q % 4 == 0 and q:
                a("s_add_u32 s24, s24, 4096")
            a(f"buffer_store_dwordx4 {vr(HO+4*q,4)}, v3, s[4:7], s24 offen offset:{(q%4)*1024} sc1"); vm.issue(("hs", q))
            if q % 6 == 5:
                b = q // 6
                g = cur[0] + DFLAG
                ev(g, 3, lambda: flag_store(b))
                ev(g + DPOLL, 1, lambda: poll_issue(b))
                ev(g + DPOLL + DCHK, 4, lambda: poll_check(b))
        return fn

    def flag_store(b):
        a(f"v_mov_b32 v{PV}, {b+1}")
        vm.wait(("hs", 6 * b + 5))
        a("s_mov_b64 exec, 1")
        a(f"buffer_store_dword v{PV}, v7, s[4:7], s26 offen sc1"); vm.issue("fs")
        a("s_mov_b64 exec, -1")

    def poll_issue(b):
        a("s_mov_b64 exec, 1")
        a(f"buffer_load_dword v2, v7, s[4:7], s27 offen sc1"); vm.issue(("pl", b))
        a("s_mov_b64 exec, -1")

    def poll_check(b):
        vm.wait(("pl", b))
        a("v_readfirstlane_b32 s30, v2")
        a(f"s_cmp_gt_u32 s30, {b}")
        a.nf(f"s_cbranch_scc0 {name}_w{b}")
        a.label(f"{name}_r{b}", safe=False)
        slow.append(b)
        for i in range(6):
            ev(cur[0] + 1 + 2 * i, 1, mk_hload(6 * b + i))

    def mk_hload(q):
        def fn():
            if q % 4 == 0 and q:
                a("s_add_u32 s25, s25, 4096")
            a(f"buffer_load_dwordx4 {ar(HP+4*q,4)}, v3, s[4:7], s25 offen offset:{(q%4)*1024} sc1"); vm.issue(("hl", q))
            hl_done.add(q)
        return fn
    hl_done = set()

    SK = float(OPT.get("p3skew", 2.5))
    gel = []

    def add_gelu(t, ready):
        ac = AC1 + 16 * (t % 6)
        for v in range(16):
            n = v // 8; mh = (v // 4) % 2; i = v % 4
            x = ac + (2 * mh + n) * 4 + i; tm = T + v
            ops = [(1, f"v_mul_f32 v{tm}, v{x}, v{x}"), (1, f"v_fma_f32 v{tm}, v{tm}, v{K3+n}, v{K1+n}"), (1, f"v_mul_f32 v{tm}, v{tm}, v{x}"),
                   (2, f"v_exp_f32 v{tm}, v{tm}"), (1, f"v_fma_f32 v{tm}, v{tm}, v{RI+n}, v{RI+n}"), (2, f"v_rcp_f32 v{tm}, v{tm}"),
                   (1, f"v_mul_f32 v{x}, v{x}, v{tm}")]
            if "p3pk" in OPT:
                sel = "op_sel:[0,1,1] op_sel_hi:[1,1,1]" if n else "op_sel_hi:[1,0,0]"
                c = float(OPT["p3pk"])
                if v % 2 == 0:
                    X = vr(x, 2); TM = vr(tm, 2)
                    ops = [(c, f"v_pk_mul_f32 {TM}, {X}, {X}"), (c, f"v_pk_fma_f32 {TM}, {TM}, {vr(K3,2)}, {vr(K1,2)} {sel}"), (c, f"v_pk_mul_f32 {TM}, {TM}, {X}"),
                           (2, f"v_exp_f32 v{tm}, v{tm}"), None, (2, f"v_rcp_f32 v{tm}, v{tm}"), None]
                else:
                    X = vr(x - 1, 2); TM = vr(tm - 1, 2)
                    ops = [None, None, None, (2, f"v_exp_f32 v{tm}, v{tm}"), (c, f"v_pk_fma_f32 {TM}, {TM}, {vr(RI,2)}, {vr(RI,2)} {sel}"),
                           (2, f"v_rcp_f32 v{tm}, v{tm}"), (c, f"v_pk_mul_f32 {X}, {X}, {TM}")]
                for st, o in enumerate(ops):
                    if o is None:
                        continue
                    key = 16 * t + (v | 1) + st * SK + (0.3 if v % 2 else 0)
                    gel.append((key, ready, o[0], mk(o[1]), None))
                ops = []
            if "p3nogelu" in OPT:
                ops = []
            for st, (c, tx) in enumerate(ops):
                gel.append((16 * t + v + st * SK, ready, c, mk(tx), None))
            if v % 2 == 1:
                gel.append((16 * t + v + 6 * SK + 1.2, ready, 1, mk(f"v_cvt_pk_bf16_f32 v{HO+8*t+v//2}, v{x-1}, v{x}"), None))
            if v % 8 == 7:
                q = 2 * t + n
                gel.append((16 * t + v + 6 * SK + 2.4, ready, 1, mk_hstore(q), ("h", q)))
    last_idx = {}
    for i, u in enumerate(U):
        last_idx[u[:2]] = i
    for t in range(9):
        add_gelu(t, last_idx[("p1", t)] + 2)
    gel.sort(key=lambda x: x[0])
    VQ = [(g[1], g[2], g[3], g[4]) for g in gel]
    for dt in range(9):
        rdy = last_idx[("p2", dt)] + 2
        for n in range(2):
            o = OST + 4 * n
            for mh in range(2):
                for i in range(4):
                    VQ.append((rdy, 1, mk(f"v_accvgpr_read_b32 v{T+8*n+4*mh+i}, a{16*dt+(2*mh+n)*4+i}"), None))
            for e in range(4):
                VQ.append((rdy, 1, mk(f"v_cvt_pk_bf16_f32 v{o+e}, v{T+8*n+2*e}, v{T+8*n+2*e+1}"), None))

            def st(n=n, o=o, dt=dt):
                if dt % 4 == 0 and dt and n == 0:
                    a("s_add_u32 s28, s28, 4096")
                a(f"buffer_store_dwordx4 {vr(o,4)}, {'v6' if n else 'v3'}, s[4:7], s28 offen offset:{(dt%4)*1024} sc1"); vm.issue("po")
            VQ.append((rdy, 1, st, None))
    done_tags = set()

    def vq_pop():
        it = VQ.pop(0)
        assert it[0] - 2 < cur[0] + (1 if cur[0] == NU - 1 else 0), (it[0], cur[0])
        it[2]()
        if it[3]:
            done_tags.add(it[3])
        return it[1]

    def dsread(f):
        if "p3nolds" in OPT and f >= 9:
            return
        off = ((f // 24) % 6) * 24576 + (f % 24) * 1024
        base = "v3" if off < 65536 else ("v4" if off < 131072 else "v5")
        a(f"ds_read_b128 {vr(AB+4*(f%9),4)}, {base} offset:{off % 65536}"); lg.issue(("a", f))

    bar_done = [-1]

    def chunk_barrier(c):
        while LQ and LQ[0][0] <= 24 * c - RA:
            lq_issue()
        vm.wait(("w", c))
        a("s_barrier")
        bar_done[0] = c

    ts()
    chunk_barrier(0)
    ts()
    for f in range(RA):
        dsread(f)
    last_lq = -10
    forced = 0
    for i in range(NU):
        cur[0] = i
        kind, t, k, mh = U[i]
        if kind == "p1" and t == 0 and mh == 0 and k < 18:
            while LQ and LQ[0][0] <= i:
                lq_issue()
            vm.wait(("y", k))
        if kind == "p2":
            if k < 9:
                while ("h", 2 * k + 1) not in done_tags:
                    vq_pop(); forced += 1
            else:
                q = 2 * (k - 9) + 1
                while q not in hl_done:
                    g = min(EV)
                    for c, fn in EV.pop(g):
                        fn()
                    forced += 1000
                vm.wait(("hl", q))
        if kind == "p1" and k == 0 and t >= 6:
            while ("h", 2 * (t - 6) + 1) not in done_tags:
                vq_pop(); forced += 1
        if i % 3 == 0:
            lg.wait(("a", min(i + 2, NU - 1)))
        if ts.on and i in (38 * G0, 190, 266, 342, 396, 450, 504, 558, 612):
            ts(); lg.q = []
        mfma(i, 0)
        bud = BUD / 2
        for c, fn in EV.pop(i, []):
            fn(); bud -= c
        pace = PACE0 if ny_left[0] else PACE1
        if LQ and LQ[0][1] <= bar_done[0] and i - last_lq >= pace:
            bud -= lq_issue(); last_lq = i
        while VQ and VQ[0][0] <= i and bud >= VQ[0][1] - 0.5:
            bud -= vq_pop()
        mfma(i, 1)
        if "p3idle" in OPT:
            a(f"s_nop {OPT['p3idle']}")
        bud += BUD / 2 - 1 / 3
        if i + RA < NU:
            if (i + RA) % 24 == 0:
                chunk_barrier((i + RA) // 24); bud -= 2
            dsread(i + RA); bud -= 1
        while VQ and VQ[0][0] <= i and bud >= VQ[0][1] - 0.5:
            bud -= vq_pop()
    assert not EV, EV.keys()
    ts()
    while VQ:
        vq_pop()
    print(name, "forced:", forced, file=sys.stderr)
    ts()
    if ts.on:
        a("s_waitcnt vmcnt(0)")
    ts(); ts(True)
    ts.store()
    a("s_endpgm")
    for b in slow:
        a.label(f"{name}_w{b}")
        a("s_add_u32 s31, s31, 1")
        a("s_cmp_gt_u32 s31, 0x4000")
        a(f"s_cbranch_scc1 {name}_r{b}")
        a("s_sleep 2")
        a(f"buffer_load_dword v2, v7, s[4:7], s27 offen sc1")
        a("s_waitcnt vmcnt(0)")
        a("v_readfirstlane_b32 s30, v2")
        a(f"s_cmp_gt_u32 s30, {b}")
        a(f"s_cbranch_scc0 {name}_w{b}")
        a(f"s_branch {name}_r{b}")
    footer(a, name)
    return name, a.text(), dict(vgpr=512, sgpr=102, accum=256), dict(grid=256, block=256, lds=147456)


def main():
    ks = [gen_p0(), gen_p1(0), gen_p2(0), gen_p3(0), gen_p4(0)]
    allk = [ks[0]] + ks[1:] + [(k[0].replace("l0_", "l1_"), "", k[2], k[3]) for k in ks[1:]]
    seq = allk
    if "seq" in OPT:
        byname = {k[0][:-7]: k for k in allk}
        seq = [byname[n] for n in OPT["seq"].split("+")]
    ref = open(f"cdna_kernels/{NAME}.s.ref").read().split("\n")
    hdr = [ln for ln in ref if ln.startswith(";") and "@launch" not in ln and "Override launch" not in ln and "grid=ceil" not in ln]
    out = hdr[:]
    for name, _, _, g in seq:
        out.append(f"; @launch kernel={name} grid=({g['grid']},1,1) block=({g['block']},1,1) lds={g['lds']}")
    out.append('.amdgcn_target "amdgcn-amd-amdhsa--gfx950"')
    out.append(".text")
    for _, txt, _, _ in ks:
        out.append(txt)
    out.append("code_end:")
    out.append("    s_endpgm")
    out.append('.section .rodata,"a"')
    for name, _, kd, _ in allk:
        out.append(KD.format(name=name, **kd))
    path = sys.argv[1] if len(sys.argv) > 1 else f"cdna_kernels/{NAME}.s"
    open(path, "w").write("\n".join(out))
    json.dump(L, open("layout.json", "w"))
    print("written", path, "ws end", L["END"])


if __name__ == "__main__":
    main()
```
